```python
import torch

def _softmax(x, axis=-1):
    return torch.softmax(x, dim=axis)
def _gelu(x):
    return torch.nn.functional.gelu(x, approximate="tanh")
def _silu(x):
    return torch.nn.functional.silu(x)
def _sigmoid(x):
    return torch.sigmoid(x)
def _layernorm(x, axis=-1, eps=1e-5):
    m = x.mean(dim=axis, keepdim=True)
    v = x.var(dim=axis, keepdim=True, unbiased=False)
    return (x - m) / torch.sqrt(v + eps)
def _scatter_add(tgt, idx, src, axis=0):
    return tgt.clone().index_add_(axis, idx, src)
def _segment_sum(src, seg, n):
    out = torch.zeros((n,) + src.shape[1:], dtype=src.dtype)
    return out.index_add_(0, seg, src)
def _pad(x, pw):
    flat = tuple(v for pair in reversed(pw) for v in pair)
    return torch.nn.functional.pad(x, flat)

kernel_name = 'gated_mix__sliding_block__moe_arch_mod__prompt'

def setup_inputs():

    _w = (lambda a: (lambda t: t.to(torch.bfloat16) if t.is_floating_point() else t)(torch.as_tensor(a)))
    def _A_setup():
        B, S, D = 1, 2048, 640
        return {
            "x": _w((lambda *s: torch.randn(*s, dtype=torch.bfloat16) * 0.05)(B, S, D)),
            "wqkv": _w((lambda *s: torch.randn(*s, dtype=torch.bfloat16) * 1.6)(D, 3 * D)),
            "wo": _w((lambda *s: torch.randn(*s, dtype=torch.bfloat16) * 0.05)(D, D)),
        }
    _A_in = _A_setup()

    def _B_setup():
        B, S, D, F, C = 1, 2048, 640, 1536, 2
        return {
            "x": _w((lambda *s: torch.randn(*s, dtype=torch.bfloat16) * 0.05)(B, S, D)),
            "w_r": _w((lambda *s: torch.randn(*s, dtype=torch.bfloat16) * 3.2)(D)),
            "w_gate": _w((lambda *s: torch.randn(*s, dtype=torch.bfloat16) * 0.4)(D, F)),
            "w_up": _w((lambda *s: torch.randn(*s, dtype=torch.bfloat16) * 0.4)(D, F)),
            "w_down": _w((lambda *s: torch.randn(*s, dtype=torch.bfloat16) * 0.4)(F, D)),
        }
    _B_in = _B_setup()

    return {
        "A_x": _A_in["x"],
        "A_wqkv": _A_in["wqkv"],
        "A_wo": _A_in["wo"],
        "B_x": _B_in["x"],
        "B_w_r": _B_in["w_r"],
        "B_w_gate": _B_in["w_gate"],
        "B_w_up": _B_in["w_up"],
        "B_w_down": _B_in["w_down"],
        "gate_w": _w((lambda *s: torch.randn(*s, dtype=torch.bfloat16) * 0.05)(640) * 16.0),
    }

def reference(A_x, A_wqkv, A_wo, B_x, B_w_r, B_w_gate, B_w_up, B_w_down, gate_w):
    def _A_ref(x, wqkv, wo):
        B, S, D = x.shape
        H = 32; Dh = D // H; W = 256
        qkv = (lambda x, *d: x.permute(*d))((x @ wqkv).reshape(B, S, 3, H, Dh), 2, 0, 3, 1, 4)
        q, k, v = qkv[0], qkv[1], qkv[2]
        scores = torch.einsum("bhqd,bhkd->bhqk", q, k) * (Dh ** -0.5)
        idx = torch.arange(S)
        mask = (idx[:, None] - idx[None, :] >= 0) & (idx[:, None] - idx[None, :] < W)
        scores = torch.where(mask[None, None], scores, -1e9)
        p = _softmax(scores, axis=-1)
        o = torch.einsum("bhqk,bhkd->bhqd", p, v)
        return (lambda x, *d: x.permute(*d))(o, 0, 2, 1, 3).reshape(B, S, D) @ wo

    def _B_ref(x, w_r, w_gate, w_up, w_down):
        B, S, D = x.shape
        C = 2
        r = x @ w_r
        idx = torch.argsort(-r, axis=-1)[:, :C]
        idx_e = (lambda x, n, axis: torch.repeat_interleave(x, n, dim=axis))(idx.reshape(B, C, 1), D, axis=2)
        x_sel = (lambda x, i, axis: torch.take_along_dim(x, i, dim=axis))(x, idx_e, axis=1)
        g = _silu(x_sel @ w_gate)
        u = x_sel @ w_up
        y = (g * u) @ w_down
        r_sel = _sigmoid((lambda x, i, axis: torch.take_along_dim(x, i, dim=axis))(r, idx, axis=1))
        y = y * r_sel.reshape(B, C, 1)
        b_off = (torch.arange(B) * S).reshape(B, 1)
        flat_idx = (idx + b_off).reshape(B * C)
        zero = (x * 0.0).reshape(B * S, D)
        upd = _scatter_add(zero, flat_idx, y.reshape(B * C, D), axis=0)
        return x + upd.reshape(B, S, D)

    x = A_x
    g = _sigmoid((x * gate_w).sum(-1, keepdims=True))
    a = _A_ref(x, A_wqkv, A_wo)
    b = _B_ref(x, B_w_r, B_w_gate, B_w_up, B_w_down)
    return g * a + (1 - g) * b
```

```python
import re


class Asm:
    def __init__(self):
        self.lines = []

    def __call__(self, s):
        for ln in s.split("\n"):
            t = ln.strip()
            if not t:
                continue
            if t.endswith(":") or t.startswith("."):
                self.lines.append(t)
            else:
                self.lines.append("    " + t)

    def text(self):
        return "\n".join(self.lines) + "\n"


def vr(a, n=1):
    return f"v{a}" if n == 1 else f"v[{a}:{a+n-1}]"


def sr(a, n=1):
    return f"s{a}" if n == 1 else f"s[{a}:{a+n-1}]"


_REG = re.compile(r"^(-|abs\()?\|?([vsa])(\d+|\[(\d+):(\d+)\])\|?\)?$")
TRANS = ("v_exp_f32", "v_log_f32", "v_rcp_f32", "v_rsq_f32", "v_sqrt_f32", "v_sin_f32", "v_cos_f32", "v_rcp_iflag_f32")


def _regs(op):
    op = op.strip()
    if op == "vcc":
        return {"vcc"}
    if op in ("exec", "m0"):
        return {op}
    m = _REG.match(op)
    if not m:
        return set()
    k = m.group(2)
    if m.group(4) is not None:
        return {f"{k}{i}" for i in range(int(m.group(4)), int(m.group(5)) + 1)}
    return {f"{k}{int(m.group(3))}"}


class Ins:
    def __init__(self, text, idx):
        self.text = text
        self.idx = idx
        t = text.split(";")[0].strip()
        parts = t.split(None, 1)
        self.op = parts[0]
        rest = parts[1] if len(parts) > 1 else ""
        ops = [o.strip() for o in re.split(r",(?![^\[]*\])", rest)] if rest else []
        self.mods = ""
        if ops:
            lp = ops[-1].split(None, 1)
            ops[-1] = lp[0]
            self.mods = lp[1] if len(lp) > 1 else ""
        self.ops = ops
        op = self.op
        base = re.sub(r"_(e32|e64|dpp|sdwa)$", "", op)
        self.base = base
        self.mfma = op.startswith("v_mfma")
        self.valu = op.startswith("v_") and not self.mfma
        self.trans = base in TRANS
        self.dpp = op.endswith("_dpp") or "row_" in self.mods or "quad_perm" in self.mods
        self.vmem = op.startswith(("buffer_", "global_", "flat_"))
        self.ds = op.startswith("ds_")
        self.salu = op.startswith("s_")
        self.ldsdma = self.vmem and (" lds" in " " + self.mods or "_lds_" in op)
        R = [_regs(o) for o in ops]
        w, r = set(), set()
        self.C = set()
        self.AB = set()
        self.passes = 0
        self.storedata = set()
        if self.mfma:
            w = R[0]
            self.AB = R[1] | R[2]
            self.C = R[3]
            r = self.AB | self.C
            self.passes = 8 if "32x32" in op else 4
        elif self.valu:
            if base in ("v_permlane32_swap_b32", "v_permlane16_swap_b32", "v_swap_b32"):
                w = R[0] | R[1]
                r = R[0] | R[1]
            elif base.startswith(("v_add_co", "v_sub_co", "v_addc_co", "v_subb_co", "v_subrev_co", "v_div_scale", "v_mad_u64")):
                w = R[0] | R[1]
                r = set().union(*R[2:])
            elif base == "v_nop":
                pass
            else:
                w = R[0]
                r = set().union(*R[1:]) if len(R) > 1 else set()
                if base.startswith(("v_fmac", "v_dot2c", "v_pk_fmac", "v_writelane")) or self.dpp or "UNUSED_PRESERVE" in self.mods:
                    r |= R[0]
                if base.startswith("v_cmpx"):
                    w |= {"exec"}
        elif self.vmem:
            if op in ("buffer_wbl2", "buffer_inv"):
                pass
            elif self.ldsdma:
                r = set().union(*R) | {"m0"}
            elif "load" in op:
                w = R[0]
                r = set().union(*R[1:])
            elif op.startswith("buffer_"):
                r = set().union(*R)
                if "x3" in op or "x4" in op:
                    self.storedata = R[0]
                if "atomic" in op and "sc0" in self.mods:
                    w = R[0]
            else:
                r = set().union(*R)
                if "x3" in op or "x4" in op:
                    self.storedata = R[1]
        elif self.ds:
            if "read" in op or "permute" in op or "swizzle" in op or "_rtn" in op:
                w = R[0]
                r = set().union(*R[1:])
            else:
                r = set().union(*R)
        elif self.salu:
            if op.startswith(("s_cmp", "s_bitcmp", "s_cbranch", "s_branch", "s_waitcnt", "s_nop", "s_barrier", "s_endpgm", "s_setprio", "s_sleep", "s_setpc")):
                r = set().union(*R) if R else set()
            else:
                w = R[0] if R else set()
                r = set().union(*R[1:]) if len(R) > 1 else set()
                if "saveexec" in op:
                    w |= {"exec"}
        self.w, self.r = w, r
        self.states = 1
        if op == "s_nop":
            self.states = int(ops[0], 0) + 1


def _need(p, c):
    n = 0
    pv = {x for x in p.w if x[0] in "va" and x != "vcc"}
    ps = {x for x in p.w if x[0] == "s" or x == "vcc"}
    if p.valu:
        if c.mfma and pv & c.r:
            n = max(n, 2)
        if p.trans and c.valu and not c.trans and pv & c.r:
            n = max(n, 1)
        if c.valu and ps & c.r:
            n = max(n, 4 if c.base in ("v_readlane_b32", "v_writelane_b32") else 2)
        if c.vmem and ps & c.r:
            n = max(n, 5)
        if c.base in ("v_readlane_b32", "v_readfirstlane_b32") and pv & c.r:
            n = max(n, 1)
        if c.valu and c.dpp and pv & c.r:
            n = max(n, 2)
        if c.base.startswith("v_permlane") and pv & c.r:
            n = max(n, 2)
        if "exec" in p.w:
            if c.mfma or c.base.startswith(("v_readlane", "v_readfirstlane", "v_writelane", "v_permlane")):
                n = max(n, 4)
            if c.dpp:
                n = max(n, 5)
        if ("sdwa" in p.op and "dst_sel:DWORD" not in p.mods) and c.valu and pv & (c.r | c.w):
            n = max(n, 1)
        if p.base.startswith("v_dot") and (c.valu or c.mfma) and pv & (c.r | c.w) and c.base != p.base:
            n = max(n, 3)
    if p.mfma:
        big = p.passes == 8
        if c.mfma:
            if p.w & c.AB:
                n = max(n, 12 if big else 8)
            if p.w & c.C and not (p.w == c.C and p.passes == c.passes):
                n = max(n, 10 if big else 6)
            if p.w & c.w and not (p.w == c.C):
                n = max(n, 0)
        elif c.valu:
            if p.w & (c.r | c.w):
                n = max(n, 12 if big else 8)
            if p.C & c.w:
                n = max(n, 7 if big else 3)
        elif c.vmem or c.ds:
            if p.w & (c.r | c.w):
                n = max(n, 12 if big else 8)
    if p.salu and "m0" in p.w and "m0" in c.r:
        n = max(n, 1)
    if p.storedata:
        if c.valu and p.storedata & c.w:
            n = max(n, 2)
        elif p.storedata & c.w:
            n = max(n, 1)
    return n


def check_hazards(text, verbose=True):
    ins, labels = [], {}
    for ln in text.split("\n"):
        t = ln.split(";")[0].strip()
        if not t or t.startswith("."):
            continue
        if t.endswith(":"):
            labels[t[:-1]] = len(ins)
            continue
        ins.append(Ins(t, len(ins)))
    bad = []

    def succ(i):
        x = ins[i]
        if x.op == "s_endpgm" or x.op.startswith("s_setpc"):
            return []
        if x.op == "s_branch":
            return [labels[x.ops[0]]]
        if x.op.startswith("s_cbranch"):
            return [i + 1, labels[x.ops[0]]]
        return [i + 1]

    for p in ins:
        if not (p.valu or p.mfma or p.storedata or (p.salu and "m0" in p.w)):
            continue
        horizon = 12 if p.mfma else 5
        stack = [(j, 0) for j in succ(p.idx)]
        seen = {}
        while stack:
            j, d = stack.pop()
            if j >= len(ins) or d >= horizon:
                continue
            if j in seen and seen[j] <= d:
                continue
            seen[j] = d
            c = ins[j]
            n = _need(p, c)
            if n > d:
                bad.append((p.idx, j, n, d, p.text, c.text))
            for k in succ(j):
                stack.append((k, d + c.states))
    if verbose:
        for b in bad:
            print(f"HAZARD need {b[2]} have {b[3]}:\n    [{b[0]}] {b[4]}\n    [{b[1]}] {b[5]}")
    return bad
```

```python
import sys
from asmlib import Asm, vr, sr, check_hazards

NAME = "gated_mix__sliding_block__moe_arch_mod__prompt"
WS_QKV, WS_OLO, WS_OHI, WS_G, WS_CAND, WS_P1, WS_P2, WS_END = 0, 0x800000, 0xA00000, 0xA80000, 0xA90000, 0xAA0000, 0xB20000, 0xC00000
import struct
def f32(x): return "0x%08x" % struct.unpack("<I", struct.pack("<f", x))[0]
LOG2E = 1.4426950408889634
QSCALE = (20 ** -0.5) * LOG2E

OPT = dict(mimic=0, la=2, xnt="", rot=1)
for a in sys.argv[2:]:
    k, v = a.split("=")
    OPT[k] = int(v) if v.lstrip("-").isdigit() else v


def srd(a, d, p, n):
    a(f"""s_mov_b32 s{d}, s{p}
    s_mov_b32 s{d+1}, s{p+1}
    s_mov_b32 s{d+2}, {n}
    s_mov_b32 s{d+3}, 0x20000""")


def kernel_head(a, name):
    a(f""".globl {name}
    .p2align 8
    .type {name},@function
    {name}:""")


def kd(name, vgpr):
    return f""".amdhsa_kernel {name}
  .amdhsa_next_free_vgpr {vgpr}
  .amdhsa_next_free_sgpr 96
  .amdhsa_accum_offset {(vgpr+3)//4*4}
  .amdhsa_group_segment_fixed_size 0
  .amdhsa_kernarg_size 96
  .amdhsa_user_sgpr_count 2
  .amdhsa_user_sgpr_kernarg_segment_ptr 1
  .amdhsa_system_sgpr_workgroup_id_x 1
.end_amdhsa_kernel
"""


def wave_max_u32(a, v, sdst):
    for m in ("row_shr:1 row_mask:0xf bank_mask:0xf bound_ctrl:1", "row_shr:2 row_mask:0xf bank_mask:0xf bound_ctrl:1",
              "row_shr:4 row_mask:0xf bank_mask:0xf bound_ctrl:1", "row_shr:8 row_mask:0xf bank_mask:0xf bound_ctrl:1",
              "row_bcast:15 row_mask:0xa bank_mask:0xf", "row_bcast:31 row_mask:0xc bank_mask:0xf"):
        a(f"s_nop 1\nv_max_u32_dpp v{v}, v{v}, v{v} {m}")
    a(f"s_nop 0\nv_readlane_b32 s{sdst}, v{v}, 63")


def top2(a, k1, k2, t, s1, s2, sm):
    a(f"v_max_u32 v{t}, v{k1}, v{k2}")
    wave_max_u32(a, t, s1)
    a(f"""s_nop 1
    v_cmp_ne_u32 s[{sm}:{sm+1}], s{s1}, v{k1}
    s_nop 1
    v_cndmask_b32_e64 v{k1}, 0, v{k1}, s[{sm}:{sm+1}]
    v_cmp_ne_u32 s[{sm}:{sm+1}], s{s1}, v{k2}
    s_nop 1
    v_cndmask_b32_e64 v{k2}, 0, v{k2}, s[{sm}:{sm+1}]
    v_max_u32 v{t}, v{k1}, v{k2}""")
    wave_max_u32(a, t, s2)


def key_decode(a, sk, stok, sval, st):
    a(f"""s_and_b32 s{stok}, s{sk}, 0xffff
    s_sub_u32 s{stok}, 0xffff, s{stok}
    s_and_b32 s{stok}, s{stok}, 0x7ff
    s_ashr_i32 s{st}, s{sk}, 31
    s_not_b32 s{st}, s{st}
    s_or_b32 s{st}, s{st}, 0x80000000
    s_xor_b32 s{sval}, s{sk}, s{st}
    s_and_b32 s{sval}, s{sval}, 0xffff0000""")


def sigmoid(a, d, s):
    a(f"""v_mul_f32 v{d}, {f32(-LOG2E)}, {s}
    v_exp_f32 v{d}, v{d}
    s_nop 0
    v_add_f32 v{d}, 1.0, v{d}
    v_rcp_f32 v{d}, v{d}
    s_nop 0""")


def k1(a):
    kernel_head(a, "k1_kernel")
    LA = OPT["la"]
    a("""s_cmp_ge_u32 s2, 256
    s_cbranch_scc1 K1_end
    s_load_dwordx4 s[4:7], s[0:1], 0
    s_load_dwordx2 s[8:9], s[0:1], 32
    s_load_dwordx2 s[10:11], s[0:1], 64
    s_load_dwordx2 s[12:13], s[0:1], 88
    v_and_b32 v1, 63, v0
    v_lshrrev_b32 v2, 6, v0
    s_and_b32 s29, s2, 7
    v_readfirstlane_b32 s28, v2
    s_lshr_b32 s30, s2, 3
    s_and_b32 s31, s30, 1
    s_lshr_b32 s32, s30, 1
    s_lshl_b32 s34, s29, 1
    s_add_u32 s34, s34, s31
    s_mul_i32 s34, s34, 128*1280
    s_lshl_b32 s35, s32, 8
    s_lshl_b32 s40, s28, 10""")
    if OPT["rot"]:
        a("""s_add_u32 s33, s32, s29
        s_add_u32 s33, s33, s31
        s_cmp_ge_u32 s33, 20
        s_cselect_b32 s36, 20, 0
        s_sub_u32 s33, s33, s36
        s_cmp_ge_u32 s33, 10
        s_cselect_b32 s36, 10, 0
        s_sub_u32 s33, s33, s36""")
    else:
        a("s_mov_b32 s33, 0")
    a("""v_lshrrev_b32 v3, 3, v1
    v_lshl_add_u32 v3, v2, 3, v3
    v_mul_u32_u24 v3, 1280, v3
    v_lshrrev_b32 v4, 4, v1
    v_lshl_add_u32 v5, v2, 2, v4
    v_xor_b32 v6, v5, v1
    v_and_b32 v6, 7, v6
    v_lshl_add_u32 v10, v6, 4, v3
    v_mul_u32_u24 v5, 3840, v5
    v_lshlrev_b32 v4, 2, v4
    v_xor_b32 v4, v4, v1
    v_and_b32 v4, 15, v4
    v_lshl_add_u32 v11, v4, 4, v5""")
    a("""v_and_b32 v3, 31, v1
    v_lshrrev_b32 v4, 5, v1
    s_lshr_b32 s36, s28, 2
    s_lshl_b32 s36, s36, 13
    s_and_b32 s37, s28, 3
    s_lshl_b32 s38, s37, 12
    s_cmp_eq_u32 s32, 15
    s_cselect_b32 s36, s38, s36
    v_lshrrev_b32 v5, 1, v3
    v_xor_b32 v5, v5, v4
    v_and_b32 v5, 7, v5
    v_lshlrev_b32 v5, 4, v5
    v_lshl_add_u32 v12, v3, 7, v5
    v_add_u32 v12, s36, v12
    v_xor_b32 v13, 32, v12
    v_xor_b32 v14, 64, v12
    v_xor_b32 v15, 0x60, v12""")
    a("""v_bfe_u32 v5, v1, 2, 2
    v_lshl_add_u32 v6, v4, 3, v5
    v_lshlrev_b32 v6, 8, v6
    v_xor_b32 v5, s37, v5
    v_lshl_add_u32 v6, v5, 6, v6
    v_bfe_u32 v5, v1, 4, 1
    v_lshl_add_u32 v6, v5, 5, v6
    v_and_b32 v5, 1, v1
    v_lshl_add_u32 v6, v5, 4, v6
    v_bfe_u32 v5, v1, 1, 1
    v_lshl_add_u32 v6, v5, 3, v6
    v_add_u32 v16, 0x10000, v6
    v_lshlrev_b32 v17, 4, v3
    v_lshl_add_u32 v17, v4, 12, v17
    s_waitcnt lgkmcnt(0)""")
    srd(a, 16, 4, 2621440)
    srd(a, 20, 6, 2457600)
    srd(a, 24, 12, WS_END)
    a("s_cmp_eq_u32 s32, 15\ns_cbranch_scc1 K1_router")

    def issue_parts(st, with_w=True):
        slot = st % 4
        p = []
        p.append(f"""s_lshl_b32 s36, s33, 7
        s_add_u32 s36, s36, s34
        s_add_u32 m0, s40, {slot*16384}
        s_add_u32 s38, s36, 81920
        buffer_load_dwordx4 v10, s[16:19], s36 offen {OPT['xnt']} lds""")
        if with_w:
            p.append(f"""s_mul_i32 s37, s33, 245760
            s_add_u32 m0, s40, {65536+slot*16384}
            s_add_u32 s37, s37, s35
            buffer_load_dwordx4 v11, s[20:23], s37 offen lds""")
        p.append(f"""s_add_u32 m0, s40, {slot*16384+8192}
        s_add_u32 s33, s33, 1
        buffer_load_dwordx4 v10, s[16:19], s38 offen {OPT['xnt']} lds
        s_cmp_eq_u32 s33, 10
        s_cselect_b32 s33, 0, s33""")
        if with_w:
            p.append(f"""s_add_u32 m0, s40, {65536+slot*16384+8192}
            s_add_u32 s39, s37, 122880
            buffer_load_dwordx4 v11, s[20:23], s39 offen lds""")
        return p

    for st in range(LA):
        for p in issue_parts(st):
            a(p)
    ACC = 32
    FR = [64, 76]
    def reads(st, ks, b):
        slot = st % 4
        f = FR[b]
        a(f"""ds_read_b64_tr_b16 v[{f}:{f+1}], v16 offset:{slot*16384+ks*4096}
        ds_read_b64_tr_b16 v[{f+2}:{f+3}], v16 offset:{slot*16384+ks*4096+1024}
        ds_read_b128 v[{f+4}:{f+7}], v{12+ks} offset:{slot*16384}
        ds_read_b128 v[{f+8}:{f+11}], v{12+ks} offset:{slot*16384+4096}""")
    for st in range(10):
        ahead = min(LA - 1, 9 - st)
        a(f"s_waitcnt vmcnt({4*ahead})\ns_barrier")
        parts = issue_parts(st + LA) if st + LA < 10 else [""] * 4
        reads(st, 0, 0)
        reads(st, 1, 1)
        for ks in range(4):
            f = FR[ks & 1]
            a(parts[ks])
            a(f"s_waitcnt lgkmcnt({4 if ks < 3 else 0})")
            for tt in range(2):
                c = "0" if (st == 0 and ks == 0) else vr(ACC + 16 * tt, 16)
                a(f"v_mfma_f32_32x32x16_bf16 {vr(ACC+16*tt,16)}, {vr(f,4)}, {vr(f+4+4*tt,4)}, {c}")
            if ks < 2:
                reads(st, ks + 2, ks & 1)
    a(f"""s_mul_i32 s36, s29, 240*4096
    s_lshl_b32 s37, s32, 16
    s_add_u32 s36, s36, s37
    s_and_b32 s37, s28, 3
    s_lshl_b32 s37, s37, 14
    s_add_u32 s36, s36, s37
    s_lshl_b32 s37, s31, 11
    s_add_u32 s36, s36, s37
    s_lshr_b32 s37, s28, 2
    s_lshl_b32 s37, s37, 10
    s_add_u32 s36, s36, s37
    s_add_u32 s37, s36, 8192
    s_cmp_ge_u32 s32, 5
    s_cbranch_scc1 K1_noscale""")
    if not OPT["mimic"]:
        a(f"s_mov_b32 s38, {f32(QSCALE)}")
        for i in range(32):
            a(f"v_mul_f32 v{ACC+i}, s38, v{ACC+i}")
    a("K1_noscale:")
    for tt in range(2):
        for h in range(2):
            for i in range(4):
                r = ACC + tt * 16 + h * 8 + 2 * i
                a(f"v_cvt_pk_bf16_f32 v{64+tt*8+h*4+i}, v{r}, v{r+1}")
            a(f"buffer_store_dwordx4 {vr(64+tt*8+h*4,4)}, v17, s[24:27], s{36+h} offen offset:{tt*512}")
    a("s_endpgm")

    a("K1_router:")
    a("""s_mov_b32 s33, 0
    s_cmp_eq_u32 s28, 1
    s_cselect_b32 s20, s10, s8
    s_cselect_b32 s21, s11, s9
    s_mov_b32 s22, 1280
    s_cmp_ge_u32 s28, 2
    s_cbranch_scc1 K1_r0
    s_lshl_b32 s36, s28, 11
    s_add_u32 m0, s36, 0x10000
    v_lshlrev_b32 v11, 4, v1
    buffer_load_dwordx4 v11, s[20:23], 0 offen lds
    buffer_load_dwordx4 v11, s[20:23], 0 offen offset:1024 lds
    K1_r0:
    v_and_b32 v5, 1, v1
    v_lshlrev_b32 v5, 11, v5
    v_lshl_add_u32 v16, v4, 4, v5
    v_add_u32 v16, 0x10000, v16""")
    RLA = 3
    for st in range(RLA):
        for p in issue_parts(st, False):
            a(p)
    for st in range(10):
        ahead = min(RLA - 1, 9 - st)
        a(f"s_waitcnt vmcnt({2*ahead})\ns_barrier")
        for ks in range(4):
            a(f"""ds_read_b128 {vr(64+8*ks,4)}, v16 offset:{st*128+ks*32}
            ds_read_b128 {vr(68+8*ks,4)}, v{12+ks} offset:{(st%4)*16384}""")
        if st + RLA < 10:
            for p in issue_parts(st + RLA, False):
                a(p)
        for ks in range(4):
            c = "0" if (st == 0 and ks == 0) else vr(ACC, 16)
            a(f"s_waitcnt lgkmcnt({6-2*ks})\nv_mfma_f32_32x32x16_bf16 {vr(ACC,16)}, {vr(64+8*ks,4)}, {vr(68+8*ks,4)}, {c}")
    a(f"""s_cmp_ge_u32 s28, 4
    s_cbranch_scc1 K1_end
    s_lshl_b32 s36, s29, 8
    s_lshl_b32 s37, s31, 7
    s_add_u32 s36, s36, s37
    s_lshl_b32 s37, s28, 5
    s_add_u32 s36, s36, s37
    v_add_u32 v20, s36, v3
    s_nop 7
    v_cvt_pk_bf16_f32 v21, v{ACC}, v{ACC+1}
    v_and_b32 v22, 0xffff0000, v21
    v_lshlrev_b32 v21, 16, v21""")
    sigmoid(a, 23, "v22")
    a(f"""v_cvt_pk_bf16_f32 v23, v23, v23
    v_and_b32 v23, 0xffff0000, v23
    v_lshlrev_b32 v24, 2, v20
    s_mov_b32 s37, {WS_G}
    buffer_store_dword v23, v24, s[24:27], s37 offen
    v_ashrrev_i32 v24, 31, v21
    v_or_b32 v24, 0x80000000, v24
    v_xor_b32 v21, v21, v24
    v_and_b32 v21, 0xffff0000, v21
    v_sub_u32 v24, 0xffff, v20
    v_or_b32 v21, v21, v24
    v_mov_b32 v22, v21""")
    top2(a, 21, 22, 25, 42, 43, 44)
    a(f"""s_lshr_b32 s36, s36, 1
    s_add_u32 s36, s36, {WS_CAND}
    v_mov_b32 v28, s42
    v_mov_b32 v29, 0
    v_mov_b32 v30, s43
    v_mov_b32 v31, 0
    v_mov_b32 v24, 0
    s_mov_b64 exec, 1
    buffer_store_dwordx4 v[28:31], v24, s[24:27], s36 offen
    K1_end:
    s_endpgm""")


CS = 8192 + 64
L_K, L_V = 0, 3 * CS + 64
L_ONES = L_V + 3 * CS
L_FW = L_ONES + 8192 + 64
K2_LDS = L_FW + 16384
assert L_V % 256 == 0 and (L_ONES - L_V) % 256 == 192 and L_FW % 256 == 0


def load_top2(a, ws, v1):
    a(f"""v_lshlrev_b32 v20, 4, v{v1}
    s_mov_b32 s36, {WS_CAND}
    buffer_load_dwordx4 v[24:27], v20, s[{ws}:{ws+3}], s36 offen
    s_waitcnt vmcnt(0)""")
    top2(a, 24, 26, 21, 48, 49, 44)
    key_decode(a, 48, 42, 46, 36)
    key_decode(a, 49, 43, 47, 36)


def k2(a):
    kernel_head(a, "k2_kernel")
    a("""s_cmp_ge_u32 s2, 256
    s_cbranch_scc1 K2_end
    s_load_dwordx2 s[4:5], s[0:1], 0
    s_load_dwordx4 s[8:11], s[0:1], 40
    s_load_dwordx2 s[12:13], s[0:1], 88
    v_and_b32 v1, 63, v0
    v_lshrrev_b32 v2, 6, v0
    s_and_b32 s29, s2, 7
    v_readfirstlane_b32 s28, v2
    s_lshr_b32 s30, s2, 3          ; head
    s_and_b32 s31, s30, 1          ; odd
    s_mul_i32 s32, s30, 5
    s_lshr_b32 s32, s32, 1         ; c0
    s_sub_u32 s33, 11, s28
    s_cmp_lt_u32 s28, 4
    s_cselect_b32 s33, s28, s33    ; q tile t
    v_lshlrev_b32 v10, 4, v1
    v_and_b32 v3, 31, v1
    v_lshrrev_b32 v4, 5, v1
    s_waitcnt lgkmcnt(0)""")
    srd(a, 24, 12, WS_END)
    a(f"""s_lshr_b32 s34, s28, 2         ; section
    s_mul_i32 s35, s34, {L_V}
    s_add_u32 s34, s34, 1
    s_mul_i32 s34, s34, 80
    s_add_u32 s34, s34, s32
    s_mul_i32 s36, s29, 240
    s_add_u32 s34, s34, s36
    s_lshl_b32 s34, s34, 12
    s_and_b32 s36, s28, 3
    s_mul_i32 s36, s36, 3""")
    for blk in (1, 0):
        if blk == 0:
            a("s_cmp_eq_u32 s29, 0\ns_cbranch_scc1 K2_nohalo")
        for i in range(3):
            a(f"""s_add_u32 s37, s36, {i}
            s_lshr_b32 s38, s37, 2
            s_mul_i32 s38, s38, {CS-4096}
            s_lshl_b32 s37, s37, 10
            s_add_u32 s38, s38, s37
            s_add_u32 s38, s38, s35
            s_add_u32 m0, s38, {blk*4096}
            s_add_u32 s37, s37, s34""")
            if blk == 0:
                a("s_sub_u32 s37, s37, 240*4096")
            a("buffer_load_dwordx4 v10, s[24:27], s37 offen lds")
    a("K2_nohalo:")
    Q, QH, K, KH, V, P, S0, S1, O, M, G = 32, 36, 40, 38, 44, 52, 64, 80, 96, 112, 20
    KA, KHA, VA = 12, 13, 14
    a(f"""s_mul_i32 s36, s29, 240
    s_add_u32 s36, s36, s32
    s_lshl_b32 s36, s36, 12
    s_lshl_b32 s37, s33, 9
    s_add_u32 s36, s36, s37
    s_lshl_b32 s37, s31, 12
    s_add_u32 s37, s37, s36        ; + jlo
    v_lshlrev_b32 v5, 4, v3
    v_lshl_add_u32 v6, v4, 12, v5
    buffer_load_dwordx4 {vr(Q,4)}, v6, s[24:27], s37 offen
    s_cmp_eq_u32 s31, 0
    s_cselect_b32 s38, 8192, 8
    s_add_u32 s37, s36, s38
    v_lshl_add_u32 v6, v4, 28, v5
    buffer_load_dwordx2 {vr(QH,2)}, v6, s[24:27], s37 offen
    s_lshl_b32 s36, s29, 8
    s_lshl_b32 s37, s33, 5
    s_add_u32 s36, s36, s37
    s_lshl_b32 s36, s36, 2
    s_add_u32 s36, s36, {WS_G}
    v_lshlrev_b32 v6, 2, v3
    buffer_load_dword v{G}, v6, s[24:27], s36 offen""")
    a(f"""v_mov_b32 v16, 0x3f803f80
    v_mov_b32 v17, 0x3f803f80
    v_mov_b32 v18, 0x3f803f80
    v_mov_b32 v19, 0x3f803f80
    v_lshlrev_b32 v6, 4, v0
    ds_write_b128 v6, v[16:19] offset:{L_ONES}""")
    a(f"""s_lshl_b32 s36, s33, 9
    s_mul_i32 s37, s31, {CS}
    s_add_u32 s37, s37, s36
    v_mul_u32_u24 v6, {CS}, v4
    v_add3_u32 v{KA}, v6, v5, s37
    s_cmp_eq_u32 s31, 0
    s_cselect_b32 s38, {2*CS}, 8
    s_add_u32 s38, s38, s36
    v_add_u32 v{KHA}, s38, v5
    v_bfe_u32 v6, v1, 4, 1
    v_and_b32 v7, 3, v1
    v_lshl_add_u32 v6, v6, 2, v7   ; gamma
    v_add_u32 v7, s31, v6
    v_lshrrev_b32 v8, 1, v7
    v_mul_u32_u24 v8, {CS}, v8
    v_and_b32 v7, 1, v7
    v_lshl_add_u32 v8, v7, 3, v8
    s_add_u32 s36, s36, {L_V}
    v_add_u32 v8, s36, v8
    v_mov_b32 v9, {L_ONES}
    v_cmp_gt_u32 s[44:45], 5, v6
    v_bfe_u32 v7, v1, 2, 2
    v_lshl_add_u32 v7, v4, 2, v7
    v_cndmask_b32_e64 v8, v9, v8, s[44:45]
    v_lshl_add_u32 v{VA}, v7, 4, v8""")
    a(f"""v_lshlrev_b32 v6, 2, v4
    v_sub_u32 v6, v3, v6
    v_mov_b32 v7, 0xff800000""")
    for r in range(16):
        key = (r >> 2) * 8 + (r & 3)
        a(f"""v_cmp_le_i32 s[44:45], {key}, v6
        s_nop 1
        v_cndmask_b32_e64 v{S0+r}, v7, 0, s[44:45]
        v_cndmask_b32_e64 v{M+r}, 0, v7, s[44:45]""")
    a("""s_add_u32 s34, s33, 1
    s_cmp_eq_u32 s29, 0
    s_cselect_b32 s34, s34, 9
    s_waitcnt vmcnt(0) lgkmcnt(0)
    s_barrier""")
    off = lambda i: (8 - i) * 512
    rdK = lambda i: f"ds_read_b128 {vr(K,4)}, v{KA} offset:{off(i)}"
    rdKH = lambda i: f"ds_read_b64 {vr(KH,2)}, v{KHA} offset:{off(i)}"
    rdV = lambda i, h: f"ds_read_b64_tr_b16 {vr(V+4*h,2)}, v{VA} offset:{off(i)+256*h}\nds_read_b64_tr_b16 {vr(V+4*h+2,2)}, v{VA} offset:{off(i)+256*h+128}"
    a(rdK(0)); a(rdKH(0)); a(rdV(0, 0))
    a(f"""s_waitcnt lgkmcnt(2)
    v_mfma_f32_32x32x16_bf16 {vr(S0,16)}, {vr(K,4)}, {vr(Q,4)}, {vr(S0,16)}""")
    a(rdK(1))
    a(f"v_mfma_f32_32x32x8_bf16 {vr(S0,16)}, {vr(KH,2)}, {vr(QH,2)}, {vr(S0,16)}")
    a(rdKH(1))
    a("s_nop 7\ns_waitcnt lgkmcnt(0)\ns_nop 1")
    if OPT["mimic"]:
        a(f"s_mov_b32 s50, {f32(20**-0.5)}\ns_mov_b32 s51, {f32(LOG2E)}")

    def softq(S, q):
        if OPT["mimic"]:
            for j in (0, 2):
                r = S + 4 * q + j
                a(f"""v_cvt_pk_bf16_f32 v8, v{r}, v{r+1}
                v_lshlrev_b32 v{r}, 16, v8
                v_and_b32 v{r+1}, 0xffff0000, v8
                v_mul_f32 v{r}, s50, v{r}
                v_mul_f32 v{r+1}, s50, v{r+1}
                v_cvt_pk_bf16_f32 v8, v{r}, v{r+1}
                v_lshlrev_b32 v{r}, 16, v8
                v_and_b32 v{r+1}, 0xffff0000, v8
                v_mul_f32 v{r}, s51, v{r}
                v_mul_f32 v{r+1}, s51, v{r+1}""")
        for j in range(4):
            a(f"v_exp_f32 v{S+4*q+j}, v{S+4*q+j}")
        for j in range(2):
            a(f"v_cvt_pk_bf16_f32 v{P+2*q+j}, v{S+4*q+2*j}, v{S+4*q+2*j+1}")

    for i in range(9):
        S, SN = (S0, S1) if i % 2 == 0 else (S1, S0)
        if i > 0:
            a("s_waitcnt lgkmcnt(2)" if i < 8 else "s_waitcnt lgkmcnt(2)")
        if i < 8:
            c = vr(M, 16) if i + 1 == 8 else "0"
            a(f"v_mfma_f32_32x32x16_bf16 {vr(SN,16)}, {vr(K,4)}, {vr(Q,4)}, {c}")
        nread = 0
        if i < 7:
            a(rdK(i + 2)); nread += 1
        softq(S, 0)
        if i > 0:
            a(f"v_mfma_f32_32x32x16_bf16 {vr(O,16)}, {vr(V+4,4)}, {vr(P+4,4)}, {vr(O,16)}")
        a(rdV(i, 1)); nread += 2
        softq(S, 1)
        if i < 8:
            a(f"v_mfma_f32_32x32x8_bf16 {vr(SN,16)}, {vr(KH,2)}, {vr(QH,2)}, {vr(SN,16)}")
        if i < 7:
            a(rdKH(i + 2)); nread += 1
        softq(S, 2)
        a(f"s_waitcnt lgkmcnt({nread})")
        a(f"v_mfma_f32_32x32x16_bf16 {vr(O,16)}, {vr(V,4)}, {vr(P,4)}, {'0' if i == 0 else vr(O,16)}")
        if i < 8:
            a(rdV(i + 1, 0))
        softq(S, 3)
        if i < 8:
            a(f"s_cmp_eq_u32 s34, {i+1}\ns_cbranch_scc1 K2_fin")
    a(f"""K2_fin:
    s_waitcnt lgkmcnt(0)
    s_nop 0
    v_mfma_f32_32x32x16_bf16 {vr(O,16)}, {vr(V+4,4)}, {vr(P+4,4)}, {vr(O,16)}
    s_lshl_b32 s36, s29, 5
    s_add_u32 s36, s36, s30
    s_lshl_b32 s37, s36, 13
    s_lshl_b32 s38, s33, 9
    s_add_u32 s37, s37, s38
    s_add_u32 s37, s37, {WS_OLO}
    s_lshl_b32 s36, s36, 11
    s_lshl_b32 s38, s33, 8
    s_add_u32 s36, s36, s38
    s_add_u32 s36, s36, {WS_OHI}
    v_lshl_add_u32 v6, v4, 12, v5
    v_lshlrev_b32 v7, 3, v3
    v_lshl_add_u32 v7, v4, 28, v7
    v_rcp_f32 v8, v{O+12}
    s_nop 0
    v_mul_f32 v8, v8, v{G}""")
    for r in range(12):
        a(f"v_mul_f32 v{O+r}, v8, v{O+r}")
    for r in range(6):
        a(f"v_cvt_pk_bf16_f32 v{P+r}, v{O+2*r}, v{O+2*r+1}")
    a(f"""buffer_store_dwordx4 {vr(P,4)}, v6, s[24:27], s37 offen
    buffer_store_dwordx2 {vr(P+4,2)}, v7, s[24:27], s36 offen""")
    a("""s_cmp_lg_u32 s28, 0
    s_cbranch_scc1 K2_end
    s_cmp_ge_u32 s2, 240
    s_cbranch_scc1 K2_end
    s_mul_i32 s30, s2, 6554
    s_lshr_b32 s30, s30, 16        ; b
    s_mul_i32 s31, s30, 10
    s_sub_u32 s31, s2, s31         ; kc""")
    srd(a, 16, 8, 1966080)
    srd(a, 20, 10, 1966080)
    srd(a, 52, 4, 2621440)
    a("""v_lshrrev_b32 v6, 3, v1
    v_mul_u32_u24 v6, 3072, v6
    v_and_b32 v7, 7, v1
    v_lshl_add_u32 v11, v7, 4, v6
    s_mul_i32 s32, s31, 64*3072
    s_lshl_b32 s33, s30, 7
    s_add_u32 s32, s32, s33""")
    for m in range(2):
        for i in range(8):
            a(f"""s_mov_b32 m0, {L_FW+m*8192+i*1024}
            s_add_u32 s33, s32, {i*8*3072}
            buffer_load_dwordx4 v11, s[{16+4*m}:{19+4*m}], s33 offen lds""")
    load_top2(a, 24, 1)
    a(f"""v_and_b32 v6, 1, v1
    v_cmp_eq_u32 s[44:45], 0, v6
    v_mov_b32 v7, s42
    v_mov_b32 v8, s43
    v_cndmask_b32_e64 v7, v8, v7, s[44:45]
    v_mul_u32_u24 v7, 1280, v7
    v_lshrrev_b32 v9, 4, v1        ; g
    v_lshl_add_u32 v7, v9, 4, v7
    s_lshl_b32 s33, s31, 7
    buffer_load_dwordx4 v[32:35], v7, s[52:55], s33 offen
    buffer_load_dwordx4 v[36:39], v7, s[52:55], s33 offen offset:64
    v_bfe_u32 v6, v1, 2, 2
    v_lshl_add_u32 v6, v9, 3, v6
    v_lshlrev_b32 v6, 7, v6
    v_and_b32 v8, 3, v1
    v_lshl_add_u32 v6, v8, 3, v6
    v_add_u32 v6, {L_FW}, v6
    s_waitcnt vmcnt(0)""")
    for m in range(2):
        for t in range(4):
            d = 64 + (m * 4 + t) * 4
            for ks in range(2):
                o = m * 8192 + ks * 4096 + t * 32
                a(f"""ds_read_b64_tr_b16 v[{40+4*ks}:{41+4*ks}], v6 offset:{o}
                ds_read_b64_tr_b16 v[{42+4*ks}:{43+4*ks}], v6 offset:{o+512}""")
            a("s_waitcnt lgkmcnt(0)")
            for ks in range(2):
                a(f"v_mfma_f32_16x16x32_bf16 {vr(d,4)}, {vr(32+4*ks,4)}, {vr(40+4*ks,4)}, {'0' if ks == 0 else vr(d,4)}")
    a("""v_cmp_eq_u32 s[44:45], 1, v9
    v_cmp_eq_u32 s[56:57], 2, v9
    v_cmp_eq_u32 s[58:59], 3, v9
    s_nop 7""")
    for m in range(2):
        for tk in range(2):
            o = 96 + m * 4 + tk * 2
            b = 64 + m * 16 + tk
            a(f"""v_cndmask_b32_e64 v{o}, v{b}, v{b+4}, s[44:45]
            v_cndmask_b32_e64 v{o}, v{o}, v{b+8}, s[56:57]
            v_cndmask_b32_e64 v{o}, v{o}, v{b+12}, s[58:59]
            v_mov_b32 v{o+1}, 0""")
    a(f"""s_lshl_b32 s33, s2, 11
    s_add_u32 s33, s33, {WS_P1}
    buffer_store_dwordx4 v[96:99], v10, s[24:27], s33 offen
    buffer_store_dwordx4 v[100:103], v10, s[24:27], s33 offen offset:1024
    K2_end:
    s_endpgm""")


def k3(a):
    kernel_head(a, "k3_kernel")
    a("""s_cmp_ge_u32 s2, 240
    s_cbranch_scc1 K3_end
    s_load_dwordx2 s[8:9], s[0:1], 56
    s_load_dwordx2 s[12:13], s[0:1], 88
    v_mov_b32 v1, v0
    v_lshlrev_b32 v10, 4, v1
    s_mul_i32 s30, s2, 6554
    s_lshr_b32 s30, s30, 16        ; b
    s_mul_i32 s31, s30, 10
    s_sub_u32 s31, s2, s31         ; cj
    v_lshrrev_b32 v6, 3, v1
    v_mul_u32_u24 v6, 1280, v6
    v_and_b32 v7, 7, v1
    v_lshl_add_u32 v11, v7, 4, v6
    s_mul_i32 s32, s30, 64*1280
    s_lshl_b32 s33, s31, 7
    s_add_u32 s32, s32, s33
    s_waitcnt lgkmcnt(0)""")
    srd(a, 16, 8, 1966080)
    srd(a, 24, 12, WS_END)
    for i in range(8):
        a(f"""s_mov_b32 m0, {i*1024}
        s_add_u32 s33, s32, {i*8*1280}
        buffer_load_dwordx4 v11, s[16:19], s33 offen lds""")
    a(f"s_mul_i32 s33, s30, 20480\ns_add_u32 s33, s33, {WS_P1}")
    for i in range(10):
        a(f"""buffer_load_dwordx4 {vr(32+8*i,4)}, v10, s[24:27], s33 offen
        buffer_load_dwordx4 {vr(36+8*i,4)}, v10, s[24:27], s33 offen offset:1024
        s_add_u32 s33, s33, 2048""")
    a("s_waitcnt vmcnt(0)")
    for i in range(1, 10):
        for j in (0, 2, 4, 6):
            a(f"v_add_f32 v{32+j}, v{32+j}, v{32+8*i+j}")
    for tk in range(2):
        sigmoid(a, 12 + tk, f"v{32+2*tk}")
        a(f"v_mul_f32 v{12+tk}, v{12+tk}, v{32+2*tk}\nv_mul_f32 v{12+tk}, v{12+tk}, v{36+2*tk}")
    a("""v_cvt_pk_bf16_f32 v12, v12, v13
    v_lshlrev_b32 v6, 1, v1
    ds_write_b16 v6, v12 offset:8192
    ds_write_b16_d16_hi v6, v12 offset:8320
    v_lshrrev_b32 v9, 4, v1
    v_and_b32 v7, 1, v1
    v_lshlrev_b32 v7, 7, v7
    v_lshl_add_u32 v7, v9, 4, v7
    v_bfe_u32 v6, v1, 2, 2
    v_lshl_add_u32 v6, v9, 3, v6
    v_lshlrev_b32 v6, 7, v6
    v_and_b32 v8, 3, v1
    v_lshl_add_u32 v6, v8, 3, v6
    s_waitcnt lgkmcnt(0)
    ds_read_b128 v[32:35], v7 offset:8192
    ds_read_b128 v[36:39], v7 offset:8256""")
    for t in range(4):
        d = 64 + t * 4
        for ks in range(2):
            o = ks * 4096 + t * 32
            a(f"""ds_read_b64_tr_b16 v[{40+4*ks}:{41+4*ks}], v6 offset:{o}
            ds_read_b64_tr_b16 v[{42+4*ks}:{43+4*ks}], v6 offset:{o+512}""")
        a("s_waitcnt lgkmcnt(0)")
        for ks in range(2):
            a(f"v_mfma_f32_16x16x32_bf16 {vr(d,4)}, {vr(32+4*ks,4)}, {vr(40+4*ks,4)}, {'0' if ks == 0 else vr(d,4)}")
    a("""v_cmp_eq_u32 s[44:45], 1, v9
    v_cmp_eq_u32 s[56:57], 2, v9
    v_cmp_eq_u32 s[58:59], 3, v9
    s_nop 7""")
    for tk in range(2):
        o = 96 + tk * 2
        b = 64 + tk
        a(f"""v_cndmask_b32_e64 v{o}, v{b}, v{b+4}, s[44:45]
        v_cndmask_b32_e64 v{o}, v{o}, v{b+8}, s[56:57]
        v_cndmask_b32_e64 v{o}, v{o}, v{b+12}, s[58:59]
        v_mov_b32 v{o+1}, 0""")
    a(f"""s_lshl_b32 s33, s2, 10
    s_add_u32 s33, s33, {WS_P2}
    buffer_store_dwordx4 v[96:99], v10, s[24:27], s33 offen
    K3_end:
    s_endpgm""")


L_WO, L_XT, L_Y = 0, 102400, 102400 + 10240
K4_LDS = L_Y + 2048


def k4(a):
    kernel_head(a, "k4_kernel")
    a("""s_cmp_ge_u32 s2, 256
    s_cbranch_scc1 K4_end
    s_load_dwordx2 s[4:5], s[0:1], 0
    s_load_dwordx2 s[6:7], s[0:1], 16
    s_load_dwordx2 s[8:9], s[0:1], 72
    s_load_dwordx2 s[12:13], s[0:1], 88
    v_and_b32 v1, 63, v0
    v_lshrrev_b32 v2, 6, v0
    s_and_b32 s29, s2, 7
    v_readfirstlane_b32 s28, v2
    s_lshr_b32 s30, s2, 3
    s_and_b32 s31, s30, 3          ; rq
    s_lshr_b32 s32, s30, 2         ; cb
    s_lshl_b32 s33, s29, 8
    s_lshl_b32 s34, s31, 6
    s_add_u32 s33, s33, s34        ; row0
    s_mul_i32 s34, s32, 160
    v_mul_u32_u24 v5, 6554, v0
    v_lshrrev_b32 v5, 16, v5
    v_mul_u32_u24 v6, 10, v5
    v_sub_u32 v6, v0, v6
    v_mul_u32_u24 v5, 1280, v5
    v_lshl_add_u32 v10, v6, 4, v5
    v_and_b32 v3, 15, v1
    v_lshrrev_b32 v4, 4, v1
    s_waitcnt lgkmcnt(0)""")
    srd(a, 16, 4, 2621440)
    srd(a, 20, 6, 819200)
    srd(a, 24, 12, WS_END)
    srd(a, 52, 8, 2621440)
    OF, ACC, WF, G = 48, 28, 128, 20
    a("s_cmp_ge_u32 s28, 4\ns_cbranch_scc1 K4_noO")
    a(f"""s_lshl_b32 s36, s29, 18
    s_lshl_b32 s37, s31, 6
    s_lshl_b32 s38, s28, 4
    s_add_u32 s38, s38, s37
    s_lshl_b32 s37, s38, 4
    s_add_u32 s36, s36, s37
    s_add_u32 s36, s36, {WS_OLO}
    v_lshlrev_b32 v5, 4, v3
    v_lshl_add_u32 v5, v4, 12, v5""")
    for s in range(16):
        a(f"buffer_load_dwordx4 {vr(OF+4*s,4)}, v5, s[24:27], s36 offen\ns_add_u32 s36, s36, 16384")
    a(f"""s_lshl_b32 s36, s29, 16
    s_lshl_b32 s37, s38, 3
    s_add_u32 s36, s36, s37
    s_add_u32 s36, s36, {WS_OHI}
    v_lshlrev_b32 v5, 3, v3
    v_lshl_add_u32 v5, v4, 11, v5""")
    for s in range(8):
        a(f"buffer_load_dwordx2 {vr(OF+64+2*s,2)}, v5, s[24:27], s36 offen\ns_add_u32 s36, s36, 8192")
    a(f"""s_lshl_b32 s36, s28, 4
    s_add_u32 s36, s36, s33
    v_add_u32 v9, s36, v3
    v_lshlrev_b32 v5, 2, v9
    s_mov_b32 s36, {WS_G}
    buffer_load_dword v{G-1}, v5, s[24:27], s36 offen
    K4_noO:
    s_cmp_ge_u32 s28, 5
    s_cbranch_scc1 K4_nodma
    s_lshl_b32 s40, s28, 10
    s_mul_i32 s36, s33, 1280
    s_add_u32 s36, s36, s34""")
    for n in range(2):
        a(f"""s_add_u32 m0, s40, {L_XT+n*5120}
        s_add_u32 s37, s36, {n*32*1280}
        buffer_load_dwordx4 v10, s[16:19], s37 offen lds""")
    for n in range(20):
        a(f"""s_add_u32 m0, s40, {L_WO+n*5120}
        s_add_u32 s37, s34, {n*32*1280}
        buffer_load_dwordx4 v10, s[20:23], s37 offen lds""")
    a("K4_nodma:")
    load_top2(a, 24, 1)
    a("""s_sub_u32 s36, s42, s33
    s_sub_u32 s37, s43, s33
    s_min_u32 s36, s36, s37
    s_cmp_lt_u32 s36, 64
    s_cselect_b32 s60, 1, 0
    s_cmp_lt_u32 s28, 4
    s_cbranch_scc1 K4_main
    s_cmp_eq_u32 s60, 0
    s_cbranch_scc1 K4_hdone""")
    a(f"""v_subrev_u32 v5, 256, v0
    v_mul_u32_u24 v6, 820, v5
    v_lshrrev_b32 v6, 16, v6       ; bs
    v_mul_u32_u24 v7, 80, v6
    v_sub_u32 v7, v5, v7           ; c
    v_mul_u32_u24 v8, 81920, v6
    v_lshl_add_u32 v8, v7, 4, v8
    s_mul_i32 s36, s32, 1280
    s_add_u32 s36, s36, {WS_P2}
    v_cmp_gt_u32 vcc, 240, v5
    s_and_saveexec_b64 s[56:57], vcc""")
    for i in range(8):
        a(f"buffer_load_dwordx4 {vr(48+4*i,4)}, v8, s[24:27], s36 offen\ns_add_u32 s36, s36, 10240")
    a("s_waitcnt vmcnt(0)")
    for i in range(1, 8):
        a(f"v_add_f32 v48, v48, v{48+4*i}\nv_add_f32 v50, v50, v{50+4*i}")
    a(f"""v_mul_u32_u24 v6, 640, v6
    v_lshl_add_u32 v6, v7, 2, v6
    ds_write_b32 v6, v48 offset:{L_Y-65536+65536 if L_Y < 65536 else 0}""" if False else f"""v_mul_u32_u24 v6, 640, v6
    v_lshl_add_u32 v6, v7, 2, v6
    v_add_u32 v6, {L_Y}, v6
    ds_write_b32 v6, v48
    ds_write_b32 v6, v50 offset:320
    s_mov_b64 exec, s[56:57]
    K4_hdone:
    s_waitcnt vmcnt(0) lgkmcnt(0)
    s_barrier
    s_endpgm""")
    a(f"""K4_main:
    s_mul_i32 s36, s28, 2560
    s_add_u32 s36, s36, {L_XT}
    v_mul_u32_u24 v5, 160, v3
    v_lshl_add_u32 v5, v4, 3, v5
    v_add_u32 v11, s36, v5
    v_lshlrev_b32 v5, 4, v1
    v_add_u32 v12, s36, v5
    v_lshrrev_b32 v5, 1, v4
    v_mul_u32_u24 v5, 20, v5
    v_and_b32 v6, 1, v4
    v_lshl_add_u32 v5, v6, 2, v5
    v_bfe_u32 v6, v1, 2, 2
    v_add_u32 v5, v5, v6
    v_mul_u32_u24 v5, 160, v5
    v_and_b32 v7, 3, v1
    v_lshl_add_u32 v13, v7, 3, v5
    v_add_u32 v14, {8*6400}, v13
    v_mul_u32_u24 v5, 20, v4
    v_add3_u32 v5, v5, v6, 16
    v_mul_u32_u24 v5, 160, v5
    v_lshl_add_u32 v15, v7, 3, v5
    v_add_u32 v16, {8*6400}, v15
    s_waitcnt vmcnt(0)
    s_barrier""")
    for t in range(5):
        a(f"ds_read_b64 {vr(WF+2*t,2)}, v11 offset:{t*32}")
    a(f"v_sub_f32 v{G}, 1.0, v{G-1}\ns_waitcnt lgkmcnt(0)")
    for t in range(5):
        for j in range(2):
            a(f"""v_lshlrev_b32 v{ACC+4*t+2*j}, 16, v{WF+2*t+j}
            v_and_b32 v{ACC+4*t+2*j+1}, 0xffff0000, v{WF+2*t+j}""")
    for i in range(20):
        a(f"v_mul_f32 v{ACC+i}, v{G}, v{ACC+i}")

    def wread(s, t):
        f = WF + 4 * t
        if s < 16:
            b, o, d = (13, s * 6400, 1280) if s < 8 else (14, (s - 8) * 6400, 1280)
        else:
            s2 = s - 16
            b, o, d = (15, s2 * 25600, 12800) if s2 < 2 else (16, (s2 - 2) * 25600, 12800)
        a(f"""ds_read_b64_tr_b16 v[{f}:{f+1}], v{b} offset:{o+t*32}
        ds_read_b64_tr_b16 v[{f+2}:{f+3}], v{b} offset:{o+t*32+d}""")
    for t in range(5):
        wread(0, t)
    for s in range(20):
        for t in range(5):
            a(f"s_waitcnt lgkmcnt({8 if s < 19 else 8-2*t})")
            a(f"v_mfma_f32_16x16x32_bf16 {vr(ACC+4*t,4)}, {vr(WF+4*t,4)}, {vr(OF+4*s,4)}, {vr(ACC+4*t,4)}")
            if s < 19:
                wread(s + 1, t)
    for n in range(3):
        a(f"""v_add_u32 v5, {64*n}, v1
        v_mul_u32_u24 v6, 6554, v5
        v_lshrrev_b32 v6, 16, v6
        v_mul_u32_u24 v7, 10, v6
        v_sub_u32 v7, v5, v7
        v_mul_u32_u24 v6, 1280, v6
        v_lshl_add_u32 v{21+n}, v7, 4, v6""")
    a(f"""v_lshrrev_b32 v5, 5, v1
    v_lshl_add_u32 v23, v5, 28, v23
    s_lshl_b32 s36, s28, 4
    s_add_u32 s36, s36, s33
    s_mul_i32 s36, s36, 1280
    s_add_u32 s36, s36, s34
    s_cmp_eq_u32 s60, 0
    s_cbranch_scc1 K4_noy""")
    sigmoid(a, 5, "s46") if False else None
    a(f"""v_cmp_eq_u32 s[44:45], s43, v9
    v_cmp_eq_u32 s[56:57], s42, v9
    v_mov_b32 v5, s46
    v_mov_b32 v6, s47
    v_cndmask_b32_e64 v5, v5, v6, s[44:45]
    v_mov_b32 v7, 320
    v_cndmask_b32_e64 v7, 0, v7, s[44:45]
    v_lshl_add_u32 v7, v4, 4, v7
    v_add_u32 v7, {L_Y}, v7""")
    sigmoid(a, 5, "v5")
    a(f"""v_mul_f32 v5, v5, v{G}
    s_or_b64 s[44:45], s[44:45], s[56:57]""")
    for t in range(5):
        for bs in range(3):
            a(f"ds_read_b128 {vr(OF+12*t+4*bs,4)}, v7 offset:{bs*640+t*64}")
    a("s_waitcnt lgkmcnt(0)\ns_mov_b64 exec, s[44:45]")
    for t in range(5):
        for i in range(4):
            r = OF + 12 * t + i
            a(f"""v_add_f32 v{r}, v{r}, v{r+4}
            v_add_f32 v{r}, v{r}, v{r+8}
            v_fma_f32 v{ACC+4*t+i}, v5, v{r}, v{ACC+4*t+i}""")
    a("s_mov_b64 exec, -1\nK4_noy:")
    for t in range(5):
        a(f"""v_cvt_pk_bf16_f32 v{WF+2*t}, v{ACC+4*t}, v{ACC+4*t+1}
        v_cvt_pk_bf16_f32 v{WF+2*t+1}, v{ACC+4*t+2}, v{ACC+4*t+3}
        ds_write_b64 v11, {vr(WF+2*t,2)} offset:{t*32}""")
    a("s_waitcnt lgkmcnt(0)")
    for n in range(3):
        a(f"ds_read_b128 {vr(OF+4*n,4)}, v12 offset:{n*1024}")
    for n in range(3):
        a(f"s_waitcnt lgkmcnt({2-n})\nbuffer_store_dwordx4 {vr(OF+4*n,4)}, v{21+n}, s[52:55], s36 offen")
    a("K4_end:\ns_endpgm")


def main(out):
    a = Asm()
    head = f"""; gated mix of sliding-window attention and top-2 routed FFN (generated by a script)
; @launch kernel=k1_kernel grid=(256,1,1) block=(512,1,1) lds=131072
; @launch kernel=k2_kernel grid=(256,1,1) block=(512,1,1) lds={K2_LDS}
; @launch kernel=k3_kernel grid=(240,1,1) block=(64,1,1) lds=8704
; @launch kernel=k4_kernel grid=(256,1,1) block=(512,1,1) lds={K4_LDS}
.amdgcn_target "amdgcn-amd-amdhsa--gfx950"
.text
"""
    k1(a); k2(a); k3(a); k4(a)
    body = a.text()
    bad = check_hazards(body)
    tail = '.section .rodata,"a"\n.p2align 6\n' + kd("k1_kernel", 96) + ".p2align 6\n" + kd("k2_kernel", 128) + ".p2align 6\n" + kd("k3_kernel", 128) + ".p2align 6\n" + kd("k4_kernel", 152)
    open(out, "w").write(head + body + tail)
    print("written", out, "hazards:", len(bad))


if __name__ == "__main__":
    main(sys.argv[1])
```

```python
import sys, struct
from asmlib import Asm, vr, sr, check_hazards

NAME = "gated_mix__sliding_block__moe_arch_mod__prompt"
def f32(x): return "0x%08x" % struct.unpack("<I", struct.pack("<f", x))[0]
LOG2E = 1.4426950408889634
QSCALE = (20 ** -0.5) * LOG2E

OPT = dict(stamp=0, dual=1, pre=1, xnt="", fnt="nt", rot=1, woa=4, pf=1, forceimp=0, forcefb=0)
for _a in sys.argv[2:]:
    k, v = _a.split("=")
    OPT[k] = int(v) if v.lstrip("-").isdigit() else v

WS_L, WS_R = 0, 0x800000
WS_G, WS_CAND, WS_XID, WS_FL, WS_FR, WS_FO = 0x1000000, 0x1010000, 0x1020000, 0x1030000, 0x1040000, 0x1050000
WS_P1, WS_P2, WS_EP, WS_ST, WS_END = 0x1060000, 0x10E0000, 0x1120000, 0x1200000, 0x1300000
XB = 240 * 4096
CS = 8192 + 64
L_K, L_V = 0, 3 * CS + 64
L_WO = 49664
L_ONES = L_WO + 102400 + 192
L_MISC = L_ONES + 5120 + 64
L_H, L_Y = L_MISC + 256, L_MISC + 512
LDS_BYTES = 163840
L_RW = 49152
L_FW = L_WO + 13 * 5120
L_XT = L_FW + 24576
L_WV = L_FW
M_PURE, M_HALO, M_TOP = L_MISC, L_MISC + 4, L_MISC + 16
assert L_V % 256 == 0 and L_ONES % 256 == 192 and L_XT + 10240 <= L_WO + 102400 and L_Y + 1920 <= LDS_BYTES
SPIN = 0x8000

WAVE, XCD, LOC, RBL, CT, TAG, PURE = 28, 29, 30, 31, 32, 60, 61
SX, SW, SS, SA, SB = 16, 20, 24, 52, 56


def srd(a, d, p, n):
    a(f"""s_mov_b32 s{d}, s{p}
    s_mov_b32 s{d+1}, s{p+1}
    s_mov_b32 s{d+2}, {n}
    s_mov_b32 s{d+3}, 0x20000""")


def stamp(a, i):
    if OPT["stamp"]:
        if i == 0:
            a("s_memrealtime s[94:95]")
            for j in range(1, 15):
                a(f"s_mov_b32 s{62+2*j}, 0")
        a(f"{'s_memtime' if OPT['stamp'] == 1 else 's_memrealtime'} s[{62+2*i}:{63+2*i}]\ns_waitcnt lgkmcnt(0)")


def finish(a):
    if OPT["stamp"]:
        a("s_branch L_stampout")
    else:
        a("s_endpgm")


def stamp_out(a):
    if OPT["stamp"]:
        n = 14
        a(f"""L_stampout:
        s_waitcnt vmcnt(0)
        {'s_memtime' if OPT['stamp'] == 1 else 's_memrealtime'} s[{62+2*n}:{63+2*n}]
        s_memrealtime s[92:93]
        s_waitcnt lgkmcnt(0)
        s_lshl_b32 s3, s2, 4
        s_add_u32 s3, s3, s{WAVE}
        s_lshl_b32 s3, s3, 7
        s_add_u32 s3, s3, {WS_ST}
        s_mov_b64 exec, 1
        v_mov_b32 v0, 0""")
        for i in range(n + 1):
            a(f"v_mov_b32 v1, s{62+2*i}\nbuffer_store_dword v1, v0, s[24:27], s3 offen offset:{4*i}")
        a("v_mov_b32 v1, s94\nbuffer_store_dword v1, v0, s[24:27], s3 offen offset:120")
        a("v_mov_b32 v1, s92\nbuffer_store_dword v1, v0, s[24:27], s3 offen offset:124")
        a("s_endpgm")


def wave_max_u32(a, v, sdst):
    for m in ("row_shr:1 row_mask:0xf bank_mask:0xf bound_ctrl:1", "row_shr:2 row_mask:0xf bank_mask:0xf bound_ctrl:1",
              "row_shr:4 row_mask:0xf bank_mask:0xf bound_ctrl:1", "row_shr:8 row_mask:0xf bank_mask:0xf bound_ctrl:1",
              "row_bcast:15 row_mask:0xa bank_mask:0xf", "row_bcast:31 row_mask:0xc bank_mask:0xf"):
        a(f"s_nop 1\nv_max_u32_dpp v{v}, v{v}, v{v} {m}")
    a(f"s_nop 0\nv_readlane_b32 s{sdst}, v{v}, 63")


def top2(a, k1, k2, t, s1, s2, sm):
    a(f"v_max_u32 v{t}, v{k1}, v{k2}")
    wave_max_u32(a, t, s1)
    a(f"""s_nop 1
    v_cmp_ne_u32 s[{sm}:{sm+1}], s{s1}, v{k1}
    s_nop 1
    v_cndmask_b32_e64 v{k1}, 0, v{k1}, s[{sm}:{sm+1}]
    v_cmp_ne_u32 s[{sm}:{sm+1}], s{s1}, v{k2}
    s_nop 1
    v_cndmask_b32_e64 v{k2}, 0, v{k2}, s[{sm}:{sm+1}]
    v_max_u32 v{t}, v{k1}, v{k2}""")
    wave_max_u32(a, t, s2)


def key_decode(a, sk, stok, sval, st):
    a(f"""s_and_b32 s{stok}, s{sk}, 0xffff
    s_sub_u32 s{stok}, 0xffff, s{stok}
    s_and_b32 s{stok}, s{stok}, 0x7ff
    s_ashr_i32 s{st}, s{sk}, 31
    s_not_b32 s{st}, s{st}
    s_or_b32 s{st}, s{st}, 0x80000000
    s_xor_b32 s{sval}, s{sk}, s{st}
    s_and_b32 s{sval}, s{sval}, 0xffff0000""")


def sigmoid(a, d, s):
    a(f"""v_mul_f32 v{d}, {f32(-LOG2E)}, {s}
    v_exp_f32 v{d}, v{d}
    s_nop 0
    v_add_f32 v{d}, 1.0, v{d}
    v_rcp_f32 v{d}, v{d}
    s_nop 0""")


def epoch_load(a):
    a(f"""s_add_u32 s14, s12, {WS_EP}
    s_addc_u32 s15, s13, 0
    s_load_dword s{TAG}, s[14:15], 0""")


def epoch_fin(a):
    a(f"s_waitcnt lgkmcnt(0)\ns_add_u32 s{TAG}, s{TAG}, 0x9e3779b9")


_uid = [0]
def uid(p):
    _uid[0] += 1
    return f"L_{p}{_uid[0]}"


def poll(a, load, tagregs, mask=None, tmp=9):
    lp, out = uid("poll"), uid("pout")
    a(f"s_mov_b32 s50, {SPIN}\n{lp}:")
    a(load)
    a(f"""s_sub_u32 s50, s50, 1
    s_cbranch_scc1 {out}
    s_waitcnt vmcnt(0)""")
    if len(tagregs) == 1:
        a(f"v_cmp_ne_u32 vcc, s{TAG}, v{tagregs[0]}")
    else:
        a(f"v_xor_b32 v{tmp}, s{TAG}, v{tagregs[0]}")
        for r in tagregs[1:]:
            a(f"v_xor_b32 v{tmp-1}, s{TAG}, v{r}\nv_or_b32 v{tmp}, v{tmp}, v{tmp-1}")
        a(f"v_cmp_ne_u32 vcc, 0, v{tmp}")
    if mask:
        a(f"s_and_b64 vcc, vcc, {mask}")
    a(f"s_cbranch_vccnz {lp}\n{out}:\ns_waitcnt vmcnt(0)")


def flag_store(a, soff, local, vt=8):
    a(f"""v_mov_b32 v{vt}, s{TAG}
    v_mov_b32 v{vt+1}, 0
    s_mov_b64 exec, 1""")
    if local:
        l1, l2 = uid("fs"), uid("fe")
        a(f"""s_cmp_eq_u32 s{PURE}, 0
        s_cbranch_scc1 {l1}
        buffer_store_dword v{vt}, v{vt+1}, s[24:27], s{soff} offen
        s_branch {l2}
        {l1}:
        buffer_store_dword v{vt}, v{vt+1}, s[24:27], s{soff} offen sc1
        {l2}:""")
    else:
        a(f"buffer_store_dword v{vt}, v{vt+1}, s[24:27], s{soff} offen sc1")
    a("s_mov_b64 exec, -1")


def two_flavours(a, body):
    l1, l2 = uid("imp"), uid("ime")
    a(f"s_cmp_eq_u32 s{PURE}, 0\ns_cbranch_scc1 {l1}")
    body("")
    a(f"s_branch {l2}\n{l1}:")
    body("sc1")
    a(f"{l2}:")


def kc_init(a, d):
    a(f"s_mov_b32 s{d}, s{XCD}" if OPT["rot"] else f"s_mov_b32 s{d}, 0")


def entry(a):
    a(f""".globl {NAME}_kernel
    .p2align 8
    .type {NAME}_kernel,@function
    {NAME}_kernel:""")
    a("""s_cmp_ge_u32 s2, 256
    s_cbranch_scc1 L_exit""")
    stamp(a, 0)
    a(f"""s_load_dwordx4 s[4:7], s[0:1], 0
    s_load_dwordx2 s[12:13], s[0:1], 88
    v_lshrrev_b32 v2, 6, v0
    v_and_b32 v1, 63, v0
    v_readfirstlane_b32 s{WAVE}, v2
    s_and_b32 s{XCD}, s2, 7
    s_lshr_b32 s{LOC}, s2, 3
    s_and_b32 s{RBL}, s{LOC}, 1
    s_lshr_b32 s{CT}, s{LOC}, 1
    v_lshrrev_b32 v4, 4, v1
    s_cmp_lt_u32 s{WAVE}, 4
    s_cbranch_scc1 L_compute
    s_cmp_ge_u32 s{WAVE}, 8
    s_cbranch_scc1 L_help""")


def loader(a):
    a(f"""v_and_b32 v2, 3, v2
    v_lshrrev_b32 v3, 3, v1
    v_lshl_add_u32 v3, v2, 3, v3
    v_mul_u32_u24 v3, 1280, v3
    v_lshl_add_u32 v5, v2, 2, v4
    v_xor_b32 v6, v5, v1
    v_and_b32 v6, 7, v6
    v_lshl_add_u32 v10, v6, 4, v3
    v_mul_u32_u24 v5, 3840, v5
    v_lshrrev_b32 v6, 1, v2
    v_lshl_add_u32 v6, v6, 2, v4
    v_lshlrev_b32 v6, 1, v6
    v_xor_b32 v6, v6, v1
    v_and_b32 v6, 15, v6
    v_lshl_add_u32 v11, v6, 4, v5
    s_lshl_b32 s34, s{XCD}, 1
    s_add_u32 s34, s34, s{RBL}
    s_mul_i32 s34, s34, 128*1280
    s_lshl_b32 s35, s{CT}, 8
    s_and_b32 s40, s{WAVE}, 3
    s_lshl_b32 s40, s40, 10
    s_add_u32 s41, s40, 49152
    s_mov_b32 s42, 0
    s_mov_b32 s18, 2621440
    s_mov_b32 s19, 0x20000
    s_cmp_eq_u32 s{CT}, 15
    s_cselect_b32 s22, 0, 2457600
    s_mov_b32 s23, 0x20000""")
    kc_init(a, 33)
    a("""s_waitcnt lgkmcnt(0)
    s_mov_b32 s16, s4
    s_mov_b32 s17, s5
    s_mov_b32 s20, s6
    s_mov_b32 s21, s7""")
    epoch_load(a)
    stamp(a, 1)
    a("""s_branch L_ld_issue
    L_ld_loop:
    s_waitcnt vmcnt(8) lgkmcnt(0)
    s_barrier
    L_ld_issue:
    s_lshl_b32 s36, s33, 7
    s_add_u32 s36, s36, s34
    s_mul_i32 s37, s33, 245760
    s_add_u32 s37, s37, s35""")
    for n in range(4):
        a(f"""s_add_u32 m0, s40, {n*4096}
        s_add_u32 s38, s36, {n*40960}
        buffer_load_dwordx4 v10, s[16:19], s38 offen {OPT['xnt']} lds
        s_add_u32 m0, s40, {L_RW+n*4096}
        s_add_u32 s39, s37, {n*61440}
        buffer_load_dwordx4 v11, s[20:23], s39 offen lds""")
    a("""s_add_u32 s33, s33, 1
    s_cmp_eq_u32 s33, 10
    s_cselect_b32 s33, 0, s33
    s_add_u32 s40, s40, 16384
    s_cmp_eq_u32 s40, s41
    s_cselect_b32 s36, 49152, 0
    s_sub_u32 s40, s40, s36
    s_add_u32 s42, s42, 1
    s_cmp_lt_u32 s42, 2
    s_cbranch_scc1 L_ld_issue
    s_cmp_lt_u32 s42, 10
    s_cbranch_scc1 L_ld_loop""")
    srd(a, SS, 12, WS_END)
    a(f"s_add_u32 s{TAG}, s{TAG}, 0x9e3779b9")
    pre = 1 if (OPT["pre"] and OPT["dual"]) else 0
    if pre:
        a(f"""v_lshl_add_u32 v5, v2, 2, v4
        v_and_b32 v6, 15, v1
        v_lshlrev_b32 v6, 7, v6
        v_lshl_add_u32 v5, v5, 12, v6
        s_mul_i32 s36, s{XCD}, {XB}
        s_lshl_b32 s37, s{CT}, 16
        s_add_u32 s36, s36, s37
        s_lshl_b32 s37, s{RBL}, 11
        s_add_u32 s36, s36, s37
        s_cmp_eq_u32 s{CT}, 15
        s_cselect_b32 s36, {WS_END}, s36
        buffer_load_dword v167, v5, s[24:27], s36 offen sc1""")
    a(f"""s_waitcnt vmcnt({8+pre})
    s_barrier
    s_waitcnt vmcnt({pre})
    s_barrier
    s_barrier
    s_branch L_att_setup""")


ACC, F0, F1 = 32, 96, 128
def compute(a):
    a("L_compute:")
    a(f"""v_and_b32 v3, 15, v1
    s_and_b32 s36, s{WAVE}, 1          ; wc
    s_lshr_b32 s37, s{WAVE}, 1         ; wt
    s_lshl_b32 s38, s37, 13
    s_lshl_b32 s39, s{WAVE}, 12
    s_cmp_eq_u32 s{CT}, 15
    s_cselect_b32 s38, s39, s38
    v_lshrrev_b32 v5, 1, v3
    v_xor_b32 v5, v5, v4
    v_lshlrev_b32 v5, 4, v5
    v_lshl_add_u32 v12, v3, 7, v5
    v_add_u32 v12, s38, v12
    v_xor_b32 v13, 64, v12
    v_bfe_u32 v5, v1, 2, 2             ; r
    v_lshl_add_u32 v6, v4, 3, v5
    v_lshlrev_b32 v6, 8, v6
    v_and_b32 v7, 1, v4
    v_lshl_add_u32 v5, v7, 2, v5
    v_lshlrev_b32 v5, 1, v5            ; f(row)
    v_and_b32 v7, 3, v1
    s_lshl_b32 s39, s36, 3
    v_add_u32 v7, s39, v7
    v_xor_b32 v5, v5, v7
    v_lshl_add_u32 v6, v5, 4, v6
    v_bfe_u32 v5, v1, 1, 1
    v_lshl_add_u32 v6, v5, 3, v6
    v_add_u32 v14, {L_RW}, v6
    v_xor_b32 v15, 8, v14
    v_xor_b32 v16, 64, v14
    v_xor_b32 v17, 0x48, v14
    v_lshlrev_b32 v18, 4, v3
    v_lshl_add_u32 v18, v4, 12, v18
    v_mov_b32 v19, {M_PURE}
    s_mul_i32 s34, s{XCD}, {XB}
    s_lshl_b32 s39, s{CT}, 16
    s_add_u32 s34, s34, s39
    s_lshl_b32 s39, s36, 15
    s_add_u32 s34, s34, s39
    s_lshl_b32 s39, s{RBL}, 11
    s_add_u32 s34, s34, s39
    s_lshl_b32 s39, s37, 10
    s_add_u32 s34, s34, s39
    s_add_u32 s35, s34, 16384
    s_mov_b32 s42, 0
    s_mov_b32 s43, 0
    s_waitcnt lgkmcnt(0)""")
    epoch_load(a)
    srd(a, SS, 12, WS_END)
    for i in range(64):
        a(f"v_mov_b32 v{ACC+i}, 0")
    epoch_fin(a)
    stamp(a, 1)
    a(f"s_cmp_eq_u32 s{CT}, 15\ns_cbranch_scc1 L_router")

    def reads(ks, F):
        r = []
        def A(j):
            r.append(f"ds_read_b64_tr_b16 v[{F+4*j}:{F+4*j+1}], v{14+j} offset:{ks*8192}")
            r.append(f"ds_read_b64_tr_b16 v[{F+4*j+2}:{F+4*j+3}], v{14+j} offset:{ks*8192+1024}")
        A(0)
        for t in range(4):
            r.append(f"ds_read_b128 {vr(F+16+4*t,4)}, v{12+ks} offset:{t*2048}")
        A(1); A(2); A(3)
        return r

    def phase(F, rd, bar, extra):
        a("s_waitcnt lgkmcnt(6)")
        n = 0
        for j in range(4):
            if j == 1:
                a("s_waitcnt lgkmcnt(0)")
                if bar:
                    a("s_barrier")
            for t in range(4):
                d = ACC + (j * 4 + t) * 4
                a(f"v_mfma_f32_16x16x32_bf16 {vr(d,4)}, {vr(F+4*j,4)}, {vr(F+16+4*t,4)}, {vr(d,4)}")
                if j == 0:
                    a(extra[t])
                else:
                    a(rd[n]); n += 1

    a("s_barrier")
    stamp(a, 2)
    for l in reads(0, F0):
        a(l)
    a(".p2align 3\nL_g_loop:")
    phase(F0, reads(1, F1), False, ["""s_add_u32 s43, s43, 1
        s_cmp_eq_u32 s43, 3""", "s_cselect_b32 s44, -32768, 16384" if False else """s_cselect_b32 s44, 0xffff8000, s45
        """, "s_cselect_b32 s43, 0, s43\ns_add_u32 s42, s42, 1", ""])
    phase(F1, reads(0, F0), True, ["v_add_u32 v12, s44, v12\nv_add_u32 v13, s44, v13", "v_add_u32 v14, s44, v14\nv_add_u32 v15, s44, v15",
                                   "v_add_u32 v16, s44, v16\nv_add_u32 v17, s44, v17", "s_cmp_lt_u32 s42, 10"])
    a("s_cbranch_scc1 L_g_loop")
    a(f"""ds_read_b32 v20, v19
    s_cmp_ge_u32 s{CT}, 5
    s_cbranch_scc1 L_noscale
    s_mov_b32 s38, {f32(QSCALE)}
    s_nop 2""")
    for i in range(64):
        a(f"v_mul_f32 v{ACC+i}, s38, v{ACC+i}")
    a(f"""L_noscale:
    s_waitcnt lgkmcnt(0)
    v_readfirstlane_b32 s{PURE}, v20""")
    stamp(a, 3)

    def epi(sc):
        for p in range(2):
            for t in range(4):
                o = F1 + (p * 4 + t) * 4
                for h in range(2):
                    d = ACC + ((2 * p + h) * 4 + t) * 4
                    a(f"v_cvt_pk_bf16_f32 v{o+2*h}, v{d}, v{d+1}\nv_cvt_pk_bf16_f32 v{o+2*h+1}, v{d+2}, v{d+3}")
                a(f"buffer_store_dwordx4 {vr(o,4)}, v18, s[24:27], s{34+p} offen offset:{t*256} {sc}")
    a("s_nop 1")
    if OPT["dual"]:
        two_flavours(a, epi)
        a(f"""s_cmp_lt_u32 s{CT}, 5
        s_cbranch_scc1 L_noremote
        s_cmp_eq_u32 s{XCD}, 7
        s_cbranch_scc1 L_noremote
        s_add_u32 s34, s34, {WS_R}
        s_add_u32 s35, s35, {WS_R}""")
        for p in range(2):
            for t in range(4):
                a(f"buffer_store_dwordx4 {vr(F1+(p*4+t)*4,4)}, v18, s[24:27], s{34+p} offen offset:{t*256} sc1")
        a("""s_waitcnt vmcnt(8)
        s_branch L_lflag
        L_noremote:
        s_waitcnt vmcnt(0)
        L_lflag:""")
    else:
        epi("sc1")
        a("s_waitcnt vmcnt(0)")
    a("L_pubflag:")
    stamp(a, 4)
    a(f"""s_lshl_b32 s36, s{XCD}, 5
    s_add_u32 s36, s36, s{LOC}
    s_lshl_b32 s36, s36, 2
    s_add_u32 s36, s36, s{WAVE}
    s_lshl_b32 s36, s36, 2
    s_add_u32 s36, s36, {WS_FL}""")
    flag_store(a, 36, True)
    if not OPT["dual"]:
        remote_flag(a)


def remote_flag(a):
    l = uid("nr")
    a(f"""s_cmp_ge_u32 s{WAVE}, 4
    s_cbranch_scc1 {l}
    s_lshl_b32 s36, s{XCD}, 5
    s_add_u32 s36, s36, s{LOC}
    s_lshl_b32 s36, s36, 5
    s_add_u32 s36, s36, s{WAVE}
    s_lshl_b32 s36, s36, 2
    s_add_u32 s36, s36, {WS_FR}""")
    flag_store(a, 36, False)
    a(f"{l}:")


def router(a):
    a("L_router:")
    kc_init(a, 33)
    a(f"""v_and_b32 v5, 1, v1
    v_lshlrev_b32 v5, 11, v5
    v_lshl_add_u32 v14, v4, 4, v5
    v_add_u32 v14, {L_WV}, v14
    L_r_loop:
    s_barrier
    s_lshl_b32 s36, s33, 7
    v_add_u32 v15, s36, v14""")
    for ks in range(2):
        a(f"""ds_read_b128 {vr(F0+12*ks,4)}, v15 offset:{ks*64}
        ds_read_b128 {vr(F0+12*ks+4,4)}, v{12+ks}
        ds_read_b128 {vr(F0+12*ks+8,4)}, v{12+ks} offset:2048""")
    a("""s_add_u32 s33, s33, 1
    s_cmp_eq_u32 s33, 10
    s_cselect_b32 s33, 0, s33
    s_add_u32 s43, s43, 1
    s_cmp_eq_u32 s43, 3
    s_cselect_b32 s44, 0xffff8000, s45
    s_cselect_b32 s43, 0, s43
    v_add_u32 v12, s44, v12
    v_add_u32 v13, s44, v13
    s_waitcnt lgkmcnt(0)""")
    for ks in range(2):
        for t in range(2):
            a(f"v_mfma_f32_16x16x32_bf16 {vr(ACC+4*t,4)}, {vr(F0+12*ks,4)}, {vr(F0+12*ks+4+4*t,4)}, {vr(ACC+4*t,4)}")
    a(f"""s_add_u32 s42, s42, 1
    s_cmp_lt_u32 s42, 10
    s_cbranch_scc1 L_r_loop
    s_barrier
    s_mov_b32 s{PURE}, 0
    s_lshl_b32 s36, s{XCD}, 8
    s_lshl_b32 s37, s{RBL}, 7
    s_add_u32 s36, s36, s37
    s_lshl_b32 s37, s{WAVE}, 5
    s_add_u32 s36, s36, s37
    s_mov_b32 s37, {WS_G}""")
    stamp(a, 3)
    for t in range(2):
        a(f"""v_add3_u32 v20, s36, v3, {16*t}
        v_cvt_pk_bf16_f32 v{21+t}, v{ACC+4*t}, v{ACC+4*t+1}
        v_and_b32 v23, 0xffff0000, v{21+t}
        v_lshlrev_b32 v{21+t}, 16, v{21+t}""")
        sigmoid(a, 23, "v23")
        a(f"""v_cvt_pk_bf16_f32 v23, v23, v23
        v_and_b32 v{26+t}, 0xffff0000, v23
        v_lshlrev_b32 v24, 2, v20
        s_mov_b64 exec, 0xffff
        buffer_store_dword v{26+t}, v24, s[24:27], s37 offen sc1
        s_mov_b64 exec, -1
        v_ashrrev_i32 v24, 31, v{21+t}
        v_or_b32 v24, 0x80000000, v24
        v_xor_b32 v{21+t}, v{21+t}, v24
        v_and_b32 v{21+t}, 0xffff0000, v{21+t}
        v_sub_u32 v24, 0xffff, v20
        v_or_b32 v{21+t}, v{21+t}, v24""")
    top2(a, 21, 22, 25, 46, 47, 48)
    a(f"""s_lshr_b32 s36, s36, 1
    s_add_u32 s36, s36, {WS_CAND}
    v_mov_b32 v28, s46
    v_mov_b32 v29, s{TAG}
    v_mov_b32 v30, s47
    v_mov_b32 v31, s{TAG}
    v_mov_b32 v24, 0
    s_mov_b64 exec, 1
    buffer_store_dwordx4 v[28:31], v24, s[24:27], s36 offen sc1
    s_mov_b64 exec, -1
    s_waitcnt vmcnt(0)
    s_branch L_pubflag""")


Q, QH, KH, K, V, P, S0, S1, O, M = 32, 36, 38, 40, 44, 52, 64, 80, 96, 112
KA, KHA, VA, QA, QHA, G, G2, XA, XR = 12, 13, 14, 15, 16, 17, 18, 19, 20
TT, NT, HI_ = 33, 34, 35
SQ, SQH = 46, 47


def diag_mask(a, old):
    a(f"""v_lshlrev_b32 v6, 2, v4
    v_sub_u32 v6, v3, v6
    v_mov_b32 v7, 0xff800000""")
    for r in range(0, 16, 2):
        k0, k1 = (r >> 2) * 8 + (r & 3), (r >> 2) * 8 + (r & 3) + 1
        a(f"""v_cmp_le_i32 s[44:45], {k0}, v6
        v_cmp_le_i32 s[48:49], {k1}, v6
        s_nop 0
        v_cndmask_b32_e64 v{S0+r}, v7, 0, s[44:45]
        v_cndmask_b32_e64 v{S0+r+1}, v7, 0, s[48:49]""")
        if old:
            a(f"""v_cndmask_b32_e64 v{M+r}, 0, v7, s[44:45]
            v_cndmask_b32_e64 v{M+r+1}, 0, v7, s[48:49]""")


def attention(a):
    SRC = WS_L
    a("L_att_setup:")
    a(f"""s_and_b32 s31, s{LOC}, 1
    s_mul_i32 s40, s{LOC}, 5
    s_lshr_b32 s40, s40, 1            ; c0
    s_sub_u32 s{TT}, 11, s{WAVE}
    s_cmp_lt_u32 s{WAVE}, 4
    s_cselect_b32 s{TT}, s{WAVE}, s{TT}
    s_add_u32 s36, s{TT}, 1
    s_cmp_eq_u32 s{XCD}, 0
    s_cselect_b32 s{NT}, s36, 9
    s_cselect_b32 s{HI_}, 99, s{TT}
    s_lshr_b32 s36, s{LOC}, 2
    s_xor_b32 s36, s36, s31
    s_andn2_b32 s41, 1, s36
    s_lshl_b32 s41, s41, 3
    s_xor_b32 s42, s31, 1
    s_lshl_b32 s42, s42, 1
    s_mul_i32 s36, s{XCD}, 240
    s_add_u32 s36, s36, s40
    s_lshl_b32 s43, s36, 12
    s_lshl_b32 s37, s{TT}, 9
    s_add_u32 s36, s43, s37
    s_lshl_b32 s38, s31, 12
    s_add_u32 s{SQ}, s36, s38
    s_lshl_b32 s38, s42, 12
    s_add_u32 s38, s38, s41
    s_add_u32 s{SQH}, s36, s38
    v_lshlrev_b32 v10, 4, v1
    v_and_b32 v3, 31, v1
    v_lshrrev_b32 v4, 5, v1
    v_lshlrev_b32 v5, 4, v3
    v_lshl_add_u32 v{QA}, v4, 12, v5
    v_lshl_add_u32 v{QHA}, v4, 28, v5
    s_mul_i32 s38, s31, {CS}
    s_add_u32 s38, s38, s37
    v_mul_u32_u24 v6, {CS}, v4
    v_add3_u32 v{KA}, v6, v5, s38
    s_mul_i32 s38, s42, {CS}
    s_add_u32 s38, s38, s41
    s_add_u32 s38, s38, s37
    v_add_u32 v6, s38, v5
    v_mov_b32 v9, {L_ONES}
    v_cmp_eq_u32 s[44:45], 0, v4
    v_bfe_u32 v7, v1, 4, 1
    v_and_b32 v8, 3, v1
    v_cndmask_b32_e64 v{KHA}, v9, v6, s[44:45]
    v_lshl_add_u32 v6, v7, 2, v8      ; gamma
    v_add_u32 v7, s31, v6
    v_lshrrev_b32 v8, 1, v7
    v_add_u32 v11, s40, v8
    v_lshrrev_b32 v11, 1, v11
    v_xor_b32 v7, v7, v11
    v_and_b32 v7, 1, v7
    v_mul_u32_u24 v8, {CS}, v8
    v_lshl_add_u32 v8, v7, 3, v8
    s_add_u32 s38, s37, {L_V}
    v_add_u32 v8, s38, v8
    v_cmp_gt_u32 s[44:45], 5, v6
    v_bfe_u32 v7, v1, 2, 2
    v_lshl_add_u32 v7, v4, 2, v7
    v_cndmask_b32_e64 v8, v9, v8, s[44:45]
    v_lshl_add_u32 v{VA}, v7, 4, v8""")
    diag_mask(a, True)
    a(f"""s_lshr_b32 s36, s{WAVE}, 2
    s_mul_i32 s37, s36, {L_V}
    s_add_u32 s36, s36, 1
    s_mul_i32 s36, s36, {80*4096}
    s_add_u32 s36, s36, s43
    s_and_b32 s38, s{WAVE}, 3
    s_mul_i32 s38, s38, 3
    v_and_b32 v5, 15, v1
    v_mul_u32_u24 v6, 160, v5
    v_lshrrev_b32 v7, 4, v1
    v_lshl_add_u32 v6, v7, 3, v6
    s_and_b32 s39, s{WAVE}, 3
    s_mul_i32 s44, s39, 2560
    v_add_u32 v{XA}, s44, v6
    s_and_b32 s44, s{LOC}, 3
    s_lshl_b32 s44, s44, 2
    s_add_u32 s44, s44, s39
    s_lshl_b32 s44, s44, 4
    s_lshl_b32 s45, s{XCD}, 8
    s_add_u32 s51, s44, s45
    s_lshl_b32 s39, s{TT}, 5
    s_add_u32 s39, s39, s45
    v_add_lshl_u32 v6, s39, v3, 2
    v_add_lshl_u32 v7, s51, v5, 2
    s_mov_b32 s39, {WS_G}
    v_add_u32 v11, {L_XT}, v{XA}
    s_barrier""")
    stamp(a, 5)
    for i in range(3):
        a(f"""s_add_u32 s44, s38, {i}
        s_lshr_b32 s45, s44, 2
        s_mul_i32 s45, s45, {CS-4096}
        s_lshl_b32 s44, s44, 10
        s_add_u32 s45, s45, s44
        s_add_u32 s45, s45, s37
        s_add_u32 m0, s45, 4096
        s_add_u32 s44, s44, s36
        buffer_load_dwordx4 v10, s[24:27], s44 offen sc1 lds""")
    a(f"""buffer_load_dwordx4 {vr(Q,4)}, v{QA}, s[24:27], s{SQ} offen sc1
    buffer_load_dwordx2 {vr(QH,2)}, v{QHA}, s[24:27], s{SQH} offen sc1
    buffer_load_dword v{G}, v6, s[24:27], s39 offen sc1
    buffer_load_dword v{G2}, v7, s[24:27], s39 offen sc1""")
    for t in range(5):
        a(f"ds_read_b64 {vr(XR+2*t,2)}, v11 offset:{t*32}")
    if OPT["dual"]:
        a("s_waitcnt vmcnt(7)")
        remote_flag(a)
        a(f"""s_cmp_ge_u32 s{WAVE}, 4
        s_cbranch_scc1 L_w0
        s_waitcnt vmcnt(1) lgkmcnt(0)
        s_branch L_w1
        L_w0:
        s_waitcnt vmcnt(0) lgkmcnt(0)
        L_w1:""")
    else:
        a("s_waitcnt vmcnt(0) lgkmcnt(0)")
    a(f"""v_mov_b32 v30, {M_PURE}
    s_mov_b32 s40, 0
    s_barrier""")
    stamp(a, 6)
    off = lambda i: (8 - i) * 512
    rdK = lambda i: f"ds_read_b128 {vr(K,4)}, v{KA} offset:{off(i)}"
    rdKH = lambda i: f"ds_read_b64 {vr(KH,2)}, v{KHA} offset:{off(i)}"
    rdV = lambda i, h: f"ds_read_b64_tr_b16 {vr(V+4*h,2)}, v{VA} offset:{off(i)+256*h}\nds_read_b64_tr_b16 {vr(V+4*h+2,2)}, v{VA} offset:{off(i)+256*h+128}"
    stubs = []
    def halo_check(tval):
        stubs.append(tval)
        a(f"s_cmp_eq_u32 s{HI_}, {tval}\ns_cbranch_scc1 L_hw{tval}\nL_hr{tval}:")
    a("L_att_go:")
    a(rdK(0)); a(rdKH(0)); a(rdV(0, 0))
    a("ds_read_b32 v31, v30")
    halo_check(0)
    a(f"""s_waitcnt lgkmcnt(3)
    v_mfma_f32_32x32x16_bf16 {vr(S0,16)}, {vr(K,4)}, {vr(Q,4)}, {vr(S0,16)}""")
    a(rdK(1))
    a(f"v_mfma_f32_32x32x8_bf16 {vr(S0,16)}, {vr(KH,2)}, {vr(QH,2)}, {vr(S0,16)}")
    a(rdKH(1))
    a(f"s_nop 5\ns_waitcnt lgkmcnt(0)\nv_readfirstlane_b32 s{PURE}, v31")

    def softq(S, q):
        for j in range(4):
            a(f"v_exp_f32 v{S+4*q+j}, v{S+4*q+j}")
        for j in range(2):
            a(f"v_cvt_pk_bf16_f32 v{P+2*q+j}, v{S+4*q+2*j}, v{S+4*q+2*j+1}")

    for i in range(9):
        S, SN = (S0, S1) if i % 2 == 0 else (S1, S0)
        if i < 7:
            halo_check(i + 1)
        if i > 0:
            a("s_waitcnt lgkmcnt(2)")
        if i < 8:
            c = vr(M, 16) if i + 1 == 8 else "0"
            a(f"v_mfma_f32_32x32x16_bf16 {vr(SN,16)}, {vr(K,4)}, {vr(Q,4)}, {c}")
        nread = 0
        if i < 7:
            a(rdK(i + 2)); nread += 1
        softq(S, 0)
        if i > 0:
            a(f"v_mfma_f32_32x32x16_bf16 {vr(O,16)}, {vr(V+4,4)}, {vr(P+4,4)}, {vr(O,16)}")
        a(rdV(i, 1)); nread += 2
        softq(S, 1)
        if i < 8:
            a(f"v_mfma_f32_32x32x8_bf16 {vr(SN,16)}, {vr(KH,2)}, {vr(QH,2)}, {vr(SN,16)}")
        if i < 7:
            a(rdKH(i + 2)); nread += 1
        softq(S, 2)
        a(f"s_waitcnt lgkmcnt({nread})")
        a(f"v_mfma_f32_32x32x16_bf16 {vr(O,16)}, {vr(V,4)}, {vr(P,4)}, {'0' if i == 0 else vr(O,16)}")
        if i < 8:
            a(rdV(i + 1, 0))
        softq(S, 3)
        if i < 8:
            a(f"s_cmp_eq_u32 s{NT}, {i+1}\ns_cbranch_scc1 L_att_fin")
    a(f"""L_att_fin:
    s_waitcnt lgkmcnt(0)
    s_nop 0
    v_mfma_f32_32x32x16_bf16 {vr(O,16)}, {vr(V+4,4)}, {vr(P+4,4)}, {vr(O,16)}
    s_lshl_b32 s36, s{XCD}, 3
    s_add_u32 s36, s36, s{TT}
    s_lshl_b32 s36, s36, 5
    s_add_u32 s36, s36, s{LOC}
    s_lshl_b32 s36, s36, 2
    s_add_u32 s36, s36, {WS_FO}
    s_mov_b32 s37, {f32(2.0**-64)}
    s_mov_b32 s38, {f32(2.0**64 if not OPT['forcefb'] else 2.0**12)}
    s_nop 3
    v_rcp_f32 v8, v{O+12}
    v_cmp_nle_f32 s[44:45], s37, v{O+12}
    v_cmp_nge_f32 vcc, s38, v{O+12}
    v_mul_f32 v8, v8, v{G}
    s_or_b64 vcc, vcc, s[44:45]
    s_cbranch_vccnz L_fallback
    L_att_ok:""")
    for r in range(12):
        a(f"v_mul_f32 v{O+r}, v8, v{O+r}")
    for r in range(6):
        a(f"v_cvt_pk_bf16_f32 v{P+r}, v{O+2*r}, v{O+2*r+1}")
    two_flavours(a, lambda sc: a(f"""buffer_store_dwordx4 {vr(P,4)}, v{QA}, s[24:27], s{SQ} offen {sc}
    buffer_store_dwordx2 {vr(P+4,2)}, v{QHA}, s[24:27], s{SQH} offen {sc}"""))
    stamp(a, 7)
    a(f"ds_read_b128 v[60:63], v30 offset:16")
    return stubs


def att_stubs(a, stubs):
    for t in stubs:
        a(f"""L_hw{t}:
        s_mov_b32 s50, {SPIN*8}
        L_hs{t}:
        ds_read_b32 v9, v30 offset:4
        s_sub_u32 s50, s50, 1
        s_cbranch_scc1 L_hr{t}
        s_waitcnt lgkmcnt(0)
        v_readfirstlane_b32 s36, v9
        s_cmp_eq_u32 s36, 0
        s_cbranch_scc1 L_hs{t}
        s_branch L_hr{t}""")
    a(f"""L_fallback:
    s_cmp_lg_u32 s40, 0
    s_cbranch_scc1 L_att_ok
    s_mov_b32 s40, 1""")
    diag_mask(a, False)
    a(f"""v_mov_b32 v8, 0xff800000
    v_add_u32 v5, 4096, v{KA}
    v_add_u32 v6, 4096, v{KHA}
    s_mov_b32 s36, 0
    L_fb_loop:
    ds_read_b128 {vr(K,4)}, v5
    ds_read_b64 {vr(KH,2)}, v6
    v_subrev_u32 v5, 512, v5
    v_subrev_u32 v6, 512, v6
    s_waitcnt lgkmcnt(0)
    s_cmp_eq_u32 s36, 0
    s_cbranch_scc1 L_fb_a
    s_cmp_eq_u32 s36, 8
    s_cbranch_scc1 L_fb_b
    v_mfma_f32_32x32x16_bf16 {vr(S1,16)}, {vr(K,4)}, {vr(Q,4)}, 0
    s_branch L_fb_c
    L_fb_a:
    v_mfma_f32_32x32x16_bf16 {vr(S1,16)}, {vr(K,4)}, {vr(Q,4)}, {vr(S0,16)}
    s_branch L_fb_c
    L_fb_b:
    v_mfma_f32_32x32x16_bf16 {vr(S1,16)}, {vr(K,4)}, {vr(Q,4)}, {vr(M,16)}
    L_fb_c:
    v_mfma_f32_32x32x8_bf16 {vr(S1,16)}, {vr(KH,2)}, {vr(QH,2)}, {vr(S1,16)}
    s_nop 11""")
    for r in range(0, 16, 2):
        a(f"v_max3_f32 v8, v8, v{S1+r}, v{S1+r+1}")
    a(f"""s_add_u32 s36, s36, 1
    s_cmp_lt_u32 s36, s{NT}
    s_cbranch_scc1 L_fb_loop
    v_mov_b32 v9, v8
    s_nop 1
    v_permlane32_swap_b32 v8, v9
    v_max_f32 v8, v8, v9
    v_sub_f32 v8, 0, v8
    v_and_b32 v5, 0xffff0000, v8
    v_sub_f32 v8, v8, v5
    v_and_b32 v6, 0xffff0000, v8
    v_sub_f32 v8, v8, v6
    v_lshrrev_b32 v5, 16, v5
    v_or_b32 v5, v5, v6
    v_lshrrev_b32 v8, 16, v8
    v_cmp_eq_u32 s[44:45], 0, v4
    s_nop 1
    v_cndmask_b32_e64 v{QH}, v5, v{QH}, s[44:45]
    v_cndmask_b32_e64 v{QH+1}, v8, v{QH+1}, s[44:45]
    s_branch L_att_go""")


OF, PA, WF = 64, 32, 144
def outproj(a):
    a(f"""s_waitcnt vmcnt(0) lgkmcnt(0)""")
    stamp(a, 8)
    flag_store(a, 36, True)
    a(f"""v_readfirstlane_b32 s42, v60
    v_readfirstlane_b32 s43, v61
    s_lshr_b32 s32, s{LOC}, 2
    s_andn2_b32 s33, s51, 63
    s_sub_u32 s36, s42, s33
    s_sub_u32 s37, s43, s33
    s_min_u32 s36, s36, s37
    s_cmp_lt_u32 s36, 64
    s_cselect_b32 s41, 1, 0
    s_cmp_lt_u32 s{WAVE}, 4
    s_cbranch_scc1 L_op_main
    s_cmp_eq_u32 s41, 0
    s_cbranch_scc1 L_done
    s_barrier
    v_subrev_u32 v5, 256, v0
    v_mul_u32_u24 v6, 820, v5
    v_lshrrev_b32 v6, 16, v6
    v_mul_u32_u24 v7, 80, v6
    v_sub_u32 v7, v5, v7
    v_mul_u32_u24 v11, 81920, v6
    v_lshl_add_u32 v11, v7, 4, v11
    s_mul_i32 s36, s32, 1280
    s_add_u32 s36, s36, {WS_P2}
    v_cmp_gt_u32 vcc, 240, v5
    s_and_b64 exec, exec, vcc""")
    ld = "s_mov_b32 s37, s36\n" + "\n".join(f"buffer_load_dwordx4 {vr(64+4*i,4)}, v11, s[24:27], s37 offen sc1\ns_add_u32 s37, s37, 10240" for i in range(8))
    poll(a, ld, [65 + 2 * i for i in range(16)])
    for i in range(1, 8):
        a(f"v_add_f32 v64, v64, v{64+4*i}\nv_add_f32 v66, v66, v{66+4*i}")
    a(f"""v_mul_u32_u24 v6, 640, v6
    v_lshl_add_u32 v6, v7, 2, v6
    v_add_u32 v6, {L_Y}, v6
    ds_write_b32 v6, v64
    ds_write_b32 v6, v66 offset:320
    s_waitcnt lgkmcnt(0)
    s_barrier
    L_done:""")
    finish(a)
    a(f"""L_op_main:
    s_load_dwordx2 s[8:9], s[0:1], 72
    v_and_b32 v3, 15, v1
    v_lshrrev_b32 v4, 4, v1
    v_lshrrev_b32 v5, 1, v4
    v_add_u32 v6, v4, v5
    v_lshlrev_b32 v7, 4, v3
    v_lshl_add_u32 v12, v6, 12, v7
    v_and_b32 v6, 1, v4
    v_lshl_add_u32 v8, v6, 1, v5
    v_mul_u32_u24 v9, {5*4096}, v8
    v_add_u32 v13, v9, v7
    v_mul_u32_u24 v5, 20, v5
    v_lshl_add_u32 v5, v6, 2, v5
    v_bfe_u32 v7, v1, 2, 2
    v_add_u32 v5, v5, v7
    v_mul_u32_u24 v5, 160, v5
    v_and_b32 v9, 3, v1
    v_lshlrev_b32 v9, 3, v9
    v_add_u32 v9, {L_WO}, v9
    v_add_u32 v14, v5, v9
    v_add_u32 v15, {8*6400}, v14
    v_mul_u32_u24 v8, 40, v8
    v_add3_u32 v8, v8, v7, 16
    v_mul_u32_u24 v8, 160, v8
    v_add_u32 v8, v8, v9
    v_mul_u32_u24 v6, 3200, v6
    v_add_u32 v53, v8, v6
    v_sub_u32 v52, v8, v6
    v_add_u32 v52, 3200, v52
    v_add_u32 v54, {8*6400}, v52
    v_add_u32 v55, {8*6400}, v53
    v_sub_f32 v{G2}, 1.0, v{G2}""")
    for t in range(5):
        for j in range(2):
            a(f"""v_lshlrev_b32 v{PA+4*t+2*j}, 16, v{XR+2*t+j}
            v_and_b32 v{PA+4*t+2*j+1}, 0xffff0000, v{XR+2*t+j}""")
    for i in range(20):
        a(f"v_mul_f32 v{PA+i}, v{G2}, v{PA+i}")
    a(f"""s_lshr_b32 s36, s51, 5
    s_lshl_b32 s36, s36, 7
    s_add_u32 s36, s36, {WS_FO}
    v_and_b32 v5, 31, v1
    v_lshlrev_b32 v5, 2, v5
    s_mul_i32 s37, s{XCD}, {XB}
    s_and_b32 s38, s51, 255
    s_lshl_b32 s38, s38, 4
    s_add_u32 s37, s37, s38
    s_add_u32 s38, s37, 8192""")
    poll(a, "buffer_load_dword v6, v5, s[24:27], s36 offen sc1", [6])
    stamp(a, 9)
    for s in range(16):
        a(f"buffer_load_dwordx4 {vr(OF+4*s,4)}, v12, s[24:27], s37 offen sc1\ns_add_u32 s37, s37, {5*4096}")
    for s in range(4):
        a(f"buffer_load_dwordx4 {vr(OF+64+4*s,4)}, v13, s[24:27], s38 offen sc1\ns_add_u32 s38, s38, {20*4096}")
    a("s_waitcnt lgkmcnt(0)")
    srd(a, SA, 8, 2621440)
    a("s_barrier")
    stamp(a, 10)

    def wread(s, t):
        f = WF + 4 * t
        if s < 16:
            b = 14 if s < 8 else 15
            b2, o, d = b, (s % 8) * 6400, 1280
        else:
            b = 52 if s < 18 else 54
            b2, o, d = b + 1, (s % 2) * 25600, 0
        a(f"""ds_read_b64_tr_b16 v[{f}:{f+1}], v{b} offset:{o+t*32}
        ds_read_b64_tr_b16 v[{f+2}:{f+3}], v{b2} offset:{o+t*32+d}""")
    for t in range(5):
        wread(0, t)
    for s in range(20):
        for t in range(5):
            vm = f"vmcnt({19-s}) " if t == 0 else ""
            a(f"s_waitcnt {vm}lgkmcnt({8 if s < 19 else 8-2*t})")
            a(f"v_mfma_f32_16x16x32_bf16 {vr(PA+4*t,4)}, {vr(WF+4*t,4)}, {vr(OF+4*s,4)}, {vr(PA+4*t,4)}")
            if s < 19:
                wread(s + 1, t)
    stamp(a, 11)
    for n in range(3):
        a(f"""v_add_u32 v5, {64*n}, v1
        v_mul_u32_u24 v6, 6554, v5
        v_lshrrev_b32 v6, 16, v6
        v_mul_u32_u24 v7, 10, v6
        v_sub_u32 v7, v5, v7
        v_mul_u32_u24 v6, 1280, v6
        v_lshl_add_u32 v{21+n}, v7, 4, v6""")
    a(f"""v_lshrrev_b32 v5, 5, v1
    v_lshl_add_u32 v23, v5, 28, v23
    s_mul_i32 s36, s{WAVE}, 2560
    v_add_u32 v12, s36, v10
    s_mul_i32 s36, s51, 1280
    s_mul_i32 s37, s32, 160
    s_add_u32 s36, s36, s37
    s_cmp_eq_u32 s41, 0
    s_cbranch_scc1 L_noy
    v_add_u32 v9, s51, v3
    v_cmp_eq_u32 s[44:45], s43, v9
    v_cmp_eq_u32 s[48:49], s42, v9
    v_mov_b32 v7, 320
    v_cndmask_b32_e64 v5, v62, v63, s[44:45]
    v_cndmask_b32_e64 v7, 0, v7, s[44:45]
    v_lshl_add_u32 v7, v4, 4, v7
    v_add_u32 v7, {L_Y}, v7""")
    sigmoid(a, 5, "v5")
    a(f"""v_mul_f32 v5, v5, v{G2}
    s_or_b64 s[44:45], s[44:45], s[48:49]
    s_barrier""")
    for t in range(5):
        for bs in range(3):
            a(f"ds_read_b128 {vr(OF+12*t+4*bs,4)}, v7 offset:{bs*640+t*64}")
    a("s_waitcnt lgkmcnt(0)\ns_mov_b64 exec, s[44:45]")
    for t in range(5):
        for i in range(4):
            r = OF + 12 * t + i
            a(f"""v_add_f32 v{r}, v{r}, v{r+4}
            v_add_f32 v{r}, v{r}, v{r+8}
            v_fma_f32 v{PA+4*t+i}, v5, v{r}, v{PA+4*t+i}""")
    a("s_mov_b64 exec, -1\nL_noy:")
    for t in range(5):
        a(f"""v_cvt_pk_bf16_f32 v{WF+2*t}, v{PA+4*t}, v{PA+4*t+1}
        v_cvt_pk_bf16_f32 v{WF+2*t+1}, v{PA+4*t+2}, v{PA+4*t+3}
        ds_write_b64 v{XA}, {vr(WF+2*t,2)} offset:{t*32}""")
    a("s_waitcnt lgkmcnt(0)")
    for n in range(3):
        a(f"ds_read_b128 {vr(OF+4*n,4)}, v12 offset:{n*1024}")
    for n in range(3):
        a(f"s_waitcnt lgkmcnt({2-n})\nbuffer_store_dwordx4 {vr(OF+4*n,4)}, v{21+n}, s[52:55], s36 offen")
    stamp(a, 12)
    finish(a)


def wo_groups(a, g0, g1):
    lp = uid("wo")
    a(f"""s_mov_b32 s40, {L_WO+g0*5120}
    s_add_u32 s41, s34, {g0*40960}
    {lp}:""")
    for j in range(5):
        a(f"""s_add_u32 m0, s40, {j*1024}
        s_nop 0
        buffer_load_dwordx4 v{20+j}, s[20:23], s41 offen lds""")
    a(f"""s_add_u32 s40, s40, 5120
    s_add_u32 s41, s41, 40960
    s_cmp_lt_u32 s40, {L_WO+g1*5120}
    s_cbranch_scc1 {lp}""")


def purity(a):
    a(f"""v_cmp_ne_u32 vcc, s{TAG}, v12
    v_cmp_ne_u32 s[44:45], s35, v13
    s_or_b64 vcc, vcc, s[44:45]
    s_cselect_b32 s36, 0, {0 if OPT['forceimp'] else 1}
    v_mov_b32 v5, s36
    ds_write_b32 v30, v5
    s_waitcnt lgkmcnt(0)""")


def helper1(a):
    a(f"""L_help:
    s_cmp_eq_u32 s{WAVE}, 9
    s_cbranch_scc1 L_ffn
    s_load_dwordx2 s[40:41], s[0:1], 16
    s_load_dwordx2 s[8:9], s[0:1], 32
    s_load_dwordx2 s[10:11], s[0:1], 64
    v_lshlrev_b32 v10, 4, v1""")
    if OPT["pf"]:
        a(f"""s_cmp_lg_u32 s{CT}, 15
        s_cbranch_scc1 L_nopf
        s_getpc_b64 s[36:37]
        L_pc:
        s_sub_u32 s36, s36, L_pc-{NAME}_kernel
        s_subb_u32 s37, s37, 0
        s_lshl_b32 s38, s{RBL}, 12
        v_lshl_add_u32 v5, v1, 6, s38
        v_add_u32 v6, 8192, v5
        v_add_u32 v7, 16384, v5
        v_min_u32 v6, L_code_end-{NAME}_kernel-4, v6
        v_min_u32 v7, L_code_end-{NAME}_kernel-4, v7
        global_load_dword v167, v5, s[36:37]
        global_load_dword v167, v6, s[36:37]
        global_load_dword v167, v7, s[36:37]
        L_nopf:""")
    a(f"""v_mov_b32 v16, 0x3f803f80
    v_mov_b32 v17, 0x3f803f80
    v_mov_b32 v18, 0x3f803f80
    v_mov_b32 v19, 0x3f803f80
    v_add_u32 v5, {L_ONES}, v10""")
    for i in range(5):
        a(f"ds_write_b128 v5, v[16:19] offset:{i*1024}")
    a(f"""v_mov_b32 v30, {M_PURE}
    v_mov_b32 v6, 0
    v_mov_b32 v7, 0
    ds_write_b64 v30, v[6:7]""")
    for n in range(5):
        a(f"""v_add_u32 v5, {64*n}, v1
        v_mul_u32_u24 v6, 6554, v5
        v_lshrrev_b32 v6, 16, v6
        v_mul_u32_u24 v8, 10, v6
        v_sub_u32 v8, v5, v8
        v_mul_u32_u24 v6, 1280, v6
        v_lshl_add_u32 v{20+n}, v8, 4, v6""")
    a("s_waitcnt lgkmcnt(0)")
    epoch_load(a)
    srd(a, SX, 4, 2621440)
    srd(a, SW, 40, 819200)
    srd(a, SS, 12, WS_END)
    srd(a, SA, 8, 1280)
    srd(a, SB, 10, 1280)
    a(f"""s_cmp_lg_u32 s{CT}, 15
    s_cbranch_scc1 L_nowv
    s_mov_b32 m0, {L_WV}
    s_nop 0
    buffer_load_dwordx4 v10, s[52:55], 0 offen lds
    buffer_load_dwordx4 v10, s[52:55], 0 offen offset:1024 lds
    s_mov_b32 m0, {L_WV+2048}
    s_nop 0
    buffer_load_dwordx4 v10, s[56:59], 0 offen lds
    buffer_load_dwordx4 v10, s[56:59], 0 offen offset:1024 lds
    L_nowv:
    s_getreg_b32 s35, hwreg(HW_REG_XCC_ID, 0, 4)
    s_lshr_b32 s34, s{LOC}, 2
    s_mul_i32 s34, s34, 160
    s_mul_i32 s33, s{LOC}, 5
    s_lshr_b32 s33, s33, 1             ; c0
    v_lshrrev_b32 v5, 2, v1
    v_mul_u32_u24 v6, 13108, v5
    v_lshrrev_b32 v6, 16, v6
    v_mul_u32_u24 v6, 5, v6
    v_sub_u32 v6, v5, v6
    s_lshr_b32 s36, s33, 4
    s_add_u32 s37, s33, 2
    s_lshr_b32 s37, s37, 4
    v_cmp_eq_u32 s[46:47], s36, v6
    v_cmp_eq_u32 s[44:45], s37, v6
    s_or_b64 s[46:47], s[46:47], s[44:45]
    s_mov_b32 s44, 0xfff00000
    s_mov_b32 s45, 0x0fffffff
    s_and_b64 s[48:49], s[46:47], s[44:45]
    s_or_b32 s47, s47, 0xf0000000
    v_lshlrev_b32 v11, 3, v1
    v_and_b32 v14, 31, v1
    v_lshlrev_b32 v14, 3, v14
    v_lshrrev_b32 v5, 1, v1
    v_and_b32 v6, 1, v1
    v_lshlrev_b32 v6, 3, v6
    v_lshl_add_u32 v15, v5, 7, v6
    s_lshl_b32 s42, s{XCD}, 8
    s_add_u32 s42, s42, {WS_XID}""")
    epoch_fin(a)
    stamp(a, 1)
    a(f"""s_waitcnt vmcnt(0)
    s_barrier
    s_lshl_b32 s36, s{LOC}, 3
    s_add_u32 s36, s36, s42
    v_mov_b32 v8, s{TAG}
    v_mov_b32 v9, s35
    v_mov_b32 v5, 0
    s_mov_b64 exec, 1
    buffer_store_dwordx2 v[8:9], v5, s[24:27], s36 offen sc1
    s_mov_b64 exec, -1
    s_barrier
    s_barrier
    s_barrier
    s_barrier
    s_barrier
    buffer_load_dwordx2 v[12:13], v14, s[24:27], s42 offen sc1
    s_barrier
    s_barrier
    s_waitcnt vmcnt(0)""")
    purity(a)
    a(f"""s_barrier
    s_lshl_b32 s36, s{XCD}, 2
    s_and_b32 s37, s{LOC}, 3
    s_add_u32 s36, s36, s37
    s_mul_i32 s36, s36, 64*1280
    s_add_u32 s36, s36, s34
    s_add_u32 s37, s36, 40960""")
    for n in range(2):
        for j in range(5):
            a(f"""s_mov_b32 m0, {L_XT+n*5120+j*1024}
            s_nop 0
            buffer_load_dwordx4 v{20+j}, s[16:19], s{36+n} offen lds""")
    a(f"""s_barrier
    s_barrier
    s_lshl_b32 s36, s{XCD}, 9
    s_add_u32 s36, s36, {WS_FL}""")
    stamp(a, 3)
    poll(a, "buffer_load_dwordx2 v[12:13], v11, s[24:27], s36 offen sc1", [12, 13], mask="s[46:47]")
    stamp(a, 4)
    a("""s_barrier
    buffer_load_dwordx2 v[12:13], v14, s[24:27], s42 offen sc1
    s_waitcnt vmcnt(0)""")
    purity(a)
    a("s_barrier")
    stamp(a, 6)
    if OPT["woa"]:
        wo_groups(a, 0, OPT["woa"])
    a(f"""s_cmp_eq_u32 s{XCD}, 0
    s_cbranch_scc1 L_nohalo
    s_lshl_b32 s36, s{XCD}, 12
    s_add_u32 s36, s36, {WS_FR-4096}""")
    poll(a, "buffer_load_dwordx2 v[12:13], v15, s[24:27], s36 offen sc1", [12, 13], mask="s[48:49]")
    stamp(a, 7)
    a(f"""s_mul_i32 s36, s{XCD}, 240
    s_add_u32 s36, s36, s33
    s_lshl_b32 s36, s36, 12
    s_add_u32 s36, s36, {((WS_R if OPT['dual'] else WS_L) - XB + 80*4096) & 0xffffffff}""")
    for q in (3, 2, 1, 0):
        for sec in range(2):
            for j in range(3):
                a(f"""s_mov_b32 m0, {sec*L_V + j*CS + q*1024}
                s_add_u32 s37, s36, {sec*80*4096 + j*4096 + q*1024}
                buffer_load_dwordx4 v10, s[24:27], s37 offen sc1 lds""")
    a("""v_mov_b32 v5, 1
    s_waitcnt vmcnt(0)
    ds_write_b32 v30, v5 offset:4
    L_nohalo:""")
    stamp(a, 8)
    wo_groups(a, OPT["woa"], 20)
    a("s_waitcnt vmcnt(0) lgkmcnt(0)")
    stamp(a, 9)
    a(f"""s_barrier
    s_cmp_lg_u32 s2, 255
    s_cbranch_scc1 L_h1_end
    s_mov_b32 s36, {WS_XID}""")
    poll(a, "buffer_load_dwordx4 v[12:15], v10, s[24:27], s36 offen sc1\nbuffer_load_dwordx4 v[16:19], v10, s[24:27], s36 offen offset:1024 sc1", [12, 14, 16, 18])
    a(f"s_mov_b32 s36, {WS_EP}")
    flag_store(a, 36, False)
    a("L_h1_end:")
    finish(a)


def sel_by_g(a, o, b, st):
    a(f"""v_cndmask_b32_e64 v{o}, v{b}, v{b+st}, s[44:45]
    v_cndmask_b32_e64 v{o}, v{o}, v{b+2*st}, s[46:47]
    v_cndmask_b32_e64 v{o}, v{o}, v{b+3*st}, s[48:49]
    v_mov_b32 v{o+1}, s{TAG}""")


def ffn(a):
    a(f"""L_ffn:
    s_load_dwordx4 s[8:11], s[0:1], 40
    s_load_dwordx2 s[40:41], s[0:1], 56
    v_lshlrev_b32 v10, 4, v1
    s_mul_i32 s33, s{XCD}, 30
    s_add_u32 s33, s33, s{LOC}         ; job
    s_mul_i32 s34, s33, 6554
    s_lshr_b32 s34, s34, 16            ; b
    s_mul_i32 s35, s34, 10
    s_sub_u32 s35, s33, s35
    v_lshrrev_b32 v5, 3, v1
    v_and_b32 v7, 7, v1
    v_mul_u32_u24 v6, 3072, v5
    v_lshl_add_u32 v11, v7, 4, v6
    v_mul_u32_u24 v6, 1280, v5
    v_lshl_add_u32 v12, v7, 4, v6
    v_bfe_u32 v6, v1, 2, 2
    v_lshl_add_u32 v6, v4, 3, v6
    v_lshlrev_b32 v6, 7, v6
    v_and_b32 v8, 3, v1
    v_lshl_add_u32 v6, v8, 3, v6
    v_add_u32 v13, {L_FW}, v6
    v_mov_b32 v30, {M_PURE}
    s_mul_i32 s38, s35, 64*3072
    s_lshl_b32 s36, s34, 7
    s_add_u32 s38, s38, s36
    s_mul_i32 s39, s34, 64*1280
    s_lshl_b32 s36, s35, 7
    s_add_u32 s39, s39, s36
    s_waitcnt lgkmcnt(0)""")
    epoch_load(a)
    srd(a, SX, 4, 2621440)
    srd(a, SW, 40, 1966080)
    srd(a, SS, 12, WS_END)
    srd(a, SA, 8, 1966080)
    srd(a, SB, 10, 1966080)
    epoch_fin(a)
    stamp(a, 1)
    for i in range(9):
        a("s_barrier")
    a(f"s_cmp_eq_u32 s{CT}, 15\ns_cbranch_scc1 L_f_now")
    for m in range(3):
        for i in range(8):
            s_, v_, so, st = ((SA, 11, 38, 3072), (SB, 11, 38, 3072), (SW, 12, 39, 1280))[m]
            a(f"""s_mov_b32 m0, {L_FW+m*8192+i*1024}
            s_add_u32 s36, s{so}, {i*8*st}
            buffer_load_dwordx4 v{v_}, s[{s_}:{s_+3}], s36 offen {OPT['fnt']} lds""")
    a(f"""L_f_now:
    s_barrier
    s_barrier
    s_mov_b32 s36, {WS_CAND}""")
    poll(a, "buffer_load_dwordx4 v[24:27], v10, s[24:27], s36 offen sc1", [25, 27])
    stamp(a, 3)
    top2(a, 24, 26, 21, 40, 41, 44)
    key_decode(a, 40, 42, 46, 36)
    key_decode(a, 41, 43, 47, 36)
    a(f"""v_mov_b32 v16, s42
    v_mov_b32 v17, s43
    v_mov_b32 v18, s46
    v_mov_b32 v19, s47
    ds_write_b128 v30, v[16:19] offset:16
    v_and_b32 v6, 1, v1
    v_cmp_eq_u32 s[44:45], 0, v6
    s_lshl_b32 s36, s35, 7
    s_nop 0
    v_cndmask_b32_e64 v7, v17, v16, s[44:45]
    v_mul_u32_u24 v7, 1280, v7
    v_lshl_add_u32 v7, v4, 4, v7
    s_cmp_lg_u32 s{CT}, 15
    s_cbranch_scc1 L_f_job
    s_waitcnt lgkmcnt(0)""")
    finish(a)
    a(f"""L_f_job:
    buffer_load_dwordx4 v[32:35], v7, s[16:19], s36 offen
    buffer_load_dwordx4 v[36:39], v7, s[16:19], s36 offen offset:64
    ds_read_b32 v31, v30
    v_cmp_eq_u32 s[44:45], 1, v4
    v_cmp_eq_u32 s[46:47], 2, v4
    v_cmp_eq_u32 s[48:49], 3, v4
    s_waitcnt lgkmcnt(0)
    v_readfirstlane_b32 s{PURE}, v31""")
    stamp(a, 4)
    a("s_barrier")
    for t in range(4):
        for ks in range(2):
            o = 16384 + ks * 4096 + t * 32
            r = 128 + t * 8 + ks * 4
            a(f"""ds_read_b64_tr_b16 v[{r}:{r+1}], v13 offset:{o}
            ds_read_b64_tr_b16 v[{r+2}:{r+3}], v13 offset:{o+512}""")
        if t == 1:
            a("s_waitcnt lgkmcnt(0)")
    a("s_waitcnt vmcnt(0)")
    for m in range(2):
        for t in range(4):
            d = 64 + (m * 4 + t) * 4
            f = 40 + (t & 1) * 8
            for ks in range(2):
                o = m * 8192 + ks * 4096 + t * 32
                a(f"""ds_read_b64_tr_b16 v[{f+4*ks}:{f+4*ks+1}], v13 offset:{o}
                ds_read_b64_tr_b16 v[{f+4*ks+2}:{f+4*ks+3}], v13 offset:{o+512}""")
            a("s_waitcnt lgkmcnt(0)")
            for ks in range(2):
                a(f"v_mfma_f32_16x16x32_bf16 {vr(d,4)}, {vr(32+4*ks,4)}, {vr(f+4*ks,4)}, {'0' if ks == 0 else vr(d,4)}")
    a(f"""s_lshl_b32 s36, s33, 11
    s_add_u32 s36, s36, {WS_P1}
    s_nop 5""")
    for m in range(2):
        for tk in range(2):
            sel_by_g(a, 96 + m * 4 + tk * 2, 64 + m * 16 + tk, 4)
    two_flavours(a, lambda sc: a(f"""buffer_store_dwordx4 v[96:99], v10, s[24:27], s36 offen {sc}
    buffer_store_dwordx4 v[100:103], v10, s[24:27], s36 offen offset:1024 {sc}"""))
    stamp(a, 5)
    a(f"""s_barrier
    s_mul_i32 s36, s34, 20480
    s_add_u32 s36, s36, {WS_P1}""")
    stamp(a, 6)
    ld = "s_mov_b32 s37, s36\n" + "\n".join(f"""buffer_load_dwordx4 {vr(32+8*i,4)}, v10, s[24:27], s37 offen sc1
        buffer_load_dwordx4 {vr(36+8*i,4)}, v10, s[24:27], s37 offen offset:1024 sc1
        s_add_u32 s37, s37, 2048""" for i in range(10))
    poll(a, ld, [33 + 2 * i for i in range(40)])
    stamp(a, 7)
    for i in range(1, 10):
        for j in (0, 2, 4, 6):
            a(f"v_add_f32 v{32+j}, v{32+j}, v{32+8*i+j}")
    for tk in range(2):
        sigmoid(a, 14 + tk, f"v{32+2*tk}")
        a(f"v_mul_f32 v{14+tk}, v{14+tk}, v{32+2*tk}\nv_mul_f32 v{14+tk}, v{14+tk}, v{36+2*tk}")
    a(f"""v_cvt_pk_bf16_f32 v14, v14, v15
    v_lshl_add_u32 v6, v1, 1, v30
    ds_write_b16 v6, v14 offset:256
    ds_write_b16_d16_hi v6, v14 offset:384
    v_and_b32 v7, 1, v1
    v_lshl_add_u32 v7, v7, 7, v30
    v_lshl_add_u32 v7, v4, 4, v7
    s_waitcnt lgkmcnt(0)
    ds_read_b128 v[32:35], v7 offset:256
    ds_read_b128 v[36:39], v7 offset:320
    s_waitcnt lgkmcnt(0)""")
    for t in range(4):
        d = 64 + t * 4
        for ks in range(2):
            a(f"v_mfma_f32_16x16x32_bf16 {vr(d,4)}, {vr(32+4*ks,4)}, {vr(128+t*8+4*ks,4)}, {'0' if ks == 0 else vr(d,4)}")
    a(f"""s_lshl_b32 s36, s33, 10
    s_add_u32 s36, s36, {WS_P2}
    s_nop 5""")
    for tk in range(2):
        sel_by_g(a, 96 + tk * 2, 64 + tk, 4)
    a("buffer_store_dwordx4 v[96:99], v10, s[24:27], s36 offen sc1")
    stamp(a, 8)
    finish(a)


def main(out):
    a = Asm()
    head = f"""; gated mix of sliding-window attention and a top-2 routed FFN: one fused launch (written by a generator script)
; @launch grid=(256,1,1) block=(640,1,1) lds={LDS_BYTES}
.amdgcn_target "amdgcn-amd-amdhsa--gfx950"
.text
"""
    entry(a)
    loader(a)
    compute(a)
    stubs = attention(a)
    outproj(a)
    helper1(a)
    ffn(a)
    router(a)
    att_stubs(a, stubs)
    stamp_out(a)
    a("L_exit:\ns_endpgm\nL_code_end:")
    body = a.text().replace("s_mov_b32 s43, 0\n    s_waitcnt lgkmcnt(0)", "s_mov_b32 s43, 0\n    s_movk_i32 s45, 0x4000\n    s_waitcnt lgkmcnt(0)")
    bad = check_hazards(body)
    tail = f""".section .rodata,"a"
.p2align 6
.amdhsa_kernel {NAME}_kernel
  .amdhsa_next_free_vgpr 168
  .amdhsa_next_free_sgpr 96
  .amdhsa_accum_offset 168
  .amdhsa_group_segment_fixed_size 0
  .amdhsa_kernarg_size 96
  .amdhsa_user_sgpr_count 2
  .amdhsa_user_sgpr_kernarg_segment_ptr 1
  .amdhsa_system_sgpr_workgroup_id_x 1
.end_amdhsa_kernel
"""
    open(out, "w").write(head + body + tail)
    print("written", out, "hazards:", len(bad))


if __name__ == "__main__":
    main(sys.argv[1])
```

```python
import sys, struct
from asmlib import Asm, vr, sr, check_hazards

NAME = "gated_mix__sliding_block__moe_arch_mod__prompt"
def f32(x): return "0x%08x" % struct.unpack("<I", struct.pack("<f", x))[0]
LOG2E = 1.4426950408889634
QSCALE = (20 ** -0.5) * LOG2E

OPT = dict(stamp=0, dual=1, pre=1, xnt="", fnt="nt", rot=1, woa=4, pf=1, forceimp=0, forcefb=0, probe="")
for _a in sys.argv[2:]:
    k, v = _a.split("=")
    OPT[k] = int(v) if v.lstrip("-").isdigit() else v

WS_L, WS_R = 0, 0x800000
WS_G, WS_CAND, WS_XID, WS_FL, WS_FR, WS_FO = 0x1000000, 0x1010000, 0x1020000, 0x1030000, 0x1040000, 0x1050000
WS_P1, WS_P2, WS_EP, WS_ST, WS_END = 0x1060000, 0x10E0000, 0x1120000, 0x1200000, 0x1300000
XB = 240 * 4096
CS = 8192 + 64
L_K, L_V = 0, 3 * CS + 64
L_WO = 49664
L_ONES = L_WO + 102400 + 192
L_MISC = L_ONES + 5120 + 64
L_H, L_Y = L_MISC + 256, L_MISC + 512
LDS_BYTES = 163840
L_RW = 49152
L_FW = L_WO + 13 * 5120
L_XT = L_FW + 24576
L_WV = L_FW
M_PURE, M_HALO, M_TOP = L_MISC, L_MISC + 4, L_MISC + 16
assert L_V % 256 == 0 and L_ONES % 256 == 192 and L_XT + 10240 <= L_WO + 102400 and L_Y + 1920 <= LDS_BYTES
SPIN = 0x8000

WAVE, XCD, LOC, RBL, CT, TAG, PURE = 28, 29, 30, 31, 32, 60, 61
SX, SW, SS, SA, SB = 16, 20, 24, 52, 56


def srd(a, d, p, n):
    a(f"""s_mov_b32 s{d}, s{p}
    s_mov_b32 s{d+1}, s{p+1}
    s_mov_b32 s{d+2}, {n}
    s_mov_b32 s{d+3}, 0x20000""")


def stamp(a, i):
    if OPT["probe"]:
        if str(i) in OPT["probe"].split("_"):
            a(f"s_memrealtime s[{62+2*i}:{63+2*i}]\ns_waitcnt lgkmcnt(0)")
        return
    if OPT["stamp"]:
        if i == 0:
            a("s_memrealtime s[94:95]")
            for j in range(1, 15):
                a(f"s_mov_b32 s{62+2*j}, 0")
        a(f"{'s_memtime' if OPT['stamp'] == 1 else 's_memrealtime'} s[{62+2*i}:{63+2*i}]\ns_waitcnt lgkmcnt(0)")


def finish(a):
    if OPT["stamp"]:
        a("s_branch L_stampout")
    else:
        a("s_endpgm")


def stamp_out(a):
    if OPT["stamp"]:
        n = 14
        a(f"""L_stampout:
        s_waitcnt vmcnt(0)
        {'s_memtime' if OPT['stamp'] == 1 else 's_memrealtime'} s[{62+2*n}:{63+2*n}]
        s_memrealtime s[92:93]
        s_waitcnt lgkmcnt(0)
        s_lshl_b32 s3, s2, 4
        s_add_u32 s3, s3, s{WAVE}
        s_lshl_b32 s3, s3, 7
        s_add_u32 s3, s3, {WS_ST}
        s_mov_b64 exec, 1
        v_mov_b32 v0, 0""")
        for i in range(n + 1):
            a(f"v_mov_b32 v1, s{62+2*i}\nbuffer_store_dword v1, v0, s[24:27], s3 offen offset:{4*i}")
        a("v_mov_b32 v1, s94\nbuffer_store_dword v1, v0, s[24:27], s3 offen offset:120")
        a("v_mov_b32 v1, s92\nbuffer_store_dword v1, v0, s[24:27], s3 offen offset:124")
        a("s_endpgm")


def wave_max_u32(a, v, sdst):
    for m in ("row_shr:1 row_mask:0xf bank_mask:0xf bound_ctrl:1", "row_shr:2 row_mask:0xf bank_mask:0xf bound_ctrl:1",
              "row_shr:4 row_mask:0xf bank_mask:0xf bound_ctrl:1", "row_shr:8 row_mask:0xf bank_mask:0xf bound_ctrl:1",
              "row_bcast:15 row_mask:0xa bank_mask:0xf", "row_bcast:31 row_mask:0xc bank_mask:0xf"):
        a(f"s_nop 1\nv_max_u32_dpp v{v}, v{v}, v{v} {m}")
    a(f"s_nop 0\nv_readlane_b32 s{sdst}, v{v}, 63")


def top2(a, k1, k2, t, s1, s2, sm):
    a(f"v_max_u32 v{t}, v{k1}, v{k2}")
    wave_max_u32(a, t, s1)
    a(f"""s_nop 1
    v_cmp_ne_u32 s[{sm}:{sm+1}], s{s1}, v{k1}
    s_nop 1
    v_cndmask_b32_e64 v{k1}, 0, v{k1}, s[{sm}:{sm+1}]
    v_cmp_ne_u32 s[{sm}:{sm+1}], s{s1}, v{k2}
    s_nop 1
    v_cndmask_b32_e64 v{k2}, 0, v{k2}, s[{sm}:{sm+1}]
    v_max_u32 v{t}, v{k1}, v{k2}""")
    wave_max_u32(a, t, s2)


def key_decode(a, sk, stok, sval, st):
    a(f"""s_and_b32 s{stok}, s{sk}, 0xffff
    s_sub_u32 s{stok}, 0xffff, s{stok}
    s_and_b32 s{stok}, s{stok}, 0x7ff
    s_ashr_i32 s{st}, s{sk}, 31
    s_not_b32 s{st}, s{st}
    s_or_b32 s{st}, s{st}, 0x80000000
    s_xor_b32 s{sval}, s{sk}, s{st}
    s_and_b32 s{sval}, s{sval}, 0xffff0000""")


def sigmoid(a, d, s):
    a(f"""v_mul_f32 v{d}, {f32(-LOG2E)}, {s}
    v_exp_f32 v{d}, v{d}
    s_nop 0
    v_add_f32 v{d}, 1.0, v{d}
    v_rcp_f32 v{d}, v{d}
    s_nop 0""")


def epoch_load(a):
    a(f"""s_add_u32 s14, s12, {WS_EP}
    s_addc_u32 s15, s13, 0
    s_load_dword s{TAG}, s[14:15], 0""")


def epoch_fin(a):
    a(f"s_waitcnt lgkmcnt(0)\ns_add_u32 s{TAG}, s{TAG}, 0x9e3779b9")


_uid = [0]
def uid(p):
    _uid[0] += 1
    return f"L_{p}{_uid[0]}"


def poll(a, load, tagregs, mask=None, tmp=9):
    lp, out = uid("poll"), uid("pout")
    a(f"s_mov_b32 s50, {SPIN}\n{lp}:")
    a(load)
    a(f"""s_sub_u32 s50, s50, 1
    s_cbranch_scc1 {out}
    s_waitcnt vmcnt(0)""")
    if len(tagregs) == 1:
        a(f"v_cmp_ne_u32 vcc, s{TAG}, v{tagregs[0]}")
    else:
        a(f"v_xor_b32 v{tmp}, s{TAG}, v{tagregs[0]}")
        for r in tagregs[1:]:
            a(f"v_xor_b32 v{tmp-1}, s{TAG}, v{r}\nv_or_b32 v{tmp}, v{tmp}, v{tmp-1}")
        a(f"v_cmp_ne_u32 vcc, 0, v{tmp}")
    if mask:
        a(f"s_and_b64 vcc, vcc, {mask}")
    a(f"s_cbranch_vccnz {lp}\n{out}:\ns_waitcnt vmcnt(0)")


def flag_store(a, soff, local, vt=8):
    a(f"""v_mov_b32 v{vt}, s{TAG}
    v_mov_b32 v{vt+1}, 0
    s_mov_b64 exec, 1""")
    if local:
        l1, l2 = uid("fs"), uid("fe")
        a(f"""s_cmp_eq_u32 s{PURE}, 0
        s_cbranch_scc1 {l1}
        buffer_store_dword v{vt}, v{vt+1}, s[24:27], s{soff} offen
        s_branch {l2}
        {l1}:
        buffer_store_dword v{vt}, v{vt+1}, s[24:27], s{soff} offen sc1
        {l2}:""")
    else:
        a(f"buffer_store_dword v{vt}, v{vt+1}, s[24:27], s{soff} offen sc1")
    a("s_mov_b64 exec, -1")


def two_flavours(a, body):
    l1, l2 = uid("imp"), uid("ime")
    a(f"s_cmp_eq_u32 s{PURE}, 0\ns_cbranch_scc1 {l1}")
    body("")
    a(f"s_branch {l2}\n{l1}:")
    body("sc1")
    a(f"{l2}:")


def kc_init(a, d):
    a(f"s_mov_b32 s{d}, s{XCD}" if OPT["rot"] else f"s_mov_b32 s{d}, 0")


def entry(a):
    a(f""".globl {NAME}_kernel
    .p2align 8
    .type {NAME}_kernel,@function
    {NAME}_kernel:""")
    a("""s_cmp_ge_u32 s2, 256
    s_cbranch_scc1 L_exit""")
    stamp(a, 0)
    a(f"""s_load_dwordx4 s[4:7], s[0:1], 0
    s_load_dwordx2 s[12:13], s[0:1], 88
    v_lshrrev_b32 v2, 6, v0
    v_and_b32 v1, 63, v0
    v_readfirstlane_b32 s{WAVE}, v2
    s_and_b32 s{XCD}, s2, 7
    s_lshr_b32 s{LOC}, s2, 3
    s_and_b32 s{RBL}, s{LOC}, 1
    s_lshr_b32 s{CT}, s{LOC}, 1
    v_lshrrev_b32 v4, 4, v1
    s_cmp_lt_u32 s{WAVE}, 4
    s_cbranch_scc1 L_compute
    s_cmp_ge_u32 s{WAVE}, 8
    s_cbranch_scc1 L_help""")


def loader(a):
    a(f"""v_and_b32 v2, 3, v2
    v_lshrrev_b32 v3, 3, v1
    v_lshl_add_u32 v3, v2, 3, v3
    v_mul_u32_u24 v3, 1280, v3
    v_lshl_add_u32 v5, v2, 2, v4
    v_xor_b32 v6, v5, v1
    v_and_b32 v6, 7, v6
    v_lshl_add_u32 v10, v6, 4, v3
    v_mul_u32_u24 v5, 3840, v5
    v_lshrrev_b32 v6, 1, v2
    v_lshl_add_u32 v6, v6, 2, v4
    v_lshlrev_b32 v6, 1, v6
    v_xor_b32 v6, v6, v1
    v_and_b32 v6, 15, v6
    v_lshl_add_u32 v11, v6, 4, v5
    s_lshl_b32 s34, s{XCD}, 1
    s_add_u32 s34, s34, s{RBL}
    s_mul_i32 s34, s34, 128*1280
    s_lshl_b32 s35, s{CT}, 8
    s_and_b32 s40, s{WAVE}, 3
    s_lshl_b32 s40, s40, 10
    s_add_u32 s41, s40, 49152
    s_mov_b32 s42, 0
    s_mov_b32 s18, 2621440
    s_mov_b32 s19, 0x20000
    s_cmp_eq_u32 s{CT}, 15
    s_cselect_b32 s22, 0, 2457600
    s_mov_b32 s23, 0x20000""")
    kc_init(a, 33)
    a("""s_waitcnt lgkmcnt(0)
    s_mov_b32 s16, s4
    s_mov_b32 s17, s5
    s_mov_b32 s20, s6
    s_mov_b32 s21, s7""")
    epoch_load(a)
    stamp(a, 1)
    a("""s_branch L_ld_issue
    L_ld_loop:
    s_waitcnt vmcnt(8) lgkmcnt(0)
    s_barrier
    L_ld_issue:
    s_lshl_b32 s36, s33, 7
    s_add_u32 s36, s36, s34
    s_mul_i32 s37, s33, 245760
    s_add_u32 s37, s37, s35""")
    for n in range(4):
        a(f"""s_add_u32 m0, s40, {n*4096}
        s_add_u32 s38, s36, {n*40960}
        buffer_load_dwordx4 v10, s[16:19], s38 offen {OPT['xnt']} lds
        s_add_u32 m0, s40, {L_RW+n*4096}
        s_add_u32 s39, s37, {n*61440}
        buffer_load_dwordx4 v11, s[20:23], s39 offen lds""")
    a("""s_add_u32 s33, s33, 1
    s_cmp_eq_u32 s33, 10
    s_cselect_b32 s33, 0, s33
    s_add_u32 s40, s40, 16384
    s_cmp_eq_u32 s40, s41
    s_cselect_b32 s36, 49152, 0
    s_sub_u32 s40, s40, s36
    s_add_u32 s42, s42, 1
    s_cmp_lt_u32 s42, 2
    s_cbranch_scc1 L_ld_issue
    s_cmp_lt_u32 s42, 10
    s_cbranch_scc1 L_ld_loop""")
    srd(a, SS, 12, WS_END)
    a(f"s_add_u32 s{TAG}, s{TAG}, 0x9e3779b9")
    pre = 1 if (OPT["pre"] and OPT["dual"]) else 0
    if pre:
        a(f"""v_lshl_add_u32 v5, v2, 2, v4
        v_and_b32 v6, 15, v1
        v_lshlrev_b32 v6, 7, v6
        v_lshl_add_u32 v5, v5, 12, v6
        s_mul_i32 s36, s{XCD}, {XB}
        s_lshl_b32 s37, s{CT}, 16
        s_add_u32 s36, s36, s37
        s_lshl_b32 s37, s{RBL}, 11
        s_add_u32 s36, s36, s37
        s_cmp_eq_u32 s{CT}, 15
        s_cselect_b32 s36, {WS_END}, s36
        buffer_load_dword v167, v5, s[24:27], s36 offen sc1""")
    a(f"""s_waitcnt vmcnt({8+pre})
    s_barrier
    s_waitcnt vmcnt({pre})
    s_barrier
    s_barrier
    s_branch L_att_setup""")


ACC, F0, F1 = 32, 96, 128
def compute(a):
    a("L_compute:")
    a(f"""v_and_b32 v3, 15, v1
    s_and_b32 s36, s{WAVE}, 1          ; wc
    s_lshr_b32 s37, s{WAVE}, 1         ; wt
    s_lshl_b32 s38, s37, 13
    s_lshl_b32 s39, s{WAVE}, 12
    s_cmp_eq_u32 s{CT}, 15
    s_cselect_b32 s38, s39, s38
    v_lshrrev_b32 v5, 1, v3
    v_xor_b32 v5, v5, v4
    v_lshlrev_b32 v5, 4, v5
    v_lshl_add_u32 v12, v3, 7, v5
    v_add_u32 v12, s38, v12
    v_xor_b32 v13, 64, v12
    v_bfe_u32 v5, v1, 2, 2             ; r
    v_lshl_add_u32 v6, v4, 3, v5
    v_lshlrev_b32 v6, 8, v6
    v_and_b32 v7, 1, v4
    v_lshl_add_u32 v5, v7, 2, v5
    v_lshlrev_b32 v5, 1, v5            ; f(row)
    v_and_b32 v7, 3, v1
    s_lshl_b32 s39, s36, 3
    v_add_u32 v7, s39, v7
    v_xor_b32 v5, v5, v7
    v_lshl_add_u32 v6, v5, 4, v6
    v_bfe_u32 v5, v1, 1, 1
    v_lshl_add_u32 v6, v5, 3, v6
    v_add_u32 v14, {L_RW}, v6
    v_xor_b32 v15, 8, v14
    v_xor_b32 v16, 64, v14
    v_xor_b32 v17, 0x48, v14
    v_lshlrev_b32 v18, 4, v3
    v_lshl_add_u32 v18, v4, 12, v18
    v_mov_b32 v19, {M_PURE}
    s_mul_i32 s34, s{XCD}, {XB}
    s_lshl_b32 s39, s{CT}, 16
    s_add_u32 s34, s34, s39
    s_lshl_b32 s39, s36, 15
    s_add_u32 s34, s34, s39
    s_lshl_b32 s39, s{RBL}, 11
    s_add_u32 s34, s34, s39
    s_lshl_b32 s39, s37, 10
    s_add_u32 s34, s34, s39
    s_add_u32 s35, s34, 16384
    s_mov_b32 s42, 0
    s_mov_b32 s43, 0
    s_waitcnt lgkmcnt(0)""")
    epoch_load(a)
    srd(a, SS, 12, WS_END)
    for i in range(64):
        a(f"v_mov_b32 v{ACC+i}, 0")
    epoch_fin(a)
    stamp(a, 1)
    a(f"s_cmp_eq_u32 s{CT}, 15\ns_cbranch_scc1 L_router")

    def reads(ks, F):
        r = []
        def A(j):
            r.append(f"ds_read_b64_tr_b16 v[{F+4*j}:{F+4*j+1}], v{14+j} offset:{ks*8192}")
            r.append(f"ds_read_b64_tr_b16 v[{F+4*j+2}:{F+4*j+3}], v{14+j} offset:{ks*8192+1024}")
        A(0)
        for t in range(4):
            r.append(f"ds_read_b128 {vr(F+16+4*t,4)}, v{12+ks} offset:{t*2048}")
        A(1); A(2); A(3)
        return r

    def phase(F, rd, bar, extra):
        a("s_waitcnt lgkmcnt(6)")
        n = 0
        for j in range(4):
            if j == 1:
                a("s_waitcnt lgkmcnt(0)")
                if bar:
                    a("s_barrier")
            for t in range(4):
                d = ACC + (j * 4 + t) * 4
                a(f"v_mfma_f32_16x16x32_bf16 {vr(d,4)}, {vr(F+4*j,4)}, {vr(F+16+4*t,4)}, {vr(d,4)}")
                if j == 0:
                    a(extra[t])
                else:
                    a(rd[n]); n += 1

    a("s_barrier")
    stamp(a, 2)
    for l in reads(0, F0):
        a(l)
    a(".p2align 3\nL_g_loop:")
    phase(F0, reads(1, F1), False, ["""s_add_u32 s43, s43, 1
        s_cmp_eq_u32 s43, 3""", "s_cselect_b32 s44, -32768, 16384" if False else """s_cselect_b32 s44, 0xffff8000, s45
        """, "s_cselect_b32 s43, 0, s43\ns_add_u32 s42, s42, 1", ""])
    phase(F1, reads(0, F0), True, ["v_add_u32 v12, s44, v12\nv_add_u32 v13, s44, v13", "v_add_u32 v14, s44, v14\nv_add_u32 v15, s44, v15",
                                   "v_add_u32 v16, s44, v16\nv_add_u32 v17, s44, v17", "s_cmp_lt_u32 s42, 10"])
    a("s_cbranch_scc1 L_g_loop")
    a(f"""ds_read_b32 v20, v19
    s_cmp_ge_u32 s{CT}, 5
    s_cbranch_scc1 L_noscale
    s_mov_b32 s38, {f32(QSCALE)}
    s_nop 2""")
    for i in range(64):
        a(f"v_mul_f32 v{ACC+i}, s38, v{ACC+i}")
    a(f"""L_noscale:
    s_waitcnt lgkmcnt(0)
    v_readfirstlane_b32 s{PURE}, v20""")
    stamp(a, 3)

    def epi(sc):
        for p in range(2):
            for t in range(4):
                o = F1 + (p * 4 + t) * 4
                for h in range(2):
                    d = ACC + ((2 * p + h) * 4 + t) * 4
                    a(f"v_cvt_pk_bf16_f32 v{o+2*h}, v{d}, v{d+1}\nv_cvt_pk_bf16_f32 v{o+2*h+1}, v{d+2}, v{d+3}")
                a(f"buffer_store_dwordx4 {vr(o,4)}, v18, s[24:27], s{34+p} offen offset:{t*256} {sc}")
    a("s_nop 1")
    if OPT["dual"]:
        two_flavours(a, epi)
        a(f"""s_cmp_lt_u32 s{CT}, 5
        s_cbranch_scc1 L_noremote
        s_cmp_eq_u32 s{XCD}, 7
        s_cbranch_scc1 L_noremote
        s_add_u32 s34, s34, {WS_R}
        s_add_u32 s35, s35, {WS_R}""")
        for p in range(2):
            for t in range(4):
                a(f"buffer_store_dwordx4 {vr(F1+(p*4+t)*4,4)}, v18, s[24:27], s{34+p} offen offset:{t*256} sc1")
        a("""s_waitcnt vmcnt(8)
        s_branch L_lflag
        L_noremote:
        s_waitcnt vmcnt(0)
        L_lflag:""")
    else:
        epi("sc1")
        a("s_waitcnt vmcnt(0)")
    a("L_pubflag:")
    stamp(a, 4)
    a(f"""s_lshl_b32 s36, s{XCD}, 5
    s_add_u32 s36, s36, s{LOC}
    s_lshl_b32 s36, s36, 2
    s_add_u32 s36, s36, s{WAVE}
    s_lshl_b32 s36, s36, 2
    s_add_u32 s36, s36, {WS_FL}""")
    flag_store(a, 36, True)
    if not OPT["dual"]:
        remote_flag(a)


def remote_flag(a):
    l = uid("nr")
    a(f"""s_cmp_ge_u32 s{WAVE}, 4
    s_cbranch_scc1 {l}
    s_lshl_b32 s36, s{XCD}, 5
    s_add_u32 s36, s36, s{LOC}
    s_lshl_b32 s36, s36, 5
    s_add_u32 s36, s36, s{WAVE}
    s_lshl_b32 s36, s36, 2
    s_add_u32 s36, s36, {WS_FR}""")
    flag_store(a, 36, False)
    a(f"{l}:")


def router(a):
    a("L_router:")
    kc_init(a, 33)
    a(f"""v_and_b32 v5, 1, v1
    v_lshlrev_b32 v5, 11, v5
    v_lshl_add_u32 v14, v4, 4, v5
    v_add_u32 v14, {L_WV}, v14
    L_r_loop:
    s_barrier
    s_lshl_b32 s36, s33, 7
    v_add_u32 v15, s36, v14""")
    for ks in range(2):
        a(f"""ds_read_b128 {vr(F0+12*ks,4)}, v15 offset:{ks*64}
        ds_read_b128 {vr(F0+12*ks+4,4)}, v{12+ks}
        ds_read_b128 {vr(F0+12*ks+8,4)}, v{12+ks} offset:2048""")
    a("""s_add_u32 s33, s33, 1
    s_cmp_eq_u32 s33, 10
    s_cselect_b32 s33, 0, s33
    s_add_u32 s43, s43, 1
    s_cmp_eq_u32 s43, 3
    s_cselect_b32 s44, 0xffff8000, s45
    s_cselect_b32 s43, 0, s43
    v_add_u32 v12, s44, v12
    v_add_u32 v13, s44, v13
    s_waitcnt lgkmcnt(0)""")
    for ks in range(2):
        for t in range(2):
            a(f"v_mfma_f32_16x16x32_bf16 {vr(ACC+4*t,4)}, {vr(F0+12*ks,4)}, {vr(F0+12*ks+4+4*t,4)}, {vr(ACC+4*t,4)}")
    a(f"""s_add_u32 s42, s42, 1
    s_cmp_lt_u32 s42, 10
    s_cbranch_scc1 L_r_loop
    s_barrier
    s_mov_b32 s{PURE}, 0
    s_lshl_b32 s36, s{XCD}, 8
    s_lshl_b32 s37, s{RBL}, 7
    s_add_u32 s36, s36, s37
    s_lshl_b32 s37, s{WAVE}, 5
    s_add_u32 s36, s36, s37
    s_mov_b32 s37, {WS_G}""")
    stamp(a, 3)
    for t in range(2):
        a(f"""v_add3_u32 v20, s36, v3, {16*t}
        v_cvt_pk_bf16_f32 v{21+t}, v{ACC+4*t}, v{ACC+4*t+1}
        v_and_b32 v23, 0xffff0000, v{21+t}
        v_lshlrev_b32 v{21+t}, 16, v{21+t}""")
        sigmoid(a, 23, "v23")
        a(f"""v_cvt_pk_bf16_f32 v23, v23, v23
        v_and_b32 v{26+t}, 0xffff0000, v23
        v_lshlrev_b32 v24, 2, v20
        s_mov_b64 exec, 0xffff
        buffer_store_dword v{26+t}, v24, s[24:27], s37 offen sc1
        s_mov_b64 exec, -1
        v_ashrrev_i32 v24, 31, v{21+t}
        v_or_b32 v24, 0x80000000, v24
        v_xor_b32 v{21+t}, v{21+t}, v24
        v_and_b32 v{21+t}, 0xffff0000, v{21+t}
        v_sub_u32 v24, 0xffff, v20
        v_or_b32 v{21+t}, v{21+t}, v24""")
    top2(a, 21, 22, 25, 46, 47, 48)
    a(f"""s_lshr_b32 s36, s36, 1
    s_add_u32 s36, s36, {WS_CAND}
    v_mov_b32 v28, s46
    v_mov_b32 v29, s{TAG}
    v_mov_b32 v30, s47
    v_mov_b32 v31, s{TAG}
    v_mov_b32 v24, 0
    s_mov_b64 exec, 1
    buffer_store_dwordx4 v[28:31], v24, s[24:27], s36 offen sc1
    s_mov_b64 exec, -1
    s_waitcnt vmcnt(0)
    s_branch L_pubflag""")


Q, QH, KH, K, V, P, S0, S1, O, M = 32, 36, 38, 40, 44, 52, 64, 80, 96, 112
KA, KHA, VA, QA, QHA, G, G2, XA, XR = 12, 13, 14, 15, 16, 17, 18, 19, 20
TT, NT, HI_ = 33, 34, 35
SQ, SQH = 46, 47


def diag_mask(a, old):
    a(f"""v_lshlrev_b32 v6, 2, v4
    v_sub_u32 v6, v3, v6
    v_mov_b32 v7, 0xff800000""")
    for r in range(0, 16, 2):
        k0, k1 = (r >> 2) * 8 + (r & 3), (r >> 2) * 8 + (r & 3) + 1
        a(f"""v_cmp_le_i32 s[44:45], {k0}, v6
        v_cmp_le_i32 s[48:49], {k1}, v6
        s_nop 0
        v_cndmask_b32_e64 v{S0+r}, v7, 0, s[44:45]
        v_cndmask_b32_e64 v{S0+r+1}, v7, 0, s[48:49]""")
        if old:
            a(f"""v_cndmask_b32_e64 v{M+r}, 0, v7, s[44:45]
            v_cndmask_b32_e64 v{M+r+1}, 0, v7, s[48:49]""")


def attention(a):
    SRC = WS_L
    a("L_att_setup:")
    a(f"""s_and_b32 s31, s{LOC}, 1
    s_mul_i32 s40, s{LOC}, 5
    s_lshr_b32 s40, s40, 1            ; c0
    s_sub_u32 s{TT}, 11, s{WAVE}
    s_cmp_lt_u32 s{WAVE}, 4
    s_cselect_b32 s{TT}, s{WAVE}, s{TT}
    s_add_u32 s36, s{TT}, 1
    s_cmp_eq_u32 s{XCD}, 0
    s_cselect_b32 s{NT}, s36, 9
    s_cselect_b32 s{HI_}, 99, s{TT}
    s_lshr_b32 s36, s{LOC}, 2
    s_xor_b32 s36, s36, s31
    s_andn2_b32 s41, 1, s36
    s_lshl_b32 s41, s41, 3
    s_xor_b32 s42, s31, 1
    s_lshl_b32 s42, s42, 1
    s_mul_i32 s36, s{XCD}, 240
    s_add_u32 s36, s36, s40
    s_lshl_b32 s43, s36, 12
    s_lshl_b32 s37, s{TT}, 9
    s_add_u32 s36, s43, s37
    s_lshl_b32 s38, s31, 12
    s_add_u32 s{SQ}, s36, s38
    s_lshl_b32 s38, s42, 12
    s_add_u32 s38, s38, s41
    s_add_u32 s{SQH}, s36, s38
    v_lshlrev_b32 v10, 4, v1
    v_and_b32 v3, 31, v1
    v_lshrrev_b32 v4, 5, v1
    v_lshlrev_b32 v5, 4, v3
    v_lshl_add_u32 v{QA}, v4, 12, v5
    v_lshl_add_u32 v{QHA}, v4, 28, v5
    s_mul_i32 s38, s31, {CS}
    s_add_u32 s38, s38, s37
    v_mul_u32_u24 v6, {CS}, v4
    v_add3_u32 v{KA}, v6, v5, s38
    s_mul_i32 s38, s42, {CS}
    s_add_u32 s38, s38, s41
    s_add_u32 s38, s38, s37
    v_add_u32 v6, s38, v5
    v_mov_b32 v9, {L_ONES}
    v_cmp_eq_u32 s[44:45], 0, v4
    v_bfe_u32 v7, v1, 4, 1
    v_and_b32 v8, 3, v1
    v_cndmask_b32_e64 v{KHA}, v9, v6, s[44:45]
    v_lshl_add_u32 v6, v7, 2, v8      ; gamma
    v_add_u32 v7, s31, v6
    v_lshrrev_b32 v8, 1, v7
    v_add_u32 v11, s40, v8
    v_lshrrev_b32 v11, 1, v11
    v_xor_b32 v7, v7, v11
    v_and_b32 v7, 1, v7
    v_mul_u32_u24 v8, {CS}, v8
    v_lshl_add_u32 v8, v7, 3, v8
    s_add_u32 s38, s37, {L_V}
    v_add_u32 v8, s38, v8
    v_cmp_gt_u32 s[44:45], 5, v6
    v_bfe_u32 v7, v1, 2, 2
    v_lshl_add_u32 v7, v4, 2, v7
    v_cndmask_b32_e64 v8, v9, v8, s[44:45]
    v_lshl_add_u32 v{VA}, v7, 4, v8""")
    diag_mask(a, True)
    a(f"""s_lshr_b32 s36, s{WAVE}, 2
    s_mul_i32 s37, s36, {L_V}
    s_add_u32 s36, s36, 1
    s_mul_i32 s36, s36, {80*4096}
    s_add_u32 s36, s36, s43
    s_and_b32 s38, s{WAVE}, 3
    s_mul_i32 s38, s38, 3
    v_and_b32 v5, 15, v1
    v_mul_u32_u24 v6, 160, v5
    v_lshrrev_b32 v7, 4, v1
    v_lshl_add_u32 v6, v7, 3, v6
    s_and_b32 s39, s{WAVE}, 3
    s_mul_i32 s44, s39, 2560
    v_add_u32 v{XA}, s44, v6
    s_and_b32 s44, s{LOC}, 3
    s_lshl_b32 s44, s44, 2
    s_add_u32 s44, s44, s39
    s_lshl_b32 s44, s44, 4
    s_lshl_b32 s45, s{XCD}, 8
    s_add_u32 s51, s44, s45
    s_lshl_b32 s39, s{TT}, 5
    s_add_u32 s39, s39, s45
    v_add_lshl_u32 v6, s39, v3, 2
    v_add_lshl_u32 v7, s51, v5, 2
    s_mov_b32 s39, {WS_G}
    v_add_u32 v11, {L_XT}, v{XA}
    s_barrier""")
    stamp(a, 5)
    for i in range(3):
        a(f"""s_add_u32 s44, s38, {i}
        s_lshr_b32 s45, s44, 2
        s_mul_i32 s45, s45, {CS-4096}
        s_lshl_b32 s44, s44, 10
        s_add_u32 s45, s45, s44
        s_add_u32 s45, s45, s37
        s_add_u32 m0, s45, 4096
        s_add_u32 s44, s44, s36
        buffer_load_dwordx4 v10, s[24:27], s44 offen sc1 lds""")
    a(f"""buffer_load_dwordx4 {vr(Q,4)}, v{QA}, s[24:27], s{SQ} offen sc1
    buffer_load_dwordx2 {vr(QH,2)}, v{QHA}, s[24:27], s{SQH} offen sc1
    buffer_load_dword v{G}, v6, s[24:27], s39 offen sc1
    buffer_load_dword v{G2}, v7, s[24:27], s39 offen sc1""")
    for t in range(5):
        a(f"ds_read_b64 {vr(XR+2*t,2)}, v11 offset:{t*32}")
    if OPT["dual"]:
        a("s_waitcnt vmcnt(7)")
        remote_flag(a)
        a(f"""s_cmp_ge_u32 s{WAVE}, 4
        s_cbranch_scc1 L_w0
        s_waitcnt vmcnt(1) lgkmcnt(0)
        s_branch L_w1
        L_w0:
        s_waitcnt vmcnt(0) lgkmcnt(0)
        L_w1:""")
    else:
        a("s_waitcnt vmcnt(0) lgkmcnt(0)")
    a(f"""v_mov_b32 v30, {M_PURE}
    s_mov_b32 s40, 0
    s_barrier""")
    stamp(a, 6)
    off = lambda i: (8 - i) * 512
    rdK = lambda i: f"ds_read_b128 {vr(K,4)}, v{KA} offset:{off(i)}"
    rdKH = lambda i: f"ds_read_b64 {vr(KH,2)}, v{KHA} offset:{off(i)}"
    rdV = lambda i, h: f"ds_read_b64_tr_b16 {vr(V+4*h,2)}, v{VA} offset:{off(i)+256*h}\nds_read_b64_tr_b16 {vr(V+4*h+2,2)}, v{VA} offset:{off(i)+256*h+128}"
    stubs = []
    def halo_check(tval):
        stubs.append(tval)
        a(f"s_cmp_eq_u32 s{HI_}, {tval}\ns_cbranch_scc1 L_hw{tval}\nL_hr{tval}:")
    a("L_att_go:")
    a(rdK(0)); a(rdKH(0)); a(rdV(0, 0))
    a("ds_read_b32 v31, v30")
    halo_check(0)
    a(f"""s_waitcnt lgkmcnt(3)
    v_mfma_f32_32x32x16_bf16 {vr(S0,16)}, {vr(K,4)}, {vr(Q,4)}, {vr(S0,16)}""")
    a(rdK(1))
    a(f"v_mfma_f32_32x32x8_bf16 {vr(S0,16)}, {vr(KH,2)}, {vr(QH,2)}, {vr(S0,16)}")
    a(rdKH(1))
    a(f"s_nop 5\ns_waitcnt lgkmcnt(0)\nv_readfirstlane_b32 s{PURE}, v31")

    def softq(S, q):
        for j in range(4):
            a(f"v_exp_f32 v{S+4*q+j}, v{S+4*q+j}")
        for j in range(2):
            a(f"v_cvt_pk_bf16_f32 v{P+2*q+j}, v{S+4*q+2*j}, v{S+4*q+2*j+1}")

    for i in range(9):
        S, SN = (S0, S1) if i % 2 == 0 else (S1, S0)
        if i < 7:
            halo_check(i + 1)
        if i > 0:
            a("s_waitcnt lgkmcnt(2)")
        if i < 8:
            c = vr(M, 16) if i + 1 == 8 else "0"
            a(f"v_mfma_f32_32x32x16_bf16 {vr(SN,16)}, {vr(K,4)}, {vr(Q,4)}, {c}")
        nread = 0
        if i < 7:
            a(rdK(i + 2)); nread += 1
        softq(S, 0)
        if i > 0:
            a(f"v_mfma_f32_32x32x16_bf16 {vr(O,16)}, {vr(V+4,4)}, {vr(P+4,4)}, {vr(O,16)}")
        a(rdV(i, 1)); nread += 2
        softq(S, 1)
        if i < 8:
            a(f"v_mfma_f32_32x32x8_bf16 {vr(SN,16)}, {vr(KH,2)}, {vr(QH,2)}, {vr(SN,16)}")
        if i < 7:
            a(rdKH(i + 2)); nread += 1
        softq(S, 2)
        a(f"s_waitcnt lgkmcnt({nread})")
        a(f"v_mfma_f32_32x32x16_bf16 {vr(O,16)}, {vr(V,4)}, {vr(P,4)}, {'0' if i == 0 else vr(O,16)}")
        if i < 8:
            a(rdV(i + 1, 0))
        softq(S, 3)
        if i < 8:
            a(f"s_cmp_eq_u32 s{NT}, {i+1}\ns_cbranch_scc1 L_att_fin")
    a(f"""L_att_fin:
    s_waitcnt lgkmcnt(0)
    s_nop 0
    v_mfma_f32_32x32x16_bf16 {vr(O,16)}, {vr(V+4,4)}, {vr(P+4,4)}, {vr(O,16)}
    s_lshl_b32 s36, s{XCD}, 3
    s_add_u32 s36, s36, s{TT}
    s_lshl_b32 s36, s36, 5
    s_add_u32 s36, s36, s{LOC}
    s_lshl_b32 s36, s36, 2
    s_add_u32 s36, s36, {WS_FO}
    s_mov_b32 s37, {f32(2.0**-64)}
    s_mov_b32 s38, {f32(2.0**64 if not OPT['forcefb'] else 2.0**12)}
    s_nop 3
    v_rcp_f32 v8, v{O+12}
    v_cmp_nle_f32 s[44:45], s37, v{O+12}
    v_cmp_nge_f32 vcc, s38, v{O+12}
    v_mul_f32 v8, v8, v{G}
    s_or_b64 vcc, vcc, s[44:45]
    s_cbranch_vccnz L_fallback
    L_att_ok:""")
    for r in range(12):
        a(f"v_mul_f32 v{O+r}, v8, v{O+r}")
    for r in range(6):
        a(f"v_cvt_pk_bf16_f32 v{P+r}, v{O+2*r}, v{O+2*r+1}")
    two_flavours(a, lambda sc: a(f"""buffer_store_dwordx4 {vr(P,4)}, v{QA}, s[24:27], s{SQ} offen {sc}
    buffer_store_dwordx2 {vr(P+4,2)}, v{QHA}, s[24:27], s{SQH} offen {sc}"""))
    stamp(a, 7)
    a(f"ds_read_b128 v[60:63], v30 offset:16")
    return stubs


def att_stubs(a, stubs):
    for t in stubs:
        a(f"""L_hw{t}:
        s_mov_b32 s50, {SPIN*8}
        L_hs{t}:
        ds_read_b32 v9, v30 offset:4
        s_sub_u32 s50, s50, 1
        s_cbranch_scc1 L_hr{t}
        s_waitcnt lgkmcnt(0)
        v_readfirstlane_b32 s36, v9
        s_cmp_eq_u32 s36, 0
        s_cbranch_scc1 L_hs{t}
        s_branch L_hr{t}""")
    a(f"""L_fallback:
    s_cmp_lg_u32 s40, 0
    s_cbranch_scc1 L_att_ok
    s_mov_b32 s40, 1""")
    diag_mask(a, False)
    a(f"""v_mov_b32 v8, 0xff800000
    v_add_u32 v5, 4096, v{KA}
    v_add_u32 v6, 4096, v{KHA}
    s_mov_b32 s36, 0
    L_fb_loop:
    ds_read_b128 {vr(K,4)}, v5
    ds_read_b64 {vr(KH,2)}, v6
    v_subrev_u32 v5, 512, v5
    v_subrev_u32 v6, 512, v6
    s_waitcnt lgkmcnt(0)
    s_cmp_eq_u32 s36, 0
    s_cbranch_scc1 L_fb_a
    s_cmp_eq_u32 s36, 8
    s_cbranch_scc1 L_fb_b
    v_mfma_f32_32x32x16_bf16 {vr(S1,16)}, {vr(K,4)}, {vr(Q,4)}, 0
    s_branch L_fb_c
    L_fb_a:
    v_mfma_f32_32x32x16_bf16 {vr(S1,16)}, {vr(K,4)}, {vr(Q,4)}, {vr(S0,16)}
    s_branch L_fb_c
    L_fb_b:
    v_mfma_f32_32x32x16_bf16 {vr(S1,16)}, {vr(K,4)}, {vr(Q,4)}, {vr(M,16)}
    L_fb_c:
    v_mfma_f32_32x32x8_bf16 {vr(S1,16)}, {vr(KH,2)}, {vr(QH,2)}, {vr(S1,16)}
    s_nop 11""")
    for r in range(0, 16, 2):
        a(f"v_max3_f32 v8, v8, v{S1+r}, v{S1+r+1}")
    a(f"""s_add_u32 s36, s36, 1
    s_cmp_lt_u32 s36, s{NT}
    s_cbranch_scc1 L_fb_loop
    v_mov_b32 v9, v8
    s_nop 1
    v_permlane32_swap_b32 v8, v9
    v_max_f32 v8, v8, v9
    v_sub_f32 v8, 0, v8
    v_and_b32 v5, 0xffff0000, v8
    v_sub_f32 v8, v8, v5
    v_and_b32 v6, 0xffff0000, v8
    v_sub_f32 v8, v8, v6
    v_lshrrev_b32 v5, 16, v5
    v_or_b32 v5, v5, v6
    v_lshrrev_b32 v8, 16, v8
    v_cmp_eq_u32 s[44:45], 0, v4
    s_nop 1
    v_cndmask_b32_e64 v{QH}, v5, v{QH}, s[44:45]
    v_cndmask_b32_e64 v{QH+1}, v8, v{QH+1}, s[44:45]
    s_branch L_att_go""")


OF, PA, WF = 64, 32, 144
def outproj(a):
    a(f"""s_waitcnt vmcnt(0) lgkmcnt(0)""")
    stamp(a, 8)
    flag_store(a, 36, True)
    a(f"""v_readfirstlane_b32 s42, v60
    v_readfirstlane_b32 s43, v61
    s_lshr_b32 s32, s{LOC}, 2
    s_andn2_b32 s33, s51, 63
    s_sub_u32 s36, s42, s33
    s_sub_u32 s37, s43, s33
    s_min_u32 s36, s36, s37
    s_cmp_lt_u32 s36, 64
    s_cselect_b32 s41, 1, 0
    s_cmp_lt_u32 s{WAVE}, 4
    s_cbranch_scc1 L_op_main
    s_cmp_eq_u32 s41, 0
    s_cbranch_scc1 L_done
    s_barrier
    v_subrev_u32 v5, 256, v0
    v_mul_u32_u24 v6, 820, v5
    v_lshrrev_b32 v6, 16, v6
    v_mul_u32_u24 v7, 80, v6
    v_sub_u32 v7, v5, v7
    v_mul_u32_u24 v11, 81920, v6
    v_lshl_add_u32 v11, v7, 4, v11
    s_mul_i32 s36, s32, 1280
    s_add_u32 s36, s36, {WS_P2}
    v_cmp_gt_u32 vcc, 240, v5
    s_and_b64 exec, exec, vcc""")
    ld = "s_mov_b32 s37, s36\n" + "\n".join(f"buffer_load_dwordx4 {vr(64+4*i,4)}, v11, s[24:27], s37 offen sc1\ns_add_u32 s37, s37, 10240" for i in range(8))
    poll(a, ld, [65 + 2 * i for i in range(16)])
    for i in range(1, 8):
        a(f"v_add_f32 v64, v64, v{64+4*i}\nv_add_f32 v66, v66, v{66+4*i}")
    a(f"""v_mul_u32_u24 v6, 640, v6
    v_lshl_add_u32 v6, v7, 2, v6
    v_add_u32 v6, {L_Y}, v6
    ds_write_b32 v6, v64
    ds_write_b32 v6, v66 offset:320
    s_waitcnt lgkmcnt(0)
    s_barrier
    L_done:""")
    finish(a)
    a(f"""L_op_main:
    s_load_dwordx2 s[8:9], s[0:1], 72
    v_and_b32 v3, 15, v1
    v_lshrrev_b32 v4, 4, v1
    v_lshrrev_b32 v5, 1, v4
    v_add_u32 v6, v4, v5
    v_lshlrev_b32 v7, 4, v3
    v_lshl_add_u32 v12, v6, 12, v7
    v_and_b32 v6, 1, v4
    v_lshl_add_u32 v8, v6, 1, v5
    v_mul_u32_u24 v9, {5*4096}, v8
    v_add_u32 v13, v9, v7
    v_mul_u32_u24 v5, 20, v5
    v_lshl_add_u32 v5, v6, 2, v5
    v_bfe_u32 v7, v1, 2, 2
    v_add_u32 v5, v5, v7
    v_mul_u32_u24 v5, 160, v5
    v_and_b32 v9, 3, v1
    v_lshlrev_b32 v9, 3, v9
    v_add_u32 v9, {L_WO}, v9
    v_add_u32 v14, v5, v9
    v_add_u32 v15, {8*6400}, v14
    v_mul_u32_u24 v8, 40, v8
    v_add3_u32 v8, v8, v7, 16
    v_mul_u32_u24 v8, 160, v8
    v_add_u32 v8, v8, v9
    v_mul_u32_u24 v6, 3200, v6
    v_add_u32 v53, v8, v6
    v_sub_u32 v52, v8, v6
    v_add_u32 v52, 3200, v52
    v_add_u32 v54, {8*6400}, v52
    v_add_u32 v55, {8*6400}, v53
    v_sub_f32 v{G2}, 1.0, v{G2}""")
    for t in range(5):
        for j in range(2):
            a(f"""v_lshlrev_b32 v{PA+4*t+2*j}, 16, v{XR+2*t+j}
            v_and_b32 v{PA+4*t+2*j+1}, 0xffff0000, v{XR+2*t+j}""")
    for i in range(20):
        a(f"v_mul_f32 v{PA+i}, v{G2}, v{PA+i}")
    a(f"""s_lshr_b32 s36, s51, 5
    s_lshl_b32 s36, s36, 7
    s_add_u32 s36, s36, {WS_FO}
    v_and_b32 v5, 31, v1
    v_lshlrev_b32 v5, 2, v5
    s_mul_i32 s37, s{XCD}, {XB}
    s_and_b32 s38, s51, 255
    s_lshl_b32 s38, s38, 4
    s_add_u32 s37, s37, s38
    s_add_u32 s38, s37, 8192""")
    poll(a, "buffer_load_dword v6, v5, s[24:27], s36 offen sc1", [6])
    stamp(a, 9)
    for s in range(16):
        a(f"buffer_load_dwordx4 {vr(OF+4*s,4)}, v12, s[24:27], s37 offen sc1\ns_add_u32 s37, s37, {5*4096}")
    for s in range(4):
        a(f"buffer_load_dwordx4 {vr(OF+64+4*s,4)}, v13, s[24:27], s38 offen sc1\ns_add_u32 s38, s38, {20*4096}")
    a("s_waitcnt lgkmcnt(0)")
    srd(a, SA, 8, 2621440)
    a("s_barrier")
    stamp(a, 10)

    def wread(s, t):
        f = WF + 4 * t
        if s < 16:
            b = 14 if s < 8 else 15
            b2, o, d = b, (s % 8) * 6400, 1280
        else:
            b = 52 if s < 18 else 54
            b2, o, d = b + 1, (s % 2) * 25600, 0
        a(f"""ds_read_b64_tr_b16 v[{f}:{f+1}], v{b} offset:{o+t*32}
        ds_read_b64_tr_b16 v[{f+2}:{f+3}], v{b2} offset:{o+t*32+d}""")
    for t in range(5):
        wread(0, t)
    for s in range(20):
        for t in range(5):
            vm = f"vmcnt({19-s}) " if t == 0 else ""
            a(f"s_waitcnt {vm}lgkmcnt({8 if s < 19 else 8-2*t})")
            a(f"v_mfma_f32_16x16x32_bf16 {vr(PA+4*t,4)}, {vr(WF+4*t,4)}, {vr(OF+4*s,4)}, {vr(PA+4*t,4)}")
            if s < 19:
                wread(s + 1, t)
    stamp(a, 11)
    for n in range(3):
        a(f"""v_add_u32 v5, {64*n}, v1
        v_mul_u32_u24 v6, 6554, v5
        v_lshrrev_b32 v6, 16, v6
        v_mul_u32_u24 v7, 10, v6
        v_sub_u32 v7, v5, v7
        v_mul_u32_u24 v6, 1280, v6
        v_lshl_add_u32 v{21+n}, v7, 4, v6""")
    a(f"""v_lshrrev_b32 v5, 5, v1
    v_lshl_add_u32 v23, v5, 28, v23
    s_mul_i32 s36, s{WAVE}, 2560
    v_add_u32 v12, s36, v10
    s_mul_i32 s36, s51, 1280
    s_mul_i32 s37, s32, 160
    s_add_u32 s36, s36, s37
    s_cmp_eq_u32 s41, 0
    s_cbranch_scc1 L_noy
    v_add_u32 v9, s51, v3
    v_cmp_eq_u32 s[44:45], s43, v9
    v_cmp_eq_u32 s[48:49], s42, v9
    v_mov_b32 v7, 320
    v_cndmask_b32_e64 v5, v62, v63, s[44:45]
    v_cndmask_b32_e64 v7, 0, v7, s[44:45]
    v_lshl_add_u32 v7, v4, 4, v7
    v_add_u32 v7, {L_Y}, v7""")
    sigmoid(a, 5, "v5")
    a(f"""v_mul_f32 v5, v5, v{G2}
    s_or_b64 s[44:45], s[44:45], s[48:49]
    s_barrier""")
    for t in range(5):
        for bs in range(3):
            a(f"ds_read_b128 {vr(OF+12*t+4*bs,4)}, v7 offset:{bs*640+t*64}")
    a("s_waitcnt lgkmcnt(0)\ns_mov_b64 exec, s[44:45]")
    for t in range(5):
        for i in range(4):
            r = OF + 12 * t + i
            a(f"""v_add_f32 v{r}, v{r}, v{r+4}
            v_add_f32 v{r}, v{r}, v{r+8}
            v_fma_f32 v{PA+4*t+i}, v5, v{r}, v{PA+4*t+i}""")
    a("s_mov_b64 exec, -1\nL_noy:")
    for t in range(5):
        a(f"""v_cvt_pk_bf16_f32 v{WF+2*t}, v{PA+4*t}, v{PA+4*t+1}
        v_cvt_pk_bf16_f32 v{WF+2*t+1}, v{PA+4*t+2}, v{PA+4*t+3}
        ds_write_b64 v{XA}, {vr(WF+2*t,2)} offset:{t*32}""")
    a("s_waitcnt lgkmcnt(0)")
    for n in range(3):
        a(f"ds_read_b128 {vr(OF+4*n,4)}, v12 offset:{n*1024}")
    for n in range(3):
        a(f"s_waitcnt lgkmcnt({2-n})\nbuffer_store_dwordx4 {vr(OF+4*n,4)}, v{21+n}, s[52:55], s36 offen")
    stamp(a, 12)
    if OPT["probe"]:
        pa, pb = [int(x) for x in OPT["probe"].split("_")]
        a(f"""s_sub_u32 s36, s{62+2*pb}, s{62+2*pa}
        s_lshl_b32 s36, s36, 2
        s_min_u32 s36, s36, 20000
        s_memrealtime s[38:39]
        s_waitcnt lgkmcnt(0)
        s_add_u32 s36, s36, s38
        L_probe:
        s_sleep 2
        s_memrealtime s[38:39]
        s_waitcnt lgkmcnt(0)
        s_sub_u32 s37, s38, s36
        s_cmp_lt_i32 s37, 0
        s_cbranch_scc1 L_probe""")
    finish(a)


def wo_groups(a, g0, g1):
    lp = uid("wo")
    a(f"""s_mov_b32 s40, {L_WO+g0*5120}
    s_add_u32 s41, s34, {g0*40960}
    {lp}:""")
    for j in range(5):
        a(f"""s_add_u32 m0, s40, {j*1024}
        s_nop 0
        buffer_load_dwordx4 v{20+j}, s[20:23], s41 offen lds""")
    a(f"""s_add_u32 s40, s40, 5120
    s_add_u32 s41, s41, 40960
    s_cmp_lt_u32 s40, {L_WO+g1*5120}
    s_cbranch_scc1 {lp}""")


def purity(a):
    a(f"""v_cmp_ne_u32 vcc, s{TAG}, v12
    v_cmp_ne_u32 s[44:45], s35, v13
    s_or_b64 vcc, vcc, s[44:45]
    s_cselect_b32 s36, 0, {0 if OPT['forceimp'] else 1}
    v_mov_b32 v5, s36
    ds_write_b32 v30, v5
    s_waitcnt lgkmcnt(0)""")


def helper1(a):
    a(f"""L_help:
    s_cmp_eq_u32 s{WAVE}, 9
    s_cbranch_scc1 L_ffn
    s_load_dwordx2 s[40:41], s[0:1], 16
    s_load_dwordx2 s[8:9], s[0:1], 32
    s_load_dwordx2 s[10:11], s[0:1], 64
    v_lshlrev_b32 v10, 4, v1""")
    if OPT["pf"]:
        a(f"""s_cmp_lg_u32 s{CT}, 15
        s_cbranch_scc1 L_nopf
        s_getpc_b64 s[36:37]
        L_pc:
        s_sub_u32 s36, s36, L_pc-{NAME}_kernel
        s_subb_u32 s37, s37, 0
        s_lshl_b32 s38, s{RBL}, 12
        v_lshl_add_u32 v5, v1, 6, s38
        v_add_u32 v6, 8192, v5
        v_add_u32 v7, 16384, v5
        v_min_u32 v6, L_code_end-{NAME}_kernel-4, v6
        v_min_u32 v7, L_code_end-{NAME}_kernel-4, v7
        global_load_dword v167, v5, s[36:37]
        global_load_dword v167, v6, s[36:37]
        global_load_dword v167, v7, s[36:37]
        L_nopf:""")
    a(f"""v_mov_b32 v16, 0x3f803f80
    v_mov_b32 v17, 0x3f803f80
    v_mov_b32 v18, 0x3f803f80
    v_mov_b32 v19, 0x3f803f80
    v_add_u32 v5, {L_ONES}, v10""")
    for i in range(5):
        a(f"ds_write_b128 v5, v[16:19] offset:{i*1024}")
    a(f"""v_mov_b32 v30, {M_PURE}
    v_mov_b32 v6, 0
    v_mov_b32 v7, 0
    ds_write_b64 v30, v[6:7]""")
    for n in range(5):
        a(f"""v_add_u32 v5, {64*n}, v1
        v_mul_u32_u24 v6, 6554, v5
        v_lshrrev_b32 v6, 16, v6
        v_mul_u32_u24 v8, 10, v6
        v_sub_u32 v8, v5, v8
        v_mul_u32_u24 v6, 1280, v6
        v_lshl_add_u32 v{20+n}, v8, 4, v6""")
    a("s_waitcnt lgkmcnt(0)")
    epoch_load(a)
    srd(a, SX, 4, 2621440)
    srd(a, SW, 40, 819200)
    srd(a, SS, 12, WS_END)
    srd(a, SA, 8, 1280)
    srd(a, SB, 10, 1280)
    a(f"""s_cmp_lg_u32 s{CT}, 15
    s_cbranch_scc1 L_nowv
    s_mov_b32 m0, {L_WV}
    s_nop 0
    buffer_load_dwordx4 v10, s[52:55], 0 offen lds
    buffer_load_dwordx4 v10, s[52:55], 0 offen offset:1024 lds
    s_mov_b32 m0, {L_WV+2048}
    s_nop 0
    buffer_load_dwordx4 v10, s[56:59], 0 offen lds
    buffer_load_dwordx4 v10, s[56:59], 0 offen offset:1024 lds
    L_nowv:
    s_getreg_b32 s35, hwreg(HW_REG_XCC_ID, 0, 4)
    s_lshr_b32 s34, s{LOC}, 2
    s_mul_i32 s34, s34, 160
    s_mul_i32 s33, s{LOC}, 5
    s_lshr_b32 s33, s33, 1             ; c0
    v_lshrrev_b32 v5, 2, v1
    v_mul_u32_u24 v6, 13108, v5
    v_lshrrev_b32 v6, 16, v6
    v_mul_u32_u24 v6, 5, v6
    v_sub_u32 v6, v5, v6
    s_lshr_b32 s36, s33, 4
    s_add_u32 s37, s33, 2
    s_lshr_b32 s37, s37, 4
    v_cmp_eq_u32 s[46:47], s36, v6
    v_cmp_eq_u32 s[44:45], s37, v6
    s_or_b64 s[46:47], s[46:47], s[44:45]
    s_mov_b32 s44, 0xfff00000
    s_mov_b32 s45, 0x0fffffff
    s_and_b64 s[48:49], s[46:47], s[44:45]
    s_or_b32 s47, s47, 0xf0000000
    v_lshlrev_b32 v11, 3, v1
    v_and_b32 v14, 31, v1
    v_lshlrev_b32 v14, 3, v14
    v_lshrrev_b32 v5, 1, v1
    v_and_b32 v6, 1, v1
    v_lshlrev_b32 v6, 3, v6
    v_lshl_add_u32 v15, v5, 7, v6
    s_lshl_b32 s42, s{XCD}, 8
    s_add_u32 s42, s42, {WS_XID}""")
    epoch_fin(a)
    stamp(a, 1)
    a(f"""s_waitcnt vmcnt(0)
    s_barrier
    s_lshl_b32 s36, s{LOC}, 3
    s_add_u32 s36, s36, s42
    v_mov_b32 v8, s{TAG}
    v_mov_b32 v9, s35
    v_mov_b32 v5, 0
    s_mov_b64 exec, 1
    buffer_store_dwordx2 v[8:9], v5, s[24:27], s36 offen sc1
    s_mov_b64 exec, -1
    s_barrier
    s_barrier
    s_barrier
    s_barrier
    s_barrier
    buffer_load_dwordx2 v[12:13], v14, s[24:27], s42 offen sc1
    s_barrier
    s_barrier
    s_waitcnt vmcnt(0)""")
    purity(a)
    a(f"""s_barrier
    s_lshl_b32 s36, s{XCD}, 2
    s_and_b32 s37, s{LOC}, 3
    s_add_u32 s36, s36, s37
    s_mul_i32 s36, s36, 64*1280
    s_add_u32 s36, s36, s34
    s_add_u32 s37, s36, 40960""")
    for n in range(2):
        for j in range(5):
            a(f"""s_mov_b32 m0, {L_XT+n*5120+j*1024}
            s_nop 0
            buffer_load_dwordx4 v{20+j}, s[16:19], s{36+n} offen lds""")
    a(f"""s_barrier
    s_barrier
    s_lshl_b32 s36, s{XCD}, 9
    s_add_u32 s36, s36, {WS_FL}""")
    stamp(a, 3)
    poll(a, "buffer_load_dwordx2 v[12:13], v11, s[24:27], s36 offen sc1", [12, 13], mask="s[46:47]")
    stamp(a, 4)
    a("""s_barrier
    buffer_load_dwordx2 v[12:13], v14, s[24:27], s42 offen sc1
    s_waitcnt vmcnt(0)""")
    purity(a)
    a("s_barrier")
    stamp(a, 6)
    if OPT["woa"]:
        wo_groups(a, 0, OPT["woa"])
    a(f"""s_cmp_eq_u32 s{XCD}, 0
    s_cbranch_scc1 L_nohalo
    s_lshl_b32 s36, s{XCD}, 12
    s_add_u32 s36, s36, {WS_FR-4096}""")
    poll(a, "buffer_load_dwordx2 v[12:13], v15, s[24:27], s36 offen sc1", [12, 13], mask="s[48:49]")
    stamp(a, 7)
    a(f"""s_mul_i32 s36, s{XCD}, 240
    s_add_u32 s36, s36, s33
    s_lshl_b32 s36, s36, 12
    s_add_u32 s36, s36, {((WS_R if OPT['dual'] else WS_L) - XB + 80*4096) & 0xffffffff}""")
    for q in (3, 2, 1, 0):
        for sec in range(2):
            for j in range(3):
                a(f"""s_mov_b32 m0, {sec*L_V + j*CS + q*1024}
                s_add_u32 s37, s36, {sec*80*4096 + j*4096 + q*1024}
                buffer_load_dwordx4 v10, s[24:27], s37 offen sc1 lds""")
    a("""v_mov_b32 v5, 1
    s_waitcnt vmcnt(0)
    ds_write_b32 v30, v5 offset:4
    L_nohalo:""")
    stamp(a, 8)
    wo_groups(a, OPT["woa"], 20)
    a("s_waitcnt vmcnt(0) lgkmcnt(0)")
    stamp(a, 9)
    a(f"""s_barrier
    s_cmp_lg_u32 s2, 255
    s_cbranch_scc1 L_h1_end
    s_mov_b32 s36, {WS_XID}""")
    poll(a, "buffer_load_dwordx4 v[12:15], v10, s[24:27], s36 offen sc1\nbuffer_load_dwordx4 v[16:19], v10, s[24:27], s36 offen offset:1024 sc1", [12, 14, 16, 18])
    a(f"s_mov_b32 s36, {WS_EP}")
    flag_store(a, 36, False)
    a("L_h1_end:")
    finish(a)


def sel_by_g(a, o, b, st):
    a(f"""v_cndmask_b32_e64 v{o}, v{b}, v{b+st}, s[44:45]
    v_cndmask_b32_e64 v{o}, v{o}, v{b+2*st}, s[46:47]
    v_cndmask_b32_e64 v{o}, v{o}, v{b+3*st}, s[48:49]
    v_mov_b32 v{o+1}, s{TAG}""")


def ffn(a):
    a(f"""L_ffn:
    s_load_dwordx4 s[8:11], s[0:1], 40
    s_load_dwordx2 s[40:41], s[0:1], 56
    v_lshlrev_b32 v10, 4, v1
    s_mul_i32 s33, s{XCD}, 30
    s_add_u32 s33, s33, s{LOC}         ; job
    s_mul_i32 s34, s33, 6554
    s_lshr_b32 s34, s34, 16            ; b
    s_mul_i32 s35, s34, 10
    s_sub_u32 s35, s33, s35
    v_lshrrev_b32 v5, 3, v1
    v_and_b32 v7, 7, v1
    v_mul_u32_u24 v6, 3072, v5
    v_lshl_add_u32 v11, v7, 4, v6
    v_mul_u32_u24 v6, 1280, v5
    v_lshl_add_u32 v12, v7, 4, v6
    v_bfe_u32 v6, v1, 2, 2
    v_lshl_add_u32 v6, v4, 3, v6
    v_lshlrev_b32 v6, 7, v6
    v_and_b32 v8, 3, v1
    v_lshl_add_u32 v6, v8, 3, v6
    v_add_u32 v13, {L_FW}, v6
    v_mov_b32 v30, {M_PURE}
    s_mul_i32 s38, s35, 64*3072
    s_lshl_b32 s36, s34, 7
    s_add_u32 s38, s38, s36
    s_mul_i32 s39, s34, 64*1280
    s_lshl_b32 s36, s35, 7
    s_add_u32 s39, s39, s36
    s_waitcnt lgkmcnt(0)""")
    epoch_load(a)
    srd(a, SX, 4, 2621440)
    srd(a, SW, 40, 1966080)
    srd(a, SS, 12, WS_END)
    srd(a, SA, 8, 1966080)
    srd(a, SB, 10, 1966080)
    epoch_fin(a)
    stamp(a, 1)
    for i in range(9):
        a("s_barrier")
    a(f"s_cmp_eq_u32 s{CT}, 15\ns_cbranch_scc1 L_f_now")
    for m in range(3):
        for i in range(8):
            s_, v_, so, st = ((SA, 11, 38, 3072), (SB, 11, 38, 3072), (SW, 12, 39, 1280))[m]
            a(f"""s_mov_b32 m0, {L_FW+m*8192+i*1024}
            s_add_u32 s36, s{so}, {i*8*st}
            buffer_load_dwordx4 v{v_}, s[{s_}:{s_+3}], s36 offen {OPT['fnt']} lds""")
    a(f"""L_f_now:
    s_barrier
    s_barrier
    s_mov_b32 s36, {WS_CAND}""")
    poll(a, "buffer_load_dwordx4 v[24:27], v10, s[24:27], s36 offen sc1", [25, 27])
    stamp(a, 3)
    top2(a, 24, 26, 21, 40, 41, 44)
    key_decode(a, 40, 42, 46, 36)
    key_decode(a, 41, 43, 47, 36)
    a(f"""v_mov_b32 v16, s42
    v_mov_b32 v17, s43
    v_mov_b32 v18, s46
    v_mov_b32 v19, s47
    ds_write_b128 v30, v[16:19] offset:16
    v_and_b32 v6, 1, v1
    v_cmp_eq_u32 s[44:45], 0, v6
    s_lshl_b32 s36, s35, 7
    s_nop 0
    v_cndmask_b32_e64 v7, v17, v16, s[44:45]
    v_mul_u32_u24 v7, 1280, v7
    v_lshl_add_u32 v7, v4, 4, v7
    s_cmp_lg_u32 s{CT}, 15
    s_cbranch_scc1 L_f_job
    s_waitcnt lgkmcnt(0)""")
    finish(a)
    a(f"""L_f_job:
    buffer_load_dwordx4 v[32:35], v7, s[16:19], s36 offen
    buffer_load_dwordx4 v[36:39], v7, s[16:19], s36 offen offset:64
    ds_read_b32 v31, v30
    v_cmp_eq_u32 s[44:45], 1, v4
    v_cmp_eq_u32 s[46:47], 2, v4
    v_cmp_eq_u32 s[48:49], 3, v4
    s_waitcnt lgkmcnt(0)
    v_readfirstlane_b32 s{PURE}, v31""")
    stamp(a, 4)
    a("s_barrier")
    for t in range(4):
        for ks in range(2):
            o = 16384 + ks * 4096 + t * 32
            r = 128 + t * 8 + ks * 4
            a(f"""ds_read_b64_tr_b16 v[{r}:{r+1}], v13 offset:{o}
            ds_read_b64_tr_b16 v[{r+2}:{r+3}], v13 offset:{o+512}""")
        if t == 1:
            a("s_waitcnt lgkmcnt(0)")
    a("s_waitcnt vmcnt(0)")
    for m in range(2):
        for t in range(4):
            d = 64 + (m * 4 + t) * 4
            f = 40 + (t & 1) * 8
            for ks in range(2):
                o = m * 8192 + ks * 4096 + t * 32
                a(f"""ds_read_b64_tr_b16 v[{f+4*ks}:{f+4*ks+1}], v13 offset:{o}
                ds_read_b64_tr_b16 v[{f+4*ks+2}:{f+4*ks+3}], v13 offset:{o+512}""")
            a("s_waitcnt lgkmcnt(0)")
            for ks in range(2):
                a(f"v_mfma_f32_16x16x32_bf16 {vr(d,4)}, {vr(32+4*ks,4)}, {vr(f+4*ks,4)}, {'0' if ks == 0 else vr(d,4)}")
    a(f"""s_lshl_b32 s36, s33, 11
    s_add_u32 s36, s36, {WS_P1}
    s_nop 5""")
    for m in range(2):
        for tk in range(2):
            sel_by_g(a, 96 + m * 4 + tk * 2, 64 + m * 16 + tk, 4)
    two_flavours(a, lambda sc: a(f"""buffer_store_dwordx4 v[96:99], v10, s[24:27], s36 offen {sc}
    buffer_store_dwordx4 v[100:103], v10, s[24:27], s36 offen offset:1024 {sc}"""))
    stamp(a, 5)
    a(f"""s_barrier
    s_mul_i32 s36, s34, 20480
    s_add_u32 s36, s36, {WS_P1}""")
    stamp(a, 6)
    ld = "s_mov_b32 s37, s36\n" + "\n".join(f"""buffer_load_dwordx4 {vr(32+8*i,4)}, v10, s[24:27], s37 offen sc1
        buffer_load_dwordx4 {vr(36+8*i,4)}, v10, s[24:27], s37 offen offset:1024 sc1
        s_add_u32 s37, s37, 2048""" for i in range(10))
    poll(a, ld, [33 + 2 * i for i in range(40)])
    stamp(a, 7)
    for i in range(1, 10):
        for j in (0, 2, 4, 6):
            a(f"v_add_f32 v{32+j}, v{32+j}, v{32+8*i+j}")
    for tk in range(2):
        sigmoid(a, 14 + tk, f"v{32+2*tk}")
        a(f"v_mul_f32 v{14+tk}, v{14+tk}, v{32+2*tk}\nv_mul_f32 v{14+tk}, v{14+tk}, v{36+2*tk}")
    a(f"""v_cvt_pk_bf16_f32 v14, v14, v15
    v_lshl_add_u32 v6, v1, 1, v30
    ds_write_b16 v6, v14 offset:256
    ds_write_b16_d16_hi v6, v14 offset:384
    v_and_b32 v7, 1, v1
    v_lshl_add_u32 v7, v7, 7, v30
    v_lshl_add_u32 v7, v4, 4, v7
    s_waitcnt lgkmcnt(0)
    ds_read_b128 v[32:35], v7 offset:256
    ds_read_b128 v[36:39], v7 offset:320
    s_waitcnt lgkmcnt(0)""")
    for t in range(4):
        d = 64 + t * 4
        for ks in range(2):
            a(f"v_mfma_f32_16x16x32_bf16 {vr(d,4)}, {vr(32+4*ks,4)}, {vr(128+t*8+4*ks,4)}, {'0' if ks == 0 else vr(d,4)}")
    a(f"""s_lshl_b32 s36, s33, 10
    s_add_u32 s36, s36, {WS_P2}
    s_nop 5""")
    for tk in range(2):
        sel_by_g(a, 96 + tk * 2, 64 + tk, 4)
    a("buffer_store_dwordx4 v[96:99], v10, s[24:27], s36 offen sc1")
    stamp(a, 8)
    finish(a)


def main(out):
    a = Asm()
    head = f"""; gated mix of sliding-window attention and a top-2 routed FFN: one fused launch (written by a generator script)
; @launch grid=(256,1,1) block=(640,1,1) lds={LDS_BYTES}
.amdgcn_target "amdgcn-amd-amdhsa--gfx950"
.text
"""
    entry(a)
    loader(a)
    compute(a)
    stubs = attention(a)
    outproj(a)
    helper1(a)
    ffn(a)
    router(a)
    att_stubs(a, stubs)
    stamp_out(a)
    a("L_exit:\ns_endpgm\nL_code_end:")
    body = a.text().replace("s_mov_b32 s43, 0\n    s_waitcnt lgkmcnt(0)", "s_mov_b32 s43, 0\n    s_movk_i32 s45, 0x4000\n    s_waitcnt lgkmcnt(0)")
    bad = check_hazards(body)
    tail = f""".section .rodata,"a"
.p2align 6
.amdhsa_kernel {NAME}_kernel
  .amdhsa_next_free_vgpr 168
  .amdhsa_next_free_sgpr 96
  .amdhsa_accum_offset 168
  .amdhsa_group_segment_fixed_size 0
  .amdhsa_kernarg_size 96
  .amdhsa_user_sgpr_count 2
  .amdhsa_user_sgpr_kernarg_segment_ptr 1
  .amdhsa_system_sgpr_workgroup_id_x 1
.end_amdhsa_kernel
"""
    open(out, "w").write(head + body + tail)
    print("written", out, "hazards:", len(bad))


if __name__ == "__main__":
    main(sys.argv[1])
```

```python
import re


class Asm:
    def __init__(self):
        self.lines = []

    def __call__(self, s):
        for ln in s.split("\n"):
            t = ln.strip()
            if not t:
                continue
            if t.endswith(":") or t.startswith("."):
                self.lines.append(t)
            else:
                self.lines.append("    " + t)

    def text(self):
        return "\n".join(self.lines) + "\n"


def vr(a, n=1):
    return f"v{a}" if n == 1 else f"v[{a}:{a+n-1}]"


def sr(a, n=1):
    return f"s{a}" if n == 1 else f"s[{a}:{a+n-1}]"


_REG = re.compile(r"^(-|abs\()?\|?([vsa])(\d+|\[(\d+):(\d+)\])\|?\)?$")
TRANS = ("v_exp_f32", "v_log_f32", "v_rcp_f32", "v_rsq_f32", "v_sqrt_f32", "v_sin_f32", "v_cos_f32", "v_rcp_iflag_f32")


def _regs(op):
    op = op.strip()
    if op == "vcc":
        return {"vcc"}
    if op in ("exec", "m0"):
        return {op}
    m = _REG.match(op)
    if not m:
        return set()
    k = m.group(2)
    if m.group(4) is not None:
        return {f"{k}{i}" for i in range(int(m.group(4)), int(m.group(5)) + 1)}
    return {f"{k}{int(m.group(3))}"}


class Ins:
    def __init__(self, text, idx):
        self.text = text
        self.idx = idx
        t = text.split(";")[0].strip()
        parts = t.split(None, 1)
        self.op = parts[0]
        rest = parts[1] if len(parts) > 1 else ""
        ops = [o.strip() for o in re.split(r",(?![^\[]*\])", rest)] if rest else []
        self.mods = ""
        if ops:
            lp = ops[-1].split(None, 1)
            ops[-1] = lp[0]
            self.mods = lp[1] if len(lp) > 1 else ""
        self.ops = ops
        op = self.op
        base = re.sub(r"_(e32|e64|dpp|sdwa)$", "", op)
        self.base = base
        self.mfma = op.startswith("v_mfma")
        self.valu = op.startswith("v_") and not self.mfma
        self.trans = base in TRANS
        self.dpp = op.endswith("_dpp") or "row_" in self.mods or "quad_perm" in self.mods
        self.vmem = op.startswith(("buffer_", "global_", "flat_"))
        self.ds = op.startswith("ds_")
        self.salu = op.startswith("s_")
        self.ldsdma = self.vmem and (" lds" in " " + self.mods or "_lds_" in op)
        R = [_regs(o) for o in ops]
        w, r = set(), set()
        self.C = set()
        self.AB = set()
        self.passes = 0
        self.storedata = set()
        if self.mfma:
            w = R[0]
            self.AB = R[1] | R[2]
            self.C = R[3]
            r = self.AB | self.C
            self.passes = 8 if "32x32" in op else 4
        elif self.valu:
            if base in ("v_permlane32_swap_b32", "v_permlane16_swap_b32", "v_swap_b32"):
                w = R[0] | R[1]
                r = R[0] | R[1]
            elif base.startswith(("v_add_co", "v_sub_co", "v_addc_co", "v_subb_co", "v_subrev_co", "v_div_scale", "v_mad_u64")):
                w = R[0] | R[1]
                r = set().union(*R[2:])
            elif base == "v_nop":
                pass
            else:
                w = R[0]
                r = set().union(*R[1:]) if len(R) > 1 else set()
                if base.startswith(("v_fmac", "v_dot2c", "v_pk_fmac", "v_writelane")) or self.dpp or "UNUSED_PRESERVE" in self.mods:
                    r |= R[0]
                if base.startswith("v_cmpx"):
                    w |= {"exec"}
        elif self.vmem:
            if op in ("buffer_wbl2", "buffer_inv"):
                pass
            elif self.ldsdma:
                r = set().union(*R) | {"m0"}
            elif "load" in op:
                w = R[0]
                r = set().union(*R[1:])
            elif op.startswith("buffer_"):
                r = set().union(*R)
                if "x3" in op or "x4" in op:
                    self.storedata = R[0]
                if "atomic" in op and "sc0" in self.mods:
                    w = R[0]
            else:
                r = set().union(*R)
                if "x3" in op or "x4" in op:
                    self.storedata = R[1]
        elif self.ds:
            if "read" in op or "permute" in op or "swizzle" in op or "_rtn" in op:
                w = R[0]
                r = set().union(*R[1:])
            else:
                r = set().union(*R)
        elif self.salu:
            if op.startswith(("s_cmp", "s_bitcmp", "s_cbranch", "s_branch", "s_waitcnt", "s_nop", "s_barrier", "s_endpgm", "s_setprio", "s_sleep", "s_setpc")):
                r = set().union(*R) if R else set()
            else:
                w = R[0] if R else set()
                r = set().union(*R[1:]) if len(R) > 1 else set()
                if "saveexec" in op:
                    w |= {"exec"}
        self.w, self.r = w, r
        self.states = 1
        if op == "s_nop":
            self.states = int(ops[0], 0) + 1


def _need(p, c):
    n = 0
    pv = {x for x in p.w if x[0] in "va" and x != "vcc"}
    ps = {x for x in p.w if x[0] == "s" or x == "vcc"}
    if p.valu:
        if c.mfma and pv & c.r:
            n = max(n, 2)
        if p.trans and c.valu and not c.trans and pv & c.r:
            n = max(n, 1)
        if c.valu and ps & c.r:
            n = max(n, 4 if c.base in ("v_readlane_b32", "v_writelane_b32") else 2)
        if c.vmem and ps & c.r:
            n = max(n, 5)
        if c.base in ("v_readlane_b32", "v_readfirstlane_b32") and pv & c.r:
            n = max(n, 1)
        if c.valu and c.dpp and pv & c.r:
            n = max(n, 2)
        if c.base.startswith("v_permlane") and pv & c.r:
            n = max(n, 2)
        if "exec" in p.w:
            if c.mfma or c.base.startswith(("v_readlane", "v_readfirstlane", "v_writelane", "v_permlane")):
                n = max(n, 4)
            if c.dpp:
                n = max(n, 5)
        if ("sdwa" in p.op and "dst_sel:DWORD" not in p.mods) and c.valu and pv & (c.r | c.w):
            n = max(n, 1)
        if p.base.startswith("v_dot") and (c.valu or c.mfma) and pv & (c.r | c.w) and c.base != p.base:
            n = max(n, 3)
    if p.mfma:
        big = p.passes == 8
        if c.mfma:
            if p.w & c.AB:
                n = max(n, 12 if big else 8)
            if p.w & c.C and not (p.w == c.C and p.passes == c.passes):
                n = max(n, 10 if big else 6)
            if p.w & c.w and not (p.w == c.C):
                n = max(n, 0)
        elif c.valu:
            if p.w & (c.r | c.w):
                n = max(n, 12 if big else 8)
            if p.C & c.w:
                n = max(n, 7 if big else 3)
        elif c.vmem or c.ds:
            if p.w & (c.r | c.w):
                n = max(n, 12 if big else 8)
    if p.salu and "m0" in p.w and "m0" in c.r:
        n = max(n, 1)
    if p.storedata:
        if c.valu and p.storedata & c.w:
            n = max(n, 2)
        elif p.storedata & c.w:
            n = max(n, 1)
    return n


def check_hazards(text, verbose=True):
    ins, labels = [], {}
    for ln in text.split("\n"):
        t = ln.split(";")[0].strip()
        if not t or t.startswith("."):
            continue
        if t.endswith(":"):
            labels[t[:-1]] = len(ins)
            continue
        ins.append(Ins(t, len(ins)))
    bad = []

    def succ(i):
        x = ins[i]
        if x.op == "s_endpgm" or x.op.startswith("s_setpc"):
            return []
        if x.op == "s_branch":
            return [labels[x.ops[0]]]
        if x.op.startswith("s_cbranch"):
            return [i + 1, labels[x.ops[0]]]
        return [i + 1]

    for p in ins:
        if not (p.valu or p.mfma or p.storedata or (p.salu and "m0" in p.w)):
            continue
        horizon = 12 if p.mfma else 5
        stack = [(j, 0) for j in succ(p.idx)]
        seen = {}
        while stack:
            j, d = stack.pop()
            if j >= len(ins) or d >= horizon:
                continue
            if j in seen and seen[j] <= d:
                continue
            seen[j] = d
            c = ins[j]
            n = _need(p, c)
            if n > d:
                bad.append((p.idx, j, n, d, p.text, c.text))
            for k in succ(j):
                stack.append((k, d + c.states))
    if verbose:
        for b in bad:
            print(f"HAZARD need {b[2]} have {b[3]}:\n    [{b[0]}] {b[4]}\n    [{b[1]}] {b[5]}")
    return bad


import subprocess, os, tempfile

_PROMOTE = ("v_exp_f32", "v_mul_f32", "v_add_f32", "v_sub_f32", "v_mov_b32", "v_add_u32", "v_and_b32", "v_or_b32", "v_xor_b32",
            "v_lshlrev_b32", "v_lshrrev_b32", "v_rcp_f32", "v_max_f32", "v_sub_u32", "v_max_u32", "v_mul_u32_u24")


def _sizes(text):
    d = tempfile.mkdtemp()
    src = os.path.join(d, "a.s")
    open(src, "w").write('.amdgcn_target "amdgcn-amd-amdhsa--gfx950"\n.text\n' + text)
    r = subprocess.run(["clang", "-x", "assembler", "-target", "amdgcn-amd-amdhsa", "-mcpu=gfx950", "-c", src, "-o", src + ".o"], capture_output=True, text=True)
    assert r.returncode == 0, r.stderr[:2000]
    o = subprocess.run(["llvm-objdump", "-d", "--mcpu=gfx950", src + ".o"], capture_output=True, text=True).stdout
    res = []
    for ln in o.split("\n"):
        m = re.search(r"// ([0-9A-F]{12}): ((?:[0-9A-F]{8} ?)+)", ln)
        if m:
            res.append((int(m.group(1), 16), 4 * len(m.group(2).split())))
    return res


def align_fix(text, hot, verbose=True):
    lines = text.split("\n")
    idx = [i for i, l in enumerate(lines) if l.startswith("    ")]
    sz = [s for _, s in _sizes(text)]
    assert len(sz) == len(idx), (len(sz), len(idx))
    size = dict(zip(idx, sz))
    inhot = set()
    for a, b in hot:
        ia, ib = lines.index(a + ":"), lines.index(b + ":")
        inhot |= set(range(ia, ib))
    out, pos, nfix, nnop = [], 0, 0, 0
    window = []
    for i, l in enumerate(lines):
        if i not in size:
            out.append(l)
            continue
        s = size[i]
        if i in inhot and s >= 8 and pos % 32 == 28:
            done = False
            for k in range(len(window) - 1, -1, -1):
                j, sj = window[k]
                op = out[j].split()[0]
                if sj == 4 and op in _PROMOTE:
                    out[j] = out[j].replace(op, op + "_e64", 1)
                    done = True
                    nfix += 1
                    break
            if not done:
                out.append("    s_nop 0")
                nnop += 1
            pos += 4
            window = []
        if pos % 32 == 0:
            window = []
        window.append((len(out), s))
        out.append(l)
        pos += s
        if (pos - s) // 32 != (pos - 1) // 32:
            window = []
    if verbose:
        print(f"align: widened {nfix}, nops {nnop}, size {pos}")
    return "\n".join(out)
```

```python
import sys, struct
from asmlib import Asm, vr, sr, check_hazards, align_fix

NAME = "gated_mix__sliding_block__moe_arch_mod__prompt"
def f32(x): return "0x%08x" % struct.unpack("<I", struct.pack("<f", x))[0]
LOG2E = 1.4426950408889634
QSCALE = (20 ** -0.5) * LOG2E

OPT = dict(stamp=0, dual=0, pre=0, xnt="", fnt="", rot=1, b11=0, wpf=0, rnt="", worot=1, p1at=2, nl0=8, al=1, pf=1, xpf=0, swap=0, prio=1, osc="", forceimp=0, forcefb=0, probe="")
for _a in sys.argv[2:]:
    k, v = _a.split("=")
    OPT[k] = int(v) if v.lstrip("-").isdigit() else v

WS_L, WS_R = 0, 0x800000
WS_G, WS_CAND, WS_XID, WS_FL, WS_FR, WS_FO = 0x1000000, 0x1010000, 0x1020000, 0x1030000, 0x1040000, 0x1050000
WS_P1, WS_P2, WS_EP, WS_ST, WS_END = 0x1060000, 0x10E0000, 0x1120000, 0x1200000, 0x1300000
XB = 240 * 4096
CS = 8192 + 64
L_K, L_V = 0, 3 * CS + 64
L_WO = 49664
L_ONES = L_WO + 102400 + 192
L_MISC = L_ONES + 5120 + 64
L_H, L_Y = L_MISC + 256, L_MISC + 512
LDS_BYTES = 163840
L_RW = 49152
L_FW = L_WO + 13 * 5120
L_XT = L_FW + 24576
L_WV = L_FW
M_PURE, M_HALO, M_TOP = L_MISC, L_MISC + 4, L_MISC + 16
O_WO, O_FD, O_ATT, O_Y, O_R = 8, 12, 32, 36, 40
assert L_V % 256 == 0 and L_ONES % 256 == 192 and L_XT + 10240 <= L_WO + 102400 and L_Y + 1920 <= LDS_BYTES
SPIN = 0x8000

WAVE, XCD, LOC, RBL, CT, TAG, PURE = 28, 29, 30, 31, 32, 60, 61
SX, SW, SS, SA, SB = 16, 20, 24, 52, 56


def srd(a, d, p, n):
    a(f"""s_mov_b32 s{d}, s{p}
    s_mov_b32 s{d+1}, s{p+1}
    s_mov_b32 s{d+2}, {n}
    s_mov_b32 s{d+3}, 0x20000""")


def stamp(a, i):
    if OPT["probe"]:
        if str(i) in OPT["probe"].split("_"):
            a(f"s_memrealtime s[{62+2*i}:{63+2*i}]\ns_waitcnt lgkmcnt(0)")
        return
    if OPT["stamp"]:
        if i == 0:
            a("s_memrealtime s[94:95]")
            for j in range(1, 15):
                a(f"s_mov_b32 s{62+2*j}, 0")
        a(f"{'s_memtime' if OPT['stamp'] == 1 else 's_memrealtime'} s[{62+2*i}:{63+2*i}]\ns_waitcnt lgkmcnt(0)")


def finish(a):
    if OPT["stamp"]:
        a("s_branch L_stampout")
    else:
        a("s_endpgm")


def stamp_out(a):
    if OPT["stamp"]:
        n = 14
        a(f"""L_stampout:
        s_waitcnt vmcnt(0)
        {'s_memtime' if OPT['stamp'] == 1 else 's_memrealtime'} s[{62+2*n}:{63+2*n}]
        s_memrealtime s[92:93]
        s_waitcnt lgkmcnt(0)
        s_lshl_b32 s3, s2, 4
        s_add_u32 s3, s3, s{WAVE}
        s_lshl_b32 s3, s3, 7
        s_add_u32 s3, s3, {WS_ST}
        s_mov_b64 exec, 1
        v_mov_b32 v0, 0""")
        for i in range(n + 1):
            a(f"v_mov_b32 v1, s{62+2*i}\nbuffer_store_dword v1, v0, s[24:27], s3 offen offset:{4*i}")
        for i in range(2, 10):
            a(f"v_readlane_b32 s4, v166, {i}\ns_nop 1\nv_mov_b32 v1, s4\nbuffer_store_dword v1, v0, s[24:27], s3 offen offset:{64+4*(i-2)}")
        a("v_mov_b32 v1, s94\nbuffer_store_dword v1, v0, s[24:27], s3 offen offset:120")
        a("v_mov_b32 v1, s92\nbuffer_store_dword v1, v0, s[24:27], s3 offen offset:124")
        a("s_endpgm")


def wave_max_u32(a, v, sdst):
    for m in ("row_shr:1 row_mask:0xf bank_mask:0xf bound_ctrl:1", "row_shr:2 row_mask:0xf bank_mask:0xf bound_ctrl:1",
              "row_shr:4 row_mask:0xf bank_mask:0xf bound_ctrl:1", "row_shr:8 row_mask:0xf bank_mask:0xf bound_ctrl:1",
              "row_bcast:15 row_mask:0xa bank_mask:0xf", "row_bcast:31 row_mask:0xc bank_mask:0xf"):
        a(f"s_nop 1\nv_max_u32_dpp v{v}, v{v}, v{v} {m}")
    a(f"s_nop 0\nv_readlane_b32 s{sdst}, v{v}, 63")


def top2(a, k1, k2, t, s1, s2, sm):
    a(f"v_max_u32 v{t}, v{k1}, v{k2}")
    wave_max_u32(a, t, s1)
    a(f"""s_nop 1
    v_cmp_ne_u32 s[{sm}:{sm+1}], s{s1}, v{k1}
    s_nop 1
    v_cndmask_b32_e64 v{k1}, 0, v{k1}, s[{sm}:{sm+1}]
    v_cmp_ne_u32 s[{sm}:{sm+1}], s{s1}, v{k2}
    s_nop 1
    v_cndmask_b32_e64 v{k2}, 0, v{k2}, s[{sm}:{sm+1}]
    v_max_u32 v{t}, v{k1}, v{k2}""")
    wave_max_u32(a, t, s2)


def key_decode(a, sk, stok, sval, st):
    a(f"""s_and_b32 s{stok}, s{sk}, 0xffff
    s_sub_u32 s{stok}, 0xffff, s{stok}
    s_and_b32 s{stok}, s{stok}, 0x7ff
    s_ashr_i32 s{st}, s{sk}, 31
    s_not_b32 s{st}, s{st}
    s_or_b32 s{st}, s{st}, 0x80000000
    s_xor_b32 s{sval}, s{sk}, s{st}
    s_and_b32 s{sval}, s{sval}, 0xffff0000""")


def sigmoid(a, d, s):
    a(f"""v_mul_f32 v{d}, {f32(-LOG2E)}, {s}
    v_exp_f32 v{d}, v{d}
    s_nop 0
    v_add_f32 v{d}, 1.0, v{d}
    v_rcp_f32 v{d}, v{d}
    s_nop 0""")


def epoch_load(a):
    a(f"""s_add_u32 s14, s12, {WS_EP}
    s_addc_u32 s15, s13, 0
    s_load_dword s{TAG}, s[14:15], 0""")


def epoch_fin(a):
    a(f"s_waitcnt lgkmcnt(0)\ns_add_u32 s{TAG}, s{TAG}, 0x9e3779b9")


_uid = [0]
def uid(p):
    _uid[0] += 1
    return f"L_{p}{_uid[0]}"


def poll(a, load, tagregs, mask=None, tmp=9, pre=False):
    lp, out = uid("poll"), uid("pout")
    a(f"s_mov_b32 s50, {SPIN}")
    if pre:
        a(f"s_branch {lp}p")
    a(f"{lp}:")
    a(load)
    if pre:
        a(f"{lp}p:")
    a(f"""s_sub_u32 s50, s50, 1
    s_cbranch_scc1 {out}
    s_waitcnt vmcnt(0)""")
    if len(tagregs) == 1:
        a(f"v_cmp_ne_u32 vcc, s{TAG}, v{tagregs[0]}")
    else:
        a(f"v_xor_b32 v{tmp}, s{TAG}, v{tagregs[0]}")
        for r in tagregs[1:]:
            a(f"v_xor_b32 v{tmp-1}, s{TAG}, v{r}\nv_or_b32 v{tmp}, v{tmp}, v{tmp-1}")
        a(f"v_cmp_ne_u32 vcc, 0, v{tmp}")
    if mask:
        a(f"s_and_b64 vcc, vcc, {mask}")
    a(f"s_cbranch_vccnz {lp}\n{out}:\ns_waitcnt vmcnt(0)")


def lds_wait(a, off, val, vt=9, pre=False):
    lp, out = uid("lw"), uid("lo")
    a(f"s_mov_b32 s50, {SPIN*8}")
    if pre:
        a(f"s_branch {lp}p")
    a(f"""{lp}:
    ds_read_b32 v{vt}, v30 offset:{off}""")
    if pre:
        a(f"{lp}p:")
    a(f"""s_sub_u32 s50, s50, 1
    s_cbranch_scc1 {out}
    s_waitcnt lgkmcnt(0)
    v_cmp_ne_u32 vcc, {val}, v{vt}
    s_cbranch_vccnz {lp}
    {out}:""")


def lds_add(a, off, vt=9):
    a(f"""v_mov_b32 v{vt}, 1
    s_mov_b64 exec, 1
    ds_add_u32 v30, v{vt} offset:{off}
    s_mov_b64 exec, -1""")


def flag_store(a, soff, local, vt=8):
    a(f"""v_mov_b32 v{vt}, s{TAG}
    v_mov_b32 v{vt+1}, 0
    s_mov_b64 exec, 1""")
    if local:
        l1, l2 = uid("fs"), uid("fe")
        a(f"""s_cmp_eq_u32 s{PURE}, 0
        s_cbranch_scc1 {l1}
        buffer_store_dword v{vt}, v{vt+1}, s[24:27], s{soff} offen
        s_branch {l2}
        {l1}:
        buffer_store_dword v{vt}, v{vt+1}, s[24:27], s{soff} offen sc1
        {l2}:""")
    else:
        a(f"buffer_store_dword v{vt}, v{vt+1}, s[24:27], s{soff} offen sc1")
    a("s_mov_b64 exec, -1")


def two_flavours(a, body):
    l1, l2 = uid("imp"), uid("ime")
    a(f"s_cmp_eq_u32 s{PURE}, 0\ns_cbranch_scc1 {l1}")
    body("")
    a(f"s_branch {l2}\n{l1}:")
    body("sc1")
    a(f"{l2}:")


def router_loader(a):
    a("""L_rld:
    s_load_dwordx2 s[8:9], s[0:1], 16
    s_add_u32 s41, s40, 98304
    s_branch L_rld_issue
    L_rld_loop:
    s_waitcnt vmcnt(12) lgkmcnt(0)
    s_barrier
    L_rld_issue:
    s_lshl_b32 s36, s33, 7
    s_add_u32 s36, s36, s34""")
    for n in range(4):
        a(f"""s_add_u32 m0, s40, {n*4096}
        s_add_u32 s38, s36, {n*40960}
        buffer_load_dwordx4 v10, s[16:19], s38 offen {OPT['rnt']} lds""")
    kc_next(a, 33)
    a("""s_add_u32 s40, s40, 16384
    s_cmp_eq_u32 s40, s41
    s_cselect_b32 s36, 98304, 0
    s_sub_u32 s40, s40, s36
    s_add_u32 s42, s42, 1
    s_cmp_lt_u32 s42, 4
    s_cbranch_scc1 L_rld_issue
    s_cmp_lt_u32 s42, 10
    s_cbranch_scc1 L_rld_loop""")
    srd(a, SS, 12, WS_END)
    srd(a, SW, 8, 819200)
    a(f"""s_add_u32 s{TAG}, s{TAG}, 0x9e3779b9
    v_mov_b32 v30, {M_PURE}""")
    for n in (12, 8, 4, 0):
        a(f"s_waitcnt vmcnt({n})\ns_barrier")
    a("s_barrier")
    if OPT["wpf"]:
        N = OPT["wpf"]
        lds_wait(a, O_R, 4)
        a(f"""v_lshlrev_b32 v5, 7, v1
        s_lshl_b32 s36, s{RBL}, 2
        s_add_u32 s36, s36, s{WAVE}
        s_sub_u32 s36, s36, 4
        s_lshl_b32 s36, s36, 13
        s_cmp_ge_u32 s{XCD}, {N}
        s_cselect_b32 s37, 0, s{XCD}
        s_mov_b32 s42, 0
        L_wpf:
        s_lshl_b32 s38, s37, 16
        s_add_u32 s38, s38, s36
        buffer_load_dword v167, v5, s[20:23], s38 offen
        s_add_u32 s37, s37, 1
        s_cmp_eq_u32 s37, {N}
        s_cselect_b32 s37, 0, s37
        s_add_u32 s42, s42, 1
        s_cmp_lt_u32 s42, {N}
        s_cbranch_scc1 L_wpf""")
    a("s_branch L_att_setup")


def kc_init(a):
    def nib(o):
        v = sum(x << (4 * i) for i, x in enumerate(o))
        return v & 0xffffffff, v >> 32
    n0, n1, n2 = nib(range(10)), nib([1, 0, 3, 2, 5, 4, 7, 6, 9, 8]), nib([0, 2, 1, 4, 3, 6, 5, 8, 7, 9])
    a(f"s_mov_b32 s46, {n0[0]:#x}\ns_movk_i32 s47, {n0[1]:#x}")
    if OPT["swap"]:
        a(f"""s_and_b32 s36, s{LOC}, {3 if OPT["swap"] == 1 else 1}
        s_cmp_eq_u32 s36, 1
        s_cselect_b32 s46, {n1[0]:#x}, s46
        s_cselect_b32 s47, {n1[1]:#x}, s47
        s_cmp_eq_u32 s36, 3
        s_cselect_b32 s46, {n2[0]:#x}, s46
        s_cselect_b32 s47, {n2[1]:#x}, s47""")
    n3 = nib([2, 3, 4, 5, 6, 7, 8, 9, 0, 1])
    a(f"""s_cmp_eq_u32 s{CT}, 15
    s_cselect_b32 s46, {n3[0]:#x}, s46
    s_cselect_b32 s47, {n3[1]:#x}, s47""")


def kc_next(a, d):
    a(f"""s_and_b32 s{d}, s46, 15
    s_lshr_b64 s[46:47], s[46:47], 4""")
    if OPT["rot"]:
        a(f"""s_add_u32 s{d}, s{d}, s{XCD}
        s_sub_u32 s36, s{d}, 10
        s_cselect_b32 s{d}, s{d}, s36""")


def entry(a):
    a(f""".globl {NAME}_kernel
    .p2align 8
    .type {NAME}_kernel,@function
    {NAME}_kernel:""")
    a("""s_cmp_ge_u32 s2, 256
    s_cbranch_scc1 L_exit""")
    stamp(a, 0)
    a(f"""s_load_dwordx4 s[4:7], s[0:1], 0
    s_load_dwordx2 s[12:13], s[0:1], 88
    v_lshrrev_b32 v2, 6, v0
    v_and_b32 v1, 63, v0
    v_readfirstlane_b32 s{WAVE}, v2
    s_and_b32 s{XCD}, s2, 7
    s_lshr_b32 s{LOC}, s2, 3
    s_and_b32 s{RBL}, s{LOC}, 1
    s_lshr_b32 s{CT}, s{LOC}, 1
    v_lshrrev_b32 v4, 4, v1""")
    if OPT["pf"]:
        a(f"""s_cmp_lg_u32 s{WAVE}, 0
        s_cbranch_scc1 L_nopf
        s_getpc_b64 s[36:37]
        L_pc:
        s_and_b32 s38, s{LOC}, 3
        s_mul_i32 s38, s38, 5120
        v_min_u32 v5, 39, v1
        v_lshl_add_u32 v5, v5, 7, s38
        v_min_u32 v5, L_code_end-L_pc-4, v5
        global_load_dword v167, v5, s[36:37]
        L_nopf:""")
    a(f"""s_cmp_lt_u32 s{WAVE}, 4
    s_cbranch_scc1 L_compute
    s_cmp_ge_u32 s{WAVE}, 8
    s_cbranch_scc1 L_help""")


def loader(a):
    a(f"""v_and_b32 v2, 3, v2
    v_lshrrev_b32 v3, 3, v1
    v_lshl_add_u32 v3, v2, 3, v3
    v_mul_u32_u24 v3, 1280, v3
    v_lshl_add_u32 v5, v2, 2, v4
    v_xor_b32 v6, v5, v1
    v_and_b32 v6, 7, v6
    v_lshl_add_u32 v10, v6, 4, v3
    v_mul_u32_u24 v5, 3840, v5
    v_lshrrev_b32 v6, 1, v2
    v_lshl_add_u32 v6, v6, 2, v4
    v_lshlrev_b32 v6, 1, v6
    v_xor_b32 v6, v6, v1
    v_and_b32 v6, 15, v6
    v_lshl_add_u32 v11, v6, 4, v5
    s_lshl_b32 s34, s{XCD}, 1
    s_add_u32 s34, s34, s{RBL}
    s_mul_i32 s34, s34, 128*1280
    s_lshl_b32 s35, s{CT}, 8
    s_and_b32 s40, s{WAVE}, 3
    s_lshl_b32 s40, s40, 10
    s_add_u32 s41, s40, 49152
    s_mov_b32 s42, 0
    s_mov_b32 s18, 2621440
    s_mov_b32 s19, 0x20000
    s_mov_b32 s22, 2457600
    s_mov_b32 s23, 0x20000""")
    kc_init(a)
    kc_next(a, 33)
    if OPT["xpf"]:
        a(f"""v_lshrrev_b32 v5, 3, v1
        s_lshl_b32 s36, s{CT}, 3
        v_add_u32 v5, s36, v5
        v_mul_u32_u24 v5, 1280, v5
        v_and_b32 v6, 7, v1
        v_add3_u32 v6, v6, {"s%d" % XCD if OPT["rot"] else 0}, 2
        v_subrev_u32 v7, 10, v6
        v_min_u32 v6, v6, v7
        v_lshl_add_u32 v12, v6, 7, v5""")
    a("""s_waitcnt lgkmcnt(0)
    s_mov_b32 s16, s4
    s_mov_b32 s17, s5
    s_mov_b32 s20, s6
    s_mov_b32 s21, s7""")
    epoch_load(a)
    stamp(a, 1)
    a(f"""s_cmp_eq_u32 s{CT}, 15
    s_cbranch_scc1 L_rld
    s_branch L_ld_issue
    L_ld_loop:
    s_waitcnt vmcnt(8) lgkmcnt(0)
    s_barrier""")
    if OPT["stamp"]:
        a("""s_memrealtime s[44:45]
        s_waitcnt lgkmcnt(0)
        s_mov_b32 m0, s42
        s_nop 0
        v_writelane_b32 v166, s44, m0""")
    a("""L_ld_issue:
    s_lshl_b32 s36, s33, 7
    s_add_u32 s36, s36, s34
    s_mul_i32 s37, s33, 245760
    s_add_u32 s37, s37, s35""")
    for n in range(4):
        a(f"""s_add_u32 m0, s40, {n*4096}
        s_add_u32 s38, s36, {n*40960}
        buffer_load_dwordx4 v10, s[16:19], s38 offen {OPT['xnt']} lds
        s_add_u32 m0, s40, {L_RW+n*4096}
        s_add_u32 s39, s37, {n*61440}
        buffer_load_dwordx4 v11, s[20:23], s39 offen lds""")
    kc_next(a, 33)
    if OPT["xpf"]:
        a(f"""s_add_u32 s36, s42, s{WAVE}
        s_cmp_lg_u32 s36, 4
        s_cbranch_scc1 L_noxpf
        buffer_load_dword v167, v12, s[16:19], s34 offen {OPT['xnt']}
        L_noxpf:""")
    a("""s_add_u32 s40, s40, 16384
    s_cmp_eq_u32 s40, s41
    s_cselect_b32 s36, 49152, 0
    s_sub_u32 s40, s40, s36
    s_add_u32 s42, s42, 1
    s_cmp_lt_u32 s42, 2
    s_cbranch_scc1 L_ld_issue
    s_cmp_lt_u32 s42, 10
    s_cbranch_scc1 L_ld_loop""")
    srd(a, SS, 12, WS_END)
    a(f"s_add_u32 s{TAG}, s{TAG}, 0x9e3779b9")
    pre = 0
    a(f"""s_waitcnt vmcnt({8+pre})
    s_barrier""")
    stamp(a, 2)
    a(f"""s_waitcnt vmcnt({pre})
    s_barrier""")
    stamp(a, 3)
    a("s_barrier")
    stamp(a, 4)
    if OPT["b11"]:
        a("s_barrier")
    a("s_branch L_att_setup")


ACC, F0, F1 = 32, 96, 128
def compute(a):
    a("L_compute:")
    a(f"""v_and_b32 v3, 15, v1
    s_and_b32 s36, s{WAVE}, 1          ; wc
    s_lshr_b32 s37, s{WAVE}, 1         ; wt
    s_lshl_b32 s38, s37, 13
    s_lshl_b32 s39, s{WAVE}, 12
    s_cmp_eq_u32 s{CT}, 15
    s_cselect_b32 s38, s39, s38
    v_lshrrev_b32 v5, 1, v3
    v_xor_b32 v5, v5, v4
    v_lshlrev_b32 v5, 4, v5
    v_lshl_add_u32 v12, v3, 7, v5
    v_add_u32 v12, s38, v12
    v_xor_b32 v13, 64, v12
    v_bfe_u32 v5, v1, 2, 2             ; r
    v_lshl_add_u32 v6, v4, 3, v5
    v_lshlrev_b32 v6, 8, v6
    v_and_b32 v7, 1, v4
    v_lshl_add_u32 v5, v7, 2, v5
    v_lshlrev_b32 v5, 1, v5            ; f(row)
    v_and_b32 v7, 3, v1
    s_lshl_b32 s39, s36, 3
    v_add_u32 v7, s39, v7
    v_xor_b32 v5, v5, v7
    v_lshl_add_u32 v6, v5, 4, v6
    v_bfe_u32 v5, v1, 1, 1
    v_lshl_add_u32 v6, v5, 3, v6
    v_add_u32 v14, {L_RW}, v6
    v_xor_b32 v15, 8, v14
    v_xor_b32 v16, 64, v14
    v_xor_b32 v17, 0x48, v14
    v_lshlrev_b32 v18, 4, v3
    v_lshl_add_u32 v18, v4, 12, v18
    v_mov_b32 v19, {M_PURE}
    s_mul_i32 s34, s{XCD}, {XB}
    s_lshl_b32 s39, s{CT}, 16
    s_add_u32 s34, s34, s39
    s_lshl_b32 s39, s36, 15
    s_add_u32 s34, s34, s39
    s_lshl_b32 s39, s{RBL}, 11
    s_add_u32 s34, s34, s39
    s_lshl_b32 s39, s37, 10
    s_add_u32 s34, s34, s39
    s_add_u32 s35, s34, 16384
    s_mov_b32 s42, 0
    s_mov_b32 s43, 0
    s_waitcnt lgkmcnt(0)""")
    epoch_load(a)
    srd(a, SS, 12, WS_END)
    for i in range(64):
        a(f"v_mov_b32 v{ACC+i}, 0")
    epoch_fin(a)
    stamp(a, 1)
    a(f"s_cmp_eq_u32 s{CT}, 15\ns_cbranch_scc1 L_router")

    def reads(ks, F):
        r = []
        def A(j):
            r.append(f"ds_read_b64_tr_b16 v[{F+4*j}:{F+4*j+1}], v{14+j} offset:{ks*8192}")
            r.append(f"ds_read_b64_tr_b16 v[{F+4*j+2}:{F+4*j+3}], v{14+j} offset:{ks*8192+1024}")
        A(0)
        for t in range(4):
            r.append(f"ds_read_b128 {vr(F+16+4*t,4)}, v{12+ks} offset:{t*2048}")
        A(1); A(2); A(3)
        return r

    def phase(F, rd, bar, extra):
        a("s_waitcnt lgkmcnt(6)")
        n = 0
        for j in range(4):
            if j == 1:
                a("s_waitcnt lgkmcnt(0)")
                if bar:
                    a("s_barrier")
            for t in range(4):
                d = ACC + (j * 4 + t) * 4
                a(f"v_mfma_f32_16x16x32_bf16 {vr(d,4)}, {vr(F+4*j,4)}, {vr(F+16+4*t,4)}, {vr(d,4)}")
                if j == 0:
                    a(extra[t])
                else:
                    a(rd[n]); n += 1

    a("s_barrier")
    stamp(a, 2)
    for l in reads(0, F0):
        a(l)
    a("L_g_loop:")
    phase(F0, reads(1, F1), False, ["""s_add_u32 s43, s43, 1
        s_cmp_eq_u32 s43, 3""", "s_cselect_b32 s44, -32768, 16384" if False else """s_cselect_b32 s44, 0xffff8000, s45
        """, "s_cselect_b32 s43, 0, s43\ns_add_u32 s42, s42, 1", ""])
    phase(F1, reads(0, F0), True, ["v_add_u32 v12, s44, v12\nv_add_u32 v13, s44, v13", "v_add_u32 v14, s44, v14\nv_add_u32 v15, s44, v15",
                                   "v_add_u32 v16, s44, v16\nv_add_u32 v17, s44, v17", "s_cmp_lt_u32 s42, 10"])
    a("s_cbranch_scc1 L_g_loop\nL_g_end:")
    a(f"""ds_read_b32 v20, v19
    s_cmp_ge_u32 s{CT}, 5
    s_cbranch_scc1 L_noscale
    s_mov_b32 s38, {f32(QSCALE)}
    s_nop 2""")
    for i in range(64):
        a(f"v_mul_f32 v{ACC+i}, s38, v{ACC+i}")
    a(f"""L_noscale:
    s_waitcnt lgkmcnt(0)
    v_readfirstlane_b32 s{PURE}, v20""")
    stamp(a, 3)

    def epi(sc):
        for p in range(2):
            for t in range(4):
                o = F1 + (p * 4 + t) * 4
                for h in range(2):
                    d = ACC + ((2 * p + h) * 4 + t) * 4
                    a(f"v_cvt_pk_bf16_f32 v{o+2*h}, v{d}, v{d+1}\nv_cvt_pk_bf16_f32 v{o+2*h+1}, v{d+2}, v{d+3}")
                a(f"buffer_store_dwordx4 {vr(o,4)}, v18, s[24:27], s{34+p} offen offset:{t*256} {sc}")
    a("s_nop 1")
    if OPT["dual"]:
        two_flavours(a, epi)
        a(f"""s_cmp_lt_u32 s{CT}, 5
        s_cbranch_scc1 L_noremote
        s_cmp_eq_u32 s{XCD}, 7
        s_cbranch_scc1 L_noremote
        s_add_u32 s34, s34, {WS_R}
        s_add_u32 s35, s35, {WS_R}""")
        for p in range(2):
            for t in range(4):
                a(f"buffer_store_dwordx4 {vr(F1+(p*4+t)*4,4)}, v18, s[24:27], s{34+p} offen offset:{t*256} sc1")
        a("""s_waitcnt vmcnt(8)
        s_branch L_lflag
        L_noremote:
        s_waitcnt vmcnt(0)
        L_lflag:""")
    else:
        epi("sc1")
        if OPT["b11"]:
            a("s_barrier")
        a("s_waitcnt vmcnt(0)")
    a("L_pubflag:")
    stamp(a, 4)
    a(f"""s_lshl_b32 s36, s{XCD}, 5
    s_add_u32 s36, s36, s{LOC}
    s_lshl_b32 s36, s36, 2
    s_add_u32 s36, s36, s{WAVE}
    s_lshl_b32 s36, s36, 2
    s_add_u32 s36, s36, {WS_FL}""")
    flag_store(a, 36, True)
    if not OPT["dual"]:
        remote_flag(a)


def remote_flag(a):
    l = uid("nr")
    a(f"""s_cmp_lt_u32 s{CT}, 5
    s_cbranch_scc1 {l}
    s_lshl_b32 s36, s{XCD}, 5
    s_add_u32 s36, s36, s{LOC}
    s_lshl_b32 s36, s36, 5
    s_add_u32 s36, s36, s{WAVE}
    s_lshl_b32 s36, s36, 2
    s_add_u32 s36, s36, {WS_FR}""")
    flag_store(a, 36, False)
    a(f"{l}:")


def router(a):
    a("L_router:")
    kc_init(a)
    kc_next(a, 33)
    a(f"""v_and_b32 v5, 1, v1
    v_lshlrev_b32 v5, 11, v5
    v_lshl_add_u32 v14, v4, 4, v5
    v_add_u32 v14, {L_WV}, v14
    L_r_loop:
    s_barrier
    s_lshl_b32 s36, s33, 7
    v_add_u32 v15, s36, v14""")
    for ks in range(2):
        a(f"""ds_read_b128 {vr(F0+12*ks,4)}, v15 offset:{ks*64}
        ds_read_b128 {vr(F0+12*ks+4,4)}, v{12+ks}
        ds_read_b128 {vr(F0+12*ks+8,4)}, v{12+ks} offset:2048""")
    kc_next(a, 33)
    a("""s_add_u32 s43, s43, 1
    s_cmp_eq_u32 s43, 6
    s_cselect_b32 s44, 0xfffec000, s45
    s_cselect_b32 s43, 0, s43
    v_add_u32 v12, s44, v12
    v_add_u32 v13, s44, v13
    s_waitcnt lgkmcnt(0)""")
    for ks in range(2):
        for t in range(2):
            a(f"v_mfma_f32_16x16x32_bf16 {vr(ACC+4*t,4)}, {vr(F0+12*ks,4)}, {vr(F0+12*ks+4+4*t,4)}, {vr(ACC+4*t,4)}")
    a(f"""s_add_u32 s42, s42, 1
    s_cmp_lt_u32 s42, 10
    s_cbranch_scc1 L_r_loop
    s_barrier
    {"s_barrier" if OPT["b11"] else ""}
    s_mov_b32 s{PURE}, 0
    s_lshl_b32 s36, s{XCD}, 8
    s_lshl_b32 s37, s{RBL}, 7
    s_add_u32 s36, s36, s37
    s_lshl_b32 s37, s{WAVE}, 5
    s_add_u32 s36, s36, s37
    s_mov_b32 s37, {WS_G}""")
    stamp(a, 3)
    for t in range(2):
        a(f"""v_add3_u32 v20, s36, v3, {16*t}
        v_cvt_pk_bf16_f32 v{21+t}, v{ACC+4*t}, v{ACC+4*t+1}
        v_and_b32 v23, 0xffff0000, v{21+t}
        v_lshlrev_b32 v{21+t}, 16, v{21+t}""")
        sigmoid(a, 23, "v23")
        a(f"""v_cvt_pk_bf16_f32 v23, v23, v23
        v_and_b32 v{26+t}, 0xffff0000, v23
        v_lshlrev_b32 v24, 2, v20
        s_mov_b64 exec, 0xffff
        buffer_store_dword v{26+t}, v24, s[24:27], s37 offen sc1
        s_mov_b64 exec, -1
        v_ashrrev_i32 v24, 31, v{21+t}
        v_or_b32 v24, 0x80000000, v24
        v_xor_b32 v{21+t}, v{21+t}, v24
        v_and_b32 v{21+t}, 0xffff0000, v{21+t}
        v_sub_u32 v24, 0xffff, v20
        v_or_b32 v{21+t}, v{21+t}, v24""")
    top2(a, 21, 22, 25, 46, 47, 48)
    a(f"""s_lshr_b32 s36, s36, 1
    s_add_u32 s36, s36, {WS_CAND}
    v_mov_b32 v28, s46
    v_mov_b32 v29, s{TAG}
    v_mov_b32 v30, s47
    v_mov_b32 v31, s{TAG}
    v_mov_b32 v24, 0
    s_mov_b64 exec, 1
    buffer_store_dwordx4 v[28:31], v24, s[24:27], s36 offen sc1
    s_lshl_b32 s36, s{XCD}, 5
    s_add_u32 s36, s36, s{LOC}
    s_lshl_b32 s36, s36, 2
    s_add_u32 s36, s36, s{WAVE}
    s_lshl_b32 s36, s36, 2
    s_add_u32 s36, s36, {WS_FL}
    v_mov_b32 v9, 1
    s_waitcnt vmcnt(1)
    buffer_store_dword v29, v24, s[24:27], s36 offen sc1
    ds_add_u32 v19, v9 offset:{O_R}
    s_mov_b64 exec, -1""")
    stamp(a, 4)
    a("s_branch L_att_setup")


Q, QH, KH, K, V, P, S0, S1, O, M = 32, 36, 38, 40, 44, 52, 64, 80, 96, 112
KA, KHA, VA, QA, QHA, G, G2, XA, XR = 12, 13, 14, 15, 16, 17, 18, 19, 20
TT, NT, HI_ = 33, 34, 35
SQ, SQH = 46, 47


def diag_mask(a, old):
    a(f"""v_lshlrev_b32 v6, 2, v4
    v_sub_u32 v6, v3, v6
    v_mov_b32 v7, 0xff800000""")
    for r in range(0, 16, 2):
        k0, k1 = (r >> 2) * 8 + (r & 3), (r >> 2) * 8 + (r & 3) + 1
        a(f"""v_cmp_le_i32 s[44:45], {k0}, v6
        v_cmp_le_i32 s[48:49], {k1}, v6
        s_nop 0
        v_cndmask_b32_e64 v{S0+r}, v7, 0, s[44:45]
        v_cndmask_b32_e64 v{S0+r+1}, v7, 0, s[48:49]""")
        if old:
            a(f"""v_cndmask_b32_e64 v{M+r}, 0, v7, s[44:45]
            v_cndmask_b32_e64 v{M+r+1}, 0, v7, s[48:49]""")


def attention(a):
    SRC = WS_L
    a("L_att_setup:")
    a(f"""s_and_b32 s31, s{LOC}, 1
    s_mul_i32 s40, s{LOC}, 5
    s_lshr_b32 s40, s40, 1            ; c0
    s_sub_u32 s{TT}, 11, s{WAVE}
    s_cmp_lt_u32 s{WAVE}, 4
    s_cselect_b32 s{TT}, s{WAVE}, s{TT}
    s_add_u32 s36, s{TT}, 1
    s_cmp_eq_u32 s{XCD}, 0
    s_cselect_b32 s{NT}, s36, 9
    s_cselect_b32 s{HI_}, 99, s{TT}
    s_lshr_b32 s36, s{LOC}, 2
    s_xor_b32 s36, s36, s31
    s_andn2_b32 s41, 1, s36
    s_lshl_b32 s41, s41, 3
    s_xor_b32 s42, s31, 1
    s_lshl_b32 s42, s42, 1
    s_mul_i32 s36, s{XCD}, 240
    s_add_u32 s36, s36, s40
    s_lshl_b32 s43, s36, 12
    s_lshl_b32 s37, s{TT}, 9
    s_add_u32 s36, s43, s37
    s_lshl_b32 s38, s31, 12
    s_add_u32 s{SQ}, s36, s38
    s_lshl_b32 s38, s42, 12
    s_add_u32 s38, s38, s41
    s_add_u32 s{SQH}, s36, s38
    v_lshlrev_b32 v10, 4, v1
    v_and_b32 v3, 31, v1
    v_lshrrev_b32 v4, 5, v1
    v_lshlrev_b32 v5, 4, v3
    v_lshl_add_u32 v{QA}, v4, 12, v5
    v_lshl_add_u32 v{QHA}, v4, 28, v5
    s_mul_i32 s38, s31, {CS}
    s_add_u32 s38, s38, s37
    v_mul_u32_u24 v6, {CS}, v4
    v_add3_u32 v{KA}, v6, v5, s38
    s_mul_i32 s38, s42, {CS}
    s_add_u32 s38, s38, s41
    s_add_u32 s38, s38, s37
    v_add_u32 v6, s38, v5
    v_mov_b32 v9, {L_ONES}
    v_cmp_eq_u32 s[44:45], 0, v4
    v_bfe_u32 v7, v1, 4, 1
    v_and_b32 v8, 3, v1
    v_cndmask_b32_e64 v{KHA}, v9, v6, s[44:45]
    v_lshl_add_u32 v6, v7, 2, v8      ; gamma
    v_add_u32 v7, s31, v6
    v_lshrrev_b32 v8, 1, v7
    v_add_u32 v11, s40, v8
    v_lshrrev_b32 v11, 1, v11
    v_xor_b32 v7, v7, v11
    v_and_b32 v7, 1, v7
    v_mul_u32_u24 v8, {CS}, v8
    v_lshl_add_u32 v8, v7, 3, v8
    s_add_u32 s38, s37, {L_V}
    v_add_u32 v8, s38, v8
    v_cmp_gt_u32 s[44:45], 5, v6
    v_bfe_u32 v7, v1, 2, 2
    v_lshl_add_u32 v7, v4, 2, v7
    v_cndmask_b32_e64 v8, v9, v8, s[44:45]
    v_lshl_add_u32 v{VA}, v7, 4, v8""")
    diag_mask(a, True)
    a(f"""s_lshr_b32 s36, s{WAVE}, 2
    s_mul_i32 s37, s36, {L_V}
    s_add_u32 s36, s36, 1
    s_mul_i32 s36, s36, {80*4096}
    s_add_u32 s36, s36, s43
    s_and_b32 s38, s{WAVE}, 3
    s_mul_i32 s38, s38, 3
    v_and_b32 v5, 15, v1
    v_mul_u32_u24 v6, 160, v5
    v_lshrrev_b32 v7, 4, v1
    v_lshl_add_u32 v6, v7, 3, v6
    s_and_b32 s39, s{WAVE}, 3
    s_mul_i32 s44, s39, 2560
    v_add_u32 v{XA}, s44, v6
    s_and_b32 s44, s{LOC}, 3
    s_lshl_b32 s44, s44, 2
    s_add_u32 s44, s44, s39
    s_lshl_b32 s44, s44, 4
    s_lshl_b32 s45, s{XCD}, 8
    s_add_u32 s51, s44, s45
    s_lshl_b32 s39, s{TT}, 5
    s_add_u32 s39, s39, s45
    v_add_lshl_u32 v6, s39, v3, 2
    v_add_lshl_u32 v7, s51, v5, 2
    s_mov_b32 s39, {WS_G}
    v_add_u32 v11, {L_XT}, v{XA}
    s_barrier""")
    stamp(a, 5)
    for i in range(3):
        a(f"""s_add_u32 s44, s38, {i}
        s_lshr_b32 s45, s44, 2
        s_mul_i32 s45, s45, {CS-4096}
        s_lshl_b32 s44, s44, 10
        s_add_u32 s45, s45, s44
        s_add_u32 s45, s45, s37
        s_add_u32 m0, s45, 4096
        s_add_u32 s44, s44, s36
        buffer_load_dwordx4 v10, s[24:27], s44 offen sc1 lds""")
    a(f"""buffer_load_dwordx4 {vr(Q,4)}, v{QA}, s[24:27], s{SQ} offen sc1
    buffer_load_dwordx2 {vr(QH,2)}, v{QHA}, s[24:27], s{SQH} offen sc1
    buffer_load_dword v{G}, v6, s[24:27], s39 offen sc1
    buffer_load_dword v{G2}, v7, s[24:27], s39 offen sc1""")
    a("s_waitcnt vmcnt(0)")
    a(f"""v_mov_b32 v30, {M_PURE}
    s_mov_b32 s40, 0
    s_barrier""")
    stamp(a, 6)
    for t in range(5):
        a(f"ds_read_b64 {vr(XR+2*t,2)}, v11 offset:{t*32}")
    lds_add(a, O_FD)
    off = lambda i: (8 - i) * 512
    rdK = lambda i: f"ds_read_b128 {vr(K,4)}, v{KA} offset:{off(i)}"
    rdKH = lambda i: f"ds_read_b64 {vr(KH,2)}, v{KHA} offset:{off(i)}"
    rdV = lambda i, h: f"ds_read_b64_tr_b16 {vr(V+4*h,2)}, v{VA} offset:{off(i)+256*h}\nds_read_b64_tr_b16 {vr(V+4*h+2,2)}, v{VA} offset:{off(i)+256*h+128}"
    stubs = []
    def halo_check(tval):
        stubs.append(tval)
        a(f"s_cmp_eq_u32 s{HI_}, {tval}\ns_cbranch_scc1 L_hw{tval}\nL_hr{tval}:")
    a("L_att_go:")
    a(rdK(0)); a(rdKH(0)); a(rdV(0, 0))
    a("ds_read_b32 v31, v30")
    halo_check(0)
    a(f"""s_waitcnt lgkmcnt(3)
    v_mfma_f32_32x32x16_bf16 {vr(S0,16)}, {vr(K,4)}, {vr(Q,4)}, {vr(S0,16)}""")
    a(rdK(1))
    a(f"v_mfma_f32_32x32x8_bf16 {vr(S0,16)}, {vr(KH,2)}, {vr(QH,2)}, {vr(S0,16)}")
    a(rdKH(1))
    a(f"s_nop 5\ns_waitcnt lgkmcnt(0)\nv_readfirstlane_b32 s{PURE}, v31")

    def softq(S, q):
        for j in range(4):
            a(f"v_exp_f32 v{S+4*q+j}, v{S+4*q+j}")
        for j in range(2):
            a(f"v_cvt_pk_bf16_f32 v{P+2*q+j}, v{S+4*q+2*j}, v{S+4*q+2*j+1}")

    for i in range(9):
        S, SN = (S0, S1) if i % 2 == 0 else (S1, S0)
        if i < 7:
            halo_check(i + 1)
        if i > 0:
            a("s_waitcnt lgkmcnt(2)")
        if i < 8:
            c = vr(M, 16) if i + 1 == 8 else "0"
            a(f"v_mfma_f32_32x32x16_bf16 {vr(SN,16)}, {vr(K,4)}, {vr(Q,4)}, {c}")
        nread = 0
        if i < 7:
            a(rdK(i + 2)); nread += 1
        softq(S, 0)
        if i > 0:
            a(f"v_mfma_f32_32x32x16_bf16 {vr(O,16)}, {vr(V+4,4)}, {vr(P+4,4)}, {vr(O,16)}")
        a(rdV(i, 1)); nread += 2
        softq(S, 1)
        if i < 8:
            a(f"v_mfma_f32_32x32x8_bf16 {vr(SN,16)}, {vr(KH,2)}, {vr(QH,2)}, {vr(SN,16)}")
        if i < 7:
            a(rdKH(i + 2)); nread += 1
        softq(S, 2)
        a(f"s_waitcnt lgkmcnt({nread})")
        a(f"v_mfma_f32_32x32x16_bf16 {vr(O,16)}, {vr(V,4)}, {vr(P,4)}, {'0' if i == 0 else vr(O,16)}")
        if i < 8:
            a(rdV(i + 1, 0))
        softq(S, 3)
        if i < 8:
            a(f"s_cmp_eq_u32 s{NT}, {i+1}\ns_cbranch_scc1 L_att_fin")
    a(f"""L_att_fin:
    s_waitcnt lgkmcnt(0)
    s_nop 0
    v_mfma_f32_32x32x16_bf16 {vr(O,16)}, {vr(V+4,4)}, {vr(P+4,4)}, {vr(O,16)}
    s_lshl_b32 s36, s{XCD}, 3
    s_add_u32 s36, s36, s{TT}
    s_lshl_b32 s36, s36, 5
    s_add_u32 s36, s36, s{LOC}
    s_lshl_b32 s36, s36, 2
    s_add_u32 s36, s36, {WS_FO}
    s_mov_b32 s37, {f32(2.0**-64)}
    s_mov_b32 s38, {f32(2.0**64 if not OPT['forcefb'] else 2.0**12)}
    s_nop 3
    v_rcp_f32 v8, v{O+12}
    v_cmp_nle_f32 s[44:45], s37, v{O+12}
    v_cmp_nge_f32 vcc, s38, v{O+12}
    v_mul_f32 v8, v8, v{G}
    s_or_b64 vcc, vcc, s[44:45]
    s_cbranch_vccnz L_fallback
    L_att_ok:""")
    for r in range(12):
        a(f"v_mul_f32 v{O+r}, v8, v{O+r}")
    for r in range(6):
        a(f"v_cvt_pk_bf16_f32 v{P+r}, v{O+2*r}, v{O+2*r+1}")
    two_flavours(a, lambda sc: a(f"""buffer_store_dwordx4 {vr(P,4)}, v{QA}, s[24:27], s{SQ} offen {sc}
    buffer_store_dwordx2 {vr(P+4,2)}, v{QHA}, s[24:27], s{SQH} offen {sc}"""))
    stamp(a, 7)
    lds_add(a, O_ATT)
    a(f"ds_read_b128 v[60:63], v30 offset:16")
    return stubs


def att_stubs(a, stubs):
    for t in stubs:
        a(f"""L_hw{t}:
        s_mov_b32 s50, {SPIN*8}
        L_hs{t}:
        ds_read_b32 v9, v30 offset:4
        s_sub_u32 s50, s50, 1
        s_cbranch_scc1 L_hr{t}
        s_waitcnt lgkmcnt(0)
        v_readfirstlane_b32 s36, v9
        s_cmp_eq_u32 s36, 0
        s_cbranch_scc1 L_hs{t}
        s_branch L_hr{t}""")
    a(f"""L_fallback:
    s_cmp_lg_u32 s40, 0
    s_cbranch_scc1 L_att_ok
    s_mov_b32 s40, 1""")
    diag_mask(a, False)
    a(f"""v_mov_b32 v8, 0xff800000
    v_add_u32 v5, 4096, v{KA}
    v_add_u32 v6, 4096, v{KHA}
    s_mov_b32 s36, 0
    L_fb_loop:
    ds_read_b128 {vr(K,4)}, v5
    ds_read_b64 {vr(KH,2)}, v6
    v_subrev_u32 v5, 512, v5
    v_subrev_u32 v6, 512, v6
    s_waitcnt lgkmcnt(0)
    s_cmp_eq_u32 s36, 0
    s_cbranch_scc1 L_fb_a
    s_cmp_eq_u32 s36, 8
    s_cbranch_scc1 L_fb_b
    v_mfma_f32_32x32x16_bf16 {vr(S1,16)}, {vr(K,4)}, {vr(Q,4)}, 0
    s_branch L_fb_c
    L_fb_a:
    v_mfma_f32_32x32x16_bf16 {vr(S1,16)}, {vr(K,4)}, {vr(Q,4)}, {vr(S0,16)}
    s_branch L_fb_c
    L_fb_b:
    v_mfma_f32_32x32x16_bf16 {vr(S1,16)}, {vr(K,4)}, {vr(Q,4)}, {vr(M,16)}
    L_fb_c:
    v_mfma_f32_32x32x8_bf16 {vr(S1,16)}, {vr(KH,2)}, {vr(QH,2)}, {vr(S1,16)}
    s_nop 11""")
    for r in range(0, 16, 2):
        a(f"v_max3_f32 v8, v8, v{S1+r}, v{S1+r+1}")
    a(f"""s_add_u32 s36, s36, 1
    s_cmp_lt_u32 s36, s{NT}
    s_cbranch_scc1 L_fb_loop
    v_mov_b32 v9, v8
    s_nop 1
    v_permlane32_swap_b32 v8, v9
    v_max_f32 v8, v8, v9
    v_sub_f32 v8, 0, v8
    v_and_b32 v5, 0xffff0000, v8
    v_sub_f32 v8, v8, v5
    v_and_b32 v6, 0xffff0000, v8
    v_sub_f32 v8, v8, v6
    v_lshrrev_b32 v5, 16, v5
    v_or_b32 v5, v5, v6
    v_lshrrev_b32 v8, 16, v8
    v_cmp_eq_u32 s[44:45], 0, v4
    s_nop 1
    v_cndmask_b32_e64 v{QH}, v5, v{QH}, s[44:45]
    v_cndmask_b32_e64 v{QH+1}, v8, v{QH+1}, s[44:45]
    s_branch L_att_go""")


OF, NOF, PA, WF = 64, 14, 32, 120
def outproj(a):
    a(f"""s_cmp_lt_u32 s{WAVE}, 4
    s_cbranch_scc1 L_op_main
    s_waitcnt vmcnt(0) lgkmcnt(0)""")
    stamp(a, 8)
    flag_store(a, 36, True)
    owner = f"""v_readfirstlane_b32 s42, v60
    v_readfirstlane_b32 s43, v61
    s_lshr_b32 s32, s{LOC}, 2
    s_andn2_b32 s33, s51, 63
    s_sub_u32 s38, s42, s33
    s_sub_u32 s37, s43, s33
    s_min_u32 s38, s38, s37
    s_cmp_lt_u32 s38, 64
    s_cselect_b32 s41, 1, 0"""
    a(owner)
    a(f"""s_cbranch_scc0 L_done
    v_subrev_u32 v5, 256, v0
    v_mul_u32_u24 v6, 820, v5
    v_lshrrev_b32 v6, 16, v6
    v_mul_u32_u24 v7, 80, v6
    v_sub_u32 v7, v5, v7
    v_mul_u32_u24 v11, 81920, v6
    v_lshl_add_u32 v11, v7, 4, v11
    s_mul_i32 s36, s32, 1280
    s_add_u32 s36, s36, {WS_P2}
    v_cmp_gt_u32 vcc, 240, v5
    s_and_b64 exec, exec, vcc""")
    ld = "s_mov_b32 s37, s36\n" + "\n".join(f"buffer_load_dwordx4 {vr(64+4*i,4)}, v11, s[24:27], s37 offen sc1\ns_add_u32 s37, s37, 10240" for i in range(8))
    poll(a, ld, [65 + 2 * i for i in range(16)])
    for i in range(1, 8):
        a(f"v_add_f32 v64, v64, v{64+4*i}\nv_add_f32 v66, v66, v{66+4*i}")
    a(f"""v_mul_u32_u24 v6, 640, v6
    v_lshl_add_u32 v6, v7, 2, v6
    v_add_u32 v6, {L_Y}, v6
    ds_write_b32 v6, v64
    ds_write_b32 v6, v66 offset:320
    s_waitcnt lgkmcnt(0)""")
    lds_add(a, O_Y)
    a("""s_waitcnt lgkmcnt(0)
    L_done:""")
    finish(a)
    WA = 160
    a(f"""L_op_main:
    s_load_dwordx2 s[8:9], s[0:1], 72
    v_and_b32 v3, 15, v1
    v_lshrrev_b32 v4, 4, v1
    v_lshrrev_b32 v5, 1, v4
    v_add_u32 v6, v4, v5
    v_lshlrev_b32 v7, 4, v3
    v_lshl_add_u32 v12, v6, 12, v7
    v_and_b32 v6, 1, v4
    v_lshl_add_u32 v8, v6, 1, v5
    v_mul_u32_u24 v9, {5*4096}, v8
    v_add_u32 v13, v9, v7
    v_mul_u32_u24 v5, 20, v5
    v_lshl_add_u32 v5, v6, 2, v5
    v_bfe_u32 v7, v1, 2, 2
    v_add_u32 v5, v5, v7
    v_mul_u32_u24 v5, 160, v5
    v_and_b32 v9, 3, v1
    v_lshlrev_b32 v9, 3, v9
    v_add_u32 v9, {L_WO}, v9
    v_add_u32 v14, v5, v9
    v_add_u32 v15, {8*6400}, v14
    v_mul_u32_u24 v8, 40, v8
    v_add3_u32 v8, v8, v7, 16
    v_mul_u32_u24 v8, 160, v8
    v_add_u32 v8, v8, v9
    v_mul_u32_u24 v6, 3200, v6
    v_add_u32 v{WA+1}, v8, v6
    v_sub_u32 v{WA}, v8, v6
    v_add_u32 v{WA}, 3200, v{WA}
    v_add_u32 v{WA+2}, {8*6400}, v{WA}
    v_add_u32 v{WA+3}, {8*6400}, v{WA+1}
    v_sub_f32 v{G2}, 1.0, v{G2}""")
    for t in range(5):
        for j in range(2):
            a(f"""v_lshlrev_b32 v{PA+4*t+2*j}, 16, v{XR+2*t+j}
            v_and_b32 v{PA+4*t+2*j+1}, 0xffff0000, v{XR+2*t+j}""")
    a("s_waitcnt vmcnt(0)")
    stamp(a, 8)
    flag_store(a, 36, True)
    for i in range(20):
        a(f"v_mul_f32 v{PA+i}, v{G2}, v{PA+i}")
    for n in range(3):
        a(f"""v_add_u32 v5, {64*n}, v1
        v_mul_u32_u24 v6, 6554, v5
        v_lshrrev_b32 v6, 16, v6
        v_mul_u32_u24 v7, 10, v6
        v_sub_u32 v7, v5, v7
        v_mul_u32_u24 v6, 1280, v6
        v_lshl_add_u32 v{21+n}, v7, 4, v6""")
    a(f"""v_lshrrev_b32 v5, 5, v1
    v_lshl_add_u32 v23, v5, 28, v23
    s_mul_i32 s36, s{WAVE}, 2560
    v_add_u32 v24, s36, v10
    s_waitcnt lgkmcnt(0)""")
    a(owner)
    srd(a, SA, 8, 2621440)
    a(f"""s_mul_i32 s40, s51, 1280
    s_mul_i32 s37, s32, 160
    s_add_u32 s40, s40, s37
    s_lshr_b32 s36, s51, 5
    s_lshl_b32 s36, s36, 7
    s_add_u32 s36, s36, {WS_FO}
    v_and_b32 v5, 31, v1
    v_lshlrev_b32 v5, 2, v5
    s_mul_i32 s37, s{XCD}, {XB}
    s_and_b32 s38, s51, 255
    s_lshl_b32 s38, s38, 4
    s_add_u32 s37, s37, s38
    s_add_u32 s38, s37, 8192""")
    lds_wait(a, O_WO, 1)
    stamp(a, 9)

    def wread(s, t):
        f = WF + 20 * (s & 1) + 4 * t
        if s < 16:
            b = 14 if s < 8 else 15
            b2, o, d = b, (s % 8) * 6400, 1280
        else:
            b = WA if s < 18 else WA + 2
            b2, o, d = b + 1, (s % 2) * 25600, 0
        a(f"""ds_read_b64_tr_b16 v[{f}:{f+1}], v{b} offset:{o+t*32}
        ds_read_b64_tr_b16 v[{f+2}:{f+3}], v{b2} offset:{o+t*32+d}""")

    def oload(s):
        r = OF + 4 * (s % NOF)
        if s < 16:
            a(f"buffer_load_dwordx4 {vr(r,4)}, v12, s[24:27], s37 offen sc1\ns_add_u32 s37, s37, {5*4096}")
        else:
            a(f"buffer_load_dwordx4 {vr(r,4)}, v13, s[24:27], s38 offen sc1\ns_add_u32 s38, s38, {20*4096}")
    pl = "buffer_load_dword v6, v5, s[24:27], s36 offen sc1"
    a(pl)
    for t in range(5):
        wread(0, t)
    a("s_waitcnt lgkmcnt(4)")
    for t in range(5):
        wread(1, t)
    poll(a, pl, [6], pre=True)
    stamp(a, 10)
    NL0 = OPT["nl0"]
    for s in range(NL0):
        oload(s)
    a("L_op_loop:")
    for s in range(20):
        issued = min(20, NL0 + s)
        a(f"s_waitcnt vmcnt({issued-1-s}) lgkmcnt({10 if s < 19 else 0})")
        for t in range(5):
            a(f"v_mfma_f32_16x16x32_bf16 {vr(PA+4*t,4)}, {vr(WF+20*(s&1)+4*t,4)}, {vr(OF+4*(s%NOF),4)}, {vr(PA+4*t,4)}")
            if s < 18:
                wread(s + 2, t)
            if t == 0 and NL0 + s < 20:
                oload(NL0 + s)
            if s == 18 and t == 0:
                a(f"ds_read_b32 v9, v30 offset:{O_ATT}")
    a("L_op_end:")
    stamp(a, 11)
    lds_wait(a, O_ATT, 8, pre=True)
    a(f"""s_cmp_eq_u32 s41, 0
    s_cbranch_scc1 L_noy
    v_add_u32 v9, s51, v3
    v_cmp_eq_u32 s[44:45], s43, v9
    v_cmp_eq_u32 s[48:49], s42, v9
    v_mov_b32 v7, 320
    v_cndmask_b32_e64 v5, v62, v63, s[44:45]
    v_cndmask_b32_e64 v7, 0, v7, s[44:45]
    v_lshl_add_u32 v7, v4, 4, v7
    v_add_u32 v7, {L_Y}, v7""")
    sigmoid(a, 5, "v5")
    a(f"""v_mul_f32 v5, v5, v{G2}
    s_or_b64 s[44:45], s[44:45], s[48:49]""")
    lds_wait(a, O_Y, 4)
    for t in range(5):
        for bs in range(3):
            a(f"ds_read_b128 {vr(OF+12*t+4*bs,4)}, v7 offset:{bs*640+t*64}")
    a("s_waitcnt lgkmcnt(0)\ns_mov_b64 exec, s[44:45]")
    for t in range(5):
        for i in range(4):
            r = OF + 12 * t + i
            a(f"""v_add_f32 v{r}, v{r}, v{r+4}
            v_add_f32 v{r}, v{r}, v{r+8}
            v_fma_f32 v{PA+4*t+i}, v5, v{r}, v{PA+4*t+i}""")
    a("s_mov_b64 exec, -1\nL_noy:\ns_nop 1")
    for t in range(5):
        a(f"""v_cvt_pk_bf16_f32 v{WF+2*t}, v{PA+4*t}, v{PA+4*t+1}
        v_cvt_pk_bf16_f32 v{WF+2*t+1}, v{PA+4*t+2}, v{PA+4*t+3}
        ds_write_b64 v{XA}, {vr(WF+2*t,2)} offset:{t*32}""")
    a("s_waitcnt lgkmcnt(0)")
    for n in range(3):
        a(f"ds_read_b128 {vr(OF+4*n,4)}, v24 offset:{n*1024}")
    for n in range(3):
        a(f"s_waitcnt lgkmcnt({2-n})\nbuffer_store_dwordx4 {vr(OF+4*n,4)}, v{21+n}, s[52:55], s40 offen {OPT['osc']}")
    stamp(a, 12)
    if OPT["probe"]:
        pa, pb = [int(x) for x in OPT["probe"].split("_")]
        a(f"""s_sub_u32 s36, s{62+2*pb}, s{62+2*pa}
        s_lshl_b32 s36, s36, 2
        s_min_u32 s36, s36, 20000
        s_cmp_ge_u32 s2, 240
        s_cselect_b32 s36, 0, s36
        s_memrealtime s[38:39]
        s_waitcnt lgkmcnt(0)
        s_add_u32 s36, s36, s38
        L_probe:
        s_sleep 2
        s_memrealtime s[38:39]
        s_waitcnt lgkmcnt(0)
        s_sub_u32 s37, s38, s36
        s_cmp_lt_i32 s37, 0
        s_cbranch_scc1 L_probe""")
    finish(a)


def wo_groups(a, g0, g1, rot=0):
    lp = uid("wo")
    if rot:
        assert g1 - g0 == 8
        a(f"""s_and_b32 s43, s{LOC}, 3
        s_lshl_b32 s43, s43, 1""")
    else:
        a("s_mov_b32 s43, 0")
    a(f"""s_mov_b32 s44, {g1-g0}
    {lp}:
    s_mul_i32 s40, s43, 5120
    s_mul_i32 s41, s43, 40960
    s_add_u32 s41, s41, s34
    s_add_u32 s41, s41, {g0*40960}""")
    for j in range(5):
        a(f"""s_add_u32 m0, s40, {L_WO+g0*5120+j*1024}
        s_nop 0
        buffer_load_dwordx4 v{20+j}, s[20:23], s41 offen lds""")
    a(f"""s_add_u32 s43, s43, 1
    {"s_and_b32 s43, s43, 7" if rot else ""}
    s_sub_u32 s44, s44, 1
    s_cmp_lg_u32 s44, 0
    s_cbranch_scc1 {lp}""")


def purity(a):
    a(f"""v_cmp_ne_u32 vcc, s{TAG}, v12
    v_cmp_ne_u32 s[44:45], s35, v13
    s_or_b64 vcc, vcc, s[44:45]
    s_cselect_b32 s36, 0, {0 if OPT['forceimp'] else 1}
    v_mov_b32 v5, s36
    ds_write_b32 v30, v5
    s_waitcnt lgkmcnt(0)""")


def helper1(a):
    a(f"""L_help:
    s_cmp_eq_u32 s{WAVE}, 9
    s_cbranch_scc1 L_ffn
    s_load_dwordx2 s[40:41], s[0:1], 16
    s_load_dwordx2 s[8:9], s[0:1], 32
    s_load_dwordx2 s[10:11], s[0:1], 64
    v_lshlrev_b32 v10, 4, v1""")
    a(f"""v_mov_b32 v16, 0x3f803f80
    v_mov_b32 v17, 0x3f803f80
    v_mov_b32 v18, 0x3f803f80
    v_mov_b32 v19, 0x3f803f80
    v_add_u32 v5, {L_ONES}, v10""")
    for i in range(5):
        a(f"ds_write_b128 v5, v[16:19] offset:{i*1024}")
    a(f"""v_mov_b32 v30, {M_PURE}
    v_mov_b32 v6, 0
    v_lshl_add_u32 v7, v1, 2, v30
    ds_write_b32 v7, v6""")
    if OPT["prio"]:
        a("s_setprio 3")
    for n in range(5):
        a(f"""v_add_u32 v5, {64*n}, v1
        v_mul_u32_u24 v6, 6554, v5
        v_lshrrev_b32 v6, 16, v6
        v_mul_u32_u24 v8, 10, v6
        v_sub_u32 v8, v5, v8
        v_mul_u32_u24 v6, 1280, v6
        v_lshl_add_u32 v{20+n}, v8, 4, v6""")
    a("s_waitcnt lgkmcnt(0)")
    epoch_load(a)
    srd(a, SX, 4, 2621440)
    srd(a, SW, 40, 819200)
    srd(a, SS, 12, WS_END)
    srd(a, SA, 8, 1280)
    srd(a, SB, 10, 1280)
    a(f"""s_cmp_lg_u32 s{CT}, 15
    s_cbranch_scc1 L_nowv
    s_mov_b32 m0, {L_WV}
    s_nop 0
    buffer_load_dwordx4 v10, s[52:55], 0 offen lds
    buffer_load_dwordx4 v10, s[52:55], 0 offen offset:1024 lds
    s_mov_b32 m0, {L_WV+2048}
    s_nop 0
    buffer_load_dwordx4 v10, s[56:59], 0 offen lds
    buffer_load_dwordx4 v10, s[56:59], 0 offen offset:1024 lds
    L_nowv:
    s_getreg_b32 s35, hwreg(HW_REG_XCC_ID, 0, 4)
    s_lshr_b32 s34, s{LOC}, 2
    s_mul_i32 s34, s34, 160
    s_mul_i32 s33, s{LOC}, 5
    s_lshr_b32 s33, s33, 1             ; c0
    v_lshrrev_b32 v5, 2, v1
    v_mul_u32_u24 v6, 13108, v5
    v_lshrrev_b32 v6, 16, v6
    v_mul_u32_u24 v6, 5, v6
    v_sub_u32 v6, v5, v6
    s_lshr_b32 s36, s33, 4
    s_add_u32 s37, s33, 2
    s_lshr_b32 s37, s37, 4
    v_cmp_eq_u32 s[46:47], s36, v6
    v_cmp_eq_u32 s[44:45], s37, v6
    s_or_b64 s[46:47], s[46:47], s[44:45]
    s_mov_b32 s44, 0xfff00000
    s_mov_b32 s45, 0x0fffffff
    s_and_b64 s[48:49], s[46:47], s[44:45]
    s_or_b32 s47, s47, 0xf0000000
    v_lshlrev_b32 v11, 3, v1
    v_and_b32 v14, 31, v1
    v_lshlrev_b32 v14, 3, v14
    v_lshrrev_b32 v5, 1, v1
    v_and_b32 v6, 1, v1
    v_lshlrev_b32 v6, 3, v6
    v_lshl_add_u32 v15, v5, 7, v6
    s_lshl_b32 s42, s{XCD}, 8
    s_add_u32 s42, s42, {WS_XID}""")
    epoch_fin(a)
    stamp(a, 1)
    a(f"""s_waitcnt vmcnt(0)
    s_barrier
    s_lshl_b32 s36, s{LOC}, 3
    s_add_u32 s36, s36, s42
    v_mov_b32 v8, s{TAG}
    v_mov_b32 v9, s35
    v_mov_b32 v5, 0
    s_mov_b64 exec, 1
    buffer_store_dwordx2 v[8:9], v5, s[24:27], s36 offen sc1
    s_mov_b64 exec, -1
    s_barrier
    s_barrier
    s_barrier
    s_barrier
    s_barrier
    buffer_load_dwordx2 v[12:13], v14, s[24:27], s42 offen sc1
    s_barrier
    s_barrier
    s_cmp_eq_u32 s{CT}, 15
    s_cbranch_scc1 L_nopur
    s_waitcnt vmcnt(0)""")
    purity(a)
    a("L_nopur:")
    a(f"""s_barrier
    s_lshl_b32 s38, s{XCD}, 2
    s_and_b32 s37, s{LOC}, 3
    s_add_u32 s38, s38, s37
    s_mul_i32 s38, s38, 64*1280
    s_add_u32 s38, s38, s34
    s_add_u32 s39, s38, 40960
    s_barrier
    s_barrier""")
    stamp(a, 2)
    a(f"""s_lshl_b32 s36, s{XCD}, 9
    s_add_u32 s36, s36, {WS_FL}
    buffer_load_dwordx2 v[12:13], v14, s[24:27], s42 offen sc1
    s_waitcnt vmcnt(0)""")
    stamp(a, 3)
    a(f"""v_cmp_ne_u32 vcc, s{TAG}, v12
    v_cmp_ne_u32 s[44:45], s35, v13
    s_or_b64 vcc, vcc, s[44:45]
    s_cselect_b32 s43, 0, {0 if OPT['forceimp'] else 1}""")
    poll(a, "buffer_load_dwordx2 v[12:13], v11, s[24:27], s36 offen sc1", [12, 13], mask="s[46:47]")
    stamp(a, 4)
    a(f"""s_lshl_b32 s36, s{XCD}, 12
    s_add_u32 s36, s36, {WS_FR-4096}
    v_mov_b32 v5, s43
    s_barrier
    ds_write_b32 v30, v5""")
    for n in range(2):
        for j in range(5):
            a(f"""s_mov_b32 m0, {L_XT+n*5120+j*1024}
            s_nop 0
            buffer_load_dwordx4 v{20+j}, s[16:19], s{38+n} offen lds""")
    a("""buffer_load_dwordx2 v[12:13], v15, s[24:27], s36 offen sc1
    s_waitcnt vmcnt(1) lgkmcnt(0)
    s_barrier""")
    stamp(a, 6)
    a(f"""s_cmp_eq_u32 s{XCD}, 0
    s_cbranch_scc1 L_nohalo""")
    poll(a, "buffer_load_dwordx2 v[12:13], v15, s[24:27], s36 offen sc1", [12, 13], mask="s[48:49]", pre=True)
    stamp(a, 7)
    a(f"""s_mul_i32 s36, s{XCD}, 240
    s_add_u32 s36, s36, s33
    s_lshl_b32 s36, s36, 12
    s_add_u32 s36, s36, {((WS_R if OPT['dual'] else WS_L) - XB + 80*4096) & 0xffffffff}""")
    for q in (3, 2, 1, 0):
        for sec in range(2):
            for j in range(3):
                a(f"""s_mov_b32 m0, {sec*L_V + j*CS + q*1024}
                s_add_u32 s37, s36, {sec*80*4096 + j*4096 + q*1024}
                buffer_load_dwordx4 v10, s[24:27], s37 offen sc1 lds""")
    a("L_nohalo:")
    wo_groups(a, 0, 2)
    a("""v_mov_b32 v5, 1
    s_waitcnt vmcnt(10)
    ds_write_b32 v30, v5 offset:4""")
    stamp(a, 8)
    wo_groups(a, 2, 12)
    lds_wait(a, O_FD, 8)
    wo_groups(a, 12, 20, rot=OPT["worot"])
    a("s_waitcnt vmcnt(0)")
    lds_add(a, O_WO)
    a("s_waitcnt lgkmcnt(0)")
    stamp(a, 9)
    a(f"""s_cmp_lg_u32 s2, 255
    s_cbranch_scc1 L_h1_end
    s_mov_b32 s36, {WS_XID}""")
    poll(a, "buffer_load_dwordx4 v[12:15], v10, s[24:27], s36 offen sc1\nbuffer_load_dwordx4 v[16:19], v10, s[24:27], s36 offen offset:1024 sc1", [12, 14, 16, 18])
    a(f"s_mov_b32 s36, {WS_EP}")
    flag_store(a, 36, False)
    a("L_h1_end:")
    finish(a)


def sel_by_g(a, o, b, st):
    a(f"""v_cndmask_b32_e64 v{o}, v{b}, v{b+st}, s[44:45]
    v_cndmask_b32_e64 v{o}, v{o}, v{b+2*st}, s[46:47]
    v_cndmask_b32_e64 v{o}, v{o}, v{b+3*st}, s[48:49]
    v_mov_b32 v{o+1}, s{TAG}""")


def ffn(a):
    a(f"""L_ffn:
    s_load_dwordx4 s[8:11], s[0:1], 40
    s_load_dwordx2 s[40:41], s[0:1], 56
    v_lshlrev_b32 v10, 4, v1
    s_mul_i32 s33, s{XCD}, 30
    s_add_u32 s33, s33, s{LOC}         ; job
    s_mul_i32 s34, s33, 6554
    s_lshr_b32 s34, s34, 16            ; b
    s_mul_i32 s35, s34, 10
    s_sub_u32 s35, s33, s35
    v_lshrrev_b32 v5, 3, v1
    v_and_b32 v7, 7, v1
    v_mul_u32_u24 v6, 3072, v5
    v_lshl_add_u32 v11, v7, 4, v6
    v_mul_u32_u24 v6, 1280, v5
    v_lshl_add_u32 v12, v7, 4, v6
    v_bfe_u32 v6, v1, 2, 2
    v_lshl_add_u32 v6, v4, 3, v6
    v_lshlrev_b32 v6, 7, v6
    v_and_b32 v8, 3, v1
    v_lshl_add_u32 v6, v8, 3, v6
    v_add_u32 v13, {L_FW}, v6
    v_mov_b32 v30, {M_PURE}
    s_mul_i32 s38, s35, 64*3072
    s_lshl_b32 s36, s34, 7
    s_add_u32 s38, s38, s36
    s_mul_i32 s39, s34, 64*1280
    s_lshl_b32 s36, s35, 7
    s_add_u32 s39, s39, s36
    s_waitcnt lgkmcnt(0)""")
    epoch_load(a)
    srd(a, SX, 4, 2621440)
    srd(a, SW, 40, 1966080)
    srd(a, SS, 12, WS_END)
    srd(a, SA, 8, 1966080)
    srd(a, SB, 10, 1966080)
    epoch_fin(a)
    stamp(a, 1)
    if OPT["prio"]:
        a("s_setprio 3")
    def weights():
        for m in range(3):
            for i in range(8):
                s_, v_, so, st = ((SA, 11, 38, 3072), (SB, 11, 38, 3072), (SW, 12, 39, 1280))[m]
                a(f"""s_mov_b32 m0, {L_FW+m*8192+i*1024}
                s_add_u32 s36, s{so}, {i*8*st}
                buffer_load_dwordx4 v{v_}, s[{s_}:{s_+3}], s36 offen {OPT['fnt']} lds""")
    for i in range(9):
        a("s_barrier")
    a(f"s_cmp_eq_u32 s{CT}, 15\ns_cbranch_scc1 L_f_now")
    weights()
    a(f"""L_f_now:
    ds_read_b32 v31, v30
    s_barrier
    s_barrier
    s_waitcnt vmcnt(0) lgkmcnt(0)
    v_readfirstlane_b32 s{PURE}, v31""")
    stamp(a, 2)
    a(f"s_cmp_lg_u32 s{CT}, 15\ns_cbranch_scc1 L_f_c\ns_barrier\nL_f_c:")
    a(f"s_mov_b32 s36, {WS_CAND}")
    poll(a, "buffer_load_dwordx4 v[24:27], v10, s[24:27], s36 offen sc1", [25, 27])
    stamp(a, 3)
    top2(a, 24, 26, 21, 40, 41, 44)
    key_decode(a, 40, 42, 46, 36)
    key_decode(a, 41, 43, 47, 36)
    a(f"""v_mov_b32 v16, s42
    v_mov_b32 v17, s43
    v_mov_b32 v18, s46
    v_mov_b32 v19, s47
    ds_write_b128 v30, v[16:19] offset:16
    v_and_b32 v6, 1, v1
    v_cmp_eq_u32 s[44:45], 0, v6
    s_lshl_b32 s36, s35, 7
    s_nop 0
    v_cndmask_b32_e64 v7, v17, v16, s[44:45]
    v_mul_u32_u24 v7, 1280, v7
    v_lshl_add_u32 v7, v4, 4, v7
    s_cmp_lg_u32 s{CT}, 15
    s_cbranch_scc1 L_f_job""")
    a("""s_waitcnt lgkmcnt(0)
    s_barrier""")
    finish(a)
    a(f"""L_f_job:
    buffer_load_dwordx4 v[32:35], v7, s[16:19], s36 offen
    buffer_load_dwordx4 v[36:39], v7, s[16:19], s36 offen offset:64
    v_cmp_eq_u32 s[44:45], 1, v4
    v_cmp_eq_u32 s[46:47], 2, v4
    v_cmp_eq_u32 s[48:49], 3, v4""")
    stamp(a, 4)
    a("s_barrier")
    for t in range(4):
        for ks in range(2):
            o = 16384 + ks * 4096 + t * 32
            r = 128 + t * 8 + ks * 4
            a(f"""ds_read_b64_tr_b16 v[{r}:{r+1}], v13 offset:{o}
            ds_read_b64_tr_b16 v[{r+2}:{r+3}], v13 offset:{o+512}""")
        if t == 1:
            a("s_waitcnt lgkmcnt(0)")
    a("s_waitcnt vmcnt(0)")
    for m in range(2):
        for t in range(4):
            d = 64 + (m * 4 + t) * 4
            f = 40 + (t & 1) * 8
            for ks in range(2):
                o = m * 8192 + ks * 4096 + t * 32
                a(f"""ds_read_b64_tr_b16 v[{f+4*ks}:{f+4*ks+1}], v13 offset:{o}
                ds_read_b64_tr_b16 v[{f+4*ks+2}:{f+4*ks+3}], v13 offset:{o+512}""")
            a("s_waitcnt lgkmcnt(0)")
            for ks in range(2):
                a(f"v_mfma_f32_16x16x32_bf16 {vr(d,4)}, {vr(32+4*ks,4)}, {vr(f+4*ks,4)}, {'0' if ks == 0 else vr(d,4)}")
    a(f"""s_lshl_b32 s36, s33, 11
    s_add_u32 s36, s36, {WS_P1}
    s_nop 5""")
    for m in range(2):
        for tk in range(2):
            sel_by_g(a, 96 + m * 4 + tk * 2, 64 + m * 16 + tk, 4)
    two_flavours(a, lambda sc: a(f"""buffer_store_dwordx4 v[96:99], v10, s[24:27], s36 offen {sc}
    buffer_store_dwordx4 v[100:103], v10, s[24:27], s36 offen offset:1024 {sc}"""))
    stamp(a, 5)
    a(f"""s_mul_i32 s36, s34, 20480
    s_add_u32 s36, s36, {WS_P1}""")
    ld = "s_mov_b32 s37, s36\n" + "\n".join(f"""buffer_load_dwordx4 {vr(32+8*i,4)}, v10, s[24:27], s37 offen sc1
        buffer_load_dwordx4 {vr(36+8*i,4)}, v10, s[24:27], s37 offen offset:1024 sc1
        s_add_u32 s37, s37, 2048""" for i in range(10))
    a("s_barrier")
    stamp(a, 6)
    if OPT["p1at"] == 2:
        lds_wait(a, 4, 1)
    poll(a, ld, [33 + 2 * i for i in range(40)])
    stamp(a, 7)
    for i in range(1, 10):
        for j in (0, 2, 4, 6):
            a(f"v_add_f32 v{32+j}, v{32+j}, v{32+8*i+j}")
    for tk in range(2):
        sigmoid(a, 14 + tk, f"v{32+2*tk}")
        a(f"v_mul_f32 v{14+tk}, v{14+tk}, v{32+2*tk}\nv_mul_f32 v{14+tk}, v{14+tk}, v{36+2*tk}")
    a(f"""v_cvt_pk_bf16_f32 v14, v14, v15
    v_lshl_add_u32 v6, v1, 1, v30
    ds_write_b16 v6, v14 offset:256
    ds_write_b16_d16_hi v6, v14 offset:384
    v_and_b32 v7, 1, v1
    v_lshl_add_u32 v7, v7, 7, v30
    v_lshl_add_u32 v7, v4, 4, v7
    s_waitcnt lgkmcnt(0)
    ds_read_b128 v[32:35], v7 offset:256
    ds_read_b128 v[36:39], v7 offset:320
    s_waitcnt lgkmcnt(0)""")
    for t in range(4):
        d = 64 + t * 4
        for ks in range(2):
            a(f"v_mfma_f32_16x16x32_bf16 {vr(d,4)}, {vr(32+4*ks,4)}, {vr(128+t*8+4*ks,4)}, {'0' if ks == 0 else vr(d,4)}")
    a(f"""s_lshl_b32 s36, s33, 10
    s_add_u32 s36, s36, {WS_P2}
    s_nop 5""")
    for tk in range(2):
        sel_by_g(a, 96 + tk * 2, 64 + tk, 4)
    a("buffer_store_dwordx4 v[96:99], v10, s[24:27], s36 offen sc1")
    stamp(a, 8)
    finish(a)


def main(out):
    a = Asm()
    head = f"""; gated mix of sliding-window attention and a top-2 routed FFN: one fused launch (written by a generator script)
; @launch grid=(256,1,1) block=(640,1,1) lds={LDS_BYTES}
.amdgcn_target "amdgcn-amd-amdhsa--gfx950"
.text
"""
    entry(a)
    loader(a)
    compute(a)
    stubs = attention(a)
    outproj(a)
    helper1(a)
    ffn(a)
    router_loader(a)
    router(a)
    att_stubs(a, stubs)
    stamp_out(a)
    a("L_exit:\ns_endpgm\nL_code_end:")
    body = a.text().replace("s_mov_b32 s43, 0\n    s_waitcnt lgkmcnt(0)", "s_mov_b32 s43, 0\n    s_movk_i32 s45, 0x4000\n    s_waitcnt lgkmcnt(0)")
    if OPT["al"]:
        body = align_fix(body, [("L_g_loop", "L_g_end"), ("L_att_go", "L_att_fin"), ("L_op_loop", "L_op_end")])
    bad = check_hazards(body)
    tail = f""".section .rodata,"a"
.p2align 6
.amdhsa_kernel {NAME}_kernel
  .amdhsa_next_free_vgpr 168
  .amdhsa_next_free_sgpr 96
  .amdhsa_accum_offset 168
  .amdhsa_group_segment_fixed_size 0
  .amdhsa_kernarg_size 96
  .amdhsa_user_sgpr_count 2
  .amdhsa_user_sgpr_kernarg_segment_ptr 1
  .amdhsa_system_sgpr_workgroup_id_x 1
.end_amdhsa_kernel
"""
    open(out, "w").write(head + body + tail)
    print("written", out, "hazards:", len(bad))


if __name__ == "__main__":
    main(sys.argv[1])
```

```python
import sys, struct
from asmlib import Asm, vr, sr, check_hazards, align_fix

NAME = "gated_mix__sliding_block__moe_arch_mod__prompt"
def f32(x): return "0x%08x" % struct.unpack("<I", struct.pack("<f", x))[0]
LOG2E = 1.4426950408889634
QSCALE = (20 ** -0.5) * LOG2E

OPT = dict(stamp=0, dual=0, pre=0, xnt="", fnt="", rot=1, b11=0, wpf=0, rnt="", worot=1, fprio=3, cearly=1, aprio=2, tlb=0, hdel=1, nowo=0, qloc=1, qat=-1, tlb0=0, wod=0, nl0=8, al=1, pf=1, xpf=0, swap=0, prio=1, osc="", forceimp=0, forcefb=0, probe="")
for _a in sys.argv[2:]:
    k, v = _a.split("=")
    OPT[k] = int(v) if v.lstrip("-").isdigit() else v

WS_L, WS_R = 0, 0x800000
WS_G, WS_CAND, WS_XID, WS_FL, WS_FP, WS_FO = 0x1000000, 0x1010000, 0x1020000, 0x1030000, 0x1040000, 0x1050000
WS_P1, WS_P2, WS_EP, WS_ST, WS_END = 0x1060000, 0x10E0000, 0x1120000, 0x1200000, 0x1300000
WS_FR = 0x1038000
XB = 240 * 4096
CS = 8192 + 64
L_K, L_V = 0, 3 * CS + 64
L_WO = 49664
L_ONES = L_WO + 102400 + 192
L_MISC = L_ONES + 5120 + 64
L_H, L_Y = L_MISC + 256, L_MISC + 512
LDS_BYTES = 163840
L_RW = 49152
L_FW = L_WO + 13 * 5120
L_XT = L_FW + 24576
L_WV = L_FW
M_PURE, M_HALO, M_TOP = L_MISC, L_MISC + 4, L_MISC + 16
O_WO, O_FD, O_ATT, O_Y, O_R, O_B2 = 8, 12, 32, 36, 40, 44
assert L_V % 256 == 0 and L_ONES % 256 == 192 and L_XT + 10240 <= L_WO + 102400 and L_Y + 1920 <= LDS_BYTES
SPIN = 0x8000

WAVE, XCD, LOC, RBL, CT, TAG, PURE = 28, 29, 30, 31, 32, 60, 61
SX, SW, SS, SA, SB = 16, 20, 24, 52, 56


def srd(a, d, p, n):
    a(f"""s_mov_b32 s{d}, s{p}
    s_mov_b32 s{d+1}, s{p+1}
    s_mov_b32 s{d+2}, {n}
    s_mov_b32 s{d+3}, 0x20000""")


def stamp(a, i):
    if OPT["probe"]:
        if str(i) in OPT["probe"].split("_"):
            a(f"s_memrealtime s[{62+2*i}:{63+2*i}]\ns_waitcnt lgkmcnt(0)")
        return
    if OPT["stamp"]:
        if i == 0:
            a("s_memrealtime s[94:95]")
            for j in range(1, 15):
                a(f"s_mov_b32 s{62+2*j}, 0")
        a(f"{'s_memtime' if OPT['stamp'] == 1 else 's_memrealtime'} s[{62+2*i}:{63+2*i}]\ns_waitcnt lgkmcnt(0)")


def finish(a):
    if OPT["stamp"]:
        a("s_branch L_stampout")
    else:
        a("s_endpgm")


def stamp_out(a):
    if OPT["stamp"]:
        n = 14
        a(f"""L_stampout:
        s_waitcnt vmcnt(0)
        {'s_memtime' if OPT['stamp'] == 1 else 's_memrealtime'} s[{62+2*n}:{63+2*n}]
        s_memrealtime s[92:93]
        s_waitcnt lgkmcnt(0)
        s_lshl_b32 s3, s2, 4
        s_add_u32 s3, s3, s{WAVE}
        s_lshl_b32 s3, s3, 7
        s_add_u32 s3, s3, {WS_ST}
        s_mov_b64 exec, 1
        v_mov_b32 v0, 0""")
        for i in range(n + 1):
            a(f"v_mov_b32 v1, s{62+2*i}\nbuffer_store_dword v1, v0, s[24:27], s3 offen offset:{4*i}")
        for i in range(2, 10):
            a(f"v_readlane_b32 s4, v166, {i}\ns_nop 1\nv_mov_b32 v1, s4\nbuffer_store_dword v1, v0, s[24:27], s3 offen offset:{64+4*(i-2)}")
        a("v_mov_b32 v1, s94\nbuffer_store_dword v1, v0, s[24:27], s3 offen offset:120")
        a("v_mov_b32 v1, s92\nbuffer_store_dword v1, v0, s[24:27], s3 offen offset:124")
        a("s_endpgm")


def wave_max_u32(a, v, sdst):
    for m in ("row_shr:1 row_mask:0xf bank_mask:0xf bound_ctrl:1", "row_shr:2 row_mask:0xf bank_mask:0xf bound_ctrl:1",
              "row_shr:4 row_mask:0xf bank_mask:0xf bound_ctrl:1", "row_shr:8 row_mask:0xf bank_mask:0xf bound_ctrl:1",
              "row_bcast:15 row_mask:0xa bank_mask:0xf", "row_bcast:31 row_mask:0xc bank_mask:0xf"):
        a(f"s_nop 1\nv_max_u32_dpp v{v}, v{v}, v{v} {m}")
    a(f"s_nop 0\nv_readlane_b32 s{sdst}, v{v}, 63")


def top2(a, k1, k2, t, s1, s2, sm):
    a(f"v_max_u32 v{t}, v{k1}, v{k2}")
    wave_max_u32(a, t, s1)
    a(f"""s_nop 1
    v_cmp_ne_u32 s[{sm}:{sm+1}], s{s1}, v{k1}
    s_nop 1
    v_cndmask_b32_e64 v{k1}, 0, v{k1}, s[{sm}:{sm+1}]
    v_cmp_ne_u32 s[{sm}:{sm+1}], s{s1}, v{k2}
    s_nop 1
    v_cndmask_b32_e64 v{k2}, 0, v{k2}, s[{sm}:{sm+1}]
    v_max_u32 v{t}, v{k1}, v{k2}""")
    wave_max_u32(a, t, s2)


def key_decode(a, sk, stok, sval, st):
    a(f"""s_and_b32 s{stok}, s{sk}, 0xffff
    s_sub_u32 s{stok}, 0xffff, s{stok}
    s_and_b32 s{stok}, s{stok}, 0x7ff
    s_ashr_i32 s{st}, s{sk}, 31
    s_not_b32 s{st}, s{st}
    s_or_b32 s{st}, s{st}, 0x80000000
    s_xor_b32 s{sval}, s{sk}, s{st}
    s_and_b32 s{sval}, s{sval}, 0xffff0000""")


def sigmoid(a, d, s):
    a(f"""v_mul_f32 v{d}, {f32(-LOG2E)}, {s}
    v_exp_f32 v{d}, v{d}
    s_nop 0
    v_add_f32 v{d}, 1.0, v{d}
    v_rcp_f32 v{d}, v{d}
    s_nop 0""")


def epoch_load(a):
    a(f"""s_add_u32 s14, s12, {WS_EP}
    s_addc_u32 s15, s13, 0
    s_load_dword s{TAG}, s[14:15], 0""")


def epoch_fin(a):
    a(f"s_waitcnt lgkmcnt(0)\ns_add_u32 s{TAG}, s{TAG}, 0x9e3779b9")


_uid = [0]
def uid(p):
    _uid[0] += 1
    return f"L_{p}{_uid[0]}"


def poll(a, load, tagregs, mask=None, tmp=9, pre=False):
    lp, out = uid("poll"), uid("pout")
    a(f"s_mov_b32 s50, {SPIN}")
    if pre:
        a(f"s_branch {lp}p")
    a(f"{lp}:")
    a(load)
    if pre:
        a(f"{lp}p:")
    a(f"""s_sub_u32 s50, s50, 1
    s_cbranch_scc1 {out}
    s_waitcnt vmcnt(0)""")
    if len(tagregs) == 1:
        a(f"v_cmp_ne_u32 vcc, s{TAG}, v{tagregs[0]}")
    else:
        a(f"v_xor_b32 v{tmp}, s{TAG}, v{tagregs[0]}")
        for r in tagregs[1:]:
            a(f"v_xor_b32 v{tmp-1}, s{TAG}, v{r}\nv_or_b32 v{tmp}, v{tmp}, v{tmp-1}")
        a(f"v_cmp_ne_u32 vcc, 0, v{tmp}")
    if mask:
        a(f"s_and_b64 vcc, vcc, {mask}")
    a(f"s_cbranch_vccnz {lp}\n{out}:\ns_waitcnt vmcnt(0)")


def spoll(a, loads, pairs):
    lp, out = uid("sp"), uid("so")
    a(f"s_mov_b32 s50, {SPIN}\n{lp}:")
    a(loads)
    a(f"""s_waitcnt lgkmcnt(0)
    s_sub_u32 s50, s50, 1
    s_cbranch_scc1 {out}
    s_xor_b64 s[36:37], s[{pairs[0]}:{pairs[0]+1}], s[38:39]""")
    for p in pairs[1:]:
        a(f"""s_xor_b64 s[{p}:{p+1}], s[{p}:{p+1}], s[38:39]
        s_or_b64 s[36:37], s[36:37], s[{p}:{p+1}]""")
    a(f"s_cbranch_scc1 {lp}\n{out}:")


def lds_wait(a, off, val, vt=9, pre=False):
    lp, out = uid("lw"), uid("lo")
    a(f"s_mov_b32 s50, {SPIN*8}")
    if pre:
        a(f"s_branch {lp}p")
    a(f"""{lp}:
    ds_read_b32 v{vt}, v30 offset:{off}""")
    if pre:
        a(f"{lp}p:")
    a(f"""s_sub_u32 s50, s50, 1
    s_cbranch_scc1 {out}
    s_waitcnt lgkmcnt(0)
    v_cmp_ne_u32 vcc, {val}, v{vt}
    s_cbranch_vccnz {lp}
    {out}:""")


def lds_add(a, off, vt=9):
    a(f"""v_mov_b32 v{vt}, 1
    s_mov_b64 exec, 1
    ds_add_u32 v30, v{vt} offset:{off}
    s_mov_b64 exec, -1""")


def flag_store(a, soff, local, vt=8):
    a(f"""v_mov_b32 v{vt}, s{TAG}
    v_mov_b32 v{vt+1}, 0
    s_mov_b64 exec, 1""")
    if local:
        l1, l2 = uid("fs"), uid("fe")
        a(f"""s_cmp_eq_u32 s{PURE}, 0
        s_cbranch_scc1 {l1}
        buffer_store_dword v{vt}, v{vt+1}, s[24:27], s{soff} offen
        s_branch {l2}
        {l1}:
        buffer_store_dword v{vt}, v{vt+1}, s[24:27], s{soff} offen sc1
        {l2}:""")
    else:
        a(f"buffer_store_dword v{vt}, v{vt+1}, s[24:27], s{soff} offen sc1")
    a("s_mov_b64 exec, -1")


def two_flavours(a, body):
    l1, l2 = uid("imp"), uid("ime")
    a(f"s_cmp_eq_u32 s{PURE}, 0\ns_cbranch_scc1 {l1}")
    body("")
    a(f"s_branch {l2}\n{l1}:")
    body("sc1")
    a(f"{l2}:")


def router_loader(a):
    a("""L_rld:
    s_load_dwordx2 s[8:9], s[0:1], 16
    s_add_u32 s41, s40, 98304
    s_branch L_rld_issue
    L_rld_loop:
    s_waitcnt vmcnt(12) lgkmcnt(0)
    s_barrier
    L_rld_issue:
    s_lshl_b32 s36, s33, 7
    s_add_u32 s36, s36, s34""")
    for n in range(4):
        a(f"""s_add_u32 m0, s40, {n*4096}
        s_add_u32 s38, s36, {n*40960}
        buffer_load_dwordx4 v10, s[16:19], s38 offen {OPT['rnt']} lds""")
    kc_next(a, 33)
    a("""s_add_u32 s40, s40, 16384
    s_cmp_eq_u32 s40, s41
    s_cselect_b32 s36, 98304, 0
    s_sub_u32 s40, s40, s36
    s_add_u32 s42, s42, 1
    s_cmp_lt_u32 s42, 4
    s_cbranch_scc1 L_rld_issue
    s_cmp_lt_u32 s42, 10
    s_cbranch_scc1 L_rld_loop""")
    srd(a, SS, 12, WS_END)
    srd(a, SW, 8, 819200)
    a(f"""s_add_u32 s{TAG}, s{TAG}, 0x9e3779b9
    v_mov_b32 v30, {M_PURE}""")
    for n in (12, 8, 4, 0):
        a(f"s_waitcnt vmcnt({n})\ns_barrier")
    a("s_barrier")
    if OPT["wpf"]:
        N = OPT["wpf"]
        lds_wait(a, O_R, 4)
        a(f"""v_lshlrev_b32 v5, 7, v1
        s_lshl_b32 s36, s{RBL}, 2
        s_add_u32 s36, s36, s{WAVE}
        s_sub_u32 s36, s36, 4
        s_lshl_b32 s36, s36, 13
        s_cmp_ge_u32 s{XCD}, {N}
        s_cselect_b32 s37, 0, s{XCD}
        s_mov_b32 s42, 0
        L_wpf:
        s_lshl_b32 s38, s37, 16
        s_add_u32 s38, s38, s36
        buffer_load_dword v167, v5, s[20:23], s38 offen
        s_add_u32 s37, s37, 1
        s_cmp_eq_u32 s37, {N}
        s_cselect_b32 s37, 0, s37
        s_add_u32 s42, s42, 1
        s_cmp_lt_u32 s42, {N}
        s_cbranch_scc1 L_wpf""")
    a("s_branch L_att_setup")


def kc_init(a):
    def nib(o):
        v = sum(x << (4 * i) for i, x in enumerate(o))
        return v & 0xffffffff, v >> 32
    n0, n1, n2 = nib(range(10)), nib([1, 0, 3, 2, 5, 4, 7, 6, 9, 8]), nib([0, 2, 1, 4, 3, 6, 5, 8, 7, 9])
    a(f"s_mov_b32 s46, {n0[0]:#x}\ns_movk_i32 s47, {n0[1]:#x}")
    if OPT["swap"]:
        a(f"""s_and_b32 s36, s{LOC}, {3 if OPT["swap"] == 1 else 1}
        s_cmp_eq_u32 s36, 1
        s_cselect_b32 s46, {n1[0]:#x}, s46
        s_cselect_b32 s47, {n1[1]:#x}, s47
        s_cmp_eq_u32 s36, 3
        s_cselect_b32 s46, {n2[0]:#x}, s46
        s_cselect_b32 s47, {n2[1]:#x}, s47""")
    n3 = nib([2, 3, 4, 5, 6, 7, 8, 9, 0, 1])
    a(f"""s_cmp_eq_u32 s{CT}, 15
    s_cselect_b32 s46, {n3[0]:#x}, s46
    s_cselect_b32 s47, {n3[1]:#x}, s47""")


def kc_next(a, d):
    a(f"""s_and_b32 s{d}, s46, 15
    s_lshr_b64 s[46:47], s[46:47], 4""")
    if OPT["rot"]:
        a(f"""s_add_u32 s{d}, s{d}, s{XCD}
        s_sub_u32 s36, s{d}, 10
        s_cselect_b32 s{d}, s{d}, s36""")


def entry(a):
    a(f""".globl {NAME}_kernel
    .p2align 8
    .type {NAME}_kernel,@function
    {NAME}_kernel:""")
    a("""s_cmp_ge_u32 s2, 256
    s_cbranch_scc1 L_exit""")
    stamp(a, 0)
    a(f"""s_load_dwordx4 s[4:7], s[0:1], 0
    s_load_dwordx2 s[12:13], s[0:1], 88
    v_lshrrev_b32 v2, 6, v0
    v_and_b32 v1, 63, v0
    v_readfirstlane_b32 s{WAVE}, v2
    s_and_b32 s{XCD}, s2, 7
    s_lshr_b32 s{LOC}, s2, 3
    s_and_b32 s{RBL}, s{LOC}, 1
    s_lshr_b32 s{CT}, s{LOC}, 1
    v_lshrrev_b32 v4, 4, v1""")
    if OPT["pf"]:
        a(f"""s_cmp_lg_u32 s{WAVE}, 0
        s_cbranch_scc1 L_nopf
        s_getpc_b64 s[36:37]
        L_pc:
        s_and_b32 s38, s{LOC}, 3
        s_mul_i32 s38, s38, 5120
        v_min_u32 v5, 39, v1
        v_lshl_add_u32 v5, v5, 7, s38
        v_min_u32 v5, L_code_end-L_pc-4, v5
        global_load_dword v167, v5, s[36:37]
        L_nopf:""")
    a(f"""s_cmp_lt_u32 s{WAVE}, 4
    s_cbranch_scc1 L_compute
    s_cmp_ge_u32 s{WAVE}, 8
    s_cbranch_scc1 L_help""")


def loader(a):
    a(f"""v_and_b32 v2, 3, v2
    v_lshrrev_b32 v3, 3, v1
    v_lshl_add_u32 v3, v2, 3, v3
    v_mul_u32_u24 v3, 1280, v3
    v_lshl_add_u32 v5, v2, 2, v4
    v_xor_b32 v6, v5, v1
    v_and_b32 v6, 7, v6
    v_lshl_add_u32 v10, v6, 4, v3
    v_mul_u32_u24 v5, 3840, v5
    v_lshrrev_b32 v6, 1, v2
    v_lshl_add_u32 v6, v6, 2, v4
    v_lshlrev_b32 v6, 1, v6
    v_xor_b32 v6, v6, v1
    v_and_b32 v6, 15, v6
    v_lshl_add_u32 v11, v6, 4, v5
    s_lshl_b32 s34, s{XCD}, 1
    s_add_u32 s34, s34, s{RBL}
    s_mul_i32 s34, s34, 128*1280
    s_lshl_b32 s35, s{CT}, 8
    s_and_b32 s40, s{WAVE}, 3
    s_lshl_b32 s40, s40, 10
    s_add_u32 s41, s40, 49152
    s_mov_b32 s42, 0
    s_mov_b32 s18, 2621440
    s_mov_b32 s19, 0x20000
    s_mov_b32 s22, 2457600
    s_mov_b32 s23, 0x20000""")
    kc_init(a)
    kc_next(a, 33)
    if OPT["xpf"]:
        a(f"""v_lshrrev_b32 v5, 3, v1
        s_lshl_b32 s36, s{CT}, 3
        v_add_u32 v5, s36, v5
        v_mul_u32_u24 v5, 1280, v5
        v_and_b32 v6, 7, v1
        v_add3_u32 v6, v6, {"s%d" % XCD if OPT["rot"] else 0}, 2
        v_subrev_u32 v7, 10, v6
        v_min_u32 v6, v6, v7
        v_lshl_add_u32 v12, v6, 7, v5""")
    a("""s_waitcnt lgkmcnt(0)
    s_mov_b32 s16, s4
    s_mov_b32 s17, s5
    s_mov_b32 s20, s6
    s_mov_b32 s21, s7""")
    epoch_load(a)
    stamp(a, 1)
    a(f"""s_cmp_eq_u32 s{CT}, 15
    s_cbranch_scc1 L_rld
    s_branch L_ld_issue
    L_ld_loop:
    s_waitcnt vmcnt(8) lgkmcnt(0)
    s_barrier""")
    if OPT["stamp"]:
        a("""s_memrealtime s[44:45]
        s_waitcnt lgkmcnt(0)
        s_mov_b32 m0, s42
        s_nop 0
        v_writelane_b32 v166, s44, m0""")
    a("""L_ld_issue:
    s_lshl_b32 s36, s33, 7
    s_add_u32 s36, s36, s34
    s_mul_i32 s37, s33, 245760
    s_add_u32 s37, s37, s35""")
    for n in range(4):
        a(f"""s_add_u32 m0, s40, {n*4096}
        s_add_u32 s38, s36, {n*40960}
        buffer_load_dwordx4 v10, s[16:19], s38 offen {OPT['xnt']} lds
        s_add_u32 m0, s40, {L_RW+n*4096}
        s_add_u32 s39, s37, {n*61440}
        buffer_load_dwordx4 v11, s[20:23], s39 offen lds""")
    kc_next(a, 33)
    if OPT["xpf"]:
        a(f"""s_add_u32 s36, s42, s{WAVE}
        s_cmp_lg_u32 s36, 4
        s_cbranch_scc1 L_noxpf
        buffer_load_dword v167, v12, s[16:19], s34 offen {OPT['xnt']}
        L_noxpf:""")
    a("""s_add_u32 s40, s40, 16384
    s_cmp_eq_u32 s40, s41
    s_cselect_b32 s36, 49152, 0
    s_sub_u32 s40, s40, s36
    s_add_u32 s42, s42, 1
    s_cmp_lt_u32 s42, 2
    s_cbranch_scc1 L_ld_issue
    s_cmp_lt_u32 s42, 10
    s_cbranch_scc1 L_ld_loop""")
    srd(a, SS, 12, WS_END)
    a(f"s_add_u32 s{TAG}, s{TAG}, 0x9e3779b9")
    pre = 0
    a(f"""s_waitcnt vmcnt({8+pre})
    s_barrier""")
    stamp(a, 2)
    a(f"""s_waitcnt vmcnt({pre})
    s_barrier""")
    stamp(a, 3)
    a("s_barrier")
    stamp(a, 4)
    a("s_branch L_att_setup")


ACC, F0, F1 = 32, 96, 128
def compute(a):
    a("L_compute:")
    if (OPT["qloc"] and OPT["qat"] == -1) or OPT["tlb0"]:
        a(f"""s_mul_i32 s36, s{XCD}, {XB}
        s_mov_b32 s26, {WS_END}
        s_mov_b32 s27, 0x20000""")
        if OPT["qloc"] and OPT["qat"] == -1:
            a(f"""s_lshl_b32 s37, s{LOC}, 2
            s_add_u32 s37, s37, s{WAVE}
            s_mul_i32 s37, s37, 2560
            s_add_u32 s37, s37, s36
            v_min_u32 v5, 19, v1
            v_lshlrev_b32 v5, 7, v5""")
        if OPT["tlb0"]:
            a(f"""s_sub_u32 s38, s36, {XB}
            s_max_i32 s38, s38, 0
            v_min_u32 v6, 2, v1
            v_mul_u32_u24 v6, {XB-64}, v6""")
        a("""s_waitcnt lgkmcnt(0)
        s_mov_b32 s24, s12
        s_mov_b32 s25, s13""")
        if OPT["qloc"] and OPT["qat"] == -1:
            a("buffer_load_dword v167, v5, s[24:27], s37 offen sc1")
        if OPT["tlb0"]:
            a(f"""s_cmp_lg_u32 s{WAVE}, 1
            s_cbranch_scc1 L_not0
            buffer_load_dword v167, v6, s[24:27], s38 offen sc1
            L_not0:""")
    a(f"""v_and_b32 v3, 15, v1
    s_and_b32 s36, s{WAVE}, 1          ; wc
    s_lshr_b32 s37, s{WAVE}, 1         ; wt
    s_lshl_b32 s38, s37, 13
    s_lshl_b32 s39, s{WAVE}, 12
    s_cmp_eq_u32 s{CT}, 15
    s_cselect_b32 s38, s39, s38
    v_lshrrev_b32 v5, 1, v3
    v_xor_b32 v5, v5, v4
    v_lshlrev_b32 v5, 4, v5
    v_lshl_add_u32 v12, v3, 7, v5
    v_add_u32 v12, s38, v12
    v_xor_b32 v13, 64, v12
    v_bfe_u32 v5, v1, 2, 2             ; r
    v_lshl_add_u32 v6, v4, 3, v5
    v_lshlrev_b32 v6, 8, v6
    v_and_b32 v7, 1, v4
    v_lshl_add_u32 v5, v7, 2, v5
    v_lshlrev_b32 v5, 1, v5            ; f(row)
    v_and_b32 v7, 3, v1
    s_lshl_b32 s39, s36, 3
    v_add_u32 v7, s39, v7
    v_xor_b32 v5, v5, v7
    v_lshl_add_u32 v6, v5, 4, v6
    v_bfe_u32 v5, v1, 1, 1
    v_lshl_add_u32 v6, v5, 3, v6
    v_add_u32 v14, {L_RW}, v6
    v_xor_b32 v15, 8, v14
    v_xor_b32 v16, 64, v14
    v_xor_b32 v17, 0x48, v14
    v_lshlrev_b32 v18, 4, v3
    v_lshl_add_u32 v18, v4, 12, v18
    v_mov_b32 v19, {M_PURE}
    s_mul_i32 s34, s{XCD}, {XB}
    s_lshl_b32 s39, s{CT}, 16
    s_add_u32 s34, s34, s39
    s_lshl_b32 s39, s36, 15
    s_add_u32 s34, s34, s39
    s_lshl_b32 s39, s{RBL}, 11
    s_add_u32 s34, s34, s39
    s_lshl_b32 s39, s37, 10
    s_add_u32 s34, s34, s39
    s_add_u32 s35, s34, 16384
    s_mov_b32 s42, 0
    s_mov_b32 s43, 0
    s_waitcnt lgkmcnt(0)""")
    epoch_load(a)
    srd(a, SS, 12, WS_END)
    for i in range(64):
        a(f"v_mov_b32 v{ACC+i}, 0")
    epoch_fin(a)
    stamp(a, 1)
    a(f"s_cmp_eq_u32 s{CT}, 15\ns_cbranch_scc1 L_router")

    def reads(ks, F):
        r = []
        def A(j):
            r.append(f"ds_read_b64_tr_b16 v[{F+4*j}:{F+4*j+1}], v{14+j} offset:{ks*8192}")
            r.append(f"ds_read_b64_tr_b16 v[{F+4*j+2}:{F+4*j+3}], v{14+j} offset:{ks*8192+1024}")
        A(0)
        for t in range(4):
            r.append(f"ds_read_b128 {vr(F+16+4*t,4)}, v{12+ks} offset:{t*2048}")
        A(1); A(2); A(3)
        return r

    def phase(F, rd, bar, extra):
        a("s_waitcnt lgkmcnt(6)")
        n = 0
        for j in range(4):
            if j == 1:
                a("s_waitcnt lgkmcnt(0)")
                if bar:
                    a("s_barrier")
            for t in range(4):
                d = ACC + (j * 4 + t) * 4
                a(f"v_mfma_f32_16x16x32_bf16 {vr(d,4)}, {vr(F+4*j,4)}, {vr(F+16+4*t,4)}, {vr(d,4)}")
                if j == 0:
                    a(extra[t])
                else:
                    a(rd[n]); n += 1

    a("s_barrier")
    stamp(a, 2)
    for l in reads(0, F0):
        a(l)
    a("L_g_loop:")
    phase(F0, reads(1, F1), False, ["""s_add_u32 s43, s43, 1
        s_cmp_eq_u32 s43, 3""", "s_cselect_b32 s44, -32768, 16384" if False else """s_cselect_b32 s44, 0xffff8000, s45
        """, "s_cselect_b32 s43, 0, s43\ns_add_u32 s42, s42, 1", ""])
    phase(F1, reads(0, F0), True, ["v_add_u32 v12, s44, v12\nv_add_u32 v13, s44, v13", "v_add_u32 v14, s44, v14\nv_add_u32 v15, s44, v15",
                                   "v_add_u32 v16, s44, v16\nv_add_u32 v17, s44, v17", "s_cmp_lt_u32 s42, 10"])
    a("s_cbranch_scc1 L_g_loop\nL_g_end:")
    stamp(a, 3)
    a("ds_read_b32 v20, v19")

    def epi(scale, sc="sc1"):
        for p in range(2):
            for t in range(4):
                o = F1 + (p * 4 + t) * 4
                for h in range(2):
                    d = ACC + ((2 * p + h) * 4 + t) * 4
                    if scale:
                        a(f"v_pk_mul_f32 {vr(d,2)}, {vr(d,2)}, s[38:39]\nv_pk_mul_f32 {vr(d+2,2)}, {vr(d+2,2)}, s[38:39]")
                    a(f"v_cvt_pk_bf16_f32 v{o+2*h}, v{d}, v{d+1}\nv_cvt_pk_bf16_f32 v{o+2*h+1}, v{d+2}, v{d+3}")
                a(f"buffer_store_dwordx4 {vr(o,4)}, v18, s[24:27], s{34+p} offen offset:{t*256} {sc}")
    a(f"""s_cmp_ge_u32 s{CT}, 5
    s_cbranch_scc1 L_noscale
    s_mov_b32 s38, {f32(QSCALE)}
    s_mov_b32 s39, s38""")
    if OPT["qloc"]:
        a(f"""s_waitcnt lgkmcnt(0)
        v_cmp_eq_u32 vcc, 0, v20
        s_cbranch_vccnz L_q_far""")
        epi(True, "")
        a("s_branch L_pubflag\nL_q_far:")
        for i in range(0, 64, 2):
            a(f"v_pk_mul_f32 {vr(ACC+i,2)}, {vr(ACC+i,2)}, s[38:39]")
        a("L_noscale:")
    else:
        epi(True)
        a("s_branch L_pubflag\nL_noscale:")
    epi(False)
    a(f"""L_pubflag:
    s_lshl_b32 s36, s{XCD}, 4
    s_add_u32 s36, s36, s{CT}
    s_lshl_b32 s36, s36, 1
    s_and_b32 s37, s{WAVE}, 1
    s_add_u32 s36, s36, s37
    s_lshl_b32 s40, s36, 7
    s_lshl_b32 s36, s36, 4
    s_lshl_b32 s37, s{RBL}, 3
    s_and_b32 s38, s{WAVE}, 2
    s_lshl_b32 s38, s38, 1
    s_add_u32 s37, s37, s38
    s_add_u32 s36, s36, s37
    s_add_u32 s36, s36, {WS_FL}
    s_add_u32 s40, s40, s37
    s_add_u32 s40, s40, {WS_FR}
    s_waitcnt lgkmcnt(0)
    v_readfirstlane_b32 s{PURE}, v20
    s_waitcnt vmcnt(0)""")
    stamp(a, 4)
    flag_store(a, 36, True)
    a(f"""s_cmp_lt_u32 s{CT}, 5
    s_cbranch_scc1 L_att_setup
    s_mov_b64 exec, 1
    buffer_store_dword v8, v9, s[24:27], s40 offen sc1
    s_mov_b64 exec, -1""")


def router(a):
    a("L_router:")
    kc_init(a)
    kc_next(a, 33)
    a(f"""v_and_b32 v5, 1, v1
    v_lshlrev_b32 v5, 11, v5
    v_lshl_add_u32 v14, v4, 4, v5
    v_add_u32 v14, {L_WV}, v14
    L_r_loop:
    s_barrier
    s_lshl_b32 s36, s33, 7
    v_add_u32 v15, s36, v14""")
    for ks in range(2):
        a(f"""ds_read_b128 {vr(F0+12*ks,4)}, v15 offset:{ks*64}
        ds_read_b128 {vr(F0+12*ks+4,4)}, v{12+ks}
        ds_read_b128 {vr(F0+12*ks+8,4)}, v{12+ks} offset:2048""")
    kc_next(a, 33)
    a("""s_add_u32 s43, s43, 1
    s_cmp_eq_u32 s43, 6
    s_cselect_b32 s44, 0xfffec000, s45
    s_cselect_b32 s43, 0, s43
    v_add_u32 v12, s44, v12
    v_add_u32 v13, s44, v13
    s_waitcnt lgkmcnt(0)""")
    for ks in range(2):
        for t in range(2):
            a(f"v_mfma_f32_16x16x32_bf16 {vr(ACC+4*t,4)}, {vr(F0+12*ks,4)}, {vr(F0+12*ks+4+4*t,4)}, {vr(ACC+4*t,4)}")
    a(f"""s_add_u32 s42, s42, 1
    s_cmp_lt_u32 s42, 10
    s_cbranch_scc1 L_r_loop
    s_barrier
    s_lshl_b32 s36, s{XCD}, 8
    s_lshl_b32 s37, s{RBL}, 7
    s_add_u32 s36, s36, s37
    s_lshl_b32 s37, s{WAVE}, 5
    s_add_u32 s36, s36, s37
    s_mov_b32 s37, {WS_G}""")
    stamp(a, 3)
    for t in range(2):
        a(f"""v_add3_u32 v20, s36, v3, {16*t}
        v_cvt_pk_bf16_f32 v{21+t}, v{ACC+4*t}, v{ACC+4*t+1}
        v_and_b32 v23, 0xffff0000, v{21+t}
        v_lshlrev_b32 v{21+t}, 16, v{21+t}""")
        sigmoid(a, 23, "v23")
        a(f"""v_cvt_pk_bf16_f32 v23, v23, v23
        v_and_b32 v{26+t}, 0xffff0000, v23
        v_lshlrev_b32 v24, 2, v20
        s_mov_b64 exec, 0xffff
        buffer_store_dword v{26+t}, v24, s[24:27], s37 offen sc1
        s_mov_b64 exec, -1
        v_ashrrev_i32 v24, 31, v{21+t}
        v_or_b32 v24, 0x80000000, v24
        v_xor_b32 v{21+t}, v{21+t}, v24
        v_and_b32 v{21+t}, 0xffff0000, v{21+t}
        v_sub_u32 v24, 0xffff, v20
        v_or_b32 v{21+t}, v{21+t}, v24""")
    top2(a, 21, 22, 25, 46, 47, 48)
    a(f"""s_lshr_b32 s36, s36, 1
    s_add_u32 s36, s36, {WS_CAND}
    v_mov_b32 v28, s46
    v_mov_b32 v29, s{TAG}
    v_mov_b32 v30, s47
    v_mov_b32 v31, s{TAG}
    v_mov_b32 v24, 0
    s_mov_b64 exec, 1
    buffer_store_dwordx4 v[28:31], v24, s[24:27], s36 offen sc1
    s_lshl_b32 s36, s{XCD}, 5
    s_add_u32 s36, s36, s{LOC}
    s_lshl_b32 s36, s36, 2
    s_add_u32 s36, s36, s{WAVE}
    s_lshl_b32 s36, s36, 2
    s_add_u32 s36, s36, {WS_FL}
    v_mov_b32 v9, 1
    s_waitcnt vmcnt(1)
    buffer_store_dword v29, v24, s[24:27], s36 offen sc1
    ds_add_u32 v19, v9 offset:{O_R}
    s_mov_b64 exec, -1""")
    stamp(a, 4)
    a("s_branch L_att_setup")


Q, QH, KH, K, V, P, S0, S1, O, M = 32, 36, 38, 40, 44, 52, 64, 80, 96, 112
KA, KHA, VA, QA, QHA, G, G2, XA, XR = 12, 13, 14, 15, 16, 17, 18, 19, 20
TT, NT, HI_ = 33, 34, 35
SQ, SQH = 46, 47


def diag_mask(a, old):
    a(f"""v_lshlrev_b32 v6, 2, v4
    v_sub_u32 v6, v3, v6
    v_mov_b32 v7, 0xff800000""")
    for r in range(0, 16, 2):
        k0, k1 = (r >> 2) * 8 + (r & 3), (r >> 2) * 8 + (r & 3) + 1
        a(f"""v_cmp_le_i32 s[44:45], {k0}, v6
        v_cmp_le_i32 s[48:49], {k1}, v6
        s_nop 0
        v_cndmask_b32_e64 v{S0+r}, v7, 0, s[44:45]
        v_cndmask_b32_e64 v{S0+r+1}, v7, 0, s[48:49]""")
        if old:
            a(f"""v_cndmask_b32_e64 v{M+r}, 0, v7, s[44:45]
            v_cndmask_b32_e64 v{M+r+1}, 0, v7, s[48:49]""")


def attention(a):
    SRC = WS_L
    a("L_att_setup:")
    a(f"""s_and_b32 s31, s{LOC}, 1
    s_mul_i32 s40, s{LOC}, 5
    s_lshr_b32 s40, s40, 1            ; c0
    s_sub_u32 s{TT}, 11, s{WAVE}
    s_cmp_lt_u32 s{WAVE}, 4
    s_cselect_b32 s{TT}, s{WAVE}, s{TT}
    s_add_u32 s36, s{TT}, 1
    s_cmp_eq_u32 s{XCD}, 0
    s_cselect_b32 s{NT}, s36, 9
    s_cselect_b32 s36, 4, 17
    s_movk_i32 s37, 0xff
    s_cselect_b32 s37, 0x3ff, s37
    s_lshl_b32 s36, s36, s{TT}
    s_and_b32 s{HI_}, s36, s37
    s_lshr_b32 s36, s{LOC}, 2
    s_xor_b32 s36, s36, s31
    s_andn2_b32 s41, 1, s36
    s_lshl_b32 s41, s41, 3
    s_xor_b32 s42, s31, 1
    s_lshl_b32 s42, s42, 1
    s_mul_i32 s36, s{XCD}, 240
    s_add_u32 s36, s36, s40
    s_lshl_b32 s43, s36, 12
    s_lshl_b32 s37, s{TT}, 9
    s_add_u32 s36, s43, s37
    s_lshl_b32 s38, s31, 12
    s_add_u32 s{SQ}, s36, s38
    s_lshl_b32 s38, s42, 12
    s_add_u32 s38, s38, s41
    s_add_u32 s{SQH}, s36, s38
    v_lshlrev_b32 v10, 4, v1
    v_and_b32 v3, 31, v1
    v_lshrrev_b32 v4, 5, v1
    v_lshlrev_b32 v5, 4, v3
    v_lshl_add_u32 v{QA}, v4, 12, v5
    v_lshl_add_u32 v{QHA}, v4, 28, v5
    s_mul_i32 s38, s31, {CS}
    s_add_u32 s38, s38, s37
    v_mul_u32_u24 v6, {CS}, v4
    v_add3_u32 v{KA}, v6, v5, s38
    s_mul_i32 s38, s42, {CS}
    s_add_u32 s38, s38, s41
    s_add_u32 s38, s38, s37
    v_add_u32 v6, s38, v5
    v_mov_b32 v9, {L_ONES}
    v_cmp_eq_u32 s[44:45], 0, v4
    v_bfe_u32 v7, v1, 4, 1
    v_and_b32 v8, 3, v1
    v_cndmask_b32_e64 v{KHA}, v9, v6, s[44:45]
    v_lshl_add_u32 v6, v7, 2, v8      ; gamma
    v_add_u32 v7, s31, v6
    v_lshrrev_b32 v8, 1, v7
    v_add_u32 v11, s40, v8
    v_lshrrev_b32 v11, 1, v11
    v_xor_b32 v7, v7, v11
    v_and_b32 v7, 1, v7
    v_mul_u32_u24 v8, {CS}, v8
    v_lshl_add_u32 v8, v7, 3, v8
    s_add_u32 s38, s37, {L_V}
    v_add_u32 v8, s38, v8
    v_cmp_gt_u32 s[44:45], 5, v6
    v_bfe_u32 v7, v1, 2, 2
    v_lshl_add_u32 v7, v4, 2, v7
    v_cndmask_b32_e64 v8, v9, v8, s[44:45]
    v_lshl_add_u32 v{VA}, v7, 4, v8""")
    diag_mask(a, True)
    a(f"""s_lshr_b32 s36, s{WAVE}, 2
    s_mul_i32 s37, s36, {L_V}
    s_add_u32 s36, s36, 1
    s_mul_i32 s36, s36, {80*4096}
    s_add_u32 s36, s36, s43
    s_and_b32 s38, s{WAVE}, 3
    s_mul_i32 s38, s38, 3
    v_and_b32 v5, 15, v1
    v_mul_u32_u24 v6, 160, v5
    v_lshrrev_b32 v7, 4, v1
    v_lshl_add_u32 v6, v7, 3, v6
    s_and_b32 s39, s{WAVE}, 3
    s_mul_i32 s44, s39, 2560
    v_add_u32 v{XA}, s44, v6
    s_and_b32 s44, s{LOC}, 3
    s_lshl_b32 s44, s44, 5
    s_lshl_b32 s45, s{XCD}, 8
    s_add_u32 s48, s44, s45
    s_and_b32 s44, s39, 1
    s_lshl_b32 s44, s44, 4
    s_add_u32 s51, s48, s44
    s_and_b32 s44, s39, 2
    s_lshl_b32 s44, s44, 6
    s_add_u32 s51, s51, s44
    s_lshl_b32 s39, s{TT}, 5
    s_add_u32 s39, s39, s45
    v_add_lshl_u32 v6, s39, v3, 2
    v_add_lshl_u32 v7, s51, v5, 2
    s_mov_b32 s39, {WS_G}
    v_add_u32 v11, {L_XT}, v{XA}
    v_mul_u32_u24 v8, 6554, v0
    v_lshrrev_b32 v8, 16, v8
    v_mul_u32_u24 v9, 10, v8
    v_sub_u32 v9, v0, v9
    v_mul_u32_u24 v8, 1280, v8
    v_lshl_add_u32 v8, v9, 4, v8
    s_mul_i32 s48, s48, 1280
    s_lshr_b32 s49, s{LOC}, 2
    s_mul_i32 s49, s49, 160
    s_add_u32 s48, s48, s49
    s_lshl_b32 s49, s{WAVE}, 10
    v_mov_b32 v30, {M_PURE}
    s_mov_b32 s40, 0""")
    srd(a, SX, 4, 2621440)
    a("s_barrier")
    stamp(a, 5)
    for i in range(3):
        a(f"""s_add_u32 s44, s38, {i}
        s_lshr_b32 s45, s44, 2
        s_mul_i32 s45, s45, {CS-4096}
        s_lshl_b32 s44, s44, 10
        s_add_u32 s45, s45, s44
        s_add_u32 s45, s45, s37
        s_add_u32 m0, s45, 4096
        s_add_u32 s44, s44, s36
        buffer_load_dwordx4 v10, s[24:27], s44 offen sc1 lds""")
    a(f"""buffer_load_dwordx4 {vr(Q,4)}, v{QA}, s[24:27], s{SQ} offen sc1
    buffer_load_dwordx2 {vr(QH,2)}, v{QHA}, s[24:27], s{SQH} offen sc1
    buffer_load_dword v{G}, v6, s[24:27], s39 offen sc1
    buffer_load_dword v{G2}, v7, s[24:27], s39 offen sc1""")
    a(f"""s_cmp_ge_u32 s{WAVE}, 5
    s_cbranch_scc1 L_nox
    s_add_u32 m0, s49, {L_XT}
    s_add_u32 s44, s48, 128*1280
    buffer_load_dwordx4 v8, s[16:19], s48 offen lds
    s_add_u32 m0, s49, {L_XT+5120}
    s_nop 0
    buffer_load_dwordx4 v8, s[16:19], s44 offen lds
    L_nox:
    s_waitcnt vmcnt(0)""")
    lds_add(a, O_B2)
    lds_wait(a, O_B2, 8)
    if OPT["aprio"]:
        a(f"s_setprio {OPT['aprio']}")
    stamp(a, 6)
    for t in range(5):
        a(f"ds_read_b64 {vr(XR+2*t,2)}, v11 offset:{t*32}")
    lds_add(a, O_FD)
    off = lambda i: (8 - i) * 512
    rdK = lambda i: f"ds_read_b128 {vr(K,4)}, v{KA} offset:{off(i)}"
    rdKH = lambda i: f"ds_read_b64 {vr(KH,2)}, v{KHA} offset:{off(i)}"
    rdV = lambda i, h: f"ds_read_b64_tr_b16 {vr(V+4*h,2)}, v{VA} offset:{off(i)+256*h}\nds_read_b64_tr_b16 {vr(V+4*h+2,2)}, v{VA} offset:{off(i)+256*h+128}"
    stubs = []
    def halo_check(tval):
        stubs.append(tval)
        a(f"s_bitcmp1_b32 s{HI_}, {tval}\ns_cbranch_scc1 L_hw{tval}\nL_hr{tval}:")
    a("L_att_go:")
    a(rdK(0)); a(rdKH(0)); a(rdV(0, 0))
    a("ds_read_b32 v31, v30")
    halo_check(0)
    a(f"""s_waitcnt lgkmcnt(3)
    v_mfma_f32_32x32x16_bf16 {vr(S0,16)}, {vr(K,4)}, {vr(Q,4)}, {vr(S0,16)}""")
    a(rdK(1))
    a(f"v_mfma_f32_32x32x8_bf16 {vr(S0,16)}, {vr(KH,2)}, {vr(QH,2)}, {vr(S0,16)}")
    a(rdKH(1))
    a(f"s_nop 5\ns_waitcnt lgkmcnt(0)\nv_readfirstlane_b32 s{PURE}, v31")

    def softq(S, q):
        for j in range(4):
            a(f"v_exp_f32 v{S+4*q+j}, v{S+4*q+j}")
        for j in range(2):
            a(f"v_cvt_pk_bf16_f32 v{P+2*q+j}, v{S+4*q+2*j}, v{S+4*q+2*j+1}")

    for i in range(9):
        S, SN = (S0, S1) if i % 2 == 0 else (S1, S0)
        halo_check(i + 1)
        if i > 0:
            a("s_waitcnt lgkmcnt(2)")
        if i < 8:
            c = vr(M, 16) if i + 1 == 8 else "0"
            a(f"v_mfma_f32_32x32x16_bf16 {vr(SN,16)}, {vr(K,4)}, {vr(Q,4)}, {c}")
        nread = 0
        if i < 7:
            a(rdK(i + 2)); nread += 1
        softq(S, 0)
        if i > 0:
            a(f"v_mfma_f32_32x32x16_bf16 {vr(O,16)}, {vr(V+4,4)}, {vr(P+4,4)}, {vr(O,16)}")
        a(rdV(i, 1)); nread += 2
        softq(S, 1)
        if i < 8:
            a(f"v_mfma_f32_32x32x8_bf16 {vr(SN,16)}, {vr(KH,2)}, {vr(QH,2)}, {vr(SN,16)}")
        if i < 7:
            a(rdKH(i + 2)); nread += 1
        softq(S, 2)
        a(f"s_waitcnt lgkmcnt({nread})")
        a(f"v_mfma_f32_32x32x16_bf16 {vr(O,16)}, {vr(V,4)}, {vr(P,4)}, {'0' if i == 0 else vr(O,16)}")
        if i < 8:
            a(rdV(i + 1, 0))
        softq(S, 3)
    a(f"""L_att_fin:
    s_waitcnt lgkmcnt(0)
    s_nop 0
    v_mfma_f32_32x32x16_bf16 {vr(O,16)}, {vr(V+4,4)}, {vr(P+4,4)}, {vr(O,16)}
    s_lshl_b32 s36, s{XCD}, 3
    s_add_u32 s36, s36, s{TT}
    s_lshl_b32 s36, s36, 5
    s_add_u32 s36, s36, s{LOC}
    s_lshl_b32 s36, s36, 2
    s_add_u32 s36, s36, {WS_FO}
    s_mov_b32 s37, {f32(2.0**-64)}
    s_mov_b32 s38, {f32(2.0**64 if not OPT['forcefb'] else 2.0**12)}
    s_nop 3
    v_rcp_f32 v8, v{O+12}
    v_cmp_nle_f32 s[44:45], s37, v{O+12}
    v_cmp_nge_f32 vcc, s38, v{O+12}
    v_mul_f32 v8, v8, v{G}
    s_or_b64 vcc, vcc, s[44:45]
    s_cbranch_vccnz L_fallback
    L_att_ok:""")
    for r in range(12):
        a(f"v_mul_f32 v{O+r}, v8, v{O+r}")
    for r in range(6):
        a(f"v_cvt_pk_bf16_f32 v{P+r}, v{O+2*r}, v{O+2*r+1}")
    two_flavours(a, lambda sc: a(f"""buffer_store_dwordx4 {vr(P,4)}, v{QA}, s[24:27], s{SQ} offen {sc}
    buffer_store_dwordx2 {vr(P+4,2)}, v{QHA}, s[24:27], s{SQH} offen {sc}"""))
    stamp(a, 7)
    lds_add(a, O_ATT)
    a(f"ds_read_b128 v[60:63], v30 offset:16")
    return stubs


def att_stubs(a, stubs):
    for t in stubs:
        a(f"L_hw{t}:")
        if t >= 8:
            a("s_branch L_att_fin")
            continue
        if t >= 2:
            a(f"s_cmp_eq_u32 s{XCD}, 0\ns_cbranch_scc1 L_att_fin")
        a(f"""s_cmp_eq_u32 s{TT}, {t}
        s_cselect_b32 s36, 1, 2
        s_mov_b32 s50, {SPIN*8}
        L_hs{t}:
        ds_read_b32 v9, v30 offset:4
        s_sub_u32 s50, s50, 1
        s_cbranch_scc1 L_hr{t}
        s_waitcnt lgkmcnt(0)
        v_cmp_gt_u32 vcc, s36, v9
        s_cbranch_vccnz L_hs{t}
        s_branch L_hr{t}""")
    a(f"""L_fallback:
    s_cmp_lg_u32 s40, 0
    s_cbranch_scc1 L_att_ok
    s_mov_b32 s40, 1""")
    diag_mask(a, False)
    a(f"""v_mov_b32 v8, 0xff800000
    v_add_u32 v5, 4096, v{KA}
    v_add_u32 v6, 4096, v{KHA}
    s_mov_b32 s36, 0
    L_fb_loop:
    ds_read_b128 {vr(K,4)}, v5
    ds_read_b64 {vr(KH,2)}, v6
    v_subrev_u32 v5, 512, v5
    v_subrev_u32 v6, 512, v6
    s_waitcnt lgkmcnt(0)
    s_cmp_eq_u32 s36, 0
    s_cbranch_scc1 L_fb_a
    s_cmp_eq_u32 s36, 8
    s_cbranch_scc1 L_fb_b
    v_mfma_f32_32x32x16_bf16 {vr(S1,16)}, {vr(K,4)}, {vr(Q,4)}, 0
    s_branch L_fb_c
    L_fb_a:
    v_mfma_f32_32x32x16_bf16 {vr(S1,16)}, {vr(K,4)}, {vr(Q,4)}, {vr(S0,16)}
    s_branch L_fb_c
    L_fb_b:
    v_mfma_f32_32x32x16_bf16 {vr(S1,16)}, {vr(K,4)}, {vr(Q,4)}, {vr(M,16)}
    L_fb_c:
    v_mfma_f32_32x32x8_bf16 {vr(S1,16)}, {vr(KH,2)}, {vr(QH,2)}, {vr(S1,16)}
    s_nop 11""")
    for r in range(0, 16, 2):
        a(f"v_max3_f32 v8, v8, v{S1+r}, v{S1+r+1}")
    a(f"""s_add_u32 s36, s36, 1
    s_cmp_lt_u32 s36, s{NT}
    s_cbranch_scc1 L_fb_loop
    v_mov_b32 v9, v8
    s_nop 1
    v_permlane32_swap_b32 v8, v9
    v_max_f32 v8, v8, v9
    v_sub_f32 v8, 0, v8
    v_and_b32 v5, 0xffff0000, v8
    v_sub_f32 v8, v8, v5
    v_and_b32 v6, 0xffff0000, v8
    v_sub_f32 v8, v8, v6
    v_lshrrev_b32 v5, 16, v5
    v_or_b32 v5, v5, v6
    v_lshrrev_b32 v8, 16, v8
    v_cmp_eq_u32 s[44:45], 0, v4
    s_nop 1
    v_cndmask_b32_e64 v{QH}, v5, v{QH}, s[44:45]
    v_cndmask_b32_e64 v{QH+1}, v8, v{QH+1}, s[44:45]
    s_branch L_att_go""")


OF, NOF, PA, WF = 64, 14, 32, 120
def outproj(a):
    a(f"""s_cmp_lt_u32 s{WAVE}, 4
    s_cbranch_scc1 L_op_main
    s_waitcnt vmcnt(0) lgkmcnt(0)""")
    stamp(a, 8)
    flag_store(a, 36, True)
    def owner():
        lp, lo = uid("tv"), uid("to")
        a(f"""s_mov_b32 s50, {SPIN*8}
        {lp}:
        v_cmp_ne_u32 vcc, 0, v60
        s_cbranch_vccnz {lo}
        ds_read_b128 v[60:63], v30 offset:16
        s_waitcnt lgkmcnt(0)
        s_sub_u32 s50, s50, 1
        s_cbranch_scc0 {lp}
        {lo}:""")
        a(owner_txt)
    owner_txt = f"""v_readfirstlane_b32 s42, v60
    v_readfirstlane_b32 s43, v61
    s_and_b32 s42, s42, 0xffff
    s_lshr_b32 s32, s{LOC}, 2
    s_xor_b32 s38, s42, s51
    s_xor_b32 s37, s43, s51
    s_and_b32 s38, s38, 0x760
    s_and_b32 s37, s37, 0x760
    s_min_u32 s38, s38, s37
    s_cmp_eq_u32 s38, 0
    s_cselect_b32 s41, 1, 0"""
    owner()
    a(f"""s_cbranch_scc0 L_done
    v_subrev_u32 v5, 256, v0
    v_mul_u32_u24 v6, 820, v5
    v_lshrrev_b32 v6, 16, v6
    v_mul_u32_u24 v7, 80, v6
    v_sub_u32 v7, v5, v7
    v_mul_u32_u24 v11, 81920, v6
    v_lshl_add_u32 v11, v7, 4, v11
    s_mul_i32 s36, s32, 1280
    s_add_u32 s36, s36, {WS_P2}
    v_cmp_gt_u32 vcc, 240, v5
    s_and_b64 exec, exec, vcc""")
    ld = "s_mov_b32 s37, s36\n" + "\n".join(f"buffer_load_dwordx4 {vr(64+4*i,4)}, v11, s[24:27], s37 offen sc1\ns_add_u32 s37, s37, 10240" for i in range(8))
    poll(a, ld, [65 + 2 * i for i in range(16)])
    for i in range(1, 8):
        a(f"v_add_f32 v64, v64, v{64+4*i}\nv_add_f32 v66, v66, v{66+4*i}")
    a(f"""v_mul_u32_u24 v6, 640, v6
    v_lshl_add_u32 v6, v7, 2, v6
    v_add_u32 v6, {L_Y}, v6
    ds_write_b32 v6, v64
    ds_write_b32 v6, v66 offset:320
    s_waitcnt lgkmcnt(0)""")
    lds_add(a, O_Y)
    a("""s_waitcnt lgkmcnt(0)
    L_done:""")
    finish(a)
    WA = 160
    a(f"""L_op_main:
    {"s_setprio 0" if OPT["aprio"] else ""}
    s_load_dwordx2 s[8:9], s[0:1], 72
    v_and_b32 v3, 15, v1
    v_lshrrev_b32 v4, 4, v1
    v_lshrrev_b32 v5, 1, v4
    v_add_u32 v6, v4, v5
    v_lshlrev_b32 v7, 4, v3
    v_lshl_add_u32 v12, v6, 12, v7
    v_and_b32 v6, 1, v4
    v_lshl_add_u32 v8, v6, 1, v5
    v_mul_u32_u24 v9, {5*4096}, v8
    v_add_u32 v13, v9, v7
    v_mul_u32_u24 v5, 20, v5
    v_lshl_add_u32 v5, v6, 2, v5
    v_bfe_u32 v7, v1, 2, 2
    v_add_u32 v5, v5, v7
    v_mul_u32_u24 v5, 160, v5
    v_and_b32 v9, 3, v1
    v_lshlrev_b32 v9, 3, v9
    v_add_u32 v9, {L_WO}, v9
    v_add_u32 v14, v5, v9
    v_add_u32 v15, {8*6400}, v14
    v_mul_u32_u24 v8, 40, v8
    v_add3_u32 v8, v8, v7, 16
    v_mul_u32_u24 v8, 160, v8
    v_add_u32 v8, v8, v9
    v_mul_u32_u24 v6, 3200, v6
    v_add_u32 v{WA+1}, v8, v6
    v_sub_u32 v{WA}, v8, v6
    v_add_u32 v{WA}, 3200, v{WA}
    v_add_u32 v{WA+2}, {8*6400}, v{WA}
    v_add_u32 v{WA+3}, {8*6400}, v{WA+1}
    v_sub_f32 v{G2}, 1.0, v{G2}""")
    for t in range(5):
        for j in range(2):
            a(f"""v_lshlrev_b32 v{PA+4*t+2*j}, 16, v{XR+2*t+j}
            v_and_b32 v{PA+4*t+2*j+1}, 0xffff0000, v{XR+2*t+j}""")
    a("s_waitcnt vmcnt(0)")
    stamp(a, 8)
    flag_store(a, 36, True)
    for i in range(20):
        a(f"v_mul_f32 v{PA+i}, v{G2}, v{PA+i}")
    for n in range(3):
        a(f"""v_add_u32 v5, {64*n}, v1
        v_mul_u32_u24 v6, 6554, v5
        v_lshrrev_b32 v6, 16, v6
        v_mul_u32_u24 v7, 10, v6
        v_sub_u32 v7, v5, v7
        v_mul_u32_u24 v6, 1280, v6
        v_lshl_add_u32 v{21+n}, v7, 4, v6""")
    a(f"""v_lshrrev_b32 v5, 5, v1
    v_lshl_add_u32 v23, v5, 28, v23
    s_mul_i32 s36, s{WAVE}, 2560
    v_add_u32 v24, s36, v10
    s_waitcnt lgkmcnt(0)""")
    owner()
    srd(a, SA, 8, 2621440)
    a(f"""s_mul_i32 s40, s51, 1280
    s_mul_i32 s37, s32, 160
    s_add_u32 s40, s40, s37
    s_lshr_b32 s36, s51, 5
    s_lshl_b32 s36, s36, 7
    s_add_u32 s36, s36, {WS_FO}
    v_and_b32 v5, 31, v1
    v_lshlrev_b32 v5, 2, v5
    s_mul_i32 s37, s{XCD}, {XB}
    s_and_b32 s38, s51, 255
    s_lshl_b32 s38, s38, 4
    s_add_u32 s37, s37, s38
    s_add_u32 s38, s37, 8192""")
    lds_wait(a, O_WO, 1)
    stamp(a, 9)

    def wread(s, t):
        f = WF + 20 * (s & 1) + 4 * t
        if s < 16:
            b = 14 if s < 8 else 15
            b2, o, d = b, (s % 8) * 6400, 1280
        else:
            b = WA if s < 18 else WA + 2
            b2, o, d = b + 1, (s % 2) * 25600, 0
        a(f"""ds_read_b64_tr_b16 v[{f}:{f+1}], v{b} offset:{o+t*32}
        ds_read_b64_tr_b16 v[{f+2}:{f+3}], v{b2} offset:{o+t*32+d}""")

    def oload(s):
        r = OF + 4 * (s % NOF)
        if s < 16:
            a(f"buffer_load_dwordx4 {vr(r,4)}, v12, s[24:27], s37 offen sc1\ns_add_u32 s37, s37, {5*4096}")
        else:
            a(f"buffer_load_dwordx4 {vr(r,4)}, v13, s[24:27], s38 offen sc1\ns_add_u32 s38, s38, {20*4096}")
    pl = "buffer_load_dword v6, v5, s[24:27], s36 offen sc1"
    a(pl)
    for t in range(5):
        wread(0, t)
    a("s_waitcnt lgkmcnt(4)")
    for t in range(5):
        wread(1, t)
    poll(a, pl, [6], pre=True)
    stamp(a, 10)
    NL0 = OPT["nl0"]
    for s in range(NL0):
        oload(s)
    a("L_op_loop:")
    for s in range(20):
        issued = min(20, NL0 + s)
        a(f"s_waitcnt vmcnt({issued-1-s}) lgkmcnt({10 if s < 19 else 0})")
        for t in range(5):
            a(f"v_mfma_f32_16x16x32_bf16 {vr(PA+4*t,4)}, {vr(WF+20*(s&1)+4*t,4)}, {vr(OF+4*(s%NOF),4)}, {vr(PA+4*t,4)}")
            if s < 18:
                wread(s + 2, t)
            if t == 0 and NL0 + s < 20:
                oload(NL0 + s)
            if s == 18 and t == 0:
                a(f"ds_read_b32 v9, v30 offset:{O_ATT}")
    a("L_op_end:")
    stamp(a, 11)
    lds_wait(a, O_ATT, 8, pre=True)
    a(f"""s_cmp_eq_u32 s41, 0
    s_cbranch_scc1 L_noy
    v_add_u32 v9, s51, v3
    v_cmp_eq_u32 s[44:45], s43, v9
    v_cmp_eq_u32 s[48:49], s42, v9
    v_mov_b32 v7, 320
    v_cndmask_b32_e64 v5, v62, v63, s[44:45]
    v_cndmask_b32_e64 v7, 0, v7, s[44:45]
    v_lshl_add_u32 v7, v4, 4, v7
    v_add_u32 v7, {L_Y}, v7""")
    sigmoid(a, 5, "v5")
    a(f"""v_mul_f32 v5, v5, v{G2}
    s_or_b64 s[44:45], s[44:45], s[48:49]""")
    lds_wait(a, O_Y, 4)
    for t in range(5):
        for bs in range(3):
            a(f"ds_read_b128 {vr(OF+12*t+4*bs,4)}, v7 offset:{bs*640+t*64}")
    a("s_waitcnt lgkmcnt(0)\ns_mov_b64 exec, s[44:45]")
    for t in range(5):
        for i in range(4):
            r = OF + 12 * t + i
            a(f"""v_add_f32 v{r}, v{r}, v{r+4}
            v_add_f32 v{r}, v{r}, v{r+8}
            v_fma_f32 v{PA+4*t+i}, v5, v{r}, v{PA+4*t+i}""")
    a("s_mov_b64 exec, -1\nL_noy:\ns_nop 1")
    for t in range(5):
        a(f"""v_cvt_pk_bf16_f32 v{WF+2*t}, v{PA+4*t}, v{PA+4*t+1}
        v_cvt_pk_bf16_f32 v{WF+2*t+1}, v{PA+4*t+2}, v{PA+4*t+3}
        ds_write_b64 v{XA}, {vr(WF+2*t,2)} offset:{t*32}""")
    a("s_waitcnt lgkmcnt(0)")
    for n in range(3):
        a(f"ds_read_b128 {vr(OF+4*n,4)}, v24 offset:{n*1024}")
    for n in range(3):
        a(f"s_waitcnt lgkmcnt({2-n})\nbuffer_store_dwordx4 {vr(OF+4*n,4)}, v{21+n}, s[52:55], s40 offen {OPT['osc']}")
    stamp(a, 12)
    if OPT["probe"]:
        pa, pb = [int(x) for x in OPT["probe"].split("_")]
        a(f"""s_sub_u32 s36, s{62+2*pb}, s{62+2*pa}
        s_lshl_b32 s36, s36, 2
        s_min_u32 s36, s36, 20000
        s_cmp_ge_u32 s2, 240
        s_cselect_b32 s36, 0, s36
        s_memrealtime s[38:39]
        s_waitcnt lgkmcnt(0)
        s_add_u32 s36, s36, s38
        L_probe:
        s_sleep 2
        s_memrealtime s[38:39]
        s_waitcnt lgkmcnt(0)
        s_sub_u32 s37, s38, s36
        s_cmp_lt_i32 s37, 0
        s_cbranch_scc1 L_probe""")
    finish(a)


def wo_groups(a, g0, g1, rot=0):
    lp = uid("wo")
    if rot:
        assert g1 - g0 == 8
        a(f"""s_and_b32 s43, s{LOC}, 3
        s_lshl_b32 s43, s43, 1""")
    else:
        a("s_mov_b32 s43, 0")
    a(f"""s_mov_b32 s44, {g1-g0}
    {lp}:
    s_mul_i32 s40, s43, 5120
    s_mul_i32 s41, s43, 40960
    s_add_u32 s41, s41, s34
    s_add_u32 s41, s41, {g0*40960}""")
    for j in range(5):
        a(f"""s_add_u32 m0, s40, {L_WO+g0*5120+j*1024}
        s_nop 0
        buffer_load_dwordx4 v{20+j}, s[20:23], s41 offen lds""")
    a(f"""s_add_u32 s43, s43, 1
    {"s_and_b32 s43, s43, 7" if rot else ""}
    s_sub_u32 s44, s44, 1
    s_cmp_lg_u32 s44, 0
    s_cbranch_scc1 {lp}""")


def purity(a):
    a(f"""v_cmp_ne_u32 vcc, s{TAG}, v12
    v_cmp_ne_u32 s[44:45], s35, v13
    s_or_b64 vcc, vcc, s[44:45]
    s_cselect_b32 s36, 0, {0 if OPT['forceimp'] else 1}
    v_mov_b32 v5, s36
    ds_write_b32 v30, v5
    s_waitcnt lgkmcnt(0)""")


def helper1(a):
    a(f"""L_help:
    s_cmp_eq_u32 s{WAVE}, 9
    s_cbranch_scc1 L_ffn
    s_load_dwordx2 s[40:41], s[0:1], 16
    s_load_dwordx2 s[8:9], s[0:1], 32
    s_load_dwordx2 s[10:11], s[0:1], 64
    s_load_dwordx2 s[46:47], s[0:1], 72
    v_lshlrev_b32 v10, 4, v1""")
    a(f"""v_mov_b32 v16, 0x3f803f80
    v_mov_b32 v17, 0x3f803f80
    v_mov_b32 v18, 0x3f803f80
    v_mov_b32 v19, 0x3f803f80
    v_add_u32 v5, {L_ONES}, v10""")
    for i in range(5):
        a(f"ds_write_b128 v5, v[16:19] offset:{i*1024}")
    a(f"""v_mov_b32 v30, {M_PURE}
    v_mov_b32 v6, 0
    v_lshl_add_u32 v7, v1, 2, v30
    ds_write_b32 v7, v6""")
    if OPT["prio"]:
        a("s_setprio 3")
    for n in range(5):
        a(f"""v_add_u32 v5, {64*n}, v1
        v_mul_u32_u24 v6, 6554, v5
        v_lshrrev_b32 v6, 16, v6
        v_mul_u32_u24 v8, 10, v6
        v_sub_u32 v8, v5, v8
        v_mul_u32_u24 v6, 1280, v6
        v_lshl_add_u32 v{20+n}, v8, 4, v6""")
    a("s_waitcnt lgkmcnt(0)")
    epoch_load(a)
    srd(a, SX, 46, 2621440)
    srd(a, SW, 40, 819200)
    srd(a, SS, 12, WS_END)
    srd(a, SA, 8, 1280)
    srd(a, SB, 10, 1280)
    a(f"""s_cmp_lg_u32 s{CT}, 15
    s_cbranch_scc1 L_nowv
    s_mov_b32 m0, {L_WV}
    s_nop 0
    buffer_load_dwordx4 v10, s[52:55], 0 offen lds
    buffer_load_dwordx4 v10, s[52:55], 0 offen offset:1024 lds
    s_mov_b32 m0, {L_WV+2048}
    s_nop 0
    buffer_load_dwordx4 v10, s[56:59], 0 offen lds
    buffer_load_dwordx4 v10, s[56:59], 0 offen offset:1024 lds
    L_nowv:
    s_getreg_b32 s35, hwreg(HW_REG_XCC_ID, 0, 4)
    s_lshr_b32 s34, s{LOC}, 2
    s_mul_i32 s34, s34, 160
    s_mul_i32 s33, s{LOC}, 5
    s_lshr_b32 s33, s33, 1             ; c0
    v_bfe_u32 v5, v1, 2, 1
    v_lshl_add_u32 v6, v5, 1, s33
    v_lshrrev_b32 v6, 3, v6
    v_bfe_u32 v7, v1, 3, 2
    v_cmp_eq_u32 s[44:45], 3, v7
    v_and_b32 v8, 3, v1
    v_lshlrev_b32 v8, 2, v8
    v_cndmask_b32_e64 v5, v6, v5, s[44:45]
    v_mad_u32_u24 v5, v7, 10, v5
    v_lshl_add_u32 v11, v5, 4, v8
    v_and_b32 v7, 1, v7
    v_mad_u32_u24 v5, v7, 10, v6
    v_add_u32 v5, 10, v5
    v_lshl_add_u32 v15, v5, 7, v8
    v_and_b32 v14, 31, v1
    v_lshlrev_b32 v14, 3, v14
    s_lshl_b32 s42, s{XCD}, 8
    s_add_u32 s42, s42, {WS_XID}""")
    epoch_fin(a)
    stamp(a, 1)
    a(f"""s_waitcnt vmcnt(0)
    s_barrier
    s_lshl_b32 s36, s{LOC}, 3
    s_add_u32 s36, s36, s42
    v_mov_b32 v8, s{TAG}
    v_mov_b32 v9, s35
    v_mov_b32 v5, 0
    s_mov_b64 exec, 1
    buffer_store_dwordx2 v[8:9], v5, s[24:27], s36 offen
    s_mov_b64 exec, -1""")
    def qtouch():
        a(f"""s_mul_i32 s36, s{XCD}, {XB}
        s_mul_i32 s37, s{LOC}, 10240
        s_add_u32 s36, s36, s37
        s_add_u32 s37, s36, 5120
        v_min_u32 v5, 39, v1
        v_lshlrev_b32 v5, 7, v5
        buffer_load_dword v167, v5, s[24:27], s36 offen sc1
        buffer_load_dword v167, v5, s[24:27], s37 offen sc1""")
    for i in range(6):
        if OPT["qloc"] and OPT["qat"] == i:
            qtouch()
        a("s_barrier")
    if OPT["qloc"] and OPT["qat"] == 6:
        qtouch()
    a(f"""s_cmp_lg_u32 s{CT}, 15
    s_cbranch_scc1 L_h_g
    s_barrier
    s_barrier
    s_barrier
    s_barrier
    buffer_load_dwordx2 v[12:13], v14, s[24:27], s42 offen sc1
    s_branch L_h_p
    L_h_g:
    buffer_load_dwordx2 v[12:13], v14, s[24:27], s42 offen sc1
    s_barrier
    s_barrier
    L_h_p:
    s_waitcnt vmcnt(0)""")
    purity(a)
    if OPT["qloc"] and OPT["qat"] == 8:
        qtouch()
    if OPT["tlb"]:
        a(f"""s_mul_i32 s36, s{XCD}, {XB}
        s_sub_u32 s36, s36, {XB}
        s_max_i32 s36, s36, 0
        s_mul_i32 s37, s{XCD}, 256*1280
        v_min_u32 v5, 2, v1
        v_mul_u32_u24 v5, {XB-64}, v5
        v_min_u32 v6, 1, v1
        v_mul_u32_u24 v6, {256*1280-64}, v6
        v_mov_b32 v7, 0
        buffer_load_dword v167, v5, s[24:27], s36 offen
        buffer_load_dword v167, v6, s[16:19], s37 offen
        buffer_load_dword v167, v7, s[20:23], s34 offen""")
    a(f"""s_cmp_eq_u32 s{CT}, 15
    s_cbranch_scc1 L_h_q
    s_barrier
    s_barrier
    L_h_q:""")
    if OPT["wod"]:
        wo_groups(a, 12 - OPT["wod"], 12)
    a(f"""s_lshl_b32 s36, s{XCD}, 9
    s_add_u32 s36, s36, {WS_FL}""")
    stamp(a, 2)
    poll(a, "buffer_load_dword v12, v11, s[24:27], s36 offen sc1", [12])
    stamp(a, 4)
    a(f"""s_lshl_b32 s36, s{XCD}, 12
    s_add_u32 s36, s36, {WS_FR-4096}
    s_barrier
    s_cmp_eq_u32 s{XCD}, 0
    s_cbranch_scc1 L_nohalo""")
    poll(a, "buffer_load_dword v12, v15, s[24:27], s36 offen sc1", [12])
    if OPT["hdel"]:
        lds_wait(a, O_B2, 8)
    stamp(a, 7)
    a(f"""s_mul_i32 s36, s{XCD}, 240
    s_add_u32 s36, s36, s33
    s_lshl_b32 s36, s36, 12
    s_add_u32 s36, s36, {(WS_L - XB + 80*4096) & 0xffffffff}""")
    for q in (3, 2, 1, 0):
        for sec in range(2):
            for j in range(3):
                a(f"""s_mov_b32 m0, {sec*L_V + j*CS + q*1024}
                s_add_u32 s37, s36, {sec*80*4096 + j*4096 + q*1024}
                buffer_load_dwordx4 v10, s[24:27], s37 offen sc1 lds""")
    a("""v_mov_b32 v5, 1
    s_waitcnt vmcnt(12)
    ds_write_b32 v30, v5 offset:4
    L_nohalo:""")
    stamp(a, 6)
    wo_groups(a, 0, 2)
    a("""v_mov_b32 v5, 2
    s_waitcnt vmcnt(10)
    ds_write_b32 v30, v5 offset:4""")
    stamp(a, 8)
    if OPT["nowo"]:
        lds_wait(a, O_ATT, 8)
    if OPT['wod'] < 10:
        wo_groups(a, 2, 12 - OPT['wod'])
    lds_wait(a, O_FD, 9)
    wo_groups(a, 12, 20, rot=OPT["worot"])
    a("s_waitcnt vmcnt(0)")
    lds_add(a, O_WO)
    a("s_waitcnt lgkmcnt(0)")
    stamp(a, 9)
    a(f"""s_cmp_lg_u32 s2, 255
    s_cbranch_scc1 L_h1_end
    s_mov_b32 s36, {WS_P2+4}
    v_min_u32 v5, 59, v1
    v_lshlrev_b32 v5, 12, v5""")
    poll(a, "\n".join(f"buffer_load_dword v{12+i}, v5, s[24:27], s36 offen offset:{i*1024} sc1" for i in range(4)), [12, 13, 14, 15])
    a(f"s_mov_b32 s36, {WS_EP}")
    flag_store(a, 36, False)
    a("L_h1_end:")
    finish(a)


def sel_by_g(a, o, b, st, tag=True):
    a(f"""v_cndmask_b32_e64 v{o}, v{b}, v{b+st}, s[44:45]
    v_cndmask_b32_e64 v{o}, v{o}, v{b+2*st}, s[46:47]
    v_cndmask_b32_e64 v{o}, v{o}, v{b+3*st}, s[48:49]""")
    if tag:
        a(f"v_mov_b32 v{o+1}, s{TAG}")


def ffn(a):
    a(f"""L_ffn:
    s_load_dwordx4 s[8:11], s[0:1], 40
    s_load_dwordx2 s[40:41], s[0:1], 56
    v_lshlrev_b32 v10, 4, v1
    s_mul_i32 s33, s{XCD}, 30
    s_add_u32 s33, s33, s{LOC}         ; job
    s_mul_i32 s34, s33, 6554
    s_lshr_b32 s34, s34, 16            ; b
    s_mul_i32 s35, s34, 10
    s_sub_u32 s35, s33, s35
    v_lshrrev_b32 v5, 3, v1
    v_and_b32 v7, 7, v1
    v_mul_u32_u24 v6, 3072, v5
    v_lshl_add_u32 v11, v7, 4, v6
    v_mul_u32_u24 v6, 1280, v5
    v_lshl_add_u32 v12, v7, 4, v6
    v_bfe_u32 v6, v1, 2, 2
    v_lshl_add_u32 v6, v4, 3, v6
    v_lshlrev_b32 v6, 7, v6
    v_and_b32 v8, 3, v1
    v_lshl_add_u32 v6, v8, 3, v6
    v_add_u32 v13, {L_FW}, v6
    v_mov_b32 v30, {M_PURE}
    s_mul_i32 s38, s35, 64*3072
    s_lshl_b32 s36, s34, 7
    s_add_u32 s38, s38, s36
    s_mul_i32 s39, s34, 64*1280
    s_lshl_b32 s36, s35, 7
    s_add_u32 s39, s39, s36
    s_waitcnt lgkmcnt(0)""")
    epoch_load(a)
    srd(a, SX, 4, 2621440)
    srd(a, SW, 40, 1966080)
    srd(a, SS, 12, WS_END)
    srd(a, SA, 8, 1966080)
    srd(a, SB, 10, 1966080)
    epoch_fin(a)
    stamp(a, 1)
    if OPT["fprio"]:
        a(f"s_setprio {OPT['fprio']}")
    def weights():
        for m in range(3):
            for i in range(8):
                s_, v_, so, st = ((SA, 11, 38, 3072), (SB, 11, 38, 3072), (SW, 12, 39, 1280))[m]
                a(f"""s_mov_b32 m0, {L_FW+m*8192+i*1024}
                s_add_u32 s36, s{so}, {i*8*st}
                buffer_load_dwordx4 v{v_}, s[{s_}:{s_+3}], s36 offen {OPT['fnt']} lds""")
    for i in range(9):
        a("s_barrier")
    a(f"s_cmp_eq_u32 s{CT}, 15\ns_cbranch_scc1 L_f_now")
    weights()
    a(f"""L_f_now:
    s_barrier
    s_barrier
    {"" if OPT["cearly"] else "s_waitcnt vmcnt(0)"}
    s_cmp_lg_u32 s{CT}, 15
    s_cbranch_scc1 L_f_c
    s_barrier
    L_f_c:""")
    stamp(a, 2)
    a(f"s_mov_b32 s36, {WS_CAND}")
    poll(a, f"buffer_load_dwordx4 v[24:27], v10, s[24:27], s36 offen sc1", [25, 27])
    stamp(a, 3)
    top2(a, 24, 26, 21, 40, 41, 44)
    key_decode(a, 40, 42, 46, 36)
    key_decode(a, 41, 43, 47, 36)
    a(f"""v_mov_b32 v16, s42
    v_mov_b32 v17, s43
    v_mov_b32 v18, s46
    v_mov_b32 v19, s47
    v_or_b32 v16, 0x10000, v16
    ds_write_b128 v30, v[16:19] offset:16
    v_mov_b32 v20, s42
    v_and_b32 v6, 1, v1
    v_cmp_eq_u32 s[44:45], 0, v6
    s_lshl_b32 s36, s35, 7
    s_nop 0
    v_cndmask_b32_e64 v7, v17, v20, s[44:45]
    v_mul_u32_u24 v7, 1280, v7
    v_lshl_add_u32 v7, v4, 4, v7
    s_cmp_lg_u32 s{CT}, 15
    s_cbranch_scc1 L_f_job""")
    lds_add(a, O_FD)
    a("s_waitcnt lgkmcnt(0)")
    finish(a)
    a(f"""L_f_job:
    buffer_load_dwordx4 v[32:35], v7, s[16:19], s36 offen
    buffer_load_dwordx4 v[36:39], v7, s[16:19], s36 offen offset:64
    v_cmp_eq_u32 s[44:45], 1, v4
    v_cmp_eq_u32 s[46:47], 2, v4
    v_cmp_eq_u32 s[48:49], 3, v4
    ds_read_b32 v31, v30
    s_waitcnt lgkmcnt(0)
    v_readfirstlane_b32 s{PURE}, v31""")
    stamp(a, 4)
    a("s_barrier")
    for t in range(4):
        for ks in range(2):
            o = 16384 + ks * 4096 + t * 32
            r = 128 + t * 8 + ks * 4
            a(f"""ds_read_b64_tr_b16 v[{r}:{r+1}], v13 offset:{o}
            ds_read_b64_tr_b16 v[{r+2}:{r+3}], v13 offset:{o+512}""")
        if t == 1:
            a("s_waitcnt lgkmcnt(0)")
    a("s_waitcnt vmcnt(0)")
    for m in range(2):
        for t in range(4):
            d = 64 + (m * 4 + t) * 4
            f = 40 + (t & 1) * 8
            for ks in range(2):
                o = m * 8192 + ks * 4096 + t * 32
                a(f"""ds_read_b64_tr_b16 v[{f+4*ks}:{f+4*ks+1}], v13 offset:{o}
                ds_read_b64_tr_b16 v[{f+4*ks+2}:{f+4*ks+3}], v13 offset:{o+512}""")
            a("s_waitcnt lgkmcnt(0)")
            for ks in range(2):
                a(f"v_mfma_f32_16x16x32_bf16 {vr(d,4)}, {vr(32+4*ks,4)}, {vr(f+4*ks,4)}, {'0' if ks == 0 else vr(d,4)}")
    lds_add(a, O_FD)
    a(f"""s_lshl_b32 s36, s33, 10
    s_add_u32 s36, s36, {WS_P1}
    s_nop 2""")
    for m in range(2):
        for tk in range(2):
            sel_by_g(a, 96 + m * 2 + tk, 64 + m * 16 + tk, 4, False)
    a(f"""buffer_store_dwordx4 v[96:99], v10, s[24:27], s36 offen sc1
    s_lshl_b32 s40, s34, 7
    s_add_u32 s40, s40, {WS_FP}
    s_lshl_b32 s37, s35, 2
    s_add_u32 s36, s40, s37
    v_min_u32 v5, 9, v1
    v_lshlrev_b32 v5, 2, v5
    s_waitcnt vmcnt(0) lgkmcnt(0)""")
    flag_store(a, 36, True)
    stamp(a, 5)
    poll(a, "buffer_load_dword v6, v5, s[24:27], s40 offen sc1", [6])
    stamp(a, 6)
    a(f"""s_mul_i32 s36, s34, 10240
    s_add_u32 s36, s36, {WS_P1}
    s_add_u32 s37, s36, 4096
    s_add_u32 s38, s36, 8192""")
    for i in range(10):
        a(f"buffer_load_dwordx4 {vr(32+4*i,4)}, v10, s[24:27], s{36+i//4} offen offset:{(i%4)*1024} sc1")
    a("s_waitcnt vmcnt(0)")
    stamp(a, 7)
    for i in range(1, 10):
        for j in (0, 2):
            a(f"v_pk_add_f32 {vr(32+j,2)}, {vr(32+j,2)}, {vr(32+4*i+j,2)}")
    for tk in range(2):
        sigmoid(a, 14 + tk, f"v{32+tk}")
        a(f"v_mul_f32 v{14+tk}, v{14+tk}, v{32+tk}\nv_mul_f32 v{14+tk}, v{14+tk}, v{34+tk}")
    a(f"""v_cvt_pk_bf16_f32 v14, v14, v15
    v_lshl_add_u32 v6, v1, 1, v30
    ds_write_b16 v6, v14 offset:256
    ds_write_b16_d16_hi v6, v14 offset:384
    v_and_b32 v7, 1, v1
    v_lshl_add_u32 v7, v7, 7, v30
    v_lshl_add_u32 v7, v4, 4, v7
    s_waitcnt lgkmcnt(0)
    ds_read_b128 v[32:35], v7 offset:256
    ds_read_b128 v[36:39], v7 offset:320
    s_waitcnt lgkmcnt(0)""")
    for t in range(4):
        d = 64 + t * 4
        for ks in range(2):
            a(f"v_mfma_f32_16x16x32_bf16 {vr(d,4)}, {vr(32+4*ks,4)}, {vr(128+t*8+4*ks,4)}, {'0' if ks == 0 else vr(d,4)}")
    a(f"""s_lshl_b32 s36, s33, 10
    s_add_u32 s36, s36, {WS_P2}
    s_nop 5""")
    for tk in range(2):
        sel_by_g(a, 96 + tk * 2, 64 + tk, 4)
    a("buffer_store_dwordx4 v[96:99], v10, s[24:27], s36 offen sc1")
    stamp(a, 8)
    finish(a)


def main(out):
    a = Asm()
    head = f"""; gated mix of sliding-window attention and a top-2 routed FFN: one fused launch (written by a generator script)
; @launch grid=(256,1,1) block=(640,1,1) lds={LDS_BYTES}
.amdgcn_target "amdgcn-amd-amdhsa--gfx950"
.text
"""
    entry(a)
    loader(a)
    compute(a)
    stubs = attention(a)
    outproj(a)
    helper1(a)
    ffn(a)
    router_loader(a)
    router(a)
    att_stubs(a, stubs)
    stamp_out(a)
    a("L_exit:\ns_endpgm\nL_code_end:")
    body = a.text().replace("s_mov_b32 s43, 0\n    s_waitcnt lgkmcnt(0)", "s_mov_b32 s43, 0\n    s_movk_i32 s45, 0x4000\n    s_waitcnt lgkmcnt(0)")
    if OPT["al"]:
        body = align_fix(body, [("L_g_loop", "L_g_end"), ("L_att_go", "L_att_fin"), ("L_op_loop", "L_op_end")])
    bad = check_hazards(body)
    tail = f""".section .rodata,"a"
.p2align 6
.amdhsa_kernel {NAME}_kernel
  .amdhsa_next_free_vgpr 168
  .amdhsa_next_free_sgpr 96
  .amdhsa_accum_offset 168
  .amdhsa_group_segment_fixed_size 0
  .amdhsa_kernarg_size 96
  .amdhsa_user_sgpr_count 2
  .amdhsa_user_sgpr_kernarg_segment_ptr 1
  .amdhsa_system_sgpr_workgroup_id_x 1
.end_amdhsa_kernel
"""
    open(out, "w").write(head + body + tail)
    print("written", out, "hazards:", len(bad))


if __name__ == "__main__":
    main(sys.argv[1])
```

```python
import sys, struct
from asmlib import Asm, vr, sr, check_hazards, align_fix

NAME = "gated_mix__sliding_block__moe_arch_mod__prompt"
def f32(x): return "0x%08x" % struct.unpack("<I", struct.pack("<f", x))[0]
LOG2E = 1.4426950408889634
QSCALE = (20 ** -0.5) * LOG2E

OPT = dict(stamp=0, dual=0, pre=0, xnt="", fnt="", rot=1, b11=0, wpf=0, rnt="", worot=1, fprio=3, cearly=1, aprio=2, tlb=0, hdel=1, nowo=0, xsc=0, epx=0, rowmap=1, qloc=0, qat=-1, tlb0=0, wod=0, nl0=8, al=1, pf=1, xpf=0, swap=0, prio=1, osc="", forceimp=0, forcefb=0, probe="")
for _a in sys.argv[2:]:
    k, v = _a.split("=")
    OPT[k] = int(v) if v.lstrip("-").isdigit() else v

WS_L, WS_R = 0, 0x800000
WS_G, WS_CAND, WS_XID, WS_FL, WS_FP, WS_FO = 0x1000000, 0x1010000, 0x1020000, 0x1030000, 0x1040000, 0x1050000
WS_P1, WS_P2, WS_EP, WS_ST, WS_END = 0x1060000, 0x10E0000, 0x1120000, 0x1200000, 0x1300000
WS_FR = 0x1038000
XB = 240 * 4096
CS = 8192 + 64
L_K, L_V = 0, 3 * CS + 64
L_WO = 49664
L_ONES = L_WO + 102400 + 192
L_MISC = L_ONES + 5120 + 64
L_H, L_Y = L_MISC + 256, L_MISC + 512
LDS_BYTES = 163840
L_RW = 49152
L_FW = L_WO + 13 * 5120
L_XT = L_FW + 24576
L_WV = L_FW
M_PURE, M_HALO, M_TOP = L_MISC, L_MISC + 4, L_MISC + 16
O_WO, O_FD, O_ATT, O_Y, O_R, O_B2 = 8, 12, 32, 36, 40, 44
assert L_V % 256 == 0 and L_ONES % 256 == 192 and L_XT + 10240 <= L_WO + 102400 and L_Y + 1920 <= LDS_BYTES
SPIN = 0x8000

WAVE, XCD, LOC, RBL, CT, TAG, PURE = 28, 29, 30, 31, 32, 60, 61
SX, SW, SS, SA, SB = 16, 20, 24, 52, 56


def srd(a, d, p, n):
    a(f"""s_mov_b32 s{d}, s{p}
    s_mov_b32 s{d+1}, s{p+1}
    s_mov_b32 s{d+2}, {n}
    s_mov_b32 s{d+3}, 0x20000""")


def stamp(a, i):
    if OPT["probe"]:
        if str(i) in OPT["probe"].split("_"):
            a(f"s_memrealtime s[{62+2*i}:{63+2*i}]\ns_waitcnt lgkmcnt(0)")
        return
    if OPT["stamp"]:
        if i == 0:
            a("s_memrealtime s[94:95]")
            for j in range(1, 15):
                a(f"s_mov_b32 s{62+2*j}, 0")
        a(f"{'s_memtime' if OPT['stamp'] == 1 else 's_memrealtime'} s[{62+2*i}:{63+2*i}]\ns_waitcnt lgkmcnt(0)")


def finish(a):
    if OPT["stamp"]:
        a("s_branch L_stampout")
    else:
        a("s_endpgm")


def stamp_out(a):
    if OPT["stamp"]:
        n = 14
        a(f"""L_stampout:
        s_waitcnt vmcnt(0)
        {'s_memtime' if OPT['stamp'] == 1 else 's_memrealtime'} s[{62+2*n}:{63+2*n}]
        s_memrealtime s[92:93]
        s_waitcnt lgkmcnt(0)
        s_lshl_b32 s3, s2, 4
        s_add_u32 s3, s3, s{WAVE}
        s_lshl_b32 s3, s3, 7
        s_add_u32 s3, s3, {WS_ST}
        s_mov_b64 exec, 1
        v_mov_b32 v0, 0""")
        for i in range(n + 1):
            a(f"v_mov_b32 v1, s{62+2*i}\nbuffer_store_dword v1, v0, s[24:27], s3 offen offset:{4*i}")
        for i in range(2, 10):
            a(f"v_readlane_b32 s4, v166, {i}\ns_nop 1\nv_mov_b32 v1, s4\nbuffer_store_dword v1, v0, s[24:27], s3 offen offset:{64+4*(i-2)}")
        a("v_mov_b32 v1, s94\nbuffer_store_dword v1, v0, s[24:27], s3 offen offset:120")
        a("v_mov_b32 v1, s92\nbuffer_store_dword v1, v0, s[24:27], s3 offen offset:124")
        a("s_endpgm")


def wave_max_u32(a, v, sdst):
    for m in ("row_shr:1 row_mask:0xf bank_mask:0xf bound_ctrl:1", "row_shr:2 row_mask:0xf bank_mask:0xf bound_ctrl:1",
              "row_shr:4 row_mask:0xf bank_mask:0xf bound_ctrl:1", "row_shr:8 row_mask:0xf bank_mask:0xf bound_ctrl:1",
              "row_bcast:15 row_mask:0xa bank_mask:0xf", "row_bcast:31 row_mask:0xc bank_mask:0xf"):
        a(f"s_nop 1\nv_max_u32_dpp v{v}, v{v}, v{v} {m}")
    a(f"s_nop 0\nv_readlane_b32 s{sdst}, v{v}, 63")


def top2(a, k1, k2, t, s1, s2, sm):
    a(f"v_max_u32 v{t}, v{k1}, v{k2}")
    wave_max_u32(a, t, s1)
    a(f"""s_nop 1
    v_cmp_ne_u32 s[{sm}:{sm+1}], s{s1}, v{k1}
    s_nop 1
    v_cndmask_b32_e64 v{k1}, 0, v{k1}, s[{sm}:{sm+1}]
    v_cmp_ne_u32 s[{sm}:{sm+1}], s{s1}, v{k2}
    s_nop 1
    v_cndmask_b32_e64 v{k2}, 0, v{k2}, s[{sm}:{sm+1}]
    v_max_u32 v{t}, v{k1}, v{k2}""")
    wave_max_u32(a, t, s2)


def key_decode(a, sk, stok, sval, st):
    a(f"""s_and_b32 s{stok}, s{sk}, 0xffff
    s_sub_u32 s{stok}, 0xffff, s{stok}
    s_and_b32 s{stok}, s{stok}, 0x7ff
    s_ashr_i32 s{st}, s{sk}, 31
    s_not_b32 s{st}, s{st}
    s_or_b32 s{st}, s{st}, 0x80000000
    s_xor_b32 s{sval}, s{sk}, s{st}
    s_and_b32 s{sval}, s{sval}, 0xffff0000""")


def sigmoid(a, d, s):
    a(f"""v_mul_f32 v{d}, {f32(-LOG2E)}, {s}
    v_exp_f32 v{d}, v{d}
    s_nop 0
    v_add_f32 v{d}, 1.0, v{d}
    v_rcp_f32 v{d}, v{d}
    s_nop 0""")


def epoch_load(a):
    a(f"""s_add_u32 s14, s12, {WS_EP}
    s_addc_u32 s15, s13, 0
    s_load_dword s{TAG}, s[14:15], 0""")


def epoch_fin(a):
    a(f"s_waitcnt lgkmcnt(0)\ns_add_u32 s{TAG}, s{TAG}, 0x9e3779b9")


_uid = [0]
def uid(p):
    _uid[0] += 1
    return f"L_{p}{_uid[0]}"


def poll(a, load, tagregs, mask=None, tmp=9, pre=False):
    lp, out = uid("poll"), uid("pout")
    a(f"s_mov_b32 s50, {SPIN}")
    if pre:
        a(f"s_branch {lp}p")
    a(f"{lp}:")
    a(load)
    if pre:
        a(f"{lp}p:")
    a(f"""s_sub_u32 s50, s50, 1
    s_cbranch_scc1 {out}
    s_waitcnt vmcnt(0)""")
    if len(tagregs) == 1:
        a(f"v_cmp_ne_u32 vcc, s{TAG}, v{tagregs[0]}")
    else:
        a(f"v_xor_b32 v{tmp}, s{TAG}, v{tagregs[0]}")
        for r in tagregs[1:]:
            a(f"v_xor_b32 v{tmp-1}, s{TAG}, v{r}\nv_or_b32 v{tmp}, v{tmp}, v{tmp-1}")
        a(f"v_cmp_ne_u32 vcc, 0, v{tmp}")
    if mask:
        a(f"s_and_b64 vcc, vcc, {mask}")
    a(f"s_cbranch_vccnz {lp}\n{out}:\ns_waitcnt vmcnt(0)")


def spoll(a, loads, pairs):
    lp, out = uid("sp"), uid("so")
    a(f"s_mov_b32 s50, {SPIN}\n{lp}:")
    a(loads)
    a(f"""s_waitcnt lgkmcnt(0)
    s_sub_u32 s50, s50, 1
    s_cbranch_scc1 {out}
    s_xor_b64 s[36:37], s[{pairs[0]}:{pairs[0]+1}], s[38:39]""")
    for p in pairs[1:]:
        a(f"""s_xor_b64 s[{p}:{p+1}], s[{p}:{p+1}], s[38:39]
        s_or_b64 s[36:37], s[36:37], s[{p}:{p+1}]""")
    a(f"s_cbranch_scc1 {lp}\n{out}:")


def lds_wait(a, off, val, vt=9, pre=False):
    lp, out = uid("lw"), uid("lo")
    a(f"s_mov_b32 s50, {SPIN*8}")
    if pre:
        a(f"s_branch {lp}p")
    a(f"""{lp}:
    ds_read_b32 v{vt}, v30 offset:{off}""")
    if pre:
        a(f"{lp}p:")
    a(f"""s_sub_u32 s50, s50, 1
    s_cbranch_scc1 {out}
    s_waitcnt lgkmcnt(0)
    v_cmp_ne_u32 vcc, {val}, v{vt}
    s_cbranch_vccnz {lp}
    {out}:""")


def lds_add(a, off, vt=9):
    a(f"""v_mov_b32 v{vt}, 1
    s_mov_b64 exec, 1
    ds_add_u32 v30, v{vt} offset:{off}
    s_mov_b64 exec, -1""")


def flag_store(a, soff, local, vt=8):
    a(f"""v_mov_b32 v{vt}, s{TAG}
    v_mov_b32 v{vt+1}, 0
    s_mov_b64 exec, 1""")
    if local:
        l1, l2 = uid("fs"), uid("fe")
        a(f"""s_cmp_eq_u32 s{PURE}, 0
        s_cbranch_scc1 {l1}
        buffer_store_dword v{vt}, v{vt+1}, s[24:27], s{soff} offen
        s_branch {l2}
        {l1}:
        buffer_store_dword v{vt}, v{vt+1}, s[24:27], s{soff} offen sc1
        {l2}:""")
    else:
        a(f"buffer_store_dword v{vt}, v{vt+1}, s[24:27], s{soff} offen sc1")
    a("s_mov_b64 exec, -1")


def two_flavours(a, body):
    l1, l2 = uid("imp"), uid("ime")
    a(f"s_cmp_eq_u32 s{PURE}, 0\ns_cbranch_scc1 {l1}")
    body("")
    a(f"s_branch {l2}\n{l1}:")
    body("sc1")
    a(f"{l2}:")


def router_loader(a):
    a("""L_rld:
    s_load_dwordx2 s[8:9], s[0:1], 16
    s_add_u32 s41, s40, 98304
    s_branch L_rld_issue
    L_rld_loop:
    s_waitcnt vmcnt(12) lgkmcnt(0)
    s_barrier
    L_rld_issue:
    s_lshl_b32 s36, s33, 7
    s_add_u32 s36, s36, s34""")
    for n in range(4):
        a(f"""s_add_u32 m0, s40, {n*4096}
        s_add_u32 s38, s36, {n*40960}
        buffer_load_dwordx4 v10, s[16:19], s38 offen {OPT['rnt']} lds""")
    kc_next(a, 33)
    a("""s_add_u32 s40, s40, 16384
    s_cmp_eq_u32 s40, s41
    s_cselect_b32 s36, 98304, 0
    s_sub_u32 s40, s40, s36
    s_add_u32 s42, s42, 1
    s_cmp_lt_u32 s42, 4
    s_cbranch_scc1 L_rld_issue
    s_cmp_lt_u32 s42, 10
    s_cbranch_scc1 L_rld_loop""")
    srd(a, SS, 12, WS_END)
    srd(a, SW, 8, 819200)
    a(f"""s_add_u32 s{TAG}, s{TAG}, 0x9e3779b9
    v_mov_b32 v30, {M_PURE}""")
    for n in (12, 8, 4, 0):
        a(f"s_waitcnt vmcnt({n})\ns_barrier")
    a("s_barrier")
    if OPT["wpf"]:
        N = OPT["wpf"]
        lds_wait(a, O_R, 4)
        a(f"""v_lshlrev_b32 v5, 7, v1
        s_lshl_b32 s36, s{RBL}, 2
        s_add_u32 s36, s36, s{WAVE}
        s_sub_u32 s36, s36, 4
        s_lshl_b32 s36, s36, 13
        s_cmp_ge_u32 s{XCD}, {N}
        s_cselect_b32 s37, 0, s{XCD}
        s_mov_b32 s42, 0
        L_wpf:
        s_lshl_b32 s38, s37, 16
        s_add_u32 s38, s38, s36
        buffer_load_dword v167, v5, s[20:23], s38 offen
        s_add_u32 s37, s37, 1
        s_cmp_eq_u32 s37, {N}
        s_cselect_b32 s37, 0, s37
        s_add_u32 s42, s42, 1
        s_cmp_lt_u32 s42, {N}
        s_cbranch_scc1 L_wpf""")
    a("s_branch L_att_setup")


def kc_init(a):
    def nib(o):
        v = sum(x << (4 * i) for i, x in enumerate(o))
        return v & 0xffffffff, v >> 32
    n0, n1, n2 = nib(range(10)), nib([1, 0, 3, 2, 5, 4, 7, 6, 9, 8]), nib([0, 2, 1, 4, 3, 6, 5, 8, 7, 9])
    a(f"s_mov_b32 s46, {n0[0]:#x}\ns_movk_i32 s47, {n0[1]:#x}")
    if OPT["swap"]:
        a(f"""s_and_b32 s36, s{LOC}, {3 if OPT["swap"] == 1 else 1}
        s_cmp_eq_u32 s36, 1
        s_cselect_b32 s46, {n1[0]:#x}, s46
        s_cselect_b32 s47, {n1[1]:#x}, s47
        s_cmp_eq_u32 s36, 3
        s_cselect_b32 s46, {n2[0]:#x}, s46
        s_cselect_b32 s47, {n2[1]:#x}, s47""")
    n3 = nib([2, 3, 4, 5, 6, 7, 8, 9, 0, 1])
    a(f"""s_cmp_eq_u32 s{CT}, 15
    s_cselect_b32 s46, {n3[0]:#x}, s46
    s_cselect_b32 s47, {n3[1]:#x}, s47""")


def kc_next(a, d):
    a(f"""s_and_b32 s{d}, s46, 15
    s_lshr_b64 s[46:47], s[46:47], 4""")
    if OPT["rot"]:
        a(f"""s_add_u32 s{d}, s{d}, s{XCD}
        s_sub_u32 s36, s{d}, 10
        s_cselect_b32 s{d}, s{d}, s36""")


def entry(a):
    a(f""".globl {NAME}_kernel
    .p2align 8
    .type {NAME}_kernel,@function
    {NAME}_kernel:""")
    a("""s_cmp_ge_u32 s2, 256
    s_cbranch_scc1 L_exit""")
    stamp(a, 0)
    a(f"""s_load_dwordx4 s[4:7], s[0:1], 0
    s_load_dwordx2 s[12:13], s[0:1], 88
    v_lshrrev_b32 v2, 6, v0
    v_and_b32 v1, 63, v0
    v_readfirstlane_b32 s{WAVE}, v2
    s_and_b32 s{XCD}, s2, 7
    s_lshr_b32 s{LOC}, s2, 3
    s_and_b32 s{RBL}, s{LOC}, 1
    s_lshr_b32 s{CT}, s{LOC}, 1
    v_lshrrev_b32 v4, 4, v1""")
    if OPT["pf"]:
        a(f"""s_cmp_lg_u32 s{WAVE}, 0
        s_cbranch_scc1 L_nopf
        s_getpc_b64 s[36:37]
        L_pc:
        s_and_b32 s38, s{LOC}, 3
        s_mul_i32 s38, s38, 5120
        v_min_u32 v5, 39, v1
        v_lshl_add_u32 v5, v5, 7, s38
        v_min_u32 v5, L_code_end-L_pc-4, v5
        global_load_dword v167, v5, s[36:37]
        L_nopf:""")
    a(f"""s_cmp_lt_u32 s{WAVE}, 4
    s_cbranch_scc1 L_compute
    s_cmp_ge_u32 s{WAVE}, 8
    s_cbranch_scc1 L_help""")


def loader(a):
    a(f"""v_and_b32 v2, 3, v2
    v_lshrrev_b32 v3, 3, v1
    v_lshl_add_u32 v3, v2, 3, v3
    v_mul_u32_u24 v3, 1280, v3
    v_lshl_add_u32 v5, v2, 2, v4
    v_xor_b32 v6, v5, v1
    v_and_b32 v6, 7, v6
    v_lshl_add_u32 v10, v6, 4, v3
    v_mul_u32_u24 v5, 3840, v5
    v_lshrrev_b32 v6, 1, v2
    v_lshl_add_u32 v6, v6, 2, v4
    v_lshlrev_b32 v6, 1, v6
    v_xor_b32 v6, v6, v1
    v_and_b32 v6, 15, v6
    v_lshl_add_u32 v11, v6, 4, v5
    s_lshl_b32 s34, s{XCD}, 1
    s_add_u32 s34, s34, s{RBL}
    s_mul_i32 s34, s34, 128*1280
    s_lshl_b32 s35, s{CT}, 8
    s_and_b32 s40, s{WAVE}, 3
    s_lshl_b32 s40, s40, 10
    s_add_u32 s41, s40, 49152
    s_mov_b32 s42, 0
    s_mov_b32 s18, 2621440
    s_mov_b32 s19, 0x20000
    s_mov_b32 s22, 2457600
    s_mov_b32 s23, 0x20000""")
    kc_init(a)
    kc_next(a, 33)
    if OPT["xpf"]:
        a(f"""v_lshrrev_b32 v5, 3, v1
        s_lshl_b32 s36, s{CT}, 3
        v_add_u32 v5, s36, v5
        v_mul_u32_u24 v5, 1280, v5
        v_and_b32 v6, 7, v1
        v_add3_u32 v6, v6, {"s%d" % XCD if OPT["rot"] else 0}, 2
        v_subrev_u32 v7, 10, v6
        v_min_u32 v6, v6, v7
        v_lshl_add_u32 v12, v6, 7, v5""")
    a("""s_waitcnt lgkmcnt(0)
    s_mov_b32 s16, s4
    s_mov_b32 s17, s5
    s_mov_b32 s20, s6
    s_mov_b32 s21, s7""")
    epoch_load(a)
    stamp(a, 1)
    a(f"""s_cmp_eq_u32 s{CT}, 15
    s_cbranch_scc1 L_rld
    s_branch L_ld_issue
    L_ld_loop:
    s_waitcnt vmcnt(8) lgkmcnt(0)
    s_barrier""")
    if OPT["stamp"]:
        a("""s_memrealtime s[44:45]
        s_waitcnt lgkmcnt(0)
        s_mov_b32 m0, s42
        s_nop 0
        v_writelane_b32 v166, s44, m0""")
    a("""L_ld_issue:
    s_lshl_b32 s36, s33, 7
    s_add_u32 s36, s36, s34
    s_mul_i32 s37, s33, 245760
    s_add_u32 s37, s37, s35""")
    for n in range(4):
        a(f"""s_add_u32 m0, s40, {n*4096}
        s_add_u32 s38, s36, {n*40960}
        buffer_load_dwordx4 v10, s[16:19], s38 offen {OPT['xnt']} lds
        s_add_u32 m0, s40, {L_RW+n*4096}
        s_add_u32 s39, s37, {n*61440}
        buffer_load_dwordx4 v11, s[20:23], s39 offen lds""")
    kc_next(a, 33)
    if OPT["xpf"]:
        a(f"""s_add_u32 s36, s42, s{WAVE}
        s_cmp_lg_u32 s36, 4
        s_cbranch_scc1 L_noxpf
        buffer_load_dword v167, v12, s[16:19], s34 offen {OPT['xnt']}
        L_noxpf:""")
    a("""s_add_u32 s40, s40, 16384
    s_cmp_eq_u32 s40, s41
    s_cselect_b32 s36, 49152, 0
    s_sub_u32 s40, s40, s36
    s_add_u32 s42, s42, 1
    s_cmp_lt_u32 s42, 2
    s_cbranch_scc1 L_ld_issue
    s_cmp_lt_u32 s42, 10
    s_cbranch_scc1 L_ld_loop""")
    srd(a, SS, 12, WS_END)
    a(f"s_add_u32 s{TAG}, s{TAG}, 0x9e3779b9")
    pre = 0
    a(f"""s_waitcnt vmcnt({8+pre})
    s_barrier""")
    stamp(a, 2)
    a(f"""s_waitcnt vmcnt({pre})
    s_barrier""")
    stamp(a, 3)
    a("s_barrier")
    stamp(a, 4)
    a("s_branch L_att_setup")


ACC, F0, F1 = 32, 96, 128
def compute(a):
    a("L_compute:")
    if (OPT["qloc"] and OPT["qat"] == -1) or OPT["tlb0"]:
        a(f"""s_mul_i32 s36, s{XCD}, {XB}
        s_mov_b32 s26, {WS_END}
        s_mov_b32 s27, 0x20000""")
        if OPT["qloc"] and OPT["qat"] == -1:
            a(f"""s_lshl_b32 s37, s{LOC}, 2
            s_add_u32 s37, s37, s{WAVE}
            s_mul_i32 s37, s37, 2560
            s_add_u32 s37, s37, s36
            v_min_u32 v5, 19, v1
            v_lshlrev_b32 v5, 7, v5""")
        if OPT["tlb0"]:
            a(f"""s_sub_u32 s38, s36, {XB}
            s_max_i32 s38, s38, 0
            v_min_u32 v6, 2, v1
            v_mul_u32_u24 v6, {XB-64}, v6""")
        a("""s_waitcnt lgkmcnt(0)
        s_mov_b32 s24, s12
        s_mov_b32 s25, s13""")
        if OPT["qloc"] and OPT["qat"] == -1:
            a("buffer_load_dword v167, v5, s[24:27], s37 offen sc1")
        if OPT["tlb0"]:
            a(f"""s_cmp_lg_u32 s{WAVE}, 1
            s_cbranch_scc1 L_not0
            buffer_load_dword v167, v6, s[24:27], s38 offen sc1
            L_not0:""")
    a(f"""v_and_b32 v3, 15, v1
    s_and_b32 s36, s{WAVE}, 1          ; wc
    s_lshr_b32 s37, s{WAVE}, 1         ; wt
    s_lshl_b32 s38, s37, 13
    s_lshl_b32 s39, s{WAVE}, 12
    s_cmp_eq_u32 s{CT}, 15
    s_cselect_b32 s38, s39, s38
    v_lshrrev_b32 v5, 1, v3
    v_xor_b32 v5, v5, v4
    v_lshlrev_b32 v5, 4, v5
    v_lshl_add_u32 v12, v3, 7, v5
    v_add_u32 v12, s38, v12
    v_xor_b32 v13, 64, v12
    v_bfe_u32 v5, v1, 2, 2             ; r
    v_lshl_add_u32 v6, v4, 3, v5
    v_lshlrev_b32 v6, 8, v6
    v_and_b32 v7, 1, v4
    v_lshl_add_u32 v5, v7, 2, v5
    v_lshlrev_b32 v5, 1, v5            ; f(row)
    v_and_b32 v7, 3, v1
    s_lshl_b32 s39, s36, 3
    v_add_u32 v7, s39, v7
    v_xor_b32 v5, v5, v7
    v_lshl_add_u32 v6, v5, 4, v6
    v_bfe_u32 v5, v1, 1, 1
    v_lshl_add_u32 v6, v5, 3, v6
    v_add_u32 v14, {L_RW}, v6
    v_xor_b32 v15, 8, v14
    v_xor_b32 v16, 64, v14
    v_xor_b32 v17, 0x48, v14
    v_lshlrev_b32 v18, 4, v3
    v_lshl_add_u32 v18, v4, 12, v18
    v_mov_b32 v19, {M_PURE}
    s_mul_i32 s34, s{XCD}, {XB}
    s_lshl_b32 s39, s{CT}, 16
    s_add_u32 s34, s34, s39
    s_lshl_b32 s39, s36, 15
    s_add_u32 s34, s34, s39
    s_lshl_b32 s39, s{RBL}, 11
    s_add_u32 s34, s34, s39
    s_lshl_b32 s39, s37, 10
    s_add_u32 s34, s34, s39
    s_add_u32 s35, s34, 16384
    s_mov_b32 s42, 0
    s_mov_b32 s43, 0
    s_waitcnt lgkmcnt(0)""")
    epoch_load(a)
    srd(a, SS, 12, WS_END)
    for i in range(64):
        a(f"v_mov_b32 v{ACC+i}, 0")
    epoch_fin(a)
    stamp(a, 1)
    a(f"s_cmp_eq_u32 s{CT}, 15\ns_cbranch_scc1 L_router")

    def reads(ks, F):
        r = []
        def A(j):
            r.append(f"ds_read_b64_tr_b16 v[{F+4*j}:{F+4*j+1}], v{14+j} offset:{ks*8192}")
            r.append(f"ds_read_b64_tr_b16 v[{F+4*j+2}:{F+4*j+3}], v{14+j} offset:{ks*8192+1024}")
        A(0)
        for t in range(4):
            r.append(f"ds_read_b128 {vr(F+16+4*t,4)}, v{12+ks} offset:{t*2048}")
        A(1); A(2); A(3)
        return r

    def phase(F, rd, bar, extra):
        a("s_waitcnt lgkmcnt(6)")
        n = 0
        for j in range(4):
            if j == 1:
                a("s_waitcnt lgkmcnt(0)")
                if bar:
                    a("s_barrier")
            for t in range(4):
                d = ACC + (j * 4 + t) * 4
                a(f"v_mfma_f32_16x16x32_bf16 {vr(d,4)}, {vr(F+4*j,4)}, {vr(F+16+4*t,4)}, {vr(d,4)}")
                if j == 0:
                    a(extra[t])
                else:
                    a(rd[n]); n += 1

    a("s_barrier")
    stamp(a, 2)
    for l in reads(0, F0):
        a(l)
    a("L_g_loop:")
    phase(F0, reads(1, F1), False, ["""s_add_u32 s43, s43, 1
        s_cmp_eq_u32 s43, 3""", "s_cselect_b32 s44, -32768, 16384" if False else """s_cselect_b32 s44, 0xffff8000, s45
        """, "s_cselect_b32 s43, 0, s43\ns_add_u32 s42, s42, 1", ""])
    phase(F1, reads(0, F0), True, ["v_add_u32 v12, s44, v12\nv_add_u32 v13, s44, v13", "v_add_u32 v14, s44, v14\nv_add_u32 v15, s44, v15",
                                   "v_add_u32 v16, s44, v16\nv_add_u32 v17, s44, v17", "s_cmp_lt_u32 s42, 10"])
    a("s_cbranch_scc1 L_g_loop\nL_g_end:")
    stamp(a, 3)
    a("ds_read_b32 v20, v19")

    def epi(scale, sc="sc1"):
        for p in range(2):
            for t in range(4):
                o = F1 + (p * 4 + t) * 4
                for h in range(2):
                    d = ACC + ((2 * p + h) * 4 + t) * 4
                    if scale:
                        a(f"v_pk_mul_f32 {vr(d,2)}, {vr(d,2)}, s[38:39]\nv_pk_mul_f32 {vr(d+2,2)}, {vr(d+2,2)}, s[38:39]")
                    a(f"v_cvt_pk_bf16_f32 v{o+2*h}, v{d}, v{d+1}\nv_cvt_pk_bf16_f32 v{o+2*h+1}, v{d+2}, v{d+3}")
                a(f"buffer_store_dwordx4 {vr(o,4)}, v18, s[24:27], s{34+p} offen offset:{t*256} {sc}")
    a(f"""s_cmp_ge_u32 s{CT}, 5
    s_cbranch_scc1 L_noscale
    s_mov_b32 s38, {f32(QSCALE)}
    s_mov_b32 s39, s38""")
    if OPT["qloc"]:
        a(f"""s_waitcnt lgkmcnt(0)
        v_cmp_eq_u32 vcc, 0, v20
        s_cbranch_vccnz L_q_far""")
        epi(True, "")
        a("s_branch L_pubflag\nL_q_far:")
        for i in range(0, 64, 2):
            a(f"v_pk_mul_f32 {vr(ACC+i,2)}, {vr(ACC+i,2)}, s[38:39]")
        a("L_noscale:")
    else:
        epi(True)
        a("s_branch L_pubflag\nL_noscale:")
    epi(False)
    a(f"""L_pubflag:
    s_lshl_b32 s36, s{XCD}, 4
    s_add_u32 s36, s36, s{CT}
    s_lshl_b32 s36, s36, 1
    s_and_b32 s37, s{WAVE}, 1
    s_add_u32 s36, s36, s37
    s_lshl_b32 s40, s36, 7
    s_lshl_b32 s36, s36, 4
    s_lshl_b32 s37, s{RBL}, 3
    s_and_b32 s38, s{WAVE}, 2
    s_lshl_b32 s38, s38, 1
    s_add_u32 s37, s37, s38
    s_add_u32 s36, s36, s37
    s_add_u32 s36, s36, {WS_FL}
    s_add_u32 s40, s40, s37
    s_add_u32 s40, s40, {WS_FR}
    s_waitcnt lgkmcnt(0)
    v_readfirstlane_b32 s{PURE}, v20
    s_waitcnt vmcnt(0)""")
    stamp(a, 4)
    flag_store(a, 36, True)
    a(f"""s_cmp_lt_u32 s{CT}, 5
    s_cbranch_scc1 L_att_setup
    s_mov_b64 exec, 1
    buffer_store_dword v8, v9, s[24:27], s40 offen sc1
    s_mov_b64 exec, -1""")


def router(a):
    a("L_router:")
    kc_init(a)
    kc_next(a, 33)
    a(f"""v_and_b32 v5, 1, v1
    v_lshlrev_b32 v5, 11, v5
    v_lshl_add_u32 v14, v4, 4, v5
    v_add_u32 v14, {L_WV}, v14
    L_r_loop:
    s_barrier
    s_lshl_b32 s36, s33, 7
    v_add_u32 v15, s36, v14""")
    for ks in range(2):
        a(f"""ds_read_b128 {vr(F0+12*ks,4)}, v15 offset:{ks*64}
        ds_read_b128 {vr(F0+12*ks+4,4)}, v{12+ks}
        ds_read_b128 {vr(F0+12*ks+8,4)}, v{12+ks} offset:2048""")
    kc_next(a, 33)
    a("""s_add_u32 s43, s43, 1
    s_cmp_eq_u32 s43, 6
    s_cselect_b32 s44, 0xfffec000, s45
    s_cselect_b32 s43, 0, s43
    v_add_u32 v12, s44, v12
    v_add_u32 v13, s44, v13
    s_waitcnt lgkmcnt(0)""")
    for ks in range(2):
        for t in range(2):
            a(f"v_mfma_f32_16x16x32_bf16 {vr(ACC+4*t,4)}, {vr(F0+12*ks,4)}, {vr(F0+12*ks+4+4*t,4)}, {vr(ACC+4*t,4)}")
    a(f"""s_add_u32 s42, s42, 1
    s_cmp_lt_u32 s42, 10
    s_cbranch_scc1 L_r_loop
    s_barrier
    s_lshl_b32 s36, s{XCD}, 8
    s_lshl_b32 s37, s{RBL}, 7
    s_add_u32 s36, s36, s37
    s_lshl_b32 s37, s{WAVE}, 5
    s_add_u32 s36, s36, s37
    s_mov_b32 s37, {WS_G}""")
    stamp(a, 3)
    for t in range(2):
        a(f"""v_add3_u32 v20, s36, v3, {16*t}
        v_cvt_pk_bf16_f32 v{21+t}, v{ACC+4*t}, v{ACC+4*t+1}
        v_and_b32 v23, 0xffff0000, v{21+t}
        v_lshlrev_b32 v{21+t}, 16, v{21+t}""")
        sigmoid(a, 23, "v23")
        a(f"""v_cvt_pk_bf16_f32 v23, v23, v23
        v_and_b32 v{26+t}, 0xffff0000, v23
        v_lshlrev_b32 v24, 2, v20
        s_mov_b64 exec, 0xffff
        buffer_store_dword v{26+t}, v24, s[24:27], s37 offen sc1
        s_mov_b64 exec, -1
        v_ashrrev_i32 v24, 31, v{21+t}
        v_or_b32 v24, 0x80000000, v24
        v_xor_b32 v{21+t}, v{21+t}, v24
        v_and_b32 v{21+t}, 0xffff0000, v{21+t}
        v_sub_u32 v24, 0xffff, v20
        v_or_b32 v{21+t}, v{21+t}, v24""")
    top2(a, 21, 22, 25, 46, 47, 48)
    a(f"""s_lshr_b32 s36, s36, 1
    s_add_u32 s36, s36, {WS_CAND}
    v_mov_b32 v28, s46
    v_mov_b32 v29, s{TAG}
    v_mov_b32 v30, s47
    v_mov_b32 v31, s{TAG}
    v_mov_b32 v24, 0
    s_mov_b64 exec, 1
    buffer_store_dwordx4 v[28:31], v24, s[24:27], s36 offen sc1
    s_lshl_b32 s36, s{XCD}, 5
    s_add_u32 s36, s36, s{LOC}
    s_lshl_b32 s36, s36, 2
    s_add_u32 s36, s36, s{WAVE}
    s_lshl_b32 s36, s36, 2
    s_add_u32 s36, s36, {WS_FL}
    v_mov_b32 v9, 1
    s_waitcnt vmcnt(1)
    buffer_store_dword v29, v24, s[24:27], s36 offen sc1
    ds_add_u32 v19, v9 offset:{O_R}
    s_mov_b64 exec, -1""")
    stamp(a, 4)
    a("s_branch L_att_setup")


Q, QH, KH, K, V, P, S0, S1, O, M = 32, 36, 38, 40, 44, 52, 64, 80, 96, 112
KA, KHA, VA, QA, QHA, G, G2, XA, XR = 12, 13, 14, 15, 16, 17, 18, 19, 20
TT, NT, HI_ = 33, 34, 35
SQ, SQH = 46, 47


def diag_mask(a, old):
    a(f"""v_lshlrev_b32 v6, 2, v4
    v_sub_u32 v6, v3, v6
    v_mov_b32 v7, 0xff800000""")
    for r in range(0, 16, 2):
        k0, k1 = (r >> 2) * 8 + (r & 3), (r >> 2) * 8 + (r & 3) + 1
        a(f"""v_cmp_le_i32 s[44:45], {k0}, v6
        v_cmp_le_i32 s[48:49], {k1}, v6
        s_nop 0
        v_cndmask_b32_e64 v{S0+r}, v7, 0, s[44:45]
        v_cndmask_b32_e64 v{S0+r+1}, v7, 0, s[48:49]""")
        if old:
            a(f"""v_cndmask_b32_e64 v{M+r}, 0, v7, s[44:45]
            v_cndmask_b32_e64 v{M+r+1}, 0, v7, s[48:49]""")


def attention(a):
    SRC = WS_L
    a("L_att_setup:")
    a(f"""s_and_b32 s31, s{LOC}, 1
    s_mul_i32 s40, s{LOC}, 5
    s_lshr_b32 s40, s40, 1            ; c0
    s_sub_u32 s{TT}, 11, s{WAVE}
    s_cmp_lt_u32 s{WAVE}, 4
    s_cselect_b32 s{TT}, s{WAVE}, s{TT}
    s_add_u32 s36, s{TT}, 1
    s_cmp_eq_u32 s{XCD}, 0
    s_cselect_b32 s{NT}, s36, 9
    s_cselect_b32 s36, 4, 17
    s_movk_i32 s37, 0xff
    s_cselect_b32 s37, 0x3ff, s37
    s_lshl_b32 s36, s36, s{TT}
    s_and_b32 s{HI_}, s36, s37
    s_lshr_b32 s36, s{LOC}, 2
    s_xor_b32 s36, s36, s31
    s_andn2_b32 s41, 1, s36
    s_lshl_b32 s41, s41, 3
    s_xor_b32 s42, s31, 1
    s_lshl_b32 s42, s42, 1
    s_mul_i32 s36, s{XCD}, 240
    s_add_u32 s36, s36, s40
    s_lshl_b32 s43, s36, 12
    s_lshl_b32 s37, s{TT}, 9
    s_add_u32 s36, s43, s37
    s_lshl_b32 s38, s31, 12
    s_add_u32 s{SQ}, s36, s38
    s_lshl_b32 s38, s42, 12
    s_add_u32 s38, s38, s41
    s_add_u32 s{SQH}, s36, s38
    v_lshlrev_b32 v10, 4, v1
    v_and_b32 v3, 31, v1
    v_lshrrev_b32 v4, 5, v1
    v_lshlrev_b32 v5, 4, v3
    v_lshl_add_u32 v{QA}, v4, 12, v5
    v_lshl_add_u32 v{QHA}, v4, 28, v5
    s_mul_i32 s38, s31, {CS}
    s_add_u32 s38, s38, s37
    v_mul_u32_u24 v6, {CS}, v4
    v_add3_u32 v{KA}, v6, v5, s38
    s_mul_i32 s38, s42, {CS}
    s_add_u32 s38, s38, s41
    s_add_u32 s38, s38, s37
    v_add_u32 v6, s38, v5
    v_mov_b32 v9, {L_ONES}
    v_cmp_eq_u32 s[44:45], 0, v4
    v_bfe_u32 v7, v1, 4, 1
    v_and_b32 v8, 3, v1
    v_cndmask_b32_e64 v{KHA}, v9, v6, s[44:45]
    v_lshl_add_u32 v6, v7, 2, v8      ; gamma
    v_add_u32 v7, s31, v6
    v_lshrrev_b32 v8, 1, v7
    v_add_u32 v11, s40, v8
    v_lshrrev_b32 v11, 1, v11
    v_xor_b32 v7, v7, v11
    v_and_b32 v7, 1, v7
    v_mul_u32_u24 v8, {CS}, v8
    v_lshl_add_u32 v8, v7, 3, v8
    s_add_u32 s38, s37, {L_V}
    v_add_u32 v8, s38, v8
    v_cmp_gt_u32 s[44:45], 5, v6
    v_bfe_u32 v7, v1, 2, 2
    v_lshl_add_u32 v7, v4, 2, v7
    v_cndmask_b32_e64 v8, v9, v8, s[44:45]
    v_lshl_add_u32 v{VA}, v7, 4, v8""")
    diag_mask(a, True)
    a(f"""s_lshr_b32 s36, s{WAVE}, 2
    s_mul_i32 s37, s36, {L_V}
    s_add_u32 s36, s36, 1
    s_mul_i32 s36, s36, {80*4096}
    s_add_u32 s36, s36, s43
    s_and_b32 s38, s{WAVE}, 3
    s_mul_i32 s38, s38, 3
    v_and_b32 v5, 15, v1
    v_mul_u32_u24 v6, 160, v5
    v_lshrrev_b32 v7, 4, v1
    v_lshl_add_u32 v6, v7, 3, v6
    s_and_b32 s39, s{WAVE}, 3
    s_mul_i32 s44, s39, 2560
    v_add_u32 v{XA}, s44, v6
    s_and_b32 s44, s{LOC}, 3
    s_lshl_b32 s44, s44, {5 if OPT["rowmap"] else 6}
    s_lshl_b32 s45, s{XCD}, 8
    s_add_u32 s48, s44, s45
    s_and_b32 s44, s39, 1
    s_lshl_b32 s44, s44, 4
    s_add_u32 s51, s48, s44
    s_and_b32 s44, s39, 2
    s_lshl_b32 s44, s44, {6 if OPT["rowmap"] else 4}
    s_add_u32 s51, s51, s44
    s_lshl_b32 s39, s{TT}, 5
    s_add_u32 s39, s39, s45
    v_add_lshl_u32 v6, s39, v3, 2
    v_add_lshl_u32 v7, s51, v5, 2
    s_mov_b32 s39, {WS_G}
    v_add_u32 v11, {L_XT}, v{XA}
    v_mul_u32_u24 v8, 6554, v0
    v_lshrrev_b32 v8, 16, v8
    v_mul_u32_u24 v9, 10, v8
    v_sub_u32 v9, v0, v9
    v_mul_u32_u24 v8, 1280, v8
    v_lshl_add_u32 v8, v9, 4, v8
    s_mul_i32 s48, s48, 1280
    s_lshr_b32 s49, s{LOC}, 2
    s_mul_i32 s49, s49, 160
    s_add_u32 s48, s48, s49
    s_lshl_b32 s49, s{WAVE}, 10
    v_mov_b32 v30, {M_PURE}
    s_mov_b32 s40, 0""")
    srd(a, SX, 4, 2621440)
    a("s_barrier")
    stamp(a, 5)
    for i in range(3):
        a(f"""s_add_u32 s44, s38, {i}
        s_lshr_b32 s45, s44, 2
        s_mul_i32 s45, s45, {CS-4096}
        s_lshl_b32 s44, s44, 10
        s_add_u32 s45, s45, s44
        s_add_u32 s45, s45, s37
        s_add_u32 m0, s45, 4096
        s_add_u32 s44, s44, s36
        buffer_load_dwordx4 v10, s[24:27], s44 offen sc1 lds""")
    a(f"""buffer_load_dwordx4 {vr(Q,4)}, v{QA}, s[24:27], s{SQ} offen sc1
    buffer_load_dwordx2 {vr(QH,2)}, v{QHA}, s[24:27], s{SQH} offen sc1
    buffer_load_dword v{G}, v6, s[24:27], s39 offen sc1
    buffer_load_dword v{G2}, v7, s[24:27], s39 offen sc1""")
    a(f"""s_cmp_ge_u32 s{WAVE}, 5
    s_cbranch_scc1 L_nox
    s_add_u32 m0, s49, {L_XT}
    s_add_u32 s44, s48, {(128 if OPT['rowmap'] else 32)*1280}
    buffer_load_dwordx4 v8, s[16:19], s48 offen lds
    s_add_u32 m0, s49, {L_XT+5120}
    s_nop 0
    buffer_load_dwordx4 v8, s[16:19], s44 offen lds
    L_nox:
    s_waitcnt vmcnt(0)""")
    lds_add(a, O_B2)
    lds_wait(a, O_B2, 8)
    if OPT["aprio"]:
        a(f"s_setprio {OPT['aprio']}")
    stamp(a, 6)
    for t in range(5):
        a(f"ds_read_b64 {vr(XR+2*t,2)}, v11 offset:{t*32}")
    lds_add(a, O_FD)
    off = lambda i: (8 - i) * 512
    rdK = lambda i: f"ds_read_b128 {vr(K,4)}, v{KA} offset:{off(i)}"
    rdKH = lambda i: f"ds_read_b64 {vr(KH,2)}, v{KHA} offset:{off(i)}"
    rdV = lambda i, h: f"ds_read_b64_tr_b16 {vr(V+4*h,2)}, v{VA} offset:{off(i)+256*h}\nds_read_b64_tr_b16 {vr(V+4*h+2,2)}, v{VA} offset:{off(i)+256*h+128}"
    stubs = []
    def halo_check(tval):
        stubs.append(tval)
        a(f"s_bitcmp1_b32 s{HI_}, {tval}\ns_cbranch_scc1 L_hw{tval}\nL_hr{tval}:")
    a("L_att_go:")
    a(rdK(0)); a(rdKH(0)); a(rdV(0, 0))
    a("ds_read_b32 v31, v30")
    halo_check(0)
    a(f"""s_waitcnt lgkmcnt(3)
    v_mfma_f32_32x32x16_bf16 {vr(S0,16)}, {vr(K,4)}, {vr(Q,4)}, {vr(S0,16)}""")
    a(rdK(1))
    a(f"v_mfma_f32_32x32x8_bf16 {vr(S0,16)}, {vr(KH,2)}, {vr(QH,2)}, {vr(S0,16)}")
    a(rdKH(1))
    a(f"s_nop 5\ns_waitcnt lgkmcnt(0)\nv_readfirstlane_b32 s{PURE}, v31")

    def softq(S, q):
        for j in range(4):
            a(f"v_exp_f32 v{S+4*q+j}, v{S+4*q+j}")
        for j in range(2):
            a(f"v_cvt_pk_bf16_f32 v{P+2*q+j}, v{S+4*q+2*j}, v{S+4*q+2*j+1}")

    for i in range(9):
        S, SN = (S0, S1) if i % 2 == 0 else (S1, S0)
        halo_check(i + 1)
        if i > 0:
            a("s_waitcnt lgkmcnt(2)")
        if i < 8:
            c = vr(M, 16) if i + 1 == 8 else "0"
            a(f"v_mfma_f32_32x32x16_bf16 {vr(SN,16)}, {vr(K,4)}, {vr(Q,4)}, {c}")
        nread = 0
        if i < 7:
            a(rdK(i + 2)); nread += 1
        softq(S, 0)
        if i > 0:
            a(f"v_mfma_f32_32x32x16_bf16 {vr(O,16)}, {vr(V+4,4)}, {vr(P+4,4)}, {vr(O,16)}")
        a(rdV(i, 1)); nread += 2
        softq(S, 1)
        if i < 8:
            a(f"v_mfma_f32_32x32x8_bf16 {vr(SN,16)}, {vr(KH,2)}, {vr(QH,2)}, {vr(SN,16)}")
        if i < 7:
            a(rdKH(i + 2)); nread += 1
        softq(S, 2)
        a(f"s_waitcnt lgkmcnt({nread})")
        a(f"v_mfma_f32_32x32x16_bf16 {vr(O,16)}, {vr(V,4)}, {vr(P,4)}, {'0' if i == 0 else vr(O,16)}")
        if i < 8:
            a(rdV(i + 1, 0))
        softq(S, 3)
    a(f"""L_att_fin:
    s_waitcnt lgkmcnt(0)
    s_nop 0
    v_mfma_f32_32x32x16_bf16 {vr(O,16)}, {vr(V+4,4)}, {vr(P+4,4)}, {vr(O,16)}
    s_lshl_b32 s36, s{XCD}, 3
    s_add_u32 s36, s36, s{TT}
    s_lshl_b32 s36, s36, 5
    s_add_u32 s36, s36, s{LOC}
    s_lshl_b32 s36, s36, 2
    s_add_u32 s36, s36, {WS_FO}
    s_mov_b32 s37, {f32(2.0**-64)}
    s_mov_b32 s38, {f32(2.0**64 if not OPT['forcefb'] else 2.0**12)}
    s_nop 3
    v_rcp_f32 v8, v{O+12}
    v_cmp_nle_f32 s[44:45], s37, v{O+12}
    v_cmp_nge_f32 vcc, s38, v{O+12}
    v_mul_f32 v8, v8, v{G}
    s_or_b64 vcc, vcc, s[44:45]
    s_cbranch_vccnz L_fallback
    L_att_ok:""")
    for r in range(12):
        a(f"v_mul_f32 v{O+r}, v8, v{O+r}")
    for r in range(6):
        a(f"v_cvt_pk_bf16_f32 v{P+r}, v{O+2*r}, v{O+2*r+1}")
    two_flavours(a, lambda sc: a(f"""buffer_store_dwordx4 {vr(P,4)}, v{QA}, s[24:27], s{SQ} offen {sc}
    buffer_store_dwordx2 {vr(P+4,2)}, v{QHA}, s[24:27], s{SQH} offen {sc}"""))
    stamp(a, 7)
    lds_add(a, O_ATT)
    a(f"ds_read_b128 v[60:63], v30 offset:16")
    return stubs


def att_stubs(a, stubs):
    for t in stubs:
        a(f"L_hw{t}:")
        if t >= 8:
            a("s_branch L_att_fin")
            continue
        if t >= 2:
            a(f"s_cmp_eq_u32 s{XCD}, 0\ns_cbranch_scc1 L_att_fin")
        a(f"""s_cmp_eq_u32 s{TT}, {t}
        s_cselect_b32 s36, 1, 2
        s_mov_b32 s50, {SPIN*8}
        L_hs{t}:
        ds_read_b32 v9, v30 offset:4
        s_sub_u32 s50, s50, 1
        s_cbranch_scc1 L_hr{t}
        s_waitcnt lgkmcnt(0)
        v_cmp_gt_u32 vcc, s36, v9
        s_cbranch_vccnz L_hs{t}
        s_branch L_hr{t}""")
    a(f"""L_fallback:
    s_cmp_lg_u32 s40, 0
    s_cbranch_scc1 L_att_ok
    s_mov_b32 s40, 1""")
    diag_mask(a, False)
    a(f"""v_mov_b32 v8, 0xff800000
    v_add_u32 v5, 4096, v{KA}
    v_add_u32 v6, 4096, v{KHA}
    s_mov_b32 s36, 0
    L_fb_loop:
    ds_read_b128 {vr(K,4)}, v5
    ds_read_b64 {vr(KH,2)}, v6
    v_subrev_u32 v5, 512, v5
    v_subrev_u32 v6, 512, v6
    s_waitcnt lgkmcnt(0)
    s_cmp_eq_u32 s36, 0
    s_cbranch_scc1 L_fb_a
    s_cmp_eq_u32 s36, 8
    s_cbranch_scc1 L_fb_b
    v_mfma_f32_32x32x16_bf16 {vr(S1,16)}, {vr(K,4)}, {vr(Q,4)}, 0
    s_branch L_fb_c
    L_fb_a:
    v_mfma_f32_32x32x16_bf16 {vr(S1,16)}, {vr(K,4)}, {vr(Q,4)}, {vr(S0,16)}
    s_branch L_fb_c
    L_fb_b:
    v_mfma_f32_32x32x16_bf16 {vr(S1,16)}, {vr(K,4)}, {vr(Q,4)}, {vr(M,16)}
    L_fb_c:
    v_mfma_f32_32x32x8_bf16 {vr(S1,16)}, {vr(KH,2)}, {vr(QH,2)}, {vr(S1,16)}
    s_nop 11""")
    for r in range(0, 16, 2):
        a(f"v_max3_f32 v8, v8, v{S1+r}, v{S1+r+1}")
    a(f"""s_add_u32 s36, s36, 1
    s_cmp_lt_u32 s36, s{NT}
    s_cbranch_scc1 L_fb_loop
    v_mov_b32 v9, v8
    s_nop 1
    v_permlane32_swap_b32 v8, v9
    v_max_f32 v8, v8, v9
    v_sub_f32 v8, 0, v8
    v_and_b32 v5, 0xffff0000, v8
    v_sub_f32 v8, v8, v5
    v_and_b32 v6, 0xffff0000, v8
    v_sub_f32 v8, v8, v6
    v_lshrrev_b32 v5, 16, v5
    v_or_b32 v5, v5, v6
    v_lshrrev_b32 v8, 16, v8
    v_cmp_eq_u32 s[44:45], 0, v4
    s_nop 1
    v_cndmask_b32_e64 v{QH}, v5, v{QH}, s[44:45]
    v_cndmask_b32_e64 v{QH+1}, v8, v{QH+1}, s[44:45]
    s_branch L_att_go""")


OF, NOF, PA, WF = 64, 14, 32, 120
def outproj(a):
    a(f"""s_cmp_lt_u32 s{WAVE}, 4
    s_cbranch_scc1 L_op_main
    s_waitcnt vmcnt(0) lgkmcnt(0)""")
    stamp(a, 8)
    flag_store(a, 36, True)
    def owner():
        lp, lo = uid("tv"), uid("to")
        a(f"""s_mov_b32 s50, {SPIN*8}
        {lp}:
        v_cmp_ne_u32 vcc, 0, v60
        s_cbranch_vccnz {lo}
        ds_read_b128 v[60:63], v30 offset:16
        s_waitcnt lgkmcnt(0)
        s_sub_u32 s50, s50, 1
        s_cbranch_scc0 {lp}
        {lo}:""")
        a(owner_txt)
    owner_txt = f"""v_readfirstlane_b32 s42, v60
    v_readfirstlane_b32 s43, v61
    s_and_b32 s42, s42, 0xffff
    s_lshr_b32 s32, s{LOC}, 2
    s_xor_b32 s38, s42, s51
    s_xor_b32 s37, s43, s51
    s_and_b32 s38, s38, {0x760 if OPT['rowmap'] else 0x7c0}
    s_and_b32 s37, s37, {0x760 if OPT['rowmap'] else 0x7c0}
    s_min_u32 s38, s38, s37
    s_cmp_eq_u32 s38, 0
    s_cselect_b32 s41, 1, 0"""
    owner()
    a(f"""s_cbranch_scc0 L_done
    v_subrev_u32 v5, 256, v0
    v_mul_u32_u24 v6, 820, v5
    v_lshrrev_b32 v6, 16, v6
    v_mul_u32_u24 v7, 80, v6
    v_sub_u32 v7, v5, v7
    v_mul_u32_u24 v11, 81920, v6
    v_lshl_add_u32 v11, v7, 4, v11
    s_mul_i32 s36, s32, 1280
    s_add_u32 s36, s36, {WS_P2}
    v_cmp_gt_u32 vcc, 240, v5
    s_and_b64 exec, exec, vcc""")
    ld = "s_mov_b32 s37, s36\n" + "\n".join(f"buffer_load_dwordx4 {vr(64+4*i,4)}, v11, s[24:27], s37 offen sc1\ns_add_u32 s37, s37, 10240" for i in range(8))
    poll(a, ld, [65 + 2 * i for i in range(16)])
    for i in range(1, 8):
        a(f"v_add_f32 v64, v64, v{64+4*i}\nv_add_f32 v66, v66, v{66+4*i}")
    a(f"""v_mul_u32_u24 v6, 640, v6
    v_lshl_add_u32 v6, v7, 2, v6
    v_add_u32 v6, {L_Y}, v6
    ds_write_b32 v6, v64
    ds_write_b32 v6, v66 offset:320
    s_waitcnt lgkmcnt(0)""")
    lds_add(a, O_Y)
    a("""s_waitcnt lgkmcnt(0)
    L_done:""")
    finish(a)
    WA = 160
    a(f"""L_op_main:
    {"s_setprio 0" if OPT["aprio"] else ""}
    s_load_dwordx2 s[8:9], s[0:1], 72
    v_and_b32 v3, 15, v1
    v_lshrrev_b32 v4, 4, v1
    v_lshrrev_b32 v5, 1, v4
    v_add_u32 v6, v4, v5
    v_lshlrev_b32 v7, 4, v3
    v_lshl_add_u32 v12, v6, 12, v7
    v_and_b32 v6, 1, v4
    v_lshl_add_u32 v8, v6, 1, v5
    v_mul_u32_u24 v9, {5*4096}, v8
    v_add_u32 v13, v9, v7
    v_mul_u32_u24 v5, 20, v5
    v_lshl_add_u32 v5, v6, 2, v5
    v_bfe_u32 v7, v1, 2, 2
    v_add_u32 v5, v5, v7
    v_mul_u32_u24 v5, 160, v5
    v_and_b32 v9, 3, v1
    v_lshlrev_b32 v9, 3, v9
    v_add_u32 v9, {L_WO}, v9
    v_add_u32 v14, v5, v9
    v_add_u32 v15, {8*6400}, v14
    v_mul_u32_u24 v8, 40, v8
    v_add3_u32 v8, v8, v7, 16
    v_mul_u32_u24 v8, 160, v8
    v_add_u32 v8, v8, v9
    v_mul_u32_u24 v6, 3200, v6
    v_add_u32 v{WA+1}, v8, v6
    v_sub_u32 v{WA}, v8, v6
    v_add_u32 v{WA}, 3200, v{WA}
    v_add_u32 v{WA+2}, {8*6400}, v{WA}
    v_add_u32 v{WA+3}, {8*6400}, v{WA+1}
    v_sub_f32 v{G2}, 1.0, v{G2}""")
    for t in range(5):
        for j in range(2):
            a(f"""v_lshlrev_b32 v{PA+4*t+2*j}, 16, v{XR+2*t+j}
            v_and_b32 v{PA+4*t+2*j+1}, 0xffff0000, v{XR+2*t+j}""")
    a("s_waitcnt vmcnt(0)")
    stamp(a, 8)
    flag_store(a, 36, True)
    for i in range(20):
        a(f"v_mul_f32 v{PA+i}, v{G2}, v{PA+i}")
    for n in range(3):
        a(f"""v_add_u32 v5, {64*n}, v1
        v_mul_u32_u24 v6, 6554, v5
        v_lshrrev_b32 v6, 16, v6
        v_mul_u32_u24 v7, 10, v6
        v_sub_u32 v7, v5, v7
        v_mul_u32_u24 v6, 1280, v6
        v_lshl_add_u32 v{21+n}, v7, 4, v6""")
    a(f"""v_lshrrev_b32 v5, 5, v1
    v_lshl_add_u32 v23, v5, 28, v23
    s_mul_i32 s36, s{WAVE}, 2560
    v_add_u32 v24, s36, v10
    s_waitcnt lgkmcnt(0)""")
    owner()
    srd(a, SA, 8, 2621440)
    a(f"""s_mul_i32 s40, s51, 1280
    s_mul_i32 s37, s32, 160
    s_add_u32 s40, s40, s37
    s_lshr_b32 s36, s51, 5
    s_lshl_b32 s36, s36, 7
    s_add_u32 s36, s36, {WS_FO}
    v_and_b32 v5, 31, v1
    v_lshlrev_b32 v5, 2, v5
    s_mul_i32 s37, s{XCD}, {XB}
    s_and_b32 s38, s51, 255
    s_lshl_b32 s38, s38, 4
    s_add_u32 s37, s37, s38
    s_add_u32 s38, s37, 8192""")
    lds_wait(a, O_WO, 1)
    stamp(a, 9)

    def wread(s, t):
        f = WF + 20 * (s & 1) + 4 * t
        if s < 16:
            b = 14 if s < 8 else 15
            b2, o, d = b, (s % 8) * 6400, 1280
        else:
            b = WA if s < 18 else WA + 2
            b2, o, d = b + 1, (s % 2) * 25600, 0
        a(f"""ds_read_b64_tr_b16 v[{f}:{f+1}], v{b} offset:{o+t*32}
        ds_read_b64_tr_b16 v[{f+2}:{f+3}], v{b2} offset:{o+t*32+d}""")

    def oload(s):
        r = OF + 4 * (s % NOF)
        if s < 16:
            a(f"buffer_load_dwordx4 {vr(r,4)}, v12, s[24:27], s37 offen sc1\ns_add_u32 s37, s37, {5*4096}")
        else:
            a(f"buffer_load_dwordx4 {vr(r,4)}, v13, s[24:27], s38 offen sc1\ns_add_u32 s38, s38, {20*4096}")
    pl = "buffer_load_dword v6, v5, s[24:27], s36 offen sc1"
    a(pl)
    for t in range(5):
        wread(0, t)
    a("s_waitcnt lgkmcnt(4)")
    for t in range(5):
        wread(1, t)
    poll(a, pl, [6], pre=True)
    stamp(a, 10)
    NL0 = OPT["nl0"]
    for s in range(NL0):
        oload(s)
    a("L_op_loop:")
    for s in range(20):
        issued = min(20, NL0 + s)
        a(f"s_waitcnt vmcnt({issued-1-s}) lgkmcnt({10 if s < 19 else 0})")
        for t in range(5):
            a(f"v_mfma_f32_16x16x32_bf16 {vr(PA+4*t,4)}, {vr(WF+20*(s&1)+4*t,4)}, {vr(OF+4*(s%NOF),4)}, {vr(PA+4*t,4)}")
            if s < 18:
                wread(s + 2, t)
            if t == 0 and NL0 + s < 20:
                oload(NL0 + s)
            if s == 18 and t == 0:
                a(f"ds_read_b32 v9, v30 offset:{O_ATT}")
    a("L_op_end:")
    stamp(a, 11)
    lds_wait(a, O_ATT, 8, pre=True)
    a(f"""s_cmp_eq_u32 s41, 0
    s_cbranch_scc1 L_noy
    v_add_u32 v9, s51, v3
    v_cmp_eq_u32 s[44:45], s43, v9
    v_cmp_eq_u32 s[48:49], s42, v9
    v_mov_b32 v7, 320
    v_cndmask_b32_e64 v5, v62, v63, s[44:45]
    v_cndmask_b32_e64 v7, 0, v7, s[44:45]
    v_lshl_add_u32 v7, v4, 4, v7
    v_add_u32 v7, {L_Y}, v7""")
    sigmoid(a, 5, "v5")
    a(f"""v_mul_f32 v5, v5, v{G2}
    s_or_b64 s[44:45], s[44:45], s[48:49]""")
    lds_wait(a, O_Y, 4)
    for t in range(5):
        for bs in range(3):
            a(f"ds_read_b128 {vr(OF+12*t+4*bs,4)}, v7 offset:{bs*640+t*64}")
    a("s_waitcnt lgkmcnt(0)\ns_mov_b64 exec, s[44:45]")
    for t in range(5):
        for i in range(4):
            r = OF + 12 * t + i
            a(f"""v_add_f32 v{r}, v{r}, v{r+4}
            v_add_f32 v{r}, v{r}, v{r+8}
            v_fma_f32 v{PA+4*t+i}, v5, v{r}, v{PA+4*t+i}""")
    a("s_mov_b64 exec, -1\nL_noy:\ns_nop 1")
    for t in range(5):
        a(f"""v_cvt_pk_bf16_f32 v{WF+2*t}, v{PA+4*t}, v{PA+4*t+1}
        v_cvt_pk_bf16_f32 v{WF+2*t+1}, v{PA+4*t+2}, v{PA+4*t+3}
        ds_write_b64 v{XA}, {vr(WF+2*t,2)} offset:{t*32}""")
    a("s_waitcnt lgkmcnt(0)")
    for n in range(3):
        a(f"ds_read_b128 {vr(OF+4*n,4)}, v24 offset:{n*1024}")
    for n in range(3):
        a(f"s_waitcnt lgkmcnt({2-n})\nbuffer_store_dwordx4 {vr(OF+4*n,4)}, v{21+n}, s[52:55], s40 offen {OPT['osc']}")
    stamp(a, 12)
    if OPT["probe"]:
        pa, pb = [int(x) for x in OPT["probe"].split("_")]
        a(f"""s_sub_u32 s36, s{62+2*pb}, s{62+2*pa}
        s_lshl_b32 s36, s36, 2
        s_min_u32 s36, s36, 20000
        s_cmp_ge_u32 s2, 240
        s_cselect_b32 s36, 0, s36
        s_memrealtime s[38:39]
        s_waitcnt lgkmcnt(0)
        s_add_u32 s36, s36, s38
        L_probe:
        s_sleep 2
        s_memrealtime s[38:39]
        s_waitcnt lgkmcnt(0)
        s_sub_u32 s37, s38, s36
        s_cmp_lt_i32 s37, 0
        s_cbranch_scc1 L_probe""")
    finish(a)


def wo_groups(a, g0, g1, rot=0):
    lp = uid("wo")
    if rot:
        assert g1 - g0 == 8
        a(f"""s_and_b32 s43, s{LOC}, 3
        s_lshl_b32 s43, s43, 1""")
    else:
        a("s_mov_b32 s43, 0")
    a(f"""s_mov_b32 s44, {g1-g0}
    {lp}:
    s_mul_i32 s40, s43, 5120
    s_mul_i32 s41, s43, 40960
    s_add_u32 s41, s41, s34
    s_add_u32 s41, s41, {g0*40960}""")
    for j in range(5):
        a(f"""s_add_u32 m0, s40, {L_WO+g0*5120+j*1024}
        s_nop 0
        buffer_load_dwordx4 v{20+j}, s[20:23], s41 offen lds""")
    a(f"""s_add_u32 s43, s43, 1
    {"s_and_b32 s43, s43, 7" if rot else ""}
    s_sub_u32 s44, s44, 1
    s_cmp_lg_u32 s44, 0
    s_cbranch_scc1 {lp}""")


def purity(a):
    a(f"""v_cmp_ne_u32 vcc, s{TAG}, v12
    v_cmp_ne_u32 s[44:45], s35, v13
    s_or_b64 vcc, vcc, s[44:45]
    s_cselect_b32 s36, 0, {0 if OPT['forceimp'] else 1}
    v_mov_b32 v5, s36
    ds_write_b32 v30, v5
    s_waitcnt lgkmcnt(0)""")


def helper1(a):
    a(f"""L_help:
    s_cmp_eq_u32 s{WAVE}, 9
    s_cbranch_scc1 L_ffn
    s_load_dwordx2 s[40:41], s[0:1], 16
    s_load_dwordx2 s[8:9], s[0:1], 32
    s_load_dwordx2 s[10:11], s[0:1], 64
    s_load_dwordx2 s[46:47], s[0:1], 72
    v_lshlrev_b32 v10, 4, v1""")
    a(f"""v_mov_b32 v16, 0x3f803f80
    v_mov_b32 v17, 0x3f803f80
    v_mov_b32 v18, 0x3f803f80
    v_mov_b32 v19, 0x3f803f80
    v_add_u32 v5, {L_ONES}, v10""")
    for i in range(5):
        a(f"ds_write_b128 v5, v[16:19] offset:{i*1024}")
    a(f"""v_mov_b32 v30, {M_PURE}
    v_mov_b32 v6, 0
    v_lshl_add_u32 v7, v1, 2, v30
    ds_write_b32 v7, v6""")
    if OPT["prio"]:
        a("s_setprio 3")
    for n in range(5):
        a(f"""v_add_u32 v5, {64*n}, v1
        v_mul_u32_u24 v6, 6554, v5
        v_lshrrev_b32 v6, 16, v6
        v_mul_u32_u24 v8, 10, v6
        v_sub_u32 v8, v5, v8
        v_mul_u32_u24 v6, 1280, v6
        v_lshl_add_u32 v{20+n}, v8, 4, v6""")
    a("s_waitcnt lgkmcnt(0)")
    epoch_load(a)
    srd(a, SX, 46, 2621440)
    srd(a, SW, 40, 819200)
    srd(a, SS, 12, WS_END)
    srd(a, SA, 8, 1280)
    srd(a, SB, 10, 1280)
    a(f"""s_cmp_lg_u32 s{CT}, 15
    s_cbranch_scc1 L_nowv
    s_mov_b32 m0, {L_WV}
    s_nop 0
    buffer_load_dwordx4 v10, s[52:55], 0 offen lds
    buffer_load_dwordx4 v10, s[52:55], 0 offen offset:1024 lds
    s_mov_b32 m0, {L_WV+2048}
    s_nop 0
    buffer_load_dwordx4 v10, s[56:59], 0 offen lds
    buffer_load_dwordx4 v10, s[56:59], 0 offen offset:1024 lds
    L_nowv:
    s_getreg_b32 s35, hwreg(HW_REG_XCC_ID, 0, 4)
    s_lshr_b32 s34, s{LOC}, 2
    s_mul_i32 s34, s34, 160
    s_mul_i32 s33, s{LOC}, 5
    s_lshr_b32 s33, s33, 1             ; c0
    v_bfe_u32 v5, v1, 2, 1
    v_lshl_add_u32 v6, v5, 1, s33
    v_lshrrev_b32 v6, 3, v6
    v_bfe_u32 v7, v1, 3, 2
    v_cmp_eq_u32 s[44:45], 3, v7
    v_and_b32 v8, 3, v1
    v_lshlrev_b32 v8, 2, v8
    v_cndmask_b32_e64 v5, v6, v5, s[44:45]
    v_mad_u32_u24 v5, v7, 10, v5
    v_lshl_add_u32 v11, v5, 4, v8
    v_and_b32 v7, 1, v7
    v_mad_u32_u24 v5, v7, 10, v6
    v_add_u32 v5, 10, v5
    v_lshl_add_u32 v15, v5, 7, v8
    v_and_b32 v14, 31, v1
    v_lshlrev_b32 v14, 3, v14
    s_lshl_b32 s42, s{XCD}, 8
    s_add_u32 s42, s42, {WS_XID}""")
    epoch_fin(a)
    stamp(a, 1)
    a(f"""s_waitcnt vmcnt(0)
    s_barrier
    s_lshl_b32 s36, s{LOC}, 3
    s_add_u32 s36, s36, s42
    v_mov_b32 v8, s{TAG}
    v_mov_b32 v9, s35
    v_mov_b32 v5, 0
    s_mov_b64 exec, 1
    buffer_store_dwordx2 v[8:9], v5, s[24:27], s36 offen {'sc1' if OPT['xsc'] else ''}
    s_mov_b64 exec, -1""")
    def qtouch():
        a(f"""s_mul_i32 s36, s{XCD}, {XB}
        s_mul_i32 s37, s{LOC}, 10240
        s_add_u32 s36, s36, s37
        s_add_u32 s37, s36, 5120
        v_min_u32 v5, 39, v1
        v_lshlrev_b32 v5, 7, v5
        buffer_load_dword v167, v5, s[24:27], s36 offen sc1
        buffer_load_dword v167, v5, s[24:27], s37 offen sc1""")
    for i in range(6):
        if OPT["qloc"] and OPT["qat"] == i:
            qtouch()
        a("s_barrier")
    if OPT["qloc"] and OPT["qat"] == 6:
        qtouch()
    a(f"""s_cmp_lg_u32 s{CT}, 15
    s_cbranch_scc1 L_h_g
    s_barrier
    s_barrier
    s_barrier
    s_barrier
    buffer_load_dwordx2 v[12:13], v14, s[24:27], s42 offen sc1
    s_branch L_h_p
    L_h_g:
    buffer_load_dwordx2 v[12:13], v14, s[24:27], s42 offen sc1
    s_barrier
    s_barrier
    L_h_p:
    s_waitcnt vmcnt(0)""")
    purity(a)
    if OPT["qloc"] and OPT["qat"] == 8:
        qtouch()
    if OPT["tlb"]:
        a(f"""s_mul_i32 s36, s{XCD}, {XB}
        s_sub_u32 s36, s36, {XB}
        s_max_i32 s36, s36, 0
        s_mul_i32 s37, s{XCD}, 256*1280
        v_min_u32 v5, 2, v1
        v_mul_u32_u24 v5, {XB-64}, v5
        v_min_u32 v6, 1, v1
        v_mul_u32_u24 v6, {256*1280-64}, v6
        v_mov_b32 v7, 0
        buffer_load_dword v167, v5, s[24:27], s36 offen
        buffer_load_dword v167, v6, s[16:19], s37 offen
        buffer_load_dword v167, v7, s[20:23], s34 offen""")
    a(f"""s_cmp_eq_u32 s{CT}, 15
    s_cbranch_scc1 L_h_q
    s_barrier
    s_barrier
    L_h_q:""")
    if OPT["wod"]:
        wo_groups(a, 12 - OPT["wod"], 12)
    a(f"""s_lshl_b32 s36, s{XCD}, 9
    s_add_u32 s36, s36, {WS_FL}""")
    stamp(a, 2)
    poll(a, "buffer_load_dword v12, v11, s[24:27], s36 offen sc1", [12])
    stamp(a, 4)
    a(f"""s_lshl_b32 s36, s{XCD}, 12
    s_add_u32 s36, s36, {WS_FR-4096}
    s_barrier
    s_cmp_eq_u32 s{XCD}, 0
    s_cbranch_scc1 L_nohalo""")
    poll(a, "buffer_load_dword v12, v15, s[24:27], s36 offen sc1", [12])
    if OPT["hdel"]:
        lds_wait(a, O_B2, 8)
    stamp(a, 7)
    a(f"""s_mul_i32 s36, s{XCD}, 240
    s_add_u32 s36, s36, s33
    s_lshl_b32 s36, s36, 12
    s_add_u32 s36, s36, {(WS_L - XB + 80*4096) & 0xffffffff}""")
    for q in (3, 2, 1, 0):
        for sec in range(2):
            for j in range(3):
                a(f"""s_mov_b32 m0, {sec*L_V + j*CS + q*1024}
                s_add_u32 s37, s36, {sec*80*4096 + j*4096 + q*1024}
                buffer_load_dwordx4 v10, s[24:27], s37 offen sc1 lds""")
    a("""v_mov_b32 v5, 1
    s_waitcnt vmcnt(12)
    ds_write_b32 v30, v5 offset:4
    L_nohalo:""")
    stamp(a, 6)
    wo_groups(a, 0, 2)
    a("""v_mov_b32 v5, 2
    s_waitcnt vmcnt(10)
    ds_write_b32 v30, v5 offset:4""")
    stamp(a, 8)
    if OPT["nowo"]:
        lds_wait(a, O_ATT, 8)
    if OPT['wod'] < 10:
        wo_groups(a, 2, 12 - OPT['wod'])
    lds_wait(a, O_FD, 9)
    wo_groups(a, 12, 20, rot=OPT["worot"])
    a("s_waitcnt vmcnt(0)")
    lds_add(a, O_WO)
    a("s_waitcnt lgkmcnt(0)")
    stamp(a, 9)
    a(f"""s_cmp_lg_u32 s2, 255
    s_cbranch_scc1 L_h1_end
    s_mov_b32 s36, {WS_P2+4}
    v_min_u32 v5, 59, v1
    v_lshlrev_b32 v5, 12, v5""")
    if OPT["epx"]:
        a(f"s_mov_b32 s36, {WS_XID}")
        poll(a, "buffer_load_dwordx4 v[12:15], v10, s[24:27], s36 offen sc1\nbuffer_load_dwordx4 v[16:19], v10, s[24:27], s36 offen offset:1024 sc1", [12, 14, 16, 18])
    else:
        poll(a, "\n".join(f"buffer_load_dword v{12+i}, v5, s[24:27], s36 offen offset:{i*1024} sc1" for i in range(4)), [12, 13, 14, 15])
    a(f"s_mov_b32 s36, {WS_EP}")
    flag_store(a, 36, False)
    a("L_h1_end:")
    finish(a)


def sel_by_g(a, o, b, st, tag=True):
    a(f"""v_cndmask_b32_e64 v{o}, v{b}, v{b+st}, s[44:45]
    v_cndmask_b32_e64 v{o}, v{o}, v{b+2*st}, s[46:47]
    v_cndmask_b32_e64 v{o}, v{o}, v{b+3*st}, s[48:49]""")
    if tag:
        a(f"v_mov_b32 v{o+1}, s{TAG}")


def ffn(a):
    a(f"""L_ffn:
    s_load_dwordx4 s[8:11], s[0:1], 40
    s_load_dwordx2 s[40:41], s[0:1], 56
    v_lshlrev_b32 v10, 4, v1
    s_mul_i32 s33, s{XCD}, 30
    s_add_u32 s33, s33, s{LOC}         ; job
    s_mul_i32 s34, s33, 6554
    s_lshr_b32 s34, s34, 16            ; b
    s_mul_i32 s35, s34, 10
    s_sub_u32 s35, s33, s35
    v_lshrrev_b32 v5, 3, v1
    v_and_b32 v7, 7, v1
    v_mul_u32_u24 v6, 3072, v5
    v_lshl_add_u32 v11, v7, 4, v6
    v_mul_u32_u24 v6, 1280, v5
    v_lshl_add_u32 v12, v7, 4, v6
    v_bfe_u32 v6, v1, 2, 2
    v_lshl_add_u32 v6, v4, 3, v6
    v_lshlrev_b32 v6, 7, v6
    v_and_b32 v8, 3, v1
    v_lshl_add_u32 v6, v8, 3, v6
    v_add_u32 v13, {L_FW}, v6
    v_mov_b32 v30, {M_PURE}
    s_mul_i32 s38, s35, 64*3072
    s_lshl_b32 s36, s34, 7
    s_add_u32 s38, s38, s36
    s_mul_i32 s39, s34, 64*1280
    s_lshl_b32 s36, s35, 7
    s_add_u32 s39, s39, s36
    s_waitcnt lgkmcnt(0)""")
    epoch_load(a)
    srd(a, SX, 4, 2621440)
    srd(a, SW, 40, 1966080)
    srd(a, SS, 12, WS_END)
    srd(a, SA, 8, 1966080)
    srd(a, SB, 10, 1966080)
    epoch_fin(a)
    stamp(a, 1)
    if OPT["fprio"]:
        a(f"s_setprio {OPT['fprio']}")
    def weights():
        for m in range(3):
            for i in range(8):
                s_, v_, so, st = ((SA, 11, 38, 3072), (SB, 11, 38, 3072), (SW, 12, 39, 1280))[m]
                a(f"""s_mov_b32 m0, {L_FW+m*8192+i*1024}
                s_add_u32 s36, s{so}, {i*8*st}
                buffer_load_dwordx4 v{v_}, s[{s_}:{s_+3}], s36 offen {OPT['fnt']} lds""")
    for i in range(9):
        a("s_barrier")
    a(f"s_cmp_eq_u32 s{CT}, 15\ns_cbranch_scc1 L_f_now")
    weights()
    a(f"""L_f_now:
    s_barrier
    s_barrier
    {"" if OPT["cearly"] else "s_waitcnt vmcnt(0)"}
    s_cmp_lg_u32 s{CT}, 15
    s_cbranch_scc1 L_f_c
    s_barrier
    L_f_c:""")
    stamp(a, 2)
    a(f"s_mov_b32 s36, {WS_CAND}")
    poll(a, f"buffer_load_dwordx4 v[24:27], v10, s[24:27], s36 offen sc1", [25, 27])
    stamp(a, 3)
    top2(a, 24, 26, 21, 40, 41, 44)
    key_decode(a, 40, 42, 46, 36)
    key_decode(a, 41, 43, 47, 36)
    a(f"""v_mov_b32 v16, s42
    v_mov_b32 v17, s43
    v_mov_b32 v18, s46
    v_mov_b32 v19, s47
    v_or_b32 v16, 0x10000, v16
    ds_write_b128 v30, v[16:19] offset:16
    v_mov_b32 v20, s42
    v_and_b32 v6, 1, v1
    v_cmp_eq_u32 s[44:45], 0, v6
    s_lshl_b32 s36, s35, 7
    s_nop 0
    v_cndmask_b32_e64 v7, v17, v20, s[44:45]
    v_mul_u32_u24 v7, 1280, v7
    v_lshl_add_u32 v7, v4, 4, v7
    s_cmp_lg_u32 s{CT}, 15
    s_cbranch_scc1 L_f_job""")
    lds_add(a, O_FD)
    a("s_waitcnt lgkmcnt(0)")
    finish(a)
    a(f"""L_f_job:
    buffer_load_dwordx4 v[32:35], v7, s[16:19], s36 offen
    buffer_load_dwordx4 v[36:39], v7, s[16:19], s36 offen offset:64
    v_cmp_eq_u32 s[44:45], 1, v4
    v_cmp_eq_u32 s[46:47], 2, v4
    v_cmp_eq_u32 s[48:49], 3, v4
    ds_read_b32 v31, v30
    s_waitcnt lgkmcnt(0)
    v_readfirstlane_b32 s{PURE}, v31""")
    stamp(a, 4)
    a("s_barrier")
    for t in range(4):
        for ks in range(2):
            o = 16384 + ks * 4096 + t * 32
            r = 128 + t * 8 + ks * 4
            a(f"""ds_read_b64_tr_b16 v[{r}:{r+1}], v13 offset:{o}
            ds_read_b64_tr_b16 v[{r+2}:{r+3}], v13 offset:{o+512}""")
        if t == 1:
            a("s_waitcnt lgkmcnt(0)")
    a("s_waitcnt vmcnt(0)")
    for m in range(2):
        for t in range(4):
            d = 64 + (m * 4 + t) * 4
            f = 40 + (t & 1) * 8
            for ks in range(2):
                o = m * 8192 + ks * 4096 + t * 32
                a(f"""ds_read_b64_tr_b16 v[{f+4*ks}:{f+4*ks+1}], v13 offset:{o}
                ds_read_b64_tr_b16 v[{f+4*ks+2}:{f+4*ks+3}], v13 offset:{o+512}""")
            a("s_waitcnt lgkmcnt(0)")
            for ks in range(2):
                a(f"v_mfma_f32_16x16x32_bf16 {vr(d,4)}, {vr(32+4*ks,4)}, {vr(f+4*ks,4)}, {'0' if ks == 0 else vr(d,4)}")
    lds_add(a, O_FD)
    a(f"""s_lshl_b32 s36, s33, 10
    s_add_u32 s36, s36, {WS_P1}
    s_nop 2""")
    for m in range(2):
        for tk in range(2):
            sel_by_g(a, 96 + m * 2 + tk, 64 + m * 16 + tk, 4, False)
    a(f"""buffer_store_dwordx4 v[96:99], v10, s[24:27], s36 offen sc1
    s_lshl_b32 s40, s34, 7
    s_add_u32 s40, s40, {WS_FP}
    s_lshl_b32 s37, s35, 2
    s_add_u32 s36, s40, s37
    v_min_u32 v5, 9, v1
    v_lshlrev_b32 v5, 2, v5
    s_waitcnt vmcnt(0) lgkmcnt(0)""")
    flag_store(a, 36, True)
    stamp(a, 5)
    poll(a, "buffer_load_dword v6, v5, s[24:27], s40 offen sc1", [6])
    stamp(a, 6)
    a(f"""s_mul_i32 s36, s34, 10240
    s_add_u32 s36, s36, {WS_P1}
    s_add_u32 s37, s36, 4096
    s_add_u32 s38, s36, 8192""")
    for i in range(10):
        a(f"buffer_load_dwordx4 {vr(32+4*i,4)}, v10, s[24:27], s{36+i//4} offen offset:{(i%4)*1024} sc1")
    a("s_waitcnt vmcnt(0)")
    stamp(a, 7)
    for i in range(1, 10):
        for j in (0, 2):
            a(f"v_pk_add_f32 {vr(32+j,2)}, {vr(32+j,2)}, {vr(32+4*i+j,2)}")
    for tk in range(2):
        sigmoid(a, 14 + tk, f"v{32+tk}")
        a(f"v_mul_f32 v{14+tk}, v{14+tk}, v{32+tk}\nv_mul_f32 v{14+tk}, v{14+tk}, v{34+tk}")
    a(f"""v_cvt_pk_bf16_f32 v14, v14, v15
    v_lshl_add_u32 v6, v1, 1, v30
    ds_write_b16 v6, v14 offset:256
    ds_write_b16_d16_hi v6, v14 offset:384
    v_and_b32 v7, 1, v1
    v_lshl_add_u32 v7, v7, 7, v30
    v_lshl_add_u32 v7, v4, 4, v7
    s_waitcnt lgkmcnt(0)
    ds_read_b128 v[32:35], v7 offset:256
    ds_read_b128 v[36:39], v7 offset:320
    s_waitcnt lgkmcnt(0)""")
    for t in range(4):
        d = 64 + t * 4
        for ks in range(2):
            a(f"v_mfma_f32_16x16x32_bf16 {vr(d,4)}, {vr(32+4*ks,4)}, {vr(128+t*8+4*ks,4)}, {'0' if ks == 0 else vr(d,4)}")
    a(f"""s_lshl_b32 s36, s33, 10
    s_add_u32 s36, s36, {WS_P2}
    s_nop 5""")
    for tk in range(2):
        sel_by_g(a, 96 + tk * 2, 64 + tk, 4)
    a("buffer_store_dwordx4 v[96:99], v10, s[24:27], s36 offen sc1")
    stamp(a, 8)
    finish(a)


def main(out):
    a = Asm()
    head = f"""; gated mix of sliding-window attention and a top-2 routed FFN: one fused launch (written by a generator script)
; @launch grid=(256,1,1) block=(640,1,1) lds={LDS_BYTES}
.amdgcn_target "amdgcn-amd-amdhsa--gfx950"
.text
"""
    entry(a)
    loader(a)
    compute(a)
    stubs = attention(a)
    outproj(a)
    helper1(a)
    ffn(a)
    router_loader(a)
    router(a)
    att_stubs(a, stubs)
    stamp_out(a)
    a("L_exit:\ns_endpgm\nL_code_end:")
    body = a.text().replace("s_mov_b32 s43, 0\n    s_waitcnt lgkmcnt(0)", "s_mov_b32 s43, 0\n    s_movk_i32 s45, 0x4000\n    s_waitcnt lgkmcnt(0)")
    if OPT["al"]:
        body = align_fix(body, [("L_g_loop", "L_g_end"), ("L_att_go", "L_att_fin"), ("L_op_loop", "L_op_end")])
    bad = check_hazards(body)
    tail = f""".section .rodata,"a"
.p2align 6
.amdhsa_kernel {NAME}_kernel
  .amdhsa_next_free_vgpr 168
  .amdhsa_next_free_sgpr 96
  .amdhsa_accum_offset 168
  .amdhsa_group_segment_fixed_size 0
  .amdhsa_kernarg_size 96
  .amdhsa_user_sgpr_count 2
  .amdhsa_user_sgpr_kernarg_segment_ptr 1
  .amdhsa_system_sgpr_workgroup_id_x 1
.end_amdhsa_kernel
"""
    open(out, "w").write(head + body + tail)
    print("written", out, "hazards:", len(bad))


if __name__ == "__main__":
    main(sys.argv[1])
```

```python
import sys, struct
from asmlib import Asm, vr, sr, check_hazards, align_fix

NAME = "gated_mix__sliding_block__moe_arch_mod__prompt"
def f32(x): return "0x%08x" % struct.unpack("<I", struct.pack("<f", x))[0]
LOG2E = 1.4426950408889634
QSCALE = (20 ** -0.5) * LOG2E

OPT = dict(stamp=0, dual=0, pre=0, xnt="", fnt="", rot=1, b11=0, wpf=0, rnt="", worot=2, fprio=3, cearly=1, aprio=2, tlb=0, hdel=3, dly=0, fwm=0, serp=1, xs="0_2", wsn=3, ws="0_2", nowo=0, xsc=0, epx=0, rowmap=1, qloc=1, qat=3, tlb0=0, wod=0, wack=1, qown=1, dbg=0, gprio=3, ones=1, gx=0, lord=0, wfl="", nl0=5, al=1, pf=1, xpf=0, swap=0, prio=1, osc="", forceimp=0, forcefb=0, probe="")
for _a in sys.argv[2:]:
    k, v = _a.split("=")
    OPT[k] = int(v) if v.lstrip("-").isdigit() else v

WS_L, WS_R = 0, 0x800000
WS_G, WS_CAND, WS_XID, WS_FL, WS_FP, WS_FO = 0x1000000, 0x1010000, 0x1020000, 0x1030000, 0x1040000, 0x1050000
WS_P1, WS_P2, WS_EP, WS_ST, WS_END = 0x1060000, 0x10E0000, 0x1120000, 0x1200000, 0x1300000
WS_FR = 0x1038000
XB = 240 * 4096
CS = 8192 + 64
L_K, L_V = 0, 3 * CS + 64
L_WO = 49664
L_ONES = L_WO + 102400 + 192
L_MISC = L_ONES + 5120 + 64
L_H, L_Y = L_MISC + 256, L_MISC + 512
LDS_BYTES = 163840
L_RW = 49152
L_FW = L_WO + 13 * 5120
L_XT = L_FW + 24576
L_WV = L_FW
M_PURE, M_HALO, M_TOP = L_MISC, L_MISC + 4, L_MISC + 16
O_WO, O_FD, O_ATT, O_Y, O_R, O_B2 = 8, 12, 32, 36, 40, 44
assert L_V % 256 == 0 and L_ONES % 256 == 192 and L_XT + 10240 <= L_WO + 102400 and L_Y + 1920 <= LDS_BYTES
SPIN = 0x8000

WAVE, XCD, LOC, RBL, CT, TAG, PURE = 28, 29, 30, 31, 32, 60, 61
SX, SW, SS, SA, SB = 16, 20, 24, 52, 56


def srd(a, d, p, n):
    a(f"""s_mov_b32 s{d}, s{p}
    s_mov_b32 s{d+1}, s{p+1}
    s_mov_b32 s{d+2}, {n}
    s_mov_b32 s{d+3}, 0x20000""")


def stamp(a, i):
    if OPT["probe"]:
        if str(i) in OPT["probe"].split("_"):
            a(f"s_memrealtime s[{62+2*i}:{63+2*i}]\ns_waitcnt lgkmcnt(0)")
        return
    if OPT["stamp"] == 3:
        if i == 0:
            a("s_memrealtime s[94:95]\ns_memtime s[62:63]")
        if i in (4, 8):
            a(f"s_memrealtime s[{62+2*i}:{63+2*i}]\ns_memtime s[{64+2*i}:{65+2*i}]")
        return
    if OPT["stamp"]:
        if i == 0:
            a("s_memrealtime s[94:95]")
            for j in range(1, 15):
                a(f"s_mov_b32 s{62+2*j}, 0")
        a(f"{'s_memtime' if OPT['stamp'] == 1 else 's_memrealtime'} s[{62+2*i}:{63+2*i}]\ns_waitcnt lgkmcnt(0)")


def finish(a, main=False):
    if OPT["stamp"] == 3 and not main:
        a("s_endpgm")
    elif OPT["stamp"]:
        a("s_branch L_stampout")
    else:
        a("s_endpgm")


def stamp_out(a):
    if OPT["stamp"]:
        n = 14
        a(f"""L_stampout:
        s_waitcnt vmcnt(0)
        {'s_memtime' if OPT['stamp'] != 2 else 's_memrealtime'} s[{62+2*n}:{63+2*n}]
        s_memrealtime s[92:93]
        s_waitcnt lgkmcnt(0)
        s_lshl_b32 s3, s2, 4
        s_add_u32 s3, s3, s{WAVE}
        s_lshl_b32 s3, s3, 7
        s_add_u32 s3, s3, {WS_ST}
        s_mov_b64 exec, 1
        v_mov_b32 v0, 0""")
        for i in (range(n + 1) if OPT["stamp"] != 3 else (0, 4, 5, 8, 9, 14)):
            a(f"v_mov_b32 v1, s{62+2*i}\nbuffer_store_dword v1, v0, s[24:27], s3 offen offset:{4*i}")
        for i in range(2, 10 if OPT["stamp"] != 3 else 0):
            a(f"v_readlane_b32 s4, v166, {i}\ns_nop 1\nv_mov_b32 v1, s4\nbuffer_store_dword v1, v0, s[24:27], s3 offen offset:{64+4*(i-2)}")
        a(f"v_mov_b32 v1, s{PURE}\nbuffer_store_dword v1, v0, s[24:27], s3 offen offset:116")
        a("v_mov_b32 v1, s94\nbuffer_store_dword v1, v0, s[24:27], s3 offen offset:120")
        a("v_mov_b32 v1, s92\nbuffer_store_dword v1, v0, s[24:27], s3 offen offset:124")
        a("s_endpgm")
        if OPT["stamp"] == 3:
            a(f"""L_stampall:
            s_memrealtime s[88:89]""")
            lds_wait(a, O_ATT, 8)
            a(f"""s_lshl_b32 s3, s2, 4
            s_add_u32 s3, s3, s{WAVE}
            s_lshl_b32 s3, s3, 7
            s_add_u32 s3, s3, {WS_ST}
            v_mov_b32 v2, 0""")
            for i in range(14):
                a(f"v_writelane_b32 v2, s{62+2*i}, {i}")
            a("""v_writelane_b32 v2, s94, 30
            v_lshlrev_b32 v3, 2, v1
            s_mov_b64 exec, 0xffffffff
            buffer_store_dword v2, v3, s[24:27], s3 offen
            s_endpgm""")


def wave_max_u32(a, v, sdst):
    for m in ("row_shr:1 row_mask:0xf bank_mask:0xf bound_ctrl:1", "row_shr:2 row_mask:0xf bank_mask:0xf bound_ctrl:1",
              "row_shr:4 row_mask:0xf bank_mask:0xf bound_ctrl:1", "row_shr:8 row_mask:0xf bank_mask:0xf bound_ctrl:1",
              "row_bcast:15 row_mask:0xa bank_mask:0xf", "row_bcast:31 row_mask:0xc bank_mask:0xf"):
        a(f"s_nop 1\nv_max_u32_dpp v{v}, v{v}, v{v} {m}")
    a(f"s_nop 0\nv_readlane_b32 s{sdst}, v{v}, 63")


def top2(a, k1, k2, t, s1, s2, sm):
    a(f"v_max_u32 v{t}, v{k1}, v{k2}")
    wave_max_u32(a, t, s1)
    a(f"""s_nop 1
    v_cmp_ne_u32 s[{sm}:{sm+1}], s{s1}, v{k1}
    s_nop 1
    v_cndmask_b32_e64 v{k1}, 0, v{k1}, s[{sm}:{sm+1}]
    v_cmp_ne_u32 s[{sm}:{sm+1}], s{s1}, v{k2}
    s_nop 1
    v_cndmask_b32_e64 v{k2}, 0, v{k2}, s[{sm}:{sm+1}]
    v_max_u32 v{t}, v{k1}, v{k2}""")
    wave_max_u32(a, t, s2)


def key_decode(a, sk, stok, sval, st):
    a(f"""s_and_b32 s{stok}, s{sk}, 0xffff
    s_sub_u32 s{stok}, 0xffff, s{stok}
    s_and_b32 s{stok}, s{stok}, 0x7ff
    s_ashr_i32 s{st}, s{sk}, 31
    s_not_b32 s{st}, s{st}
    s_or_b32 s{st}, s{st}, 0x80000000
    s_xor_b32 s{sval}, s{sk}, s{st}
    s_and_b32 s{sval}, s{sval}, 0xffff0000""")


def sigmoid(a, d, s):
    a(f"""v_mul_f32 v{d}, {f32(-LOG2E)}, {s}
    v_exp_f32 v{d}, v{d}
    s_nop 0
    v_add_f32 v{d}, 1.0, v{d}
    v_rcp_f32 v{d}, v{d}
    s_nop 0""")


def epoch_load(a):
    a(f"""s_add_u32 s14, s12, {WS_EP}
    s_addc_u32 s15, s13, 0
    s_load_dword s{TAG}, s[14:15], 0""")


def epoch_fin(a):
    a(f"s_waitcnt lgkmcnt(0)\ns_add_u32 s{TAG}, s{TAG}, 0x9e3779b9")


_uid = [0]
_site = [0]
def uid(p):
    _uid[0] += 1
    return f"L_{p}{_uid[0]}"


def poll(a, load, tagregs, mask=None, tmp=9, pre=False):
    lp, out = uid("poll"), uid("pout")
    a(f"s_mov_b32 s50, {SPIN}")
    if pre:
        a(f"s_branch {lp}p")
    a(f"{lp}:")
    a(load)
    if pre:
        a(f"{lp}p:")
    a(f"""s_sub_u32 s50, s50, 1
    s_cbranch_scc1 {out}
    s_waitcnt vmcnt(0)""")
    if len(tagregs) == 1:
        a(f"v_cmp_ne_u32 vcc, s{TAG}, v{tagregs[0]}")
    else:
        a(f"v_xor_b32 v{tmp}, s{TAG}, v{tagregs[0]}")
        for r in tagregs[1:]:
            a(f"v_bitop3_b32 v{tmp}, v{tmp}, v{r}, s{TAG} bitop3:0xf6")
        a(f"v_cmp_ne_u32 vcc, 0, v{tmp}")
    if mask:
        a(f"s_and_b64 vcc, vcc, {mask}")
    if OPT["dbg"]:
        _site[0] += 1
        print("site", _site[0], load.split("\n")[-1][:70])
        a(f"""s_cbranch_vccnz {lp}
        s_branch {out}x
        {out}:
        s_waitcnt vmcnt(0)
        s_lshl_b32 s50, s2, 4
        s_add_u32 s50, s50, {_site[0]}
        s_lshl_b32 s50, s50, 8
        s_add_u32 s50, s50, {WS_ST}
        v_lshlrev_b32 v164, 2, v1
        v_xor_b32 v165, s{TAG}, v{tagregs[0]}
        v_or_b32 v165, 0x80000000, v165
        buffer_store_dword v165, v164, s[24:27], s50 offen
        {out}x:
        s_waitcnt vmcnt(0)""")
        return
    a(f"s_cbranch_vccnz {lp}\n{out}:\ns_waitcnt vmcnt(0)")


def spoll(a, loads, pairs):
    lp, out = uid("sp"), uid("so")
    a(f"s_mov_b32 s50, {SPIN}\n{lp}:")
    a(loads)
    a(f"""s_waitcnt lgkmcnt(0)
    s_sub_u32 s50, s50, 1
    s_cbranch_scc1 {out}
    s_xor_b64 s[36:37], s[{pairs[0]}:{pairs[0]+1}], s[38:39]""")
    for p in pairs[1:]:
        a(f"""s_xor_b64 s[{p}:{p+1}], s[{p}:{p+1}], s[38:39]
        s_or_b64 s[36:37], s[36:37], s[{p}:{p+1}]""")
    a(f"s_cbranch_scc1 {lp}\n{out}:")


def lds_wait(a, off, val, vt=9, pre=False):
    lp, out = uid("lw"), uid("lo")
    a(f"s_mov_b32 s50, {SPIN*8}")
    if pre:
        a(f"s_branch {lp}p")
    a(f"""{lp}:
    ds_read_b32 v{vt}, v30 offset:{off}""")
    if pre:
        a(f"{lp}p:")
    a(f"""s_sub_u32 s50, s50, 1
    s_cbranch_scc1 {out}
    s_waitcnt lgkmcnt(0)
    v_cmp_gt_u32 vcc, {val}, v{vt}
    s_cbranch_vccnz {lp}
    {out}:""")


def lds_add(a, off, vt=9):
    a(f"""v_mov_b32 v{vt}, 1
    s_mov_b64 exec, 1
    ds_add_u32 v30, v{vt} offset:{off}
    s_mov_b64 exec, -1""")


def flag_store(a, soff, local, vt=8):
    a(f"""v_mov_b32 v{vt}, s{TAG}
    v_mov_b32 v{vt+1}, 0
    s_mov_b64 exec, 1""")
    if local:
        l1, l2 = uid("fs"), uid("fe")
        a(f"""s_cmp_eq_u32 s{PURE}, 0
        s_cbranch_scc1 {l1}
        buffer_store_dword v{vt}, v{vt+1}, s[24:27], s{soff} offen
        s_branch {l2}
        {l1}:
        buffer_store_dword v{vt}, v{vt+1}, s[24:27], s{soff} offen sc1
        {l2}:""")
    else:
        a(f"buffer_store_dword v{vt}, v{vt+1}, s[24:27], s{soff} offen sc1")
    a("s_mov_b64 exec, -1")


def two_flavours(a, body):
    l1, l2 = uid("imp"), uid("ime")
    a(f"s_cmp_eq_u32 s{PURE}, 0\ns_cbranch_scc1 {l1}")
    body("")
    a(f"s_branch {l2}\n{l1}:")
    body("sc1")
    a(f"{l2}:")


def router_loader(a):
    a("""L_rld:
    s_load_dwordx2 s[8:9], s[0:1], 16
    s_add_u32 s41, s40, 98304
    s_branch L_rld_issue
    L_rld_loop:
    s_waitcnt vmcnt(12) lgkmcnt(0)
    s_barrier
    L_rld_issue:
    s_lshl_b32 s36, s33, 7
    s_add_u32 s36, s36, s34""")
    for n in range(4):
        a(f"""s_add_u32 m0, s40, {n*4096}
        s_add_u32 s38, s36, {n*40960}
        buffer_load_dwordx4 v10, s[16:19], s38 offen {OPT['rnt']} lds""")
    kc_next(a, 33)
    a("""s_add_u32 s40, s40, 16384
    s_cmp_eq_u32 s40, s41
    s_cselect_b32 s36, 98304, 0
    s_sub_u32 s40, s40, s36
    s_add_u32 s42, s42, 1
    s_cmp_lt_u32 s42, 4
    s_cbranch_scc1 L_rld_issue
    s_cmp_lt_u32 s42, 10
    s_cbranch_scc1 L_rld_loop""")
    srd(a, SS, 12, WS_END)
    srd(a, SW, 8, 819200)
    a(f"""s_add_u32 s{TAG}, s{TAG}, 0x9e3779b9
    v_mov_b32 v30, {M_PURE}""")
    for n in (12, 8, 4, 0):
        a(f"s_waitcnt vmcnt({n})\ns_barrier")
    if OPT["wpf"]:
        N = OPT["wpf"]
        lds_wait(a, O_R, 4)
        a(f"""v_lshlrev_b32 v5, 7, v1
        s_lshl_b32 s36, s{RBL}, 2
        s_add_u32 s36, s36, s{WAVE}
        s_sub_u32 s36, s36, 4
        s_lshl_b32 s36, s36, 13
        s_cmp_ge_u32 s{XCD}, {N}
        s_cselect_b32 s37, 0, s{XCD}
        s_mov_b32 s42, 0
        L_wpf:
        s_lshl_b32 s38, s37, 16
        s_add_u32 s38, s38, s36
        buffer_load_dword v167, v5, s[20:23], s38 offen
        s_add_u32 s37, s37, 1
        s_cmp_eq_u32 s37, {N}
        s_cselect_b32 s37, 0, s37
        s_add_u32 s42, s42, 1
        s_cmp_lt_u32 s42, {N}
        s_cbranch_scc1 L_wpf""")
    a("s_branch L_att_setup")


def kc_init(a):
    def nib(o):
        v = sum(x << (4 * i) for i, x in enumerate(o))
        return v & 0xffffffff, v >> 32
    n0, n1, n2 = nib(range(10)), nib([1, 0, 3, 2, 5, 4, 7, 6, 9, 8]), nib([0, 2, 1, 4, 3, 6, 5, 8, 7, 9])
    a(f"s_mov_b32 s46, {n0[0]:#x}\ns_movk_i32 s47, {n0[1]:#x}")
    if OPT["swap"]:
        a(f"""s_and_b32 s36, s{LOC}, {3 if OPT["swap"] == 1 else 1}
        s_cmp_eq_u32 s36, 1
        s_cselect_b32 s46, {n1[0]:#x}, s46
        s_cselect_b32 s47, {n1[1]:#x}, s47
        s_cmp_eq_u32 s36, 3
        s_cselect_b32 s46, {n2[0]:#x}, s46
        s_cselect_b32 s47, {n2[1]:#x}, s47""")
    n3 = nib([2, 3, 4, 5, 6, 7, 8, 9, 0, 1])
    a(f"""s_cmp_eq_u32 s{CT}, 15
    s_cselect_b32 s46, {n3[0]:#x}, s46
    s_cselect_b32 s47, {n3[1]:#x}, s47""")


def kc_next(a, d):
    a(f"""s_and_b32 s{d}, s46, 15
    s_lshr_b64 s[46:47], s[46:47], 4""")
    if OPT["rot"]:
        a(f"""s_add_u32 s{d}, s{d}, s{XCD}
        s_sub_u32 s36, s{d}, 10
        s_cselect_b32 s{d}, s{d}, s36""")


def entry(a):
    a(f""".globl {NAME}_kernel
    .p2align 8
    .type {NAME}_kernel,@function
    {NAME}_kernel:""")
    a("""s_cmp_ge_u32 s2, 256
    s_cbranch_scc1 L_exit""")
    stamp(a, 0)
    a(f"""s_load_dwordx4 s[4:7], s[0:1], 0
    s_load_dwordx2 s[12:13], s[0:1], 88
    v_lshrrev_b32 v2, 6, v0
    v_and_b32 v1, 63, v0
    v_readfirstlane_b32 s{WAVE}, v2
    s_and_b32 s{XCD}, s2, 7
    s_lshr_b32 s{LOC}, s2, 3
    s_and_b32 s{RBL}, s{LOC}, 1
    s_lshr_b32 s{CT}, s{LOC}, 1
    v_lshrrev_b32 v4, 4, v1""")
    if OPT["pf"]:
        a(f"""s_cmp_lg_u32 s{WAVE}, 0
        s_cbranch_scc1 L_nopf
        s_getpc_b64 s[36:37]
        L_pc:
        s_and_b32 s38, s{LOC}, 3
        s_mul_i32 s38, s38, 5120
        v_min_u32 v5, 39, v1
        v_lshl_add_u32 v5, v5, 7, s38
        v_min_u32 v5, L_code_end-L_pc-4, v5
        global_load_dword v167, v5, s[36:37]
        L_nopf:""")
    a(f"""s_cmp_lt_u32 s{WAVE}, 4
    s_cbranch_scc1 L_compute
    s_cmp_ge_u32 s{WAVE}, 8
    s_cbranch_scc1 L_help""")


def loader(a):
    a(f"""v_and_b32 v2, 3, v2
    v_lshrrev_b32 v3, 3, v1
    v_lshl_add_u32 v3, v2, 3, v3
    v_mul_u32_u24 v3, 1280, v3
    v_lshl_add_u32 v5, v2, 2, v4
    v_xor_b32 v6, v5, v1
    v_and_b32 v6, 7, v6
    v_lshl_add_u32 v10, v6, 4, v3
    v_mul_u32_u24 v5, 3840, v5
    v_lshrrev_b32 v6, 1, v2
    v_lshl_add_u32 v6, v6, 2, v4
    v_lshlrev_b32 v6, 1, v6
    v_xor_b32 v6, v6, v1
    v_and_b32 v6, 15, v6
    v_lshl_add_u32 v11, v6, 4, v5
    s_lshl_b32 s34, s{XCD}, 1
    s_add_u32 s34, s34, s{RBL}
    s_mul_i32 s34, s34, 128*1280
    s_lshl_b32 s35, s{CT}, 8
    s_and_b32 s40, s{WAVE}, 3
    s_lshl_b32 s40, s40, 10
    s_add_u32 s41, s40, 49152
    s_mov_b32 s42, 0
    s_mov_b32 s18, 2621440
    s_mov_b32 s19, 0x20000
    s_mov_b32 s22, 2457600
    s_mov_b32 s23, 0x20000""")
    kc_init(a)
    kc_next(a, 33)
    if OPT["xpf"]:
        a(f"""v_lshrrev_b32 v5, 3, v1
        s_lshl_b32 s36, s{CT}, 3
        v_add_u32 v5, s36, v5
        v_mul_u32_u24 v5, 1280, v5
        v_and_b32 v6, 7, v1
        v_add3_u32 v6, v6, {"s%d" % XCD if OPT["rot"] else 0}, 2
        v_subrev_u32 v7, 10, v6
        v_min_u32 v6, v6, v7
        v_lshl_add_u32 v12, v6, 7, v5""")
    a("""s_waitcnt lgkmcnt(0)
    s_mov_b32 s16, s4
    s_mov_b32 s17, s5
    s_mov_b32 s20, s6
    s_mov_b32 s21, s7""")
    epoch_load(a)
    stamp(a, 1)
    if OPT["dly"]:
        a(f"s_bitcmp1_b32 s{CT}, 0\ns_cbranch_scc0 L_nd\ns_sleep {OPT['dly']}\nL_nd:")
    a(f"""s_cmp_eq_u32 s{CT}, 15
    s_cbranch_scc1 L_rld
    s_branch L_ld_issue
    L_ld_loop:
    s_waitcnt vmcnt(8) lgkmcnt(0)
    s_barrier""")
    if OPT["stamp"] in (1, 2):
        a("""s_memrealtime s[44:45]
        s_waitcnt lgkmcnt(0)
        s_mov_b32 m0, s42
        s_nop 0
        v_writelane_b32 v166, s44, m0""")
    a(f"""L_ld_issue:
    s_lshl_b32 s36, s33, 7
    s_add_u32 s36, s36, s34
    {"s_and_b32 s33, s33, 1" if OPT["gx"] == 1 else ""}
    s_mul_i32 s37, s33, 245760
    s_add_u32 s37, s37, s35""")
    lx = [f"""s_add_u32 m0, s40, {n*4096}
        s_add_u32 s38, s36, {n*40960}
        buffer_load_dwordx4 v10, s[16:19], s38 offen {OPT['xnt']} lds""" for n in range(4)]
    lw = [f"""s_add_u32 m0, s40, {L_RW+n*4096}
        s_add_u32 s39, s37, {n*61440}
        buffer_load_dwordx4 v11, s[20:23], s39 offen {OPT['wfl']} lds""" for n in range(4)]
    for l in {0: [x for p in zip(lx, lw) for x in p], 1: lw + lx, 2: lx + lw}[OPT["lord"]]:
        a(l)
    kc_next(a, 33)
    if OPT["xpf"]:
        a(f"""s_add_u32 s36, s42, s{WAVE}
        s_cmp_lg_u32 s36, 4
        s_cbranch_scc1 L_noxpf
        buffer_load_dword v167, v12, s[16:19], s34 offen {OPT['xnt']}
        L_noxpf:""")
    a("""s_add_u32 s40, s40, 16384
    s_cmp_eq_u32 s40, s41
    s_cselect_b32 s36, 49152, 0
    s_sub_u32 s40, s40, s36
    s_add_u32 s42, s42, 1
    s_cmp_lt_u32 s42, 2
    s_cbranch_scc1 L_ld_issue
    s_cmp_lt_u32 s42, 10
    s_cbranch_scc1 L_ld_loop""")
    srd(a, SS, 12, WS_END)
    a(f"s_add_u32 s{TAG}, s{TAG}, 0x9e3779b9")
    pre = 0
    a(f"""s_waitcnt vmcnt({8+pre})
    s_barrier""")
    stamp(a, 2)
    a(f"""s_waitcnt vmcnt({pre})
    s_barrier""")
    stamp(a, 3)
    a("s_branch L_att_setup")


ACC, F0, F1 = 32, 96, 128
def compute(a):
    a("L_compute:")
    if (OPT["qloc"] and OPT["qat"] == -1) or OPT["tlb0"]:
        a(f"""s_mul_i32 s36, s{XCD}, {XB}
        s_mov_b32 s26, {WS_END}
        s_mov_b32 s27, 0x20000""")
        if OPT["qloc"] and OPT["qat"] == -1:
            a(f"""s_lshl_b32 s37, s{LOC}, 2
            s_add_u32 s37, s37, s{WAVE}
            s_mul_i32 s37, s37, 2560
            s_add_u32 s37, s37, s36
            v_min_u32 v5, 19, v1
            v_lshlrev_b32 v5, 7, v5""")
        if OPT["tlb0"]:
            a(f"""s_sub_u32 s38, s36, {XB}
            s_max_i32 s38, s38, 0
            v_min_u32 v6, 2, v1
            v_mul_u32_u24 v6, {XB-64}, v6""")
        a("""s_waitcnt lgkmcnt(0)
        s_mov_b32 s24, s12
        s_mov_b32 s25, s13""")
        if OPT["qloc"] and OPT["qat"] == -1:
            a("buffer_load_dword v167, v5, s[24:27], s37 offen sc1")
        if OPT["tlb0"]:
            a(f"""s_cmp_lg_u32 s{WAVE}, 1
            s_cbranch_scc1 L_not0
            buffer_load_dword v167, v6, s[24:27], s38 offen sc1
            L_not0:""")
    a(f"""v_and_b32 v3, 15, v1
    s_and_b32 s36, s{WAVE}, 1          ; wc
    s_lshr_b32 s37, s{WAVE}, 1         ; wt
    s_lshl_b32 s38, s37, 13
    s_lshl_b32 s39, s{WAVE}, 12
    s_cmp_eq_u32 s{CT}, 15
    s_cselect_b32 s38, s39, s38
    v_lshrrev_b32 v5, 1, v3
    v_xor_b32 v5, v5, v4
    v_lshlrev_b32 v5, 4, v5
    v_lshl_add_u32 v12, v3, 7, v5
    v_add_u32 v12, s38, v12
    v_xor_b32 v13, 64, v12
    v_bfe_u32 v5, v1, 2, 2             ; r
    v_lshl_add_u32 v6, v4, 3, v5
    v_lshlrev_b32 v6, 8, v6
    v_and_b32 v7, 1, v4
    v_lshl_add_u32 v5, v7, 2, v5
    v_lshlrev_b32 v5, 1, v5            ; f(row)
    v_and_b32 v7, 3, v1
    s_lshl_b32 s39, s36, 3
    v_add_u32 v7, s39, v7
    v_xor_b32 v5, v5, v7
    v_lshl_add_u32 v6, v5, 4, v6
    v_bfe_u32 v5, v1, 1, 1
    v_lshl_add_u32 v6, v5, 3, v6
    v_add_u32 v14, {L_RW}, v6
    v_xor_b32 v15, 8, v14
    v_xor_b32 v16, 64, v14
    v_xor_b32 v17, 0x48, v14
    v_lshlrev_b32 v18, 4, v3
    v_lshl_add_u32 v18, v4, 12, v18
    v_mov_b32 v19, {M_PURE}
    s_mul_i32 s34, s{XCD}, {XB}
    s_lshl_b32 s39, s{CT}, 16
    s_add_u32 s34, s34, s39
    s_lshl_b32 s39, s36, 15
    s_add_u32 s34, s34, s39
    s_lshl_b32 s39, s{RBL}, 11
    s_add_u32 s34, s34, s39
    s_lshl_b32 s39, s37, 10
    s_add_u32 s34, s34, s39
    s_add_u32 s35, s34, 16384
    s_mov_b32 s42, 0
    s_mov_b32 s43, 0
    s_waitcnt lgkmcnt(0)""")
    epoch_load(a)
    srd(a, SS, 12, WS_END)
    for i in range(64):
        a(f"v_mov_b32 v{ACC+i}, 0")
    epoch_fin(a)
    stamp(a, 1)
    a(f"s_cmp_eq_u32 s{CT}, 15\ns_cbranch_scc1 L_router")

    def reads(ks, F):
        r = []
        def A(j):
            r.append(f"ds_read_b64_tr_b16 v[{F+4*j}:{F+4*j+1}], v{14+j} offset:{ks*8192}")
            r.append(f"ds_read_b64_tr_b16 v[{F+4*j+2}:{F+4*j+3}], v{14+j} offset:{ks*8192+1024}")
        A(0)
        for t in range(4):
            r.append(f"ds_read_b128 {vr(F+16+4*t,4)}, v{12+ks} offset:{t*2048}")
        A(1); A(2); A(3)
        return r

    def phase(F, rd, bar, extra):
        a("s_waitcnt lgkmcnt(6)")
        n = 0
        for j in range(4):
            if j == 1:
                a("s_waitcnt lgkmcnt(0)")
                if bar:
                    a("s_cbranch_scc0 L_g_nb\ns_barrier\nL_g_nb:")
            for t in (range(4) if not (OPT["serp"] and j & 1) else range(3, -1, -1)):
                d = ACC + (j * 4 + t) * 4
                a(f"v_mfma_f32_16x16x32_bf16 {vr(d,4)}, {vr(F+4*j,4)}, {vr(F+16+4*t,4)}, {vr(d,4)}")
                if j == 0:
                    a(extra[t])
                else:
                    a(rd[n]); n += 1

    a("s_barrier")
    stamp(a, 2)
    for l in reads(0, F0):
        a(l)
    a("L_g_loop:")
    phase(F0, reads(1, F1), False, ["""s_add_u32 s43, s43, 1
        s_cmp_eq_u32 s43, 3""", "s_cselect_b32 s44, -32768, 16384" if False else """s_cselect_b32 s44, 0xffff8000, s45
        """, "s_cselect_b32 s43, 0, s43\ns_add_u32 s42, s42, 1", ""])
    phase(F1, reads(0, F0), True, ["v_add_u32 v12, s44, v12\nv_add_u32 v13, s44, v13", "v_add_u32 v14, s44, v14\nv_add_u32 v15, s44, v15",
                                   "v_add_u32 v16, s44, v16\nv_add_u32 v17, s44, v17", "s_cmp_lt_u32 s42, 10"])
    a("s_cbranch_scc1 L_g_loop\nL_g_end:")
    stamp(a, 3)
    a("ds_read_b32 v20, v19")

    def epi(scale, sc="sc1"):
        for p in range(2):
            for t in range(4):
                o = F1 + (p * 4 + t) * 4
                for h in range(2):
                    d = ACC + ((2 * p + h) * 4 + t) * 4
                    if scale:
                        a(f"v_pk_mul_f32 {vr(d,2)}, {vr(d,2)}, s[38:39]\nv_pk_mul_f32 {vr(d+2,2)}, {vr(d+2,2)}, s[38:39]")
                    a(f"v_cvt_pk_bf16_f32 v{o+2*h}, v{d}, v{d+1}\nv_cvt_pk_bf16_f32 v{o+2*h+1}, v{d+2}, v{d+3}")
                a(f"buffer_store_dwordx4 {vr(o,4)}, v18, s[24:27], s{34+p} offen offset:{t*256} {sc}")
    a(f"""s_cmp_ge_u32 s{CT}, 5
    s_cbranch_scc1 L_noscale
    s_mov_b32 s38, {f32(QSCALE)}
    s_mov_b32 s39, s38""")
    if OPT["qloc"]:
        a(f"""s_waitcnt lgkmcnt(0)
        v_cmp_eq_u32 vcc, 0, v20
        s_cbranch_vccnz L_q_far""")
        epi(True, "")
        a("s_branch L_pubflag\nL_q_far:")
        for i in range(0, 64, 2):
            a(f"v_pk_mul_f32 {vr(ACC+i,2)}, {vr(ACC+i,2)}, s[38:39]")
        a("L_noscale:")
    else:
        epi(True)
        a("s_branch L_pubflag\nL_noscale:")
    epi(False)
    a(f"""L_pubflag:
    s_lshl_b32 s36, s{XCD}, 4
    s_add_u32 s36, s36, s{CT}
    s_lshl_b32 s36, s36, 1
    s_and_b32 s37, s{WAVE}, 1
    s_add_u32 s36, s36, s37
    s_lshl_b32 s40, s36, 7
    s_lshl_b32 s36, s36, 4
    s_lshl_b32 s37, s{RBL}, 3
    s_and_b32 s38, s{WAVE}, 2
    s_lshl_b32 s38, s38, 1
    s_add_u32 s37, s37, s38
    s_add_u32 s36, s36, s37
    s_add_u32 s36, s36, {WS_FL}
    s_add_u32 s40, s40, s37
    s_add_u32 s40, s40, {WS_FR}
    s_waitcnt lgkmcnt(0)
    v_readfirstlane_b32 s{PURE}, v20
    s_waitcnt vmcnt(0)""")
    stamp(a, 4)
    flag_store(a, 36, True)
    a(f"""s_mov_b64 exec, 1
    v_mov_b32 v7, 1
    s_cmp_lt_u32 s{CT}, 5
    s_cbranch_scc1 L_norf
    buffer_store_dword v8, v9, s[24:27], s40 offen sc1
    L_norf:
    ds_add_u32 v19, v7 offset:{O_R}
    s_mov_b64 exec, -1""")


def router(a):
    a("L_router:")
    kc_init(a)
    kc_next(a, 33)
    a(f"""v_and_b32 v5, 1, v1
    v_lshlrev_b32 v5, 11, v5
    v_lshl_add_u32 v14, v4, 4, v5
    v_add_u32 v14, {L_WV}, v14
    L_r_loop:
    s_barrier
    s_lshl_b32 s36, s33, 7
    v_add_u32 v15, s36, v14""")
    for ks in range(2):
        a(f"""ds_read_b128 {vr(F0+12*ks,4)}, v15 offset:{ks*64}
        ds_read_b128 {vr(F0+12*ks+4,4)}, v{12+ks}
        ds_read_b128 {vr(F0+12*ks+8,4)}, v{12+ks} offset:2048""")
    kc_next(a, 33)
    a("""s_add_u32 s43, s43, 1
    s_cmp_eq_u32 s43, 6
    s_cselect_b32 s44, 0xfffec000, s45
    s_cselect_b32 s43, 0, s43
    v_add_u32 v12, s44, v12
    v_add_u32 v13, s44, v13
    s_waitcnt lgkmcnt(0)""")
    for ks in range(2):
        for t in range(2):
            a(f"v_mfma_f32_16x16x32_bf16 {vr(ACC+4*t,4)}, {vr(F0+12*ks,4)}, {vr(F0+12*ks+4+4*t,4)}, {vr(ACC+4*t,4)}")
    a(f"""s_add_u32 s42, s42, 1
    s_cmp_lt_u32 s42, 10
    s_cbranch_scc1 L_r_loop
    s_nop 1
    s_lshl_b32 s36, s{XCD}, 8
    s_lshl_b32 s37, s{RBL}, 7
    s_add_u32 s36, s36, s37
    s_lshl_b32 s37, s{WAVE}, 5
    s_add_u32 s36, s36, s37
    s_mov_b32 s37, {WS_G}""")
    stamp(a, 3)
    for t in range(2):
        a(f"""v_add3_u32 v20, s36, v3, {16*t}
        v_cvt_pk_bf16_f32 v{21+t}, v{ACC+4*t}, v{ACC+4*t+1}
        v_and_b32 v23, 0xffff0000, v{21+t}
        v_lshlrev_b32 v{21+t}, 16, v{21+t}""")
        sigmoid(a, 23, "v23")
        a(f"""v_cvt_pk_bf16_f32 v23, v23, v23
        v_and_b32 v{26+t}, 0xffff0000, v23
        v_lshlrev_b32 v24, 2, v20
        s_mov_b64 exec, 0xffff
        buffer_store_dword v{26+t}, v24, s[24:27], s37 offen sc1
        s_mov_b64 exec, -1
        v_ashrrev_i32 v24, 31, v{21+t}
        v_or_b32 v24, 0x80000000, v24
        v_xor_b32 v{21+t}, v{21+t}, v24
        v_and_b32 v{21+t}, 0xffff0000, v{21+t}
        v_sub_u32 v24, 0xffff, v20
        v_or_b32 v{21+t}, v{21+t}, v24""")
    top2(a, 21, 22, 25, 46, 47, 48)
    a(f"""s_lshr_b32 s36, s36, 1
    s_add_u32 s36, s36, {WS_CAND}
    v_mov_b32 v28, s46
    v_mov_b32 v29, s{TAG}
    v_mov_b32 v30, s47
    v_mov_b32 v31, s{TAG}
    v_mov_b32 v24, 0
    s_mov_b64 exec, 1
    buffer_store_dwordx4 v[28:31], v24, s[24:27], s36 offen sc1
    s_lshl_b32 s36, s{XCD}, 5
    s_add_u32 s36, s36, s{LOC}
    s_lshl_b32 s36, s36, 2
    s_add_u32 s36, s36, s{WAVE}
    s_lshl_b32 s36, s36, 2
    s_add_u32 s36, s36, {WS_FL}
    v_mov_b32 v9, 1
    s_waitcnt vmcnt(1)
    buffer_store_dword v29, v24, s[24:27], s36 offen sc1
    ds_add_u32 v19, v9 offset:{O_R}
    s_mov_b64 exec, -1""")
    stamp(a, 4)
    a("s_branch L_att_setup")


Q, QH, KH, K, V, P, S0, S1, O, M = 32, 36, 38, 40, 44, 52, 64, 80, 96, 112
KA, KHA, VA, QA, QHA, G, G2, XA, XR = 12, 13, 14, 15, 16, 17, 18, 19, 20
TT, NT, HI_ = 33, 34, 35
SQ, SQH = 46, 47


def diag_mask(a, old):
    a(f"""v_lshlrev_b32 v6, 2, v4
    v_sub_u32 v6, v3, v6
    v_mov_b32 v7, 0xff800000""")
    for r in range(0, 16, 2):
        k0, k1 = (r >> 2) * 8 + (r & 3), (r >> 2) * 8 + (r & 3) + 1
        a(f"""v_cmp_le_i32 s[44:45], {k0}, v6
        v_cmp_le_i32 s[48:49], {k1}, v6
        s_nop 0
        v_cndmask_b32_e64 v{S0+r}, v7, 0, s[44:45]
        v_cndmask_b32_e64 v{S0+r+1}, v7, 0, s[48:49]""")
        if old:
            a(f"""v_cndmask_b32_e64 v{M+r}, 0, v7, s[44:45]
            v_cndmask_b32_e64 v{M+r+1}, 0, v7, s[48:49]""")


def attention(a):
    SRC = WS_L
    a("L_att_setup:")
    a(f"""s_and_b32 s31, s{LOC}, 1
    s_mul_i32 s40, s{LOC}, 5
    s_lshr_b32 s40, s40, 1            ; c0
    s_sub_u32 s{TT}, 11, s{WAVE}
    s_cmp_lt_u32 s{WAVE}, 4
    s_cselect_b32 s{TT}, s{WAVE}, s{TT}
    s_add_u32 s36, s{TT}, 1
    s_cmp_eq_u32 s{XCD}, 0
    s_cselect_b32 s{NT}, s36, 9
    s_cselect_b32 s36, 4, 17
    s_movk_i32 s37, 0xff
    s_cselect_b32 s37, 0x3ff, s37
    s_lshl_b32 s36, s36, s{TT}
    s_and_b32 s{HI_}, s36, s37
    s_lshr_b32 s36, s{LOC}, 2
    s_xor_b32 s36, s36, s31
    s_andn2_b32 s41, 1, s36
    s_lshl_b32 s41, s41, 3
    s_xor_b32 s42, s31, 1
    s_lshl_b32 s42, s42, 1
    s_mul_i32 s36, s{XCD}, 240
    s_add_u32 s36, s36, s40
    s_lshl_b32 s43, s36, 12
    s_lshl_b32 s37, s{TT}, 9
    s_add_u32 s36, s43, s37
    s_lshl_b32 s38, s31, 12
    s_add_u32 s{SQ}, s36, s38
    s_lshl_b32 s38, s42, 12
    s_add_u32 s38, s38, s41
    s_add_u32 s{SQH}, s36, s38
    v_lshlrev_b32 v10, 4, v1
    v_and_b32 v3, 31, v1
    v_lshrrev_b32 v4, 5, v1
    v_lshlrev_b32 v5, 4, v3
    v_lshl_add_u32 v{QA}, v4, 12, v5
    v_lshl_add_u32 v{QHA}, v4, 28, v5
    s_mul_i32 s38, s31, {CS}
    s_add_u32 s38, s38, s37
    v_mul_u32_u24 v6, {CS}, v4
    v_add3_u32 v{KA}, v6, v5, s38
    s_mul_i32 s38, s42, {CS}
    s_add_u32 s38, s38, s41
    s_add_u32 s38, s38, s37
    v_add_u32 v6, s38, v5
    v_mov_b32 v9, {L_ONES}
    v_cmp_eq_u32 s[44:45], 0, v4
    v_bfe_u32 v7, v1, 4, 1
    v_and_b32 v8, 3, v1
    v_add_u32 v11, 8, v9
    v_cndmask_b32_e64 v{KHA}, v11, v6, s[44:45]
    v_lshl_add_u32 v6, v7, 2, v8      ; gamma
    v_add_u32 v7, s31, v6
    v_lshrrev_b32 v8, 1, v7
    v_add_u32 v11, s40, v8
    v_lshrrev_b32 v11, 1, v11
    v_xor_b32 v7, v7, v11
    v_and_b32 v7, 1, v7
    v_mul_u32_u24 v8, {CS}, v8
    v_lshl_add_u32 v8, v7, 3, v8
    s_add_u32 s38, s37, {L_V}
    v_add_u32 v8, s38, v8
    v_cmp_gt_u32 s[44:45], 5, v6
    v_bfe_u32 v7, v1, 2, 2
    v_lshl_add_u32 v7, v4, 2, v7
    v_cndmask_b32_e64 v8, v9, v8, s[44:45]
    v_lshl_add_u32 v{VA}, v7, 4, v8""")
    diag_mask(a, True)
    a(f"""s_lshr_b32 s36, s{WAVE}, 2
    s_mul_i32 s37, s36, {L_V}
    s_add_u32 s36, s36, 1
    s_mul_i32 s36, s36, {80*4096}
    s_add_u32 s36, s36, s43
    s_and_b32 s38, s{WAVE}, 3
    s_mul_i32 s38, s38, 3
    v_and_b32 v5, 15, v1
    v_mul_u32_u24 v6, 160, v5
    v_lshrrev_b32 v7, 4, v1
    v_lshl_add_u32 v6, v7, 3, v6
    s_and_b32 s39, s{WAVE}, 3
    s_mul_i32 s44, s39, 2560
    v_add_u32 v{XA}, s44, v6
    s_and_b32 s44, s{LOC}, 3
    s_lshl_b32 s44, s44, {5 if OPT["rowmap"] else 6}
    s_lshl_b32 s45, s{XCD}, 8
    s_add_u32 s48, s44, s45
    s_and_b32 s44, s39, 1
    s_lshl_b32 s44, s44, 4
    s_add_u32 s51, s48, s44
    s_and_b32 s44, s39, 2
    s_lshl_b32 s44, s44, {6 if OPT["rowmap"] else 4}
    s_add_u32 s51, s51, s44
    s_lshl_b32 s39, s{TT}, 5
    s_add_u32 s39, s39, s45
    v_add_lshl_u32 v6, s39, v3, 2
    v_add_lshl_u32 v7, s51, v5, 2
    s_mov_b32 s39, {WS_G}
    v_add_u32 v11, {L_XT}, v{XA}
    v_mov_b32 v30, {M_PURE}
    v_mov_b32 v2, 1
    v_mov_b32 v60, s{TAG}
    v_mov_b32 v61, 0
    s_mov_b32 s40, 0""")
    for t in range(5):
        a(f"ds_read_b64 {vr(XR+2*t,2)}, v11 offset:{t*32}")
    a("s_waitcnt lgkmcnt(0)\ns_barrier")
    stamp(a, 5)
    for i in range(3):
        a(f"""s_add_u32 s44, s38, {i}
        s_lshr_b32 s45, s44, 2
        s_mul_i32 s45, s45, {CS-4096}
        s_lshl_b32 s44, s44, 10
        s_add_u32 s45, s45, s44
        s_add_u32 s45, s45, s37
        s_add_u32 m0, s45, 4096
        s_add_u32 s44, s44, s36
        buffer_load_dwordx4 v10, s[24:27], s44 offen sc1 lds""")
    a(f"""buffer_load_dwordx4 {vr(Q,4)}, v{QA}, s[24:27], s{SQ} offen sc1
    buffer_load_dwordx2 {vr(QH,2)}, v{QHA}, s[24:27], s{SQH} offen sc1
    buffer_load_dword v{G}, v6, s[24:27], s39 offen sc1
    buffer_load_dword v{G2}, v7, s[24:27], s39 offen sc1""")
    a("s_waitcnt vmcnt(0)")
    a("ds_read_b32 v31, v30")
    lds_add(a, O_B2)
    lds_wait(a, O_B2, 8)
    if OPT["aprio"]:
        a(f"s_setprio {OPT['aprio']}")
    stamp(a, 6)
    off = lambda i: (8 - i) * 512
    rdK = lambda i: f"ds_read_b128 {vr(K,4)}, v{KA} offset:{off(i)}"
    rdKH = lambda i: f"ds_read_b64 {vr(KH,2)}, v{KHA} offset:{off(i)}"
    rdV = lambda i, h: f"ds_read_b64_tr_b16 {vr(V+4*h,2)}, v{VA} offset:{off(i)+256*h}\nds_read_b64_tr_b16 {vr(V+4*h+2,2)}, v{VA} offset:{off(i)+256*h+128}"
    stubs = []
    def halo_check(tval):
        stubs.append(tval)
        a(f"s_bitcmp1_b32 s{HI_}, {tval}\ns_cbranch_scc1 L_hw{tval}\nL_hr{tval}:")
    a("L_att_go:")
    a(rdK(0)); a(rdKH(0)); a(rdV(0, 0))
    halo_check(0)
    a(f"""s_waitcnt lgkmcnt(2)
    v_mfma_f32_32x32x16_bf16 {vr(S0,16)}, {vr(K,4)}, {vr(Q,4)}, {vr(S0,16)}""")
    a(rdK(1))
    a(f"v_mfma_f32_32x32x8_bf16 {vr(S0,16)}, {vr(KH,2)}, {vr(QH,2)}, {vr(S0,16)}")
    a(rdKH(1))
    a(f"""v_readfirstlane_b32 s{PURE}, v31
    s_nop 4
    s_waitcnt lgkmcnt(0)""")

    def softq(S, q):
        for j in range(4):
            a(f"v_exp_f32 v{S+4*q+j}, v{S+4*q+j}")
        for j in range(2):
            a(f"v_cvt_pk_bf16_f32 v{P+2*q+j}, v{S+4*q+2*j}, v{S+4*q+2*j+1}")

    for i in range(9):
        S, SN = (S0, S1) if i % 2 == 0 else (S1, S0)
        halo_check(i + 1)
        if i > 0:
            a("s_waitcnt lgkmcnt(2)")
        if i < 8:
            c = vr(M, 16) if i + 1 == 8 else "0"
            a(f"v_mfma_f32_32x32x16_bf16 {vr(SN,16)}, {vr(K,4)}, {vr(Q,4)}, {c}")
        nread = 0
        if i < 7:
            a(rdK(i + 2)); nread += 1
        softq(S, 0)
        if i > 0:
            a(f"v_mfma_f32_32x32x16_bf16 {vr(O,16)}, {vr(V+4,4)}, {vr(P+4,4)}, {vr(O,16)}")
        a(rdV(i, 1)); nread += 2
        softq(S, 1)
        if i < 8:
            a(f"v_mfma_f32_32x32x8_bf16 {vr(SN,16)}, {vr(KH,2)}, {vr(QH,2)}, {vr(SN,16)}")
        if i < 7:
            a(rdKH(i + 2)); nread += 1
        softq(S, 2)
        a(f"s_waitcnt lgkmcnt({nread})")
        a(f"v_mfma_f32_32x32x16_bf16 {vr(O,16)}, {vr(V,4)}, {vr(P,4)}, {'0' if i == 0 else vr(O,16)}")
        if i < 8:
            a(rdV(i + 1, 0))
        softq(S, 3)
    a(f"""L_att_fin:
    s_waitcnt lgkmcnt(0)
    s_nop 0
    v_mfma_f32_32x32x16_bf16 {vr(O,16)}, {vr(V+4,4)}, {vr(P+4,4)}, {vr(O,16)}
    s_lshl_b32 s36, s{XCD}, 3
    s_add_u32 s36, s36, s{TT}
    s_lshl_b32 s36, s36, 5
    s_add_u32 s36, s36, s{LOC}
    s_lshl_b32 s36, s36, 2
    s_add_u32 s36, s36, {WS_FO}
    s_mov_b32 s37, {f32(2.0**-64)}
    s_mov_b32 s38, {f32(2.0**64 if not OPT['forcefb'] else 2.0**12)}
    s_nop 3
    v_rcp_f32 v8, v{O+12}
    v_cmp_nle_f32 s[44:45], s37, v{O+12}
    v_cmp_nge_f32 vcc, s38, v{O+12}
    v_mul_f32 v8, v8, v{G}
    s_or_b64 vcc, vcc, s[44:45]
    s_cbranch_vccnz L_fallback
    L_att_ok:""")
    for r in range(6):
        a(f"v_pk_mul_f32 {vr(O+2*r,2)}, {vr(O+2*r,2)}, v[8:9] op_sel_hi:[1,0]")
    for r in range(6):
        a(f"v_cvt_pk_bf16_f32 v{P+r}, v{O+2*r}, v{O+2*r+1}")
    def pub(sc):
        a(f"""buffer_store_dwordx4 {vr(P,4)}, v{QA}, s[24:27], s{SQ} offen {sc}
        buffer_store_dwordx2 {vr(P+4,2)}, v{QHA}, s[24:27], s{SQH} offen {sc}""")
        stamp(a, 7)
        a(f"""s_mov_b64 exec, 1
        ds_add_u32 v30, v2 offset:{O_ATT}
        s_waitcnt vmcnt(0)
        buffer_store_dword v60, v61, s[24:27], s36 offen {sc}
        s_mov_b64 exec, -1""")
    two_flavours(a, pub)
    stamp(a, 8)
    return stubs


def att_stubs(a, stubs):
    for t in stubs:
        a(f"L_hw{t}:")
        if t >= 8:
            a("s_branch L_att_fin")
            continue
        if t >= 2:
            a(f"s_cmp_eq_u32 s{XCD}, 0\ns_cbranch_scc1 L_att_fin")
        a(f"""s_cmp_eq_u32 s{TT}, {t}
        s_cselect_b32 s36, 1, 2
        s_mov_b32 s50, {SPIN*8}
        L_hs{t}:
        ds_read_b32 v9, v30 offset:4
        s_sub_u32 s50, s50, 1
        s_cbranch_scc1 L_hr{t}
        s_waitcnt lgkmcnt(0)
        v_cmp_gt_u32 vcc, s36, v9
        s_cbranch_vccnz L_hs{t}
        s_branch L_hr{t}""")
    a(f"""L_fallback:
    s_cmp_lg_u32 s40, 0
    s_cbranch_scc1 L_att_ok
    s_mov_b32 s40, 1""")
    diag_mask(a, False)
    a(f"""v_mov_b32 v8, 0xff800000
    v_add_u32 v5, 4096, v{KA}
    v_add_u32 v6, 4096, v{KHA}
    s_mov_b32 s36, 0
    L_fb_loop:
    ds_read_b128 {vr(K,4)}, v5
    ds_read_b64 {vr(KH,2)}, v6
    v_subrev_u32 v5, 512, v5
    v_subrev_u32 v6, 512, v6
    s_waitcnt lgkmcnt(0)
    s_cmp_eq_u32 s36, 0
    s_cbranch_scc1 L_fb_a
    s_cmp_eq_u32 s36, 8
    s_cbranch_scc1 L_fb_b
    v_mfma_f32_32x32x16_bf16 {vr(S1,16)}, {vr(K,4)}, {vr(Q,4)}, 0
    s_branch L_fb_c
    L_fb_a:
    v_mfma_f32_32x32x16_bf16 {vr(S1,16)}, {vr(K,4)}, {vr(Q,4)}, {vr(S0,16)}
    s_branch L_fb_c
    L_fb_b:
    v_mfma_f32_32x32x16_bf16 {vr(S1,16)}, {vr(K,4)}, {vr(Q,4)}, {vr(M,16)}
    L_fb_c:
    v_mfma_f32_32x32x8_bf16 {vr(S1,16)}, {vr(KH,2)}, {vr(QH,2)}, {vr(S1,16)}
    s_nop 11""")
    for r in range(0, 16, 2):
        a(f"v_max3_f32 v8, v8, v{S1+r}, v{S1+r+1}")
    a(f"""s_add_u32 s36, s36, 1
    s_cmp_lt_u32 s36, s{NT}
    s_cbranch_scc1 L_fb_loop
    v_mov_b32 v9, v8
    s_nop 1
    v_permlane32_swap_b32 v8, v9
    v_max_f32 v8, v8, v9
    v_sub_f32 v8, 0, v8
    v_and_b32 v5, 0xffff0000, v8
    v_sub_f32 v8, v8, v5
    v_and_b32 v6, 0xffff0000, v8
    v_sub_f32 v8, v8, v6
    v_lshrrev_b32 v5, 16, v5
    v_or_b32 v5, v5, v6
    v_lshrrev_b32 v8, 16, v8
    v_cmp_eq_u32 s[44:45], 0, v4
    s_nop 1
    v_cndmask_b32_e64 v{QH}, v5, v{QH}, s[44:45]
    v_cndmask_b32_e64 v{QH+1}, v8, v{QH+1}, s[44:45]
    s_branch L_att_go""")


OF, NOF, PA, WF = 64, 14, 32, 120
def outproj(a):
    a(f"""s_cmp_lt_u32 s{WAVE}, 4
    s_cbranch_scc1 L_op_main
    s_waitcnt lgkmcnt(0)""")
    def owner():
        lp, lo = uid("tv"), uid("to")
        a(f"""s_mov_b32 s50, {SPIN*8}
        {lp}:
        ds_read_b64 v[62:63], v30 offset:16
        s_sub_u32 s50, s50, 1
        s_waitcnt lgkmcnt(0)
        s_cbranch_scc1 {lo}
        v_cmp_eq_u32 vcc, 0, v62
        s_cbranch_vccnz {lp}
        {lo}:""")
        a(owner_txt)
    owner_txt = f"""v_readfirstlane_b32 s42, v62
    v_readfirstlane_b32 s43, v63
    s_and_b32 s42, s42, 0xffff
    s_lshr_b32 s32, s{LOC}, 2
    v_add_u32 v9, s51, v3
    v_mov_b32 v7, 320
    v_cmp_eq_u32 s[44:45], s43, v9
    v_cmp_eq_u32 s[48:49], s42, v9
    v_lshl_add_u32 v25, v4, 4, v30
    v_cndmask_b32_e64 v7, 0, v7, s[44:45]
    v_add_u32 v25, v25, v7
    s_or_b64 s[44:45], s[44:45], s[48:49]"""
    finish(a)
    WA = 160
    a(f"""L_op_main:
    {"s_setprio 0" if OPT["aprio"] else ""}
    s_load_dwordx2 s[8:9], s[0:1], 72
    v_and_b32 v3, 15, v1
    v_lshrrev_b32 v4, 4, v1
    v_lshrrev_b32 v5, 1, v4
    v_add_u32 v6, v4, v5
    v_lshlrev_b32 v7, 4, v3
    v_lshl_add_u32 v12, v6, 12, v7
    v_and_b32 v6, 1, v4
    v_lshl_add_u32 v8, v6, 1, v5
    v_mul_u32_u24 v9, {5*4096}, v8
    v_add_u32 v13, v9, v7
    v_mul_u32_u24 v5, 20, v5
    v_lshl_add_u32 v5, v6, 2, v5
    v_bfe_u32 v7, v1, 2, 2
    v_add_u32 v5, v5, v7
    v_mul_u32_u24 v5, 160, v5
    v_and_b32 v9, 3, v1
    v_lshlrev_b32 v9, 3, v9
    v_add_u32 v9, {L_WO}, v9
    v_add_u32 v14, v5, v9
    v_add_u32 v15, {8*6400}, v14
    v_mul_u32_u24 v8, 40, v8
    v_add3_u32 v8, v8, v7, 16
    v_mul_u32_u24 v8, 160, v8
    v_add_u32 v8, v8, v9
    v_mul_u32_u24 v6, 3200, v6
    v_add_u32 v{WA+1}, v8, v6
    v_sub_u32 v{WA}, v8, v6
    v_add_u32 v{WA}, 3200, v{WA}
    v_add_u32 v{WA+2}, {8*6400}, v{WA}
    v_add_u32 v{WA+3}, {8*6400}, v{WA+1}
    v_sub_f32 v{G2}, 1.0, v{G2}""")
    for t in range(5):
        for j in range(2):
            a(f"""v_lshlrev_b32 v{PA+4*t+2*j}, 16, v{XR+2*t+j}
            v_and_b32 v{PA+4*t+2*j+1}, 0xffff0000, v{XR+2*t+j}""")
    for i in range(20):
        a(f"v_mul_f32 v{PA+i}, v{G2}, v{PA+i}")
    for n in range(3):
        a(f"""v_add_u32 v5, {64*n}, v1
        v_mul_u32_u24 v6, 6554, v5
        v_lshrrev_b32 v6, 16, v6
        v_mul_u32_u24 v7, 10, v6
        v_sub_u32 v7, v5, v7
        v_mul_u32_u24 v6, 1280, v6
        v_lshl_add_u32 v{21+n}, v7, 4, v6""")
    a(f"""v_lshrrev_b32 v5, 5, v1
    v_lshl_add_u32 v23, v5, 28, v23
    s_mul_i32 s36, s{WAVE}, 2560
    v_add_u32 v24, s36, v10
    s_waitcnt lgkmcnt(0)""")
    owner()
    srd(a, SA, 8, 2621440)
    a(f"""s_mul_i32 s40, s51, 1280
    s_mul_i32 s37, s32, 160
    s_add_u32 s40, s40, s37
    s_lshr_b32 s36, s51, 5
    s_lshl_b32 s36, s36, 7
    s_add_u32 s36, s36, {WS_FO}
    v_and_b32 v5, 31, v1
    v_lshlrev_b32 v5, 2, v5
    s_mul_i32 s37, s{XCD}, {XB}
    s_and_b32 s38, s51, 255
    s_lshl_b32 s38, s38, 4
    s_add_u32 s37, s37, s38
    s_add_u32 s38, s37, 8192""")
    lds_wait(a, O_WO, 1)
    stamp(a, 9)

    def wread(s, t):
        f = WF + 20 * (s & 1) + 4 * t
        if s < 16:
            b = 14 if s < 8 else 15
            b2, o, d = b, (s % 8) * 6400, 1280
        else:
            b = WA if s < 18 else WA + 2
            b2, o, d = b + 1, (s % 2) * 25600, 0
        a(f"""ds_read_b64_tr_b16 v[{f}:{f+1}], v{b} offset:{o+t*32}
        ds_read_b64_tr_b16 v[{f+2}:{f+3}], v{b2} offset:{o+t*32+d}""")

    def oload(s):
        r = OF + 4 * (s % NOF)
        if s < 16:
            a(f"buffer_load_dwordx4 {vr(r,4)}, v12, s[24:27], s37 offen sc1\ns_add_u32 s37, s37, {5*4096}")
        else:
            a(f"buffer_load_dwordx4 {vr(r,4)}, v13, s[24:27], s38 offen sc1\ns_add_u32 s38, s38, {20*4096}")
    pl = "buffer_load_dword v6, v5, s[24:27], s36 offen sc1"
    a(pl)
    for t in range(5):
        wread(0, t)
    a("s_waitcnt lgkmcnt(4)")
    for t in range(5):
        wread(1, t)
    poll(a, pl, [6], pre=True)
    stamp(a, 10)
    NL0 = OPT["nl0"]
    assert NL0 <= 5
    for s in range(NL0):
        oload(s)
    a("""s_cmp_eq_u64 s[44:45], 0
    s_cbranch_scc1 L_op_loop""")
    lp = uid("yw")
    a(f"""s_mov_b32 s50, {SPIN*8}
    {lp}:
    ds_read_b32 v9, v30 offset:{O_Y}""")
    for t in range(5):
        a(f"ds_read_b128 {vr(84+4*t,4)}, v25 offset:{L_Y-L_MISC+t*64}")
    a(f"""s_sub_u32 s50, s50, 1
    s_waitcnt lgkmcnt(0)
    s_cbranch_scc1 L_op_loop
    v_cmp_ne_u32 vcc, 1, v9
    s_cbranch_vccnz {lp}
    s_mov_b64 exec, s[44:45]""")
    for i in range(20):
        a(f"v_fmac_f32 v{PA+i}, v{G2}, v{84+i}")
    a("s_mov_b64 exec, -1\nL_op_loop:")
    for s in range(20):
        issued = min(20, NL0 + s)
        a(f"s_waitcnt vmcnt({issued-1-s}) lgkmcnt({10 if s < 19 else 0})")
        for t in range(5):
            a(f"v_mfma_f32_16x16x32_bf16 {vr(PA+4*t,4)}, {vr(WF+20*(s&1)+4*t,4)}, {vr(OF+4*(s%NOF),4)}, {vr(PA+4*t,4)}")
            if s < 18:
                wread(s + 2, t)
            if t == 0 and NL0 + s < 20:
                oload(NL0 + s)
            if s == 18 and t == 0:
                a(f"ds_read_b32 v9, v30 offset:{O_ATT}")
    a("L_op_end:")
    stamp(a, 11)
    lds_wait(a, O_ATT, 8, pre=True)
    for t in range(5):
        a(f"""v_cvt_pk_bf16_f32 v{WF+2*t}, v{PA+4*t}, v{PA+4*t+1}
        v_cvt_pk_bf16_f32 v{WF+2*t+1}, v{PA+4*t+2}, v{PA+4*t+3}
        ds_write_b64 v{XA}, {vr(WF+2*t,2)} offset:{t*32}""")
    for n in range(3):
        a(f"ds_read_b128 {vr(OF+4*n,4)}, v24 offset:{n*1024}")
    for n in range(3):
        a(f"s_waitcnt lgkmcnt({2-n})\nbuffer_store_dwordx4 {vr(OF+4*n,4)}, v{21+n}, s[52:55], s40 offen {OPT['osc']}")
    stamp(a, 12)
    if OPT["probe"]:
        pa, pb = [int(x) for x in OPT["probe"].split("_")]
        a(f"""s_sub_u32 s36, s{62+2*pb}, s{62+2*pa}
        s_lshl_b32 s36, s36, 2
        s_min_u32 s36, s36, 20000
        s_cmp_ge_u32 s2, 240
        s_cselect_b32 s36, 0, s36
        s_memrealtime s[38:39]
        s_waitcnt lgkmcnt(0)
        s_add_u32 s36, s36, s38
        L_probe:
        s_sleep 2
        s_memrealtime s[38:39]
        s_waitcnt lgkmcnt(0)
        s_sub_u32 s37, s38, s36
        s_cmp_lt_i32 s37, 0
        s_cbranch_scc1 L_probe""")
    finish(a, True)


def wo_offsets(a):
    for n in range(5):
        a(f"""v_add_u32 v5, {64*n}, v1
        v_mul_u32_u24 v6, 6554, v5
        v_lshrrev_b32 v6, 16, v6
        v_mul_u32_u24 v8, 10, v6
        v_sub_u32 v8, v5, v8
        v_mul_u32_u24 v6, 1280, v6
        v_lshl_add_u32 v{WOV+n}, v8, 4, v6""")


WOV = 160
def wo_groups(a, g0, g1):
    lp = uid("wo")
    a(f"""s_mov_b32 m0, {L_WO+g0*5120}
    s_add_u32 s41, s34, {g0*40960}
    s_movk_i32 s44, 0x400
    {lp}:""")
    for j in range(5):
        a(f"""buffer_load_dwordx4 v{WOV+j}, s[20:23], s41 offen lds
        s_add_u32 m0, m0, s44
        {"s_nop 0" if j < 4 else "s_add_u32 s41, s41, 40960"}""")
    a(f"""s_cmp_lt_u32 m0, {L_WO+g1*5120}
    s_cbranch_scc1 {lp}""")


def purity(a):
    a(f"""v_cmp_ne_u32 vcc, s{TAG}, v12
    v_cmp_ne_u32 s[44:45], s35, v13
    s_or_b64 vcc, vcc, s[44:45]
    s_cselect_b32 s36, 0, {0 if OPT['forceimp'] else 1}
    v_mov_b32 v5, s36
    ds_write_b32 v30, v5
    s_waitcnt lgkmcnt(0)""")


def helper1(a):
    a(f"""L_help:
    s_cmp_eq_u32 s{WAVE}, 9
    s_cbranch_scc1 L_ffn
    s_load_dwordx2 s[40:41], s[0:1], 16
    s_load_dwordx2 s[8:9], s[0:1], 32
    s_load_dwordx2 s[10:11], s[0:1], 64
    v_lshlrev_b32 v10, 4, v1""")
    a(f"""v_mov_b32 v16, {"0x3f80" if OPT["ones"] else "0x3f803f80"}
    v_mov_b32 v17, {"0" if OPT["ones"] else "0x3f803f80"}
    v_mov_b32 v18, 0x3f803f80
    v_mov_b32 v19, 0x3f80
    v_add_u32 v5, {L_ONES}, v10""")
    for i in range(5):
        a(f"ds_write_b128 v5, v[16:19] offset:{i*1024}")
    a(f"""v_mov_b32 v30, {M_PURE}
    v_mov_b32 v6, 0
    v_lshl_add_u32 v7, v1, 2, v30
    ds_write_b32 v7, v6""")
    if OPT["prio"]:
        a("s_setprio 3")
    wo_offsets(a)
    a("s_waitcnt lgkmcnt(0)")
    epoch_load(a)
    srd(a, SX, 4, 2621440)
    srd(a, SW, 40, 819200)
    srd(a, SS, 12, WS_END)
    srd(a, SA, 8, 1280)
    srd(a, SB, 10, 1280)
    a(f"""s_cmp_lg_u32 s{CT}, 15
    s_cbranch_scc1 L_nowv
    s_mov_b32 m0, {L_WV}
    s_nop 0
    buffer_load_dwordx4 v10, s[52:55], 0 offen lds
    buffer_load_dwordx4 v10, s[52:55], 0 offen offset:1024 lds
    s_mov_b32 m0, {L_WV+2048}
    s_nop 0
    buffer_load_dwordx4 v10, s[56:59], 0 offen lds
    buffer_load_dwordx4 v10, s[56:59], 0 offen offset:1024 lds
    L_nowv:
    s_getreg_b32 s35, hwreg(HW_REG_XCC_ID, 0, 4)
    s_lshr_b32 s34, s{LOC}, 2
    s_mul_i32 s34, s34, 160
    s_mul_i32 s33, s{LOC}, 5
    s_lshr_b32 s33, s33, 1             ; c0
    v_bfe_u32 v5, v1, 2, 1
    v_lshl_add_u32 v6, v5, 1, s33
    v_lshrrev_b32 v6, 3, v6
    v_bfe_u32 v7, v1, 3, 2
    v_cmp_eq_u32 s[44:45], 3, v7
    v_and_b32 v8, 3, v1
    v_lshlrev_b32 v8, 2, v8
    v_cndmask_b32_e64 v5, v6, v5, s[44:45]
    v_mad_u32_u24 v5, v7, 10, v5
    v_lshl_add_u32 v11, v5, 4, v8
    v_and_b32 v7, 1, v7
    v_mad_u32_u24 v5, v7, 10, v6
    v_add_u32 v5, 10, v5
    v_lshl_add_u32 v15, v5, 7, v8
    v_and_b32 v14, 31, v1
    v_lshlrev_b32 v14, 3, v14
    s_lshl_b32 s42, s{XCD}, 8
    s_add_u32 s42, s42, {WS_XID}""")
    epoch_fin(a)
    stamp(a, 1)
    a(f"""s_waitcnt vmcnt(0)
    s_barrier
    s_lshl_b32 s36, s{LOC}, 3
    s_add_u32 s36, s36, s42
    v_mov_b32 v8, s{TAG}
    v_mov_b32 v9, s35
    v_mov_b32 v5, 0
    s_mov_b64 exec, 1
    buffer_store_dwordx2 v[8:9], v5, s[24:27], s36 offen {'sc1' if OPT['xsc'] else ''}
    s_mov_b64 exec, -1""")
    def qtouch():
        if OPT["qown"]:
            l = uid("nq")
            a(f"""s_cmp_ge_u32 s{CT}, 5
            s_cbranch_scc1 {l}
            s_mul_i32 s36, s{XCD}, {XB}
            s_lshl_b32 s37, s{CT}, 16
            s_add_u32 s36, s36, s37
            s_lshl_b32 s37, s{RBL}, 11
            s_add_u32 s36, s36, s37
            v_and_b32 v5, 15, v1
            v_lshlrev_b32 v5, 7, v5
            v_lshl_add_u32 v5, v4, 12, v5""")
            for i in range(4):
                a("buffer_load_dword v167, v5, s[24:27], s36 offen sc1\ns_add_u32 s36, s36, 16384")
            a(f"{l}:")
            return
        a(f"""s_mul_i32 s36, s{XCD}, {XB}
        s_mul_i32 s37, s{LOC}, 10240
        s_add_u32 s36, s36, s37
        s_add_u32 s37, s36, 5120
        v_min_u32 v5, 39, v1
        v_lshlrev_b32 v5, 7, v5
        buffer_load_dword v167, v5, s[24:27], s36 offen sc1
        buffer_load_dword v167, v5, s[24:27], s37 offen sc1""")
    a(f"""s_and_b32 s38, s{LOC}, 3
    s_lshl_b32 s38, s38, 5
    s_lshl_b32 s39, s{XCD}, 8
    s_add_u32 s38, s38, s39
    s_mul_i32 s38, s38, 1280
    s_add_u32 s38, s38, s34
    s_add_u32 s39, s38, {128*1280}""")
    side = {i: [] for i in range(7)}
    def spread(items, spec):
        a0, a1 = [int(x) for x in spec.split("_")]
        n = a1 - a0 + 1
        for k, it in enumerate(items):
            side[a0 + k * n // len(items)].append(it)
    spread([f"""s_mov_b32 m0, {L_XT+n*1024}
        s_nop 0
        buffer_load_dwordx4 v{WOV+n%5}, s[16:19], s{38+n//5} offen lds""" for n in range(10)], OPT["xs"])
    if OPT["wsn"]:
        spread([f"""s_mov_b32 m0, {L_WO+n*1024}
        s_add_u32 s36, s34, {(n//5)*40960}
        buffer_load_dwordx4 v{WOV+n%5}, s[20:23], s36 offen lds""" for n in range(65 - 5 * OPT["wsn"], 65)], OPT["ws"])
    for i in range(7):
        if OPT["qloc"] and OPT["qat"] == i:
            qtouch()
        for it in side[i]:
            a(it)
        if i < 6:
            a("s_barrier")
    a(f"""s_cmp_lg_u32 s{CT}, 15
    s_cbranch_scc1 L_h_g
    s_barrier
    s_barrier
    s_waitcnt vmcnt(0)
    s_barrier
    buffer_load_dwordx2 v[12:13], v14, s[24:27], s42 offen sc1
    s_branch L_h_p
    L_h_g:
    buffer_load_dwordx2 v[12:13], v14, s[24:27], s42 offen sc1
    s_barrier
    s_barrier
    L_h_p:
    s_waitcnt vmcnt(0)""")
    purity(a)
    if OPT["qloc"] and OPT["qat"] == 8:
        qtouch()
    a(f"""s_cmp_eq_u32 s{CT}, 15
    s_cbranch_scc1 L_h_q
    s_barrier
    L_h_q:""")
    lds_wait(a, O_R, 4)
    a(f"""s_lshl_b32 s36, s{XCD}, 9
    s_add_u32 s36, s36, {WS_FL}""")
    stamp(a, 2)
    poll(a, "buffer_load_dword v12, v11, s[24:27], s36 offen sc1", [12])
    stamp(a, 4)
    a(f"""s_lshl_b32 s36, s{XCD}, 12
    s_add_u32 s36, s36, {WS_FR-4096}
    s_barrier
    buffer_load_dword v12, v15, s[24:27], s36 offen sc1""")
    a(f"""s_cmp_eq_u32 s{XCD}, 0
    s_cbranch_scc1 L_nohalo""")
    poll(a, "buffer_load_dword v12, v15, s[24:27], s36 offen sc1", [12], pre=True)
    if OPT["hdel"]:
        lds_wait(a, O_B2, OPT["hdel"])
    stamp(a, 7)
    a(f"""s_mul_i32 s36, s{XCD}, 240
    s_add_u32 s36, s36, s33
    s_lshl_b32 s36, s36, 12
    s_add_u32 s36, s36, {(WS_L - XB + 80*4096) & 0xffffffff}""")
    for q in (3, 2, 1, 0):
        for sec in range(2):
            for j in range(3):
                a(f"""s_mov_b32 m0, {sec*L_V + j*CS + q*1024}
                s_add_u32 s37, s36, {sec*80*4096 + j*4096 + q*1024}
                buffer_load_dwordx4 v10, s[24:27], s37 offen sc1 lds""")
    a("""v_mov_b32 v5, 1
    s_waitcnt vmcnt(12)
    ds_write_b32 v30, v5 offset:4
    L_nohalo:""")
    stamp(a, 6)
    wo_groups(a, 0, 2)
    a("""v_mov_b32 v5, 2
    s_waitcnt vmcnt(10)
    ds_write_b32 v30, v5 offset:4""")
    stamp(a, 8)
    if OPT["wsn"]:
        wo_groups(a, 2, 13 - OPT["wsn"])
        wo_groups(a, 13, 20)
    else:
        wo_groups(a, 2, 20)
    a("s_waitcnt vmcnt(0)")
    lds_add(a, O_WO)
    a("s_waitcnt lgkmcnt(0)")
    stamp(a, 9)
    a(f"""s_cmp_lg_u32 s2, 255
    s_cbranch_scc1 L_h1_end
    s_mov_b32 s36, {WS_P2+4}
    v_min_u32 v5, 59, v1
    v_lshlrev_b32 v5, 12, v5""")
    lds_wait(a, 16, 1)
    if OPT["epx"]:
        a(f"s_mov_b32 s36, {WS_XID}")
        poll(a, "buffer_load_dwordx4 v[12:15], v10, s[24:27], s36 offen sc1\nbuffer_load_dwordx4 v[16:19], v10, s[24:27], s36 offen offset:1024 sc1", [12, 14, 16, 18])
    else:
        poll(a, "\n".join(f"buffer_load_dword v{12+i}, v5, s[24:27], s36 offen offset:{i*1024} sc1" for i in range(4)), [12, 13, 14, 15])
    a(f"s_mov_b32 s36, {WS_EP}")
    flag_store(a, 36, False)
    a("L_h1_end:")
    finish(a)


def sel_by_g(a, o, b, st, tag=True):
    a(f"""v_cndmask_b32_e64 v{o}, v{b}, v{b+st}, s[44:45]
    v_cndmask_b32_e64 v{o}, v{o}, v{b+2*st}, s[46:47]
    v_cndmask_b32_e64 v{o}, v{o}, v{b+3*st}, s[48:49]""")
    if tag:
        a(f"v_mov_b32 v{o+1}, s{TAG}")


def ffn(a):
    a(f"""L_ffn:
    s_load_dwordx4 s[8:11], s[0:1], 40
    s_load_dwordx2 s[40:41], s[0:1], 56
    v_lshlrev_b32 v10, 4, v1
    s_mul_i32 s33, s{XCD}, 30
    s_add_u32 s33, s33, s{LOC}         ; job
    s_mul_i32 s34, s33, 6554
    s_lshr_b32 s34, s34, 16            ; b
    s_mul_i32 s35, s34, 10
    s_sub_u32 s35, s33, s35
    v_lshrrev_b32 v5, 3, v1
    v_and_b32 v7, 7, v1
    v_mul_u32_u24 v6, 3072, v5
    v_lshl_add_u32 v11, v7, 4, v6
    v_mul_u32_u24 v6, 1280, v5
    v_lshl_add_u32 v12, v7, 4, v6
    v_bfe_u32 v6, v1, 2, 2
    v_lshl_add_u32 v6, v4, 3, v6
    v_lshlrev_b32 v6, 7, v6
    v_and_b32 v8, 3, v1
    v_lshl_add_u32 v6, v8, 3, v6
    v_add_u32 v13, {L_FW}, v6
    v_mov_b32 v30, {M_PURE}
    s_mul_i32 s38, s35, 64*3072
    s_lshl_b32 s36, s34, 7
    s_add_u32 s38, s38, s36
    s_mul_i32 s39, s34, 64*1280
    s_lshl_b32 s36, s35, 7
    s_add_u32 s39, s39, s36
    s_waitcnt lgkmcnt(0)""")
    epoch_load(a)
    srd(a, SX, 4, 2621440)
    srd(a, SW, 40, 1966080)
    srd(a, SS, 12, WS_END)
    srd(a, SA, 8, 1966080)
    srd(a, SB, 10, 1966080)
    epoch_fin(a)
    stamp(a, 1)
    if OPT["fprio"]:
        a(f"s_setprio {OPT['fprio']}")
    def weights(n0=0, n1=24):
        for m in range(3):
            for i in range(8):
                if not n0 <= m * 8 + i < n1:
                    continue
                s_, v_, so, st = ((SA, 11, 38, 3072), (SB, 11, 38, 3072), (SW, 12, 39, 1280))[m]
                a(f"""s_mov_b32 m0, {L_FW+m*8192+i*1024}
                s_add_u32 s36, s{so}, {i*8*st}
                buffer_load_dwordx4 v{v_}, s[{s_}:{s_+3}], s36 offen {OPT['fnt']} lds""")
    cl = "buffer_load_dwordx4 v[24:27], v10, s[24:27], s51 offen sc1"
    a(f"""    s_mov_b32 s51, {WS_CAND}
    s_cmp_lg_u32 s{CT}, 15
    s_cbranch_scc1 L_f_w""")
    for i in range(10):
        a("s_barrier")
    a("""s_barrier
    s_branch L_f_c
    L_f_w:""")
    late = 0
    for i in range(9):
        a("s_barrier")
        if i < 8:
            if OPT["fwm"]:
                weights(3 * i, 3 * i + 3)
    if OPT["cearly"]:
        a(cl)
    if not OPT["fwm"]:
        weights()
        late += 24
    a("s_barrier")
    if OPT["cearly"]:
        a(f"""s_waitcnt vmcnt({late})
        v_xor_b32 v9, s{TAG}, v25
        v_bitop3_b32 v9, v9, v27, s{TAG} bitop3:0xf6
        v_cmp_ne_u32 vcc, 0, v9
        s_cbranch_vccz L_f_ok""")
    a("L_f_c:")
    stamp(a, 2)
    poll(a, cl, [25, 27])
    a("L_f_ok:")
    stamp(a, 3)
    top2(a, 24, 26, 21, 40, 41, 44)
    key_decode(a, 40, 42, 46, 36)
    key_decode(a, 41, 43, 47, 36)
    a(f"""v_mov_b32 v16, s42
    v_mov_b32 v17, s43
    v_mov_b32 v18, s46
    v_mov_b32 v19, s47
    v_or_b32 v16, 0x10000, v16
    ds_write_b128 v30, v[16:19] offset:16
    v_mov_b32 v20, s42
    v_and_b32 v6, 1, v1
    v_cmp_eq_u32 s[44:45], 0, v6
    s_lshl_b32 s36, s35, 7
    s_nop 0
    v_cndmask_b32_e64 v7, v17, v20, s[44:45]
    v_mul_u32_u24 v7, 1280, v7
    v_lshl_add_u32 v7, v4, 4, v7
    s_cmp_lg_u32 s{CT}, 15
    s_cbranch_scc1 L_f_job""")
    a(f"""s_branch L_f_gather
    L_f_job:
    buffer_load_dwordx4 v[32:35], v7, s[16:19], s36 offen
    buffer_load_dwordx4 v[36:39], v7, s[16:19], s36 offen offset:64
    v_cmp_eq_u32 s[44:45], 1, v4
    v_cmp_eq_u32 s[46:47], 2, v4
    v_cmp_eq_u32 s[48:49], 3, v4
    s_and_b32 s52, s{TAG}, 0xff
    s_bfe_u32 s53, s{TAG}, 0x80008
    s_bfe_u32 s54, s{TAG}, 0x80010
    s_lshr_b32 s55, s{TAG}, 24
    v_mov_b32 v21, 0xffffff00""")
    a("s_waitcnt vmcnt(2)")
    stamp(a, 4)
    for t in range(4):
        for ks in range(2):
            o = 16384 + ks * 4096 + t * 32
            r = 128 + t * 8 + ks * 4
            a(f"""ds_read_b64_tr_b16 v[{r}:{r+1}], v13 offset:{o}
            ds_read_b64_tr_b16 v[{r+2}:{r+3}], v13 offset:{o+512}""")
        if t == 1:
            a("s_waitcnt lgkmcnt(0)")
    a("s_waitcnt vmcnt(0)")
    for m in range(2):
        for t in range(4):
            d = 64 + (m * 4 + t) * 4
            f = 40 + (t & 1) * 8
            for ks in range(2):
                o = m * 8192 + ks * 4096 + t * 32
                a(f"""ds_read_b64_tr_b16 v[{f+4*ks}:{f+4*ks+1}], v13 offset:{o}
                ds_read_b64_tr_b16 v[{f+4*ks+2}:{f+4*ks+3}], v13 offset:{o+512}""")
            a("s_waitcnt lgkmcnt(0)")
            for ks in range(2):
                a(f"v_mfma_f32_16x16x32_bf16 {vr(d,4)}, {vr(32+4*ks,4)}, {vr(f+4*ks,4)}, {'0' if ks == 0 else vr(d,4)}")
    a(f"""s_lshl_b32 s36, s33, 10
    s_add_u32 s36, s36, {WS_P1}
    s_nop 5""")
    for m in range(2):
        for tk in range(2):
            sel_by_g(a, 96 + m * 2 + tk, 64 + m * 16 + tk, 4, False)
    for j in range(4):
        a(f"v_and_or_b32 v{96+j}, v{96+j}, v21, s{52+j}")
    a(f"""buffer_store_dwordx4 v[96:99], v10, s[24:27], s36 offen sc1
    s_mul_i32 s36, s34, 10240
    s_add_u32 s36, s36, {WS_P1}
    s_add_u32 s37, s36, 4096
    s_add_u32 s38, s36, 8192
    s_mov_b32 s50, {SPIN}
    s_waitcnt lgkmcnt(0)""")
    stamp(a, 5)
    a("s_barrier")
    stamp(a, 6)
    a("L_f_p1:")
    for i in range(10):
        a(f"buffer_load_dwordx4 {vr(32+4*i,4)}, v10, s[24:27], s{36+i//4} offen offset:{(i%4)*1024} sc1")
    a("v_mov_b32 v9, 0")
    for i in range(10):
        a(f"s_waitcnt vmcnt({9-i})")
        for j in range(4):
            a(f"v_xor_b32 v{32+4*i+j}, s{52+j}, v{32+4*i+j}")
        a(f"v_or3_b32 v9, v9, v{32+4*i}, v{33+4*i}\nv_or3_b32 v9, v9, v{34+4*i}, v{35+4*i}")
    a("""v_and_b32 v9, 0xff, v9
    s_sub_u32 s50, s50, 1
    v_cmp_ne_u32 vcc, 0, v9
    s_cbranch_scc1 L_f_p1o
    s_cbranch_vccnz L_f_p1
    L_f_p1o:""")
    stamp(a, 7)
    for i in range(1, 10):
        for j in (0, 2):
            a(f"v_pk_add_f32 {vr(32+j,2)}, {vr(32+j,2)}, {vr(32+4*i+j,2)}")
    for tk in range(2):
        sigmoid(a, 14 + tk, f"v{32+tk}")
        a(f"v_mul_f32 v{14+tk}, v{14+tk}, v{32+tk}\nv_mul_f32 v{14+tk}, v{14+tk}, v{34+tk}")
    a(f"""v_cvt_pk_bf16_f32 v14, v14, v15
    v_lshl_add_u32 v6, v1, 1, v30
    ds_write_b16 v6, v14 offset:256
    ds_write_b16_d16_hi v6, v14 offset:384
    v_and_b32 v7, 1, v1
    v_lshl_add_u32 v7, v7, 7, v30
    v_lshl_add_u32 v7, v4, 4, v7
    s_waitcnt lgkmcnt(0)
    ds_read_b128 v[32:35], v7 offset:256
    ds_read_b128 v[36:39], v7 offset:320
    s_waitcnt lgkmcnt(0)""")
    for t in range(4):
        d = 64 + t * 4
        for ks in range(2):
            a(f"v_mfma_f32_16x16x32_bf16 {vr(d,4)}, {vr(32+4*ks,4)}, {vr(128+t*8+4*ks,4)}, {'0' if ks == 0 else vr(d,4)}")
    a(f"""s_lshl_b32 s36, s33, 10
    s_add_u32 s36, s36, {WS_P2}
    s_nop 5""")
    for tk in range(2):
        sel_by_g(a, 96 + tk * 2, 64 + tk, 4)
    a("buffer_store_dwordx4 v[96:99], v10, s[24:27], s36 offen sc1")
    stamp(a, 8)
    a("L_f_gather:")
    a(f"""s_and_b32 s36, s{LOC}, 3
    s_lshl_b32 s36, s36, 5
    s_lshl_b32 s37, s{XCD}, 8
    s_add_u32 s36, s36, s37
    s_xor_b32 s42, s42, s36
    s_xor_b32 s43, s43, s36
    s_and_b32 s42, s42, 0x760
    s_and_b32 s43, s43, 0x760
    s_min_u32 s36, s42, s43
    s_cmp_lg_u32 s36, 0
    s_cbranch_scc1 L_f_end
    s_setprio {OPT['gprio']}
    s_lshr_b32 s32, s{LOC}, 2
    s_mul_i32 s40, s32, 1280
    s_add_u32 s40, s40, {WS_P2}
    s_andn2_b32 s36, s40, 1023
    v_min_u32 v5, 47, v1
    v_lshrrev_b32 v6, 1, v5
    v_mul_u32_u24 v6, 10240, v6
    v_and_b32 v5, 1, v5
    v_lshl_add_u32 v5, v5, 10, v6
    v_and_b32 v7, 15, v1
    v_mul_u32_u24 v11, 10240, v4
    v_lshl_add_u32 v11, v7, 4, v11
    v_lshl_add_u32 v12, v1, 2, v30
    v_lshl_add_u32 v13, v7, 2, v30
    s_mov_b32 s41, 0""")
    lds_wait(a, 4, 2)
    poll(a, "buffer_load_dword v6, v5, s[24:27], s36 offen offset:4 sc1", [6])
    stamp(a, 9)
    a("""L_f_tok:
    s_cmp_lg_u32 s42, 0
    s_cbranch_scc1 L_f_next""")
    ld = "s_mov_b32 s37, s40\n" + "\n".join(f"buffer_load_dwordx2 {vr(32+2*i,2)}, v10, s[24:27], s37 offen sc1\n" +
        (f"buffer_load_dwordx2 {vr(80+2*(i//4),2)}, v11, s[24:27], s37 offen offset:1024 sc1\n" if i % 4 == 0 else "") + "s_add_u32 s37, s37, 10240" for i in range(24))
    poll(a, ld, [33 + 2 * i for i in range(30)])
    for i in range(1, 24):
        a(f"v_add_f32 v32, v32, v{32+2*i}")
    for i in range(1, 6):
        a(f"v_add_f32 v80, v80, v{80+2*i}")
    sigmoid(a, 14, "v18")
    a(f"""v_mov_b32 v81, v80
    v_mul_f32 v32, v32, v14
    s_nop 0
    v_permlane32_swap_b32 v80, v81
    v_add_f32 v80, v80, v81
    v_mov_b32 v81, v80
    ds_write_b32 v12, v32 offset:{L_Y-L_MISC}
    s_nop 0
    v_permlane16_swap_b32 v80, v81
    v_add_f32 v80, v80, v81
    v_mul_f32 v80, v80, v14
    ds_write_b32 v13, v80 offset:{L_Y-L_MISC+256}
    L_f_next:
    s_mov_b32 s42, s43
    s_add_u32 s40, s40, 8
    v_mov_b32 v18, v19
    v_add_u32 v12, 320, v12
    v_add_u32 v13, 320, v13
    s_add_u32 s41, s41, 1
    s_cmp_lt_u32 s41, 2
    s_cbranch_scc1 L_f_tok""")
    lds_add(a, O_Y)
    a("s_waitcnt lgkmcnt(0)")
    stamp(a, 10)
    a("L_f_end:\ns_waitcnt lgkmcnt(0)")
    finish(a)


def main(out):
    a = Asm()
    head = f"""; gated mix of sliding-window attention and a top-2 routed FFN: one fused launch (written by a generator script)
; @launch grid=(256,1,1) block=(640,1,1) lds={LDS_BYTES}
.amdgcn_target "amdgcn-amd-amdhsa--gfx950"
.text
"""
    entry(a)
    loader(a)
    compute(a)
    stubs = attention(a)
    outproj(a)
    n0 = len(a.lines)
    helper1(a)
    if OPT["stamp"] == 3:
        body_, out_, k, skip = a.lines[n0:], [], 0, False
        for ln in body_:
            if "s_memrealtime" in ln or "s_memtime" in ln:
                continue
            if "s_cbranch_scc1 L_h_g" in ln: skip = True
            if ln.startswith("L_h_g:"): skip = False
            if ln.strip() == "s_endpgm":
                out_.append("    s_branch L_stampall")
                continue
            out_.append(ln)
            if (ln.strip() == "s_barrier" and not skip) or ("ds_write_b32 v30, v5 offset:4" in ln):
                out_.append(f"    s_memrealtime s[{62+2*k}:{63+2*k}]"); k += 1
        a.lines[n0:] = out_
    ffn(a)
    router_loader(a)
    router(a)
    att_stubs(a, stubs)
    stamp_out(a)
    a("L_exit:\ns_endpgm\nL_code_end:")
    body = a.text().replace("s_mov_b32 s43, 0\n    s_waitcnt lgkmcnt(0)", "s_mov_b32 s43, 0\n    s_movk_i32 s45, 0x4000\n    s_waitcnt lgkmcnt(0)")
    if OPT["al"]:
        body = align_fix(body, [("L_g_loop", "L_g_end"), ("L_att_go", "L_att_fin"), ("L_op_loop", "L_op_end")])
    bad = check_hazards(body)
    tail = f""".section .rodata,"a"
.p2align 6
.amdhsa_kernel {NAME}_kernel
  .amdhsa_next_free_vgpr 168
  .amdhsa_next_free_sgpr 96
  .amdhsa_accum_offset 168
  .amdhsa_group_segment_fixed_size 0
  .amdhsa_kernarg_size 96
  .amdhsa_user_sgpr_count 2
  .amdhsa_user_sgpr_kernarg_segment_ptr 1
  .amdhsa_system_sgpr_workgroup_id_x 1
.end_amdhsa_kernel
"""
    open(out, "w").write(head + body + tail)
    print("written", out, "hazards:", len(bad))


if __name__ == "__main__":
    main(sys.argv[1])
```

```python
import sys, struct
from asmlib import Asm, vr, sr, check_hazards, align_fix

NAME = "gated_mix__sliding_block__moe_arch_mod__prompt"
def f32(x): return "0x%08x" % struct.unpack("<I", struct.pack("<f", x))[0]
LOG2E = 1.4426950408889634
QSCALE = (20 ** -0.5) * LOG2E

OPT = dict(stamp=0, dual=0, pre=0, xnt="", fnt="", rot=1, b11=0, wpf=0, rnt="", worot=2, fprio=3, cearly=1, aprio=2, tlb=0, hdel=3, dly=0, fwm=0, serp=1, xs="0_2", wsn=3, ws="0_2", nowo=0, xsc=0, epx=0, rowmap=1, qloc=1, qat=3, tlb0=0, wod=0, wack=1, qown=1, dbg=0, gprio=3, ones=1, gx=0, lord=0, wfl="", nl0=5, al=1, pf=1, xpf=0, swap=0, prio=1, osc="", forceimp=0, forcefb=0, probe="", pwg=109+512)
for _a in sys.argv[2:]:
    k, v = _a.split("=")
    OPT[k] = int(v) if v.lstrip("-").isdigit() else v

WS_L, WS_R = 0, 0x800000
WS_G, WS_CAND, WS_XID, WS_FL, WS_FP, WS_FO = 0x1000000, 0x1010000, 0x1020000, 0x1030000, 0x1040000, 0x1050000
WS_P1, WS_P2, WS_EP, WS_ST, WS_END = 0x1060000, 0x10E0000, 0x1120000, 0x1200000, 0x1300000
WS_FR = 0x1038000
XB = 240 * 4096
CS = 8192 + 64
L_K, L_V = 0, 3 * CS + 64
L_WO = 49664
L_ONES = L_WO + 102400 + 192
L_MISC = L_ONES + 5120 + 64
L_H, L_Y = L_MISC + 256, L_MISC + 512
LDS_BYTES = 163840
L_RW = 49152
L_FW = L_WO + 13 * 5120
L_XT = L_FW + 24576
L_WV = L_FW
M_PURE, M_HALO, M_TOP = L_MISC, L_MISC + 4, L_MISC + 16
O_WO, O_FD, O_ATT, O_Y, O_R, O_B2 = 8, 12, 32, 36, 40, 44
assert L_V % 256 == 0 and L_ONES % 256 == 192 and L_XT + 10240 <= L_WO + 102400 and L_Y + 1920 <= LDS_BYTES
SPIN = 0x8000

WAVE, XCD, LOC, RBL, CT, TAG, PURE = 28, 29, 30, 31, 32, 60, 61
SX, SW, SS, SA, SB = 16, 20, 24, 52, 56


def srd(a, d, p, n):
    a(f"""s_mov_b32 s{d}, s{p}
    s_mov_b32 s{d+1}, s{p+1}
    s_mov_b32 s{d+2}, {n}
    s_mov_b32 s{d+3}, 0x20000""")


def stamp(a, i):
    if OPT["probe"]:
        if str(i) in OPT["probe"].split("_"):
            a(f"s_memrealtime s[{62+2*i}:{63+2*i}]\ns_waitcnt lgkmcnt(0)")
        return
    if OPT["stamp"] == 3:
        if i == 0:
            a("s_memrealtime s[94:95]\ns_memtime s[62:63]")
        if i in (4, 8):
            a(f"s_memrealtime s[{62+2*i}:{63+2*i}]\ns_memtime s[{64+2*i}:{65+2*i}]")
        return
    if OPT["stamp"]:
        if i == 0:
            a("s_memrealtime s[94:95]")
            for j in range(1, 15):
                a(f"s_mov_b32 s{62+2*j}, 0")
        a(f"{'s_memtime' if OPT['stamp'] == 1 else 's_memrealtime'} s[{62+2*i}:{63+2*i}]\ns_waitcnt lgkmcnt(0)")


def finish(a, main=False):
    if OPT["stamp"] == 3 and not main:
        a("s_endpgm")
    elif OPT["stamp"]:
        a("s_branch L_stampout")
    else:
        a("s_endpgm")


def stamp_out(a):
    if OPT["stamp"]:
        n = 14
        a(f"""L_stampout:
        s_waitcnt vmcnt(0)
        {'s_memtime' if OPT['stamp'] != 2 else 's_memrealtime'} s[{62+2*n}:{63+2*n}]
        s_memrealtime s[92:93]
        s_waitcnt lgkmcnt(0)
        s_lshl_b32 s3, s2, 4
        s_add_u32 s3, s3, s{WAVE}
        s_lshl_b32 s3, s3, 7
        s_add_u32 s3, s3, {WS_ST}
        s_mov_b64 exec, 1
        v_mov_b32 v0, 0""")
        for i in (range(n + 1) if OPT["stamp"] != 3 else (0, 4, 5, 8, 9, 14)):
            a(f"v_mov_b32 v1, s{62+2*i}\nbuffer_store_dword v1, v0, s[24:27], s3 offen offset:{4*i}")
        for i in range(2, 10 if OPT["stamp"] != 3 else 0):
            a(f"v_readlane_b32 s4, v166, {i}\ns_nop 1\nv_mov_b32 v1, s4\nbuffer_store_dword v1, v0, s[24:27], s3 offen offset:{64+4*(i-2)}")
        a(f"v_mov_b32 v1, s{PURE}\nbuffer_store_dword v1, v0, s[24:27], s3 offen offset:116")
        a("v_mov_b32 v1, s94\nbuffer_store_dword v1, v0, s[24:27], s3 offen offset:120")
        a("v_mov_b32 v1, s92\nbuffer_store_dword v1, v0, s[24:27], s3 offen offset:124")
        a("s_endpgm")
        if OPT["stamp"] == 3:
            a(f"""L_stampall:
            s_memrealtime s[88:89]""")
            lds_wait(a, O_ATT, 8)
            a(f"""s_lshl_b32 s3, s2, 4
            s_add_u32 s3, s3, s{WAVE}
            s_lshl_b32 s3, s3, 7
            s_add_u32 s3, s3, {WS_ST}
            v_mov_b32 v2, 0""")
            for i in range(14):
                a(f"v_writelane_b32 v2, s{62+2*i}, {i}")
            a("""v_writelane_b32 v2, s94, 30
            v_lshlrev_b32 v3, 2, v1
            s_mov_b64 exec, 0xffffffff
            buffer_store_dword v2, v3, s[24:27], s3 offen
            s_endpgm""")


def wave_max_u32(a, v, sdst):
    for m in ("row_shr:1 row_mask:0xf bank_mask:0xf bound_ctrl:1", "row_shr:2 row_mask:0xf bank_mask:0xf bound_ctrl:1",
              "row_shr:4 row_mask:0xf bank_mask:0xf bound_ctrl:1", "row_shr:8 row_mask:0xf bank_mask:0xf bound_ctrl:1",
              "row_bcast:15 row_mask:0xa bank_mask:0xf", "row_bcast:31 row_mask:0xc bank_mask:0xf"):
        a(f"s_nop 1\nv_max_u32_dpp v{v}, v{v}, v{v} {m}")
    a(f"s_nop 0\nv_readlane_b32 s{sdst}, v{v}, 63")


def top2(a, k1, k2, t, s1, s2, sm):
    a(f"v_max_u32 v{t}, v{k1}, v{k2}")
    wave_max_u32(a, t, s1)
    a(f"""s_nop 1
    v_cmp_ne_u32 s[{sm}:{sm+1}], s{s1}, v{k1}
    s_nop 1
    v_cndmask_b32_e64 v{k1}, 0, v{k1}, s[{sm}:{sm+1}]
    v_cmp_ne_u32 s[{sm}:{sm+1}], s{s1}, v{k2}
    s_nop 1
    v_cndmask_b32_e64 v{k2}, 0, v{k2}, s[{sm}:{sm+1}]
    v_max_u32 v{t}, v{k1}, v{k2}""")
    wave_max_u32(a, t, s2)


def key_decode(a, sk, stok, sval, st):
    a(f"""s_and_b32 s{stok}, s{sk}, 0xffff
    s_sub_u32 s{stok}, 0xffff, s{stok}
    s_and_b32 s{stok}, s{stok}, 0x7ff
    s_ashr_i32 s{st}, s{sk}, 31
    s_not_b32 s{st}, s{st}
    s_or_b32 s{st}, s{st}, 0x80000000
    s_xor_b32 s{sval}, s{sk}, s{st}
    s_and_b32 s{sval}, s{sval}, 0xffff0000""")


def sigmoid(a, d, s):
    a(f"""v_mul_f32 v{d}, {f32(-LOG2E)}, {s}
    v_exp_f32 v{d}, v{d}
    s_nop 0
    v_add_f32 v{d}, 1.0, v{d}
    v_rcp_f32 v{d}, v{d}
    s_nop 0""")


def epoch_load(a):
    a(f"""s_add_u32 s14, s12, {WS_EP}
    s_addc_u32 s15, s13, 0
    s_load_dword s{TAG}, s[14:15], 0""")


def epoch_fin(a):
    a(f"s_waitcnt lgkmcnt(0)\ns_add_u32 s{TAG}, s{TAG}, 0x9e3779b9")


_uid = [0]
_site = [0]
def uid(p):
    _uid[0] += 1
    return f"L_{p}{_uid[0]}"


def poll(a, load, tagregs, mask=None, tmp=9, pre=False):
    lp, out = uid("poll"), uid("pout")
    a(f"s_mov_b32 s50, {SPIN}")
    if pre:
        a(f"s_branch {lp}p")
    a(f"{lp}:")
    a(load)
    if pre:
        a(f"{lp}p:")
    a(f"""s_sub_u32 s50, s50, 1
    s_cbranch_scc1 {out}
    s_waitcnt vmcnt(0)""")
    if len(tagregs) == 1:
        a(f"v_cmp_ne_u32 vcc, s{TAG}, v{tagregs[0]}")
    else:
        a(f"v_xor_b32 v{tmp}, s{TAG}, v{tagregs[0]}")
        for r in tagregs[1:]:
            a(f"v_bitop3_b32 v{tmp}, v{tmp}, v{r}, s{TAG} bitop3:0xf6")
        a(f"v_cmp_ne_u32 vcc, 0, v{tmp}")
    if mask:
        a(f"s_and_b64 vcc, vcc, {mask}")
    if OPT["dbg"]:
        _site[0] += 1
        print("site", _site[0], load.split("\n")[-1][:70])
        a(f"""s_cbranch_vccnz {lp}
        s_branch {out}x
        {out}:
        s_waitcnt vmcnt(0)
        s_lshl_b32 s50, s2, 4
        s_add_u32 s50, s50, {_site[0]}
        s_lshl_b32 s50, s50, 8
        s_add_u32 s50, s50, {WS_ST}
        v_lshlrev_b32 v164, 2, v1
        v_xor_b32 v165, s{TAG}, v{tagregs[0]}
        v_or_b32 v165, 0x80000000, v165
        buffer_store_dword v165, v164, s[24:27], s50 offen
        {out}x:
        s_waitcnt vmcnt(0)""")
        return
    a(f"s_cbranch_vccnz {lp}\n{out}:\ns_waitcnt vmcnt(0)")


def spoll(a, loads, pairs):
    lp, out = uid("sp"), uid("so")
    a(f"s_mov_b32 s50, {SPIN}\n{lp}:")
    a(loads)
    a(f"""s_waitcnt lgkmcnt(0)
    s_sub_u32 s50, s50, 1
    s_cbranch_scc1 {out}
    s_xor_b64 s[36:37], s[{pairs[0]}:{pairs[0]+1}], s[38:39]""")
    for p in pairs[1:]:
        a(f"""s_xor_b64 s[{p}:{p+1}], s[{p}:{p+1}], s[38:39]
        s_or_b64 s[36:37], s[36:37], s[{p}:{p+1}]""")
    a(f"s_cbranch_scc1 {lp}\n{out}:")


def lds_wait(a, off, val, vt=9, pre=False):
    lp, out = uid("lw"), uid("lo")
    a(f"s_mov_b32 s50, {SPIN*8}")
    if pre:
        a(f"s_branch {lp}p")
    a(f"""{lp}:
    ds_read_b32 v{vt}, v30 offset:{off}""")
    if pre:
        a(f"{lp}p:")
    a(f"""s_sub_u32 s50, s50, 1
    s_cbranch_scc1 {out}
    s_waitcnt lgkmcnt(0)
    v_cmp_gt_u32 vcc, {val}, v{vt}
    s_cbranch_vccnz {lp}
    {out}:""")


def lds_add(a, off, vt=9):
    a(f"""v_mov_b32 v{vt}, 1
    s_mov_b64 exec, 1
    ds_add_u32 v30, v{vt} offset:{off}
    s_mov_b64 exec, -1""")


def flag_store(a, soff, local, vt=8):
    a(f"""v_mov_b32 v{vt}, s{TAG}
    v_mov_b32 v{vt+1}, 0
    s_mov_b64 exec, 1""")
    if local:
        l1, l2 = uid("fs"), uid("fe")
        a(f"""s_cmp_eq_u32 s{PURE}, 0
        s_cbranch_scc1 {l1}
        buffer_store_dword v{vt}, v{vt+1}, s[24:27], s{soff} offen
        s_branch {l2}
        {l1}:
        buffer_store_dword v{vt}, v{vt+1}, s[24:27], s{soff} offen sc1
        {l2}:""")
    else:
        a(f"buffer_store_dword v{vt}, v{vt+1}, s[24:27], s{soff} offen sc1")
    a("s_mov_b64 exec, -1")


def two_flavours(a, body):
    l1, l2 = uid("imp"), uid("ime")
    a(f"s_cmp_eq_u32 s{PURE}, 0\ns_cbranch_scc1 {l1}")
    body("")
    a(f"s_branch {l2}\n{l1}:")
    body("sc1")
    a(f"{l2}:")


def router_loader(a):
    a("""L_rld:
    s_load_dwordx2 s[8:9], s[0:1], 16
    s_add_u32 s41, s40, 98304
    s_branch L_rld_issue
    L_rld_loop:
    s_waitcnt vmcnt(12) lgkmcnt(0)
    s_barrier
    L_rld_issue:
    s_lshl_b32 s36, s33, 7
    s_add_u32 s36, s36, s34""")
    for n in range(4):
        a(f"""s_add_u32 m0, s40, {n*4096}
        s_add_u32 s38, s36, {n*40960}
        buffer_load_dwordx4 v10, s[16:19], s38 offen {OPT['rnt']} lds""")
    kc_next(a, 33)
    a("""s_add_u32 s40, s40, 16384
    s_cmp_eq_u32 s40, s41
    s_cselect_b32 s36, 98304, 0
    s_sub_u32 s40, s40, s36
    s_add_u32 s42, s42, 1
    s_cmp_lt_u32 s42, 4
    s_cbranch_scc1 L_rld_issue
    s_cmp_lt_u32 s42, 10
    s_cbranch_scc1 L_rld_loop""")
    srd(a, SS, 12, WS_END)
    srd(a, SW, 8, 819200)
    a(f"""s_add_u32 s{TAG}, s{TAG}, 0x9e3779b9
    v_mov_b32 v30, {M_PURE}""")
    for n in (12, 8, 4, 0):
        a(f"s_waitcnt vmcnt({n})\ns_barrier")
    if OPT["wpf"]:
        N = OPT["wpf"]
        lds_wait(a, O_R, 4)
        a(f"""v_lshlrev_b32 v5, 7, v1
        s_lshl_b32 s36, s{RBL}, 2
        s_add_u32 s36, s36, s{WAVE}
        s_sub_u32 s36, s36, 4
        s_lshl_b32 s36, s36, 13
        s_cmp_ge_u32 s{XCD}, {N}
        s_cselect_b32 s37, 0, s{XCD}
        s_mov_b32 s42, 0
        L_wpf:
        s_lshl_b32 s38, s37, 16
        s_add_u32 s38, s38, s36
        buffer_load_dword v167, v5, s[20:23], s38 offen
        s_add_u32 s37, s37, 1
        s_cmp_eq_u32 s37, {N}
        s_cselect_b32 s37, 0, s37
        s_add_u32 s42, s42, 1
        s_cmp_lt_u32 s42, {N}
        s_cbranch_scc1 L_wpf""")
    a("s_branch L_att_setup")


def kc_init(a):
    def nib(o):
        v = sum(x << (4 * i) for i, x in enumerate(o))
        return v & 0xffffffff, v >> 32
    n0, n1, n2 = nib(range(10)), nib([1, 0, 3, 2, 5, 4, 7, 6, 9, 8]), nib([0, 2, 1, 4, 3, 6, 5, 8, 7, 9])
    a(f"s_mov_b32 s46, {n0[0]:#x}\ns_movk_i32 s47, {n0[1]:#x}")
    if OPT["swap"]:
        a(f"""s_and_b32 s36, s{LOC}, {3 if OPT["swap"] == 1 else 1}
        s_cmp_eq_u32 s36, 1
        s_cselect_b32 s46, {n1[0]:#x}, s46
        s_cselect_b32 s47, {n1[1]:#x}, s47
        s_cmp_eq_u32 s36, 3
        s_cselect_b32 s46, {n2[0]:#x}, s46
        s_cselect_b32 s47, {n2[1]:#x}, s47""")
    n3 = nib([2, 3, 4, 5, 6, 7, 8, 9, 0, 1])
    a(f"""s_cmp_eq_u32 s{CT}, 15
    s_cselect_b32 s46, {n3[0]:#x}, s46
    s_cselect_b32 s47, {n3[1]:#x}, s47""")


def kc_next(a, d):
    a(f"""s_and_b32 s{d}, s46, 15
    s_lshr_b64 s[46:47], s[46:47], 4""")
    if OPT["rot"]:
        a(f"""s_add_u32 s{d}, s{d}, s{XCD}
        s_sub_u32 s36, s{d}, 10
        s_cselect_b32 s{d}, s{d}, s36""")


def entry(a):
    a(f""".globl {NAME}_kernel
    .p2align 8
    .type {NAME}_kernel,@function
    {NAME}_kernel:""")
    a("""s_cmp_ge_u32 s2, 256
    s_cbranch_scc1 L_exit""")
    stamp(a, 0)
    a(f"""s_load_dwordx4 s[4:7], s[0:1], 0
    s_load_dwordx2 s[12:13], s[0:1], 88
    v_lshrrev_b32 v2, 6, v0
    v_and_b32 v1, 63, v0
    v_readfirstlane_b32 s{WAVE}, v2
    s_and_b32 s{XCD}, s2, 7
    s_lshr_b32 s{LOC}, s2, 3
    s_and_b32 s{RBL}, s{LOC}, 1
    s_lshr_b32 s{CT}, s{LOC}, 1
    v_lshrrev_b32 v4, 4, v1""")
    if OPT["pf"]:
        a(f"""s_cmp_lg_u32 s{WAVE}, 0
        s_cbranch_scc1 L_nopf
        s_getpc_b64 s[36:37]
        L_pc:
        s_and_b32 s38, s{LOC}, 3
        s_mul_i32 s38, s38, 5120
        v_min_u32 v5, 39, v1
        v_lshl_add_u32 v5, v5, 7, s38
        v_min_u32 v5, L_code_end-L_pc-4, v5
        global_load_dword v167, v5, s[36:37]
        L_nopf:""")
    a(f"""s_cmp_lt_u32 s{WAVE}, 4
    s_cbranch_scc1 L_compute
    s_cmp_ge_u32 s{WAVE}, 8
    s_cbranch_scc1 L_help""")


def loader(a):
    a(f"""v_and_b32 v2, 3, v2
    v_lshrrev_b32 v3, 3, v1
    v_lshl_add_u32 v3, v2, 3, v3
    v_mul_u32_u24 v3, 1280, v3
    v_lshl_add_u32 v5, v2, 2, v4
    v_xor_b32 v6, v5, v1
    v_and_b32 v6, 7, v6
    v_lshl_add_u32 v10, v6, 4, v3
    v_mul_u32_u24 v5, 3840, v5
    v_lshrrev_b32 v6, 1, v2
    v_lshl_add_u32 v6, v6, 2, v4
    v_lshlrev_b32 v6, 1, v6
    v_xor_b32 v6, v6, v1
    v_and_b32 v6, 15, v6
    v_lshl_add_u32 v11, v6, 4, v5
    s_lshl_b32 s34, s{XCD}, 1
    s_add_u32 s34, s34, s{RBL}
    s_mul_i32 s34, s34, 128*1280
    s_lshl_b32 s35, s{CT}, 8
    s_and_b32 s40, s{WAVE}, 3
    s_lshl_b32 s40, s40, 10
    s_add_u32 s41, s40, 49152
    s_mov_b32 s42, 0
    s_mov_b32 s18, 2621440
    s_mov_b32 s19, 0x20000
    s_mov_b32 s22, 2457600
    s_mov_b32 s23, 0x20000""")
    kc_init(a)
    kc_next(a, 33)
    if OPT["xpf"]:
        a(f"""v_lshrrev_b32 v5, 3, v1
        s_lshl_b32 s36, s{CT}, 3
        v_add_u32 v5, s36, v5
        v_mul_u32_u24 v5, 1280, v5
        v_and_b32 v6, 7, v1
        v_add3_u32 v6, v6, {"s%d" % XCD if OPT["rot"] else 0}, 2
        v_subrev_u32 v7, 10, v6
        v_min_u32 v6, v6, v7
        v_lshl_add_u32 v12, v6, 7, v5""")
    a("""s_waitcnt lgkmcnt(0)
    s_mov_b32 s16, s4
    s_mov_b32 s17, s5
    s_mov_b32 s20, s6
    s_mov_b32 s21, s7""")
    epoch_load(a)
    stamp(a, 1)
    if OPT["dly"]:
        a(f"s_bitcmp1_b32 s{CT}, 0\ns_cbranch_scc0 L_nd\ns_sleep {OPT['dly']}\nL_nd:")
    a(f"""s_cmp_eq_u32 s{CT}, 15
    s_cbranch_scc1 L_rld
    s_branch L_ld_issue
    L_ld_loop:
    s_waitcnt vmcnt(8) lgkmcnt(0)
    s_barrier""")
    if OPT["stamp"] in (1, 2):
        a("""s_memrealtime s[44:45]
        s_waitcnt lgkmcnt(0)
        s_mov_b32 m0, s42
        s_nop 0
        v_writelane_b32 v166, s44, m0""")
    a(f"""L_ld_issue:
    s_lshl_b32 s36, s33, 7
    s_add_u32 s36, s36, s34
    {"s_and_b32 s33, s33, 1" if OPT["gx"] == 1 else ""}
    s_mul_i32 s37, s33, 245760
    s_add_u32 s37, s37, s35""")
    lx = [f"""s_add_u32 m0, s40, {n*4096}
        s_add_u32 s38, s36, {n*40960}
        buffer_load_dwordx4 v10, s[16:19], s38 offen {OPT['xnt']} lds""" for n in range(4)]
    lw = [f"""s_add_u32 m0, s40, {L_RW+n*4096}
        s_add_u32 s39, s37, {n*61440}
        buffer_load_dwordx4 v11, s[20:23], s39 offen {OPT['wfl']} lds""" for n in range(4)]
    for l in {0: [x for p in zip(lx, lw) for x in p], 1: lw + lx, 2: lx + lw}[OPT["lord"]]:
        a(l)
    kc_next(a, 33)
    if OPT["xpf"]:
        a(f"""s_add_u32 s36, s42, s{WAVE}
        s_cmp_lg_u32 s36, 4
        s_cbranch_scc1 L_noxpf
        buffer_load_dword v167, v12, s[16:19], s34 offen {OPT['xnt']}
        L_noxpf:""")
    a("""s_add_u32 s40, s40, 16384
    s_cmp_eq_u32 s40, s41
    s_cselect_b32 s36, 49152, 0
    s_sub_u32 s40, s40, s36
    s_add_u32 s42, s42, 1
    s_cmp_lt_u32 s42, 2
    s_cbranch_scc1 L_ld_issue
    s_cmp_lt_u32 s42, 10
    s_cbranch_scc1 L_ld_loop""")
    srd(a, SS, 12, WS_END)
    a(f"s_add_u32 s{TAG}, s{TAG}, 0x9e3779b9")
    pre = 0
    a(f"""s_waitcnt vmcnt({8+pre})
    s_barrier""")
    stamp(a, 2)
    a(f"""s_waitcnt vmcnt({pre})
    s_barrier""")
    stamp(a, 3)
    a("s_branch L_att_setup")


ACC, F0, F1 = 32, 96, 128
def compute(a):
    a("L_compute:")
    if (OPT["qloc"] and OPT["qat"] == -1) or OPT["tlb0"]:
        a(f"""s_mul_i32 s36, s{XCD}, {XB}
        s_mov_b32 s26, {WS_END}
        s_mov_b32 s27, 0x20000""")
        if OPT["qloc"] and OPT["qat"] == -1:
            a(f"""s_lshl_b32 s37, s{LOC}, 2
            s_add_u32 s37, s37, s{WAVE}
            s_mul_i32 s37, s37, 2560
            s_add_u32 s37, s37, s36
            v_min_u32 v5, 19, v1
            v_lshlrev_b32 v5, 7, v5""")
        if OPT["tlb0"]:
            a(f"""s_sub_u32 s38, s36, {XB}
            s_max_i32 s38, s38, 0
            v_min_u32 v6, 2, v1
            v_mul_u32_u24 v6, {XB-64}, v6""")
        a("""s_waitcnt lgkmcnt(0)
        s_mov_b32 s24, s12
        s_mov_b32 s25, s13""")
        if OPT["qloc"] and OPT["qat"] == -1:
            a("buffer_load_dword v167, v5, s[24:27], s37 offen sc1")
        if OPT["tlb0"]:
            a(f"""s_cmp_lg_u32 s{WAVE}, 1
            s_cbranch_scc1 L_not0
            buffer_load_dword v167, v6, s[24:27], s38 offen sc1
            L_not0:""")
    a(f"""v_and_b32 v3, 15, v1
    s_and_b32 s36, s{WAVE}, 1          ; wc
    s_lshr_b32 s37, s{WAVE}, 1         ; wt
    s_lshl_b32 s38, s37, 13
    s_lshl_b32 s39, s{WAVE}, 12
    s_cmp_eq_u32 s{CT}, 15
    s_cselect_b32 s38, s39, s38
    v_lshrrev_b32 v5, 1, v3
    v_xor_b32 v5, v5, v4
    v_lshlrev_b32 v5, 4, v5
    v_lshl_add_u32 v12, v3, 7, v5
    v_add_u32 v12, s38, v12
    v_xor_b32 v13, 64, v12
    v_bfe_u32 v5, v1, 2, 2             ; r
    v_lshl_add_u32 v6, v4, 3, v5
    v_lshlrev_b32 v6, 8, v6
    v_and_b32 v7, 1, v4
    v_lshl_add_u32 v5, v7, 2, v5
    v_lshlrev_b32 v5, 1, v5            ; f(row)
    v_and_b32 v7, 3, v1
    s_lshl_b32 s39, s36, 3
    v_add_u32 v7, s39, v7
    v_xor_b32 v5, v5, v7
    v_lshl_add_u32 v6, v5, 4, v6
    v_bfe_u32 v5, v1, 1, 1
    v_lshl_add_u32 v6, v5, 3, v6
    v_add_u32 v14, {L_RW}, v6
    v_xor_b32 v15, 8, v14
    v_xor_b32 v16, 64, v14
    v_xor_b32 v17, 0x48, v14
    v_lshlrev_b32 v18, 4, v3
    v_lshl_add_u32 v18, v4, 12, v18
    v_mov_b32 v19, {M_PURE}
    s_mul_i32 s34, s{XCD}, {XB}
    s_lshl_b32 s39, s{CT}, 16
    s_add_u32 s34, s34, s39
    s_lshl_b32 s39, s36, 15
    s_add_u32 s34, s34, s39
    s_lshl_b32 s39, s{RBL}, 11
    s_add_u32 s34, s34, s39
    s_lshl_b32 s39, s37, 10
    s_add_u32 s34, s34, s39
    s_add_u32 s35, s34, 16384
    s_mov_b32 s42, 0
    s_mov_b32 s43, 0
    s_waitcnt lgkmcnt(0)""")
    epoch_load(a)
    srd(a, SS, 12, WS_END)
    for i in range(64):
        a(f"v_mov_b32 v{ACC+i}, 0")
    epoch_fin(a)
    stamp(a, 1)
    a(f"s_cmp_eq_u32 s{CT}, 15\ns_cbranch_scc1 L_router")

    def reads(ks, F):
        r = []
        def A(j):
            r.append(f"ds_read_b64_tr_b16 v[{F+4*j}:{F+4*j+1}], v{14+j} offset:{ks*8192}")
            r.append(f"ds_read_b64_tr_b16 v[{F+4*j+2}:{F+4*j+3}], v{14+j} offset:{ks*8192+1024}")
        A(0)
        for t in range(4):
            r.append(f"ds_read_b128 {vr(F+16+4*t,4)}, v{12+ks} offset:{t*2048}")
        A(1); A(2); A(3)
        return r

    def phase(F, rd, bar, extra):
        a("s_waitcnt lgkmcnt(6)")
        n = 0
        for j in range(4):
            if j == 1:
                a("s_waitcnt lgkmcnt(0)")
                if bar:
                    a("s_cbranch_scc0 L_g_nb\ns_barrier\nL_g_nb:")
            for t in (range(4) if not (OPT["serp"] and j & 1) else range(3, -1, -1)):
                d = ACC + (j * 4 + t) * 4
                a(f"v_mfma_f32_16x16x32_bf16 {vr(d,4)}, {vr(F+4*j,4)}, {vr(F+16+4*t,4)}, {vr(d,4)}")
                if j == 0:
                    a(extra[t])
                else:
                    a(rd[n]); n += 1

    a("s_barrier")
    stamp(a, 2)
    for l in reads(0, F0):
        a(l)
    a("L_g_loop:")
    phase(F0, reads(1, F1), False, ["""s_add_u32 s43, s43, 1
        s_cmp_eq_u32 s43, 3""", "s_cselect_b32 s44, -32768, 16384" if False else """s_cselect_b32 s44, 0xffff8000, s45
        """, "s_cselect_b32 s43, 0, s43\ns_add_u32 s42, s42, 1", ""])
    phase(F1, reads(0, F0), True, ["v_add_u32 v12, s44, v12\nv_add_u32 v13, s44, v13", "v_add_u32 v14, s44, v14\nv_add_u32 v15, s44, v15",
                                   "v_add_u32 v16, s44, v16\nv_add_u32 v17, s44, v17", "s_cmp_lt_u32 s42, 10"])
    a("s_cbranch_scc1 L_g_loop\nL_g_end:")
    stamp(a, 3)
    a("ds_read_b32 v20, v19")

    def epi(scale, sc="sc1"):
        for p in range(2):
            for t in range(4):
                o = F1 + (p * 4 + t) * 4
                for h in range(2):
                    d = ACC + ((2 * p + h) * 4 + t) * 4
                    if scale:
                        a(f"v_pk_mul_f32 {vr(d,2)}, {vr(d,2)}, s[38:39]\nv_pk_mul_f32 {vr(d+2,2)}, {vr(d+2,2)}, s[38:39]")
                    a(f"v_cvt_pk_bf16_f32 v{o+2*h}, v{d}, v{d+1}\nv_cvt_pk_bf16_f32 v{o+2*h+1}, v{d+2}, v{d+3}")
                a(f"buffer_store_dwordx4 {vr(o,4)}, v18, s[24:27], s{34+p} offen offset:{t*256} {sc}")
    a(f"""s_cmp_ge_u32 s{CT}, 5
    s_cbranch_scc1 L_noscale
    s_mov_b32 s38, {f32(QSCALE)}
    s_mov_b32 s39, s38""")
    if OPT["qloc"]:
        a(f"""s_waitcnt lgkmcnt(0)
        v_cmp_eq_u32 vcc, 0, v20
        s_cbranch_vccnz L_q_far""")
        epi(True, "")
        a("s_branch L_pubflag\nL_q_far:")
        for i in range(0, 64, 2):
            a(f"v_pk_mul_f32 {vr(ACC+i,2)}, {vr(ACC+i,2)}, s[38:39]")
        a("L_noscale:")
    else:
        epi(True)
        a("s_branch L_pubflag\nL_noscale:")
    epi(False)
    a(f"""L_pubflag:
    s_lshl_b32 s36, s{XCD}, 4
    s_add_u32 s36, s36, s{CT}
    s_lshl_b32 s36, s36, 1
    s_and_b32 s37, s{WAVE}, 1
    s_add_u32 s36, s36, s37
    s_lshl_b32 s40, s36, 7
    s_lshl_b32 s36, s36, 4
    s_lshl_b32 s37, s{RBL}, 3
    s_and_b32 s38, s{WAVE}, 2
    s_lshl_b32 s38, s38, 1
    s_add_u32 s37, s37, s38
    s_add_u32 s36, s36, s37
    s_add_u32 s36, s36, {WS_FL}
    s_add_u32 s40, s40, s37
    s_add_u32 s40, s40, {WS_FR}
    s_waitcnt lgkmcnt(0)
    v_readfirstlane_b32 s{PURE}, v20
    s_waitcnt vmcnt(0)""")
    stamp(a, 4)
    flag_store(a, 36, True)
    a(f"""s_mov_b64 exec, 1
    v_mov_b32 v7, 1
    s_cmp_lt_u32 s{CT}, 5
    s_cbranch_scc1 L_norf
    buffer_store_dword v8, v9, s[24:27], s40 offen sc1
    L_norf:
    ds_add_u32 v19, v7 offset:{O_R}
    s_mov_b64 exec, -1""")


def router(a):
    a("L_router:")
    kc_init(a)
    kc_next(a, 33)
    a(f"""v_and_b32 v5, 1, v1
    v_lshlrev_b32 v5, 11, v5
    v_lshl_add_u32 v14, v4, 4, v5
    v_add_u32 v14, {L_WV}, v14
    L_r_loop:
    s_barrier
    s_lshl_b32 s36, s33, 7
    v_add_u32 v15, s36, v14""")
    for ks in range(2):
        a(f"""ds_read_b128 {vr(F0+12*ks,4)}, v15 offset:{ks*64}
        ds_read_b128 {vr(F0+12*ks+4,4)}, v{12+ks}
        ds_read_b128 {vr(F0+12*ks+8,4)}, v{12+ks} offset:2048""")
    kc_next(a, 33)
    a("""s_add_u32 s43, s43, 1
    s_cmp_eq_u32 s43, 6
    s_cselect_b32 s44, 0xfffec000, s45
    s_cselect_b32 s43, 0, s43
    v_add_u32 v12, s44, v12
    v_add_u32 v13, s44, v13
    s_waitcnt lgkmcnt(0)""")
    for ks in range(2):
        for t in range(2):
            a(f"v_mfma_f32_16x16x32_bf16 {vr(ACC+4*t,4)}, {vr(F0+12*ks,4)}, {vr(F0+12*ks+4+4*t,4)}, {vr(ACC+4*t,4)}")
    a(f"""s_add_u32 s42, s42, 1
    s_cmp_lt_u32 s42, 10
    s_cbranch_scc1 L_r_loop
    s_nop 1
    s_lshl_b32 s36, s{XCD}, 8
    s_lshl_b32 s37, s{RBL}, 7
    s_add_u32 s36, s36, s37
    s_lshl_b32 s37, s{WAVE}, 5
    s_add_u32 s36, s36, s37
    s_mov_b32 s37, {WS_G}""")
    stamp(a, 3)
    for t in range(2):
        a(f"""v_add3_u32 v20, s36, v3, {16*t}
        v_cvt_pk_bf16_f32 v{21+t}, v{ACC+4*t}, v{ACC+4*t+1}
        v_and_b32 v23, 0xffff0000, v{21+t}
        v_lshlrev_b32 v{21+t}, 16, v{21+t}""")
        sigmoid(a, 23, "v23")
        a(f"""v_cvt_pk_bf16_f32 v23, v23, v23
        v_and_b32 v{26+t}, 0xffff0000, v23
        v_lshlrev_b32 v24, 2, v20
        s_mov_b64 exec, 0xffff
        buffer_store_dword v{26+t}, v24, s[24:27], s37 offen sc1
        s_mov_b64 exec, -1
        v_ashrrev_i32 v24, 31, v{21+t}
        v_or_b32 v24, 0x80000000, v24
        v_xor_b32 v{21+t}, v{21+t}, v24
        v_and_b32 v{21+t}, 0xffff0000, v{21+t}
        v_sub_u32 v24, 0xffff, v20
        v_or_b32 v{21+t}, v{21+t}, v24""")
    top2(a, 21, 22, 25, 46, 47, 48)
    a(f"""s_lshr_b32 s36, s36, 1
    s_add_u32 s36, s36, {WS_CAND}
    v_mov_b32 v28, s46
    v_mov_b32 v29, s{TAG}
    v_mov_b32 v30, s47
    v_mov_b32 v31, s{TAG}
    v_mov_b32 v24, 0
    s_mov_b64 exec, 1
    buffer_store_dwordx4 v[28:31], v24, s[24:27], s36 offen sc1
    s_lshl_b32 s36, s{XCD}, 5
    s_add_u32 s36, s36, s{LOC}
    s_lshl_b32 s36, s36, 2
    s_add_u32 s36, s36, s{WAVE}
    s_lshl_b32 s36, s36, 2
    s_add_u32 s36, s36, {WS_FL}
    v_mov_b32 v9, 1
    s_waitcnt vmcnt(1)
    buffer_store_dword v29, v24, s[24:27], s36 offen sc1
    ds_add_u32 v19, v9 offset:{O_R}
    s_mov_b64 exec, -1""")
    stamp(a, 4)
    a("s_branch L_att_setup")


Q, QH, KH, K, V, P, S0, S1, O, M = 32, 36, 38, 40, 44, 52, 64, 80, 96, 112
KA, KHA, VA, QA, QHA, G, G2, XA, XR = 12, 13, 14, 15, 16, 17, 18, 19, 20
TT, NT, HI_ = 33, 34, 35
SQ, SQH = 46, 47


def diag_mask(a, old):
    a(f"""v_lshlrev_b32 v6, 2, v4
    v_sub_u32 v6, v3, v6
    v_mov_b32 v7, 0xff800000""")
    for r in range(0, 16, 2):
        k0, k1 = (r >> 2) * 8 + (r & 3), (r >> 2) * 8 + (r & 3) + 1
        a(f"""v_cmp_le_i32 s[44:45], {k0}, v6
        v_cmp_le_i32 s[48:49], {k1}, v6
        s_nop 0
        v_cndmask_b32_e64 v{S0+r}, v7, 0, s[44:45]
        v_cndmask_b32_e64 v{S0+r+1}, v7, 0, s[48:49]""")
        if old:
            a(f"""v_cndmask_b32_e64 v{M+r}, 0, v7, s[44:45]
            v_cndmask_b32_e64 v{M+r+1}, 0, v7, s[48:49]""")


def attention(a):
    SRC = WS_L
    a("L_att_setup:")
    a(f"""s_and_b32 s31, s{LOC}, 1
    s_mul_i32 s40, s{LOC}, 5
    s_lshr_b32 s40, s40, 1            ; c0
    s_sub_u32 s{TT}, 11, s{WAVE}
    s_cmp_lt_u32 s{WAVE}, 4
    s_cselect_b32 s{TT}, s{WAVE}, s{TT}
    s_add_u32 s36, s{TT}, 1
    s_cmp_eq_u32 s{XCD}, 0
    s_cselect_b32 s{NT}, s36, 9
    s_cselect_b32 s36, 4, 17
    s_movk_i32 s37, 0xff
    s_cselect_b32 s37, 0x3ff, s37
    s_lshl_b32 s36, s36, s{TT}
    s_and_b32 s{HI_}, s36, s37
    s_lshr_b32 s36, s{LOC}, 2
    s_xor_b32 s36, s36, s31
    s_andn2_b32 s41, 1, s36
    s_lshl_b32 s41, s41, 3
    s_xor_b32 s42, s31, 1
    s_lshl_b32 s42, s42, 1
    s_mul_i32 s36, s{XCD}, 240
    s_add_u32 s36, s36, s40
    s_lshl_b32 s43, s36, 12
    s_lshl_b32 s37, s{TT}, 9
    s_add_u32 s36, s43, s37
    s_lshl_b32 s38, s31, 12
    s_add_u32 s{SQ}, s36, s38
    s_lshl_b32 s38, s42, 12
    s_add_u32 s38, s38, s41
    s_add_u32 s{SQH}, s36, s38
    v_lshlrev_b32 v10, 4, v1
    v_and_b32 v3, 31, v1
    v_lshrrev_b32 v4, 5, v1
    v_lshlrev_b32 v5, 4, v3
    v_lshl_add_u32 v{QA}, v4, 12, v5
    v_lshl_add_u32 v{QHA}, v4, 28, v5
    s_mul_i32 s38, s31, {CS}
    s_add_u32 s38, s38, s37
    v_mul_u32_u24 v6, {CS}, v4
    v_add3_u32 v{KA}, v6, v5, s38
    s_mul_i32 s38, s42, {CS}
    s_add_u32 s38, s38, s41
    s_add_u32 s38, s38, s37
    v_add_u32 v6, s38, v5
    v_mov_b32 v9, {L_ONES}
    v_cmp_eq_u32 s[44:45], 0, v4
    v_bfe_u32 v7, v1, 4, 1
    v_and_b32 v8, 3, v1
    v_add_u32 v11, 8, v9
    v_cndmask_b32_e64 v{KHA}, v11, v6, s[44:45]
    v_lshl_add_u32 v6, v7, 2, v8      ; gamma
    v_add_u32 v7, s31, v6
    v_lshrrev_b32 v8, 1, v7
    v_add_u32 v11, s40, v8
    v_lshrrev_b32 v11, 1, v11
    v_xor_b32 v7, v7, v11
    v_and_b32 v7, 1, v7
    v_mul_u32_u24 v8, {CS}, v8
    v_lshl_add_u32 v8, v7, 3, v8
    s_add_u32 s38, s37, {L_V}
    v_add_u32 v8, s38, v8
    v_cmp_gt_u32 s[44:45], 5, v6
    v_bfe_u32 v7, v1, 2, 2
    v_lshl_add_u32 v7, v4, 2, v7
    v_cndmask_b32_e64 v8, v9, v8, s[44:45]
    v_lshl_add_u32 v{VA}, v7, 4, v8""")
    diag_mask(a, True)
    a(f"""s_lshr_b32 s36, s{WAVE}, 2
    s_mul_i32 s37, s36, {L_V}
    s_add_u32 s36, s36, 1
    s_mul_i32 s36, s36, {80*4096}
    s_add_u32 s36, s36, s43
    s_and_b32 s38, s{WAVE}, 3
    s_mul_i32 s38, s38, 3
    v_and_b32 v5, 15, v1
    v_mul_u32_u24 v6, 160, v5
    v_lshrrev_b32 v7, 4, v1
    v_lshl_add_u32 v6, v7, 3, v6
    s_and_b32 s39, s{WAVE}, 3
    s_mul_i32 s44, s39, 2560
    v_add_u32 v{XA}, s44, v6
    s_and_b32 s44, s{LOC}, 3
    s_lshl_b32 s44, s44, {5 if OPT["rowmap"] else 6}
    s_lshl_b32 s45, s{XCD}, 8
    s_add_u32 s48, s44, s45
    s_and_b32 s44, s39, 1
    s_lshl_b32 s44, s44, 4
    s_add_u32 s51, s48, s44
    s_and_b32 s44, s39, 2
    s_lshl_b32 s44, s44, {6 if OPT["rowmap"] else 4}
    s_add_u32 s51, s51, s44
    s_lshl_b32 s39, s{TT}, 5
    s_add_u32 s39, s39, s45
    v_add_lshl_u32 v6, s39, v3, 2
    v_add_lshl_u32 v7, s51, v5, 2
    s_mov_b32 s39, {WS_G}
    v_add_u32 v11, {L_XT}, v{XA}
    v_mov_b32 v30, {M_PURE}
    v_mov_b32 v2, 1
    v_mov_b32 v60, s{TAG}
    v_mov_b32 v61, 0
    s_mov_b32 s40, 0""")
    for t in range(5):
        a(f"ds_read_b64 {vr(XR+2*t,2)}, v11 offset:{t*32}")
    a("s_waitcnt lgkmcnt(0)\ns_barrier")
    stamp(a, 5)
    for i in range(3):
        a(f"""s_add_u32 s44, s38, {i}
        s_lshr_b32 s45, s44, 2
        s_mul_i32 s45, s45, {CS-4096}
        s_lshl_b32 s44, s44, 10
        s_add_u32 s45, s45, s44
        s_add_u32 s45, s45, s37
        s_add_u32 m0, s45, 4096
        s_add_u32 s44, s44, s36
        buffer_load_dwordx4 v10, s[24:27], s44 offen sc1 lds""")
    a(f"""buffer_load_dwordx4 {vr(Q,4)}, v{QA}, s[24:27], s{SQ} offen sc1
    buffer_load_dwordx2 {vr(QH,2)}, v{QHA}, s[24:27], s{SQH} offen sc1
    buffer_load_dword v{G}, v6, s[24:27], s39 offen sc1
    buffer_load_dword v{G2}, v7, s[24:27], s39 offen sc1""")
    a("s_waitcnt vmcnt(0)")
    a("ds_read_b32 v31, v30")
    lds_add(a, O_B2)
    lds_wait(a, O_B2, 8)
    if OPT["aprio"]:
        a(f"s_setprio {OPT['aprio']}")
    stamp(a, 6)
    off = lambda i: (8 - i) * 512
    rdK = lambda i: f"ds_read_b128 {vr(K,4)}, v{KA} offset:{off(i)}"
    rdKH = lambda i: f"ds_read_b64 {vr(KH,2)}, v{KHA} offset:{off(i)}"
    rdV = lambda i, h: f"ds_read_b64_tr_b16 {vr(V+4*h,2)}, v{VA} offset:{off(i)+256*h}\nds_read_b64_tr_b16 {vr(V+4*h+2,2)}, v{VA} offset:{off(i)+256*h+128}"
    stubs = []
    def halo_check(tval):
        stubs.append(tval)
        a(f"s_bitcmp1_b32 s{HI_}, {tval}\ns_cbranch_scc1 L_hw{tval}\nL_hr{tval}:")
    a("L_att_go:")
    a(rdK(0)); a(rdKH(0)); a(rdV(0, 0))
    halo_check(0)
    a(f"""s_waitcnt lgkmcnt(2)
    v_mfma_f32_32x32x16_bf16 {vr(S0,16)}, {vr(K,4)}, {vr(Q,4)}, {vr(S0,16)}""")
    a(rdK(1))
    a(f"v_mfma_f32_32x32x8_bf16 {vr(S0,16)}, {vr(KH,2)}, {vr(QH,2)}, {vr(S0,16)}")
    a(rdKH(1))
    a(f"""v_readfirstlane_b32 s{PURE}, v31
    s_nop 4
    s_waitcnt lgkmcnt(0)""")

    def softq(S, q):
        for j in range(4):
            a(f"v_exp_f32 v{S+4*q+j}, v{S+4*q+j}")
        for j in range(2):
            a(f"v_cvt_pk_bf16_f32 v{P+2*q+j}, v{S+4*q+2*j}, v{S+4*q+2*j+1}")

    for i in range(9):
        S, SN = (S0, S1) if i % 2 == 0 else (S1, S0)
        halo_check(i + 1)
        if i > 0:
            a("s_waitcnt lgkmcnt(2)")
        if i < 8:
            c = vr(M, 16) if i + 1 == 8 else "0"
            a(f"v_mfma_f32_32x32x16_bf16 {vr(SN,16)}, {vr(K,4)}, {vr(Q,4)}, {c}")
        nread = 0
        if i < 7:
            a(rdK(i + 2)); nread += 1
        softq(S, 0)
        if i > 0:
            a(f"v_mfma_f32_32x32x16_bf16 {vr(O,16)}, {vr(V+4,4)}, {vr(P+4,4)}, {vr(O,16)}")
        a(rdV(i, 1)); nread += 2
        softq(S, 1)
        if i < 8:
            a(f"v_mfma_f32_32x32x8_bf16 {vr(SN,16)}, {vr(KH,2)}, {vr(QH,2)}, {vr(SN,16)}")
        if i < 7:
            a(rdKH(i + 2)); nread += 1
        softq(S, 2)
        a(f"s_waitcnt lgkmcnt({nread})")
        a(f"v_mfma_f32_32x32x16_bf16 {vr(O,16)}, {vr(V,4)}, {vr(P,4)}, {'0' if i == 0 else vr(O,16)}")
        if i < 8:
            a(rdV(i + 1, 0))
        softq(S, 3)
    a(f"""L_att_fin:
    s_waitcnt lgkmcnt(0)
    s_nop 0
    v_mfma_f32_32x32x16_bf16 {vr(O,16)}, {vr(V+4,4)}, {vr(P+4,4)}, {vr(O,16)}
    s_lshl_b32 s36, s{XCD}, 3
    s_add_u32 s36, s36, s{TT}
    s_lshl_b32 s36, s36, 5
    s_add_u32 s36, s36, s{LOC}
    s_lshl_b32 s36, s36, 2
    s_add_u32 s36, s36, {WS_FO}
    s_mov_b32 s37, {f32(2.0**-64)}
    s_mov_b32 s38, {f32(2.0**64 if not OPT['forcefb'] else 2.0**12)}
    s_nop 3
    v_rcp_f32 v8, v{O+12}
    v_cmp_nle_f32 s[44:45], s37, v{O+12}
    v_cmp_nge_f32 vcc, s38, v{O+12}
    v_mul_f32 v8, v8, v{G}
    s_or_b64 vcc, vcc, s[44:45]
    s_cbranch_vccnz L_fallback
    L_att_ok:""")
    for r in range(6):
        a(f"v_pk_mul_f32 {vr(O+2*r,2)}, {vr(O+2*r,2)}, v[8:9] op_sel_hi:[1,0]")
    for r in range(6):
        a(f"v_cvt_pk_bf16_f32 v{P+r}, v{O+2*r}, v{O+2*r+1}")
    def pub(sc):
        a(f"""buffer_store_dwordx4 {vr(P,4)}, v{QA}, s[24:27], s{SQ} offen {sc}
        buffer_store_dwordx2 {vr(P+4,2)}, v{QHA}, s[24:27], s{SQH} offen {sc}""")
        stamp(a, 7)
        a(f"""s_mov_b64 exec, 1
        ds_add_u32 v30, v2 offset:{O_ATT}
        s_waitcnt vmcnt(0)
        buffer_store_dword v60, v61, s[24:27], s36 offen {sc}
        s_mov_b64 exec, -1""")
    two_flavours(a, pub)
    stamp(a, 8)
    return stubs


def att_stubs(a, stubs):
    for t in stubs:
        a(f"L_hw{t}:")
        if t >= 8:
            a("s_branch L_att_fin")
            continue
        if t >= 2:
            a(f"s_cmp_eq_u32 s{XCD}, 0\ns_cbranch_scc1 L_att_fin")
        a(f"""s_cmp_eq_u32 s{TT}, {t}
        s_cselect_b32 s36, 1, 2
        s_mov_b32 s50, {SPIN*8}
        L_hs{t}:
        ds_read_b32 v9, v30 offset:4
        s_sub_u32 s50, s50, 1
        s_cbranch_scc1 L_hr{t}
        s_waitcnt lgkmcnt(0)
        v_cmp_gt_u32 vcc, s36, v9
        s_cbranch_vccnz L_hs{t}
        s_branch L_hr{t}""")
    a(f"""L_fallback:
    s_cmp_lg_u32 s40, 0
    s_cbranch_scc1 L_att_ok
    s_mov_b32 s40, 1""")
    diag_mask(a, False)
    a(f"""v_mov_b32 v8, 0xff800000
    v_add_u32 v5, 4096, v{KA}
    v_add_u32 v6, 4096, v{KHA}
    s_mov_b32 s36, 0
    L_fb_loop:
    ds_read_b128 {vr(K,4)}, v5
    ds_read_b64 {vr(KH,2)}, v6
    v_subrev_u32 v5, 512, v5
    v_subrev_u32 v6, 512, v6
    s_waitcnt lgkmcnt(0)
    s_cmp_eq_u32 s36, 0
    s_cbranch_scc1 L_fb_a
    s_cmp_eq_u32 s36, 8
    s_cbranch_scc1 L_fb_b
    v_mfma_f32_32x32x16_bf16 {vr(S1,16)}, {vr(K,4)}, {vr(Q,4)}, 0
    s_branch L_fb_c
    L_fb_a:
    v_mfma_f32_32x32x16_bf16 {vr(S1,16)}, {vr(K,4)}, {vr(Q,4)}, {vr(S0,16)}
    s_branch L_fb_c
    L_fb_b:
    v_mfma_f32_32x32x16_bf16 {vr(S1,16)}, {vr(K,4)}, {vr(Q,4)}, {vr(M,16)}
    L_fb_c:
    v_mfma_f32_32x32x8_bf16 {vr(S1,16)}, {vr(KH,2)}, {vr(QH,2)}, {vr(S1,16)}
    s_nop 11""")
    for r in range(0, 16, 2):
        a(f"v_max3_f32 v8, v8, v{S1+r}, v{S1+r+1}")
    a(f"""s_add_u32 s36, s36, 1
    s_cmp_lt_u32 s36, s{NT}
    s_cbranch_scc1 L_fb_loop
    v_mov_b32 v9, v8
    s_nop 1
    v_permlane32_swap_b32 v8, v9
    v_max_f32 v8, v8, v9
    v_sub_f32 v8, 0, v8
    v_and_b32 v5, 0xffff0000, v8
    v_sub_f32 v8, v8, v5
    v_and_b32 v6, 0xffff0000, v8
    v_sub_f32 v8, v8, v6
    v_lshrrev_b32 v5, 16, v5
    v_or_b32 v5, v5, v6
    v_lshrrev_b32 v8, 16, v8
    v_cmp_eq_u32 s[44:45], 0, v4
    s_nop 1
    v_cndmask_b32_e64 v{QH}, v5, v{QH}, s[44:45]
    v_cndmask_b32_e64 v{QH+1}, v8, v{QH+1}, s[44:45]
    s_branch L_att_go""")


OF, NOF, PA, WF = 64, 14, 32, 120
def outproj(a):
    a(f"""s_cmp_lt_u32 s{WAVE}, 4
    s_cbranch_scc1 L_op_main
    s_waitcnt lgkmcnt(0)""")
    def owner():
        lp, lo = uid("tv"), uid("to")
        a(f"""s_mov_b32 s50, {SPIN*8}
        {lp}:
        ds_read_b64 v[62:63], v30 offset:16
        s_sub_u32 s50, s50, 1
        s_waitcnt lgkmcnt(0)
        s_cbranch_scc1 {lo}
        v_cmp_eq_u32 vcc, 0, v62
        s_cbranch_vccnz {lp}
        {lo}:""")
        a(owner_txt)
    owner_txt = f"""v_readfirstlane_b32 s42, v62
    v_readfirstlane_b32 s43, v63
    s_and_b32 s42, s42, 0xffff
    s_lshr_b32 s32, s{LOC}, 2
    v_add_u32 v9, s51, v3
    v_mov_b32 v7, 320
    v_cmp_eq_u32 s[44:45], s43, v9
    v_cmp_eq_u32 s[48:49], s42, v9
    v_lshl_add_u32 v25, v4, 4, v30
    v_cndmask_b32_e64 v7, 0, v7, s[44:45]
    v_add_u32 v25, v25, v7
    s_or_b64 s[44:45], s[44:45], s[48:49]"""
    finish(a)
    WA = 160
    a(f"""L_op_main:
    {"s_setprio 0" if OPT["aprio"] else ""}
    s_load_dwordx2 s[8:9], s[0:1], 72
    v_and_b32 v3, 15, v1
    v_lshrrev_b32 v4, 4, v1
    v_lshrrev_b32 v5, 1, v4
    v_add_u32 v6, v4, v5
    v_lshlrev_b32 v7, 4, v3
    v_lshl_add_u32 v12, v6, 12, v7
    v_and_b32 v6, 1, v4
    v_lshl_add_u32 v8, v6, 1, v5
    v_mul_u32_u24 v9, {5*4096}, v8
    v_add_u32 v13, v9, v7
    v_mul_u32_u24 v5, 20, v5
    v_lshl_add_u32 v5, v6, 2, v5
    v_bfe_u32 v7, v1, 2, 2
    v_add_u32 v5, v5, v7
    v_mul_u32_u24 v5, 160, v5
    v_and_b32 v9, 3, v1
    v_lshlrev_b32 v9, 3, v9
    v_add_u32 v9, {L_WO}, v9
    v_add_u32 v14, v5, v9
    v_add_u32 v15, {8*6400}, v14
    v_mul_u32_u24 v8, 40, v8
    v_add3_u32 v8, v8, v7, 16
    v_mul_u32_u24 v8, 160, v8
    v_add_u32 v8, v8, v9
    v_mul_u32_u24 v6, 3200, v6
    v_add_u32 v{WA+1}, v8, v6
    v_sub_u32 v{WA}, v8, v6
    v_add_u32 v{WA}, 3200, v{WA}
    v_add_u32 v{WA+2}, {8*6400}, v{WA}
    v_add_u32 v{WA+3}, {8*6400}, v{WA+1}
    v_sub_f32 v{G2}, 1.0, v{G2}""")
    for t in range(5):
        for j in range(2):
            a(f"""v_lshlrev_b32 v{PA+4*t+2*j}, 16, v{XR+2*t+j}
            v_and_b32 v{PA+4*t+2*j+1}, 0xffff0000, v{XR+2*t+j}""")
    for i in range(20):
        a(f"v_mul_f32 v{PA+i}, v{G2}, v{PA+i}")
    for n in range(3):
        a(f"""v_add_u32 v5, {64*n}, v1
        v_mul_u32_u24 v6, 6554, v5
        v_lshrrev_b32 v6, 16, v6
        v_mul_u32_u24 v7, 10, v6
        v_sub_u32 v7, v5, v7
        v_mul_u32_u24 v6, 1280, v6
        v_lshl_add_u32 v{21+n}, v7, 4, v6""")
    a(f"""v_lshrrev_b32 v5, 5, v1
    v_lshl_add_u32 v23, v5, 28, v23
    s_mul_i32 s36, s{WAVE}, 2560
    v_add_u32 v24, s36, v10
    s_waitcnt lgkmcnt(0)""")
    owner()
    srd(a, SA, 8, 2621440)
    a(f"""s_mul_i32 s40, s51, 1280
    s_mul_i32 s37, s32, 160
    s_add_u32 s40, s40, s37
    s_lshr_b32 s36, s51, 5
    s_lshl_b32 s36, s36, 7
    s_add_u32 s36, s36, {WS_FO}
    v_and_b32 v5, 31, v1
    v_lshlrev_b32 v5, 2, v5
    s_mul_i32 s37, s{XCD}, {XB}
    s_and_b32 s38, s51, 255
    s_lshl_b32 s38, s38, 4
    s_add_u32 s37, s37, s38
    s_add_u32 s38, s37, 8192""")
    lds_wait(a, O_WO, 1)
    stamp(a, 9)

    def wread(s, t):
        f = WF + 20 * (s & 1) + 4 * t
        if s < 16:
            b = 14 if s < 8 else 15
            b2, o, d = b, (s % 8) * 6400, 1280
        else:
            b = WA if s < 18 else WA + 2
            b2, o, d = b + 1, (s % 2) * 25600, 0
        a(f"""ds_read_b64_tr_b16 v[{f}:{f+1}], v{b} offset:{o+t*32}
        ds_read_b64_tr_b16 v[{f+2}:{f+3}], v{b2} offset:{o+t*32+d}""")

    def oload(s):
        r = OF + 4 * (s % NOF)
        if s < 16:
            a(f"buffer_load_dwordx4 {vr(r,4)}, v12, s[24:27], s37 offen sc1\ns_add_u32 s37, s37, {5*4096}")
        else:
            a(f"buffer_load_dwordx4 {vr(r,4)}, v13, s[24:27], s38 offen sc1\ns_add_u32 s38, s38, {20*4096}")
    pl = "buffer_load_dword v6, v5, s[24:27], s36 offen sc1"
    a(pl)
    for t in range(5):
        wread(0, t)
    a("s_waitcnt lgkmcnt(4)")
    for t in range(5):
        wread(1, t)
    poll(a, pl, [6], pre=True)
    stamp(a, 10)
    NL0 = OPT["nl0"]
    assert NL0 <= 5
    for s in range(NL0):
        oload(s)
    a("""s_cmp_eq_u64 s[44:45], 0
    s_cbranch_scc1 L_op_loop""")
    lp = uid("yw")
    a(f"""s_mov_b32 s50, {SPIN*8}
    {lp}:
    ds_read_b32 v9, v30 offset:{O_Y}""")
    for t in range(5):
        a(f"ds_read_b128 {vr(84+4*t,4)}, v25 offset:{L_Y-L_MISC+t*64}")
    a(f"""s_sub_u32 s50, s50, 1
    s_waitcnt lgkmcnt(0)
    s_cbranch_scc1 L_op_loop
    v_cmp_ne_u32 vcc, 1, v9
    s_cbranch_vccnz {lp}
    s_mov_b64 exec, s[44:45]""")
    for i in range(20):
        a(f"v_fmac_f32 v{PA+i}, v{G2}, v{84+i}")
    a("s_mov_b64 exec, -1\nL_op_loop:")
    for s in range(20):
        issued = min(20, NL0 + s)
        a(f"s_waitcnt vmcnt({issued-1-s}) lgkmcnt({10 if s < 19 else 0})")
        for t in range(5):
            a(f"v_mfma_f32_16x16x32_bf16 {vr(PA+4*t,4)}, {vr(WF+20*(s&1)+4*t,4)}, {vr(OF+4*(s%NOF),4)}, {vr(PA+4*t,4)}")
            if s < 18:
                wread(s + 2, t)
            if t == 0 and NL0 + s < 20:
                oload(NL0 + s)
            if s == 18 and t == 0:
                a(f"ds_read_b32 v9, v30 offset:{O_ATT}")
    a("L_op_end:")
    stamp(a, 11)
    lds_wait(a, O_ATT, 8, pre=True)
    for t in range(5):
        a(f"""v_cvt_pk_bf16_f32 v{WF+2*t}, v{PA+4*t}, v{PA+4*t+1}
        v_cvt_pk_bf16_f32 v{WF+2*t+1}, v{PA+4*t+2}, v{PA+4*t+3}
        ds_write_b64 v{XA}, {vr(WF+2*t,2)} offset:{t*32}""")
    for n in range(3):
        a(f"ds_read_b128 {vr(OF+4*n,4)}, v24 offset:{n*1024}")
    for n in range(3):
        a(f"s_waitcnt lgkmcnt({2-n})\nbuffer_store_dwordx4 {vr(OF+4*n,4)}, v{21+n}, s[52:55], s40 offen {OPT['osc']}")
    stamp(a, 12)
    if OPT["probe"]:
        pa, pb = [int(x) for x in OPT["probe"].split("_")]
        a(f"""s_sub_u32 s36, s{62+2*pb}, s{62+2*pa}
        s_lshl_b32 s36, s36, 3
        s_min_u32 s36, s36, 20000
        s_lshl_b32 s37, s{WAVE}, 8
        s_add_u32 s37, s37, s2
        s_cmp_lg_u32 s37, {OPT["pwg"]}
        s_cselect_b32 s36, 0, s36
        s_memrealtime s[38:39]
        s_waitcnt lgkmcnt(0)
        s_add_u32 s36, s36, s38
        L_probe:
        s_sleep 2
        s_memrealtime s[38:39]
        s_waitcnt lgkmcnt(0)
        s_sub_u32 s37, s38, s36
        s_cmp_lt_i32 s37, 0
        s_cbranch_scc1 L_probe""")
    finish(a, True)


def wo_offsets(a):
    for n in range(5):
        a(f"""v_add_u32 v5, {64*n}, v1
        v_mul_u32_u24 v6, 6554, v5
        v_lshrrev_b32 v6, 16, v6
        v_mul_u32_u24 v8, 10, v6
        v_sub_u32 v8, v5, v8
        v_mul_u32_u24 v6, 1280, v6
        v_lshl_add_u32 v{WOV+n}, v8, 4, v6""")


WOV = 160
def wo_groups(a, g0, g1):
    lp = uid("wo")
    a(f"""s_mov_b32 m0, {L_WO+g0*5120}
    s_add_u32 s41, s34, {g0*40960}
    s_movk_i32 s44, 0x400
    {lp}:""")
    for j in range(5):
        a(f"""buffer_load_dwordx4 v{WOV+j}, s[20:23], s41 offen lds
        s_add_u32 m0, m0, s44
        {"s_nop 0" if j < 4 else "s_add_u32 s41, s41, 40960"}""")
    a(f"""s_cmp_lt_u32 m0, {L_WO+g1*5120}
    s_cbranch_scc1 {lp}""")


def purity(a):
    a(f"""v_cmp_ne_u32 vcc, s{TAG}, v12
    v_cmp_ne_u32 s[44:45], s35, v13
    s_or_b64 vcc, vcc, s[44:45]
    s_cselect_b32 s36, 0, {0 if OPT['forceimp'] else 1}
    v_mov_b32 v5, s36
    ds_write_b32 v30, v5
    s_waitcnt lgkmcnt(0)""")


def helper1(a):
    a(f"""L_help:
    s_cmp_eq_u32 s{WAVE}, 9
    s_cbranch_scc1 L_ffn
    s_load_dwordx2 s[40:41], s[0:1], 16
    s_load_dwordx2 s[8:9], s[0:1], 32
    s_load_dwordx2 s[10:11], s[0:1], 64
    v_lshlrev_b32 v10, 4, v1""")
    a(f"""v_mov_b32 v16, {"0x3f80" if OPT["ones"] else "0x3f803f80"}
    v_mov_b32 v17, {"0" if OPT["ones"] else "0x3f803f80"}
    v_mov_b32 v18, 0x3f803f80
    v_mov_b32 v19, 0x3f80
    v_add_u32 v5, {L_ONES}, v10""")
    for i in range(5):
        a(f"ds_write_b128 v5, v[16:19] offset:{i*1024}")
    a(f"""v_mov_b32 v30, {M_PURE}
    v_mov_b32 v6, 0
    v_lshl_add_u32 v7, v1, 2, v30
    ds_write_b32 v7, v6""")
    if OPT["prio"]:
        a("s_setprio 3")
    wo_offsets(a)
    a("s_waitcnt lgkmcnt(0)")
    epoch_load(a)
    srd(a, SX, 4, 2621440)
    srd(a, SW, 40, 819200)
    srd(a, SS, 12, WS_END)
    srd(a, SA, 8, 1280)
    srd(a, SB, 10, 1280)
    a(f"""s_cmp_lg_u32 s{CT}, 15
    s_cbranch_scc1 L_nowv
    s_mov_b32 m0, {L_WV}
    s_nop 0
    buffer_load_dwordx4 v10, s[52:55], 0 offen lds
    buffer_load_dwordx4 v10, s[52:55], 0 offen offset:1024 lds
    s_mov_b32 m0, {L_WV+2048}
    s_nop 0
    buffer_load_dwordx4 v10, s[56:59], 0 offen lds
    buffer_load_dwordx4 v10, s[56:59], 0 offen offset:1024 lds
    L_nowv:
    s_getreg_b32 s35, hwreg(HW_REG_XCC_ID, 0, 4)
    s_lshr_b32 s34, s{LOC}, 2
    s_mul_i32 s34, s34, 160
    s_mul_i32 s33, s{LOC}, 5
    s_lshr_b32 s33, s33, 1             ; c0
    v_bfe_u32 v5, v1, 2, 1
    v_lshl_add_u32 v6, v5, 1, s33
    v_lshrrev_b32 v6, 3, v6
    v_bfe_u32 v7, v1, 3, 2
    v_cmp_eq_u32 s[44:45], 3, v7
    v_and_b32 v8, 3, v1
    v_lshlrev_b32 v8, 2, v8
    v_cndmask_b32_e64 v5, v6, v5, s[44:45]
    v_mad_u32_u24 v5, v7, 10, v5
    v_lshl_add_u32 v11, v5, 4, v8
    v_and_b32 v7, 1, v7
    v_mad_u32_u24 v5, v7, 10, v6
    v_add_u32 v5, 10, v5
    v_lshl_add_u32 v15, v5, 7, v8
    v_and_b32 v14, 31, v1
    v_lshlrev_b32 v14, 3, v14
    s_lshl_b32 s42, s{XCD}, 8
    s_add_u32 s42, s42, {WS_XID}""")
    epoch_fin(a)
    stamp(a, 1)
    a(f"""s_waitcnt vmcnt(0)
    s_barrier
    s_lshl_b32 s36, s{LOC}, 3
    s_add_u32 s36, s36, s42
    v_mov_b32 v8, s{TAG}
    v_mov_b32 v9, s35
    v_mov_b32 v5, 0
    s_mov_b64 exec, 1
    buffer_store_dwordx2 v[8:9], v5, s[24:27], s36 offen {'sc1' if OPT['xsc'] else ''}
    s_mov_b64 exec, -1""")
    def qtouch():
        if OPT["qown"]:
            l = uid("nq")
            a(f"""s_cmp_ge_u32 s{CT}, 5
            s_cbranch_scc1 {l}
            s_mul_i32 s36, s{XCD}, {XB}
            s_lshl_b32 s37, s{CT}, 16
            s_add_u32 s36, s36, s37
            s_lshl_b32 s37, s{RBL}, 11
            s_add_u32 s36, s36, s37
            v_and_b32 v5, 15, v1
            v_lshlrev_b32 v5, 7, v5
            v_lshl_add_u32 v5, v4, 12, v5""")
            for i in range(4):
                a("buffer_load_dword v167, v5, s[24:27], s36 offen sc1\ns_add_u32 s36, s36, 16384")
            a(f"{l}:")
            return
        a(f"""s_mul_i32 s36, s{XCD}, {XB}
        s_mul_i32 s37, s{LOC}, 10240
        s_add_u32 s36, s36, s37
        s_add_u32 s37, s36, 5120
        v_min_u32 v5, 39, v1
        v_lshlrev_b32 v5, 7, v5
        buffer_load_dword v167, v5, s[24:27], s36 offen sc1
        buffer_load_dword v167, v5, s[24:27], s37 offen sc1""")
    a(f"""s_and_b32 s38, s{LOC}, 3
    s_lshl_b32 s38, s38, 5
    s_lshl_b32 s39, s{XCD}, 8
    s_add_u32 s38, s38, s39
    s_mul_i32 s38, s38, 1280
    s_add_u32 s38, s38, s34
    s_add_u32 s39, s38, {128*1280}""")
    side = {i: [] for i in range(7)}
    def spread(items, spec):
        a0, a1 = [int(x) for x in spec.split("_")]
        n = a1 - a0 + 1
        for k, it in enumerate(items):
            side[a0 + k * n // len(items)].append(it)
    spread([f"""s_mov_b32 m0, {L_XT+n*1024}
        s_nop 0
        buffer_load_dwordx4 v{WOV+n%5}, s[16:19], s{38+n//5} offen lds""" for n in range(10)], OPT["xs"])
    if OPT["wsn"]:
        spread([f"""s_mov_b32 m0, {L_WO+n*1024}
        s_add_u32 s36, s34, {(n//5)*40960}
        buffer_load_dwordx4 v{WOV+n%5}, s[20:23], s36 offen lds""" for n in range(65 - 5 * OPT["wsn"], 65)], OPT["ws"])
    for i in range(7):
        if OPT["qloc"] and OPT["qat"] == i:
            qtouch()
        for it in side[i]:
            a(it)
        if i < 6:
            a("s_barrier")
    a(f"""s_cmp_lg_u32 s{CT}, 15
    s_cbranch_scc1 L_h_g
    s_barrier
    s_barrier
    s_waitcnt vmcnt(0)
    s_barrier
    buffer_load_dwordx2 v[12:13], v14, s[24:27], s42 offen sc1
    s_branch L_h_p
    L_h_g:
    buffer_load_dwordx2 v[12:13], v14, s[24:27], s42 offen sc1
    s_barrier
    s_barrier
    L_h_p:
    s_waitcnt vmcnt(0)""")
    purity(a)
    if OPT["qloc"] and OPT["qat"] == 8:
        qtouch()
    a(f"""s_cmp_eq_u32 s{CT}, 15
    s_cbranch_scc1 L_h_q
    s_barrier
    L_h_q:""")
    lds_wait(a, O_R, 4)
    a(f"""s_lshl_b32 s36, s{XCD}, 9
    s_add_u32 s36, s36, {WS_FL}""")
    stamp(a, 2)
    poll(a, "buffer_load_dword v12, v11, s[24:27], s36 offen sc1", [12])
    stamp(a, 4)
    a(f"""s_lshl_b32 s36, s{XCD}, 12
    s_add_u32 s36, s36, {WS_FR-4096}
    s_barrier
    buffer_load_dword v12, v15, s[24:27], s36 offen sc1""")
    a(f"""s_cmp_eq_u32 s{XCD}, 0
    s_cbranch_scc1 L_nohalo""")
    poll(a, "buffer_load_dword v12, v15, s[24:27], s36 offen sc1", [12], pre=True)
    if OPT["hdel"]:
        lds_wait(a, O_B2, OPT["hdel"])
    stamp(a, 7)
    a(f"""s_mul_i32 s36, s{XCD}, 240
    s_add_u32 s36, s36, s33
    s_lshl_b32 s36, s36, 12
    s_add_u32 s36, s36, {(WS_L - XB + 80*4096) & 0xffffffff}""")
    for q in (3, 2, 1, 0):
        for sec in range(2):
            for j in range(3):
                a(f"""s_mov_b32 m0, {sec*L_V + j*CS + q*1024}
                s_add_u32 s37, s36, {sec*80*4096 + j*4096 + q*1024}
                buffer_load_dwordx4 v10, s[24:27], s37 offen sc1 lds""")
    a("""v_mov_b32 v5, 1
    s_waitcnt vmcnt(12)
    ds_write_b32 v30, v5 offset:4
    L_nohalo:""")
    stamp(a, 6)
    wo_groups(a, 0, 2)
    a("""v_mov_b32 v5, 2
    s_waitcnt vmcnt(10)
    ds_write_b32 v30, v5 offset:4""")
    stamp(a, 8)
    if OPT["wsn"]:
        wo_groups(a, 2, 13 - OPT["wsn"])
        wo_groups(a, 13, 20)
    else:
        wo_groups(a, 2, 20)
    a("s_waitcnt vmcnt(0)")
    lds_add(a, O_WO)
    a("s_waitcnt lgkmcnt(0)")
    stamp(a, 9)
    a(f"""s_cmp_lg_u32 s2, 255
    s_cbranch_scc1 L_h1_end
    s_mov_b32 s36, {WS_P2+4}
    v_min_u32 v5, 59, v1
    v_lshlrev_b32 v5, 12, v5""")
    lds_wait(a, 16, 1)
    if OPT["epx"]:
        a(f"s_mov_b32 s36, {WS_XID}")
        poll(a, "buffer_load_dwordx4 v[12:15], v10, s[24:27], s36 offen sc1\nbuffer_load_dwordx4 v[16:19], v10, s[24:27], s36 offen offset:1024 sc1", [12, 14, 16, 18])
    else:
        poll(a, "\n".join(f"buffer_load_dword v{12+i}, v5, s[24:27], s36 offen offset:{i*1024} sc1" for i in range(4)), [12, 13, 14, 15])
    a(f"s_mov_b32 s36, {WS_EP}")
    flag_store(a, 36, False)
    a("L_h1_end:")
    finish(a)


def sel_by_g(a, o, b, st, tag=True):
    a(f"""v_cndmask_b32_e64 v{o}, v{b}, v{b+st}, s[44:45]
    v_cndmask_b32_e64 v{o}, v{o}, v{b+2*st}, s[46:47]
    v_cndmask_b32_e64 v{o}, v{o}, v{b+3*st}, s[48:49]""")
    if tag:
        a(f"v_mov_b32 v{o+1}, s{TAG}")


def ffn(a):
    a(f"""L_ffn:
    s_load_dwordx4 s[8:11], s[0:1], 40
    s_load_dwordx2 s[40:41], s[0:1], 56
    v_lshlrev_b32 v10, 4, v1
    s_mul_i32 s33, s{XCD}, 30
    s_add_u32 s33, s33, s{LOC}         ; job
    s_mul_i32 s34, s33, 6554
    s_lshr_b32 s34, s34, 16            ; b
    s_mul_i32 s35, s34, 10
    s_sub_u32 s35, s33, s35
    v_lshrrev_b32 v5, 3, v1
    v_and_b32 v7, 7, v1
    v_mul_u32_u24 v6, 3072, v5
    v_lshl_add_u32 v11, v7, 4, v6
    v_mul_u32_u24 v6, 1280, v5
    v_lshl_add_u32 v12, v7, 4, v6
    v_bfe_u32 v6, v1, 2, 2
    v_lshl_add_u32 v6, v4, 3, v6
    v_lshlrev_b32 v6, 7, v6
    v_and_b32 v8, 3, v1
    v_lshl_add_u32 v6, v8, 3, v6
    v_add_u32 v13, {L_FW}, v6
    v_mov_b32 v30, {M_PURE}
    s_mul_i32 s38, s35, 64*3072
    s_lshl_b32 s36, s34, 7
    s_add_u32 s38, s38, s36
    s_mul_i32 s39, s34, 64*1280
    s_lshl_b32 s36, s35, 7
    s_add_u32 s39, s39, s36
    s_waitcnt lgkmcnt(0)""")
    epoch_load(a)
    srd(a, SX, 4, 2621440)
    srd(a, SW, 40, 1966080)
    srd(a, SS, 12, WS_END)
    srd(a, SA, 8, 1966080)
    srd(a, SB, 10, 1966080)
    epoch_fin(a)
    stamp(a, 1)
    if OPT["fprio"]:
        a(f"s_setprio {OPT['fprio']}")
    def weights(n0=0, n1=24):
        for m in range(3):
            for i in range(8):
                if not n0 <= m * 8 + i < n1:
                    continue
                s_, v_, so, st = ((SA, 11, 38, 3072), (SB, 11, 38, 3072), (SW, 12, 39, 1280))[m]
                a(f"""s_mov_b32 m0, {L_FW+m*8192+i*1024}
                s_add_u32 s36, s{so}, {i*8*st}
                buffer_load_dwordx4 v{v_}, s[{s_}:{s_+3}], s36 offen {OPT['fnt']} lds""")
    cl = "buffer_load_dwordx4 v[24:27], v10, s[24:27], s51 offen sc1"
    a(f"""    s_mov_b32 s51, {WS_CAND}
    s_cmp_lg_u32 s{CT}, 15
    s_cbranch_scc1 L_f_w""")
    for i in range(10):
        a("s_barrier")
    a("""s_barrier
    s_branch L_f_c
    L_f_w:""")
    late = 0
    for i in range(9):
        a("s_barrier")
        if i < 8:
            if OPT["fwm"]:
                weights(3 * i, 3 * i + 3)
    if OPT["cearly"]:
        a(cl)
    if not OPT["fwm"]:
        weights()
        late += 24
    a("s_barrier")
    if OPT["cearly"]:
        a(f"""s_waitcnt vmcnt({late})
        v_xor_b32 v9, s{TAG}, v25
        v_bitop3_b32 v9, v9, v27, s{TAG} bitop3:0xf6
        v_cmp_ne_u32 vcc, 0, v9
        s_cbranch_vccz L_f_ok""")
    a("L_f_c:")
    stamp(a, 2)
    poll(a, cl, [25, 27])
    a("L_f_ok:")
    stamp(a, 3)
    top2(a, 24, 26, 21, 40, 41, 44)
    key_decode(a, 40, 42, 46, 36)
    key_decode(a, 41, 43, 47, 36)
    a(f"""v_mov_b32 v16, s42
    v_mov_b32 v17, s43
    v_mov_b32 v18, s46
    v_mov_b32 v19, s47
    v_or_b32 v16, 0x10000, v16
    ds_write_b128 v30, v[16:19] offset:16
    v_mov_b32 v20, s42
    v_and_b32 v6, 1, v1
    v_cmp_eq_u32 s[44:45], 0, v6
    s_lshl_b32 s36, s35, 7
    s_nop 0
    v_cndmask_b32_e64 v7, v17, v20, s[44:45]
    v_mul_u32_u24 v7, 1280, v7
    v_lshl_add_u32 v7, v4, 4, v7
    s_cmp_lg_u32 s{CT}, 15
    s_cbranch_scc1 L_f_job""")
    a(f"""s_branch L_f_gather
    L_f_job:
    buffer_load_dwordx4 v[32:35], v7, s[16:19], s36 offen
    buffer_load_dwordx4 v[36:39], v7, s[16:19], s36 offen offset:64
    v_cmp_eq_u32 s[44:45], 1, v4
    v_cmp_eq_u32 s[46:47], 2, v4
    v_cmp_eq_u32 s[48:49], 3, v4
    s_and_b32 s52, s{TAG}, 0xff
    s_bfe_u32 s53, s{TAG}, 0x80008
    s_bfe_u32 s54, s{TAG}, 0x80010
    s_lshr_b32 s55, s{TAG}, 24
    v_mov_b32 v21, 0xffffff00""")
    a("s_waitcnt vmcnt(2)")
    stamp(a, 4)
    for t in range(4):
        for ks in range(2):
            o = 16384 + ks * 4096 + t * 32
            r = 128 + t * 8 + ks * 4
            a(f"""ds_read_b64_tr_b16 v[{r}:{r+1}], v13 offset:{o}
            ds_read_b64_tr_b16 v[{r+2}:{r+3}], v13 offset:{o+512}""")
        if t == 1:
            a("s_waitcnt lgkmcnt(0)")
    a("s_waitcnt vmcnt(0)")
    for m in range(2):
        for t in range(4):
            d = 64 + (m * 4 + t) * 4
            f = 40 + (t & 1) * 8
            for ks in range(2):
                o = m * 8192 + ks * 4096 + t * 32
                a(f"""ds_read_b64_tr_b16 v[{f+4*ks}:{f+4*ks+1}], v13 offset:{o}
                ds_read_b64_tr_b16 v[{f+4*ks+2}:{f+4*ks+3}], v13 offset:{o+512}""")
            a("s_waitcnt lgkmcnt(0)")
            for ks in range(2):
                a(f"v_mfma_f32_16x16x32_bf16 {vr(d,4)}, {vr(32+4*ks,4)}, {vr(f+4*ks,4)}, {'0' if ks == 0 else vr(d,4)}")
    a(f"""s_lshl_b32 s36, s33, 10
    s_add_u32 s36, s36, {WS_P1}
    s_nop 5""")
    for m in range(2):
        for tk in range(2):
            sel_by_g(a, 96 + m * 2 + tk, 64 + m * 16 + tk, 4, False)
    for j in range(4):
        a(f"v_and_or_b32 v{96+j}, v{96+j}, v21, s{52+j}")
    a(f"""buffer_store_dwordx4 v[96:99], v10, s[24:27], s36 offen sc1
    s_mul_i32 s36, s34, 10240
    s_add_u32 s36, s36, {WS_P1}
    s_add_u32 s37, s36, 4096
    s_add_u32 s38, s36, 8192
    s_mov_b32 s50, {SPIN}
    s_waitcnt lgkmcnt(0)""")
    stamp(a, 5)
    a("s_barrier")
    stamp(a, 6)
    a("L_f_p1:")
    for i in range(10):
        a(f"buffer_load_dwordx4 {vr(32+4*i,4)}, v10, s[24:27], s{36+i//4} offen offset:{(i%4)*1024} sc1")
    a("v_mov_b32 v9, 0")
    for i in range(10):
        a(f"s_waitcnt vmcnt({9-i})")
        for j in range(4):
            a(f"v_xor_b32 v{32+4*i+j}, s{52+j}, v{32+4*i+j}")
        a(f"v_or3_b32 v9, v9, v{32+4*i}, v{33+4*i}\nv_or3_b32 v9, v9, v{34+4*i}, v{35+4*i}")
    a("""v_and_b32 v9, 0xff, v9
    s_sub_u32 s50, s50, 1
    v_cmp_ne_u32 vcc, 0, v9
    s_cbranch_scc1 L_f_p1o
    s_cbranch_vccnz L_f_p1
    L_f_p1o:""")
    stamp(a, 7)
    for i in range(1, 10):
        for j in (0, 2):
            a(f"v_pk_add_f32 {vr(32+j,2)}, {vr(32+j,2)}, {vr(32+4*i+j,2)}")
    for tk in range(2):
        sigmoid(a, 14 + tk, f"v{32+tk}")
        a(f"v_mul_f32 v{14+tk}, v{14+tk}, v{32+tk}\nv_mul_f32 v{14+tk}, v{14+tk}, v{34+tk}")
    a(f"""v_cvt_pk_bf16_f32 v14, v14, v15
    v_lshl_add_u32 v6, v1, 1, v30
    ds_write_b16 v6, v14 offset:256
    ds_write_b16_d16_hi v6, v14 offset:384
    v_and_b32 v7, 1, v1
    v_lshl_add_u32 v7, v7, 7, v30
    v_lshl_add_u32 v7, v4, 4, v7
    s_waitcnt lgkmcnt(0)
    ds_read_b128 v[32:35], v7 offset:256
    ds_read_b128 v[36:39], v7 offset:320
    s_waitcnt lgkmcnt(0)""")
    for t in range(4):
        d = 64 + t * 4
        for ks in range(2):
            a(f"v_mfma_f32_16x16x32_bf16 {vr(d,4)}, {vr(32+4*ks,4)}, {vr(128+t*8+4*ks,4)}, {'0' if ks == 0 else vr(d,4)}")
    a(f"""s_lshl_b32 s36, s33, 10
    s_add_u32 s36, s36, {WS_P2}
    s_nop 5""")
    for tk in range(2):
        sel_by_g(a, 96 + tk * 2, 64 + tk, 4)
    a("buffer_store_dwordx4 v[96:99], v10, s[24:27], s36 offen sc1")
    stamp(a, 8)
    a("L_f_gather:")
    a(f"""s_and_b32 s36, s{LOC}, 3
    s_lshl_b32 s36, s36, 5
    s_lshl_b32 s37, s{XCD}, 8
    s_add_u32 s36, s36, s37
    s_xor_b32 s42, s42, s36
    s_xor_b32 s43, s43, s36
    s_and_b32 s42, s42, 0x760
    s_and_b32 s43, s43, 0x760
    s_min_u32 s36, s42, s43
    s_cmp_lg_u32 s36, 0
    s_cbranch_scc1 L_f_end
    s_setprio {OPT['gprio']}
    s_lshr_b32 s32, s{LOC}, 2
    s_mul_i32 s40, s32, 1280
    s_add_u32 s40, s40, {WS_P2}
    s_andn2_b32 s36, s40, 1023
    v_min_u32 v5, 47, v1
    v_lshrrev_b32 v6, 1, v5
    v_mul_u32_u24 v6, 10240, v6
    v_and_b32 v5, 1, v5
    v_lshl_add_u32 v5, v5, 10, v6
    v_and_b32 v7, 15, v1
    v_mul_u32_u24 v11, 10240, v4
    v_lshl_add_u32 v11, v7, 4, v11
    v_lshl_add_u32 v12, v1, 2, v30
    v_lshl_add_u32 v13, v7, 2, v30
    s_mov_b32 s41, 0""")
    lds_wait(a, 4, 2)
    poll(a, "buffer_load_dword v6, v5, s[24:27], s36 offen offset:4 sc1", [6])
    stamp(a, 9)
    a("""L_f_tok:
    s_cmp_lg_u32 s42, 0
    s_cbranch_scc1 L_f_next""")
    ld = "s_mov_b32 s37, s40\n" + "\n".join(f"buffer_load_dwordx2 {vr(32+2*i,2)}, v10, s[24:27], s37 offen sc1\n" +
        (f"buffer_load_dwordx2 {vr(80+2*(i//4),2)}, v11, s[24:27], s37 offen offset:1024 sc1\n" if i % 4 == 0 else "") + "s_add_u32 s37, s37, 10240" for i in range(24))
    poll(a, ld, [33 + 2 * i for i in range(30)])
    for i in range(1, 24):
        a(f"v_add_f32 v32, v32, v{32+2*i}")
    for i in range(1, 6):
        a(f"v_add_f32 v80, v80, v{80+2*i}")
    sigmoid(a, 14, "v18")
    a(f"""v_mov_b32 v81, v80
    v_mul_f32 v32, v32, v14
    s_nop 0
    v_permlane32_swap_b32 v80, v81
    v_add_f32 v80, v80, v81
    v_mov_b32 v81, v80
    ds_write_b32 v12, v32 offset:{L_Y-L_MISC}
    s_nop 0
    v_permlane16_swap_b32 v80, v81
    v_add_f32 v80, v80, v81
    v_mul_f32 v80, v80, v14
    ds_write_b32 v13, v80 offset:{L_Y-L_MISC+256}
    L_f_next:
    s_mov_b32 s42, s43
    s_add_u32 s40, s40, 8
    v_mov_b32 v18, v19
    v_add_u32 v12, 320, v12
    v_add_u32 v13, 320, v13
    s_add_u32 s41, s41, 1
    s_cmp_lt_u32 s41, 2
    s_cbranch_scc1 L_f_tok""")
    lds_add(a, O_Y)
    a("s_waitcnt lgkmcnt(0)")
    stamp(a, 10)
    a("L_f_end:\ns_waitcnt lgkmcnt(0)")
    finish(a)


def main(out):
    a = Asm()
    head = f"""; gated mix of sliding-window attention and a top-2 routed FFN: one fused launch (written by a generator script)
; @launch grid=(256,1,1) block=(640,1,1) lds={LDS_BYTES}
.amdgcn_target "amdgcn-amd-amdhsa--gfx950"
.text
"""
    entry(a)
    loader(a)
    compute(a)
    stubs = attention(a)
    outproj(a)
    n0 = len(a.lines)
    helper1(a)
    if OPT["stamp"] == 3:
        body_, out_, k, skip = a.lines[n0:], [], 0, False
        for ln in body_:
            if "s_memrealtime" in ln or "s_memtime" in ln:
                continue
            if "s_cbranch_scc1 L_h_g" in ln: skip = True
            if ln.startswith("L_h_g:"): skip = False
            if ln.strip() == "s_endpgm":
                out_.append("    s_branch L_stampall")
                continue
            out_.append(ln)
            if (ln.strip() == "s_barrier" and not skip) or ("ds_write_b32 v30, v5 offset:4" in ln):
                out_.append(f"    s_memrealtime s[{62+2*k}:{63+2*k}]"); k += 1
        a.lines[n0:] = out_
    ffn(a)
    router_loader(a)
    router(a)
    att_stubs(a, stubs)
    stamp_out(a)
    a("L_exit:\ns_endpgm\nL_code_end:")
    body = a.text().replace("s_mov_b32 s43, 0\n    s_waitcnt lgkmcnt(0)", "s_mov_b32 s43, 0\n    s_movk_i32 s45, 0x4000\n    s_waitcnt lgkmcnt(0)")
    if OPT["al"]:
        body = align_fix(body, [("L_g_loop", "L_g_end"), ("L_att_go", "L_att_fin"), ("L_op_loop", "L_op_end")])
    bad = check_hazards(body)
    tail = f""".section .rodata,"a"
.p2align 6
.amdhsa_kernel {NAME}_kernel
  .amdhsa_next_free_vgpr 168
  .amdhsa_next_free_sgpr 96
  .amdhsa_accum_offset 168
  .amdhsa_group_segment_fixed_size 0
  .amdhsa_kernarg_size 96
  .amdhsa_user_sgpr_count 2
  .amdhsa_user_sgpr_kernarg_segment_ptr 1
  .amdhsa_system_sgpr_workgroup_id_x 1
.end_amdhsa_kernel
"""
    open(out, "w").write(head + body + tail)
    print("written", out, "hazards:", len(bad))


if __name__ == "__main__":
    main(sys.argv[1])
```

```python
import sys, struct
from asmlib import Asm, vr, sr, check_hazards, align_fix

NAME = "gated_mix__sliding_block__moe_arch_mod__prompt"
def f32(x): return "0x%08x" % struct.unpack("<I", struct.pack("<f", x))[0]
LOG2E = 1.4426950408889634
QSCALE = (20 ** -0.5) * LOG2E

OPT = dict(stamp=0, dual=0, pre=0, xnt="", fnt="", rot=1, b11=0, wpf=0, rnt="", worot=2, fprio=3, cearly=1, aprio=2, tlb=0, hdel=5, dly=0, fwm=0, serp=1, xs="0_2", wsn=3, ws="0_2", nowo=0, xsc=0, epx=0, rowmap=1, qloc=1, qat=3, tlb0=0, wod=0, wack=1, qown=1, dbg=0, gprio=3, ones=1, gx=0, lord=0, wfl="", nl0=5, al=1, pf=1, xpf=0, swap=0, prio=1, osc="", forceimp=0, forcefb=0, probe="", pwg=109+512, stl=1, stw=0, nocand=0, pcyc=0)
for _a in sys.argv[2:]:
    k, v = _a.split("=")
    OPT[k] = int(v) if v.lstrip("-").isdigit() else v

WS_L, WS_R = 0, 0x800000
WS_G, WS_CAND, WS_XID, WS_FL, WS_FP, WS_FO = 0x1000000, 0x1010000, 0x1020000, 0x1030000, 0x1040000, 0x1050000
WS_P1, WS_P2, WS_EP, WS_ST, WS_END = 0x1060000, 0x10E0000, 0x1120000, 0x1200000, 0x1300000
WS_FR = 0x1038000
XB = 240 * 4096
CS = 8192 + 64
L_K, L_V = 0, 3 * CS + 64
L_WO = 49664
L_ONES = L_WO + 102400 + 192
L_MISC = L_ONES + 5120 + 64
L_H, L_Y = L_MISC + 256, L_MISC + 512
LDS_BYTES = 163840
L_RW = 49152
L_FW = L_WO + 13 * 5120
L_XT = L_FW + 24576
L_WV = L_FW
M_PURE, M_HALO, M_TOP = L_MISC, L_MISC + 4, L_MISC + 16
O_WO, O_FD, O_ATT, O_Y, O_R, O_B2 = 8, 12, 32, 36, 40, 44
assert L_V % 256 == 0 and L_ONES % 256 == 192 and L_XT + 10240 <= L_WO + 102400 and L_Y + 1920 <= LDS_BYTES
SPIN = 0x8000

WAVE, XCD, LOC, RBL, CT, TAG, PURE = 28, 29, 30, 31, 32, 60, 61
SX, SW, SS, SA, SB = 16, 20, 24, 52, 56


def srd(a, d, p, n):
    a(f"""s_mov_b32 s{d}, s{p}
    s_mov_b32 s{d+1}, s{p+1}
    s_mov_b32 s{d+2}, {n}
    s_mov_b32 s{d+3}, 0x20000""")


def stamp(a, i):
    if OPT["probe"]:
        if str(i) in OPT["probe"].split("_"):
            a(f"{'s_memtime' if OPT['pcyc'] else 's_memrealtime'} s[{62+2*i}:{63+2*i}]\ns_waitcnt lgkmcnt(0)")
        return
    if OPT["stamp"] == 3:
        if i == 0:
            a("s_memrealtime s[94:95]\ns_memtime s[62:63]")
        if i in (4, 8):
            a(f"s_memrealtime s[{62+2*i}:{63+2*i}]\ns_memtime s[{64+2*i}:{65+2*i}]")
        return
    if OPT["stamp"]:
        if i == 0:
            a("s_memrealtime s[94:95]")
            for j in range(1, 15):
                a(f"s_mov_b32 s{62+2*j}, 0")
        a(f"{'s_memtime' if OPT['stamp'] == 1 else 's_memrealtime'} s[{62+2*i}:{63+2*i}]\ns_waitcnt lgkmcnt(0)")


def finish(a, main=False):
    if OPT["stamp"] == 3 and not main:
        a("s_endpgm")
    elif OPT["stamp"]:
        a("s_branch L_stampout")
    else:
        a("s_endpgm")


def stamp_out(a):
    if OPT["stamp"]:
        n = 14
        a(f"""L_stampout:
        s_waitcnt vmcnt(0)
        {'s_memtime' if OPT['stamp'] != 2 else 's_memrealtime'} s[{62+2*n}:{63+2*n}]
        s_memrealtime s[92:93]
        s_waitcnt lgkmcnt(0)
        s_lshl_b32 s3, s2, 4
        s_add_u32 s3, s3, s{WAVE}
        s_lshl_b32 s3, s3, 7
        s_add_u32 s3, s3, {WS_ST}
        s_mov_b64 exec, 1
        v_mov_b32 v0, 0""")
        for i in (range(n + 1) if OPT["stamp"] != 3 else (0, 4, 5, 8, 9, 14)):
            a(f"v_mov_b32 v1, s{62+2*i}\nbuffer_store_dword v1, v0, s[24:27], s3 offen offset:{4*i}")
        for i in range(2, 10 if OPT["stamp"] != 3 else 0):
            a(f"v_readlane_b32 s4, v166, {i}\ns_nop 1\nv_mov_b32 v1, s4\nbuffer_store_dword v1, v0, s[24:27], s3 offen offset:{64+4*(i-2)}")
        a(f"v_mov_b32 v1, s{PURE}\nbuffer_store_dword v1, v0, s[24:27], s3 offen offset:116")
        a("v_mov_b32 v1, s94\nbuffer_store_dword v1, v0, s[24:27], s3 offen offset:120")
        a("v_mov_b32 v1, s92\nbuffer_store_dword v1, v0, s[24:27], s3 offen offset:124")
        a("s_endpgm")
        if OPT["stamp"] == 3:
            a(f"""L_stampall:
            s_memrealtime s[88:89]""")
            lds_wait(a, O_ATT, 8)
            a(f"""s_lshl_b32 s3, s2, 4
            s_add_u32 s3, s3, s{WAVE}
            s_lshl_b32 s3, s3, 7
            s_add_u32 s3, s3, {WS_ST}
            v_mov_b32 v2, 0""")
            for i in range(14):
                a(f"v_writelane_b32 v2, s{62+2*i}, {i}")
            a("""v_writelane_b32 v2, s94, 30
            v_lshlrev_b32 v3, 2, v1
            s_mov_b64 exec, 0xffffffff
            buffer_store_dword v2, v3, s[24:27], s3 offen
            s_endpgm""")


def wave_max_u32(a, v, sdst):
    for m in ("row_shr:1 row_mask:0xf bank_mask:0xf bound_ctrl:1", "row_shr:2 row_mask:0xf bank_mask:0xf bound_ctrl:1",
              "row_shr:4 row_mask:0xf bank_mask:0xf bound_ctrl:1", "row_shr:8 row_mask:0xf bank_mask:0xf bound_ctrl:1",
              "row_bcast:15 row_mask:0xa bank_mask:0xf", "row_bcast:31 row_mask:0xc bank_mask:0xf"):
        a(f"s_nop 1\nv_max_u32_dpp v{v}, v{v}, v{v} {m}")
    a(f"s_nop 0\nv_readlane_b32 s{sdst}, v{v}, 63")


def top2(a, k1, k2, t, s1, s2, sm):
    a(f"v_max_u32 v{t}, v{k1}, v{k2}")
    wave_max_u32(a, t, s1)
    a(f"""s_nop 1
    v_cmp_ne_u32 s[{sm}:{sm+1}], s{s1}, v{k1}
    s_nop 1
    v_cndmask_b32_e64 v{k1}, 0, v{k1}, s[{sm}:{sm+1}]
    v_cmp_ne_u32 s[{sm}:{sm+1}], s{s1}, v{k2}
    s_nop 1
    v_cndmask_b32_e64 v{k2}, 0, v{k2}, s[{sm}:{sm+1}]
    v_max_u32 v{t}, v{k1}, v{k2}""")
    wave_max_u32(a, t, s2)


def key_decode(a, sk, stok, sval, st):
    a(f"""s_and_b32 s{stok}, s{sk}, 0xffff
    s_sub_u32 s{stok}, 0xffff, s{stok}
    s_and_b32 s{stok}, s{stok}, 0x7ff
    s_ashr_i32 s{st}, s{sk}, 31
    s_not_b32 s{st}, s{st}
    s_or_b32 s{st}, s{st}, 0x80000000
    s_xor_b32 s{sval}, s{sk}, s{st}
    s_and_b32 s{sval}, s{sval}, 0xffff0000""")


def sigmoid(a, d, s):
    a(f"""v_mul_f32 v{d}, {f32(-LOG2E)}, {s}
    v_exp_f32 v{d}, v{d}
    s_nop 0
    v_add_f32 v{d}, 1.0, v{d}
    v_rcp_f32 v{d}, v{d}
    s_nop 0""")


def epoch_load(a):
    a(f"""s_add_u32 s14, s12, {WS_EP}
    s_addc_u32 s15, s13, 0
    s_load_dword s{TAG}, s[14:15], 0""")


def epoch_fin(a):
    a(f"s_waitcnt lgkmcnt(0)\ns_add_u32 s{TAG}, s{TAG}, 0x9e3779b9")


_uid = [0]
_site = [0]
def uid(p):
    _uid[0] += 1
    return f"L_{p}{_uid[0]}"


def poll(a, load, tagregs, mask=None, tmp=9, pre=False):
    lp, out = uid("poll"), uid("pout")
    a(f"s_mov_b32 s50, {SPIN}")
    if pre:
        a(f"s_branch {lp}p")
    a(f"{lp}:")
    a(load)
    if pre:
        a(f"{lp}p:")
    a(f"""s_sub_u32 s50, s50, 1
    s_cbranch_scc1 {out}
    s_waitcnt vmcnt(0)""")
    if len(tagregs) == 1:
        a(f"v_cmp_ne_u32 vcc, s{TAG}, v{tagregs[0]}")
    else:
        a(f"v_xor_b32 v{tmp}, s{TAG}, v{tagregs[0]}")
        for r in tagregs[1:]:
            a(f"v_bitop3_b32 v{tmp}, v{tmp}, v{r}, s{TAG} bitop3:0xf6")
        a(f"v_cmp_ne_u32 vcc, 0, v{tmp}")
    if mask:
        a(f"s_and_b64 vcc, vcc, {mask}")
    if OPT["dbg"]:
        _site[0] += 1
        print("site", _site[0], load.split("\n")[-1][:70])
        a(f"""s_cbranch_vccnz {lp}
        s_branch {out}x
        {out}:
        s_waitcnt vmcnt(0)
        s_lshl_b32 s50, s2, 4
        s_add_u32 s50, s50, {_site[0]}
        s_lshl_b32 s50, s50, 8
        s_add_u32 s50, s50, {WS_ST}
        v_lshlrev_b32 v164, 2, v1
        v_xor_b32 v165, s{TAG}, v{tagregs[0]}
        v_or_b32 v165, 0x80000000, v165
        buffer_store_dword v165, v164, s[24:27], s50 offen
        {out}x:
        s_waitcnt vmcnt(0)""")
        return
    a(f"s_cbranch_vccnz {lp}\n{out}:\ns_waitcnt vmcnt(0)")


def spoll(a, loads, pairs):
    lp, out = uid("sp"), uid("so")
    a(f"s_mov_b32 s50, {SPIN}\n{lp}:")
    a(loads)
    a(f"""s_waitcnt lgkmcnt(0)
    s_sub_u32 s50, s50, 1
    s_cbranch_scc1 {out}
    s_xor_b64 s[36:37], s[{pairs[0]}:{pairs[0]+1}], s[38:39]""")
    for p in pairs[1:]:
        a(f"""s_xor_b64 s[{p}:{p+1}], s[{p}:{p+1}], s[38:39]
        s_or_b64 s[36:37], s[36:37], s[{p}:{p+1}]""")
    a(f"s_cbranch_scc1 {lp}\n{out}:")


def lds_wait(a, off, val, vt=9, pre=False):
    lp, out = uid("lw"), uid("lo")
    a(f"s_mov_b32 s50, {SPIN*8}")
    if pre:
        a(f"s_branch {lp}p")
    a(f"""{lp}:
    ds_read_b32 v{vt}, v30 offset:{off}""")
    if pre:
        a(f"{lp}p:")
    a(f"""s_sub_u32 s50, s50, 1
    s_cbranch_scc1 {out}
    s_waitcnt lgkmcnt(0)
    v_cmp_gt_u32 vcc, {val}, v{vt}
    s_cbranch_vccnz {lp}
    {out}:""")


def lds_add(a, off, vt=9):
    a(f"""v_mov_b32 v{vt}, 1
    s_mov_b64 exec, 1
    ds_add_u32 v30, v{vt} offset:{off}
    s_mov_b64 exec, -1""")


def flag_store(a, soff, local, vt=8):
    a(f"""v_mov_b32 v{vt}, s{TAG}
    v_mov_b32 v{vt+1}, 0
    s_mov_b64 exec, 1""")
    if local:
        l1, l2 = uid("fs"), uid("fe")
        a(f"""s_cmp_eq_u32 s{PURE}, 0
        s_cbranch_scc1 {l1}
        buffer_store_dword v{vt}, v{vt+1}, s[24:27], s{soff} offen
        s_branch {l2}
        {l1}:
        buffer_store_dword v{vt}, v{vt+1}, s[24:27], s{soff} offen sc1
        {l2}:""")
    else:
        a(f"buffer_store_dword v{vt}, v{vt+1}, s[24:27], s{soff} offen sc1")
    a("s_mov_b64 exec, -1")


def two_flavours(a, body):
    l1, l2 = uid("imp"), uid("ime")
    a(f"s_cmp_eq_u32 s{PURE}, 0\ns_cbranch_scc1 {l1}")
    body("")
    a(f"s_branch {l2}\n{l1}:")
    body("sc1")
    a(f"{l2}:")


def router_loader(a):
    a("""L_rld:
    s_load_dwordx2 s[8:9], s[0:1], 16
    s_add_u32 s41, s40, 98304
    s_branch L_rld_issue
    L_rld_loop:
    s_waitcnt vmcnt(12) lgkmcnt(0)
    s_barrier
    L_rld_issue:
    s_lshl_b32 s36, s33, 7
    s_add_u32 s36, s36, s34""")
    for n in range(4):
        a(f"""s_add_u32 m0, s40, {n*4096}
        s_add_u32 s38, s36, {n*40960}
        buffer_load_dwordx4 v10, s[16:19], s38 offen {OPT['rnt']} lds""")
    kc_next(a, 33)
    a("""s_add_u32 s40, s40, 16384
    s_cmp_eq_u32 s40, s41
    s_cselect_b32 s36, 98304, 0
    s_sub_u32 s40, s40, s36
    s_add_u32 s42, s42, 1
    s_cmp_lt_u32 s42, 4
    s_cbranch_scc1 L_rld_issue
    s_cmp_lt_u32 s42, 10
    s_cbranch_scc1 L_rld_loop""")
    srd(a, SS, 12, WS_END)
    srd(a, SW, 8, 819200)
    a(f"""s_add_u32 s{TAG}, s{TAG}, 0x9e3779b9
    v_mov_b32 v30, {M_PURE}""")
    for n in (12, 8, 4, 0):
        a(f"s_waitcnt vmcnt({n})\ns_barrier")
    if OPT["wpf"]:
        N = OPT["wpf"]
        lds_wait(a, O_R, 4)
        a(f"""v_lshlrev_b32 v5, 7, v1
        s_lshl_b32 s36, s{RBL}, 2
        s_add_u32 s36, s36, s{WAVE}
        s_sub_u32 s36, s36, 4
        s_lshl_b32 s36, s36, 13
        s_cmp_ge_u32 s{XCD}, {N}
        s_cselect_b32 s37, 0, s{XCD}
        s_mov_b32 s42, 0
        L_wpf:
        s_lshl_b32 s38, s37, 16
        s_add_u32 s38, s38, s36
        buffer_load_dword v167, v5, s[20:23], s38 offen
        s_add_u32 s37, s37, 1
        s_cmp_eq_u32 s37, {N}
        s_cselect_b32 s37, 0, s37
        s_add_u32 s42, s42, 1
        s_cmp_lt_u32 s42, {N}
        s_cbranch_scc1 L_wpf""")
    a("s_branch L_att_setup")


def kc_init(a):
    def nib(o):
        v = sum(x << (4 * i) for i, x in enumerate(o))
        return v & 0xffffffff, v >> 32
    n0, n1, n2 = nib(range(10)), nib([1, 0, 3, 2, 5, 4, 7, 6, 9, 8]), nib([0, 2, 1, 4, 3, 6, 5, 8, 7, 9])
    a(f"s_mov_b32 s46, {n0[0]:#x}\ns_movk_i32 s47, {n0[1]:#x}")
    if OPT["swap"]:
        a(f"""s_and_b32 s36, s{LOC}, {3 if OPT["swap"] == 1 else 1}
        s_cmp_eq_u32 s36, 1
        s_cselect_b32 s46, {n1[0]:#x}, s46
        s_cselect_b32 s47, {n1[1]:#x}, s47
        s_cmp_eq_u32 s36, 3
        s_cselect_b32 s46, {n2[0]:#x}, s46
        s_cselect_b32 s47, {n2[1]:#x}, s47""")
    n3 = nib([2, 3, 4, 5, 6, 7, 8, 9, 0, 1])
    a(f"""s_cmp_eq_u32 s{CT}, 15
    s_cselect_b32 s46, {n3[0]:#x}, s46
    s_cselect_b32 s47, {n3[1]:#x}, s47""")


def kc_next(a, d):
    a(f"""s_and_b32 s{d}, s46, 15
    s_lshr_b64 s[46:47], s[46:47], 4""")
    if OPT["rot"]:
        a(f"""s_add_u32 s{d}, s{d}, s{XCD}
        s_sub_u32 s36, s{d}, 10
        s_cselect_b32 s{d}, s{d}, s36""")


def entry(a):
    a(f""".globl {NAME}_kernel
    .p2align 8
    .type {NAME}_kernel,@function
    {NAME}_kernel:""")
    a("""s_cmp_ge_u32 s2, 256
    s_cbranch_scc1 L_exit""")
    stamp(a, 0)
    a(f"""s_load_dwordx4 s[4:7], s[0:1], 0
    s_load_dwordx2 s[12:13], s[0:1], 88
    v_lshrrev_b32 v2, 6, v0
    v_and_b32 v1, 63, v0
    v_readfirstlane_b32 s{WAVE}, v2
    s_and_b32 s{XCD}, s2, 7
    s_lshr_b32 s{LOC}, s2, 3
    s_and_b32 s{RBL}, s{LOC}, 1
    s_lshr_b32 s{CT}, s{LOC}, 1
    v_lshrrev_b32 v4, 4, v1""")
    if OPT["pf"]:
        a(f"""s_cmp_lg_u32 s{WAVE}, 0
        s_cbranch_scc1 L_nopf
        s_getpc_b64 s[36:37]
        L_pc:
        s_and_b32 s38, s{LOC}, 3
        s_mul_i32 s38, s38, 5120
        v_min_u32 v5, 39, v1
        v_lshl_add_u32 v5, v5, 7, s38
        v_min_u32 v5, L_code_end-L_pc-4, v5
        global_load_dword v167, v5, s[36:37]
        L_nopf:""")
    a(f"""s_cmp_lt_u32 s{WAVE}, 4
    s_cbranch_scc1 L_compute
    s_cmp_ge_u32 s{WAVE}, 8
    s_cbranch_scc1 L_help""")


def loader(a):
    a(f"""v_and_b32 v2, 3, v2
    v_lshrrev_b32 v3, 3, v1
    v_lshl_add_u32 v3, v2, 3, v3
    v_mul_u32_u24 v3, 1280, v3
    v_lshl_add_u32 v5, v2, 2, v4
    v_xor_b32 v6, v5, v1
    v_and_b32 v6, 7, v6
    v_lshl_add_u32 v10, v6, 4, v3
    v_mul_u32_u24 v5, 3840, v5
    v_lshrrev_b32 v6, 1, v2
    v_lshl_add_u32 v6, v6, 2, v4
    v_lshlrev_b32 v6, 1, v6
    v_xor_b32 v6, v6, v1
    v_and_b32 v6, 15, v6
    v_lshl_add_u32 v11, v6, 4, v5
    s_lshl_b32 s34, s{XCD}, 1
    s_add_u32 s34, s34, s{RBL}
    s_mul_i32 s34, s34, 128*1280
    s_lshl_b32 s35, s{CT}, 8
    s_and_b32 s40, s{WAVE}, 3
    s_lshl_b32 s40, s40, 10
    s_add_u32 s41, s40, 49152
    s_mov_b32 s42, 0
    s_mov_b32 s18, 2621440
    s_mov_b32 s19, 0x20000
    s_mov_b32 s22, 2457600
    s_mov_b32 s23, 0x20000""")
    kc_init(a)
    kc_next(a, 33)
    if OPT["xpf"]:
        a(f"""v_lshrrev_b32 v5, 3, v1
        s_lshl_b32 s36, s{CT}, 3
        v_add_u32 v5, s36, v5
        v_mul_u32_u24 v5, 1280, v5
        v_and_b32 v6, 7, v1
        v_add3_u32 v6, v6, {"s%d" % XCD if OPT["rot"] else 0}, 2
        v_subrev_u32 v7, 10, v6
        v_min_u32 v6, v6, v7
        v_lshl_add_u32 v12, v6, 7, v5""")
    a("""s_waitcnt lgkmcnt(0)
    s_mov_b32 s16, s4
    s_mov_b32 s17, s5
    s_mov_b32 s20, s6
    s_mov_b32 s21, s7""")
    epoch_load(a)
    stamp(a, 1)
    if OPT["dly"]:
        a(f"s_bitcmp1_b32 s{CT}, 0\ns_cbranch_scc0 L_nd\ns_sleep {OPT['dly']}\nL_nd:")
    a(f"""s_cmp_eq_u32 s{CT}, 15
    s_cbranch_scc1 L_rld
    s_branch L_ld_issue
    L_ld_loop:
    s_waitcnt vmcnt(8) lgkmcnt(0)
    s_barrier""")
    if OPT["stamp"] in (1, 2):
        a("""s_memrealtime s[44:45]
        s_waitcnt lgkmcnt(0)
        s_mov_b32 m0, s42
        s_nop 0
        v_writelane_b32 v166, s44, m0""")
    a(f"""L_ld_issue:
    s_lshl_b32 s36, s33, 7
    s_add_u32 s36, s36, s34
    {"s_and_b32 s33, s33, 1" if OPT["gx"] == 1 else ""}
    s_mul_i32 s37, s33, 245760
    s_add_u32 s37, s37, s35""")
    lx = [f"""s_add_u32 m0, s40, {n*4096}
        s_add_u32 s38, s36, {n*40960}
        buffer_load_dwordx4 v10, s[16:19], s38 offen {OPT['xnt']} lds""" for n in range(4)]
    lw = [f"""s_add_u32 m0, s40, {L_RW+n*4096}
        s_add_u32 s39, s37, {n*61440}
        buffer_load_dwordx4 v11, s[20:23], s39 offen {OPT['wfl']} lds""" for n in range(4)]
    for l in {0: [x for p in zip(lx, lw) for x in p], 1: lw + lx, 2: lx + lw}[OPT["lord"]]:
        a(l)
    kc_next(a, 33)
    if OPT["xpf"]:
        a(f"""s_add_u32 s36, s42, s{WAVE}
        s_cmp_lg_u32 s36, 4
        s_cbranch_scc1 L_noxpf
        buffer_load_dword v167, v12, s[16:19], s34 offen {OPT['xnt']}
        L_noxpf:""")
    a("""s_add_u32 s40, s40, 16384
    s_cmp_eq_u32 s40, s41
    s_cselect_b32 s36, 49152, 0
    s_sub_u32 s40, s40, s36
    s_add_u32 s42, s42, 1
    s_cmp_lt_u32 s42, 2
    s_cbranch_scc1 L_ld_issue
    s_cmp_lt_u32 s42, 10
    s_cbranch_scc1 L_ld_loop""")
    srd(a, SS, 12, WS_END)
    a(f"s_add_u32 s{TAG}, s{TAG}, 0x9e3779b9")
    pre = 0
    a(f"""s_waitcnt vmcnt({8+pre})
    s_barrier""")
    stamp(a, 2)
    a(f"""s_waitcnt vmcnt({pre})
    s_barrier""")
    stamp(a, 3)
    a("s_branch L_att_setup")


ACC, F0, F1 = 32, 96, 128
def compute(a):
    a("L_compute:")
    if (OPT["qloc"] and OPT["qat"] == -1) or OPT["tlb0"]:
        a(f"""s_mul_i32 s36, s{XCD}, {XB}
        s_mov_b32 s26, {WS_END}
        s_mov_b32 s27, 0x20000""")
        if OPT["qloc"] and OPT["qat"] == -1:
            a(f"""s_lshl_b32 s37, s{LOC}, 2
            s_add_u32 s37, s37, s{WAVE}
            s_mul_i32 s37, s37, 2560
            s_add_u32 s37, s37, s36
            v_min_u32 v5, 19, v1
            v_lshlrev_b32 v5, 7, v5""")
        if OPT["tlb0"]:
            a(f"""s_sub_u32 s38, s36, {XB}
            s_max_i32 s38, s38, 0
            v_min_u32 v6, 2, v1
            v_mul_u32_u24 v6, {XB-64}, v6""")
        a("""s_waitcnt lgkmcnt(0)
        s_mov_b32 s24, s12
        s_mov_b32 s25, s13""")
        if OPT["qloc"] and OPT["qat"] == -1:
            a("buffer_load_dword v167, v5, s[24:27], s37 offen sc1")
        if OPT["tlb0"]:
            a(f"""s_cmp_lg_u32 s{WAVE}, 1
            s_cbranch_scc1 L_not0
            buffer_load_dword v167, v6, s[24:27], s38 offen sc1
            L_not0:""")
    a(f"""v_and_b32 v3, 15, v1
    s_and_b32 s36, s{WAVE}, 1          ; wc
    s_lshr_b32 s37, s{WAVE}, 1         ; wt
    s_lshl_b32 s38, s37, 13
    s_lshl_b32 s39, s{WAVE}, 12
    s_cmp_eq_u32 s{CT}, 15
    s_cselect_b32 s38, s39, s38
    v_lshrrev_b32 v5, 1, v3
    v_xor_b32 v5, v5, v4
    v_lshlrev_b32 v5, 4, v5
    v_lshl_add_u32 v12, v3, 7, v5
    v_add_u32 v12, s38, v12
    v_xor_b32 v13, 64, v12
    v_bfe_u32 v5, v1, 2, 2             ; r
    v_lshl_add_u32 v6, v4, 3, v5
    v_lshlrev_b32 v6, 8, v6
    v_and_b32 v7, 1, v4
    v_lshl_add_u32 v5, v7, 2, v5
    v_lshlrev_b32 v5, 1, v5            ; f(row)
    v_and_b32 v7, 3, v1
    s_lshl_b32 s39, s36, 3
    v_add_u32 v7, s39, v7
    v_xor_b32 v5, v5, v7
    v_lshl_add_u32 v6, v5, 4, v6
    v_bfe_u32 v5, v1, 1, 1
    v_lshl_add_u32 v6, v5, 3, v6
    v_add_u32 v14, {L_RW}, v6
    v_xor_b32 v15, 8, v14
    v_xor_b32 v16, 64, v14
    v_xor_b32 v17, 0x48, v14
    v_lshlrev_b32 v18, 4, v3
    v_lshl_add_u32 v18, v4, 12, v18
    v_mov_b32 v19, {M_PURE}
    s_mul_i32 s34, s{XCD}, {XB}
    s_lshl_b32 s39, s{CT}, 16
    s_add_u32 s34, s34, s39
    s_lshl_b32 s39, s36, 15
    s_add_u32 s34, s34, s39
    s_lshl_b32 s39, s{RBL}, 11
    s_add_u32 s34, s34, s39
    s_lshl_b32 s39, s37, 10
    s_add_u32 s34, s34, s39
    s_add_u32 s35, s34, 16384
    s_mov_b32 s42, 0
    s_mov_b32 s43, 0
    s_waitcnt lgkmcnt(0)""")
    epoch_load(a)
    srd(a, SS, 12, WS_END)
    for i in range(64):
        a(f"v_mov_b32 v{ACC+i}, 0")
    epoch_fin(a)
    stamp(a, 1)
    a(f"s_cmp_eq_u32 s{CT}, 15\ns_cbranch_scc1 L_router")

    def reads(ks, F):
        r = []
        def A(j):
            r.append(f"ds_read_b64_tr_b16 v[{F+4*j}:{F+4*j+1}], v{14+j} offset:{ks*8192}")
            r.append(f"ds_read_b64_tr_b16 v[{F+4*j+2}:{F+4*j+3}], v{14+j} offset:{ks*8192+1024}")
        A(0)
        for t in range(4):
            r.append(f"ds_read_b128 {vr(F+16+4*t,4)}, v{12+ks} offset:{t*2048}")
        A(1); A(2); A(3)
        return r

    def phase(F, rd, bar, extra):
        a("s_waitcnt lgkmcnt(6)")
        n = 0
        for j in range(4):
            if j == 1:
                a("s_waitcnt lgkmcnt(0)")
                if bar:
                    a("s_cbranch_scc0 L_g_nb\ns_barrier\nL_g_nb:")
            for t in (range(4) if not (OPT["serp"] and j & 1) else range(3, -1, -1)):
                d = ACC + (j * 4 + t) * 4
                a(f"v_mfma_f32_16x16x32_bf16 {vr(d,4)}, {vr(F+4*j,4)}, {vr(F+16+4*t,4)}, {vr(d,4)}")
                if j == 0:
                    a(extra[t])
                else:
                    a(rd[n]); n += 1

    a("s_barrier")
    stamp(a, 2)
    for l in reads(0, F0):
        a(l)
    a("L_g_loop:")
    phase(F0, reads(1, F1), False, ["""s_add_u32 s43, s43, 1
        s_cmp_eq_u32 s43, 3""", "s_cselect_b32 s44, -32768, 16384" if False else """s_cselect_b32 s44, 0xffff8000, s45
        """, "s_cselect_b32 s43, 0, s43\ns_add_u32 s42, s42, 1", ""])
    phase(F1, reads(0, F0), True, ["v_add_u32 v12, s44, v12\nv_add_u32 v13, s44, v13", "v_add_u32 v14, s44, v14\nv_add_u32 v15, s44, v15",
                                   "v_add_u32 v16, s44, v16\nv_add_u32 v17, s44, v17", "s_cmp_lt_u32 s42, 10"])
    a("s_cbranch_scc1 L_g_loop\nL_g_end:")
    stamp(a, 3)
    a("ds_read_b32 v20, v19")

    def epi(scale, sc="sc1"):
        for p in range(2):
            for t in range(4):
                o = F1 + (p * 4 + t) * 4
                for h in range(2):
                    d = ACC + ((2 * p + h) * 4 + t) * 4
                    if scale:
                        a(f"v_pk_mul_f32 {vr(d,2)}, {vr(d,2)}, s[38:39]\nv_pk_mul_f32 {vr(d+2,2)}, {vr(d+2,2)}, s[38:39]")
                    a(f"v_cvt_pk_bf16_f32 v{o+2*h}, v{d}, v{d+1}\nv_cvt_pk_bf16_f32 v{o+2*h+1}, v{d+2}, v{d+3}")
                a(f"buffer_store_dwordx4 {vr(o,4)}, v18, s[24:27], s{34+p} offen offset:{t*256} {sc}")
    a(f"""s_cmp_ge_u32 s{CT}, 5
    s_cbranch_scc1 L_noscale
    s_mov_b32 s38, {f32(QSCALE)}
    s_mov_b32 s39, s38""")
    if OPT["qloc"]:
        a(f"""s_waitcnt lgkmcnt(0)
        v_cmp_eq_u32 vcc, 0, v20
        s_cbranch_vccnz L_q_far""")
        epi(True, "")
        a("s_branch L_pubflag\nL_q_far:")
        for i in range(0, 64, 2):
            a(f"v_pk_mul_f32 {vr(ACC+i,2)}, {vr(ACC+i,2)}, s[38:39]")
        a("L_noscale:")
    else:
        epi(True)
        a("s_branch L_pubflag\nL_noscale:")
    epi(False)
    a(f"""L_pubflag:
    s_lshl_b32 s36, s{XCD}, 4
    s_add_u32 s36, s36, s{CT}
    s_lshl_b32 s36, s36, 1
    s_and_b32 s37, s{WAVE}, 1
    s_add_u32 s36, s36, s37
    s_lshl_b32 s40, s36, 7
    s_lshl_b32 s36, s36, 4
    s_lshl_b32 s37, s{RBL}, 3
    s_and_b32 s38, s{WAVE}, 2
    s_lshl_b32 s38, s38, 1
    s_add_u32 s37, s37, s38
    s_add_u32 s36, s36, s37
    s_add_u32 s36, s36, {WS_FL}
    s_add_u32 s40, s40, s37
    s_add_u32 s40, s40, {WS_FR}
    s_waitcnt lgkmcnt(0)
    v_readfirstlane_b32 s{PURE}, v20
    s_waitcnt vmcnt(0)""")
    stamp(a, 4)
    flag_store(a, 36, True)
    a(f"""s_mov_b64 exec, 1
    v_mov_b32 v7, 1
    s_cmp_lt_u32 s{CT}, 5
    s_cbranch_scc1 L_norf
    buffer_store_dword v8, v9, s[24:27], s40 offen sc1
    L_norf:
    ds_add_u32 v19, v7 offset:{O_R}
    s_mov_b64 exec, -1""")


def router(a):
    a("L_router:")
    kc_init(a)
    kc_next(a, 33)
    a(f"""v_and_b32 v5, 1, v1
    v_lshlrev_b32 v5, 11, v5
    v_lshl_add_u32 v14, v4, 4, v5
    v_add_u32 v14, {L_WV}, v14
    L_r_loop:
    s_barrier
    s_lshl_b32 s36, s33, 7
    v_add_u32 v15, s36, v14""")
    for ks in range(2):
        a(f"""ds_read_b128 {vr(F0+12*ks,4)}, v15 offset:{ks*64}
        ds_read_b128 {vr(F0+12*ks+4,4)}, v{12+ks}
        ds_read_b128 {vr(F0+12*ks+8,4)}, v{12+ks} offset:2048""")
    kc_next(a, 33)
    a("""s_add_u32 s43, s43, 1
    s_cmp_eq_u32 s43, 6
    s_cselect_b32 s44, 0xfffec000, s45
    s_cselect_b32 s43, 0, s43
    v_add_u32 v12, s44, v12
    v_add_u32 v13, s44, v13
    s_waitcnt lgkmcnt(0)""")
    for ks in range(2):
        for t in range(2):
            a(f"v_mfma_f32_16x16x32_bf16 {vr(ACC+4*t,4)}, {vr(F0+12*ks,4)}, {vr(F0+12*ks+4+4*t,4)}, {vr(ACC+4*t,4)}")
    a(f"""s_add_u32 s42, s42, 1
    s_cmp_lt_u32 s42, 10
    s_cbranch_scc1 L_r_loop
    s_nop 1
    s_lshl_b32 s36, s{XCD}, 8
    s_lshl_b32 s37, s{RBL}, 7
    s_add_u32 s36, s36, s37
    s_lshl_b32 s37, s{WAVE}, 5
    s_add_u32 s36, s36, s37
    s_mov_b32 s37, {WS_G}""")
    stamp(a, 3)
    for t in range(2):
        a(f"""v_add3_u32 v20, s36, v3, {16*t}
        v_cvt_pk_bf16_f32 v{21+t}, v{ACC+4*t}, v{ACC+4*t+1}
        v_and_b32 v23, 0xffff0000, v{21+t}
        v_lshlrev_b32 v{21+t}, 16, v{21+t}""")
        sigmoid(a, 23, "v23")
        a(f"""v_cvt_pk_bf16_f32 v23, v23, v23
        v_and_b32 v{26+t}, 0xffff0000, v23
        v_lshlrev_b32 v24, 2, v20
        s_mov_b64 exec, 0xffff
        buffer_store_dword v{26+t}, v24, s[24:27], s37 offen sc1
        s_mov_b64 exec, -1
        v_ashrrev_i32 v24, 31, v{21+t}
        v_or_b32 v24, 0x80000000, v24
        v_xor_b32 v{21+t}, v{21+t}, v24
        v_and_b32 v{21+t}, 0xffff0000, v{21+t}
        v_sub_u32 v24, 0xffff, v20
        v_or_b32 v{21+t}, v{21+t}, v24""")
    top2(a, 21, 22, 25, 46, 47, 48)
    a(f"""s_lshr_b32 s36, s36, 1
    s_add_u32 s36, s36, {WS_CAND}
    v_mov_b32 v28, s46
    v_mov_b32 v29, s{TAG}
    v_mov_b32 v30, s47
    v_mov_b32 v31, s{TAG}
    v_mov_b32 v24, 0
    s_mov_b64 exec, 1
    buffer_store_dwordx4 v[28:31], v24, s[24:27], s36 offen sc1
    s_lshl_b32 s36, s{XCD}, 5
    s_add_u32 s36, s36, s{LOC}
    s_lshl_b32 s36, s36, 2
    s_add_u32 s36, s36, s{WAVE}
    s_lshl_b32 s36, s36, 2
    s_add_u32 s36, s36, {WS_FL}
    v_mov_b32 v9, 1
    s_waitcnt vmcnt(1)
    buffer_store_dword v29, v24, s[24:27], s36 offen sc1
    ds_add_u32 v19, v9 offset:{O_R}
    s_mov_b64 exec, -1""")
    stamp(a, 4)
    a("s_branch L_att_setup")


Q, QH, KH, K, V, P, S0, S1, O, M = 32, 36, 38, 40, 44, 52, 64, 80, 96, 112
KA, KHA, VA, QA, QHA, G, G2, XA, XR = 12, 13, 14, 15, 16, 17, 18, 19, 20
TT, NT, HI_ = 33, 34, 35
SQ, SQH = 46, 47


def diag_mask(a, old):
    a(f"""v_lshlrev_b32 v6, 2, v4
    v_sub_u32 v6, v3, v6
    v_mov_b32 v7, 0xff800000""")
    for r in range(0, 16, 2):
        k0, k1 = (r >> 2) * 8 + (r & 3), (r >> 2) * 8 + (r & 3) + 1
        a(f"""v_cmp_le_i32 s[44:45], {k0}, v6
        v_cmp_le_i32 s[48:49], {k1}, v6
        s_nop 0
        v_cndmask_b32_e64 v{S0+r}, v7, 0, s[44:45]
        v_cndmask_b32_e64 v{S0+r+1}, v7, 0, s[48:49]""")
        if old:
            a(f"""v_cndmask_b32_e64 v{M+r}, 0, v7, s[44:45]
            v_cndmask_b32_e64 v{M+r+1}, 0, v7, s[48:49]""")


def attention(a):
    SRC = WS_L
    a("L_att_setup:")
    a(f"""s_and_b32 s31, s{LOC}, 1
    s_mul_i32 s40, s{LOC}, 5
    s_lshr_b32 s40, s40, 1            ; c0
    s_sub_u32 s{TT}, 11, s{WAVE}
    s_cmp_lt_u32 s{WAVE}, 4
    s_cselect_b32 s{TT}, s{WAVE}, s{TT}
    s_add_u32 s36, s{TT}, 1
    s_cmp_eq_u32 s{XCD}, 0
    s_cselect_b32 s{NT}, s36, 9
    s_cselect_b32 s36, 4, 17
    s_movk_i32 s37, 0xff
    s_cselect_b32 s37, 0x3ff, s37
    s_lshl_b32 s36, s36, s{TT}
    s_and_b32 s{HI_}, s36, s37
    s_lshr_b32 s36, s{LOC}, 2
    s_xor_b32 s36, s36, s31
    s_andn2_b32 s41, 1, s36
    s_lshl_b32 s41, s41, 3
    s_xor_b32 s42, s31, 1
    s_lshl_b32 s42, s42, 1
    s_mul_i32 s36, s{XCD}, 240
    s_add_u32 s36, s36, s40
    s_lshl_b32 s43, s36, 12
    s_lshl_b32 s37, s{TT}, 9
    s_add_u32 s36, s43, s37
    s_lshl_b32 s38, s31, 12
    s_add_u32 s{SQ}, s36, s38
    s_lshl_b32 s38, s42, 12
    s_add_u32 s38, s38, s41
    s_add_u32 s{SQH}, s36, s38
    v_lshlrev_b32 v10, 4, v1
    v_and_b32 v3, 31, v1
    v_lshrrev_b32 v4, 5, v1
    v_lshlrev_b32 v5, 4, v3
    v_lshl_add_u32 v{QA}, v4, 12, v5
    v_lshl_add_u32 v{QHA}, v4, 28, v5
    s_mul_i32 s38, s31, {CS}
    s_add_u32 s38, s38, s37
    v_mul_u32_u24 v6, {CS}, v4
    v_add3_u32 v{KA}, v6, v5, s38
    s_mul_i32 s38, s42, {CS}
    s_add_u32 s38, s38, s41
    s_add_u32 s38, s38, s37
    v_add_u32 v6, s38, v5
    v_mov_b32 v9, {L_ONES}
    v_cmp_eq_u32 s[44:45], 0, v4
    v_bfe_u32 v7, v1, 4, 1
    v_and_b32 v8, 3, v1
    v_add_u32 v11, 8, v9
    v_cndmask_b32_e64 v{KHA}, v11, v6, s[44:45]
    v_lshl_add_u32 v6, v7, 2, v8      ; gamma
    v_add_u32 v7, s31, v6
    v_lshrrev_b32 v8, 1, v7
    v_add_u32 v11, s40, v8
    v_lshrrev_b32 v11, 1, v11
    v_xor_b32 v7, v7, v11
    v_and_b32 v7, 1, v7
    v_mul_u32_u24 v8, {CS}, v8
    v_lshl_add_u32 v8, v7, 3, v8
    s_add_u32 s38, s37, {L_V}
    v_add_u32 v8, s38, v8
    v_cmp_gt_u32 s[44:45], 5, v6
    v_bfe_u32 v7, v1, 2, 2
    v_lshl_add_u32 v7, v4, 2, v7
    v_cndmask_b32_e64 v8, v9, v8, s[44:45]
    v_lshl_add_u32 v{VA}, v7, 4, v8""")
    diag_mask(a, True)
    a(f"""s_lshr_b32 s36, s{WAVE}, 2
    s_mul_i32 s37, s36, {L_V}
    s_add_u32 s36, s36, 1
    s_mul_i32 s36, s36, {80*4096}
    s_add_u32 s36, s36, s43
    s_and_b32 s38, s{WAVE}, 3
    s_mul_i32 s38, s38, 3
    v_and_b32 v5, 15, v1
    v_mul_u32_u24 v6, 160, v5
    v_lshrrev_b32 v7, 4, v1
    v_lshl_add_u32 v6, v7, 3, v6
    s_and_b32 s39, s{WAVE}, 3
    s_mul_i32 s44, s39, 2560
    v_add_u32 v{XA}, s44, v6
    s_and_b32 s44, s{LOC}, 3
    s_lshl_b32 s44, s44, {5 if OPT["rowmap"] else 6}
    s_lshl_b32 s45, s{XCD}, 8
    s_add_u32 s48, s44, s45
    s_and_b32 s44, s39, 1
    s_lshl_b32 s44, s44, 4
    s_add_u32 s51, s48, s44
    s_and_b32 s44, s39, 2
    s_lshl_b32 s44, s44, {6 if OPT["rowmap"] else 4}
    s_add_u32 s51, s51, s44
    s_lshl_b32 s39, s{TT}, 5
    s_add_u32 s39, s39, s45
    v_add_lshl_u32 v6, s39, v3, 2
    v_add_lshl_u32 v7, s51, v5, 2
    s_mov_b32 s39, {WS_G}
    v_add_u32 v11, {L_XT}, v{XA}
    v_mov_b32 v30, {M_PURE}
    v_mov_b32 v2, 1
    v_mov_b32 v60, s{TAG}
    v_mov_b32 v61, 0
    s_mov_b32 s40, 0""")
    for t in range(5):
        a(f"ds_read_b64 {vr(XR+2*t,2)}, v11 offset:{t*32}")
    a("s_waitcnt lgkmcnt(0)\ns_barrier")
    stamp(a, 5)
    for i in range(3):
        a(f"""s_add_u32 s44, s38, {i}
        s_lshr_b32 s45, s44, 2
        s_mul_i32 s45, s45, {CS-4096}
        s_lshl_b32 s44, s44, 10
        s_add_u32 s45, s45, s44
        s_add_u32 s45, s45, s37
        s_add_u32 m0, s45, 4096
        s_add_u32 s44, s44, s36
        buffer_load_dwordx4 v10, s[24:27], s44 offen sc1 lds""")
    a(f"""buffer_load_dwordx4 {vr(Q,4)}, v{QA}, s[24:27], s{SQ} offen sc1
    buffer_load_dwordx2 {vr(QH,2)}, v{QHA}, s[24:27], s{SQH} offen sc1
    buffer_load_dword v{G}, v6, s[24:27], s39 offen sc1
    buffer_load_dword v{G2}, v7, s[24:27], s39 offen sc1""")
    a("s_waitcnt vmcnt(0)")
    a("ds_read_b32 v31, v30")
    lds_add(a, O_B2)
    lds_wait(a, O_B2, 8)
    if OPT["aprio"]:
        a(f"s_setprio {OPT['aprio']}")
    stamp(a, 6)
    off = lambda i: (8 - i) * 512
    rdK = lambda i: f"ds_read_b128 {vr(K,4)}, v{KA} offset:{off(i)}"
    rdKH = lambda i: f"ds_read_b64 {vr(KH,2)}, v{KHA} offset:{off(i)}"
    rdV = lambda i, h: f"ds_read_b64_tr_b16 {vr(V+4*h,2)}, v{VA} offset:{off(i)+256*h}\nds_read_b64_tr_b16 {vr(V+4*h+2,2)}, v{VA} offset:{off(i)+256*h+128}"
    stubs = []
    def halo_check(tval):
        stubs.append(tval)
        a(f"s_bitcmp1_b32 s{HI_}, {tval}\ns_cbranch_scc1 L_hw{tval}\nL_hr{tval}:")
    a("L_att_go:")
    a(rdK(0)); a(rdKH(0)); a(rdV(0, 0))
    halo_check(0)
    a(f"""s_waitcnt lgkmcnt(2)
    v_mfma_f32_32x32x16_bf16 {vr(S0,16)}, {vr(K,4)}, {vr(Q,4)}, {vr(S0,16)}""")
    a(rdK(1))
    a(f"v_mfma_f32_32x32x8_bf16 {vr(S0,16)}, {vr(KH,2)}, {vr(QH,2)}, {vr(S0,16)}")
    a(rdKH(1))
    a(f"""v_readfirstlane_b32 s{PURE}, v31
    s_nop 4
    s_waitcnt lgkmcnt(0)""")

    def softq(S, q):
        for j in range(4):
            a(f"v_exp_f32 v{S+4*q+j}, v{S+4*q+j}")
        for j in range(2):
            a(f"v_cvt_pk_bf16_f32 v{P+2*q+j}, v{S+4*q+2*j}, v{S+4*q+2*j+1}")

    for i in range(9):
        S, SN = (S0, S1) if i % 2 == 0 else (S1, S0)
        halo_check(i + 1)
        if i > 0:
            a("s_waitcnt lgkmcnt(2)")
        if i < 8:
            c = vr(M, 16) if i + 1 == 8 else "0"
            a(f"v_mfma_f32_32x32x16_bf16 {vr(SN,16)}, {vr(K,4)}, {vr(Q,4)}, {c}")
        nread = 0
        if i < 7:
            a(rdK(i + 2)); nread += 1
        softq(S, 0)
        if i > 0:
            a(f"v_mfma_f32_32x32x16_bf16 {vr(O,16)}, {vr(V+4,4)}, {vr(P+4,4)}, {vr(O,16)}")
        a(rdV(i, 1)); nread += 2
        softq(S, 1)
        if i < 8:
            a(f"v_mfma_f32_32x32x8_bf16 {vr(SN,16)}, {vr(KH,2)}, {vr(QH,2)}, {vr(SN,16)}")
        if i < 7:
            a(rdKH(i + 2)); nread += 1
        softq(S, 2)
        a(f"s_waitcnt lgkmcnt({nread})")
        a(f"v_mfma_f32_32x32x16_bf16 {vr(O,16)}, {vr(V,4)}, {vr(P,4)}, {'0' if i == 0 else vr(O,16)}")
        if i < 8:
            a(rdV(i + 1, 0))
        softq(S, 3)
    a(f"""L_att_fin:
    s_waitcnt lgkmcnt(0)
    s_nop 0
    v_mfma_f32_32x32x16_bf16 {vr(O,16)}, {vr(V+4,4)}, {vr(P+4,4)}, {vr(O,16)}
    s_lshl_b32 s36, s{XCD}, 3
    s_add_u32 s36, s36, s{TT}
    s_lshl_b32 s36, s36, 5
    s_add_u32 s36, s36, s{LOC}
    s_lshl_b32 s36, s36, 2
    s_add_u32 s36, s36, {WS_FO}
    s_mov_b32 s37, {f32(2.0**-64)}
    s_mov_b32 s38, {f32(2.0**64 if not OPT['forcefb'] else 2.0**12)}
    s_nop 3
    v_rcp_f32 v8, v{O+12}
    v_cmp_nle_f32 s[44:45], s37, v{O+12}
    v_cmp_nge_f32 vcc, s38, v{O+12}
    v_mul_f32 v8, v8, v{G}
    s_or_b64 vcc, vcc, s[44:45]
    s_cbranch_vccnz L_fallback
    L_att_ok:""")
    for r in range(6):
        a(f"v_pk_mul_f32 {vr(O+2*r,2)}, {vr(O+2*r,2)}, v[8:9] op_sel_hi:[1,0]")
    for r in range(6):
        a(f"v_cvt_pk_bf16_f32 v{P+r}, v{O+2*r}, v{O+2*r+1}")
    def pub(sc):
        a(f"""buffer_store_dwordx4 {vr(P,4)}, v{QA}, s[24:27], s{SQ} offen {sc}
        buffer_store_dwordx2 {vr(P+4,2)}, v{QHA}, s[24:27], s{SQH} offen {sc}""")
        stamp(a, 7)
        a(f"""s_mov_b64 exec, 1
        ds_add_u32 v30, v2 offset:{O_ATT}
        s_waitcnt vmcnt(0)
        buffer_store_dword v60, v61, s[24:27], s36 offen {sc}
        s_mov_b64 exec, -1""")
    two_flavours(a, pub)
    stamp(a, 8)
    return stubs


def att_stubs(a, stubs):
    for t in stubs:
        a(f"L_hw{t}:")
        if t >= 8:
            a("s_branch L_att_fin")
            continue
        if t >= 2:
            a(f"s_cmp_eq_u32 s{XCD}, 0\ns_cbranch_scc1 L_att_fin")
        a(f"""s_cmp_eq_u32 s{TT}, {t}
        s_cselect_b32 s36, 1, 2
        s_mov_b32 s50, {SPIN*8}
        L_hs{t}:
        ds_read_b32 v9, v30 offset:4
        s_sub_u32 s50, s50, 1
        s_cbranch_scc1 L_hr{t}
        s_waitcnt lgkmcnt(0)
        v_cmp_gt_u32 vcc, s36, v9
        s_cbranch_vccnz L_hs{t}
        s_branch L_hr{t}""")
    a(f"""L_fallback:
    s_cmp_lg_u32 s40, 0
    s_cbranch_scc1 L_att_ok
    s_mov_b32 s40, 1""")
    diag_mask(a, False)
    a(f"""v_mov_b32 v8, 0xff800000
    v_add_u32 v5, 4096, v{KA}
    v_add_u32 v6, 4096, v{KHA}
    s_mov_b32 s36, 0
    L_fb_loop:
    ds_read_b128 {vr(K,4)}, v5
    ds_read_b64 {vr(KH,2)}, v6
    v_subrev_u32 v5, 512, v5
    v_subrev_u32 v6, 512, v6
    s_waitcnt lgkmcnt(0)
    s_cmp_eq_u32 s36, 0
    s_cbranch_scc1 L_fb_a
    s_cmp_eq_u32 s36, 8
    s_cbranch_scc1 L_fb_b
    v_mfma_f32_32x32x16_bf16 {vr(S1,16)}, {vr(K,4)}, {vr(Q,4)}, 0
    s_branch L_fb_c
    L_fb_a:
    v_mfma_f32_32x32x16_bf16 {vr(S1,16)}, {vr(K,4)}, {vr(Q,4)}, {vr(S0,16)}
    s_branch L_fb_c
    L_fb_b:
    v_mfma_f32_32x32x16_bf16 {vr(S1,16)}, {vr(K,4)}, {vr(Q,4)}, {vr(M,16)}
    L_fb_c:
    v_mfma_f32_32x32x8_bf16 {vr(S1,16)}, {vr(KH,2)}, {vr(QH,2)}, {vr(S1,16)}
    s_nop 11""")
    for r in range(0, 16, 2):
        a(f"v_max3_f32 v8, v8, v{S1+r}, v{S1+r+1}")
    a(f"""s_add_u32 s36, s36, 1
    s_cmp_lt_u32 s36, s{NT}
    s_cbranch_scc1 L_fb_loop
    v_mov_b32 v9, v8
    s_nop 1
    v_permlane32_swap_b32 v8, v9
    v_max_f32 v8, v8, v9
    v_sub_f32 v8, 0, v8
    v_and_b32 v5, 0xffff0000, v8
    v_sub_f32 v8, v8, v5
    v_and_b32 v6, 0xffff0000, v8
    v_sub_f32 v8, v8, v6
    v_lshrrev_b32 v5, 16, v5
    v_or_b32 v5, v5, v6
    v_lshrrev_b32 v8, 16, v8
    v_cmp_eq_u32 s[44:45], 0, v4
    s_nop 1
    v_cndmask_b32_e64 v{QH}, v5, v{QH}, s[44:45]
    v_cndmask_b32_e64 v{QH+1}, v8, v{QH+1}, s[44:45]
    s_branch L_att_go""")


OF, NOF, PA, WF = 64, 14, 32, 120
def outproj(a):
    a(f"""s_cmp_lt_u32 s{WAVE}, 4
    s_cbranch_scc1 L_op_main
    s_waitcnt lgkmcnt(0)""")
    def owner():
        lp, lo = uid("tv"), uid("to")
        a(f"""s_mov_b32 s50, {SPIN*8}
        {lp}:
        ds_read_b64 v[62:63], v30 offset:16
        s_sub_u32 s50, s50, 1
        s_waitcnt lgkmcnt(0)
        s_cbranch_scc1 {lo}
        v_cmp_eq_u32 vcc, 0, v62
        s_cbranch_vccnz {lp}
        {lo}:""")
        a(owner_txt)
    owner_txt = f"""v_readfirstlane_b32 s42, v62
    v_readfirstlane_b32 s43, v63
    s_and_b32 s42, s42, 0xffff
    s_lshr_b32 s32, s{LOC}, 2
    v_add_u32 v9, s51, v3
    v_mov_b32 v7, 320
    v_cmp_eq_u32 s[44:45], s43, v9
    v_cmp_eq_u32 s[48:49], s42, v9
    v_lshl_add_u32 v25, v4, 4, v30
    v_cndmask_b32_e64 v7, 0, v7, s[44:45]
    v_add_u32 v25, v25, v7
    s_or_b64 s[44:45], s[44:45], s[48:49]"""
    finish(a)
    WA = 160
    a(f"""L_op_main:
    {"s_setprio 0" if OPT["aprio"] else ""}
    s_load_dwordx2 s[8:9], s[0:1], 72
    v_and_b32 v3, 15, v1
    v_lshrrev_b32 v4, 4, v1
    v_lshrrev_b32 v5, 1, v4
    v_add_u32 v6, v4, v5
    v_lshlrev_b32 v7, 4, v3
    v_lshl_add_u32 v12, v6, 12, v7
    v_and_b32 v6, 1, v4
    v_lshl_add_u32 v8, v6, 1, v5
    v_mul_u32_u24 v9, {5*4096}, v8
    v_add_u32 v13, v9, v7
    v_mul_u32_u24 v5, 20, v5
    v_lshl_add_u32 v5, v6, 2, v5
    v_bfe_u32 v7, v1, 2, 2
    v_add_u32 v5, v5, v7
    v_mul_u32_u24 v5, 160, v5
    v_and_b32 v9, 3, v1
    v_lshlrev_b32 v9, 3, v9
    v_add_u32 v9, {L_WO}, v9
    v_add_u32 v14, v5, v9
    v_add_u32 v15, {8*6400}, v14
    v_mul_u32_u24 v8, 40, v8
    v_add3_u32 v8, v8, v7, 16
    v_mul_u32_u24 v8, 160, v8
    v_add_u32 v8, v8, v9
    v_mul_u32_u24 v6, 3200, v6
    v_add_u32 v{WA+1}, v8, v6
    v_sub_u32 v{WA}, v8, v6
    v_add_u32 v{WA}, 3200, v{WA}
    v_add_u32 v{WA+2}, {8*6400}, v{WA}
    v_add_u32 v{WA+3}, {8*6400}, v{WA+1}
    v_sub_f32 v{G2}, 1.0, v{G2}""")
    for t in range(5):
        for j in range(2):
            a(f"""v_lshlrev_b32 v{PA+4*t+2*j}, 16, v{XR+2*t+j}
            v_and_b32 v{PA+4*t+2*j+1}, 0xffff0000, v{XR+2*t+j}""")
    for i in range(20):
        a(f"v_mul_f32 v{PA+i}, v{G2}, v{PA+i}")
    for n in range(3):
        a(f"""v_add_u32 v5, {64*n}, v1
        v_mul_u32_u24 v6, 6554, v5
        v_lshrrev_b32 v6, 16, v6
        v_mul_u32_u24 v7, 10, v6
        v_sub_u32 v7, v5, v7
        v_mul_u32_u24 v6, 1280, v6
        v_lshl_add_u32 v{21+n}, v7, 4, v6""")
    a(f"""v_lshrrev_b32 v5, 5, v1
    v_lshl_add_u32 v23, v5, 28, v23
    s_mul_i32 s36, s{WAVE}, 2560
    v_add_u32 v24, s36, v10
    s_waitcnt lgkmcnt(0)""")
    owner()
    srd(a, SA, 8, 2621440)
    a(f"""s_mul_i32 s40, s51, 1280
    s_mul_i32 s37, s32, 160
    s_add_u32 s40, s40, s37
    s_lshr_b32 s36, s51, 5
    s_lshl_b32 s36, s36, 7
    s_add_u32 s36, s36, {WS_FO}
    v_and_b32 v5, 31, v1
    v_lshlrev_b32 v5, 2, v5
    s_mul_i32 s37, s{XCD}, {XB}
    s_and_b32 s38, s51, 255
    s_lshl_b32 s38, s38, 4
    s_add_u32 s37, s37, s38
    s_add_u32 s38, s37, 8192""")
    lds_wait(a, O_WO, 1)
    stamp(a, 9)

    def wread(s, t):
        f = WF + 20 * (s & 1) + 4 * t
        if s < 16:
            b = 14 if s < 8 else 15
            b2, o, d = b, (s % 8) * 6400, 1280
        else:
            b = WA if s < 18 else WA + 2
            b2, o, d = b + 1, (s % 2) * 25600, 0
        a(f"""ds_read_b64_tr_b16 v[{f}:{f+1}], v{b} offset:{o+t*32}
        ds_read_b64_tr_b16 v[{f+2}:{f+3}], v{b2} offset:{o+t*32+d}""")

    def oload(s):
        r = OF + 4 * (s % NOF)
        if s < 16:
            a(f"buffer_load_dwordx4 {vr(r,4)}, v12, s[24:27], s37 offen sc1\ns_add_u32 s37, s37, {5*4096}")
        else:
            a(f"buffer_load_dwordx4 {vr(r,4)}, v13, s[24:27], s38 offen sc1\ns_add_u32 s38, s38, {20*4096}")
    pl = "buffer_load_dword v6, v5, s[24:27], s36 offen sc1"
    a(pl)
    for t in range(5):
        wread(0, t)
    a("s_waitcnt lgkmcnt(4)")
    for t in range(5):
        wread(1, t)
    poll(a, pl, [6], pre=True)
    stamp(a, 10)
    NL0 = OPT["nl0"]
    assert NL0 <= 5
    for s in range(NL0):
        oload(s)
    a("""s_cmp_eq_u64 s[44:45], 0
    s_cbranch_scc1 L_op_loop""")
    lp = uid("yw")
    a(f"""s_mov_b32 s50, {SPIN*8}
    {lp}:
    ds_read_b32 v9, v30 offset:{O_Y}""")
    for t in range(5):
        a(f"ds_read_b128 {vr(84+4*t,4)}, v25 offset:{L_Y-L_MISC+t*64}")
    a(f"""s_sub_u32 s50, s50, 1
    s_waitcnt lgkmcnt(0)
    s_cbranch_scc1 L_op_loop
    v_cmp_ne_u32 vcc, 1, v9
    s_cbranch_vccnz {lp}
    s_mov_b64 exec, s[44:45]""")
    for i in range(20):
        a(f"v_fmac_f32 v{PA+i}, v{G2}, v{84+i}")
    a("s_mov_b64 exec, -1\nL_op_loop:")
    for s in range(20):
        issued = min(20, NL0 + s)
        a(f"s_waitcnt vmcnt({issued-1-s}) lgkmcnt({10 if s < 19 else 0})")
        for t in range(5):
            a(f"v_mfma_f32_16x16x32_bf16 {vr(PA+4*t,4)}, {vr(WF+20*(s&1)+4*t,4)}, {vr(OF+4*(s%NOF),4)}, {vr(PA+4*t,4)}")
            if s < 18:
                wread(s + 2, t)
            if t == 0 and NL0 + s < 20:
                oload(NL0 + s)
            if s == 18 and t == 0:
                a(f"ds_read_b32 v9, v30 offset:{O_ATT}")
    a("L_op_end:")
    stamp(a, 11)
    lds_wait(a, O_ATT, 8, pre=True)
    for t in range(5):
        a(f"""v_cvt_pk_bf16_f32 v{WF+2*t}, v{PA+4*t}, v{PA+4*t+1}
        v_cvt_pk_bf16_f32 v{WF+2*t+1}, v{PA+4*t+2}, v{PA+4*t+3}
        ds_write_b64 v{XA}, {vr(WF+2*t,2)} offset:{t*32}""")
    for n in range(3):
        a(f"ds_read_b128 {vr(OF+4*n,4)}, v24 offset:{n*1024}")
    for n in range(3):
        a(f"s_waitcnt lgkmcnt({2-n})\nbuffer_store_dwordx4 {vr(OF+4*n,4)}, v{21+n}, s[52:55], s40 offen {OPT['osc']}")
    stamp(a, 12)
    if OPT["probe"]:
        pa, pb = [int(x) for x in OPT["probe"].split("_")]
        a(f"""s_sub_u32 s36, s{62+2*pb}, s{62+2*pa}
        {'s_lshr_b32 s36, s36, 1' if OPT['pcyc'] else 's_lshl_b32 s36, s36, 3'}
        s_min_u32 s36, s36, 20000
        s_lshl_b32 s37, s{WAVE}, 8
        s_add_u32 s37, s37, s2
        s_cmp_lg_u32 s37, {OPT["pwg"]}
        s_cselect_b32 s36, 0, s36
        s_memrealtime s[38:39]
        s_waitcnt lgkmcnt(0)
        s_add_u32 s36, s36, s38
        L_probe:
        s_sleep 2
        s_memrealtime s[38:39]
        s_waitcnt lgkmcnt(0)
        s_sub_u32 s37, s38, s36
        s_cmp_lt_i32 s37, 0
        s_cbranch_scc1 L_probe""")
    finish(a, True)


def wo_offsets(a):
    for n in range(5):
        a(f"""v_add_u32 v5, {64*n}, v1
        v_mul_u32_u24 v6, 6554, v5
        v_lshrrev_b32 v6, 16, v6
        v_mul_u32_u24 v8, 10, v6
        v_sub_u32 v8, v5, v8
        v_mul_u32_u24 v6, 1280, v6
        v_lshl_add_u32 v{WOV+n}, v8, 4, v6""")


WOV = 160
def wo_groups(a, g0, g1):
    lp = uid("wo")
    a(f"""s_mov_b32 m0, {L_WO+g0*5120}
    s_add_u32 s41, s34, {g0*40960}
    s_movk_i32 s44, 0x400
    {lp}:""")
    for j in range(5):
        a(f"""buffer_load_dwordx4 v{WOV+j}, s[20:23], s41 offen lds
        s_add_u32 m0, m0, s44
        {"s_nop 0" if j < 4 else "s_add_u32 s41, s41, 40960"}""")
    a(f"""s_cmp_lt_u32 m0, {L_WO+g1*5120}
    s_cbranch_scc1 {lp}""")


def purity(a):
    a(f"""v_cmp_ne_u32 vcc, s{TAG}, v12
    v_cmp_ne_u32 s[44:45], s35, v13
    s_or_b64 vcc, vcc, s[44:45]
    s_cselect_b32 s36, 0, {0 if OPT['forceimp'] else 1}
    v_mov_b32 v5, s36
    ds_write_b32 v30, v5
    s_waitcnt lgkmcnt(0)""")


def helper1(a):
    a(f"""L_help:
    s_cmp_eq_u32 s{WAVE}, 9
    s_cbranch_scc1 L_ffn
    s_load_dwordx2 s[40:41], s[0:1], 16
    s_load_dwordx2 s[8:9], s[0:1], 32
    s_load_dwordx2 s[10:11], s[0:1], 64
    v_lshlrev_b32 v10, 4, v1""")
    a(f"""v_mov_b32 v16, {"0x3f80" if OPT["ones"] else "0x3f803f80"}
    v_mov_b32 v17, {"0" if OPT["ones"] else "0x3f803f80"}
    v_mov_b32 v18, 0x3f803f80
    v_mov_b32 v19, 0x3f80
    v_add_u32 v5, {L_ONES}, v10""")
    for i in range(5):
        a(f"ds_write_b128 v5, v[16:19] offset:{i*1024}")
    a(f"""v_mov_b32 v30, {M_PURE}
    v_mov_b32 v6, 0
    v_lshl_add_u32 v7, v1, 2, v30
    ds_write_b32 v7, v6""")
    if OPT["prio"]:
        a("s_setprio 3")
    wo_offsets(a)
    a("s_waitcnt lgkmcnt(0)")
    epoch_load(a)
    srd(a, SX, 4, 2621440)
    srd(a, SW, 40, 819200)
    srd(a, SS, 12, WS_END)
    srd(a, SA, 8, 1280)
    srd(a, SB, 10, 1280)
    a(f"""s_cmp_lg_u32 s{CT}, 15
    s_cbranch_scc1 L_nowv
    s_mov_b32 m0, {L_WV}
    s_nop 0
    buffer_load_dwordx4 v10, s[52:55], 0 offen lds
    buffer_load_dwordx4 v10, s[52:55], 0 offen offset:1024 lds
    s_mov_b32 m0, {L_WV+2048}
    s_nop 0
    buffer_load_dwordx4 v10, s[56:59], 0 offen lds
    buffer_load_dwordx4 v10, s[56:59], 0 offen offset:1024 lds
    L_nowv:
    s_getreg_b32 s35, hwreg(HW_REG_XCC_ID, 0, 4)
    s_lshr_b32 s34, s{LOC}, 2
    s_mul_i32 s34, s34, 160
    s_mul_i32 s33, s{LOC}, 5
    s_lshr_b32 s33, s33, 1             ; c0
    v_bfe_u32 v5, v1, 2, 1
    v_lshl_add_u32 v6, v5, 1, s33
    v_lshrrev_b32 v6, 3, v6
    v_bfe_u32 v7, v1, 3, 2
    v_cmp_eq_u32 s[44:45], 3, v7
    v_and_b32 v8, 3, v1
    v_lshlrev_b32 v8, 2, v8
    v_cndmask_b32_e64 v5, v6, v5, s[44:45]
    v_mad_u32_u24 v5, v7, 10, v5
    v_lshl_add_u32 v11, v5, 4, v8
    v_and_b32 v7, 1, v7
    v_mad_u32_u24 v5, v7, 10, v6
    v_add_u32 v5, 10, v5
    v_lshl_add_u32 v15, v5, 7, v8
    v_and_b32 v14, 31, v1
    v_lshlrev_b32 v14, 3, v14
    s_lshl_b32 s42, s{XCD}, 8
    s_add_u32 s42, s42, {WS_XID}""")
    epoch_fin(a)
    stamp(a, 1)
    a(f"""s_waitcnt vmcnt(0)
    s_barrier
    s_lshl_b32 s36, s{LOC}, 3
    s_add_u32 s36, s36, s42
    v_mov_b32 v8, s{TAG}
    v_mov_b32 v9, s35
    v_mov_b32 v5, 0
    s_mov_b64 exec, 1
    buffer_store_dwordx2 v[8:9], v5, s[24:27], s36 offen {'sc1' if OPT['xsc'] else ''}
    s_mov_b64 exec, -1""")
    def qtouch():
        if OPT["qown"]:
            l = uid("nq")
            a(f"""s_cmp_ge_u32 s{CT}, 5
            s_cbranch_scc1 {l}
            s_mul_i32 s36, s{XCD}, {XB}
            s_lshl_b32 s37, s{CT}, 16
            s_add_u32 s36, s36, s37
            s_lshl_b32 s37, s{RBL}, 11
            s_add_u32 s36, s36, s37
            v_and_b32 v5, 15, v1
            v_lshlrev_b32 v5, 7, v5
            v_lshl_add_u32 v5, v4, 12, v5""")
            for i in range(4):
                a("buffer_load_dword v167, v5, s[24:27], s36 offen sc1\ns_add_u32 s36, s36, 16384")
            a(f"{l}:")
            return
        a(f"""s_mul_i32 s36, s{XCD}, {XB}
        s_mul_i32 s37, s{LOC}, 10240
        s_add_u32 s36, s36, s37
        s_add_u32 s37, s36, 5120
        v_min_u32 v5, 39, v1
        v_lshlrev_b32 v5, 7, v5
        buffer_load_dword v167, v5, s[24:27], s36 offen sc1
        buffer_load_dword v167, v5, s[24:27], s37 offen sc1""")
    a(f"""s_and_b32 s38, s{LOC}, 3
    s_lshl_b32 s38, s38, 5
    s_lshl_b32 s39, s{XCD}, 8
    s_add_u32 s38, s38, s39
    s_mul_i32 s38, s38, 1280
    s_add_u32 s38, s38, s34
    s_add_u32 s39, s38, {128*1280}""")
    side = {i: [] for i in range(7)}
    def spread(items, spec):
        a0, a1 = [int(x) for x in spec.split("_")]
        n = a1 - a0 + 1
        for k, it in enumerate(items):
            side[a0 + k * n // len(items)].append(it)
    spread([f"""s_mov_b32 m0, {L_XT+n*1024}
        s_nop 0
        buffer_load_dwordx4 v{WOV+n%5}, s[16:19], s{38+n//5} offen lds""" for n in range(10)], OPT["xs"])
    if OPT["wsn"]:
        spread([f"""s_mov_b32 m0, {L_WO+n*1024}
        s_add_u32 s36, s34, {(n//5)*40960}
        buffer_load_dwordx4 v{WOV+n%5}, s[20:23], s36 offen lds""" for n in range(65 - 5 * OPT["wsn"], 65)], OPT["ws"])
    for i in range(7):
        if OPT["qloc"] and OPT["qat"] == i:
            qtouch()
        for it in side[i]:
            a(it)
        if i < 6:
            a("s_barrier")
    a(f"""s_cmp_lg_u32 s{CT}, 15
    s_cbranch_scc1 L_h_g
    s_barrier
    s_barrier
    s_waitcnt vmcnt(0)
    s_barrier
    buffer_load_dwordx2 v[12:13], v14, s[24:27], s42 offen sc1
    s_branch L_h_p
    L_h_g:
    buffer_load_dwordx2 v[12:13], v14, s[24:27], s42 offen sc1
    s_barrier
    s_barrier
    L_h_p:
    s_waitcnt vmcnt(0)""")
    purity(a)
    if OPT["qloc"] and OPT["qat"] == 8:
        qtouch()
    a(f"""s_cmp_eq_u32 s{CT}, 15
    s_cbranch_scc1 L_h_q
    s_barrier
    L_h_q:""")
    lds_wait(a, O_R, 4)
    a(f"""s_lshl_b32 s36, s{XCD}, 9
    s_add_u32 s36, s36, {WS_FL}""")
    stamp(a, 2)
    poll(a, "buffer_load_dword v12, v11, s[24:27], s36 offen sc1", [12])
    stamp(a, 4)
    a(f"""s_lshl_b32 s36, s{XCD}, 12
    s_add_u32 s36, s36, {WS_FR-4096}
    s_barrier
    buffer_load_dword v12, v15, s[24:27], s36 offen sc1""")
    a(f"""s_cmp_eq_u32 s{XCD}, 0
    s_cbranch_scc1 L_nohalo""")
    poll(a, "buffer_load_dword v12, v15, s[24:27], s36 offen sc1", [12], pre=True)
    if OPT["hdel"]:
        lds_wait(a, O_B2, OPT["hdel"])
    stamp(a, 7)
    a(f"""s_mul_i32 s36, s{XCD}, 240
    s_add_u32 s36, s36, s33
    s_lshl_b32 s36, s36, 12
    s_add_u32 s36, s36, {(WS_L - XB + 80*4096) & 0xffffffff}""")
    for q in (3, 2, 1, 0):
        for sec in range(2):
            for j in range(3):
                a(f"""s_mov_b32 m0, {sec*L_V + j*CS + q*1024}
                s_add_u32 s37, s36, {sec*80*4096 + j*4096 + q*1024}
                buffer_load_dwordx4 v10, s[24:27], s37 offen sc1 lds""")
    a("""v_mov_b32 v5, 1
    s_waitcnt vmcnt(12)
    ds_write_b32 v30, v5 offset:4
    L_nohalo:""")
    stamp(a, 6)
    wo_groups(a, 0, 2)
    a("""v_mov_b32 v5, 2
    s_waitcnt vmcnt(10)
    ds_write_b32 v30, v5 offset:4""")
    stamp(a, 8)
    if OPT["wsn"]:
        wo_groups(a, 2, 13 - OPT["wsn"])
        wo_groups(a, 13, 20)
    else:
        wo_groups(a, 2, 20)
    a("s_waitcnt vmcnt(0)")
    lds_add(a, O_WO)
    a("s_waitcnt lgkmcnt(0)")
    stamp(a, 9)
    a(f"""s_cmp_lg_u32 s2, 255
    s_cbranch_scc1 L_h1_end
    s_mov_b32 s36, {WS_P2+4}
    v_min_u32 v5, 59, v1
    v_lshlrev_b32 v5, 12, v5""")
    lds_wait(a, 16, 1)
    if OPT["epx"]:
        a(f"s_mov_b32 s36, {WS_XID}")
        poll(a, "buffer_load_dwordx4 v[12:15], v10, s[24:27], s36 offen sc1\nbuffer_load_dwordx4 v[16:19], v10, s[24:27], s36 offen offset:1024 sc1", [12, 14, 16, 18])
    else:
        poll(a, "\n".join(f"buffer_load_dword v{12+i}, v5, s[24:27], s36 offen offset:{i*1024} sc1" for i in range(4)), [12, 13, 14, 15])
    a(f"s_mov_b32 s36, {WS_EP}")
    flag_store(a, 36, False)
    a("L_h1_end:")
    finish(a)


def sel_by_g(a, o, b, st, tag=True):
    a(f"""v_cndmask_b32_e64 v{o}, v{b}, v{b+st}, s[44:45]
    v_cndmask_b32_e64 v{o}, v{o}, v{b+2*st}, s[46:47]
    v_cndmask_b32_e64 v{o}, v{o}, v{b+3*st}, s[48:49]""")
    if tag:
        a(f"v_mov_b32 v{o+1}, s{TAG}")


def ffn(a):
    a(f"""L_ffn:
    s_load_dwordx4 s[8:11], s[0:1], 40
    s_load_dwordx2 s[40:41], s[0:1], 56
    s_load_dwordx2 s[44:45], s[0:1], 16
    s_load_dwordx2 s[46:47], s[0:1], 72
    v_lshlrev_b32 v10, 4, v1
    s_mul_i32 s33, s{XCD}, 30
    s_add_u32 s33, s33, s{LOC}         ; job
    s_mul_i32 s34, s33, 6554
    s_lshr_b32 s34, s34, 16            ; b
    s_mul_i32 s35, s34, 10
    s_sub_u32 s35, s33, s35
    v_lshrrev_b32 v5, 3, v1
    v_and_b32 v7, 7, v1
    v_mul_u32_u24 v6, 3072, v5
    v_lshl_add_u32 v11, v7, 4, v6
    v_mul_u32_u24 v6, 1280, v5
    v_lshl_add_u32 v12, v7, 4, v6
    v_bfe_u32 v6, v1, 2, 2
    v_lshl_add_u32 v6, v4, 3, v6
    v_lshlrev_b32 v6, 7, v6
    v_and_b32 v8, 3, v1
    v_lshl_add_u32 v6, v8, 3, v6
    v_add_u32 v13, {L_FW}, v6
    v_mov_b32 v30, {M_PURE}
    s_mul_i32 s38, s35, 64*3072
    s_lshl_b32 s36, s34, 7
    s_add_u32 s38, s38, s36
    s_mul_i32 s39, s34, 64*1280
    s_lshl_b32 s36, s35, 7
    s_add_u32 s39, s39, s36
    s_waitcnt lgkmcnt(0)""")
    epoch_load(a)
    srd(a, SX, 4, 2621440)
    srd(a, SW, 40, 1966080)
    srd(a, SS, 12, WS_END)
    srd(a, SA, 8, 1966080)
    srd(a, SB, 10, 1966080)
    epoch_fin(a)
    stamp(a, 1)
    if OPT["fprio"]:
        a(f"s_setprio {OPT['fprio']}")
    def weights(n0=0, n1=24):
        for m in range(3):
            for i in range(8):
                if not n0 <= m * 8 + i < n1:
                    continue
                s_, v_, so, st = ((SA, 11, 38, 3072), (SB, 11, 38, 3072), (SW, 12, 39, 1280))[m]
                a(f"""s_mov_b32 m0, {L_FW+m*8192+i*1024}
                s_add_u32 s36, s{so}, {i*8*st}
                buffer_load_dwordx4 v{v_}, s[{s_}:{s_+3}], s36 offen {OPT['fnt']} lds""")
    cl = "buffer_load_dwordx4 v[24:27], v10, s[24:27], s51 offen sc1"
    def touch():
        a(f"""s_mul_i32 s36, s{XCD}, {XB}
        s_sub_u32 s37, s36, {XB}
        s_max_i32 s37, s37, 0
        s_load_dword s3, s[44:45], 0
        s_load_dword s3, s[12:13], s36
        s_load_dword s3, s[8:9], 0
        s_load_dword s3, s[10:11], 0
        s_load_dword s3, s[40:41], 0
        s_load_dword s3, s[12:13], s37
        s_add_u32 s36, s36, {XB-64}
        s_mul_i32 s37, s{XCD}, {256*1280}
        s_load_dword s3, s[12:13], s36
        s_load_dword s3, s[46:47], s37
        s_add_u32 s37, s37, {256*1280-64}
        s_load_dword s3, s[46:47], s37
        s_load_dword s3, s[6:7], 0
        s_mov_b32 s36, {2457600-64}
        s_load_dword s3, s[6:7], s36""")
    if OPT["stl"] == 1 and OPT["stw"]:
        touch()
    a(f"""    s_mov_b32 s51, {WS_CAND}
    s_cmp_lg_u32 s{CT}, 15
    s_cbranch_scc1 L_f_w""")
    for i in range(10):
        if (OPT["stl"] == 1 and not OPT["stw"] and i == 0) or (OPT["stl"] == 2 and i == 1):
            touch()
        a("s_barrier")
    a("""s_waitcnt lgkmcnt(0)
    s_barrier
    s_branch L_f_c
    L_f_w:""")
    late = 0
    for i in range(9):
        a("s_barrier")
        if i == 0 and OPT["stl"] == 2 and OPT["stw"]:
            touch()
        if i == 8:
            a("s_waitcnt lgkmcnt(0)")
        if i < 8:
            if OPT["fwm"]:
                weights(3 * i, 3 * i + 3)
    if OPT["cearly"]:
        a(cl)
    if not OPT["fwm"]:
        weights()
        late += 24
    a("s_barrier")
    if OPT["cearly"]:
        a(f"""s_waitcnt vmcnt({late})
        v_xor_b32 v9, s{TAG}, v25
        v_bitop3_b32 v9, v9, v27, s{TAG} bitop3:0xf6
        v_cmp_ne_u32 vcc, 0, v9
        {'s_branch' if OPT['nocand'] else 's_cbranch_vccz'} L_f_ok""")
    a("L_f_c:")
    stamp(a, 2)
    poll(a, cl, [25, 27])
    a("L_f_ok:")
    stamp(a, 3)
    top2(a, 24, 26, 21, 40, 41, 44)
    key_decode(a, 40, 42, 46, 36)
    key_decode(a, 41, 43, 47, 36)
    a(f"""v_mov_b32 v16, s42
    v_mov_b32 v17, s43
    v_mov_b32 v18, s46
    v_mov_b32 v19, s47
    v_or_b32 v16, 0x10000, v16
    ds_write_b128 v30, v[16:19] offset:16
    v_mov_b32 v20, s42
    v_and_b32 v6, 1, v1
    v_cmp_eq_u32 s[44:45], 0, v6
    s_lshl_b32 s36, s35, 7
    s_nop 0
    v_cndmask_b32_e64 v7, v17, v20, s[44:45]
    v_mul_u32_u24 v7, 1280, v7
    v_lshl_add_u32 v7, v4, 4, v7
    s_cmp_lg_u32 s{CT}, 15
    s_cbranch_scc1 L_f_job""")
    a(f"""s_branch L_f_gather
    L_f_job:
    buffer_load_dwordx4 v[32:35], v7, s[16:19], s36 offen
    buffer_load_dwordx4 v[36:39], v7, s[16:19], s36 offen offset:64
    v_cmp_eq_u32 s[44:45], 1, v4
    v_cmp_eq_u32 s[46:47], 2, v4
    v_cmp_eq_u32 s[48:49], 3, v4
    s_and_b32 s52, s{TAG}, 0xff
    s_bfe_u32 s53, s{TAG}, 0x80008
    s_bfe_u32 s54, s{TAG}, 0x80010
    s_lshr_b32 s55, s{TAG}, 24
    v_mov_b32 v21, 0xffffff00""")
    a("s_waitcnt vmcnt(2)")
    stamp(a, 4)
    for t in range(4):
        for ks in range(2):
            o = 16384 + ks * 4096 + t * 32
            r = 128 + t * 8 + ks * 4
            a(f"""ds_read_b64_tr_b16 v[{r}:{r+1}], v13 offset:{o}
            ds_read_b64_tr_b16 v[{r+2}:{r+3}], v13 offset:{o+512}""")
        if t == 1:
            a("s_waitcnt lgkmcnt(0)")
    a("s_waitcnt vmcnt(0)")
    for m in range(2):
        for t in range(4):
            d = 64 + (m * 4 + t) * 4
            f = 40 + (t & 1) * 8
            for ks in range(2):
                o = m * 8192 + ks * 4096 + t * 32
                a(f"""ds_read_b64_tr_b16 v[{f+4*ks}:{f+4*ks+1}], v13 offset:{o}
                ds_read_b64_tr_b16 v[{f+4*ks+2}:{f+4*ks+3}], v13 offset:{o+512}""")
            a("s_waitcnt lgkmcnt(0)")
            for ks in range(2):
                a(f"v_mfma_f32_16x16x32_bf16 {vr(d,4)}, {vr(32+4*ks,4)}, {vr(f+4*ks,4)}, {'0' if ks == 0 else vr(d,4)}")
    a(f"""s_lshl_b32 s36, s33, 10
    s_add_u32 s36, s36, {WS_P1}
    s_nop 5""")
    for m in range(2):
        for tk in range(2):
            sel_by_g(a, 96 + m * 2 + tk, 64 + m * 16 + tk, 4, False)
    for j in range(4):
        a(f"v_and_or_b32 v{96+j}, v{96+j}, v21, s{52+j}")
    a(f"""buffer_store_dwordx4 v[96:99], v10, s[24:27], s36 offen sc1
    s_mul_i32 s36, s34, 10240
    s_add_u32 s36, s36, {WS_P1}
    s_add_u32 s37, s36, 4096
    s_add_u32 s38, s36, 8192
    s_mov_b32 s50, {SPIN}
    s_waitcnt lgkmcnt(0)""")
    stamp(a, 5)
    a("s_barrier")
    stamp(a, 6)
    a("L_f_p1:")
    for i in range(10):
        a(f"buffer_load_dwordx4 {vr(32+4*i,4)}, v10, s[24:27], s{36+i//4} offen offset:{(i%4)*1024} sc1")
    a("v_mov_b32 v9, 0")
    for i in range(10):
        a(f"s_waitcnt vmcnt({9-i})")
        for j in range(4):
            a(f"v_xor_b32 v{32+4*i+j}, s{52+j}, v{32+4*i+j}")
        a(f"v_or3_b32 v9, v9, v{32+4*i}, v{33+4*i}\nv_or3_b32 v9, v9, v{34+4*i}, v{35+4*i}")
    a("""v_and_b32 v9, 0xff, v9
    s_sub_u32 s50, s50, 1
    v_cmp_ne_u32 vcc, 0, v9
    s_cbranch_scc1 L_f_p1o
    s_cbranch_vccnz L_f_p1
    L_f_p1o:""")
    stamp(a, 7)
    for i in range(1, 10):
        for j in (0, 2):
            a(f"v_pk_add_f32 {vr(32+j,2)}, {vr(32+j,2)}, {vr(32+4*i+j,2)}")
    for tk in range(2):
        sigmoid(a, 14 + tk, f"v{32+tk}")
        a(f"v_mul_f32 v{14+tk}, v{14+tk}, v{32+tk}\nv_mul_f32 v{14+tk}, v{14+tk}, v{34+tk}")
    a(f"""v_cvt_pk_bf16_f32 v14, v14, v15
    v_lshl_add_u32 v6, v1, 1, v30
    ds_write_b16 v6, v14 offset:256
    ds_write_b16_d16_hi v6, v14 offset:384
    v_and_b32 v7, 1, v1
    v_lshl_add_u32 v7, v7, 7, v30
    v_lshl_add_u32 v7, v4, 4, v7
    s_waitcnt lgkmcnt(0)
    ds_read_b128 v[32:35], v7 offset:256
    ds_read_b128 v[36:39], v7 offset:320
    s_waitcnt lgkmcnt(0)""")
    for t in range(4):
        d = 64 + t * 4
        for ks in range(2):
            a(f"v_mfma_f32_16x16x32_bf16 {vr(d,4)}, {vr(32+4*ks,4)}, {vr(128+t*8+4*ks,4)}, {'0' if ks == 0 else vr(d,4)}")
    a(f"""s_lshl_b32 s36, s33, 10
    s_add_u32 s36, s36, {WS_P2}
    s_nop 5""")
    for tk in range(2):
        sel_by_g(a, 96 + tk * 2, 64 + tk, 4)
    a("buffer_store_dwordx4 v[96:99], v10, s[24:27], s36 offen sc1")
    stamp(a, 8)
    a("L_f_gather:")
    a(f"""s_and_b32 s36, s{LOC}, 3
    s_lshl_b32 s36, s36, 5
    s_lshl_b32 s37, s{XCD}, 8
    s_add_u32 s36, s36, s37
    s_xor_b32 s42, s42, s36
    s_xor_b32 s43, s43, s36
    s_and_b32 s42, s42, 0x760
    s_and_b32 s43, s43, 0x760
    s_min_u32 s36, s42, s43
    s_cmp_lg_u32 s36, 0
    s_cbranch_scc1 L_f_end
    s_setprio {OPT['gprio']}
    s_lshr_b32 s32, s{LOC}, 2
    s_mul_i32 s40, s32, 1280
    s_add_u32 s40, s40, {WS_P2}
    s_andn2_b32 s36, s40, 1023
    v_min_u32 v5, 47, v1
    v_lshrrev_b32 v6, 1, v5
    v_mul_u32_u24 v6, 10240, v6
    v_and_b32 v5, 1, v5
    v_lshl_add_u32 v5, v5, 10, v6
    v_and_b32 v7, 15, v1
    v_mul_u32_u24 v11, 10240, v4
    v_lshl_add_u32 v11, v7, 4, v11
    v_lshl_add_u32 v12, v1, 2, v30
    v_lshl_add_u32 v13, v7, 2, v30
    s_mov_b32 s41, 0""")
    lds_wait(a, 4, 2)
    poll(a, "buffer_load_dword v6, v5, s[24:27], s36 offen offset:4 sc1", [6])
    stamp(a, 9)
    a("""L_f_tok:
    s_cmp_lg_u32 s42, 0
    s_cbranch_scc1 L_f_next""")
    ld = "s_mov_b32 s37, s40\n" + "\n".join(f"buffer_load_dwordx2 {vr(32+2*i,2)}, v10, s[24:27], s37 offen sc1\n" +
        (f"buffer_load_dwordx2 {vr(80+2*(i//4),2)}, v11, s[24:27], s37 offen offset:1024 sc1\n" if i % 4 == 0 else "") + "s_add_u32 s37, s37, 10240" for i in range(24))
    poll(a, ld, [33 + 2 * i for i in range(30)])
    for i in range(1, 24):
        a(f"v_add_f32 v32, v32, v{32+2*i}")
    for i in range(1, 6):
        a(f"v_add_f32 v80, v80, v{80+2*i}")
    sigmoid(a, 14, "v18")
    a(f"""v_mov_b32 v81, v80
    v_mul_f32 v32, v32, v14
    s_nop 0
    v_permlane32_swap_b32 v80, v81
    v_add_f32 v80, v80, v81
    v_mov_b32 v81, v80
    ds_write_b32 v12, v32 offset:{L_Y-L_MISC}
    s_nop 0
    v_permlane16_swap_b32 v80, v81
    v_add_f32 v80, v80, v81
    v_mul_f32 v80, v80, v14
    ds_write_b32 v13, v80 offset:{L_Y-L_MISC+256}
    L_f_next:
    s_mov_b32 s42, s43
    s_add_u32 s40, s40, 8
    v_mov_b32 v18, v19
    v_add_u32 v12, 320, v12
    v_add_u32 v13, 320, v13
    s_add_u32 s41, s41, 1
    s_cmp_lt_u32 s41, 2
    s_cbranch_scc1 L_f_tok""")
    lds_add(a, O_Y)
    a("s_waitcnt lgkmcnt(0)")
    stamp(a, 10)
    a("L_f_end:\ns_waitcnt lgkmcnt(0)")
    finish(a)


def main(out):
    a = Asm()
    head = f"""; gated mix of sliding-window attention and a top-2 routed FFN: one fused launch (written by a generator script)
; @launch grid=(256,1,1) block=(640,1,1) lds={LDS_BYTES}
.amdgcn_target "amdgcn-amd-amdhsa--gfx950"
.text
"""
    entry(a)
    loader(a)
    compute(a)
    stubs = attention(a)
    outproj(a)
    n0 = len(a.lines)
    helper1(a)
    if OPT["stamp"] == 3:
        body_, out_, k, skip = a.lines[n0:], [], 0, False
        for ln in body_:
            if "s_memrealtime" in ln or "s_memtime" in ln:
                continue
            if "s_cbranch_scc1 L_h_g" in ln: skip = True
            if ln.startswith("L_h_g:"): skip = False
            if ln.strip() == "s_endpgm":
                out_.append("    s_branch L_stampall")
                continue
            out_.append(ln)
            if (ln.strip() == "s_barrier" and not skip) or ("ds_write_b32 v30, v5 offset:4" in ln):
                out_.append(f"    s_memrealtime s[{62+2*k}:{63+2*k}]"); k += 1
        a.lines[n0:] = out_
    ffn(a)
    router_loader(a)
    router(a)
    att_stubs(a, stubs)
    stamp_out(a)
    a("L_exit:\ns_endpgm\nL_code_end:")
    body = a.text().replace("s_mov_b32 s43, 0\n    s_waitcnt lgkmcnt(0)", "s_mov_b32 s43, 0\n    s_movk_i32 s45, 0x4000\n    s_waitcnt lgkmcnt(0)")
    if OPT["al"]:
        body = align_fix(body, [("L_g_loop", "L_g_end"), ("L_att_go", "L_att_fin"), ("L_op_loop", "L_op_end")])
    bad = check_hazards(body)
    tail = f""".section .rodata,"a"
.p2align 6
.amdhsa_kernel {NAME}_kernel
  .amdhsa_next_free_vgpr 168
  .amdhsa_next_free_sgpr 96
  .amdhsa_accum_offset 168
  .amdhsa_group_segment_fixed_size 0
  .amdhsa_kernarg_size 96
  .amdhsa_user_sgpr_count 2
  .amdhsa_user_sgpr_kernarg_segment_ptr 1
  .amdhsa_system_sgpr_workgroup_id_x 1
.end_amdhsa_kernel
"""
    open(out, "w").write(head + body + tail)
    print("written", out, "hazards:", len(bad))


if __name__ == "__main__":
    main(sys.argv[1])
```

```python
import sys, struct
from asmlib import Asm, vr, sr, check_hazards, align_fix

NAME = "gated_mix__sliding_block__moe_arch_mod__prompt"
def f32(x): return "0x%08x" % struct.unpack("<I", struct.pack("<f", x))[0]
LOG2E = 1.4426950408889634
QSCALE = (20 ** -0.5) * LOG2E

OPT = dict(stamp=0, dual=0, pre=0, xnt="", fnt="", rot=1, b11=0, wpf=0, rnt="", worot=2, fprio=3, cearly=1, aprio=2, tlb=0, hdel=5, dly=0, fwm=0, serp=1, xs="0_0", wsn=0, ws="0_2", fwe=8, fat=0, nowo=0, xsc=0, epx=0, rowmap=1, qloc=1, qat=0, tlb0=0, wod=0, wack=1, qown=0, dbg=0, gprio=3, ones=1, gx=0, lord=0, wfl="", nl0=5, al=1, pf=1, xpf=0, swap=0, prio=1, osc="", forceimp=0, forcefb=0, probe="", pwg=109+512, stl=1, stw=0, nocand=0, pcyc=0, wmall=1)
for _a in sys.argv[2:]:
    k, v = _a.split("=")
    OPT[k] = int(v) if v.lstrip("-").isdigit() else v

WS_L, WS_R = 0, 0x800000
WS_G, WS_CAND, WS_XID, WS_FL, WS_FP, WS_FO = 0x1000000, 0x1010000, 0x1020000, 0x1030000, 0x1040000, 0x1050000
WS_P1, WS_P2, WS_EP, WS_ST, WS_END = 0x1060000, 0x10E0000, 0x1120000, 0x1200000, 0x1300000
WS_FR = 0x1038000
XB = 240 * 4096
CS = 8192 + 64
L_K, L_V = 0, 3 * CS + 64
L_WO = 49664
L_ONES = L_WO + 102400 + 192
L_MISC = L_ONES + 5120 + 64
L_H, L_Y = L_MISC + 256, L_MISC + 512
LDS_BYTES = 163840
L_RW = 49152
L_FW = L_WO + 13 * 5120
L_XT = L_FW + 24576
L_WV = L_FW
M_PURE, M_HALO, M_TOP = L_MISC, L_MISC + 4, L_MISC + 16
O_WO, O_FD, O_ATT, O_Y, O_R, O_B2 = 8, 12, 32, 36, 40, 44
assert L_V % 256 == 0 and L_ONES % 256 == 192 and L_XT + 10240 <= L_WO + 102400 and L_Y + 1920 <= LDS_BYTES
SPIN = 0x8000

WAVE, XCD, LOC, RBL, CT, TAG, PURE = 28, 29, 30, 31, 32, 60, 61
SX, SW, SS, SA, SB = 16, 20, 24, 52, 56


def srd(a, d, p, n):
    a(f"""s_mov_b32 s{d}, s{p}
    s_mov_b32 s{d+1}, s{p+1}
    s_mov_b32 s{d+2}, {n}
    s_mov_b32 s{d+3}, 0x20000""")


def stamp(a, i):
    if OPT["probe"]:
        if str(i) in OPT["probe"].split("_"):
            a(f"{'s_memtime' if OPT['pcyc'] else 's_memrealtime'} s[{62+2*i}:{63+2*i}]\ns_waitcnt lgkmcnt(0)")
        return
    if OPT["stamp"] == 3:
        if i == 0:
            a("s_memrealtime s[94:95]\ns_memtime s[62:63]")
        if i in (4, 8):
            a(f"s_memrealtime s[{62+2*i}:{63+2*i}]\ns_memtime s[{64+2*i}:{65+2*i}]")
        return
    if OPT["stamp"]:
        if i == 0:
            a("s_memrealtime s[94:95]")
            for j in range(1, 15):
                a(f"s_mov_b32 s{62+2*j}, 0")
        a(f"{'s_memtime' if OPT['stamp'] == 1 else 's_memrealtime'} s[{62+2*i}:{63+2*i}]\ns_waitcnt lgkmcnt(0)")


def finish(a, main=False):
    if OPT["stamp"] == 3 and not main:
        a("s_endpgm")
    elif OPT["stamp"]:
        a("s_branch L_stampout")
    else:
        a("s_endpgm")


def stamp_out(a):
    if OPT["stamp"]:
        n = 14
        a(f"""L_stampout:
        s_waitcnt vmcnt(0)
        {'s_memtime' if OPT['stamp'] != 2 else 's_memrealtime'} s[{62+2*n}:{63+2*n}]
        s_memrealtime s[92:93]
        s_waitcnt lgkmcnt(0)
        s_lshl_b32 s3, s2, 4
        s_add_u32 s3, s3, s{WAVE}
        s_lshl_b32 s3, s3, 7
        s_add_u32 s3, s3, {WS_ST}
        s_mov_b64 exec, 1
        v_mov_b32 v0, 0""")
        for i in (range(n + 1) if OPT["stamp"] != 3 else (0, 4, 5, 8, 9, 14)):
            a(f"v_mov_b32 v1, s{62+2*i}\nbuffer_store_dword v1, v0, s[24:27], s3 offen offset:{4*i}")
        for i in range(2, 10 if OPT["stamp"] != 3 else 0):
            a(f"v_readlane_b32 s4, v166, {i}\ns_nop 1\nv_mov_b32 v1, s4\nbuffer_store_dword v1, v0, s[24:27], s3 offen offset:{64+4*(i-2)}")
        a(f"v_mov_b32 v1, s{PURE}\nbuffer_store_dword v1, v0, s[24:27], s3 offen offset:116")
        a("v_mov_b32 v1, s94\nbuffer_store_dword v1, v0, s[24:27], s3 offen offset:120")
        a("v_mov_b32 v1, s92\nbuffer_store_dword v1, v0, s[24:27], s3 offen offset:124")
        a("s_endpgm")
        if OPT["stamp"] == 3:
            a(f"""L_stampall:
            s_memrealtime s[88:89]""")
            lds_wait(a, O_ATT, 8)
            a(f"""s_lshl_b32 s3, s2, 4
            s_add_u32 s3, s3, s{WAVE}
            s_lshl_b32 s3, s3, 7
            s_add_u32 s3, s3, {WS_ST}
            v_mov_b32 v2, 0""")
            for i in range(14):
                a(f"v_writelane_b32 v2, s{62+2*i}, {i}")
            a("""v_writelane_b32 v2, s94, 30
            v_lshlrev_b32 v3, 2, v1
            s_mov_b64 exec, 0xffffffff
            buffer_store_dword v2, v3, s[24:27], s3 offen
            s_endpgm""")


def wave_max_u32(a, v, sdst):
    for m in ("row_shr:1 row_mask:0xf bank_mask:0xf bound_ctrl:1", "row_shr:2 row_mask:0xf bank_mask:0xf bound_ctrl:1",
              "row_shr:4 row_mask:0xf bank_mask:0xf bound_ctrl:1", "row_shr:8 row_mask:0xf bank_mask:0xf bound_ctrl:1",
              "row_bcast:15 row_mask:0xa bank_mask:0xf", "row_bcast:31 row_mask:0xc bank_mask:0xf"):
        a(f"s_nop 1\nv_max_u32_dpp v{v}, v{v}, v{v} {m}")
    a(f"s_nop 0\nv_readlane_b32 s{sdst}, v{v}, 63")


def top2(a, k1, k2, t, s1, s2, sm):
    a(f"v_max_u32 v{t}, v{k1}, v{k2}")
    wave_max_u32(a, t, s1)
    a(f"""s_nop 1
    v_cmp_ne_u32 s[{sm}:{sm+1}], s{s1}, v{k1}
    s_nop 1
    v_cndmask_b32_e64 v{k1}, 0, v{k1}, s[{sm}:{sm+1}]
    v_cmp_ne_u32 s[{sm}:{sm+1}], s{s1}, v{k2}
    s_nop 1
    v_cndmask_b32_e64 v{k2}, 0, v{k2}, s[{sm}:{sm+1}]
    v_max_u32 v{t}, v{k1}, v{k2}""")
    wave_max_u32(a, t, s2)


def key_decode(a, sk, stok, sval, st):
    a(f"""s_and_b32 s{stok}, s{sk}, 0xffff
    s_sub_u32 s{stok}, 0xffff, s{stok}
    s_and_b32 s{stok}, s{stok}, 0x7ff
    s_ashr_i32 s{st}, s{sk}, 31
    s_not_b32 s{st}, s{st}
    s_or_b32 s{st}, s{st}, 0x80000000
    s_xor_b32 s{sval}, s{sk}, s{st}
    s_and_b32 s{sval}, s{sval}, 0xffff0000""")


def sigmoid(a, d, s):
    a(f"""v_mul_f32 v{d}, {f32(-LOG2E)}, {s}
    v_exp_f32 v{d}, v{d}
    s_nop 0
    v_add_f32 v{d}, 1.0, v{d}
    v_rcp_f32 v{d}, v{d}
    s_nop 0""")


def epoch_load(a):
    a(f"""s_add_u32 s14, s12, {WS_EP}
    s_addc_u32 s15, s13, 0
    s_load_dword s{TAG}, s[14:15], 0""")


def epoch_fin(a):
    a(f"s_waitcnt lgkmcnt(0)\ns_add_u32 s{TAG}, s{TAG}, 0x9e3779b9")


_uid = [0]
_site = [0]
def uid(p):
    _uid[0] += 1
    return f"L_{p}{_uid[0]}"


def poll(a, load, tagregs, mask=None, tmp=9, pre=False):
    lp, out = uid("poll"), uid("pout")
    a(f"s_mov_b32 s50, {SPIN}")
    if pre:
        a(f"s_branch {lp}p")
    a(f"{lp}:")
    a(load)
    if pre:
        a(f"{lp}p:")
    a(f"""s_sub_u32 s50, s50, 1
    s_cbranch_scc1 {out}
    s_waitcnt vmcnt(0)""")
    if len(tagregs) == 1:
        a(f"v_cmp_ne_u32 vcc, s{TAG}, v{tagregs[0]}")
    else:
        a(f"v_xor_b32 v{tmp}, s{TAG}, v{tagregs[0]}")
        for r in tagregs[1:]:
            a(f"v_bitop3_b32 v{tmp}, v{tmp}, v{r}, s{TAG} bitop3:0xf6")
        a(f"v_cmp_ne_u32 vcc, 0, v{tmp}")
    if mask:
        a(f"s_and_b64 vcc, vcc, {mask}")
    if OPT["dbg"]:
        _site[0] += 1
        print("site", _site[0], load.split("\n")[-1][:70])
        a(f"""s_cbranch_vccnz {lp}
        s_branch {out}x
        {out}:
        s_waitcnt vmcnt(0)
        s_lshl_b32 s50, s2, 4
        s_add_u32 s50, s50, {_site[0]}
        s_lshl_b32 s50, s50, 8
        s_add_u32 s50, s50, {WS_ST}
        v_lshlrev_b32 v164, 2, v1
        v_xor_b32 v165, s{TAG}, v{tagregs[0]}
        v_or_b32 v165, 0x80000000, v165
        buffer_store_dword v165, v164, s[24:27], s50 offen
        {out}x:
        s_waitcnt vmcnt(0)""")
        return
    a(f"s_cbranch_vccnz {lp}\n{out}:\ns_waitcnt vmcnt(0)")


def spoll(a, loads, pairs):
    lp, out = uid("sp"), uid("so")
    a(f"s_mov_b32 s50, {SPIN}\n{lp}:")
    a(loads)
    a(f"""s_waitcnt lgkmcnt(0)
    s_sub_u32 s50, s50, 1
    s_cbranch_scc1 {out}
    s_xor_b64 s[36:37], s[{pairs[0]}:{pairs[0]+1}], s[38:39]""")
    for p in pairs[1:]:
        a(f"""s_xor_b64 s[{p}:{p+1}], s[{p}:{p+1}], s[38:39]
        s_or_b64 s[36:37], s[36:37], s[{p}:{p+1}]""")
    a(f"s_cbranch_scc1 {lp}\n{out}:")


def lds_wait(a, off, val, vt=9, pre=False):
    lp, out = uid("lw"), uid("lo")
    a(f"s_mov_b32 s50, {SPIN*8}")
    if pre:
        a(f"s_branch {lp}p")
    a(f"""{lp}:
    ds_read_b32 v{vt}, v30 offset:{off}""")
    if pre:
        a(f"{lp}p:")
    a(f"""s_sub_u32 s50, s50, 1
    s_cbranch_scc1 {out}
    s_waitcnt lgkmcnt(0)
    v_cmp_gt_u32 vcc, {val}, v{vt}
    s_cbranch_vccnz {lp}
    {out}:""")


def lds_add(a, off, vt=9):
    a(f"""v_mov_b32 v{vt}, 1
    s_mov_b64 exec, 1
    ds_add_u32 v30, v{vt} offset:{off}
    s_mov_b64 exec, -1""")


def flag_store(a, soff, local, vt=8):
    a(f"""v_mov_b32 v{vt}, s{TAG}
    v_mov_b32 v{vt+1}, 0
    s_mov_b64 exec, 1""")
    if local:
        l1, l2 = uid("fs"), uid("fe")
        a(f"""s_cmp_eq_u32 s{PURE}, 0
        s_cbranch_scc1 {l1}
        buffer_store_dword v{vt}, v{vt+1}, s[24:27], s{soff} offen
        s_branch {l2}
        {l1}:
        buffer_store_dword v{vt}, v{vt+1}, s[24:27], s{soff} offen sc1
        {l2}:""")
    else:
        a(f"buffer_store_dword v{vt}, v{vt+1}, s[24:27], s{soff} offen sc1")
    a("s_mov_b64 exec, -1")


def two_flavours(a, body):
    l1, l2 = uid("imp"), uid("ime")
    a(f"s_cmp_eq_u32 s{PURE}, 0\ns_cbranch_scc1 {l1}")
    body("")
    a(f"s_branch {l2}\n{l1}:")
    body("sc1")
    a(f"{l2}:")


def router_loader(a):
    a("""L_rld:
    s_load_dwordx2 s[8:9], s[0:1], 16
    s_add_u32 s41, s40, 98304
    s_branch L_rld_issue
    L_rld_loop:
    s_waitcnt vmcnt(12) lgkmcnt(0)
    s_barrier
    L_rld_issue:
    s_lshl_b32 s36, s33, 7
    s_add_u32 s36, s36, s34""")
    for n in range(4):
        a(f"""s_add_u32 m0, s40, {n*4096}
        s_add_u32 s38, s36, {n*40960}
        buffer_load_dwordx4 v10, s[16:19], s38 offen {OPT['rnt']} lds""")
    kc_next(a, 33)
    a("""s_add_u32 s40, s40, 16384
    s_cmp_eq_u32 s40, s41
    s_cselect_b32 s36, 98304, 0
    s_sub_u32 s40, s40, s36
    s_add_u32 s42, s42, 1
    s_cmp_lt_u32 s42, 4
    s_cbranch_scc1 L_rld_issue
    s_cmp_lt_u32 s42, 10
    s_cbranch_scc1 L_rld_loop""")
    srd(a, SS, 12, WS_END)
    srd(a, SW, 8, 819200)
    a(f"""s_add_u32 s{TAG}, s{TAG}, 0x9e3779b9
    v_mov_b32 v30, {M_PURE}""")
    for n in (12, 8, 4, 0):
        a(f"s_waitcnt vmcnt({n})\ns_barrier")
    if OPT["wmall"]:
        lds_wait(a, O_FD, 1)
        a(f"""v_min_u32 v5, 49, v1
        v_lshlrev_b32 v5, 7, v5
        s_lshl_b32 s36, s{XCD}, 1
        s_add_u32 s36, s36, s{RBL}
        s_lshl_b32 s36, s36, 2
        s_add_u32 s36, s36, s{WAVE}
        s_sub_u32 s36, s36, 4
        s_mul_i32 s36, s36, 12800
        s_add_u32 s37, s36, 6400
        buffer_load_dword v167, v5, s[20:23], s36 offen
        buffer_load_dword v167, v5, s[20:23], s37 offen""")
    a("s_branch L_att_setup")


def kc_init(a):
    def nib(o):
        v = sum(x << (4 * i) for i, x in enumerate(o))
        return v & 0xffffffff, v >> 32
    n0, n1, n2 = nib(range(10)), nib([1, 0, 3, 2, 5, 4, 7, 6, 9, 8]), nib([0, 2, 1, 4, 3, 6, 5, 8, 7, 9])
    a(f"s_mov_b32 s46, {n0[0]:#x}\ns_movk_i32 s47, {n0[1]:#x}")
    if OPT["swap"]:
        a(f"""s_and_b32 s36, s{LOC}, {3 if OPT["swap"] == 1 else 1}
        s_cmp_eq_u32 s36, 1
        s_cselect_b32 s46, {n1[0]:#x}, s46
        s_cselect_b32 s47, {n1[1]:#x}, s47
        s_cmp_eq_u32 s36, 3
        s_cselect_b32 s46, {n2[0]:#x}, s46
        s_cselect_b32 s47, {n2[1]:#x}, s47""")
    n3 = nib([2, 3, 4, 5, 6, 7, 8, 9, 0, 1])
    a(f"""s_cmp_eq_u32 s{CT}, 15
    s_cselect_b32 s46, {n3[0]:#x}, s46
    s_cselect_b32 s47, {n3[1]:#x}, s47""")


def kc_next(a, d):
    a(f"""s_and_b32 s{d}, s46, 15
    s_lshr_b64 s[46:47], s[46:47], 4""")
    if OPT["rot"]:
        a(f"""s_add_u32 s{d}, s{d}, s{XCD}
        s_sub_u32 s36, s{d}, 10
        s_cselect_b32 s{d}, s{d}, s36""")


def entry(a):
    a(f""".globl {NAME}_kernel
    .p2align 8
    .type {NAME}_kernel,@function
    {NAME}_kernel:""")
    a("""s_cmp_ge_u32 s2, 256
    s_cbranch_scc1 L_exit""")
    stamp(a, 0)
    a(f"""s_load_dwordx4 s[4:7], s[0:1], 0
    s_load_dwordx2 s[12:13], s[0:1], 88
    v_lshrrev_b32 v2, 6, v0
    v_and_b32 v1, 63, v0
    v_readfirstlane_b32 s{WAVE}, v2
    s_and_b32 s{XCD}, s2, 7
    s_lshr_b32 s{LOC}, s2, 3
    s_and_b32 s{RBL}, s{LOC}, 1
    s_lshr_b32 s{CT}, s{LOC}, 1
    v_lshrrev_b32 v4, 4, v1""")
    if OPT["pf"]:
        a(f"""s_cmp_lg_u32 s{WAVE}, 0
        s_cbranch_scc1 L_nopf
        s_getpc_b64 s[36:37]
        L_pc:
        s_and_b32 s38, s{LOC}, 3
        s_mul_i32 s38, s38, 5760
        v_min_u32 v5, 44, v1
        v_lshl_add_u32 v5, v5, 7, s38
        v_min_u32 v5, L_code_end-L_pc-4, v5
        global_load_dword v167, v5, s[36:37]
        L_nopf:""")
    a(f"""s_cmp_lt_u32 s{WAVE}, 4
    s_cbranch_scc1 L_compute
    s_cmp_ge_u32 s{WAVE}, 8
    s_cbranch_scc1 L_help""")


def loader(a):
    a(f"""v_and_b32 v2, 3, v2
    v_lshrrev_b32 v3, 3, v1
    v_lshl_add_u32 v3, v2, 3, v3
    v_mul_u32_u24 v3, 1280, v3
    v_lshl_add_u32 v5, v2, 2, v4
    v_xor_b32 v6, v5, v1
    v_and_b32 v6, 7, v6
    v_lshl_add_u32 v10, v6, 4, v3
    v_mul_u32_u24 v5, 3840, v5
    v_lshrrev_b32 v6, 1, v2
    v_lshl_add_u32 v6, v6, 2, v4
    v_lshlrev_b32 v6, 1, v6
    v_xor_b32 v6, v6, v1
    v_and_b32 v6, 15, v6
    v_lshl_add_u32 v11, v6, 4, v5
    s_lshl_b32 s34, s{XCD}, 1
    s_add_u32 s34, s34, s{RBL}
    s_mul_i32 s34, s34, 128*1280
    s_lshl_b32 s35, s{CT}, 8
    s_and_b32 s40, s{WAVE}, 3
    s_lshl_b32 s40, s40, 10
    s_add_u32 s41, s40, 49152
    s_mov_b32 s42, 0
    s_mov_b32 s18, 2621440
    s_mov_b32 s19, 0x20000
    s_mov_b32 s22, 2457600
    s_mov_b32 s23, 0x20000""")
    kc_init(a)
    kc_next(a, 33)
    if OPT["xpf"]:
        a(f"""v_lshrrev_b32 v5, 3, v1
        s_lshl_b32 s36, s{CT}, 3
        v_add_u32 v5, s36, v5
        v_mul_u32_u24 v5, 1280, v5
        v_and_b32 v6, 7, v1
        v_add3_u32 v6, v6, {"s%d" % XCD if OPT["rot"] else 0}, 2
        v_subrev_u32 v7, 10, v6
        v_min_u32 v6, v6, v7
        v_lshl_add_u32 v12, v6, 7, v5""")
    a("""s_waitcnt lgkmcnt(0)
    s_mov_b32 s16, s4
    s_mov_b32 s17, s5
    s_mov_b32 s20, s6
    s_mov_b32 s21, s7""")
    epoch_load(a)
    stamp(a, 1)
    if OPT["dly"]:
        a(f"s_bitcmp1_b32 s{CT}, 0\ns_cbranch_scc0 L_nd\ns_sleep {OPT['dly']}\nL_nd:")
    a(f"""s_cmp_eq_u32 s{CT}, 15
    s_cbranch_scc1 L_rld
    s_branch L_ld_issue
    L_ld_loop:
    s_waitcnt vmcnt(8) lgkmcnt(0)
    s_barrier""")
    if OPT["stamp"] in (1, 2):
        a("""s_memrealtime s[44:45]
        s_waitcnt lgkmcnt(0)
        s_mov_b32 m0, s42
        s_nop 0
        v_writelane_b32 v166, s44, m0""")
    a(f"""L_ld_issue:
    s_lshl_b32 s36, s33, 7
    s_add_u32 s36, s36, s34
    {"s_and_b32 s33, s33, 1" if OPT["gx"] == 1 else ""}
    s_mul_i32 s37, s33, 245760
    s_add_u32 s37, s37, s35""")
    lx = [f"""s_add_u32 m0, s40, {n*4096}
        s_add_u32 s38, s36, {n*40960}
        buffer_load_dwordx4 v10, s[16:19], s38 offen {OPT['xnt']} lds""" for n in range(4)]
    lw = [f"""s_add_u32 m0, s40, {L_RW+n*4096}
        s_add_u32 s39, s37, {n*61440}
        buffer_load_dwordx4 v11, s[20:23], s39 offen {OPT['wfl']} lds""" for n in range(4)]
    for l in {0: [x for p in zip(lx, lw) for x in p], 1: lw + lx, 2: lx + lw}[OPT["lord"]]:
        a(l)
    kc_next(a, 33)
    if OPT["xpf"]:
        a(f"""s_add_u32 s36, s42, s{WAVE}
        s_cmp_lg_u32 s36, 4
        s_cbranch_scc1 L_noxpf
        buffer_load_dword v167, v12, s[16:19], s34 offen {OPT['xnt']}
        L_noxpf:""")
    a("""s_add_u32 s40, s40, 16384
    s_cmp_eq_u32 s40, s41
    s_cselect_b32 s36, 49152, 0
    s_sub_u32 s40, s40, s36
    s_add_u32 s42, s42, 1
    s_cmp_lt_u32 s42, 2
    s_cbranch_scc1 L_ld_issue
    s_cmp_lt_u32 s42, 10
    s_cbranch_scc1 L_ld_loop""")
    srd(a, SS, 12, WS_END)
    a(f"s_add_u32 s{TAG}, s{TAG}, 0x9e3779b9")
    pre = 0
    a(f"""s_waitcnt vmcnt({8+pre})
    s_barrier""")
    stamp(a, 2)
    a(f"""s_waitcnt vmcnt({pre})
    s_barrier""")
    stamp(a, 3)
    a("s_branch L_att_setup")


ACC, F0, F1 = 32, 96, 128
def compute(a):
    a("L_compute:")
    if (OPT["qloc"] and OPT["qat"] == -1) or OPT["tlb0"]:
        a(f"""s_mul_i32 s36, s{XCD}, {XB}
        s_mov_b32 s26, {WS_END}
        s_mov_b32 s27, 0x20000""")
        if OPT["qloc"] and OPT["qat"] == -1:
            a(f"""s_lshl_b32 s37, s{LOC}, 2
            s_add_u32 s37, s37, s{WAVE}
            s_mul_i32 s37, s37, 2560
            s_add_u32 s37, s37, s36
            v_min_u32 v5, 19, v1
            v_lshlrev_b32 v5, 7, v5""")
        if OPT["tlb0"]:
            a(f"""s_sub_u32 s38, s36, {XB}
            s_max_i32 s38, s38, 0
            v_min_u32 v6, 2, v1
            v_mul_u32_u24 v6, {XB-64}, v6""")
        a("""s_waitcnt lgkmcnt(0)
        s_mov_b32 s24, s12
        s_mov_b32 s25, s13""")
        if OPT["qloc"] and OPT["qat"] == -1:
            a("buffer_load_dword v167, v5, s[24:27], s37 offen sc1")
        if OPT["tlb0"]:
            a(f"""s_cmp_lg_u32 s{WAVE}, 1
            s_cbranch_scc1 L_not0
            buffer_load_dword v167, v6, s[24:27], s38 offen sc1
            L_not0:""")
    a(f"""v_and_b32 v3, 15, v1
    s_and_b32 s36, s{WAVE}, 1          ; wc
    s_lshr_b32 s37, s{WAVE}, 1         ; wt
    s_lshl_b32 s38, s37, 13
    s_lshl_b32 s39, s{WAVE}, 12
    s_cmp_eq_u32 s{CT}, 15
    s_cselect_b32 s38, s39, s38
    v_lshrrev_b32 v5, 1, v3
    v_xor_b32 v5, v5, v4
    v_lshlrev_b32 v5, 4, v5
    v_lshl_add_u32 v12, v3, 7, v5
    v_add_u32 v12, s38, v12
    v_xor_b32 v13, 64, v12
    v_bfe_u32 v5, v1, 2, 2             ; r
    v_lshl_add_u32 v6, v4, 3, v5
    v_lshlrev_b32 v6, 8, v6
    v_and_b32 v7, 1, v4
    v_lshl_add_u32 v5, v7, 2, v5
    v_lshlrev_b32 v5, 1, v5            ; f(row)
    v_and_b32 v7, 3, v1
    s_lshl_b32 s39, s36, 3
    v_add_u32 v7, s39, v7
    v_xor_b32 v5, v5, v7
    v_lshl_add_u32 v6, v5, 4, v6
    v_bfe_u32 v5, v1, 1, 1
    v_lshl_add_u32 v6, v5, 3, v6
    v_add_u32 v14, {L_RW}, v6
    v_xor_b32 v15, 8, v14
    v_xor_b32 v16, 64, v14
    v_xor_b32 v17, 0x48, v14
    v_lshlrev_b32 v18, 4, v3
    v_lshl_add_u32 v18, v4, 12, v18
    v_mov_b32 v19, {M_PURE}
    s_mul_i32 s34, s{XCD}, {XB}
    s_lshl_b32 s39, s{CT}, 16
    s_add_u32 s34, s34, s39
    s_lshl_b32 s39, s36, 15
    s_add_u32 s34, s34, s39
    s_lshl_b32 s39, s{RBL}, 11
    s_add_u32 s34, s34, s39
    s_lshl_b32 s39, s37, 10
    s_add_u32 s34, s34, s39
    s_add_u32 s35, s34, 16384
    s_mov_b32 s42, 0
    s_mov_b32 s43, 0
    s_waitcnt lgkmcnt(0)""")
    epoch_load(a)
    srd(a, SS, 12, WS_END)
    for i in range(64):
        a(f"v_mov_b32 v{ACC+i}, 0")
    epoch_fin(a)
    stamp(a, 1)
    a(f"s_cmp_eq_u32 s{CT}, 15\ns_cbranch_scc1 L_router")

    def reads(ks, F):
        r = []
        def A(j):
            r.append(f"ds_read_b64_tr_b16 v[{F+4*j}:{F+4*j+1}], v{14+j} offset:{ks*8192}")
            r.append(f"ds_read_b64_tr_b16 v[{F+4*j+2}:{F+4*j+3}], v{14+j} offset:{ks*8192+1024}")
        A(0)
        for t in range(4):
            r.append(f"ds_read_b128 {vr(F+16+4*t,4)}, v{12+ks} offset:{t*2048}")
        A(1); A(2); A(3)
        return r

    def phase(F, rd, bar, extra):
        a("s_waitcnt lgkmcnt(6)")
        n = 0
        for j in range(4):
            if j == 1:
                a("s_waitcnt lgkmcnt(0)")
                if bar:
                    a("s_cbranch_scc0 L_g_nb\ns_barrier\nL_g_nb:")
            for t in (range(4) if not (OPT["serp"] and j & 1) else range(3, -1, -1)):
                d = ACC + (j * 4 + t) * 4
                a(f"v_mfma_f32_16x16x32_bf16 {vr(d,4)}, {vr(F+4*j,4)}, {vr(F+16+4*t,4)}, {vr(d,4)}")
                if j == 0:
                    a(extra[t])
                else:
                    a(rd[n]); n += 1

    a("s_barrier")
    stamp(a, 2)
    for l in reads(0, F0):
        a(l)
    a("L_g_loop:")
    phase(F0, reads(1, F1), False, ["""s_add_u32 s43, s43, 1
        s_cmp_eq_u32 s43, 3""", "s_cselect_b32 s44, -32768, 16384" if False else """s_cselect_b32 s44, 0xffff8000, s45
        """, "s_cselect_b32 s43, 0, s43\ns_add_u32 s42, s42, 1", ""])
    phase(F1, reads(0, F0), True, ["v_add_u32 v12, s44, v12\nv_add_u32 v13, s44, v13", "v_add_u32 v14, s44, v14\nv_add_u32 v15, s44, v15",
                                   "v_add_u32 v16, s44, v16\nv_add_u32 v17, s44, v17", "s_cmp_lt_u32 s42, 10"])
    a("s_cbranch_scc1 L_g_loop\nL_g_end:")
    stamp(a, 3)
    a("ds_read_b32 v20, v19")

    def epi(scale, sc="sc1"):
        for p in range(2):
            for t in range(4):
                o = F1 + (p * 4 + t) * 4
                for h in range(2):
                    d = ACC + ((2 * p + h) * 4 + t) * 4
                    if scale:
                        a(f"v_pk_mul_f32 {vr(d,2)}, {vr(d,2)}, s[38:39]\nv_pk_mul_f32 {vr(d+2,2)}, {vr(d+2,2)}, s[38:39]")
                    a(f"v_cvt_pk_bf16_f32 v{o+2*h}, v{d}, v{d+1}\nv_cvt_pk_bf16_f32 v{o+2*h+1}, v{d+2}, v{d+3}")
                a(f"buffer_store_dwordx4 {vr(o,4)}, v18, s[24:27], s{34+p} offen offset:{t*256} {sc}")
    a(f"""s_cmp_ge_u32 s{CT}, 5
    s_cbranch_scc1 L_noscale
    s_mov_b32 s38, {f32(QSCALE)}
    s_mov_b32 s39, s38""")
    if OPT["qloc"]:
        a(f"""s_waitcnt lgkmcnt(0)
        v_cmp_eq_u32 vcc, 0, v20
        s_cbranch_vccnz L_q_far""")
        epi(True, "")
        a("s_branch L_pubflag\nL_q_far:")
        for i in range(0, 64, 2):
            a(f"v_pk_mul_f32 {vr(ACC+i,2)}, {vr(ACC+i,2)}, s[38:39]")
        a("L_noscale:")
    else:
        epi(True)
        a("s_branch L_pubflag\nL_noscale:")
    epi(False)
    a(f"""L_pubflag:
    s_lshl_b32 s36, s{XCD}, 4
    s_add_u32 s36, s36, s{CT}
    s_lshl_b32 s36, s36, 1
    s_and_b32 s37, s{WAVE}, 1
    s_add_u32 s36, s36, s37
    s_lshl_b32 s40, s36, 7
    s_lshl_b32 s36, s36, 4
    s_lshl_b32 s37, s{RBL}, 3
    s_and_b32 s38, s{WAVE}, 2
    s_lshl_b32 s38, s38, 1
    s_add_u32 s37, s37, s38
    s_add_u32 s36, s36, s37
    s_add_u32 s36, s36, {WS_FL}
    s_add_u32 s40, s40, s37
    s_add_u32 s40, s40, {WS_FR}
    s_waitcnt lgkmcnt(0)
    v_readfirstlane_b32 s{PURE}, v20
    s_waitcnt vmcnt(0)""")
    stamp(a, 4)
    flag_store(a, 36, True)
    a(f"""s_mov_b64 exec, 1
    v_mov_b32 v7, 1
    s_cmp_lt_u32 s{CT}, 5
    s_cbranch_scc1 L_norf
    buffer_store_dword v8, v9, s[24:27], s40 offen sc1
    L_norf:
    ds_add_u32 v19, v7 offset:{O_R}
    s_mov_b64 exec, -1""")


def router(a):
    a("L_router:")
    kc_init(a)
    kc_next(a, 33)
    a(f"""v_and_b32 v5, 1, v1
    v_lshlrev_b32 v5, 11, v5
    v_lshl_add_u32 v14, v4, 4, v5
    v_add_u32 v14, {L_WV}, v14
    L_r_loop:
    s_barrier
    s_lshl_b32 s36, s33, 7
    v_add_u32 v15, s36, v14""")
    for ks in range(2):
        a(f"""ds_read_b128 {vr(F0+12*ks,4)}, v15 offset:{ks*64}
        ds_read_b128 {vr(F0+12*ks+4,4)}, v{12+ks}
        ds_read_b128 {vr(F0+12*ks+8,4)}, v{12+ks} offset:2048""")
    kc_next(a, 33)
    a("""s_add_u32 s43, s43, 1
    s_cmp_eq_u32 s43, 6
    s_cselect_b32 s44, 0xfffec000, s45
    s_cselect_b32 s43, 0, s43
    v_add_u32 v12, s44, v12
    v_add_u32 v13, s44, v13
    s_waitcnt lgkmcnt(0)""")
    for ks in range(2):
        for t in range(2):
            a(f"v_mfma_f32_16x16x32_bf16 {vr(ACC+4*t,4)}, {vr(F0+12*ks,4)}, {vr(F0+12*ks+4+4*t,4)}, {vr(ACC+4*t,4)}")
    a(f"""s_add_u32 s42, s42, 1
    s_cmp_lt_u32 s42, 10
    s_cbranch_scc1 L_r_loop
    s_nop 1
    s_lshl_b32 s36, s{XCD}, 8
    s_lshl_b32 s37, s{RBL}, 7
    s_add_u32 s36, s36, s37
    s_lshl_b32 s37, s{WAVE}, 5
    s_add_u32 s36, s36, s37
    s_mov_b32 s37, {WS_G}""")
    stamp(a, 3)
    for t in range(2):
        a(f"""v_add3_u32 v20, s36, v3, {16*t}
        v_cvt_pk_bf16_f32 v{21+t}, v{ACC+4*t}, v{ACC+4*t+1}
        v_and_b32 v23, 0xffff0000, v{21+t}
        v_lshlrev_b32 v{21+t}, 16, v{21+t}""")
        sigmoid(a, 23, "v23")
        a(f"""v_cvt_pk_bf16_f32 v23, v23, v23
        v_and_b32 v{26+t}, 0xffff0000, v23
        v_lshlrev_b32 v24, 2, v20
        s_mov_b64 exec, 0xffff
        buffer_store_dword v{26+t}, v24, s[24:27], s37 offen sc1
        s_mov_b64 exec, -1
        v_ashrrev_i32 v24, 31, v{21+t}
        v_or_b32 v24, 0x80000000, v24
        v_xor_b32 v{21+t}, v{21+t}, v24
        v_and_b32 v{21+t}, 0xffff0000, v{21+t}
        v_sub_u32 v24, 0xffff, v20
        v_or_b32 v{21+t}, v{21+t}, v24""")
    top2(a, 21, 22, 25, 46, 47, 48)
    a(f"""s_lshr_b32 s36, s36, 1
    s_add_u32 s36, s36, {WS_CAND}
    v_mov_b32 v28, s46
    v_mov_b32 v29, s{TAG}
    v_mov_b32 v30, s47
    v_mov_b32 v31, s{TAG}
    v_mov_b32 v24, 0
    s_mov_b64 exec, 1
    buffer_store_dwordx4 v[28:31], v24, s[24:27], s36 offen sc1
    s_lshl_b32 s36, s{XCD}, 5
    s_add_u32 s36, s36, s{LOC}
    s_lshl_b32 s36, s36, 2
    s_add_u32 s36, s36, s{WAVE}
    s_lshl_b32 s36, s36, 2
    s_add_u32 s36, s36, {WS_FL}
    v_mov_b32 v9, 1
    s_waitcnt vmcnt(1)
    buffer_store_dword v29, v24, s[24:27], s36 offen sc1
    ds_add_u32 v19, v9 offset:{O_R}
    s_mov_b64 exec, -1""")
    stamp(a, 4)
    a(f"v_mov_b32 v30, {M_PURE}")
    lds_wait(a, O_FD, 1)
    a("s_branch L_att_setup")


Q, QH, KH, K, V, P, S0, S1, O, M = 32, 36, 38, 40, 44, 52, 64, 80, 96, 112
KA, KHA, VA, QA, QHA, G, G2, XA, XR = 12, 13, 14, 15, 16, 17, 18, 19, 20
TT, NT, HI_ = 33, 34, 35
SQ, SQH = 46, 47


def diag_mask(a, old):
    a(f"""v_lshlrev_b32 v6, 2, v4
    v_sub_u32 v6, v3, v6
    v_mov_b32 v7, 0xff800000""")
    for r in range(0, 16, 2):
        k0, k1 = (r >> 2) * 8 + (r & 3), (r >> 2) * 8 + (r & 3) + 1
        a(f"""v_cmp_le_i32 s[44:45], {k0}, v6
        v_cmp_le_i32 s[48:49], {k1}, v6
        s_nop 0
        v_cndmask_b32_e64 v{S0+r}, v7, 0, s[44:45]
        v_cndmask_b32_e64 v{S0+r+1}, v7, 0, s[48:49]""")
        if old:
            a(f"""v_cndmask_b32_e64 v{M+r}, 0, v7, s[44:45]
            v_cndmask_b32_e64 v{M+r+1}, 0, v7, s[48:49]""")


def attention(a):
    SRC = WS_L
    a("L_att_setup:")
    a(f"""s_and_b32 s31, s{LOC}, 1
    s_mul_i32 s40, s{LOC}, 5
    s_lshr_b32 s40, s40, 1            ; c0
    s_sub_u32 s{TT}, 11, s{WAVE}
    s_cmp_lt_u32 s{WAVE}, 4
    s_cselect_b32 s{TT}, s{WAVE}, s{TT}
    s_add_u32 s36, s{TT}, 1
    s_cmp_eq_u32 s{XCD}, 0
    s_cselect_b32 s{NT}, s36, 9
    s_cselect_b32 s36, 4, 17
    s_movk_i32 s37, 0xff
    s_cselect_b32 s37, 0x3ff, s37
    s_lshl_b32 s36, s36, s{TT}
    s_and_b32 s{HI_}, s36, s37
    s_lshr_b32 s36, s{LOC}, 2
    s_xor_b32 s36, s36, s31
    s_andn2_b32 s41, 1, s36
    s_lshl_b32 s41, s41, 3
    s_xor_b32 s42, s31, 1
    s_lshl_b32 s42, s42, 1
    s_mul_i32 s36, s{XCD}, 240
    s_add_u32 s36, s36, s40
    s_lshl_b32 s43, s36, 12
    s_lshl_b32 s37, s{TT}, 9
    s_add_u32 s36, s43, s37
    s_lshl_b32 s38, s31, 12
    s_add_u32 s{SQ}, s36, s38
    s_lshl_b32 s38, s42, 12
    s_add_u32 s38, s38, s41
    s_add_u32 s{SQH}, s36, s38
    v_lshlrev_b32 v10, 4, v1
    v_and_b32 v3, 31, v1
    v_lshrrev_b32 v4, 5, v1
    v_lshlrev_b32 v5, 4, v3
    v_lshl_add_u32 v{QA}, v4, 12, v5
    v_lshl_add_u32 v{QHA}, v4, 28, v5
    s_mul_i32 s38, s31, {CS}
    s_add_u32 s38, s38, s37
    v_mul_u32_u24 v6, {CS}, v4
    v_add3_u32 v{KA}, v6, v5, s38
    s_mul_i32 s38, s42, {CS}
    s_add_u32 s38, s38, s41
    s_add_u32 s38, s38, s37
    v_add_u32 v6, s38, v5
    v_mov_b32 v9, {L_ONES}
    v_cmp_eq_u32 s[44:45], 0, v4
    v_bfe_u32 v7, v1, 4, 1
    v_and_b32 v8, 3, v1
    v_add_u32 v11, 8, v9
    v_cndmask_b32_e64 v{KHA}, v11, v6, s[44:45]
    v_lshl_add_u32 v6, v7, 2, v8      ; gamma
    v_add_u32 v7, s31, v6
    v_lshrrev_b32 v8, 1, v7
    v_add_u32 v11, s40, v8
    v_lshrrev_b32 v11, 1, v11
    v_xor_b32 v7, v7, v11
    v_and_b32 v7, 1, v7
    v_mul_u32_u24 v8, {CS}, v8
    v_lshl_add_u32 v8, v7, 3, v8
    s_add_u32 s38, s37, {L_V}
    v_add_u32 v8, s38, v8
    v_cmp_gt_u32 s[44:45], 5, v6
    v_bfe_u32 v7, v1, 2, 2
    v_lshl_add_u32 v7, v4, 2, v7
    v_cndmask_b32_e64 v8, v9, v8, s[44:45]
    v_lshl_add_u32 v{VA}, v7, 4, v8""")
    diag_mask(a, True)
    a(f"""s_lshr_b32 s36, s{WAVE}, 2
    s_mul_i32 s37, s36, {L_V}
    s_add_u32 s36, s36, 1
    s_mul_i32 s36, s36, {80*4096}
    s_add_u32 s36, s36, s43
    s_and_b32 s38, s{WAVE}, 3
    s_mul_i32 s38, s38, 3
    v_and_b32 v5, 15, v1
    v_mul_u32_u24 v6, 160, v5
    v_lshrrev_b32 v7, 4, v1
    v_lshl_add_u32 v6, v7, 3, v6
    s_and_b32 s39, s{WAVE}, 3
    s_mul_i32 s44, s39, 2560
    v_add_u32 v{XA}, s44, v6
    s_and_b32 s44, s{LOC}, 3
    s_lshl_b32 s44, s44, {5 if OPT["rowmap"] else 6}
    s_lshl_b32 s45, s{XCD}, 8
    s_add_u32 s48, s44, s45
    s_and_b32 s44, s39, 1
    s_lshl_b32 s44, s44, 4
    s_add_u32 s51, s48, s44
    s_and_b32 s44, s39, 2
    s_lshl_b32 s44, s44, {6 if OPT["rowmap"] else 4}
    s_add_u32 s51, s51, s44
    s_lshl_b32 s39, s{TT}, 5
    s_add_u32 s39, s39, s45
    v_add_lshl_u32 v6, s39, v3, 2
    v_add_lshl_u32 v7, s51, v5, 2
    s_mov_b32 s39, {WS_G}
    v_add_u32 v11, {L_XT}, v{XA}
    v_mov_b32 v30, {M_PURE}
    v_mov_b32 v2, 1
    v_mov_b32 v60, s{TAG}
    v_mov_b32 v61, 0
    s_mov_b32 s40, 0""")
    for t in range(5):
        a(f"ds_read_b64 {vr(XR+2*t,2)}, v11 offset:{t*32}")
    a("s_waitcnt lgkmcnt(0)\ns_barrier")
    stamp(a, 5)
    for i in range(3):
        a(f"""s_add_u32 s44, s38, {i}
        s_lshr_b32 s45, s44, 2
        s_mul_i32 s45, s45, {CS-4096}
        s_lshl_b32 s44, s44, 10
        s_add_u32 s45, s45, s44
        s_add_u32 s45, s45, s37
        s_add_u32 m0, s45, 4096
        s_add_u32 s44, s44, s36
        buffer_load_dwordx4 v10, s[24:27], s44 offen sc1 lds""")
    a(f"""buffer_load_dwordx4 {vr(Q,4)}, v{QA}, s[24:27], s{SQ} offen sc1
    buffer_load_dwordx2 {vr(QH,2)}, v{QHA}, s[24:27], s{SQH} offen sc1
    buffer_load_dword v{G}, v6, s[24:27], s39 offen sc1
    buffer_load_dword v{G2}, v7, s[24:27], s39 offen sc1""")
    a("s_waitcnt vmcnt(0)")
    a("ds_read_b32 v31, v30")
    lds_add(a, O_B2)
    lds_wait(a, O_B2, 8)
    if OPT["aprio"]:
        a(f"s_setprio {OPT['aprio']}")
    stamp(a, 6)
    off = lambda i: (8 - i) * 512
    rdK = lambda i: f"ds_read_b128 {vr(K,4)}, v{KA} offset:{off(i)}"
    rdKH = lambda i: f"ds_read_b64 {vr(KH,2)}, v{KHA} offset:{off(i)}"
    rdV = lambda i, h: f"ds_read_b64_tr_b16 {vr(V+4*h,2)}, v{VA} offset:{off(i)+256*h}\nds_read_b64_tr_b16 {vr(V+4*h+2,2)}, v{VA} offset:{off(i)+256*h+128}"
    stubs = []
    def halo_check(tval):
        stubs.append(tval)
        a(f"s_bitcmp1_b32 s{HI_}, {tval}\ns_cbranch_scc1 L_hw{tval}\nL_hr{tval}:")
    a("L_att_go:")
    a(rdK(0)); a(rdKH(0)); a(rdV(0, 0))
    halo_check(0)
    a(f"""s_waitcnt lgkmcnt(2)
    v_mfma_f32_32x32x16_bf16 {vr(S0,16)}, {vr(K,4)}, {vr(Q,4)}, {vr(S0,16)}""")
    a(rdK(1))
    a(f"v_mfma_f32_32x32x8_bf16 {vr(S0,16)}, {vr(KH,2)}, {vr(QH,2)}, {vr(S0,16)}")
    a(rdKH(1))
    a(f"""v_readfirstlane_b32 s{PURE}, v31
    s_nop 4
    s_waitcnt lgkmcnt(0)""")

    def softq(S, q):
        for j in range(4):
            a(f"v_exp_f32 v{S+4*q+j}, v{S+4*q+j}")
        for j in range(2):
            a(f"v_cvt_pk_bf16_f32 v{P+2*q+j}, v{S+4*q+2*j}, v{S+4*q+2*j+1}")

    for i in range(9):
        S, SN = (S0, S1) if i % 2 == 0 else (S1, S0)
        halo_check(i + 1)
        if i > 0:
            a("s_waitcnt lgkmcnt(2)")
        if i < 8:
            c = vr(M, 16) if i + 1 == 8 else "0"
            a(f"v_mfma_f32_32x32x16_bf16 {vr(SN,16)}, {vr(K,4)}, {vr(Q,4)}, {c}")
        nread = 0
        if i < 7:
            a(rdK(i + 2)); nread += 1
        softq(S, 0)
        if i > 0:
            a(f"v_mfma_f32_32x32x16_bf16 {vr(O,16)}, {vr(V+4,4)}, {vr(P+4,4)}, {vr(O,16)}")
        a(rdV(i, 1)); nread += 2
        softq(S, 1)
        if i < 8:
            a(f"v_mfma_f32_32x32x8_bf16 {vr(SN,16)}, {vr(KH,2)}, {vr(QH,2)}, {vr(SN,16)}")
        if i < 7:
            a(rdKH(i + 2)); nread += 1
        softq(S, 2)
        a(f"s_waitcnt lgkmcnt({nread})")
        a(f"v_mfma_f32_32x32x16_bf16 {vr(O,16)}, {vr(V,4)}, {vr(P,4)}, {'0' if i == 0 else vr(O,16)}")
        if i < 8:
            a(rdV(i + 1, 0))
        softq(S, 3)
    a(f"""L_att_fin:
    s_waitcnt lgkmcnt(0)
    s_nop 0
    v_mfma_f32_32x32x16_bf16 {vr(O,16)}, {vr(V+4,4)}, {vr(P+4,4)}, {vr(O,16)}
    s_lshl_b32 s36, s{XCD}, 3
    s_add_u32 s36, s36, s{TT}
    s_lshl_b32 s36, s36, 5
    s_add_u32 s36, s36, s{LOC}
    s_lshl_b32 s36, s36, 2
    s_add_u32 s36, s36, {WS_FO}
    s_mov_b32 s37, {f32(2.0**-64)}
    s_mov_b32 s38, {f32(2.0**64 if not OPT['forcefb'] else 2.0**12)}
    s_nop 3
    v_rcp_f32 v8, v{O+12}
    v_cmp_nle_f32 s[44:45], s37, v{O+12}
    v_cmp_nge_f32 vcc, s38, v{O+12}
    v_mul_f32 v8, v8, v{G}
    s_or_b64 vcc, vcc, s[44:45]
    s_cbranch_vccnz L_fallback
    L_att_ok:""")
    for r in range(6):
        a(f"v_pk_mul_f32 {vr(O+2*r,2)}, {vr(O+2*r,2)}, v[8:9] op_sel_hi:[1,0]")
    for r in range(6):
        a(f"v_cvt_pk_bf16_f32 v{P+r}, v{O+2*r}, v{O+2*r+1}")
    def pub(sc):
        a(f"""buffer_store_dwordx4 {vr(P,4)}, v{QA}, s[24:27], s{SQ} offen {sc}
        buffer_store_dwordx2 {vr(P+4,2)}, v{QHA}, s[24:27], s{SQH} offen {sc}""")
        stamp(a, 7)
        a(f"""s_mov_b64 exec, 1
        ds_add_u32 v30, v2 offset:{O_ATT}
        s_waitcnt vmcnt(0)
        buffer_store_dword v60, v61, s[24:27], s36 offen {sc}
        s_mov_b64 exec, -1""")
    two_flavours(a, pub)
    stamp(a, 8)
    return stubs


def att_stubs(a, stubs):
    for t in stubs:
        a(f"L_hw{t}:")
        if t >= 8:
            a("s_branch L_att_fin")
            continue
        if t >= 2:
            a(f"s_cmp_eq_u32 s{XCD}, 0\ns_cbranch_scc1 L_att_fin")
        a(f"""s_cmp_eq_u32 s{TT}, {t}
        s_cselect_b32 s36, 1, 2
        s_mov_b32 s50, {SPIN*8}
        L_hs{t}:
        ds_read_b32 v9, v30 offset:4
        s_sub_u32 s50, s50, 1
        s_cbranch_scc1 L_hr{t}
        s_waitcnt lgkmcnt(0)
        v_cmp_gt_u32 vcc, s36, v9
        s_cbranch_vccnz L_hs{t}
        s_branch L_hr{t}""")
    a(f"""L_fallback:
    s_cmp_lg_u32 s40, 0
    s_cbranch_scc1 L_att_ok
    s_mov_b32 s40, 1""")
    diag_mask(a, False)
    a(f"""v_mov_b32 v8, 0xff800000
    v_add_u32 v5, 4096, v{KA}
    v_add_u32 v6, 4096, v{KHA}
    s_mov_b32 s36, 0
    L_fb_loop:
    ds_read_b128 {vr(K,4)}, v5
    ds_read_b64 {vr(KH,2)}, v6
    v_subrev_u32 v5, 512, v5
    v_subrev_u32 v6, 512, v6
    s_waitcnt lgkmcnt(0)
    s_cmp_eq_u32 s36, 0
    s_cbranch_scc1 L_fb_a
    s_cmp_eq_u32 s36, 8
    s_cbranch_scc1 L_fb_b
    v_mfma_f32_32x32x16_bf16 {vr(S1,16)}, {vr(K,4)}, {vr(Q,4)}, 0
    s_branch L_fb_c
    L_fb_a:
    v_mfma_f32_32x32x16_bf16 {vr(S1,16)}, {vr(K,4)}, {vr(Q,4)}, {vr(S0,16)}
    s_branch L_fb_c
    L_fb_b:
    v_mfma_f32_32x32x16_bf16 {vr(S1,16)}, {vr(K,4)}, {vr(Q,4)}, {vr(M,16)}
    L_fb_c:
    v_mfma_f32_32x32x8_bf16 {vr(S1,16)}, {vr(KH,2)}, {vr(QH,2)}, {vr(S1,16)}
    s_nop 11""")
    for r in range(0, 16, 2):
        a(f"v_max3_f32 v8, v8, v{S1+r}, v{S1+r+1}")
    a(f"""s_add_u32 s36, s36, 1
    s_cmp_lt_u32 s36, s{NT}
    s_cbranch_scc1 L_fb_loop
    v_mov_b32 v9, v8
    s_nop 1
    v_permlane32_swap_b32 v8, v9
    v_max_f32 v8, v8, v9
    v_sub_f32 v8, 0, v8
    v_and_b32 v5, 0xffff0000, v8
    v_sub_f32 v8, v8, v5
    v_and_b32 v6, 0xffff0000, v8
    v_sub_f32 v8, v8, v6
    v_lshrrev_b32 v5, 16, v5
    v_or_b32 v5, v5, v6
    v_lshrrev_b32 v8, 16, v8
    v_cmp_eq_u32 s[44:45], 0, v4
    s_nop 1
    v_cndmask_b32_e64 v{QH}, v5, v{QH}, s[44:45]
    v_cndmask_b32_e64 v{QH+1}, v8, v{QH+1}, s[44:45]
    s_branch L_att_go""")


OF, NOF, PA, WF = 64, 14, 32, 120
def outproj(a):
    a(f"""s_cmp_lt_u32 s{WAVE}, 4
    s_cbranch_scc1 L_op_main
    s_waitcnt lgkmcnt(0)""")
    def owner():
        lp, lo = uid("tv"), uid("to")
        a(f"""s_mov_b32 s50, {SPIN*8}
        {lp}:
        ds_read_b64 v[62:63], v30 offset:16
        s_sub_u32 s50, s50, 1
        s_waitcnt lgkmcnt(0)
        s_cbranch_scc1 {lo}
        v_cmp_eq_u32 vcc, 0, v62
        s_cbranch_vccnz {lp}
        {lo}:""")
        a(owner_txt)
    owner_txt = f"""v_readfirstlane_b32 s42, v62
    v_readfirstlane_b32 s43, v63
    s_and_b32 s42, s42, 0xffff
    s_lshr_b32 s32, s{LOC}, 2
    v_add_u32 v9, s51, v3
    v_mov_b32 v7, 320
    v_cmp_eq_u32 s[44:45], s43, v9
    v_cmp_eq_u32 s[48:49], s42, v9
    v_lshl_add_u32 v25, v4, 4, v30
    v_cndmask_b32_e64 v7, 0, v7, s[44:45]
    v_add_u32 v25, v25, v7
    s_or_b64 s[44:45], s[44:45], s[48:49]"""
    finish(a)
    WA = 160
    a(f"""L_op_main:
    {"s_setprio 0" if OPT["aprio"] else ""}
    s_load_dwordx2 s[8:9], s[0:1], 72
    v_and_b32 v3, 15, v1
    v_lshrrev_b32 v4, 4, v1
    v_lshrrev_b32 v5, 1, v4
    v_add_u32 v6, v4, v5
    v_lshlrev_b32 v7, 4, v3
    v_lshl_add_u32 v12, v6, 12, v7
    v_and_b32 v6, 1, v4
    v_lshl_add_u32 v8, v6, 1, v5
    v_mul_u32_u24 v9, {5*4096}, v8
    v_add_u32 v13, v9, v7
    v_mul_u32_u24 v5, 20, v5
    v_lshl_add_u32 v5, v6, 2, v5
    v_bfe_u32 v7, v1, 2, 2
    v_add_u32 v5, v5, v7
    v_mul_u32_u24 v5, 160, v5
    v_and_b32 v9, 3, v1
    v_lshlrev_b32 v9, 3, v9
    v_add_u32 v9, {L_WO}, v9
    v_add_u32 v14, v5, v9
    v_add_u32 v15, {8*6400}, v14
    v_mul_u32_u24 v8, 40, v8
    v_add3_u32 v8, v8, v7, 16
    v_mul_u32_u24 v8, 160, v8
    v_add_u32 v8, v8, v9
    v_mul_u32_u24 v6, 3200, v6
    v_add_u32 v{WA+1}, v8, v6
    v_sub_u32 v{WA}, v8, v6
    v_add_u32 v{WA}, 3200, v{WA}
    v_add_u32 v{WA+2}, {8*6400}, v{WA}
    v_add_u32 v{WA+3}, {8*6400}, v{WA+1}
    v_sub_f32 v{G2}, 1.0, v{G2}""")
    for t in range(5):
        for j in range(2):
            a(f"""v_lshlrev_b32 v{PA+4*t+2*j}, 16, v{XR+2*t+j}
            v_and_b32 v{PA+4*t+2*j+1}, 0xffff0000, v{XR+2*t+j}""")
    for i in range(20):
        a(f"v_mul_f32 v{PA+i}, v{G2}, v{PA+i}")
    for n in range(3):
        a(f"""v_add_u32 v5, {64*n}, v1
        v_mul_u32_u24 v6, 6554, v5
        v_lshrrev_b32 v6, 16, v6
        v_mul_u32_u24 v7, 10, v6
        v_sub_u32 v7, v5, v7
        v_mul_u32_u24 v6, 1280, v6
        v_lshl_add_u32 v{21+n}, v7, 4, v6""")
    a(f"""v_lshrrev_b32 v5, 5, v1
    v_lshl_add_u32 v23, v5, 28, v23
    s_mul_i32 s36, s{WAVE}, 2560
    v_add_u32 v24, s36, v10
    s_waitcnt lgkmcnt(0)""")
    owner()
    srd(a, SA, 8, 2621440)
    a(f"""s_mul_i32 s40, s51, 1280
    s_mul_i32 s37, s32, 160
    s_add_u32 s40, s40, s37
    s_lshr_b32 s36, s51, 5
    s_lshl_b32 s36, s36, 7
    s_add_u32 s36, s36, {WS_FO}
    v_and_b32 v5, 31, v1
    v_lshlrev_b32 v5, 2, v5
    s_mul_i32 s37, s{XCD}, {XB}
    s_and_b32 s38, s51, 255
    s_lshl_b32 s38, s38, 4
    s_add_u32 s37, s37, s38
    s_add_u32 s38, s37, 8192""")
    lds_wait(a, O_WO, 1)
    stamp(a, 9)

    def wread(s, t):
        f = WF + 20 * (s & 1) + 4 * t
        if s < 16:
            b = 14 if s < 8 else 15
            b2, o, d = b, (s % 8) * 6400, 1280
        else:
            b = WA if s < 18 else WA + 2
            b2, o, d = b + 1, (s % 2) * 25600, 0
        a(f"""ds_read_b64_tr_b16 v[{f}:{f+1}], v{b} offset:{o+t*32}
        ds_read_b64_tr_b16 v[{f+2}:{f+3}], v{b2} offset:{o+t*32+d}""")

    def oload(s):
        r = OF + 4 * (s % NOF)
        if s < 16:
            a(f"buffer_load_dwordx4 {vr(r,4)}, v12, s[24:27], s37 offen sc1\ns_add_u32 s37, s37, {5*4096}")
        else:
            a(f"buffer_load_dwordx4 {vr(r,4)}, v13, s[24:27], s38 offen sc1\ns_add_u32 s38, s38, {20*4096}")
    pl = "buffer_load_dword v6, v5, s[24:27], s36 offen sc1"
    a(pl)
    for t in range(5):
        wread(0, t)
    a("s_waitcnt lgkmcnt(4)")
    for t in range(5):
        wread(1, t)
    poll(a, pl, [6], pre=True)
    stamp(a, 10)
    NL0 = OPT["nl0"]
    assert NL0 <= 5
    for s in range(NL0):
        oload(s)
    a("""s_cmp_eq_u64 s[44:45], 0
    s_cbranch_scc1 L_op_loop""")
    lp = uid("yw")
    a(f"""s_mov_b32 s50, {SPIN*8}
    {lp}:
    ds_read_b32 v9, v30 offset:{O_Y}""")
    for t in range(5):
        a(f"ds_read_b128 {vr(84+4*t,4)}, v25 offset:{L_Y-L_MISC+t*64}")
    a(f"""s_sub_u32 s50, s50, 1
    s_waitcnt lgkmcnt(0)
    s_cbranch_scc1 L_op_loop
    v_cmp_ne_u32 vcc, 1, v9
    s_cbranch_vccnz {lp}
    s_mov_b64 exec, s[44:45]""")
    for i in range(20):
        a(f"v_fmac_f32 v{PA+i}, v{G2}, v{84+i}")
    a("s_mov_b64 exec, -1\nL_op_loop:")
    for s in range(20):
        issued = min(20, NL0 + s)
        a(f"s_waitcnt vmcnt({issued-1-s}) lgkmcnt({10 if s < 19 else 0})")
        for t in range(5):
            a(f"v_mfma_f32_16x16x32_bf16 {vr(PA+4*t,4)}, {vr(WF+20*(s&1)+4*t,4)}, {vr(OF+4*(s%NOF),4)}, {vr(PA+4*t,4)}")
            if s < 18:
                wread(s + 2, t)
            if t == 0 and NL0 + s < 20:
                oload(NL0 + s)
            if s == 18 and t == 0:
                a(f"ds_read_b32 v9, v30 offset:{O_ATT}")
    a("L_op_end:")
    stamp(a, 11)
    lds_wait(a, O_ATT, 8, pre=True)
    for t in range(5):
        a(f"""v_cvt_pk_bf16_f32 v{WF+2*t}, v{PA+4*t}, v{PA+4*t+1}
        v_cvt_pk_bf16_f32 v{WF+2*t+1}, v{PA+4*t+2}, v{PA+4*t+3}
        ds_write_b64 v{XA}, {vr(WF+2*t,2)} offset:{t*32}""")
    for n in range(3):
        a(f"ds_read_b128 {vr(OF+4*n,4)}, v24 offset:{n*1024}")
    for n in range(3):
        a(f"s_waitcnt lgkmcnt({2-n})\nbuffer_store_dwordx4 {vr(OF+4*n,4)}, v{21+n}, s[52:55], s40 offen {OPT['osc']}")
    stamp(a, 12)
    if OPT["probe"]:
        pa, pb = [int(x) for x in OPT["probe"].split("_")]
        a(f"""s_sub_u32 s36, s{62+2*pb}, s{62+2*pa}
        {'s_lshr_b32 s36, s36, 1' if OPT['pcyc'] else 's_lshl_b32 s36, s36, 3'}
        s_min_u32 s36, s36, 20000
        s_lshl_b32 s37, s{WAVE}, 8
        s_add_u32 s37, s37, s2
        s_cmp_lg_u32 s37, {OPT["pwg"]}
        s_cselect_b32 s36, 0, s36
        s_memrealtime s[38:39]
        s_waitcnt lgkmcnt(0)
        s_add_u32 s36, s36, s38
        L_probe:
        s_sleep 2
        s_memrealtime s[38:39]
        s_waitcnt lgkmcnt(0)
        s_sub_u32 s37, s38, s36
        s_cmp_lt_i32 s37, 0
        s_cbranch_scc1 L_probe""")
    finish(a, True)


def wo_offsets(a):
    for n in range(5):
        a(f"""v_add_u32 v5, {64*n}, v1
        v_mul_u32_u24 v6, 6554, v5
        v_lshrrev_b32 v6, 16, v6
        v_mul_u32_u24 v8, 10, v6
        v_sub_u32 v8, v5, v8
        v_mul_u32_u24 v6, 1280, v6
        v_lshl_add_u32 v{WOV+n}, v8, 4, v6""")


WOV = 160
def wo_groups(a, g0, g1):
    lp = uid("wo")
    a(f"""s_mov_b32 m0, {L_WO+g0*5120}
    s_add_u32 s41, s34, {g0*40960}
    s_movk_i32 s44, 0x400
    {lp}:""")
    for j in range(5):
        a(f"""buffer_load_dwordx4 v{WOV+j}, s[20:23], s41 offen lds
        s_add_u32 m0, m0, s44
        {"s_nop 0" if j < 4 else "s_add_u32 s41, s41, 40960"}""")
    a(f"""s_cmp_lt_u32 m0, {L_WO+g1*5120}
    s_cbranch_scc1 {lp}""")


def purity(a):
    a(f"""v_cmp_ne_u32 vcc, s{TAG}, v12
    v_cmp_ne_u32 s[44:45], s35, v13
    s_or_b64 vcc, vcc, s[44:45]
    s_cselect_b32 s36, 0, {0 if OPT['forceimp'] else 1}
    v_mov_b32 v5, s36
    ds_write_b32 v30, v5
    s_waitcnt lgkmcnt(0)""")


def helper1(a):
    a(f"""L_help:
    s_cmp_eq_u32 s{WAVE}, 9
    s_cbranch_scc1 L_ffn
    s_load_dwordx2 s[40:41], s[0:1], 16
    s_load_dwordx2 s[8:9], s[0:1], 32
    s_load_dwordx2 s[10:11], s[0:1], 64
    v_lshlrev_b32 v10, 4, v1""")
    a(f"""v_mov_b32 v16, {"0x3f80" if OPT["ones"] else "0x3f803f80"}
    v_mov_b32 v17, {"0" if OPT["ones"] else "0x3f803f80"}
    v_mov_b32 v18, 0x3f803f80
    v_mov_b32 v19, 0x3f80
    v_add_u32 v5, {L_ONES}, v10""")
    for i in range(5):
        a(f"ds_write_b128 v5, v[16:19] offset:{i*1024}")
    a(f"""v_mov_b32 v30, {M_PURE}
    v_mov_b32 v6, 0
    v_lshl_add_u32 v7, v1, 2, v30
    ds_write_b32 v7, v6""")
    if OPT["prio"]:
        a("s_setprio 3")
    wo_offsets(a)
    a("s_waitcnt lgkmcnt(0)")
    epoch_load(a)
    srd(a, SX, 4, 2621440)
    srd(a, SW, 40, 819200)
    srd(a, SS, 12, WS_END)
    srd(a, SA, 8, 1280)
    srd(a, SB, 10, 1280)
    a(f"""s_cmp_lg_u32 s{CT}, 15
    s_cbranch_scc1 L_nowv
    s_mov_b32 m0, {L_WV}
    s_nop 0
    buffer_load_dwordx4 v10, s[52:55], 0 offen lds
    buffer_load_dwordx4 v10, s[52:55], 0 offen offset:1024 lds
    s_mov_b32 m0, {L_WV+2048}
    s_nop 0
    buffer_load_dwordx4 v10, s[56:59], 0 offen lds
    buffer_load_dwordx4 v10, s[56:59], 0 offen offset:1024 lds
    L_nowv:
    s_getreg_b32 s35, hwreg(HW_REG_XCC_ID, 0, 4)
    s_lshr_b32 s34, s{LOC}, 2
    s_mul_i32 s34, s34, 160
    s_mul_i32 s33, s{LOC}, 5
    s_lshr_b32 s33, s33, 1             ; c0
    v_bfe_u32 v5, v1, 2, 1
    v_lshl_add_u32 v6, v5, 1, s33
    v_lshrrev_b32 v6, 3, v6
    v_bfe_u32 v7, v1, 3, 2
    v_cmp_eq_u32 s[44:45], 3, v7
    v_and_b32 v8, 3, v1
    v_lshlrev_b32 v8, 2, v8
    v_cndmask_b32_e64 v5, v6, v5, s[44:45]
    v_mad_u32_u24 v5, v7, 10, v5
    v_lshl_add_u32 v11, v5, 4, v8
    v_and_b32 v7, 1, v7
    v_mad_u32_u24 v5, v7, 10, v6
    v_add_u32 v5, 10, v5
    v_lshl_add_u32 v15, v5, 7, v8
    v_and_b32 v14, 31, v1
    v_lshlrev_b32 v14, 3, v14
    s_lshl_b32 s42, s{XCD}, 8
    s_add_u32 s42, s42, {WS_XID}""")
    epoch_fin(a)
    stamp(a, 1)
    a(f"""s_waitcnt vmcnt(0)
    s_barrier
    s_lshl_b32 s36, s{LOC}, 3
    s_add_u32 s36, s36, s42
    v_mov_b32 v8, s{TAG}
    v_mov_b32 v9, s35
    v_mov_b32 v5, 0
    s_mov_b64 exec, 1
    buffer_store_dwordx2 v[8:9], v5, s[24:27], s36 offen {'sc1' if OPT['xsc'] else ''}
    s_mov_b64 exec, -1""")
    def qtouch():
        if OPT["qown"]:
            l = uid("nq")
            a(f"""s_cmp_ge_u32 s{CT}, 5
            s_cbranch_scc1 {l}
            s_mul_i32 s36, s{XCD}, {XB}
            s_lshl_b32 s37, s{CT}, 16
            s_add_u32 s36, s36, s37
            s_lshl_b32 s37, s{RBL}, 11
            s_add_u32 s36, s36, s37
            v_and_b32 v5, 15, v1
            v_lshlrev_b32 v5, 7, v5
            v_lshl_add_u32 v5, v4, 12, v5""")
            for i in range(4):
                a("buffer_load_dword v167, v5, s[24:27], s36 offen sc1\ns_add_u32 s36, s36, 16384")
            a(f"{l}:")
            return
        a(f"""s_mul_i32 s36, s{XCD}, {XB}
        s_mul_i32 s37, s{LOC}, 10240
        s_add_u32 s36, s36, s37
        s_add_u32 s37, s36, 5120
        v_min_u32 v5, 39, v1
        v_lshlrev_b32 v5, 7, v5
        buffer_load_dword v167, v5, s[24:27], s36 offen sc1
        buffer_load_dword v167, v5, s[24:27], s37 offen sc1""")
    a(f"""s_and_b32 s38, s{LOC}, 3
    s_lshl_b32 s38, s38, 5
    s_lshl_b32 s39, s{XCD}, 8
    s_add_u32 s38, s38, s39
    s_mul_i32 s38, s38, 1280
    s_add_u32 s38, s38, s34
    s_add_u32 s39, s38, {128*1280}""")
    side = {i: [] for i in range(7)}
    def spread(items, spec):
        a0, a1 = [int(x) for x in spec.split("_")]
        n = a1 - a0 + 1
        for k, it in enumerate(items):
            side[a0 + k * n // len(items)].append(it)
    spread([f"""s_mov_b32 m0, {L_XT+n*1024}
        s_nop 0
        buffer_load_dwordx4 v{WOV+n%5}, s[16:19], s{38+n//5} offen lds""" for n in range(10)], OPT["xs"])
    if OPT["wsn"]:
        spread([f"""s_mov_b32 m0, {L_WO+n*1024}
        s_add_u32 s36, s34, {(n//5)*40960}
        buffer_load_dwordx4 v{WOV+n%5}, s[20:23], s36 offen lds""" for n in range(65 - 5 * OPT["wsn"], 65)], OPT["ws"])
    a(f"""s_cmp_lg_u32 s{CT}, 15
    s_cbranch_scc1 L_h_g""")
    for i in range(9):
        a("s_barrier")
    lds_wait(a, O_R, 4)
    for i in range(7):
        if OPT["qloc"] and not OPT["qown"] and OPT["qat"] == i:
            qtouch()
        for it in side[i]:
            a(it)
    a("""buffer_load_dwordx2 v[12:13], v14, s[24:27], s42 offen sc1
    s_waitcnt vmcnt(0)""")
    lds_add(a, O_FD)
    a("s_branch L_h_p\nL_h_g:")
    for i in range(7):
        if OPT["qloc"] and OPT["qat"] == i:
            qtouch()
        for it in side[i]:
            a(it)
        if i < 6:
            a("s_barrier")
    a(f"""buffer_load_dwordx2 v[12:13], v14, s[24:27], s42 offen sc1
    s_barrier
    s_barrier
    L_h_p:
    s_waitcnt vmcnt(0)""")
    purity(a)
    if OPT["qloc"] and OPT["qat"] == 8:
        qtouch()
    a(f"""s_cmp_eq_u32 s{CT}, 15
    s_cbranch_scc1 L_h_q
    s_barrier
    L_h_q:""")
    lds_wait(a, O_R, 4)
    a(f"""s_lshl_b32 s36, s{XCD}, 9
    s_add_u32 s36, s36, {WS_FL}""")
    stamp(a, 2)
    poll(a, "buffer_load_dword v12, v11, s[24:27], s36 offen sc1", [12])
    stamp(a, 4)
    a(f"""s_lshl_b32 s36, s{XCD}, 12
    s_add_u32 s36, s36, {WS_FR-4096}
    s_barrier
    buffer_load_dword v12, v15, s[24:27], s36 offen sc1""")
    a(f"""s_cmp_eq_u32 s{XCD}, 0
    s_cbranch_scc1 L_nohalo""")
    poll(a, "buffer_load_dword v12, v15, s[24:27], s36 offen sc1", [12], pre=True)
    if OPT["hdel"]:
        lds_wait(a, O_B2, OPT["hdel"])
    stamp(a, 7)
    a(f"""s_mul_i32 s36, s{XCD}, 240
    s_add_u32 s36, s36, s33
    s_lshl_b32 s36, s36, 12
    s_add_u32 s36, s36, {(WS_L - XB + 80*4096) & 0xffffffff}""")
    for q in (3, 2, 1, 0):
        for sec in range(2):
            for j in range(3):
                a(f"""s_mov_b32 m0, {sec*L_V + j*CS + q*1024}
                s_add_u32 s37, s36, {sec*80*4096 + j*4096 + q*1024}
                buffer_load_dwordx4 v10, s[24:27], s37 offen sc1 lds""")
    a("""v_mov_b32 v5, 1
    s_waitcnt vmcnt(12)
    ds_write_b32 v30, v5 offset:4
    L_nohalo:""")
    stamp(a, 6)
    wo_groups(a, 0, 2)
    a("""v_mov_b32 v5, 2
    s_waitcnt vmcnt(10)
    ds_write_b32 v30, v5 offset:4""")
    stamp(a, 8)
    if OPT["wsn"]:
        wo_groups(a, 2, 13 - OPT["wsn"])
        wo_groups(a, 13, 20)
    else:
        wo_groups(a, 2, 20)
    a("s_waitcnt vmcnt(0)")
    lds_add(a, O_WO)
    a("s_waitcnt lgkmcnt(0)")
    stamp(a, 9)
    a(f"""s_cmp_lg_u32 s2, 255
    s_cbranch_scc1 L_h1_end
    s_mov_b32 s36, {WS_P2+4}
    v_min_u32 v5, 59, v1
    v_lshlrev_b32 v5, 12, v5""")
    lds_wait(a, 16, 1)
    if OPT["epx"]:
        a(f"s_mov_b32 s36, {WS_XID}")
        poll(a, "buffer_load_dwordx4 v[12:15], v10, s[24:27], s36 offen sc1\nbuffer_load_dwordx4 v[16:19], v10, s[24:27], s36 offen offset:1024 sc1", [12, 14, 16, 18])
    else:
        poll(a, "\n".join(f"buffer_load_dword v{12+i}, v5, s[24:27], s36 offen offset:{i*1024} sc1" for i in range(4)), [12, 13, 14, 15])
    a(f"s_mov_b32 s36, {WS_EP}")
    flag_store(a, 36, False)
    a("L_h1_end:")
    finish(a)


def sel_by_g(a, o, b, st, tag=True):
    a(f"""v_cndmask_b32_e64 v{o}, v{b}, v{b+st}, s[44:45]
    v_cndmask_b32_e64 v{o}, v{o}, v{b+2*st}, s[46:47]
    v_cndmask_b32_e64 v{o}, v{o}, v{b+3*st}, s[48:49]""")
    if tag:
        a(f"v_mov_b32 v{o+1}, s{TAG}")


def ffn(a):
    a(f"""L_ffn:
    s_load_dwordx4 s[8:11], s[0:1], 40
    s_load_dwordx2 s[40:41], s[0:1], 56
    s_load_dwordx2 s[44:45], s[0:1], 16
    s_load_dwordx2 s[46:47], s[0:1], 72
    v_lshlrev_b32 v10, 4, v1
    s_mul_i32 s33, s{XCD}, 30
    s_add_u32 s33, s33, s{LOC}         ; job
    s_mul_i32 s34, s33, 6554
    s_lshr_b32 s34, s34, 16            ; b
    s_mul_i32 s35, s34, 10
    s_sub_u32 s35, s33, s35
    v_lshrrev_b32 v5, 3, v1
    v_and_b32 v7, 7, v1
    v_mul_u32_u24 v6, 3072, v5
    v_lshl_add_u32 v11, v7, 4, v6
    v_mul_u32_u24 v6, 1280, v5
    v_lshl_add_u32 v12, v7, 4, v6
    v_bfe_u32 v6, v1, 2, 2
    v_lshl_add_u32 v6, v4, 3, v6
    v_lshlrev_b32 v6, 7, v6
    v_and_b32 v8, 3, v1
    v_lshl_add_u32 v6, v8, 3, v6
    v_add_u32 v13, {L_FW}, v6
    v_mov_b32 v30, {M_PURE}
    s_mul_i32 s38, s35, 64*3072
    s_lshl_b32 s36, s34, 7
    s_add_u32 s38, s38, s36
    s_mul_i32 s39, s34, 64*1280
    s_lshl_b32 s36, s35, 7
    s_add_u32 s39, s39, s36
    s_waitcnt lgkmcnt(0)""")
    epoch_load(a)
    srd(a, SX, 4, 2621440)
    srd(a, SW, 40, 1966080)
    srd(a, SS, 12, WS_END)
    srd(a, SA, 8, 1966080)
    srd(a, SB, 10, 1966080)
    epoch_fin(a)
    stamp(a, 1)
    if OPT["fprio"]:
        a(f"s_setprio {OPT['fprio']}")
    def weights(n0=0, n1=24):
        for m in range(3):
            for i in range(8):
                if not n0 <= m * 8 + i < n1:
                    continue
                s_, v_, so, st = ((SA, 11, 38, 3072), (SB, 11, 38, 3072), (SW, 12, 39, 1280))[m]
                a(f"""s_mov_b32 m0, {L_FW+m*8192+i*1024}
                s_add_u32 s36, s{so}, {i*8*st}
                buffer_load_dwordx4 v{v_}, s[{s_}:{s_+3}], s36 offen {OPT['fnt']} lds""")
    cl = "buffer_load_dwordx4 v[24:27], v10, s[24:27], s51 offen sc1"
    def touch():
        a(f"""s_mul_i32 s36, s{XCD}, {XB}
        s_sub_u32 s37, s36, {XB}
        s_max_i32 s37, s37, 0
        s_load_dword s3, s[44:45], 0
        s_load_dword s3, s[12:13], s36
        s_load_dword s3, s[8:9], 0
        s_load_dword s3, s[10:11], 0
        s_load_dword s3, s[40:41], 0
        s_load_dword s3, s[12:13], s37
        s_add_u32 s36, s36, {XB-64}
        s_mul_i32 s37, s{XCD}, {256*1280}
        s_load_dword s3, s[12:13], s36
        s_load_dword s3, s[46:47], s37
        s_add_u32 s37, s37, {256*1280-64}
        s_load_dword s3, s[46:47], s37
        s_load_dword s3, s[6:7], 0
        s_mov_b32 s36, {2457600-64}
        s_load_dword s3, s[6:7], s36""")
    if OPT["stl"] == 1 and OPT["stw"]:
        touch()
    a(f"""    s_mov_b32 s51, {WS_CAND}
    s_cmp_lg_u32 s{CT}, 15
    s_cbranch_scc1 L_f_w""")
    for i in range(10):
        if (OPT["stl"] == 1 and not OPT["stw"] and i == 0) or (OPT["stl"] == 2 and i == 1):
            touch()
        a("s_barrier")
    a(f"""s_waitcnt lgkmcnt(0)
    s_mov_b32 s3, 1
    s_mov_b32 s50, {SPIN}
    s_branch L_f_b1
    L_f_w:""")
    late = 0
    for i in range(9):
        a("s_barrier")
        if i == 0 and OPT["stl"] == 2 and OPT["stw"]:
            touch()
        if i == 8:
            a("s_waitcnt lgkmcnt(0)")
        if i < 8:
            if OPT["fwm"]:
                weights(3 * i, 3 * i + 3)
            if OPT["fwe"] and i == OPT["fat"]:
                weights(24 - OPT["fwe"], 24)
    a(cl)
    if not OPT["fwm"]:
        weights(0, 24 - OPT["fwe"])
        late += 24 - OPT["fwe"]
    def frags():
        n = 0
        for m in range(3):
            for t in range(4):
                for ks in range(2):
                    o = m * 8192 + ks * 4096 + t * 32
                    r = 64 + m * 32 + t * 8 + ks * 4
                    a(f"""ds_read_b64_tr_b16 v[{r}:{r+1}], v13 offset:{o}
                    ds_read_b64_tr_b16 v[{r+2}:{r+3}], v13 offset:{o+512}""")
                if t & 1:
                    a("s_waitcnt lgkmcnt(4)")
        a("s_waitcnt lgkmcnt(0)")
    a(f"""s_mov_b32 s3, 0
    s_mov_b32 s50, {SPIN}
    s_barrier
    s_waitcnt vmcnt({late})
    L_f_chk:
    v_xor_b32 v9, s{TAG}, v25
    v_bitop3_b32 v9, v9, v27, s{TAG} bitop3:0xf6
    v_cmp_ne_u32 vcc, 0, v9
    s_cbranch_vccz L_f_ok
    s_sub_u32 s50, s50, 1
    s_cbranch_scc1 L_f_ok
    s_cmp_eq_u32 s3, 2
    s_cbranch_scc1 L_f_again
    s_cmp_eq_u32 s3, 1
    s_cbranch_scc1 L_f_b1
    s_waitcnt vmcnt(0)""")
    frags()
    a(f"""s_mov_b32 s3, 1
    s_branch L_f_again
    L_f_b1:
    s_barrier
    s_mov_b32 s3, 2
    L_f_again:
    {cl}
    s_waitcnt vmcnt(0)
    s_branch L_f_chk
    L_f_ok:""")
    stamp(a, 3)
    top2(a, 24, 26, 21, 40, 41, 44)
    key_decode(a, 40, 42, 46, 36)
    key_decode(a, 41, 43, 47, 36)
    a(f"""v_mov_b32 v16, s42
    v_mov_b32 v17, s43
    v_mov_b32 v18, s46
    v_mov_b32 v19, s47
    v_or_b32 v16, 0x10000, v16
    ds_write_b128 v30, v[16:19] offset:16
    v_mov_b32 v20, s42
    v_and_b32 v6, 1, v1
    v_cmp_eq_u32 s[44:45], 0, v6
    s_lshl_b32 s36, s35, 7
    s_nop 0
    v_cndmask_b32_e64 v7, v17, v20, s[44:45]
    v_mul_u32_u24 v7, 1280, v7
    v_lshl_add_u32 v7, v4, 4, v7
    s_cmp_lg_u32 s{CT}, 15
    s_cbranch_scc1 L_f_job""")
    a(f"""s_branch L_f_gather
    L_f_job:
    buffer_load_dwordx4 v[24:27], v7, s[16:19], s36 offen
    buffer_load_dwordx4 v[160:163], v7, s[16:19], s36 offen offset:64
    v_cmp_eq_u32 s[44:45], 1, v4
    v_cmp_eq_u32 s[46:47], 2, v4
    v_cmp_eq_u32 s[48:49], 3, v4
    s_and_b32 s52, s{TAG}, 0xff
    s_bfe_u32 s53, s{TAG}, 0x80008
    s_bfe_u32 s54, s{TAG}, 0x80010
    s_lshr_b32 s55, s{TAG}, 24
    v_mov_b32 v21, 0xffffff00""")
    a("""s_cmp_lg_u32 s3, 0
    s_cbranch_scc1 L_f_nf
    s_waitcnt vmcnt(2)""")
    frags()
    a("""L_f_nf:
    s_cmp_lg_u32 s3, 1
    s_cbranch_scc1 L_f_nb
    s_barrier
    L_f_nb:
    s_waitcnt vmcnt(0)""")
    stamp(a, 4)
    for ks in range(2):
        for m in range(2):
            for t in range(4):
                d = 32 + (m * 4 + t) * 4
                a(f"v_mfma_f32_16x16x32_bf16 {vr(d,4)}, {vr((24, 160)[ks],4)}, {vr(64+m*32+t*8+ks*4,4)}, {'0' if ks == 0 else vr(d,4)}")
    a(f"""s_lshl_b32 s36, s33, 10
    s_add_u32 s36, s36, {WS_P1}
    s_nop 2""")
    for m in range(2):
        for tk in range(2):
            sel_by_g(a, 96 + m * 2 + tk, 32 + m * 16 + tk, 4, False)
    for j in range(4):
        a(f"v_and_or_b32 v{96+j}, v{96+j}, v21, s{52+j}")
    a(f"""buffer_store_dwordx4 v[96:99], v10, s[24:27], s36 offen sc1
    s_mul_i32 s36, s34, 10240
    s_add_u32 s36, s36, {WS_P1}
    s_add_u32 s37, s36, 4096
    s_add_u32 s38, s36, 8192
    s_mov_b32 s50, {SPIN}
    s_waitcnt lgkmcnt(0)""")
    stamp(a, 5)
    a(f"""v_min_u32 v5, 9, v1
    v_lshlrev_b32 v5, 10, v5
    s_cmp_lg_u32 s3, 0
    s_cbranch_scc1 L_f_p0
    s_barrier
    s_branch L_f_p1
    L_f_p0:
    buffer_load_dword v6, v5, s[24:27], s36 offen sc1
    s_sub_u32 s50, s50, 1
    s_cbranch_scc1 L_f_p1o
    s_waitcnt vmcnt(0)
    v_and_b32 v6, 0xff, v6
    v_cmp_ne_u32 vcc, s52, v6
    s_cbranch_vccnz L_f_p0
    L_f_p1:""")
    stamp(a, 6)
    for i in range(10):
        a(f"buffer_load_dwordx4 {vr(32+4*i,4)}, v10, s[24:27], s{36+i//4} offen offset:{(i%4)*1024} sc1")
    a("v_mov_b32 v9, 0")
    for i in range(10):
        a(f"s_waitcnt vmcnt({9-i})")
        for j in range(4):
            a(f"v_xor_b32 v{32+4*i+j}, s{52+j}, v{32+4*i+j}")
        a(f"v_or3_b32 v9, v9, v{32+4*i}, v{33+4*i}\nv_or3_b32 v9, v9, v{34+4*i}, v{35+4*i}")
    a("""v_and_b32 v9, 0xff, v9
    v_cmp_ne_u32 vcc, 0, v9
    s_cbranch_vccnz L_f_p0
    L_f_p1o:
    s_waitcnt vmcnt(0)""")
    stamp(a, 7)
    for i in range(1, 10):
        for j in (0, 2):
            a(f"v_pk_add_f32 {vr(32+j,2)}, {vr(32+j,2)}, {vr(32+4*i+j,2)}")
    for tk in range(2):
        sigmoid(a, 14 + tk, f"v{32+tk}")
        a(f"v_mul_f32 v{14+tk}, v{14+tk}, v{32+tk}\nv_mul_f32 v{14+tk}, v{14+tk}, v{34+tk}")
    a(f"""v_cvt_pk_bf16_f32 v14, v14, v15
    v_lshl_add_u32 v6, v1, 1, v30
    ds_write_b16 v6, v14 offset:256
    ds_write_b16_d16_hi v6, v14 offset:384
    v_and_b32 v7, 1, v1
    v_lshl_add_u32 v7, v7, 7, v30
    v_lshl_add_u32 v7, v4, 4, v7
    s_waitcnt lgkmcnt(0)
    ds_read_b128 v[32:35], v7 offset:256
    ds_read_b128 v[36:39], v7 offset:320
    s_waitcnt lgkmcnt(0)""")
    for t in range(4):
        d = 64 + t * 4
        for ks in range(2):
            a(f"v_mfma_f32_16x16x32_bf16 {vr(d,4)}, {vr(32+4*ks,4)}, {vr(128+t*8+4*ks,4)}, {'0' if ks == 0 else vr(d,4)}")
    a(f"""s_lshl_b32 s36, s33, 10
    s_add_u32 s36, s36, {WS_P2}
    s_nop 5""")
    for tk in range(2):
        sel_by_g(a, 96 + tk * 2, 64 + tk, 4)
    a("buffer_store_dwordx4 v[96:99], v10, s[24:27], s36 offen sc1")
    stamp(a, 8)
    a("L_f_gather:")
    a(f"""s_and_b32 s36, s{LOC}, 3
    s_lshl_b32 s36, s36, 5
    s_lshl_b32 s37, s{XCD}, 8
    s_add_u32 s36, s36, s37
    s_xor_b32 s42, s42, s36
    s_xor_b32 s43, s43, s36
    s_and_b32 s42, s42, 0x760
    s_and_b32 s43, s43, 0x760
    s_min_u32 s36, s42, s43
    s_cmp_lg_u32 s36, 0
    s_cbranch_scc1 L_f_end
    s_setprio {OPT['gprio']}
    s_lshr_b32 s32, s{LOC}, 2
    s_mul_i32 s40, s32, 1280
    s_add_u32 s40, s40, {WS_P2}
    s_andn2_b32 s36, s40, 1023
    v_min_u32 v5, 47, v1
    v_lshrrev_b32 v6, 1, v5
    v_mul_u32_u24 v6, 10240, v6
    v_and_b32 v5, 1, v5
    v_lshl_add_u32 v5, v5, 10, v6
    v_and_b32 v7, 15, v1
    v_mul_u32_u24 v11, 10240, v4
    v_lshl_add_u32 v11, v7, 4, v11
    v_lshl_add_u32 v12, v1, 2, v30
    v_lshl_add_u32 v13, v7, 2, v30
    s_mov_b32 s41, 0""")
    lds_wait(a, 4, 2)
    poll(a, "buffer_load_dword v6, v5, s[24:27], s36 offen offset:4 sc1", [6])
    stamp(a, 9)
    a("""L_f_tok:
    s_cmp_lg_u32 s42, 0
    s_cbranch_scc1 L_f_next""")
    ld = "s_mov_b32 s37, s40\n" + "\n".join(f"buffer_load_dwordx2 {vr(32+2*i,2)}, v10, s[24:27], s37 offen sc1\n" +
        (f"buffer_load_dwordx2 {vr(80+2*(i//4),2)}, v11, s[24:27], s37 offen offset:1024 sc1\n" if i % 4 == 0 else "") + "s_add_u32 s37, s37, 10240" for i in range(24))
    poll(a, ld, [33 + 2 * i for i in range(30)])
    for i in range(1, 24):
        a(f"v_add_f32 v32, v32, v{32+2*i}")
    for i in range(1, 6):
        a(f"v_add_f32 v80, v80, v{80+2*i}")
    sigmoid(a, 14, "v18")
    a(f"""v_mov_b32 v81, v80
    v_mul_f32 v32, v32, v14
    s_nop 0
    v_permlane32_swap_b32 v80, v81
    v_add_f32 v80, v80, v81
    v_mov_b32 v81, v80
    ds_write_b32 v12, v32 offset:{L_Y-L_MISC}
    s_nop 0
    v_permlane16_swap_b32 v80, v81
    v_add_f32 v80, v80, v81
    v_mul_f32 v80, v80, v14
    ds_write_b32 v13, v80 offset:{L_Y-L_MISC+256}
    L_f_next:
    s_mov_b32 s42, s43
    s_add_u32 s40, s40, 8
    v_mov_b32 v18, v19
    v_add_u32 v12, 320, v12
    v_add_u32 v13, 320, v13
    s_add_u32 s41, s41, 1
    s_cmp_lt_u32 s41, 2
    s_cbranch_scc1 L_f_tok""")
    lds_add(a, O_Y)
    a("s_waitcnt lgkmcnt(0)")
    stamp(a, 10)
    a("L_f_end:\ns_waitcnt lgkmcnt(0)")
    finish(a)


def main(out):
    a = Asm()
    head = f"""; gated mix of sliding-window attention and a top-2 routed FFN: one fused launch (written by a generator script)
; @launch grid=(256,1,1) block=(640,1,1) lds={LDS_BYTES}
.amdgcn_target "amdgcn-amd-amdhsa--gfx950"
.text
"""
    entry(a)
    loader(a)
    compute(a)
    stubs = attention(a)
    outproj(a)
    n0 = len(a.lines)
    helper1(a)
    if OPT["stamp"] == 3:
        body_, out_, k, skip = a.lines[n0:], [], 0, False
        for ln in body_:
            if "s_memrealtime" in ln or "s_memtime" in ln:
                continue
            if "s_cbranch_scc1 L_h_g" in ln: skip = True
            if ln.startswith("L_h_g:"): skip = False
            if ln.strip() == "s_endpgm":
                out_.append("    s_branch L_stampall")
                continue
            out_.append(ln)
            if (ln.strip() == "s_barrier" and not skip) or ("ds_write_b32 v30, v5 offset:4" in ln):
                out_.append(f"    s_memrealtime s[{62+2*k}:{63+2*k}]"); k += 1
        a.lines[n0:] = out_
    ffn(a)
    router_loader(a)
    router(a)
    att_stubs(a, stubs)
    stamp_out(a)
    a("L_exit:\ns_endpgm\nL_code_end:")
    body = a.text().replace("s_mov_b32 s43, 0\n    s_waitcnt lgkmcnt(0)", "s_mov_b32 s43, 0\n    s_movk_i32 s45, 0x4000\n    s_waitcnt lgkmcnt(0)")
    if OPT["al"]:
        body = align_fix(body, [("L_g_loop", "L_g_end"), ("L_att_go", "L_att_fin"), ("L_op_loop", "L_op_end")])
    bad = check_hazards(body)
    tail = f""".section .rodata,"a"
.p2align 6
.amdhsa_kernel {NAME}_kernel
  .amdhsa_next_free_vgpr 168
  .amdhsa_next_free_sgpr 96
  .amdhsa_accum_offset 168
  .amdhsa_group_segment_fixed_size 0
  .amdhsa_kernarg_size 96
  .amdhsa_user_sgpr_count 2
  .amdhsa_user_sgpr_kernarg_segment_ptr 1
  .amdhsa_system_sgpr_workgroup_id_x 1
.end_amdhsa_kernel
"""
    open(out, "w").write(head + body + tail)
    print("written", out, "hazards:", len(bad))


if __name__ == "__main__":
    main(sys.argv[1])
```

```python
import sys, struct
from asmlib import Asm, vr, sr, check_hazards, align_fix

NAME = "gated_mix__sliding_block__moe_arch_mod__prompt"
def f32(x): return "0x%08x" % struct.unpack("<I", struct.pack("<f", x))[0]
LOG2E = 1.4426950408889634
QSCALE = (20 ** -0.5) * LOG2E

OPT = dict(stamp=0, dual=0, pre=0, xnt="", fnt="nt", rot=4, b11=0, wpf=0, rnt="", worot=2, fprio=3, cearly=1, aprio=2, tlb=0, hdel=5, dly=0, fwm=0, serp=1, xs="0_0", wsn=0, ws="0_2", fwe=4, fat=0, nowo=0, xsc=0, epx=0, rowmap=1, qloc=1, qat=0, tlb0=0, wod=0, wack=1, qown=0, dbg=0, gprio=3, ones=1, gx=0, lord=0, wfl="", nl0=3, nla=5, npre=1, al=1, pf=1, xpf=0, swap=0, prio=1, osc="", forceimp=0, forcefb=0, probe="", pwg=109+512, stl=1, stw=0, nocand=0, pcyc=0, wmall=1, fwarm=1, p1loc=1, a2=1, yat=1)
for _a in sys.argv[2:]:
    k, v = _a.split("=")
    OPT[k] = int(v) if v.lstrip("-").isdigit() else v

WS_L, WS_R = 0, 0x800000
WS_G, WS_CAND, WS_XID, WS_FL, WS_FP, WS_FO = 0x1000000, 0x1010000, 0x1020000, 0x1030000, 0x1040000, 0x1050000
WS_P1, WS_P2, WS_EP, WS_ST, WS_END = 0x1060000, 0x10E0000, 0x1120000, 0x1200000, 0x1300000
WS_FR = 0x1038000
XB = 240 * 4096
CS = 8192 + 64
L_K, L_V = 0, 3 * CS + 64
L_WO = 49664
L_ONES = L_WO + 102400 + 192
L_MISC = L_ONES + 5120 + 64
L_H, L_Y = L_MISC + 256, L_MISC + 512
LDS_BYTES = 163840
L_RW = 49152
L_FW = L_WO + 13 * 5120
L_XT = L_FW + 24576
L_WV = L_FW
M_PURE, M_HALO, M_TOP = L_MISC, L_MISC + 4, L_MISC + 16
O_WO, O_FD, O_ATT, O_Y, O_R, O_B2 = 8, 12, 32, 36, 40, 44
assert L_V % 256 == 0 and L_ONES % 256 == 192 and L_XT + 10240 <= L_WO + 102400 and L_Y + 1920 <= LDS_BYTES
SPIN = 0x8000

WAVE, XCD, LOC, RBL, CT, TAG, PURE = 28, 29, 30, 31, 32, 60, 61
SX, SW, SS, SA, SB = 16, 20, 24, 52, 56


def srd(a, d, p, n):
    a(f"""s_mov_b32 s{d}, s{p}
    s_mov_b32 s{d+1}, s{p+1}
    s_mov_b32 s{d+2}, {n}
    s_mov_b32 s{d+3}, 0x20000""")


def stamp(a, i):
    if OPT["probe"]:
        if str(i) in OPT["probe"].split("_"):
            a(f"{'s_memtime' if OPT['pcyc'] else 's_memrealtime'} s[{62+2*i}:{63+2*i}]\ns_waitcnt lgkmcnt(0)")
        return
    if OPT["stamp"] == 3:
        if i == 0:
            a("s_memrealtime s[94:95]\ns_memtime s[62:63]")
        if i in (4, 8):
            a(f"s_memrealtime s[{62+2*i}:{63+2*i}]\ns_memtime s[{64+2*i}:{65+2*i}]")
        return
    if OPT["stamp"]:
        if i == 0:
            a("s_memrealtime s[94:95]")
            for j in range(1, 15):
                a(f"s_mov_b32 s{62+2*j}, 0")
        a(f"{'s_memtime' if OPT['stamp'] == 1 else 's_memrealtime'} s[{62+2*i}:{63+2*i}]\ns_waitcnt lgkmcnt(0)")


def finish(a, main=False):
    if OPT["stamp"] == 3 and not main:
        a("s_endpgm")
    elif OPT["stamp"]:
        a("s_branch L_stampout")
    else:
        a("s_endpgm")


def stamp_out(a):
    if OPT["stamp"]:
        n = 14
        a(f"""L_stampout:
        s_waitcnt vmcnt(0)
        {'s_memtime' if OPT['stamp'] != 2 else 's_memrealtime'} s[{62+2*n}:{63+2*n}]
        s_memrealtime s[92:93]
        s_waitcnt lgkmcnt(0)
        s_lshl_b32 s3, s2, 4
        s_add_u32 s3, s3, s{WAVE}
        s_lshl_b32 s3, s3, 7
        s_add_u32 s3, s3, {WS_ST}
        s_mov_b64 exec, 1
        v_mov_b32 v0, 0""")
        for i in (range(n + 1) if OPT["stamp"] != 3 else (0, 4, 5, 8, 9, 14)):
            a(f"v_mov_b32 v1, s{62+2*i}\nbuffer_store_dword v1, v0, s[24:27], s3 offen offset:{4*i}")
        for i in range(2, 10 if OPT["stamp"] != 3 else 0):
            a(f"v_readlane_b32 s4, v166, {i}\ns_nop 1\nv_mov_b32 v1, s4\nbuffer_store_dword v1, v0, s[24:27], s3 offen offset:{64+4*(i-2)}")
        a(f"v_mov_b32 v1, s{PURE}\nbuffer_store_dword v1, v0, s[24:27], s3 offen offset:116")
        a("v_mov_b32 v1, s94\nbuffer_store_dword v1, v0, s[24:27], s3 offen offset:120")
        a("v_mov_b32 v1, s92\nbuffer_store_dword v1, v0, s[24:27], s3 offen offset:124")
        a("s_endpgm")
        if OPT["stamp"] == 3:
            a(f"""L_stampall:
            s_memrealtime s[88:89]""")
            lds_wait(a, O_ATT, 8)
            a(f"""s_lshl_b32 s3, s2, 4
            s_add_u32 s3, s3, s{WAVE}
            s_lshl_b32 s3, s3, 7
            s_add_u32 s3, s3, {WS_ST}
            v_mov_b32 v2, 0""")
            for i in range(14):
                a(f"v_writelane_b32 v2, s{62+2*i}, {i}")
            a("""v_writelane_b32 v2, s94, 30
            v_lshlrev_b32 v3, 2, v1
            s_mov_b64 exec, 0xffffffff
            buffer_store_dword v2, v3, s[24:27], s3 offen
            s_endpgm""")


def wave_max_u32(a, v, sdst, row=False):
    for m in ("row_shr:1 row_mask:0xf bank_mask:0xf bound_ctrl:1", "row_shr:2 row_mask:0xf bank_mask:0xf bound_ctrl:1",
              "row_shr:4 row_mask:0xf bank_mask:0xf bound_ctrl:1", "row_shr:8 row_mask:0xf bank_mask:0xf bound_ctrl:1",
              "row_bcast:15 row_mask:0xa bank_mask:0xf", "row_bcast:31 row_mask:0xc bank_mask:0xf")[:4 if row else 6]:
        a(f"s_nop 1\nv_max_u32_dpp v{v}, v{v}, v{v} {m}")
    a(f"s_nop 0\nv_readlane_b32 s{sdst}, v{v}, 63")


def top2(a, k1, k2, t, s1, s2, sm, row=False):
    a(f"v_max_u32 v{t}, v{k1}, v{k2}")
    wave_max_u32(a, t, s1, row)
    a(f"""s_nop 1
    v_cmp_ne_u32 s[{sm}:{sm+1}], s{s1}, v{k1}
    s_nop 1
    v_cndmask_b32_e64 v{k1}, 0, v{k1}, s[{sm}:{sm+1}]
    v_cmp_ne_u32 s[{sm}:{sm+1}], s{s1}, v{k2}
    s_nop 1
    v_cndmask_b32_e64 v{k2}, 0, v{k2}, s[{sm}:{sm+1}]
    v_max_u32 v{t}, v{k1}, v{k2}""")
    wave_max_u32(a, t, s2, row)


def key_decode(a, sk, stok, sval, st):
    a(f"""s_and_b32 s{stok}, s{sk}, 0xffff
    s_sub_u32 s{stok}, 0xffff, s{stok}
    s_and_b32 s{stok}, s{stok}, 0x7ff
    s_ashr_i32 s{st}, s{sk}, 31
    s_not_b32 s{st}, s{st}
    s_or_b32 s{st}, s{st}, 0x80000000
    s_xor_b32 s{sval}, s{sk}, s{st}
    s_and_b32 s{sval}, s{sval}, 0xffff0000""")


def sigmoid(a, d, s):
    a(f"""v_mul_f32 v{d}, {f32(-LOG2E)}, {s}
    v_exp_f32 v{d}, v{d}
    s_nop 0
    v_add_f32 v{d}, 1.0, v{d}
    v_rcp_f32 v{d}, v{d}
    s_nop 0""")


def epoch_load(a):
    a(f"""s_add_u32 s14, s12, {WS_EP}
    s_addc_u32 s15, s13, 0
    s_load_dword s{TAG}, s[14:15], 0""")


def epoch_fin(a):
    a(f"s_waitcnt lgkmcnt(0)\ns_add_u32 s{TAG}, s{TAG}, 0x9e3779b9")


_uid = [0]
_site = [0]
def uid(p):
    _uid[0] += 1
    return f"L_{p}{_uid[0]}"


def poll(a, load, tagregs, mask=None, tmp=9, pre=False):
    lp, out = uid("poll"), uid("pout")
    a(f"s_mov_b32 s50, {SPIN}")
    if pre:
        a(f"s_branch {lp}p")
    a(f"{lp}:")
    a(load)
    if pre:
        a(f"{lp}p:")
    a(f"""s_sub_u32 s50, s50, 1
    s_cbranch_scc1 {out}
    s_waitcnt vmcnt(0)""")
    if len(tagregs) == 1:
        a(f"v_cmp_ne_u32 vcc, s{TAG}, v{tagregs[0]}")
    else:
        a(f"v_xor_b32 v{tmp}, s{TAG}, v{tagregs[0]}")
        for r in tagregs[1:]:
            a(f"v_bitop3_b32 v{tmp}, v{tmp}, v{r}, s{TAG} bitop3:0xf6")
        a(f"v_cmp_ne_u32 vcc, 0, v{tmp}")
    if mask:
        a(f"s_and_b64 vcc, vcc, {mask}")
    if OPT["dbg"]:
        _site[0] += 1
        print("site", _site[0], load.split("\n")[-1][:70])
        a(f"""s_cbranch_vccnz {lp}
        s_branch {out}x
        {out}:
        s_waitcnt vmcnt(0)
        s_lshl_b32 s50, s2, 4
        s_add_u32 s50, s50, {_site[0]}
        s_lshl_b32 s50, s50, 8
        s_add_u32 s50, s50, {WS_ST}
        v_lshlrev_b32 v164, 2, v1
        v_xor_b32 v165, s{TAG}, v{tagregs[0]}
        v_or_b32 v165, 0x80000000, v165
        buffer_store_dword v165, v164, s[24:27], s50 offen
        {out}x:
        s_waitcnt vmcnt(0)""")
        return
    a(f"s_cbranch_vccnz {lp}\n{out}:\ns_waitcnt vmcnt(0)")


def spoll(a, loads, pairs):
    lp, out = uid("sp"), uid("so")
    a(f"s_mov_b32 s50, {SPIN}\n{lp}:")
    a(loads)
    a(f"""s_waitcnt lgkmcnt(0)
    s_sub_u32 s50, s50, 1
    s_cbranch_scc1 {out}
    s_xor_b64 s[36:37], s[{pairs[0]}:{pairs[0]+1}], s[38:39]""")
    for p in pairs[1:]:
        a(f"""s_xor_b64 s[{p}:{p+1}], s[{p}:{p+1}], s[38:39]
        s_or_b64 s[36:37], s[36:37], s[{p}:{p+1}]""")
    a(f"s_cbranch_scc1 {lp}\n{out}:")


def lds_wait(a, off, val, vt=9, pre=False):
    lp, out = uid("lw"), uid("lo")
    a(f"s_mov_b32 s50, {SPIN*8}")
    if pre:
        a(f"s_branch {lp}p")
    a(f"""{lp}:
    ds_read_b32 v{vt}, v30 offset:{off}""")
    if pre:
        a(f"{lp}p:")
    a(f"""s_sub_u32 s50, s50, 1
    s_cbranch_scc1 {out}
    s_waitcnt lgkmcnt(0)
    v_cmp_gt_u32 vcc, {val}, v{vt}
    s_cbranch_vccnz {lp}
    {out}:""")


def lds_add(a, off, vt=9):
    a(f"""v_mov_b32 v{vt}, 1
    s_mov_b64 exec, 1
    ds_add_u32 v30, v{vt} offset:{off}
    s_mov_b64 exec, -1""")


def flag_store(a, soff, local, vt=8):
    a(f"""v_mov_b32 v{vt}, s{TAG}
    v_mov_b32 v{vt+1}, 0
    s_mov_b64 exec, 1""")
    if local:
        l1, l2 = uid("fs"), uid("fe")
        a(f"""s_cmp_eq_u32 s{PURE}, 0
        s_cbranch_scc1 {l1}
        buffer_store_dword v{vt}, v{vt+1}, s[24:27], s{soff} offen
        s_branch {l2}
        {l1}:
        buffer_store_dword v{vt}, v{vt+1}, s[24:27], s{soff} offen sc1
        {l2}:""")
    else:
        a(f"buffer_store_dword v{vt}, v{vt+1}, s[24:27], s{soff} offen sc1")
    a("s_mov_b64 exec, -1")


def two_flavours(a, body):
    l1, l2 = uid("imp"), uid("ime")
    a(f"s_cmp_eq_u32 s{PURE}, 0\ns_cbranch_scc1 {l1}")
    body("")
    a(f"s_branch {l2}\n{l1}:")
    body("sc1")
    a(f"{l2}:")


def router_loader(a):
    a("""L_rld:
    s_load_dwordx2 s[8:9], s[0:1], 16
    s_add_u32 s41, s40, 98304
    s_branch L_rld_issue
    L_rld_loop:
    s_waitcnt vmcnt(12) lgkmcnt(0)
    s_barrier
    L_rld_issue:
    s_lshl_b32 s36, s33, 7
    s_add_u32 s36, s36, s34""")
    for n in range(4):
        a(f"""s_add_u32 m0, s40, {n*4096}
        s_add_u32 s38, s36, {n*40960}
        buffer_load_dwordx4 v10, s[16:19], s38 offen {OPT['rnt']} lds""")
    kc_next(a, 33)
    a("""s_add_u32 s40, s40, 16384
    s_cmp_eq_u32 s40, s41
    s_cselect_b32 s36, 98304, 0
    s_sub_u32 s40, s40, s36
    s_add_u32 s42, s42, 1
    s_cmp_lt_u32 s42, 4
    s_cbranch_scc1 L_rld_issue
    s_cmp_lt_u32 s42, 10
    s_cbranch_scc1 L_rld_loop""")
    srd(a, SS, 12, WS_END)
    srd(a, SW, 8, 819200)
    a(f"""s_add_u32 s{TAG}, s{TAG}, 0x9e3779b9
    v_mov_b32 v30, {M_PURE}""")
    for n in (12, 8, 4, 0):
        a(f"s_waitcnt vmcnt({n})\ns_barrier")
    if OPT["wmall"]:
        lds_wait(a, O_FD, 1)
        a(f"""v_min_u32 v5, 49, v1
        v_lshlrev_b32 v5, 7, v5
        s_lshl_b32 s36, s{XCD}, 1
        s_add_u32 s36, s36, s{RBL}
        s_lshl_b32 s36, s36, 2
        s_add_u32 s36, s36, s{WAVE}
        s_sub_u32 s36, s36, 4
        s_mul_i32 s36, s36, 12800
        s_add_u32 s37, s36, 6400
        buffer_load_dword v167, v5, s[20:23], s36 offen
        buffer_load_dword v167, v5, s[20:23], s37 offen""")
    a("s_branch L_att_setup")


def kc_init(a):
    def nib(o):
        v = sum(x << (4 * i) for i, x in enumerate(o))
        return v & 0xffffffff, v >> 32
    n0, n1, n2 = nib(range(10)), nib([1, 0, 3, 2, 5, 4, 7, 6, 9, 8]), nib([0, 2, 1, 4, 3, 6, 5, 8, 7, 9])
    a(f"s_mov_b32 s46, {n0[0]:#x}\ns_movk_i32 s47, {n0[1]:#x}")
    if OPT["swap"]:
        a(f"""s_and_b32 s36, s{LOC}, {3 if OPT["swap"] == 1 else 1}
        s_cmp_eq_u32 s36, 1
        s_cselect_b32 s46, {n1[0]:#x}, s46
        s_cselect_b32 s47, {n1[1]:#x}, s47
        s_cmp_eq_u32 s36, 3
        s_cselect_b32 s46, {n2[0]:#x}, s46
        s_cselect_b32 s47, {n2[1]:#x}, s47""")
    tab = {0: [0]*8, 1: range(8), 2: [7, 0, 1, 2, 3, 4, 5, 6], 3: [8, 0, 1, 2, 3, 5, 6, 7], 4: [7, 6, 5, 4, 3, 2, 1, 0], 5: [8, 0, 0, 2, 2, 4, 6, 6], 6: [8, 0, 2, 4, 6, 0, 2, 4]}[OPT["rot"]]
    a(f"""s_lshl_b32 s36, s{XCD}, 2
    s_lshr_b32 s48, {nib(tab)[0]:#x}, s36
    s_and_b32 s48, s48, 15""")
    n3 = nib([2, 3, 4, 5, 6, 7, 8, 9, 0, 1])
    a(f"""s_cmp_eq_u32 s{CT}, 15
    s_cselect_b32 s46, {n3[0]:#x}, s46
    s_cselect_b32 s47, {n3[1]:#x}, s47""")


def kc_next(a, d):
    a(f"""s_and_b32 s{d}, s46, 15
    s_lshr_b64 s[46:47], s[46:47], 4""")
    if OPT["rot"]:
        a(f"""s_add_u32 s{d}, s{d}, s48
        s_sub_u32 s36, s{d}, 10
        s_cselect_b32 s{d}, s{d}, s36""")


def entry(a):
    a(f""".globl {NAME}_kernel
    .p2align 8
    .type {NAME}_kernel,@function
    {NAME}_kernel:""")
    a("""s_cmp_ge_u32 s2, 256
    s_cbranch_scc1 L_exit""")
    stamp(a, 0)
    a(f"""s_load_dwordx4 s[4:7], s[0:1], 0
    s_load_dwordx2 s[12:13], s[0:1], 88
    v_lshrrev_b32 v2, 6, v0
    v_and_b32 v1, 63, v0
    v_readfirstlane_b32 s{WAVE}, v2
    s_and_b32 s{XCD}, s2, 7
    s_lshr_b32 s{LOC}, s2, 3
    s_and_b32 s{RBL}, s{LOC}, 1
    s_lshr_b32 s{CT}, s{LOC}, 1
    v_lshrrev_b32 v4, 4, v1""")
    if OPT["pf"]:
        a(f"""s_cmp_lg_u32 s{WAVE}, 0
        s_cbranch_scc1 L_nopf
        s_getpc_b64 s[36:37]
        L_pc:
        s_and_b32 s38, s{LOC}, 3
        s_mul_i32 s38, s38, 5760
        v_min_u32 v5, 44, v1
        v_lshl_add_u32 v5, v5, 7, s38
        v_min_u32 v5, L_code_end-L_pc-4, v5
        global_load_dword v167, v5, s[36:37]
        L_nopf:""")
    a(f"""s_cmp_lt_u32 s{WAVE}, 4
    s_cbranch_scc1 L_compute
    s_cmp_ge_u32 s{WAVE}, 8
    s_cbranch_scc1 L_help""")


def loader(a):
    a(f"""v_and_b32 v2, 3, v2
    v_lshrrev_b32 v3, 3, v1
    v_lshl_add_u32 v3, v2, 3, v3
    v_mul_u32_u24 v3, 1280, v3
    v_lshl_add_u32 v5, v2, 2, v4
    v_xor_b32 v6, v5, v1
    v_and_b32 v6, 7, v6
    v_lshl_add_u32 v10, v6, 4, v3
    v_mul_u32_u24 v5, 3840, v5
    v_lshrrev_b32 v6, 1, v2
    v_lshl_add_u32 v6, v6, 2, v4
    v_lshlrev_b32 v6, 1, v6
    v_xor_b32 v6, v6, v1
    v_and_b32 v6, 15, v6
    v_lshl_add_u32 v11, v6, 4, v5
    s_lshl_b32 s34, s{XCD}, 1
    s_add_u32 s34, s34, s{RBL}
    s_mul_i32 s34, s34, 128*1280
    s_lshl_b32 s35, s{CT}, 8
    s_and_b32 s40, s{WAVE}, 3
    s_lshl_b32 s40, s40, 10
    s_add_u32 s41, s40, 49152
    s_mov_b32 s42, 0
    s_mov_b32 s18, 2621440
    s_mov_b32 s19, 0x20000
    s_mov_b32 s22, 2457600
    s_mov_b32 s23, 0x20000""")
    kc_init(a)
    kc_next(a, 33)
    if OPT["xpf"]:
        a(f"""v_lshrrev_b32 v5, 3, v1
        s_lshl_b32 s36, s{CT}, 3
        v_add_u32 v5, s36, v5
        v_mul_u32_u24 v5, 1280, v5
        v_and_b32 v6, 7, v1
        v_add3_u32 v6, v6, {"s%d" % XCD if OPT["rot"] else 0}, 2
        v_subrev_u32 v7, 10, v6
        v_min_u32 v6, v6, v7
        v_lshl_add_u32 v12, v6, 7, v5""")
    a("""s_waitcnt lgkmcnt(0)
    s_mov_b32 s16, s4
    s_mov_b32 s17, s5
    s_mov_b32 s20, s6
    s_mov_b32 s21, s7""")
    epoch_load(a)
    stamp(a, 1)
    if OPT["dly"]:
        a(f"s_bitcmp1_b32 s{CT}, 0\ns_cbranch_scc0 L_nd\ns_sleep {OPT['dly']}\nL_nd:")
    a(f"""s_cmp_eq_u32 s{CT}, 15
    s_cbranch_scc1 L_rld
    s_branch L_ld_issue
    L_ld_loop:
    s_waitcnt vmcnt(8) lgkmcnt(0)
    s_barrier""")
    if OPT["stamp"] in (1, 2):
        a("""s_memrealtime s[44:45]
        s_waitcnt lgkmcnt(0)
        s_mov_b32 m0, s42
        s_nop 0
        v_writelane_b32 v166, s44, m0""")
    a(f"""L_ld_issue:
    s_lshl_b32 s36, s33, 7
    s_add_u32 s36, s36, s34
    {"s_and_b32 s33, s33, 1" if OPT["gx"] == 1 else ""}
    s_mul_i32 s37, s33, 245760
    s_add_u32 s37, s37, s35""")
    lx = [f"""s_add_u32 m0, s40, {n*4096}
        s_add_u32 s38, s36, {n*40960}
        buffer_load_dwordx4 v10, s[16:19], s38 offen {OPT['xnt']} lds""" for n in range(4)]
    lw = [f"""s_add_u32 m0, s40, {L_RW+n*4096}
        s_add_u32 s39, s37, {n*61440}
        buffer_load_dwordx4 v11, s[20:23], s39 offen {OPT['wfl']} lds""" for n in range(4)]
    for l in {0: [x for p in zip(lx, lw) for x in p], 1: lw + lx, 2: lx + lw}[OPT["lord"]]:
        a(l)
    kc_next(a, 33)
    if OPT["xpf"]:
        a(f"""s_add_u32 s36, s42, s{WAVE}
        s_cmp_lg_u32 s36, 4
        s_cbranch_scc1 L_noxpf
        buffer_load_dword v167, v12, s[16:19], s34 offen {OPT['xnt']}
        L_noxpf:""")
    a("""s_add_u32 s40, s40, 16384
    s_cmp_eq_u32 s40, s41
    s_cselect_b32 s36, 49152, 0
    s_sub_u32 s40, s40, s36
    s_add_u32 s42, s42, 1
    s_cmp_lt_u32 s42, 2
    s_cbranch_scc1 L_ld_issue
    s_cmp_lt_u32 s42, 10
    s_cbranch_scc1 L_ld_loop""")
    srd(a, SS, 12, WS_END)
    a(f"s_add_u32 s{TAG}, s{TAG}, 0x9e3779b9")
    pre = 0
    a(f"""s_waitcnt vmcnt({8+pre})
    s_barrier""")
    stamp(a, 2)
    a(f"""s_waitcnt vmcnt({pre})
    s_barrier""")
    stamp(a, 3)
    a("s_branch L_att_setup")


ACC, F0, F1 = 32, 96, 128
def compute(a):
    a("L_compute:")
    if (OPT["qloc"] and OPT["qat"] == -1) or OPT["tlb0"]:
        a(f"""s_mul_i32 s36, s{XCD}, {XB}
        s_mov_b32 s26, {WS_END}
        s_mov_b32 s27, 0x20000""")
        if OPT["qloc"] and OPT["qat"] == -1:
            a(f"""s_lshl_b32 s37, s{LOC}, 2
            s_add_u32 s37, s37, s{WAVE}
            s_mul_i32 s37, s37, 2560
            s_add_u32 s37, s37, s36
            v_min_u32 v5, 19, v1
            v_lshlrev_b32 v5, 7, v5""")
        if OPT["tlb0"]:
            a(f"""s_sub_u32 s38, s36, {XB}
            s_max_i32 s38, s38, 0
            v_min_u32 v6, 2, v1
            v_mul_u32_u24 v6, {XB-64}, v6""")
        a("""s_waitcnt lgkmcnt(0)
        s_mov_b32 s24, s12
        s_mov_b32 s25, s13""")
        if OPT["qloc"] and OPT["qat"] == -1:
            a("buffer_load_dword v167, v5, s[24:27], s37 offen sc1")
        if OPT["tlb0"]:
            a(f"""s_cmp_lg_u32 s{WAVE}, 1
            s_cbranch_scc1 L_not0
            buffer_load_dword v167, v6, s[24:27], s38 offen sc1
            L_not0:""")
    a(f"""v_and_b32 v3, 15, v1
    s_and_b32 s36, s{WAVE}, 1          ; wc
    s_lshr_b32 s37, s{WAVE}, 1         ; wt
    s_lshl_b32 s38, s37, 13
    s_lshl_b32 s39, s{WAVE}, 12
    s_cmp_eq_u32 s{CT}, 15
    s_cselect_b32 s38, s39, s38
    v_lshrrev_b32 v5, 1, v3
    v_xor_b32 v5, v5, v4
    v_lshlrev_b32 v5, 4, v5
    v_lshl_add_u32 v12, v3, 7, v5
    v_add_u32 v12, s38, v12
    v_xor_b32 v13, 64, v12
    v_bfe_u32 v5, v1, 2, 2             ; r
    v_lshl_add_u32 v6, v4, 3, v5
    v_lshlrev_b32 v6, 8, v6
    v_and_b32 v7, 1, v4
    v_lshl_add_u32 v5, v7, 2, v5
    v_lshlrev_b32 v5, 1, v5            ; f(row)
    v_and_b32 v7, 3, v1
    s_lshl_b32 s39, s36, 3
    v_add_u32 v7, s39, v7
    v_xor_b32 v5, v5, v7
    v_lshl_add_u32 v6, v5, 4, v6
    v_bfe_u32 v5, v1, 1, 1
    v_lshl_add_u32 v6, v5, 3, v6
    v_add_u32 v14, {L_RW}, v6
    v_xor_b32 v15, 8, v14
    v_xor_b32 v16, 64, v14
    v_xor_b32 v17, 0x48, v14
    v_lshlrev_b32 v18, 4, v3
    v_lshl_add_u32 v18, v4, 12, v18
    v_mov_b32 v19, {M_PURE}
    s_mul_i32 s34, s{XCD}, {XB}
    s_lshl_b32 s39, s{CT}, 16
    s_add_u32 s34, s34, s39
    s_lshl_b32 s39, s36, 15
    s_add_u32 s34, s34, s39
    s_lshl_b32 s39, s{RBL}, 11
    s_add_u32 s34, s34, s39
    s_lshl_b32 s39, s37, 10
    s_add_u32 s34, s34, s39
    s_add_u32 s35, s34, 16384
    s_mov_b32 s42, 0
    s_mov_b32 s43, 0
    s_waitcnt lgkmcnt(0)""")
    epoch_load(a)
    srd(a, SS, 12, WS_END)
    for i in range(64):
        a(f"v_mov_b32 v{ACC+i}, 0")
    epoch_fin(a)
    stamp(a, 1)
    a(f"s_cmp_eq_u32 s{CT}, 15\ns_cbranch_scc1 L_router")

    def reads(ks, F):
        r = []
        def A(j):
            r.append(f"ds_read_b64_tr_b16 v[{F+4*j}:{F+4*j+1}], v{14+j} offset:{ks*8192}")
            r.append(f"ds_read_b64_tr_b16 v[{F+4*j+2}:{F+4*j+3}], v{14+j} offset:{ks*8192+1024}")
        A(0)
        for t in range(4):
            r.append(f"ds_read_b128 {vr(F+16+4*t,4)}, v{12+ks} offset:{t*2048}")
        A(1); A(2); A(3)
        return r

    def phase(F, rd, bar, extra):
        a("s_waitcnt lgkmcnt(6)")
        n = 0
        for j in range(4):
            if j == 1:
                a("s_waitcnt lgkmcnt(0)")
                if bar:
                    a("s_cbranch_scc0 L_g_nb\ns_barrier\nL_g_nb:")
            for t in (range(4) if not (OPT["serp"] and j & 1) else range(3, -1, -1)):
                d = ACC + (j * 4 + t) * 4
                a(f"v_mfma_f32_16x16x32_bf16 {vr(d,4)}, {vr(F+4*j,4)}, {vr(F+16+4*t,4)}, {vr(d,4)}")
                if j == 0:
                    a(extra[t])
                else:
                    a(rd[n]); n += 1

    a("s_barrier")
    stamp(a, 2)
    for l in reads(0, F0):
        a(l)
    a("L_g_loop:")
    phase(F0, reads(1, F1), False, ["""s_add_u32 s43, s43, 1
        s_cmp_eq_u32 s43, 3""", "s_cselect_b32 s44, -32768, 16384" if False else """s_cselect_b32 s44, 0xffff8000, s45
        """, "s_cselect_b32 s43, 0, s43\ns_add_u32 s42, s42, 1", ""])
    phase(F1, reads(0, F0), True, ["v_add_u32 v12, s44, v12\nv_add_u32 v13, s44, v13", "v_add_u32 v14, s44, v14\nv_add_u32 v15, s44, v15",
                                   "v_add_u32 v16, s44, v16\nv_add_u32 v17, s44, v17", "s_cmp_lt_u32 s42, 10"])
    a("s_cbranch_scc1 L_g_loop\nL_g_end:")
    stamp(a, 3)
    a("ds_read_b32 v20, v19")

    def epi(scale, sc="sc1"):
        for p in range(2):
            for t in range(4):
                o = F1 + (p * 4 + t) * 4
                for h in range(2):
                    d = ACC + ((2 * p + h) * 4 + t) * 4
                    if scale:
                        a(f"v_pk_mul_f32 {vr(d,2)}, {vr(d,2)}, s[38:39]\nv_pk_mul_f32 {vr(d+2,2)}, {vr(d+2,2)}, s[38:39]")
                    a(f"v_cvt_pk_bf16_f32 v{o+2*h}, v{d}, v{d+1}\nv_cvt_pk_bf16_f32 v{o+2*h+1}, v{d+2}, v{d+3}")
                a(f"buffer_store_dwordx4 {vr(o,4)}, v18, s[24:27], s{34+p} offen offset:{t*256} {sc}")
    a(f"""s_cmp_ge_u32 s{CT}, 5
    s_cbranch_scc1 L_noscale
    s_mov_b32 s38, {f32(QSCALE)}
    s_mov_b32 s39, s38""")
    if OPT["qloc"]:
        a(f"""s_waitcnt lgkmcnt(0)
        v_cmp_eq_u32 vcc, 0, v20
        s_cbranch_vccnz L_q_far""")
        epi(True, "")
        a("s_branch L_pubflag\nL_q_far:")
        for i in range(0, 64, 2):
            a(f"v_pk_mul_f32 {vr(ACC+i,2)}, {vr(ACC+i,2)}, s[38:39]")
        a("L_noscale:")
    else:
        epi(True)
        a("s_branch L_pubflag\nL_noscale:")
    epi(False)
    a(f"""L_pubflag:
    s_lshl_b32 s36, s{XCD}, 4
    s_add_u32 s36, s36, s{CT}
    s_lshl_b32 s36, s36, 1
    s_and_b32 s37, s{WAVE}, 1
    s_add_u32 s36, s36, s37
    s_lshl_b32 s40, s36, 7
    s_lshl_b32 s36, s36, 4
    s_lshl_b32 s37, s{RBL}, 3
    s_and_b32 s38, s{WAVE}, 2
    s_lshl_b32 s38, s38, 1
    s_add_u32 s37, s37, s38
    s_add_u32 s36, s36, s37
    s_add_u32 s56, s36, {WS_FL}
    s_add_u32 s40, s40, s37
    s_add_u32 s57, s40, {WS_FR}
    s_mov_b32 s58, 1
    s_waitcnt lgkmcnt(0)
    v_readfirstlane_b32 s{PURE}, v20
    s_branch L_att_setup1""")


def router(a):
    a("L_router:")
    kc_init(a)
    kc_next(a, 33)
    a(f"""v_and_b32 v5, 1, v1
    v_lshlrev_b32 v5, 11, v5
    v_lshl_add_u32 v14, v4, 4, v5
    v_add_u32 v14, {L_WV}, v14
    L_r_loop:
    s_barrier
    s_lshl_b32 s36, s33, 7
    v_add_u32 v15, s36, v14""")
    for ks in range(2):
        a(f"""ds_read_b128 {vr(F0+12*ks,4)}, v15 offset:{ks*64}
        ds_read_b128 {vr(F0+12*ks+4,4)}, v{12+ks}
        ds_read_b128 {vr(F0+12*ks+8,4)}, v{12+ks} offset:2048""")
    kc_next(a, 33)
    a("""s_add_u32 s43, s43, 1
    s_cmp_eq_u32 s43, 6
    s_cselect_b32 s44, 0xfffec000, s45
    s_cselect_b32 s43, 0, s43
    v_add_u32 v12, s44, v12
    v_add_u32 v13, s44, v13
    s_waitcnt lgkmcnt(0)""")
    for ks in range(2):
        for t in range(2):
            a(f"v_mfma_f32_16x16x32_bf16 {vr(ACC+4*t,4)}, {vr(F0+12*ks,4)}, {vr(F0+12*ks+4+4*t,4)}, {vr(ACC+4*t,4)}")
    a(f"""s_add_u32 s42, s42, 1
    s_cmp_lt_u32 s42, 10
    s_cbranch_scc1 L_r_loop
    s_nop 1
    s_lshl_b32 s36, s{XCD}, 8
    s_lshl_b32 s37, s{RBL}, 7
    s_add_u32 s36, s36, s37
    s_lshl_b32 s37, s{WAVE}, 5
    s_add_u32 s36, s36, s37
    s_mov_b32 s37, {WS_G}""")
    stamp(a, 3)
    for t in range(2):
        a(f"""v_add3_u32 v{14+t}, s36, v3, {16*t}
        v_cvt_pk_bf16_f32 v{26+t}, v{ACC+4*t}, v{ACC+4*t+1}
        v_lshlrev_b32 v{21+t}, 16, v{26+t}
        v_ashrrev_i32 v24, 31, v{21+t}
        v_or_b32 v24, 0x80000000, v24
        v_xor_b32 v{21+t}, v{21+t}, v24
        v_and_b32 v{21+t}, 0xffff0000, v{21+t}
        v_sub_u32 v24, 0xffff, v{14+t}
        v_or_b32 v{21+t}, v{21+t}, v24""")
    top2(a, 21, 22, 25, 46, 47, 48, True)
    a(f"""s_lshr_b32 s36, s36, 1
    s_add_u32 s36, s36, {WS_CAND}
    v_mov_b32 v28, s46
    v_mov_b32 v29, s{TAG}
    v_mov_b32 v30, s47
    v_mov_b32 v31, s{TAG}
    s_mov_b64 exec, 1
    buffer_store_dwordx4 v[28:31], off, s[24:27], s36 sc1
    s_mov_b64 exec, 0xffff""")
    for t in range(2):
        a(f"v_and_b32 v23, 0xffff0000, v{26+t}")
        sigmoid(a, 23, "v23")
        a(f"""v_cvt_pk_bf16_f32 v23, v23, v23
        v_and_b32 v{26+t}, 0xffff0000, v23
        v_lshlrev_b32 v24, 2, v{14+t}
        buffer_store_dword v{26+t}, v24, s[24:27], s37 offen sc1""")
    a(f"""s_mov_b64 exec, 1
    s_lshl_b32 s36, s{XCD}, 5
    s_add_u32 s36, s36, s{LOC}
    s_lshl_b32 s36, s36, 2
    s_add_u32 s36, s36, s{WAVE}
    s_lshl_b32 s36, s36, 2
    s_add_u32 s36, s36, {WS_FL}
    v_mov_b32 v9, 1
    s_waitcnt vmcnt(0)
    buffer_store_dword v29, off, s[24:27], s36 sc1
    ds_add_u32 v19, v9 offset:{O_R}
    s_mov_b64 exec, -1""")
    stamp(a, 4)
    a(f"v_mov_b32 v30, {M_PURE}")
    lds_wait(a, O_FD, 1)
    a("s_branch L_att_setup")


Q, QH, KH, K, V, P, S0, S1, O, M = 32, 36, 38, 40, 44, 52, 64, 80, 96, 112
KA, KHA, VA, QA, QHA, G, G2, XA, XR = 12, 13, 14, 15, 16, 17, 18, 19, 20
TT, NT, HI_ = 33, 34, 35
SQ, SQH = 46, 47


WF, OF, NOF, PA = 32, 92, 9, 128
OL, OH, WL, WH, OUT, LIN, FLG, YA, TOK, VTAG = 148, 149, 150, 152, 156, 159, 160, 161, 162, 163


def outproj_setup(a):
    a(f"""v_and_b32 v164, 15, v1
    v_lshrrev_b32 v165, 4, v1
    v_lshrrev_b32 v5, 1, v165
    v_add_u32 v6, v165, v5
    v_lshlrev_b32 v7, 4, v164
    v_lshl_add_u32 v{OL}, v6, 12, v7
    v_and_b32 v6, 1, v165
    v_lshl_add_u32 v8, v6, 1, v5
    v_mul_u32_u24 v9, {5*4096}, v8
    v_add_u32 v{OH}, v9, v7
    v_mul_u32_u24 v5, 20, v5
    v_lshl_add_u32 v5, v6, 2, v5
    v_bfe_u32 v7, v1, 2, 2
    v_add_u32 v5, v5, v7
    v_mul_u32_u24 v5, 160, v5
    v_and_b32 v9, 3, v1
    v_lshlrev_b32 v9, 3, v9
    v_add_u32 v9, {L_WO}, v9
    v_add_u32 v{WL}, v5, v9
    v_add_u32 v{WL+1}, {8*6400}, v{WL}
    v_mul_u32_u24 v8, 40, v8
    v_add3_u32 v8, v8, v7, 16
    v_mul_u32_u24 v8, 160, v8
    v_add_u32 v8, v8, v9
    v_mul_u32_u24 v6, 3200, v6
    v_add_u32 v{WH+1}, v8, v6
    v_sub_u32 v{WH}, v8, v6
    v_add_u32 v{WH}, 3200, v{WH}
    v_add_u32 v{WH+2}, {8*6400}, v{WH}
    v_add_u32 v{WH+3}, {8*6400}, v{WH+1}""")
    for t in range(5):
        for j in range(2):
            a(f"""v_lshlrev_b32 v{PA+4*t+2*j}, 16, v{XR+2*t+j}
            v_and_b32 v{PA+4*t+2*j+1}, 0xffff0000, v{XR+2*t+j}""")
    for n in range(3):
        a(f"""v_add_u32 v5, {64*n}, v1
        v_mul_u32_u24 v6, 6554, v5
        v_lshrrev_b32 v6, 16, v6
        v_mul_u32_u24 v7, 10, v6
        v_sub_u32 v7, v5, v7
        v_mul_u32_u24 v6, 1280, v6
        v_lshl_add_u32 v{OUT+n}, v7, 4, v6""")
    a(f"""v_lshl_add_u32 v{OUT+2}, v4, 28, v{OUT+2}
    s_mul_i32 s36, s{WAVE}, 2560
    v_add_u32 v{LIN}, s36, v10
    v_lshlrev_b32 v{FLG}, 2, v3
    v_lshl_add_u32 v{YA}, v165, 4, v30
    v_add_u32 v{TOK}, s51, v164
    s_mul_i32 s56, s51, 1280
    s_lshr_b32 s37, s{LOC}, 2
    s_mul_i32 s37, s37, 160
    s_add_u32 s56, s56, s37
    s_lshr_b32 s57, s51, 5
    s_lshl_b32 s57, s57, 7
    s_add_u32 s57, s57, {WS_FO}
    s_mul_i32 s58, s{XCD}, {XB}
    s_and_b32 s38, s51, 255
    s_lshl_b32 s38, s38, 4
    s_add_u32 s58, s58, s38            ; O pieces
    s_add_u32 s59, s58, 8192
    s_waitcnt vmcnt(5)
    v_sub_f32 v{G2}, 1.0, v{G2}""")
    for i in range(20):
        a(f"v_mul_f32 v{PA+i}, v{G2}, v{PA+i}")


def diag_mask(a, old):
    a(f"""v_lshlrev_b32 v6, 2, v4
    v_sub_u32 v6, v3, v6
    v_mov_b32 v7, 0xff800000""")
    for r in range(0, 16, 2):
        k0, k1 = (r >> 2) * 8 + (r & 3), (r >> 2) * 8 + (r & 3) + 1
        a(f"""v_cmp_le_i32 s[44:45], {k0}, v6
        v_cmp_le_i32 s[48:49], {k1}, v6
        s_nop 0
        v_cndmask_b32_e64 v{S0+r}, v7, 0, s[44:45]
        v_cndmask_b32_e64 v{S0+r+1}, v7, 0, s[48:49]""")
        if old:
            a(f"""v_cndmask_b32_e64 v{M+r}, 0, v7, s[44:45]
            v_cndmask_b32_e64 v{M+r+1}, 0, v7, s[48:49]""")


def attention(a):
    SRC = WS_L
    a("L_att_setup:\ns_mov_b32 s58, 0\nL_att_setup1:\ns_load_dwordx2 s[52:53], s[0:1], 72\ns_mov_b32 s54, 2621440\ns_mov_b32 s55, 0x20000")
    a(f"""s_and_b32 s31, s{LOC}, 1
    s_mul_i32 s40, s{LOC}, 5
    s_lshr_b32 s40, s40, 1            ; c0
    s_sub_u32 s{TT}, 11, s{WAVE}
    s_cmp_lt_u32 s{WAVE}, 4
    s_cselect_b32 s{TT}, s{WAVE}, s{TT}
    s_add_u32 s36, s{TT}, 1
    s_cmp_eq_u32 s{XCD}, 0
    s_cselect_b32 s{NT}, s36, 9
    s_cselect_b32 s36, 4, 17
    s_movk_i32 s37, 0xff
    s_cselect_b32 s37, 0x3ff, s37
    s_lshl_b32 s36, s36, s{TT}
    s_and_b32 s{HI_}, s36, s37
    s_lshr_b32 s36, s{LOC}, 2
    s_xor_b32 s36, s36, s31
    s_andn2_b32 s41, 1, s36
    s_lshl_b32 s41, s41, 3
    s_xor_b32 s42, s31, 1
    s_lshl_b32 s42, s42, 1
    s_mul_i32 s36, s{XCD}, 240
    s_add_u32 s36, s36, s40
    s_lshl_b32 s43, s36, 12
    s_lshl_b32 s37, s{TT}, 9
    s_add_u32 s36, s43, s37
    s_lshl_b32 s38, s31, 12
    s_add_u32 s{SQ}, s36, s38
    s_lshl_b32 s38, s42, 12
    s_add_u32 s38, s38, s41
    s_add_u32 s{SQH}, s36, s38
    v_lshlrev_b32 v10, 4, v1
    v_and_b32 v3, 31, v1
    v_lshrrev_b32 v4, 5, v1
    v_lshlrev_b32 v5, 4, v3
    v_lshl_add_u32 v{QA}, v4, 12, v5
    v_lshl_add_u32 v{QHA}, v4, 28, v5
    s_mul_i32 s38, s31, {CS}
    s_add_u32 s38, s38, s37
    v_mul_u32_u24 v6, {CS}, v4
    v_add3_u32 v{KA}, v6, v5, s38
    s_mul_i32 s38, s42, {CS}
    s_add_u32 s38, s38, s41
    s_add_u32 s38, s38, s37
    v_add_u32 v6, s38, v5
    v_mov_b32 v9, {L_ONES}
    v_cmp_eq_u32 s[44:45], 0, v4
    v_bfe_u32 v7, v1, 4, 1
    v_and_b32 v8, 3, v1
    v_add_u32 v11, 8, v9
    v_cndmask_b32_e64 v{KHA}, v11, v6, s[44:45]
    v_lshl_add_u32 v6, v7, 2, v8      ; gamma
    v_add_u32 v7, s31, v6
    v_lshrrev_b32 v8, 1, v7
    v_add_u32 v11, s40, v8
    v_lshrrev_b32 v11, 1, v11
    v_xor_b32 v7, v7, v11
    v_and_b32 v7, 1, v7
    v_mul_u32_u24 v8, {CS}, v8
    v_lshl_add_u32 v8, v7, 3, v8
    s_add_u32 s38, s37, {L_V}
    v_add_u32 v8, s38, v8
    v_cmp_gt_u32 s[44:45], 5, v6
    v_bfe_u32 v7, v1, 2, 2
    v_lshl_add_u32 v7, v4, 2, v7
    v_cndmask_b32_e64 v8, v9, v8, s[44:45]
    v_lshl_add_u32 v{VA}, v7, 4, v8""")
    diag_mask(a, True)
    a(f"""s_lshr_b32 s36, s{WAVE}, 2
    s_mul_i32 s37, s36, {L_V}
    s_add_u32 s36, s36, 1
    s_mul_i32 s36, s36, {80*4096}
    s_add_u32 s36, s36, s43
    s_and_b32 s38, s{WAVE}, 3
    s_mul_i32 s38, s38, 3
    v_and_b32 v5, 15, v1
    v_mul_u32_u24 v6, 160, v5
    v_lshrrev_b32 v7, 4, v1
    v_lshl_add_u32 v6, v7, 3, v6
    s_and_b32 s39, s{WAVE}, 3
    s_mul_i32 s44, s39, 2560
    v_add_u32 v{XA}, s44, v6
    s_and_b32 s44, s{LOC}, 3
    s_lshl_b32 s44, s44, {5 if OPT["rowmap"] else 6}
    s_lshl_b32 s45, s{XCD}, 8
    s_add_u32 s48, s44, s45
    s_and_b32 s44, s39, 1
    s_lshl_b32 s44, s44, 4
    s_add_u32 s51, s48, s44
    s_and_b32 s44, s39, 2
    s_lshl_b32 s44, s44, {6 if OPT["rowmap"] else 4}
    s_add_u32 s51, s51, s44
    s_lshl_b32 s39, s{TT}, 5
    s_add_u32 s39, s39, s45
    v_add_lshl_u32 v6, s39, v3, 2
    v_add_lshl_u32 v7, s51, v5, 2
    s_mov_b32 s39, {WS_G}
    v_add_u32 v11, {L_XT}, v{XA}
    v_mov_b32 v30, {M_PURE}
    v_mov_b32 v2, 1
    v_mov_b32 v{VTAG}, s{TAG}
    s_mov_b32 s40, 0""")
    for t in range(5):
        a(f"ds_read_b64 {vr(XR+2*t,2)}, v11 offset:{t*32}")
    for i in range(3):
        a(f"""s_add_u32 s44, s38, {i}
        s_lshr_b32 s45, s44, 2
        s_mul_i32 s45, s45, {CS-4096}
        s_lshl_b32 s44, s44, 10
        s_add_u32 s45, s45, s44
        s_add_u32 s45, s45, s37
        s_add_u32 s{4+2*i}, s45, 4096
        s_add_u32 s{5+2*i}, s44, s36""")
    a(f"""s_mov_b32 m0, s4
    s_cmp_eq_u32 s58, 0
    s_cbranch_scc1 L_nopub
    s_mov_b64 exec, 1
    s_waitcnt vmcnt(0)""")
    stamp(a, 4)
    two_flavours(a, lambda sc: a(f"buffer_store_dword v{VTAG}, off, s[24:27], s56 {sc}"))
    a(f"""s_cmp_lt_u32 s{CT}, 5
    s_cbranch_scc1 L_norf
    buffer_store_dword v{VTAG}, off, s[24:27], s57 sc1
    L_norf:
    ds_add_u32 v30, v2 offset:{O_R}
    s_mov_b64 exec, -1
    L_nopub:
    s_waitcnt lgkmcnt(0)
    s_barrier""")
    stamp(a, 5)
    a(f"""buffer_load_dwordx4 v10, s[24:27], s5 offen sc1 lds
    s_mov_b32 m0, s6
    buffer_load_dword v{G2}, v7, s[24:27], s39 offen sc1
    buffer_load_dwordx4 v10, s[24:27], s7 offen sc1 lds
    s_mov_b32 m0, s8
    buffer_load_dwordx4 {vr(Q,4)}, v{QA}, s[24:27], s{SQ} offen sc1
    buffer_load_dwordx4 v10, s[24:27], s9 offen sc1 lds
    buffer_load_dwordx2 {vr(QH,2)}, v{QHA}, s[24:27], s{SQH} offen sc1
    buffer_load_dword v{G}, v6, s[24:27], s39 offen sc1""")
    outproj_setup(a)
    a("s_waitcnt vmcnt(0)")
    a("ds_read_b32 v31, v30")
    lds_add(a, O_B2)
    lds_wait(a, O_B2, 8)
    if OPT["aprio"]:
        a(f"s_setprio {OPT['aprio']}")
    stamp(a, 6)
    off = lambda i: (8 - i) * 512
    rdK = lambda i: f"ds_read_b128 {vr(K,4)}, v{KA} offset:{off(i)}"
    rdKH = lambda i: f"ds_read_b64 {vr(KH,2)}, v{KHA} offset:{off(i)}"
    rdV = lambda i, h: f"ds_read_b64_tr_b16 {vr(V+4*h,2)}, v{VA} offset:{off(i)+256*h}\nds_read_b64_tr_b16 {vr(V+4*h+2,2)}, v{VA} offset:{off(i)+256*h+128}"
    stubs = []
    def halo_check(tval):
        stubs.append(tval)
        a(f"s_bitcmp1_b32 s{HI_}, {tval}\ns_cbranch_scc1 L_hw{tval}\nL_hr{tval}:")
    a("L_att_go:")
    a(rdK(0)); a(rdKH(0)); a(rdV(0, 0))
    halo_check(0)
    a(f"""s_waitcnt lgkmcnt(2)
    v_mfma_f32_32x32x16_bf16 {vr(S0,16)}, {vr(K,4)}, {vr(Q,4)}, {vr(S0,16)}""")
    a(rdK(1))
    a(f"v_mfma_f32_32x32x8_bf16 {vr(S0,16)}, {vr(KH,2)}, {vr(QH,2)}, {vr(S0,16)}")
    a(rdKH(1))
    a(f"""v_readfirstlane_b32 s{PURE}, v31
    s_nop 4
    s_waitcnt lgkmcnt(0)""")

    def softq(S, q):
        for j in range(4):
            a(f"v_exp_f32 v{S+4*q+j}, v{S+4*q+j}")
        for j in range(2):
            a(f"v_cvt_pk_bf16_f32 v{P+2*q+j}, v{S+4*q+2*j}, v{S+4*q+2*j+1}")

    for i in range(9):
        S, SN = (S0, S1) if i % 2 == 0 else (S1, S0)
        halo_check(i + 1)
        if i > 0:
            a("s_waitcnt lgkmcnt(2)")
        if i < 8:
            c = vr(M, 16) if i + 1 == 8 else "0"
            a(f"v_mfma_f32_32x32x16_bf16 {vr(SN,16)}, {vr(K,4)}, {vr(Q,4)}, {c}")
        nread = 0
        if i < 7:
            a(rdK(i + 2)); nread += 1
        softq(S, 0)
        if i > 0:
            a(f"v_mfma_f32_32x32x16_bf16 {vr(O,16)}, {vr(V+4,4)}, {vr(P+4,4)}, {vr(O,16)}")
        a(rdV(i, 1)); nread += 2
        softq(S, 1)
        if i < 8:
            a(f"v_mfma_f32_32x32x8_bf16 {vr(SN,16)}, {vr(KH,2)}, {vr(QH,2)}, {vr(SN,16)}")
        if i < 7:
            a(rdKH(i + 2)); nread += 1
        softq(S, 2)
        a(f"s_waitcnt lgkmcnt({nread})")
        a(f"v_mfma_f32_32x32x16_bf16 {vr(O,16)}, {vr(V,4)}, {vr(P,4)}, {'0' if i == 0 else vr(O,16)}")
        if i < 8:
            a(rdV(i + 1, 0))
        softq(S, 3)
    a(f"""L_att_fin:
    s_waitcnt lgkmcnt(0)
    s_nop 0
    v_mfma_f32_32x32x16_bf16 {vr(O,16)}, {vr(V+4,4)}, {vr(P+4,4)}, {vr(O,16)}
    s_lshl_b32 s36, s{XCD}, 3
    s_add_u32 s36, s36, s{TT}
    s_lshl_b32 s36, s36, 5
    s_add_u32 s36, s36, s{LOC}
    s_lshl_b32 s36, s36, 2
    s_add_u32 s36, s36, {WS_FO}
    s_mov_b32 s37, {f32(2.0**-64)}
    s_mov_b32 s38, {f32(2.0**64 if not OPT['forcefb'] else 2.0**12)}
    s_nop 3
    v_rcp_f32 v8, v{O+12}
    v_cmp_nle_f32 s[44:45], s37, v{O+12}
    v_cmp_nge_f32 vcc, s38, v{O+12}
    v_mul_f32 v8, v8, v{G}
    s_or_b64 vcc, vcc, s[44:45]
    s_cbranch_vccnz L_fallback
    L_att_ok:""")
    for r in range(6):
        a(f"v_pk_mul_f32 {vr(O+2*r,2)}, {vr(O+2*r,2)}, v[8:9] op_sel_hi:[1,0]")
    for r in range(6):
        a(f"v_cvt_pk_bf16_f32 v{P+r}, v{O+2*r}, v{O+2*r+1}")
    def pub(sc):
        a(f"""buffer_store_dwordx4 {vr(P,4)}, v{QA}, s[24:27], s{SQ} offen {sc}
        buffer_store_dwordx2 {vr(P+4,2)}, v{QHA}, s[24:27], s{SQH} offen {sc}""")
        stamp(a, 7)
        a(f"""s_mov_b64 exec, 1
        ds_add_u32 v30, v2 offset:{O_ATT}
        ds_read_b64 v[62:63], v30 offset:16
        s_waitcnt vmcnt(0)
        buffer_store_dword v{VTAG}, off, s[24:27], s36 {sc}
        s_mov_b64 exec, -1""")
    two_flavours(a, pub)
    stamp(a, 8)
    return stubs


def att_stubs(a, stubs):
    for t in stubs:
        a(f"L_hw{t}:")
        if t >= 8:
            a("s_branch L_att_fin")
            continue
        if t >= 2:
            a(f"s_cmp_eq_u32 s{XCD}, 0\ns_cbranch_scc1 L_att_fin")
        a(f"""s_cmp_eq_u32 s{TT}, {t}
        s_cselect_b32 s36, 1, 2
        s_mov_b32 s50, {SPIN*8}
        L_hs{t}:
        ds_read_b32 v9, v30 offset:4
        s_sub_u32 s50, s50, 1
        s_cbranch_scc1 L_hr{t}
        s_waitcnt lgkmcnt(0)
        v_cmp_gt_u32 vcc, s36, v9
        s_cbranch_vccnz L_hs{t}
        s_branch L_hr{t}""")
    a(f"""L_fallback:
    s_cmp_lg_u32 s40, 0
    s_cbranch_scc1 L_att_ok
    s_mov_b32 s40, 1""")
    diag_mask(a, False)
    a(f"""v_mov_b32 v8, 0xff800000
    v_add_u32 v5, 4096, v{KA}
    v_add_u32 v6, 4096, v{KHA}
    s_mov_b32 s36, 0
    L_fb_loop:
    ds_read_b128 {vr(K,4)}, v5
    ds_read_b64 {vr(KH,2)}, v6
    v_subrev_u32 v5, 512, v5
    v_subrev_u32 v6, 512, v6
    s_waitcnt lgkmcnt(0)
    s_cmp_eq_u32 s36, 0
    s_cbranch_scc1 L_fb_a
    s_cmp_eq_u32 s36, 8
    s_cbranch_scc1 L_fb_b
    v_mfma_f32_32x32x16_bf16 {vr(S1,16)}, {vr(K,4)}, {vr(Q,4)}, 0
    s_branch L_fb_c
    L_fb_a:
    v_mfma_f32_32x32x16_bf16 {vr(S1,16)}, {vr(K,4)}, {vr(Q,4)}, {vr(S0,16)}
    s_branch L_fb_c
    L_fb_b:
    v_mfma_f32_32x32x16_bf16 {vr(S1,16)}, {vr(K,4)}, {vr(Q,4)}, {vr(M,16)}
    L_fb_c:
    v_mfma_f32_32x32x8_bf16 {vr(S1,16)}, {vr(KH,2)}, {vr(QH,2)}, {vr(S1,16)}
    s_nop 11""")
    for r in range(0, 16, 2):
        a(f"v_max3_f32 v8, v8, v{S1+r}, v{S1+r+1}")
    a(f"""s_add_u32 s36, s36, 1
    s_cmp_lt_u32 s36, s{NT}
    s_cbranch_scc1 L_fb_loop
    v_mov_b32 v9, v8
    s_nop 1
    v_permlane32_swap_b32 v8, v9
    v_max_f32 v8, v8, v9
    v_sub_f32 v8, 0, v8
    v_and_b32 v5, 0xffff0000, v8
    v_sub_f32 v8, v8, v5
    v_and_b32 v6, 0xffff0000, v8
    v_sub_f32 v8, v8, v6
    v_lshrrev_b32 v5, 16, v5
    v_or_b32 v5, v5, v6
    v_lshrrev_b32 v8, 16, v8
    v_cmp_eq_u32 s[44:45], 0, v4
    s_nop 1
    v_cndmask_b32_e64 v{QH}, v5, v{QH}, s[44:45]
    v_cndmask_b32_e64 v{QH+1}, v8, v{QH+1}, s[44:45]
    s_branch L_att_go""")


def outproj(a):
    a(f"""s_cmp_lt_u32 s{WAVE}, 4
    s_cbranch_scc1 L_op_main
    s_waitcnt lgkmcnt(0)""")
    finish(a)
    pl = f"buffer_load_dword v6, v{FLG}, s[24:27], s57 offen sc1"
    a(f"""L_op_main:
    {"s_setprio 0" if OPT["aprio"] else ""}
    {pl}""")
    lds_wait(a, O_WO, 1)
    stamp(a, 9)

    def wread(s, t):
        f = WF + 20 * (s % 3) + 4 * t
        if s < 16:
            b = WL + s // 8
            b2, o, d = b, (s % 8) * 6400, 1280
        else:
            b = WH if s < 18 else WH + 2
            b2, o, d = b + 1, (s % 2) * 25600, 0
        a(f"""ds_read_b64_tr_b16 v[{f}:{f+1}], v{b} offset:{o+t*32}
        ds_read_b64_tr_b16 v[{f+2}:{f+3}], v{b2} offset:{o+t*32+d}""")

    def oload(s):
        r = OF + 4 * (s % NOF)
        if s < 16:
            a(f"buffer_load_dwordx4 {vr(r,4)}, v{OL}, s[24:27], s58 offen sc1\ns_add_u32 s58, s58, {5*4096}")
        else:
            a(f"buffer_load_dwordx4 {vr(r,4)}, v{OH}, s[24:27], s59 offen sc1\ns_add_u32 s59, s59, {20*4096}")
    a(f"""s_mov_b32 s50, {SPIN*8}
    L_tv:
    v_readfirstlane_b32 s42, v62
    v_readfirstlane_b32 s43, v63
    s_cmp_lg_u32 s42, 0
    s_cbranch_scc1 L_to
    ds_read_b64 v[62:63], v30 offset:16
    s_sub_u32 s50, s50, 1
    s_waitcnt lgkmcnt(0)
    s_cbranch_scc0 L_tv
    L_to:
    s_and_b32 s42, s42, 0xffff""")
    npre = OPT["npre"]
    for s in range(npre):
        for t in range(5):
            wread(s, t)
        if s < 2:
            a("s_waitcnt lgkmcnt(4)")
    a(f"""v_cmp_eq_u32 s[44:45], s43, v{TOK}
    v_cmp_eq_u32 s[48:49], s42, v{TOK}""")
    poll(a, pl, [6], pre=True)
    stamp(a, 10)
    NL0 = OPT["nl0"]
    assert NL0 <= 3
    for s in range(NL0):
        oload(s)
    for s in range(npre, 3):
        for t in range(5):
            wread(s, t)
        if s < 2:
            a("s_waitcnt lgkmcnt(4)")
    a(f"""s_or_b64 s[48:49], s[44:45], s[48:49]
    s_cbranch_scc0 L_op_loop
    v_mov_b32 v7, 320
    v_cndmask_b32_e64 v7, 0, v7, s[44:45]
    v_add_u32 v7, v7, v{YA}
    s_mov_b32 s50, {SPIN*8}
    s_waitcnt lgkmcnt(0)
    L_yw:
    ds_read_b32 v9, v30 offset:{O_Y}""")
    for t in range(5):
        a(f"ds_read_b128 {vr(104+4*t,4)}, v7 offset:{L_Y-L_MISC+t*64}")
    a(f"""s_sub_u32 s50, s50, 1
    s_waitcnt lgkmcnt(0)
    s_cbranch_scc1 L_op_loop
    v_cmp_ne_u32 vcc, 1, v9
    s_cbranch_vccnz L_yw
    s_mov_b64 exec, s[48:49]""")
    for i in range(20):
        a(f"v_fmac_f32 v{PA+i}, v{G2}, v{104+i}")
    a("s_mov_b64 exec, -1\nL_op_loop:")
    issued = NL0
    for s in range(20):
        a(f"s_waitcnt vmcnt({issued-1-s}) lgkmcnt({15 if s < 18 else (11 if s == 18 else 1)})")
        for t in range(5):
            a(f"v_mfma_f32_16x16x32_bf16 {vr(PA+4*t,4)}, {vr(WF+20*(s%3)+4*t,4)}, {vr(OF+4*(s%NOF),4)}, {vr(PA+4*t,4)}")
            if s < 17:
                wread(s + 3, t)
            if t in (0, 2) and issued < min(20, s + 1 + OPT["nla"]):
                oload(issued); issued += 1
            if s == 17 and t == 0:
                a(f"ds_read_b32 v9, v30 offset:{O_ATT}")
    a("L_op_end:")
    stamp(a, 11)
    lds_wait(a, O_ATT, 8, pre=True)
    for t in range(5):
        a(f"""v_cvt_pk_bf16_f32 v{WF+2*t}, v{PA+4*t}, v{PA+4*t+1}
        v_cvt_pk_bf16_f32 v{WF+2*t+1}, v{PA+4*t+2}, v{PA+4*t+3}
        ds_write_b64 v{XA}, {vr(WF+2*t,2)} offset:{t*32}""")
    for n in range(3):
        a(f"ds_read_b128 {vr(OF+16+4*n,4)}, v{LIN} offset:{n*1024}")
    for n in range(3):
        a(f"s_waitcnt lgkmcnt({2-n})\nbuffer_store_dwordx4 {vr(OF+16+4*n,4)}, v{OUT+n}, s[52:55], s56 offen {OPT['osc']}")
    stamp(a, 12)
    if OPT["probe"]:
        pa, pb = [int(x) for x in OPT["probe"].split("_")]
        a(f"""s_sub_u32 s36, s{62+2*pb}, s{62+2*pa}
        {'s_lshr_b32 s36, s36, 1' if OPT['pcyc'] else 's_lshl_b32 s36, s36, 3'}
        s_min_u32 s36, s36, 20000
        s_lshl_b32 s37, s{WAVE}, 8
        s_add_u32 s37, s37, s2
        s_cmp_lg_u32 s37, {OPT["pwg"]}
        s_cselect_b32 s36, 0, s36
        s_memrealtime s[38:39]
        s_waitcnt lgkmcnt(0)
        s_add_u32 s36, s36, s38
        L_probe:
        s_sleep 2
        s_memrealtime s[38:39]
        s_waitcnt lgkmcnt(0)
        s_sub_u32 s37, s38, s36
        s_cmp_lt_i32 s37, 0
        s_cbranch_scc1 L_probe""")
    finish(a, True)


def wo_offsets(a):
    for n in range(5):
        a(f"""v_add_u32 v5, {64*n}, v1
        v_mul_u32_u24 v6, 6554, v5
        v_lshrrev_b32 v6, 16, v6
        v_mul_u32_u24 v8, 10, v6
        v_sub_u32 v8, v5, v8
        v_mul_u32_u24 v6, 1280, v6
        v_lshl_add_u32 v{WOV+n}, v8, 4, v6""")


WOV = 160
def wo_groups(a, g0, g1):
    lp = uid("wo")
    a(f"""s_mov_b32 m0, {L_WO+g0*5120}
    s_add_u32 s41, s34, {g0*40960}
    s_movk_i32 s44, 0x400
    {lp}:""")
    for j in range(5):
        a(f"""buffer_load_dwordx4 v{WOV+j}, s[20:23], s41 offen lds
        s_add_u32 m0, m0, s44
        {"s_nop 0" if j < 4 else "s_add_u32 s41, s41, 40960"}""")
    a(f"""s_cmp_lt_u32 m0, {L_WO+g1*5120}
    s_cbranch_scc1 {lp}""")


def purity(a):
    a(f"""v_cmp_ne_u32 vcc, s{TAG}, v12
    v_cmp_ne_u32 s[44:45], s35, v13
    s_or_b64 vcc, vcc, s[44:45]
    s_cselect_b32 s36, 0, {0 if OPT['forceimp'] else 1}
    v_mov_b32 v5, s36
    ds_write_b32 v30, v5
    s_waitcnt lgkmcnt(0)""")


def helper1(a):
    a(f"""L_help:
    s_cmp_eq_u32 s{WAVE}, 9
    s_cbranch_scc1 L_ffn
    s_load_dwordx2 s[40:41], s[0:1], 16
    s_load_dwordx2 s[8:9], s[0:1], 32
    s_load_dwordx2 s[10:11], s[0:1], 64
    v_lshlrev_b32 v10, 4, v1""")
    a(f"""v_mov_b32 v16, {"0x3f80" if OPT["ones"] else "0x3f803f80"}
    v_mov_b32 v17, {"0" if OPT["ones"] else "0x3f803f80"}
    v_mov_b32 v18, 0x3f803f80
    v_mov_b32 v19, 0x3f80
    v_add_u32 v5, {L_ONES}, v10""")
    for i in range(5):
        a(f"ds_write_b128 v5, v[16:19] offset:{i*1024}")
    a(f"""v_mov_b32 v30, {M_PURE}
    v_mov_b32 v6, 0
    v_lshl_add_u32 v7, v1, 2, v30
    ds_write_b32 v7, v6""")
    if OPT["prio"]:
        a("s_setprio 3")
    wo_offsets(a)
    a("s_waitcnt lgkmcnt(0)")
    epoch_load(a)
    srd(a, SX, 4, 2621440)
    srd(a, SW, 40, 819200)
    srd(a, SS, 12, WS_END)
    srd(a, SA, 8, 1280)
    srd(a, SB, 10, 1280)
    a(f"""s_cmp_lg_u32 s{CT}, 15
    s_cbranch_scc1 L_nowv
    s_mov_b32 m0, {L_WV}
    s_nop 0
    buffer_load_dwordx4 v10, s[52:55], 0 offen lds
    buffer_load_dwordx4 v10, s[52:55], 0 offen offset:1024 lds
    s_mov_b32 m0, {L_WV+2048}
    s_nop 0
    buffer_load_dwordx4 v10, s[56:59], 0 offen lds
    buffer_load_dwordx4 v10, s[56:59], 0 offen offset:1024 lds
    L_nowv:
    s_getreg_b32 s35, hwreg(HW_REG_XCC_ID, 0, 4)
    s_lshr_b32 s34, s{LOC}, 2
    s_mul_i32 s34, s34, 160
    s_mul_i32 s33, s{LOC}, 5
    s_lshr_b32 s33, s33, 1             ; c0
    v_bfe_u32 v5, v1, 2, 1
    v_lshl_add_u32 v6, v5, 1, s33
    v_lshrrev_b32 v6, 3, v6
    v_bfe_u32 v7, v1, 3, 2
    v_cmp_eq_u32 s[44:45], 3, v7
    v_and_b32 v8, 3, v1
    v_lshlrev_b32 v8, 2, v8
    v_cndmask_b32_e64 v5, v6, v5, s[44:45]
    v_mad_u32_u24 v5, v7, 10, v5
    v_lshl_add_u32 v11, v5, 4, v8
    v_and_b32 v7, 1, v7
    v_mad_u32_u24 v5, v7, 10, v6
    v_add_u32 v5, 10, v5
    v_lshl_add_u32 v15, v5, 7, v8
    v_and_b32 v14, 31, v1
    v_lshlrev_b32 v14, 3, v14
    s_lshl_b32 s42, s{XCD}, 8
    s_add_u32 s42, s42, {WS_XID}""")
    epoch_fin(a)
    stamp(a, 1)
    a(f"""s_waitcnt vmcnt(0)
    s_barrier
    s_lshl_b32 s36, s{LOC}, 3
    s_add_u32 s36, s36, s42
    v_mov_b32 v8, s{TAG}
    v_mov_b32 v9, s35
    v_mov_b32 v5, 0
    s_mov_b64 exec, 1
    buffer_store_dwordx2 v[8:9], v5, s[24:27], s36 offen {'sc1' if OPT['xsc'] else ''}
    s_mov_b64 exec, -1""")
    def qtouch(job=True):
        if OPT["qown"]:
            l = uid("nq")
            a(f"""s_cmp_ge_u32 s{CT}, 5
            s_cbranch_scc1 {l}
            s_mul_i32 s36, s{XCD}, {XB}
            s_lshl_b32 s37, s{CT}, 16
            s_add_u32 s36, s36, s37
            s_lshl_b32 s37, s{RBL}, 11
            s_add_u32 s36, s36, s37
            v_and_b32 v5, 15, v1
            v_lshlrev_b32 v5, 7, v5
            v_lshl_add_u32 v5, v4, 12, v5""")
            for i in range(4):
                a("buffer_load_dword v167, v5, s[24:27], s36 offen sc1\ns_add_u32 s36, s36, 16384")
            a(f"{l}:")
            return
        a(f"""s_mul_i32 s36, s{XCD}, {XB}
        s_mul_i32 s37, s{LOC}, 10240
        s_add_u32 s36, s36, s37
        s_add_u32 s37, s36, 5120
        v_min_u32 v5, 39, v1
        v_lshlrev_b32 v5, 7, v5
        buffer_load_dword v167, v5, s[24:27], s36 offen sc1
        buffer_load_dword v167, v5, s[24:27], s37 offen sc1""")
        if OPT["p1loc"] and job:
            a(f"""s_mul_i32 s36, s{XCD}, 30
            s_add_u32 s36, s36, s{LOC}
            s_lshl_b32 s36, s36, 10
            s_add_u32 s36, s36, {WS_P1}
            s_mov_b64 exec, 0xff
            buffer_load_dword v167, v5, s[24:27], s36 offen sc1
            s_mov_b64 exec, -1""")
    a(f"""s_and_b32 s38, s{LOC}, 3
    s_lshl_b32 s38, s38, 5
    s_lshl_b32 s39, s{XCD}, 8
    s_add_u32 s38, s38, s39
    s_mul_i32 s38, s38, 1280
    s_add_u32 s38, s38, s34
    s_add_u32 s39, s38, {128*1280}""")
    side = {i: [] for i in range(10)}
    def spread(items, spec):
        a0, a1 = [int(x) for x in spec.split("_")]
        n = a1 - a0 + 1
        for k, it in enumerate(items):
            side[a0 + k * n // len(items)].append(it)
    spread([f"""s_mov_b32 m0, {L_XT+n*1024}
        s_nop 0
        buffer_load_dwordx4 v{WOV+n%5}, s[16:19], s{38+n//5} offen lds""" for n in range(10)], OPT["xs"])
    if OPT["wsn"]:
        spread([f"""s_mov_b32 m0, {L_WO+n*1024}
        s_add_u32 s36, s34, {(n//5)*40960}
        buffer_load_dwordx4 v{WOV+n%5}, s[20:23], s36 offen lds""" for n in range(65 - 5 * OPT["wsn"], 65)], OPT["ws"])
    a(f"""s_cmp_lg_u32 s{CT}, 15
    s_cbranch_scc1 L_h_g""")
    if OPT["fwarm"]:
        a(f"""s_lshl_b32 s36, s{XCD}, 10
        s_add_u32 s36, s36, {WS_FO}
        s_lshl_b32 s37, s{XCD}, 9
        s_add_u32 s37, s37, {WS_FL}
        v_and_b32 v5, 7, v1
        v_lshlrev_b32 v5, 7, v5
        v_lshrrev_b32 v6, 1, v5
        s_mov_b64 exec, 0xff
        buffer_load_dword v167, v5, s[24:27], s36 offen sc1
        buffer_load_dword v167, v6, s[24:27], s37 offen sc1
        s_mov_b64 exec, -1
        buffer_load_dword v167, v14, s[24:27], s42 offen sc1""")
    for i in range(9):
        a("s_barrier")
    lds_wait(a, O_R, 4)
    for i in range(7):
        if OPT["qloc"] and not OPT["qown"] and OPT["qat"] == i:
            qtouch(False)
        for it in side[i]:
            a(it)
    a("""buffer_load_dwordx2 v[12:13], v14, s[24:27], s42 offen sc1
    s_waitcnt vmcnt(0)""")
    lds_add(a, O_FD)
    a("s_branch L_h_p\nL_h_g:")
    for i in range(7):
        if OPT["qloc"] and OPT["qat"] == i:
            qtouch()
        for it in side[i]:
            a(it)
        if i < 6:
            a("s_barrier")
    a(f"""buffer_load_dwordx2 v[12:13], v14, s[24:27], s42 offen sc1
    s_barrier
    s_barrier
    L_h_p:
    s_waitcnt vmcnt(0)""")
    purity(a)
    if OPT["qloc"] and OPT["qat"] == 8:
        qtouch()
    for it in side[8]:
        a(it)
    a(f"""s_cmp_eq_u32 s{CT}, 15
    s_cbranch_scc1 L_h_q
    s_barrier
    L_h_q:""")
    for it in side[9]:
        a(it)
    lds_wait(a, O_R, 4)
    a(f"""s_lshl_b32 s36, s{XCD}, 9
    s_add_u32 s36, s36, {WS_FL}""")
    stamp(a, 2)
    poll(a, "buffer_load_dword v12, v11, s[24:27], s36 offen sc1", [12])
    stamp(a, 4)
    a(f"""s_lshl_b32 s36, s{XCD}, 12
    s_add_u32 s36, s36, {WS_FR-4096}
    s_barrier
    buffer_load_dword v12, v15, s[24:27], s36 offen sc1""")
    a(f"""s_cmp_eq_u32 s{XCD}, 0
    s_cbranch_scc1 L_nohalo""")
    poll(a, "buffer_load_dword v12, v15, s[24:27], s36 offen sc1", [12], pre=True)
    if OPT["hdel"]:
        lds_wait(a, O_B2, OPT["hdel"])
    stamp(a, 7)
    a(f"""s_mul_i32 s36, s{XCD}, 240
    s_add_u32 s36, s36, s33
    s_lshl_b32 s36, s36, 12
    s_add_u32 s36, s36, {(WS_L - XB + 80*4096) & 0xffffffff}""")
    for q in (3, 2, 1, 0):
        for sec in range(2):
            for j in range(3):
                a(f"""s_mov_b32 m0, {sec*L_V + j*CS + q*1024}
                s_add_u32 s37, s36, {sec*80*4096 + j*4096 + q*1024}
                buffer_load_dwordx4 v10, s[24:27], s37 offen sc1 lds""")
    a("""v_mov_b32 v5, 1
    s_waitcnt vmcnt(12)
    ds_write_b32 v30, v5 offset:4
    L_nohalo:""")
    stamp(a, 6)
    wo_groups(a, 0, 2)
    a("""v_mov_b32 v5, 2
    s_waitcnt vmcnt(10)
    ds_write_b32 v30, v5 offset:4""")
    stamp(a, 8)
    if OPT["wsn"]:
        wo_groups(a, 2, 13 - OPT["wsn"])
        wo_groups(a, 13, 20)
    else:
        wo_groups(a, 2, 20)
    a("s_waitcnt vmcnt(0)")
    lds_add(a, O_WO)
    a("s_waitcnt lgkmcnt(0)")
    stamp(a, 9)
    a(f"""s_cmp_lg_u32 s2, 255
    s_cbranch_scc1 L_h1_end
    s_mov_b32 s36, {WS_P2}
    v_min_u32 v5, 59, v1
    v_lshlrev_b32 v5, 10, v5""")
    lds_wait(a, 16, 1)
    tag_bytes(a)
    a(f"s_mov_b32 s50, {SPIN}\nL_ep:")
    for i in range(4):
        a(f"buffer_load_dwordx4 {vr(32+4*i,4)}, v5, s[24:27], s36 offen offset:{i*256} sc1")
    strip_tags(a, [32, 36, 40, 44], True)
    a("""s_sub_u32 s50, s50, 1
    s_cbranch_scc1 L_epo
    s_cbranch_vccnz L_ep
    L_epo:""")
    a(f"s_mov_b32 s36, {WS_EP}")
    flag_store(a, 36, False)
    a("L_h1_end:")
    finish(a)


def tag_bytes(a):
    a(f"""s_and_b32 s52, s{TAG}, 0xff
    s_bfe_u32 s53, s{TAG}, 0x80008
    s_bfe_u32 s54, s{TAG}, 0x80010
    s_lshr_b32 s55, s{TAG}, 24""")


def strip_tags(a, regs, waits=None):
    a("v_mov_b32 v9, 0")
    for i, r in enumerate(regs):
        if waits:
            a(f"s_waitcnt vmcnt({len(regs)-1-i})")
        for j in range(4):
            a(f"v_xor_b32 v{r+j}, s{52+j}, v{r+j}")
        a(f"v_or3_b32 v9, v9, v{r}, v{r+1}\nv_or3_b32 v9, v9, v{r+2}, v{r+3}")
    a("v_and_b32 v9, 0xff, v9\nv_cmp_ne_u32 vcc, 0, v9")


def sel_by_g(a, o, b, st, tag=True):
    a(f"""v_cndmask_b32_e64 v{o}, v{b}, v{b+st}, s[44:45]
    v_cndmask_b32_e64 v{o}, v{o}, v{b+2*st}, s[46:47]
    v_cndmask_b32_e64 v{o}, v{o}, v{b+3*st}, s[48:49]""")
    if tag:
        a(f"v_mov_b32 v{o+1}, s{TAG}")


def ffn(a):
    a(f"""L_ffn:
    s_load_dwordx4 s[8:11], s[0:1], 40
    s_load_dwordx2 s[40:41], s[0:1], 56
    s_load_dwordx2 s[44:45], s[0:1], 16
    s_load_dwordx2 s[46:47], s[0:1], 72
    v_lshlrev_b32 v10, 4, v1
    s_mul_i32 s33, s{XCD}, 30
    s_add_u32 s33, s33, s{LOC}         ; job
    s_mul_i32 s34, s33, 6554
    s_lshr_b32 s34, s34, 16            ; b
    s_mul_i32 s35, s34, 10
    s_sub_u32 s35, s33, s35
    v_lshrrev_b32 v5, 3, v1
    v_and_b32 v7, 7, v1
    v_mul_u32_u24 v6, 3072, v5
    v_lshl_add_u32 v11, v7, 4, v6
    v_mul_u32_u24 v6, 1280, v5
    v_lshl_add_u32 v12, v7, 4, v6
    v_bfe_u32 v6, v1, 2, 2
    v_lshl_add_u32 v6, v4, 3, v6
    v_lshlrev_b32 v6, 7, v6
    v_and_b32 v8, 3, v1
    v_lshl_add_u32 v6, v8, 3, v6
    v_add_u32 v13, {L_FW}, v6
    v_mov_b32 v30, {M_PURE}
    s_mul_i32 s38, s35, 64*3072
    s_lshl_b32 s36, s34, 7
    s_add_u32 s38, s38, s36
    s_mul_i32 s39, s34, 64*1280
    s_lshl_b32 s36, s35, 7
    s_add_u32 s39, s39, s36
    s_waitcnt lgkmcnt(0)""")
    epoch_load(a)
    srd(a, SX, 4, 2621440)
    srd(a, SW, 40, 1966080)
    srd(a, SS, 12, WS_END)
    srd(a, SA, 8, 1966080)
    srd(a, SB, 10, 1966080)
    epoch_fin(a)
    stamp(a, 1)
    if OPT["fprio"]:
        a(f"s_setprio {OPT['fprio']}")
    def weights(n0=0, n1=24):
        for m in range(3):
            for i in range(8):
                if not n0 <= m * 8 + i < n1:
                    continue
                s_, v_, so, st = ((SA, 11, 38, 3072), (SB, 11, 38, 3072), (SW, 12, 39, 1280))[m]
                a(f"""s_mov_b32 m0, {L_FW+m*8192+i*1024}
                s_add_u32 s36, s{so}, {i*8*st}
                buffer_load_dwordx4 v{v_}, s[{s_}:{s_+3}], s36 offen {OPT['fnt']} lds""")
    cl = "buffer_load_dwordx4 v[24:27], v10, s[24:27], s51 offen sc1"
    def touch():
        a(f"""s_mul_i32 s36, s{XCD}, {XB}
        s_sub_u32 s37, s36, {XB}
        s_max_i32 s37, s37, 0
        s_load_dword s3, s[44:45], 0
        s_load_dword s3, s[12:13], s36
        s_load_dword s3, s[8:9], 0
        s_load_dword s3, s[10:11], 0
        s_load_dword s3, s[40:41], 0
        s_load_dword s3, s[12:13], s37
        s_add_u32 s36, s36, {XB-64}
        s_mul_i32 s37, s{XCD}, {256*1280}
        s_load_dword s3, s[12:13], s36
        s_load_dword s3, s[46:47], s37
        s_add_u32 s37, s37, {256*1280-64}
        s_load_dword s3, s[46:47], s37
        s_load_dword s3, s[6:7], 0
        s_mov_b32 s36, {2457600-64}
        s_load_dword s3, s[6:7], s36""")
    if OPT["stl"] == 1 and OPT["stw"]:
        touch()
    a(f"""    s_mov_b32 s51, {WS_CAND}
    s_cmp_lg_u32 s{CT}, 15
    s_cbranch_scc1 L_f_w""")
    for i in range(10):
        if (OPT["stl"] == 1 and not OPT["stw"] and i == 0) or (OPT["stl"] == 2 and i == 1):
            touch()
        a("s_barrier")
    a(f"""s_waitcnt lgkmcnt(0)
    s_mov_b32 s3, 1
    s_mov_b32 s50, {SPIN}
    s_branch L_f_b1
    L_f_w:""")
    late = 0
    for i in range(9):
        a("s_barrier")
        if i == 0 and OPT["stl"] == 2 and OPT["stw"]:
            touch()
        if i == 8:
            a("s_waitcnt lgkmcnt(0)")
        if i < 8:
            if OPT["fwm"]:
                weights(3 * i, 3 * i + 3)
            if OPT["fwe"] and i == OPT["fat"]:
                weights(24 - OPT["fwe"], 24)
    a(cl)
    if not OPT["fwm"]:
        weights(0, 24 - OPT["fwe"])
        late += 24 - OPT["fwe"]
    def frags():
        n = 0
        for m in range(3):
            for t in range(4):
                for ks in range(2):
                    o = m * 8192 + ks * 4096 + t * 32
                    r = 64 + m * 32 + t * 8 + ks * 4
                    a(f"""ds_read_b64_tr_b16 v[{r}:{r+1}], v13 offset:{o}
                    ds_read_b64_tr_b16 v[{r+2}:{r+3}], v13 offset:{o+512}""")
                if t & 1:
                    a("s_waitcnt lgkmcnt(4)")
        a("s_waitcnt lgkmcnt(0)")
    a(f"""s_mov_b32 s3, 0
    s_mov_b32 s50, {SPIN}
    s_barrier
    s_waitcnt vmcnt({late})
    L_f_chk:
    v_xor_b32 v9, s{TAG}, v25
    v_bitop3_b32 v9, v9, v27, s{TAG} bitop3:0xf6
    v_cmp_ne_u32 vcc, 0, v9
    s_cbranch_vccz L_f_ok
    s_sub_u32 s50, s50, 1
    s_cbranch_scc1 L_f_ok
    s_cmp_eq_u32 s3, 2
    s_cbranch_scc1 L_f_again
    s_cmp_eq_u32 s3, 1
    s_cbranch_scc1 L_f_b1
    s_cmp_eq_u32 s50, {SPIN-1 if OPT["a2"] else -1}
    s_cbranch_scc1 L_f_again
    s_waitcnt vmcnt(0)""")
    frags()
    a(f"""s_mov_b32 s3, 1
    s_branch L_f_again
    L_f_b1:
    s_barrier
    s_mov_b32 s3, 2
    L_f_again:
    {cl}
    s_waitcnt vmcnt(0)
    s_branch L_f_chk
    L_f_ok:""")
    stamp(a, 3)
    tag_bytes(a)
    top2(a, 24, 26, 21, 40, 41, 44)
    key_decode(a, 40, 42, 46, 36)
    key_decode(a, 41, 43, 47, 36)
    a(f"""v_mov_b32 v16, s42
    v_mov_b32 v17, s43
    v_mov_b32 v18, s46
    v_mov_b32 v19, s47
    v_or_b32 v16, 0x10000, v16
    ds_write_b128 v30, v[16:19] offset:16
    v_mov_b32 v20, s42
    v_and_b32 v6, 1, v1
    v_cmp_eq_u32 s[44:45], 0, v6
    s_lshl_b32 s36, s35, 7
    s_nop 0
    v_cndmask_b32_e64 v7, v17, v20, s[44:45]
    v_mul_u32_u24 v7, 1280, v7
    v_lshl_add_u32 v7, v4, 4, v7
    s_cmp_lg_u32 s{CT}, 15
    s_cbranch_scc1 L_f_job""")
    a(f"""s_branch L_f_gather
    L_f_job:
    buffer_load_dwordx4 v[24:27], v7, s[16:19], s36 offen
    buffer_load_dwordx4 v[160:163], v7, s[16:19], s36 offen offset:64
    v_cmp_eq_u32 s[44:45], 1, v4
    v_cmp_eq_u32 s[46:47], 2, v4
    v_cmp_eq_u32 s[48:49], 3, v4
    v_and_b32 v22, 3, v1
    v_lshlrev_b32 v22, 3, v22
    v_bfe_u32 v22, s{TAG}, v22, 8
    v_lshlrev_b32 v23, 2, v1
    v_mov_b32 v21, 0xffffff00
    ds_read_b32 v31, v30
    s_waitcnt lgkmcnt(0)
    v_readfirstlane_b32 s{PURE}, v31""")
    a("""s_cmp_lg_u32 s3, 0
    s_cbranch_scc1 L_f_nf
    s_waitcnt vmcnt(2)""")
    frags()
    a("""L_f_nf:
    s_cmp_lg_u32 s3, 1
    s_cbranch_scc1 L_f_nb
    s_barrier
    L_f_nb:
    s_waitcnt vmcnt(0)""")
    stamp(a, 4)
    for ks in range(2):
        for m in range(2):
            for t in range(4):
                d = 32 + (m * 4 + t) * 4
                a(f"v_mfma_f32_16x16x32_bf16 {vr(d,4)}, {vr((24, 160)[ks],4)}, {vr(64+m*32+t*8+ks*4,4)}, {'0' if ks == 0 else vr(d,4)}")
    a(f"""s_lshl_b32 s36, s33, 10
    s_add_u32 s36, s36, {WS_P1}
    s_nop 2""")
    for m in range(2):
        for tk in range(2):
            sel_by_g(a, 96 + m * 2 + tk, 32 + m * 16 + tk, 4, False)
    for j in range(4):
        a(f"v_and_or_b32 v{96+j}, v{96+j}, v21, s{52+j}")
    if OPT["p1loc"]:
        two_flavours(a, lambda sc: a(f"buffer_store_dwordx4 v[96:99], v10, s[24:27], s36 offen {sc}"))
    else:
        a("buffer_store_dwordx4 v[96:99], v10, s[24:27], s36 offen sc1")
    a(f"""s_mul_i32 s36, s34, 10240
    s_add_u32 s36, s36, {WS_P1}
    s_add_u32 s37, s36, 4096
    s_add_u32 s38, s36, 8192
    s_mov_b32 s50, {SPIN}
    s_waitcnt lgkmcnt(0)""")
    stamp(a, 5)
    a(f"""v_min_u32 v5, 9, v1
    v_lshlrev_b32 v5, 10, v5
    s_cmp_lg_u32 s3, 0
    s_cbranch_scc1 L_f_p0
    s_barrier
    s_branch L_f_p1
    L_f_p0:
    buffer_load_dword v6, v5, s[24:27], s36 offen sc1
    s_sub_u32 s50, s50, 1
    s_cbranch_scc1 L_f_p1o
    s_waitcnt vmcnt(0)
    v_and_b32 v6, 0xff, v6
    v_cmp_ne_u32 vcc, s52, v6
    s_cbranch_vccnz L_f_p0
    L_f_p1:""")
    stamp(a, 6)
    for i in range(10):
        a(f"buffer_load_dwordx4 {vr(32+4*i,4)}, v10, s[24:27], s{36+i//4} offen offset:{(i%4)*1024} sc1")
    strip_tags(a, [32 + 4 * i for i in range(10)], True)
    a("""    s_cbranch_vccnz L_f_p0
    L_f_p1o:
    s_waitcnt vmcnt(0)""")
    stamp(a, 7)
    for i in range(1, 10):
        for j in (0, 2):
            a(f"v_pk_add_f32 {vr(32+j,2)}, {vr(32+j,2)}, {vr(32+4*i+j,2)}")
    for tk in range(2):
        sigmoid(a, 14 + tk, f"v{32+tk}")
        a(f"v_mul_f32 v{14+tk}, v{14+tk}, v{32+tk}\nv_mul_f32 v{14+tk}, v{14+tk}, v{34+tk}")
    a(f"""v_cvt_pk_bf16_f32 v14, v14, v15
    v_lshl_add_u32 v6, v1, 1, v30
    ds_write_b16 v6, v14 offset:256
    ds_write_b16_d16_hi v6, v14 offset:384
    v_and_b32 v7, 1, v1
    v_lshl_add_u32 v7, v7, 7, v30
    v_lshl_add_u32 v7, v4, 4, v7
    s_waitcnt lgkmcnt(0)
    ds_read_b128 v[32:35], v7 offset:256
    ds_read_b128 v[36:39], v7 offset:320
    s_waitcnt lgkmcnt(0)""")
    for t in range(4):
        d = 64 + t * 4
        for ks in range(2):
            a(f"v_mfma_f32_16x16x32_bf16 {vr(d,4)}, {vr(32+4*ks,4)}, {vr(128+t*8+4*ks,4)}, {'0' if ks == 0 else vr(d,4)}")
    a(f"""s_lshl_b32 s36, s33, 8
    s_add_u32 s36, s36, {WS_P2}
    s_add_u32 s37, s36, {24*2560}
    s_nop 4""")
    for tk in range(2):
        sel_by_g(a, 96 + tk, 64 + tk, 4, False)
        a(f"""v_and_or_b32 v{96+tk}, v{96+tk}, v21, v22
        buffer_store_dword v{96+tk}, v23, s[24:27], s{36+tk} offen sc1""")
    stamp(a, 8)
    a("L_f_gather:")
    a(f"""s_and_b32 s36, s{LOC}, 3
    s_lshl_b32 s36, s36, 5
    s_lshl_b32 s37, s{XCD}, 8
    s_add_u32 s36, s36, s37
    s_xor_b32 s42, s42, s36
    s_xor_b32 s43, s43, s36
    s_and_b32 s42, s42, 0x760
    s_and_b32 s43, s43, 0x760
    s_min_u32 s36, s42, s43
    s_cmp_lg_u32 s36, 0
    s_cbranch_scc1 L_f_end
    s_lshr_b32 s32, s{LOC}, 2
    s_mul_i32 s40, s32, 320
    s_add_u32 s40, s40, {WS_P2}
    s_andn2_b32 s36, s40, 255
    s_add_u32 s36, s36, {24*2560}
    v_min_u32 v5, 47, v1
    v_lshrrev_b32 v6, 1, v5
    v_mul_u32_u24 v6, 2560, v6
    v_and_b32 v5, 1, v5
    v_lshl_add_u32 v5, v5, 8, v6
    v_min_u32 v7, 59, v1
    v_mul_u32_u24 v8, 3277, v7
    v_lshrrev_b32 v8, 16, v8
    v_mul_u32_u24 v6, 20, v8
    v_sub_u32 v6, v7, v6
    v_mul_u32_u24 v11, {8*2560}, v8
    v_lshl_add_u32 v11, v6, 4, v11
    v_lshl_add_u32 v12, v7, 4, v30
    v_lshl_add_u32 v13, v6, 4, v30
    v_mov_b32 v20, v13""")
    sigmoid(a, 18, "v18")
    sigmoid(a, 19, "v19")
    a("s_mov_b32 s41, 0")
    if OPT["yat"]:
        a("s_setprio 0")
        lds_wait(a, O_ATT, OPT["yat"])
        a("s_setprio 3")
    else:
        lds_wait(a, 4, 2)
    a(f"""s_mov_b32 s50, {SPIN}
    {"s_branch L_f_tok" if OPT["yat"] else ""}
    L_f_y0:
    buffer_load_dword v6, v5, s[24:27], s36 offen sc1
    s_sub_u32 s50, s50, 1
    s_cbranch_scc1 L_f_yo
    s_waitcnt vmcnt(0)
    v_and_b32 v6, 0xff, v6
    v_cmp_ne_u32 vcc, s52, v6
    s_cbranch_vccnz L_f_y0""")
    stamp(a, 9)
    a("""L_f_tok:
    s_cmp_lg_u32 s42, 0
    s_cbranch_scc1 L_f_next
    s_mov_b32 s37, s40""")
    for i in range(8):
        a(f"buffer_load_dwordx4 {vr(32+4*i,4)}, v11, s[24:27], s37 offen sc1\ns_add_u32 s37, s37, 2560")
    a(f"s_setprio {OPT['gprio']}")
    strip_tags(a, [32 + 4 * i for i in range(8)], True)
    a("s_cbranch_vccnz L_f_y0")
    for i in range(1, 8):
        for j in (0, 2):
            a(f"v_pk_add_f32 {vr(32+j,2)}, {vr(32+j,2)}, {vr(32+4*i+j,2)}")
    a(f"""ds_write_b128 v12, v[32:35] offset:{L_Y-L_MISC+640}
    ds_read_b128 v[36:39], v20 offset:{L_Y-L_MISC+640}
    ds_read_b128 v[40:43], v20 offset:{L_Y-L_MISC+960}
    ds_read_b128 v[44:47], v20 offset:{L_Y-L_MISC+1280}
    s_waitcnt lgkmcnt(0)""")
    for j in (0, 2):
        a(f"""v_pk_add_f32 {vr(36+j,2)}, {vr(36+j,2)}, {vr(40+j,2)}
        v_pk_add_f32 {vr(36+j,2)}, {vr(36+j,2)}, {vr(44+j,2)}
        v_pk_mul_f32 {vr(36+j,2)}, {vr(36+j,2)}, v[18:19] op_sel_hi:[1,0]""")
    a(f"""ds_write_b128 v13, v[36:39] offset:{L_Y-L_MISC}
    L_f_next:
    s_mov_b32 s42, s43
    s_add_u32 s40, s40, {24*2560}
    v_mov_b32 v18, v19
    v_add_u32 v13, 320, v13
    s_add_u32 s41, s41, 1
    s_cmp_lt_u32 s41, 2
    s_cbranch_scc1 L_f_tok
    L_f_yo:
    s_waitcnt vmcnt(0)""")
    lds_add(a, O_Y)
    a("s_waitcnt lgkmcnt(0)")
    stamp(a, 10)
    a("L_f_end:\ns_waitcnt lgkmcnt(0)")
    finish(a)


def main(out):
    a = Asm()
    head = f"""; gated mix of sliding-window attention and a top-2 routed FFN: one fused launch (written by a generator script)
; @launch grid=(256,1,1) block=(640,1,1) lds={LDS_BYTES}
.amdgcn_target "amdgcn-amd-amdhsa--gfx950"
.text
"""
    entry(a)
    loader(a)
    compute(a)
    stubs = attention(a)
    outproj(a)
    n0 = len(a.lines)
    helper1(a)
    if OPT["stamp"] == 3:
        body_, out_, k, skip = a.lines[n0:], [], 0, False
        for ln in body_:
            if "s_memrealtime" in ln or "s_memtime" in ln:
                continue
            if "s_cbranch_scc1 L_h_g" in ln: skip = True
            if ln.startswith("L_h_g:"): skip = False
            if ln.strip() == "s_endpgm":
                out_.append("    s_branch L_stampall")
                continue
            out_.append(ln)
            if (ln.strip() == "s_barrier" and not skip) or ("ds_write_b32 v30, v5 offset:4" in ln):
                out_.append(f"    s_memrealtime s[{62+2*k}:{63+2*k}]"); k += 1
        a.lines[n0:] = out_
    ffn(a)
    router_loader(a)
    router(a)
    att_stubs(a, stubs)
    stamp_out(a)
    a("L_exit:\ns_endpgm\nL_code_end:")
    body = a.text().replace("s_mov_b32 s43, 0\n    s_waitcnt lgkmcnt(0)", "s_mov_b32 s43, 0\n    s_movk_i32 s45, 0x4000\n    s_waitcnt lgkmcnt(0)")
    if OPT["al"]:
        body = align_fix(body, [("L_g_loop", "L_g_end"), ("L_att_go", "L_att_fin"), ("L_op_loop", "L_op_end")])
    bad = check_hazards(body)
    tail = f""".section .rodata,"a"
.p2align 6
.amdhsa_kernel {NAME}_kernel
  .amdhsa_next_free_vgpr 168
  .amdhsa_next_free_sgpr 96
  .amdhsa_accum_offset 168
  .amdhsa_group_segment_fixed_size 0
  .amdhsa_kernarg_size 96
  .amdhsa_user_sgpr_count 2
  .amdhsa_user_sgpr_kernarg_segment_ptr 1
  .amdhsa_system_sgpr_workgroup_id_x 1
.end_amdhsa_kernel
"""
    open(out, "w").write(head + body + tail)
    print("written", out, "hazards:", len(bad))


if __name__ == "__main__":
    main(sys.argv[1])
```

```python
import sys, struct
from asmlib import Asm, vr, sr, check_hazards, align_fix

NAME = "gated_mix__sliding_block__moe_arch_mod__prompt"
def f32(x): return "0x%08x" % struct.unpack("<I", struct.pack("<f", x))[0]
LOG2E = 1.4426950408889634
QSCALE = (20 ** -0.5) * LOG2E

OPT = dict(stamp=0, dual=0, pre=0, xnt="", fnt="nt", rot=4, b11=0, wpf=0, rnt="", worot=2, fprio=3, cearly=1, aprio=2, tlb=0, hdel=5, dly=0, fwm=0, serp=1, xs="0_0", wsn=0, ws="0_2", fws="0_", qat2=2, nowo=0, xsc=0, epx=0, rowmap=1, qloc=1, qat=2, tlb0=0, wod=0, wack=1, qown=0, dbg=0, gprio=3, ones=1, gx=0, lord=0, wfl="", nl0=3, nla=5, npre=3, al=1, pf=1, xpf=0, swap=0, prio=1, osc="nt", ont="nt", ont2="nt", slp=0, wdl=2, ochk=1, olf="sc1", forceimp=0, forcefb=0, probe="", pwg=109+512, stl=1, stw=0, nocand=0, pcyc=0, wmall=1, fwarm=1, p1loc=1, a2=1, yat=1, tmap=0, fskip=0, rfl=0, fdel=1, ksc='sc1', gate=8, ntry=2)
for _a in sys.argv[2:]:
    k, v = _a.split("=")
    OPT[k] = int(v) if v.lstrip("-").isdigit() else v

WS_L, WS_R = 0, 0x800000
WS_G, WS_CAND, WS_XID, WS_FL, WS_FP, WS_FO = 0x1000000, 0x1010000, 0x1020000, 0x1030000, 0x1040000, 0x1050000
WS_P1, WS_P2, WS_EP, WS_ST, WS_END = 0x1060000, 0x10E0000, 0x1120000, 0x1200000, 0x1300000
WS_FR = 0x1038000
WS_FW, WS_WP = 0x1048000, 0x1130000
XB = 240 * 4096
CS = 8192 + 64
L_K, L_V = 0, 3 * CS + 64
L_WO = 49664
L_ONES = L_WO + 102400 + 192
L_MISC = L_ONES + 5120 + 64
L_H, L_Y = L_MISC + 256, L_MISC + 512
LDS_BYTES = 163840
L_RW = 49152
L_FW = L_WO + 13 * 5120
L_XT = L_FW + 24576
L_WV = L_FW + 8192
M_PURE, M_HALO, M_TOP = L_MISC, L_MISC + 4, L_MISC + 16
O_WO, O_FD, O_ATT, O_Y, O_R, O_B2, O_C, O_W = 8, 12, 32, 36, 40, 44, 48, 52
assert L_V % 256 == 0 and L_ONES % 256 == 192 and L_XT + 10240 <= L_WO + 102400 and L_Y + 1920 <= LDS_BYTES
SPIN = 0x8000

WAVE, XCD, LOC, RBL, CT, TAG, PURE = 28, 29, 30, 31, 32, 60, 61
SX, SW, SS, SA, SB = 16, 20, 24, 52, 56


def srd(a, d, p, n):
    a(f"""s_mov_b32 s{d}, s{p}
    s_mov_b32 s{d+1}, s{p+1}
    s_mov_b32 s{d+2}, {n}
    s_mov_b32 s{d+3}, 0x20000""")


def stamp(a, i):
    if OPT["probe"]:
        if str(i) in OPT["probe"].split("_"):
            a(f"{'s_memtime' if OPT['pcyc'] else 's_memrealtime'} s[{62+2*i}:{63+2*i}]\ns_waitcnt lgkmcnt(0)")
        return
    if OPT["stamp"] == 3:
        if i == 0:
            a("s_memrealtime s[94:95]\ns_memtime s[62:63]")
        if i in (4, 8):
            a(f"s_memrealtime s[{62+2*i}:{63+2*i}]\ns_memtime s[{64+2*i}:{65+2*i}]")
        return
    if OPT["stamp"]:
        if i == 0:
            a("s_memrealtime s[94:95]")
            for j in range(1, 15):
                a(f"s_mov_b32 s{62+2*j}, 0")
        a(f"{'s_memtime' if OPT['stamp'] == 1 else 's_memrealtime'} s[{62+2*i}:{63+2*i}]\ns_waitcnt lgkmcnt(0)")


def finish(a, main=False):
    if OPT["stamp"] == 3 and not main:
        a("s_endpgm")
    elif OPT["stamp"]:
        a("s_branch L_stampout")
    else:
        a("s_endpgm")


def stamp_out(a):
    if OPT["stamp"]:
        n = 14
        a(f"""L_stampout:
        s_waitcnt vmcnt(0)
        {'s_memtime' if OPT['stamp'] != 2 else 's_memrealtime'} s[{62+2*n}:{63+2*n}]
        s_memrealtime s[92:93]
        s_waitcnt lgkmcnt(0)
        s_lshl_b32 s3, s2, 4
        s_add_u32 s3, s3, s{WAVE}
        s_lshl_b32 s3, s3, 7
        s_add_u32 s3, s3, {WS_ST}
        s_mov_b64 exec, 1
        v_mov_b32 v0, 0""")
        for i in (range(n + 1) if OPT["stamp"] != 3 else (0, 4, 5, 8, 9, 14)):
            a(f"v_mov_b32 v1, s{62+2*i}\nbuffer_store_dword v1, v0, s[24:27], s3 offen offset:{4*i}")
        for i in range(2, 10 if OPT["stamp"] != 3 else 0):
            a(f"v_readlane_b32 s4, v166, {i}\ns_nop 1\nv_mov_b32 v1, s4\nbuffer_store_dword v1, v0, s[24:27], s3 offen offset:{64+4*(i-2)}")
        a(f"v_mov_b32 v1, s{PURE}\nbuffer_store_dword v1, v0, s[24:27], s3 offen offset:116")
        a("v_mov_b32 v1, s94\nbuffer_store_dword v1, v0, s[24:27], s3 offen offset:120")
        a("v_mov_b32 v1, s92\nbuffer_store_dword v1, v0, s[24:27], s3 offen offset:124")
        a("s_endpgm")
        if OPT["stamp"] == 3:
            a(f"""L_stampall:
            s_memrealtime s[88:89]""")
            lds_wait(a, O_ATT, 8)
            a(f"""s_lshl_b32 s3, s2, 4
            s_add_u32 s3, s3, s{WAVE}
            s_lshl_b32 s3, s3, 7
            s_add_u32 s3, s3, {WS_ST}
            v_mov_b32 v2, 0""")
            for i in range(14):
                a(f"v_writelane_b32 v2, s{62+2*i}, {i}")
            a("""v_writelane_b32 v2, s94, 30
            v_lshlrev_b32 v3, 2, v1
            s_mov_b64 exec, 0xffffffff
            buffer_store_dword v2, v3, s[24:27], s3 offen
            s_endpgm""")


def wave_max_u32(a, v, sdst, row=False):
    for m in ("row_shr:1 row_mask:0xf bank_mask:0xf bound_ctrl:1", "row_shr:2 row_mask:0xf bank_mask:0xf bound_ctrl:1",
              "row_shr:4 row_mask:0xf bank_mask:0xf bound_ctrl:1", "row_shr:8 row_mask:0xf bank_mask:0xf bound_ctrl:1",
              "row_bcast:15 row_mask:0xa bank_mask:0xf", "row_bcast:31 row_mask:0xc bank_mask:0xf")[:4 if row else 6]:
        a(f"s_nop 1\nv_max_u32_dpp v{v}, v{v}, v{v} {m}")
    a(f"s_nop 0\nv_readlane_b32 s{sdst}, v{v}, 63")


def top2(a, k1, k2, t, s1, s2, sm, row=False):
    a(f"v_max_u32 v{t}, v{k1}, v{k2}")
    wave_max_u32(a, t, s1, row)
    a(f"""s_nop 1
    v_cmp_ne_u32 s[{sm}:{sm+1}], s{s1}, v{k1}
    s_nop 1
    v_cndmask_b32_e64 v{k1}, 0, v{k1}, s[{sm}:{sm+1}]
    v_cmp_ne_u32 s[{sm}:{sm+1}], s{s1}, v{k2}
    s_nop 1
    v_cndmask_b32_e64 v{k2}, 0, v{k2}, s[{sm}:{sm+1}]
    v_max_u32 v{t}, v{k1}, v{k2}""")
    wave_max_u32(a, t, s2, row)


def key_decode(a, sk, stok, sval, st):
    a(f"""s_and_b32 s{stok}, s{sk}, 0xffff
    s_sub_u32 s{stok}, 0xffff, s{stok}
    s_and_b32 s{stok}, s{stok}, 0x7ff
    s_ashr_i32 s{st}, s{sk}, 31
    s_not_b32 s{st}, s{st}
    s_or_b32 s{st}, s{st}, 0x80000000
    s_xor_b32 s{sval}, s{sk}, s{st}
    s_and_b32 s{sval}, s{sval}, 0xffff0000""")


def sigmoid(a, d, s):
    a(f"""v_mul_f32 v{d}, {f32(-LOG2E)}, {s}
    v_exp_f32 v{d}, v{d}
    s_nop 0
    v_add_f32 v{d}, 1.0, v{d}
    v_rcp_f32 v{d}, v{d}
    s_nop 0""")


def epoch_load(a):
    a(f"""s_add_u32 s14, s12, {WS_EP}
    s_addc_u32 s15, s13, 0
    s_load_dword s{TAG}, s[14:15], 0""")


def epoch_fin(a):
    a(f"s_waitcnt lgkmcnt(0)\ns_add_u32 s{TAG}, s{TAG}, 0x9e3779b9")


_uid = [0]
_site = [0]
def uid(p):
    _uid[0] += 1
    return f"L_{p}{_uid[0]}"


def poll(a, load, tagregs, mask=None, tmp=9, pre=False):
    lp, out = uid("poll"), uid("pout")
    a(f"s_mov_b32 s50, {SPIN}")
    if pre:
        a(f"s_branch {lp}p")
    a(f"{lp}:")
    a(load)
    if pre:
        a(f"{lp}p:")
    a(f"""s_sub_u32 s50, s50, 1
    s_cbranch_scc1 {out}
    s_waitcnt vmcnt(0)""")
    if len(tagregs) == 1:
        a(f"v_cmp_ne_u32 vcc, s{TAG}, v{tagregs[0]}")
    else:
        a(f"v_xor_b32 v{tmp}, s{TAG}, v{tagregs[0]}")
        for r in tagregs[1:]:
            a(f"v_bitop3_b32 v{tmp}, v{tmp}, v{r}, s{TAG} bitop3:0xf6")
        a(f"v_cmp_ne_u32 vcc, 0, v{tmp}")
    if mask:
        a(f"s_and_b64 vcc, vcc, {mask}")
    if OPT["dbg"]:
        _site[0] += 1
        print("site", _site[0], load.split("\n")[-1][:70])
        a(f"""s_cbranch_vccnz {lp}
        s_branch {out}x
        {out}:
        s_waitcnt vmcnt(0)
        s_lshl_b32 s50, s2, 4
        s_add_u32 s50, s50, {_site[0]}
        s_lshl_b32 s50, s50, 8
        s_add_u32 s50, s50, {WS_ST}
        v_lshlrev_b32 v164, 2, v1
        v_xor_b32 v165, s{TAG}, v{tagregs[0]}
        v_or_b32 v165, 0x80000000, v165
        buffer_store_dword v165, v164, s[24:27], s50 offen
        {out}x:
        s_waitcnt vmcnt(0)""")
        return
    a(f"s_cbranch_vccnz {lp}\n{out}:\ns_waitcnt vmcnt(0)")


def spoll(a, loads, pairs):
    lp, out = uid("sp"), uid("so")
    a(f"s_mov_b32 s50, {SPIN}\n{lp}:")
    a(loads)
    a(f"""s_waitcnt lgkmcnt(0)
    s_sub_u32 s50, s50, 1
    s_cbranch_scc1 {out}
    s_xor_b64 s[36:37], s[{pairs[0]}:{pairs[0]+1}], s[38:39]""")
    for p in pairs[1:]:
        a(f"""s_xor_b64 s[{p}:{p+1}], s[{p}:{p+1}], s[38:39]
        s_or_b64 s[36:37], s[36:37], s[{p}:{p+1}]""")
    a(f"s_cbranch_scc1 {lp}\n{out}:")


def lds_wait(a, off, val, vt=9, pre=False):
    lp, out = uid("lw"), uid("lo")
    a(f"s_mov_b32 s50, {SPIN*8}")
    if pre:
        a(f"s_branch {lp}p")
    if OPT["slp"] and not pre and off != O_B2:
        a(f"s_branch {lp}f\n{lp}:\ns_sleep {OPT['slp']}\n{lp}f:")
    else:
        a(f"{lp}:")
    a(f"""ds_read_b32 v{vt}, v30 offset:{off}""")
    if pre:
        a(f"{lp}p:")
    a(f"""s_sub_u32 s50, s50, 1
    s_cbranch_scc1 {out}
    s_waitcnt lgkmcnt(0)
    v_cmp_gt_u32 vcc, {val}, v{vt}
    s_cbranch_vccnz {lp}
    {out}:""")


def lds_add(a, off, vt=9):
    a(f"""v_mov_b32 v{vt}, 1
    s_mov_b64 exec, 1
    ds_add_u32 v30, v{vt} offset:{off}
    s_mov_b64 exec, -1""")


def flag_store(a, soff, local, vt=8):
    a(f"""v_mov_b32 v{vt}, s{TAG}
    v_mov_b32 v{vt+1}, 0
    s_mov_b64 exec, 1""")
    if local:
        l1, l2 = uid("fs"), uid("fe")
        a(f"""s_cmp_eq_u32 s{PURE}, 0
        s_cbranch_scc1 {l1}
        buffer_store_dword v{vt}, v{vt+1}, s[24:27], s{soff} offen
        s_branch {l2}
        {l1}:
        buffer_store_dword v{vt}, v{vt+1}, s[24:27], s{soff} offen sc1
        {l2}:""")
    else:
        a(f"buffer_store_dword v{vt}, v{vt+1}, s[24:27], s{soff} offen sc1")
    a("s_mov_b64 exec, -1")


def two_flavours(a, body):
    l1, l2 = uid("imp"), uid("ime")
    a(f"s_cmp_eq_u32 s{PURE}, 0\ns_cbranch_scc1 {l1}")
    body("")
    a(f"s_branch {l2}\n{l1}:")
    body("sc1")
    a(f"{l2}:")


def router_loader(a):
    a("""L_rld:
    s_load_dwordx2 s[8:9], s[0:1], 16
    s_add_u32 s41, s40, 98304
    s_branch L_rld_issue
    L_rld_loop:
    s_waitcnt vmcnt(12) lgkmcnt(0)
    s_barrier
    L_rld_issue:
    s_lshl_b32 s36, s33, 7
    s_add_u32 s36, s36, s34""")
    for n in range(4):
        a(f"""s_add_u32 m0, s40, {n*4096}
        s_add_u32 s38, s36, {n*40960}
        buffer_load_dwordx4 v10, s[16:19], s38 offen {OPT['rnt']} lds""")
    kc_next(a, 33)
    a("""s_add_u32 s40, s40, 16384
    s_cmp_eq_u32 s40, s41
    s_cselect_b32 s36, 98304, 0
    s_sub_u32 s40, s40, s36
    s_add_u32 s42, s42, 1
    s_cmp_lt_u32 s42, 4
    s_cbranch_scc1 L_rld_issue
    s_cmp_lt_u32 s42, 10
    s_cbranch_scc1 L_rld_loop""")
    srd(a, SS, 12, WS_END)
    srd(a, SW, 8, 819200)
    a(f"""s_add_u32 s{TAG}, s{TAG}, 0x9e3779b9
    v_mov_b32 v30, {M_PURE}""")
    for n in (12, 8, 4, 0):
        a(f"s_waitcnt vmcnt({n})\ns_barrier")
    a(f"""s_lshl_b32 s33, s{XCD}, 1
    s_add_u32 s33, s33, s{RBL}
    s_and_b32 s34, s{WAVE}, 3
    s_mul_i32 s36, s33, 51200
    s_mul_i32 s37, s34, 320
    s_add_u32 s36, s36, s37
    s_mul_i32 s35, s34, {42*320}
    s_add_u32 s35, s35, 65536
    v_mul_u32_u24 v5, 3277, v1
    v_lshrrev_b32 v5, 16, v5
    v_mul_u32_u24 v6, 20, v5
    v_sub_u32 v6, v1, v6
    v_mul_u32_u24 v5, 1280, v5
    v_lshl_add_u32 v11, v6, 4, v5
    v_bfe_u32 v7, v1, 2, 2
    v_and_b32 v8, 3, v1
    v_lshl_add_u32 v8, v8, 3, s35
    v_lshrrev_b32 v5, 1, v4
    v_mul_u32_u24 v5, 20, v5
    v_and_b32 v6, 1, v4
    v_lshl_add_u32 v5, v6, 2, v5
    v_add_u32 v5, v5, v7
    v_mul_u32_u24 v5, 320, v5
    v_add_u32 v12, v5, v8
    v_mul_u32_u24 v5, 320, v7
    v_lshl_add_u32 v5, v4, 5, v5
    v_add_u32 v5, v5, v8
    s_bitcmp1_b32 s33, 1
    s_cselect_b32 s37, 0, {20*320}
    s_add_u32 s38, s37, {16*320}
    s_sub_u32 s37, {36*320}, s37
    v_add_u32 v13, s38, v5
    v_add_u32 v14, s37, v5
    v_lshlrev_b32 v10, 4, v1
    v_and_b32 v5, 15, v1
    v_lshlrev_b32 v5, 4, v5""")
    for i in range(3):
        a(f"""v_add_u32 v6, {4*i}, v4
        v_cmp_lt_u32 s[44:45], 4, v6
        v_lshl_add_u32 v6, v6, 10, v5
        v_add_u32 v7, {102400-5120}, v6
        v_cndmask_b32_e64 v{15+i}, v6, v7, s[44:45]""")
    a(f"""s_mul_i32 s40, s34, 204800
    s_add_u32 s40, s40, {WS_WP}
    s_lshr_b32 s37, s33, 2
    s_add_u32 s37, s37, 16
    s_mul_i32 s41, s37, 5120
    s_add_u32 s41, s41, s40
    s_and_b32 s37, s33, 1
    s_lshl_b32 s37, s37, 9
    s_add_u32 s41, s41, s37
    s_and_b32 s37, s33, 2
    s_lshl_b32 s37, s37, 7
    s_add_u32 s41, s41, s37
    s_mul_i32 s37, s33, 5120
    s_add_u32 s40, s40, s37
    s_lshl_b32 s42, s33, 5
    s_add_u32 s42, s42, s34
    s_lshl_b32 s42, s42, 2
    s_add_u32 s42, s42, {WS_FW}""")
    lds_wait(a, O_C, 4)
    stamp(a, 2)
    a("s_mov_b32 exec_hi, 0x0fffffff\ns_mov_b32 m0, s35")
    for i in range(14):
        if i == 13:
            a("s_mov_b64 exec, 0xfffff")
        a(f"""s_add_u32 s37, s36, {i*3840}
        buffer_load_dwordx4 v11, s[20:23], s37 offen {OPT['fnt']} lds
        s_add_u32 m0, s35, {(i+1)*960}""")
    a("s_mov_b64 exec, -1\ns_waitcnt vmcnt(0)")
    stamp(a, 3)
    for t in range(10):
        a(f"""ds_read_b64_tr_b16 v[{32+4*t}:{33+4*t}], v12 offset:{t*32}
        ds_read_b64_tr_b16 v[{34+4*t}:{35+4*t}], v12 offset:{t*32+8*320}""")
        if t == 4:
            a("s_waitcnt lgkmcnt(0)")
    a("s_waitcnt lgkmcnt(4)")
    for i in range(3):
        a(f"""ds_read_b64_tr_b16 v[{72+4*i}:{73+4*i}], v13 offset:{i*128}
        ds_read_b64_tr_b16 v[{74+4*i}:{75+4*i}], v14 offset:{i*128}""")
    a("s_waitcnt lgkmcnt(0)")
    for t in range(10):
        a(f"""s_add_u32 s37, s40, {(t//5)*102400 + (t%5)*1024}
        buffer_store_dwordx4 {vr(32+4*t,4)}, v10, s[24:27], s37 offen sc1""")
    for i in range(3):
        if i == 2:
            a("s_mov_b32 exec_hi, 0")
        a(f"buffer_store_dwordx4 {vr(72+4*i,4)}, v{15+i}, s[24:27], s41 offen sc1")
    a(f"""s_mov_b64 exec, 1
    v_mov_b32 v5, s{TAG}
    s_waitcnt vmcnt(0)
    buffer_store_dword v5, off, s[24:27], s42 sc1
    s_mov_b64 exec, -1""")
    stamp(a, 4)
    a("s_branch L_att_setup")


def kc_init(a):
    def nib(o):
        v = sum(x << (4 * i) for i, x in enumerate(o))
        return v & 0xffffffff, v >> 32
    n0, n1, n2 = nib(range(10)), nib([1, 0, 3, 2, 5, 4, 7, 6, 9, 8]), nib([0, 2, 1, 4, 3, 6, 5, 8, 7, 9])
    a(f"s_mov_b32 s46, {n0[0]:#x}\ns_movk_i32 s47, {n0[1]:#x}")
    if OPT["swap"]:
        a(f"""s_and_b32 s36, s{LOC}, {3 if OPT["swap"] == 1 else 1}
        s_cmp_eq_u32 s36, 1
        s_cselect_b32 s46, {n1[0]:#x}, s46
        s_cselect_b32 s47, {n1[1]:#x}, s47
        s_cmp_eq_u32 s36, 3
        s_cselect_b32 s46, {n2[0]:#x}, s46
        s_cselect_b32 s47, {n2[1]:#x}, s47""")
    tab = {0: [0]*8, 1: range(8), 2: [7, 0, 1, 2, 3, 4, 5, 6], 3: [8, 0, 1, 2, 3, 5, 6, 7], 4: [7, 6, 5, 4, 3, 2, 1, 0], 5: [8, 0, 0, 2, 2, 4, 6, 6], 6: [8, 0, 2, 4, 6, 0, 2, 4]}[OPT["rot"]]
    a(f"""s_lshl_b32 s36, s{XCD}, 2
    s_lshr_b32 s48, {nib(tab)[0]:#x}, s36
    s_and_b32 s48, s48, 15""")
    n3 = nib([2, 3, 4, 5, 6, 7, 8, 9, 0, 1])
    a(f"""s_cmp_eq_u32 s{CT}, 15
    s_cselect_b32 s46, {n3[0]:#x}, s46
    s_cselect_b32 s47, {n3[1]:#x}, s47""")


def kc_next(a, d):
    a(f"""s_and_b32 s{d}, s46, 15
    s_lshr_b64 s[46:47], s[46:47], 4""")
    if OPT["rot"]:
        a(f"""s_add_u32 s{d}, s{d}, s48
        s_sub_u32 s36, s{d}, 10
        s_cselect_b32 s{d}, s{d}, s36""")


def entry(a):
    a(f""".globl {NAME}_kernel
    .p2align 8
    .type {NAME}_kernel,@function
    {NAME}_kernel:""")
    a("""s_cmp_ge_u32 s2, 256
    s_cbranch_scc1 L_exit""")
    stamp(a, 0)
    a(f"""s_load_dwordx4 s[4:7], s[0:1], 0
    s_load_dwordx2 s[12:13], s[0:1], 88
    v_lshrrev_b32 v2, 6, v0
    v_and_b32 v1, 63, v0
    v_readfirstlane_b32 s{WAVE}, v2
    s_and_b32 s{XCD}, s2, 7
    s_lshr_b32 s{LOC}, s2, 3
    s_and_b32 s{RBL}, s{LOC}, 1
    s_lshr_b32 s{CT}, s{LOC}, 1
    v_lshrrev_b32 v4, 4, v1""")
    if OPT["pf"]:
        a(f"""s_cmp_lg_u32 s{WAVE}, 0
        s_cbranch_scc1 L_nopf
        s_getpc_b64 s[36:37]
        L_pc:
        s_and_b32 s38, s{LOC}, 3
        s_mul_i32 s38, s38, 5760
        v_min_u32 v5, 44, v1
        v_lshl_add_u32 v5, v5, 7, s38
        v_min_u32 v5, L_code_end-L_pc-4, v5
        global_load_dword v167, v5, s[36:37]
        L_nopf:""")
    a(f"""s_cmp_lt_u32 s{WAVE}, 4
    s_cbranch_scc1 L_compute
    s_cmp_ge_u32 s{WAVE}, 8
    s_cbranch_scc1 L_help""")


def loader(a):
    a(f"""v_and_b32 v2, 3, v2
    v_lshrrev_b32 v3, 3, v1
    v_lshl_add_u32 v3, v2, 3, v3
    v_mul_u32_u24 v3, 1280, v3
    v_lshl_add_u32 v5, v2, 2, v4
    v_xor_b32 v6, v5, v1
    v_and_b32 v6, 7, v6
    v_lshl_add_u32 v10, v6, 4, v3
    v_mul_u32_u24 v5, 3840, v5
    v_lshrrev_b32 v6, 1, v2
    v_lshl_add_u32 v6, v6, 2, v4
    v_lshlrev_b32 v6, 1, v6
    v_xor_b32 v6, v6, v1
    v_and_b32 v6, 15, v6
    v_lshl_add_u32 v11, v6, 4, v5
    s_lshl_b32 s34, s{XCD}, 1
    s_add_u32 s34, s34, s{RBL}
    s_mul_i32 s34, s34, 128*1280
    s_lshl_b32 s35, s{CT}, 8
    s_and_b32 s40, s{WAVE}, 3
    s_lshl_b32 s40, s40, 10
    s_add_u32 s41, s40, 49152
    s_mov_b32 s42, 0
    s_mov_b32 s18, 2621440
    s_mov_b32 s19, 0x20000
    s_mov_b32 s22, 2457600
    s_mov_b32 s23, 0x20000""")
    kc_init(a)
    kc_next(a, 33)
    if OPT["xpf"]:
        a(f"""v_min_u32 v12, 19, v1
        v_lshlrev_b32 v12, 7, v12
        s_lshl_b32 s44, s{CT}, 2
        s_add_u32 s44, s44, s{WAVE}
        s_mul_i32 s44, s44, 2560
        s_add_u32 s44, s44, s34
        s_sub_u32 s44, s44, {4*2560}""")
    a("""s_waitcnt lgkmcnt(0)
    s_mov_b32 s16, s4
    s_mov_b32 s17, s5
    s_mov_b32 s20, s6
    s_mov_b32 s21, s7""")
    if OPT["xpf"]:
        a("buffer_load_dword v167, v12, s[16:19], s44 offen")
    epoch_load(a)
    stamp(a, 1)
    if OPT["dly"]:
        a(f"s_bitcmp1_b32 s{CT}, 0\ns_cbranch_scc0 L_nd\ns_sleep {OPT['dly']}\nL_nd:")
    a(f"""s_cmp_eq_u32 s{CT}, 15
    s_cbranch_scc1 L_rld
    s_branch L_ld_issue
    L_ld_loop:
    s_waitcnt vmcnt(8) lgkmcnt(0)
    s_barrier""")
    if OPT["stamp"] in (1, 2):
        a("""s_memrealtime s[44:45]
        s_waitcnt lgkmcnt(0)
        s_mov_b32 m0, s42
        s_nop 0
        v_writelane_b32 v166, s44, m0""")
    a(f"""L_ld_issue:
    s_lshl_b32 s36, s33, 7
    s_add_u32 s36, s36, s34
    {"s_and_b32 s33, s33, 1" if OPT["gx"] == 1 else ""}
    s_mul_i32 s37, s33, 245760
    s_add_u32 s37, s37, s35""")
    lx = [f"""s_add_u32 m0, s40, {n*4096}
        s_add_u32 s38, s36, {n*40960}
        buffer_load_dwordx4 v10, s[16:19], s38 offen {OPT['xnt']} lds""" for n in range(4)]
    lw = [f"""s_add_u32 m0, s40, {L_RW+n*4096}
        s_add_u32 s39, s37, {n*61440}
        buffer_load_dwordx4 v11, s[20:23], s39 offen {OPT['wfl']} lds""" for n in range(4)]
    for l in {0: [x for p in zip(lx, lw) for x in p], 1: lw + lx, 2: lx + lw}[OPT["lord"]]:
        a(l)
    kc_next(a, 33)
    a("""s_add_u32 s40, s40, 16384
    s_cmp_eq_u32 s40, s41
    s_cselect_b32 s36, 49152, 0
    s_sub_u32 s40, s40, s36
    s_add_u32 s42, s42, 1
    s_cmp_lt_u32 s42, 2
    s_cbranch_scc1 L_ld_issue
    s_cmp_lt_u32 s42, 10
    s_cbranch_scc1 L_ld_loop""")
    srd(a, SS, 12, WS_END)
    a(f"s_add_u32 s{TAG}, s{TAG}, 0x9e3779b9")
    pre = 0
    a(f"""s_waitcnt vmcnt({8+pre})
    s_barrier""")
    stamp(a, 2)
    a(f"""s_waitcnt vmcnt({pre})
    s_barrier""")
    stamp(a, 3)
    a("s_branch L_att_setup")


ACC, F0, F1 = 32, 96, 128
def compute(a):
    a("L_compute:")
    if (OPT["qloc"] and OPT["qat"] == -1) or OPT["tlb0"]:
        a(f"""s_mul_i32 s36, s{XCD}, {XB}
        s_mov_b32 s26, {WS_END}
        s_mov_b32 s27, 0x20000""")
        if OPT["qloc"] and OPT["qat"] == -1:
            a(f"""s_lshl_b32 s37, s{LOC}, 2
            s_add_u32 s37, s37, s{WAVE}
            s_mul_i32 s37, s37, 2560
            s_add_u32 s37, s37, s36
            v_min_u32 v5, 19, v1
            v_lshlrev_b32 v5, 7, v5""")
        if OPT["tlb0"]:
            a(f"""s_sub_u32 s38, s36, {XB}
            s_max_i32 s38, s38, 0
            v_min_u32 v6, 2, v1
            v_mul_u32_u24 v6, {XB-64}, v6""")
        a("""s_waitcnt lgkmcnt(0)
        s_mov_b32 s24, s12
        s_mov_b32 s25, s13""")
        if OPT["qloc"] and OPT["qat"] == -1:
            a("buffer_load_dword v167, v5, s[24:27], s37 offen sc1")
        if OPT["tlb0"]:
            a(f"""s_cmp_lg_u32 s{WAVE}, 1
            s_cbranch_scc1 L_not0
            buffer_load_dword v167, v6, s[24:27], s38 offen sc1
            L_not0:""")
    a(f"""v_and_b32 v3, 15, v1
    s_and_b32 s36, s{WAVE}, 1          ; wc
    s_lshr_b32 s37, s{WAVE}, 1         ; wt
    s_lshl_b32 s38, s37, 13
    s_lshl_b32 s39, s{WAVE}, 12
    s_cmp_eq_u32 s{CT}, 15
    s_cselect_b32 s38, s39, s38
    v_lshrrev_b32 v5, 1, v3
    v_xor_b32 v5, v5, v4
    v_lshlrev_b32 v5, 4, v5
    v_lshl_add_u32 v12, v3, 7, v5
    v_add_u32 v12, s38, v12
    v_xor_b32 v13, 64, v12
    v_bfe_u32 v5, v1, 2, 2             ; r
    v_lshl_add_u32 v6, v4, 3, v5
    v_lshlrev_b32 v6, 8, v6
    v_and_b32 v7, 1, v4
    v_lshl_add_u32 v5, v7, 2, v5
    v_lshlrev_b32 v5, 1, v5            ; f(row)
    v_and_b32 v7, 3, v1
    s_lshl_b32 s39, s36, 3
    v_add_u32 v7, s39, v7
    v_xor_b32 v5, v5, v7
    v_lshl_add_u32 v6, v5, 4, v6
    v_bfe_u32 v5, v1, 1, 1
    v_lshl_add_u32 v6, v5, 3, v6
    v_add_u32 v14, {L_RW}, v6
    v_xor_b32 v15, 8, v14
    v_xor_b32 v16, 64, v14
    v_xor_b32 v17, 0x48, v14
    v_lshlrev_b32 v18, 4, v3
    v_lshl_add_u32 v18, v4, 12, v18
    v_mov_b32 v19, {M_PURE}
    s_mul_i32 s34, s{XCD}, {XB}
    s_lshl_b32 s39, s{CT}, 16
    s_add_u32 s34, s34, s39
    s_lshl_b32 s39, s36, 15
    s_add_u32 s34, s34, s39
    s_lshl_b32 s39, s{RBL}, 11
    s_add_u32 s34, s34, s39
    s_lshl_b32 s39, s37, 10
    s_add_u32 s34, s34, s39
    s_add_u32 s35, s34, 16384
    s_mov_b32 s42, 0
    s_mov_b32 s43, 0
    s_waitcnt lgkmcnt(0)""")
    epoch_load(a)
    srd(a, SS, 12, WS_END)
    for i in range(64):
        a(f"v_mov_b32 v{ACC+i}, 0")
    epoch_fin(a)
    stamp(a, 1)
    a(f"s_cmp_eq_u32 s{CT}, 15\ns_cbranch_scc1 L_router")

    def reads(ks, F):
        r = []
        def A(j):
            r.append(f"ds_read_b64_tr_b16 v[{F+4*j}:{F+4*j+1}], v{14+j} offset:{ks*8192}")
            r.append(f"ds_read_b64_tr_b16 v[{F+4*j+2}:{F+4*j+3}], v{14+j} offset:{ks*8192+1024}")
        A(0)
        for t in range(4):
            r.append(f"ds_read_b128 {vr(F+16+4*t,4)}, v{12+ks} offset:{t*2048}")
        A(1); A(2); A(3)
        return r

    def phase(F, rd, bar, extra):
        a("s_waitcnt lgkmcnt(6)")
        n = 0
        for j in range(4):
            if j == 1:
                a("s_waitcnt lgkmcnt(0)")
                if bar:
                    a("s_barrier")
            for t in (range(4) if not (OPT["serp"] and j & 1) else range(3, -1, -1)):
                d = ACC + (j * 4 + t) * 4
                a(f"v_mfma_f32_16x16x32_bf16 {vr(d,4)}, {vr(F+4*j,4)}, {vr(F+16+4*t,4)}, {vr(d,4)}")
                if j == 0:
                    a(extra[t])
                else:
                    a(rd[n]); n += 1

    a("s_barrier")
    stamp(a, 2)
    for l in reads(0, F0):
        a(l)
    a("L_g_loop:")
    phase(F0, reads(1, F1), False, ["""s_add_u32 s43, s43, 1
        s_cmp_eq_u32 s43, 3""", "s_cselect_b32 s44, -32768, 16384" if False else """s_cselect_b32 s44, 0xffff8000, s45
        """, "s_cselect_b32 s43, 0, s43\ns_add_u32 s42, s42, 1", ""])
    phase(F1, reads(0, F0), True, ["v_add_u32 v12, s44, v12\nv_add_u32 v13, s44, v13", "v_add_u32 v14, s44, v14\nv_add_u32 v15, s44, v15",
                                   "v_add_u32 v16, s44, v16\nv_add_u32 v17, s44, v17", "s_cmp_lt_u32 s42, 9"])
    a("s_cbranch_scc1 L_g_loop")
    def mm(F, j, t):
        d = ACC + (j * 4 + t) * 4
        return f"v_mfma_f32_16x16x32_bf16 {vr(d,4)}, {vr(F+4*j,4)}, {vr(F+16+4*t,4)}, {vr(d,4)}"
    r1 = reads(1, F1)
    r1 = ["ds_read_b32 v20, v19"] + r1[0:3] + r1[6:8] + r1[3:6] + r1[8:12]
    a("s_waitcnt lgkmcnt(4)")
    for k in range(8):
        a(mm(F0, k // 4, k % 4 if k < 4 else 7 - k))
        for l in r1[2*k:2*k+2]:
            a(l)
    a(f"""s_mov_b32 s38, {f32(QSCALE)}
    s_mov_b32 s39, s38
    s_waitcnt lgkmcnt(4)
    v_readfirstlane_b32 s{PURE}, v20
    s_cmp_lt_u32 s{CT}, 5
    s_cbranch_scc1 L_g_q""")

    def tail(scale, sc):
        def out(p, t):
            d, e = ACC + (2 * p * 4 + t) * 4, ACC + ((2 * p + 1) * 4 + t) * 4
            o = []
            if scale:
                o += [f"v_pk_mul_f32 {vr(x,2)}, {vr(x,2)}, s[38:39]" for x in (d, d + 2, e, e + 2)]
            o += [f"v_cvt_pk_bf16_f32 v{d}, v{d}, v{d+1}", f"v_cvt_pk_bf16_f32 v{d+1}, v{d+2}, v{d+3}",
                  f"v_cvt_pk_bf16_f32 v{d+2}, v{e}, v{e+1}", f"v_cvt_pk_bf16_f32 v{d+3}, v{e+2}, v{e+3}",
                  f"buffer_store_dwordx4 {vr(d,4)}, v18, s[24:27], s{34+p} offen offset:{t*256} {sc}"]
            return o
        seq = []
        for t in range(4):
            seq += [(mm(F1, 0, t), None), (mm(F1, 1, t), (0, t)), (mm(F0, 2, t), None), (mm(F0, 3, t), None)]
        for t in range(4):
            seq += [(mm(F1, 2, t), None), (mm(F1, 3, t), (1, t))]
        pend, n = [], 0
        per = 3 if scale else 2
        for k, (m, g) in enumerate(seq):
            if k == 16:
                a("s_waitcnt lgkmcnt(0)"); n += 1
            a(m); n += 1
            if g:
                pend += [[n + 8, x] for x in out(*g)]
            if pend and pend[0][0] > n:
                w = min(2, pend[0][0] - n)
                a(f"s_nop {w-1}"); n += w
                continue
            for _ in range(per):
                if pend and pend[0][0] <= n:
                    a(pend.pop(0)[1]); n += 1
        while pend:
            if pend[0][0] > n:
                a(f"s_nop {pend[0][0]-n-1}"); n = pend[0][0]
            a(pend.pop(0)[1]); n += 1
    tail(False, "sc1")
    a("L_g_end:")
    a.deferred = lambda: (a(f"L_g_q:\ns_cmp_eq_u32 s{PURE}, 0\ns_cbranch_scc1 L_q_far"), tail(True, ""), a("s_branch L_g_end"))
    a.deferred2 = lambda: (a("L_q_far:"), tail(True, "sc1"), a("s_branch L_g_end"))
    stamp(a, 3)
    a(f"""L_pubflag:
    s_lshl_b32 s36, s{XCD}, 4
    s_add_u32 s36, s36, s{CT}
    s_lshl_b32 s36, s36, 1
    s_and_b32 s37, s{WAVE}, 1
    s_add_u32 s36, s36, s37
    s_lshl_b32 s40, s36, 7
    s_lshl_b32 s36, s36, 4
    s_lshl_b32 s37, s{RBL}, 3
    s_and_b32 s38, s{WAVE}, 2
    s_lshl_b32 s38, s38, 1
    s_add_u32 s37, s37, s38
    s_add_u32 s36, s36, s37
    s_add_u32 s56, s36, {WS_FL}
    s_add_u32 s40, s40, s37
    s_add_u32 s57, s40, {WS_FR}
    s_mov_b32 s58, 1
    s_branch L_att_setup1""")
    a.deferred()


def router(a):
    a("L_router:")
    kc_init(a)
    kc_next(a, 33)
    a(f"""v_and_b32 v5, 1, v1
    v_lshlrev_b32 v5, 11, v5
    v_lshl_add_u32 v14, v4, 4, v5
    v_add_u32 v14, {L_WV}, v14
    L_r_loop:
    s_barrier
    s_lshl_b32 s36, s33, 7
    v_add_u32 v15, s36, v14""")
    for ks in range(2):
        a(f"""ds_read_b128 {vr(F0+12*ks,4)}, v15 offset:{ks*64}
        ds_read_b128 {vr(F0+12*ks+4,4)}, v{12+ks}
        ds_read_b128 {vr(F0+12*ks+8,4)}, v{12+ks} offset:2048""")
    kc_next(a, 33)
    a("""s_add_u32 s43, s43, 1
    s_cmp_eq_u32 s43, 6
    s_cselect_b32 s44, 0xfffec000, s45
    s_cselect_b32 s43, 0, s43
    v_add_u32 v12, s44, v12
    v_add_u32 v13, s44, v13
    s_waitcnt lgkmcnt(0)""")
    for ks in range(2):
        for t in range(2):
            a(f"v_mfma_f32_16x16x32_bf16 {vr(ACC+4*t,4)}, {vr(F0+12*ks,4)}, {vr(F0+12*ks+4+4*t,4)}, {vr(ACC+4*t,4)}")
    a(f"""s_add_u32 s42, s42, 1
    s_cmp_lt_u32 s42, 10
    s_cbranch_scc1 L_r_loop
    s_nop 1
    s_lshl_b32 s36, s{XCD}, 8
    s_lshl_b32 s37, s{RBL}, 7
    s_add_u32 s36, s36, s37
    s_lshl_b32 s37, s{WAVE}, 5
    s_add_u32 s36, s36, s37
    s_mov_b32 s37, {WS_G}""")
    stamp(a, 3)
    for t in range(2):
        a(f"""v_add3_u32 v{14+t}, s36, v3, {16*t}
        v_cvt_pk_bf16_f32 v{26+t}, v{ACC+4*t}, v{ACC+4*t+1}
        v_lshlrev_b32 v{21+t}, 16, v{26+t}
        v_ashrrev_i32 v24, 31, v{21+t}
        v_or_b32 v24, 0x80000000, v24
        v_xor_b32 v{21+t}, v{21+t}, v24
        v_and_b32 v{21+t}, 0xffff0000, v{21+t}
        v_sub_u32 v24, 0xffff, v{14+t}
        v_or_b32 v{21+t}, v{21+t}, v24""")
    top2(a, 21, 22, 25, 46, 47, 48, True)
    a(f"""s_lshr_b32 s36, s36, 1
    s_add_u32 s36, s36, {WS_CAND}
    v_mov_b32 v28, s46
    v_mov_b32 v29, s{TAG}
    v_mov_b32 v30, s47
    v_mov_b32 v31, s{TAG}
    s_mov_b64 exec, 1
    buffer_store_dwordx4 v[28:31], off, s[24:27], s36 sc1
    v_mov_b32 v9, 1
    ds_add_u32 v19, v9 offset:{O_C}
    s_mov_b64 exec, 0xffff""")
    for t in range(2):
        a(f"v_and_b32 v23, 0xffff0000, v{26+t}")
        sigmoid(a, 23, "v23")
        a(f"""v_cvt_pk_bf16_f32 v23, v23, v23
        v_and_b32 v{26+t}, 0xffff0000, v23
        v_lshlrev_b32 v24, 2, v{14+t}
        buffer_store_dword v{26+t}, v24, s[24:27], s37 offen sc1""")
    a(f"""s_mov_b64 exec, 1
    s_lshl_b32 s36, s{XCD}, 5
    s_add_u32 s36, s36, s{LOC}
    s_lshl_b32 s36, s36, 2
    s_add_u32 s36, s36, s{WAVE}
    s_lshl_b32 s36, s36, 2
    s_add_u32 s36, s36, {WS_FL}
    v_mov_b32 v9, 1
    s_waitcnt vmcnt(0)
    buffer_store_dword v29, off, s[24:27], s36 sc1
    ds_add_u32 v19, v9 offset:{O_R}
    s_mov_b64 exec, -1""")
    stamp(a, 4)
    a(f"v_mov_b32 v30, {M_PURE}")
    lds_wait(a, O_FD, 1)
    a("s_branch L_att_setup")


Q, QH, KH, K, V, P, S0, S1, O, M = 32, 36, 38, 40, 44, 52, 64, 80, 96, 112
KA, KHA, VA, QA, QHA, G, G2, XA, XR = 12, 13, 14, 15, 16, 17, 18, 19, 20
TT, NT, HI_ = 33, 34, 35
SQ, SQH = 46, 47


WF, OF, NOF, PA = 32, 92, 9, 128
OL, OH, WL, WH, OUT, LIN, FLG, YA, TOK, VTAG = 148, 149, 150, 152, 156, 159, 160, 161, 162, 163


def outproj_setup(a):
    a(f"""v_and_b32 v164, 15, v1
    v_lshrrev_b32 v165, 4, v1
    v_lshrrev_b32 v5, 1, v165
    v_add_u32 v6, v165, v5
    v_lshlrev_b32 v7, 4, v164
    v_lshl_add_u32 v{OL}, v6, 12, v7
    v_and_b32 v6, 1, v165
    v_lshl_add_u32 v8, v6, 1, v5
    v_mul_u32_u24 v9, {5*4096}, v8
    v_add_u32 v{OH}, v9, v7
    v_add_u32 v{WL}, {L_WO}, v10
    v_add_u32 v{WL+1}, {L_WO+51200}, v10""")
    for t in range(5):
        for j in range(2):
            a(f"""v_lshlrev_b32 v{PA+4*t+2*j}, 16, v{XR+2*t+j}
            v_and_b32 v{PA+4*t+2*j+1}, 0xffff0000, v{XR+2*t+j}""")
    for n in range(3):
        a(f"""v_add_u32 v5, {64*n}, v1
        v_mul_u32_u24 v6, 6554, v5
        v_lshrrev_b32 v6, 16, v6
        v_mul_u32_u24 v7, 10, v6
        v_sub_u32 v7, v5, v7
        v_mul_u32_u24 v6, 1280, v6
        v_lshl_add_u32 v{OUT+n}, v7, 4, v6""")
    a(f"""v_lshl_add_u32 v{OUT+2}, v4, 28, v{OUT+2}
    s_mul_i32 s36, s{WAVE}, 2560
    v_add_u32 v{LIN}, s36, v10
    v_lshlrev_b32 v{FLG}, 2, v3
    v_lshl_add_u32 v{YA}, v165, 4, v30
    v_add_u32 v{TOK}, s51, v164
    s_mul_i32 s56, s51, 1280
    s_lshr_b32 s37, s{LOC}, 2
    s_mul_i32 s37, s37, 160
    s_add_u32 s56, s56, s37
    s_lshr_b32 s57, s51, 5
    s_lshl_b32 s57, s57, 7
    s_add_u32 s57, s57, {WS_FO}
    s_mul_i32 s58, s{XCD}, {XB}
    s_and_b32 s38, s51, 255
    s_lshl_b32 s38, s38, 4
    s_add_u32 s58, s58, s38            ; O pieces
    s_add_u32 s59, s58, 8192
    s_waitcnt vmcnt(5)
    v_sub_f32 v{G2}, 1.0, v{G2}""")
    for i in range(20):
        a(f"v_mul_f32 v{PA+i}, v{G2}, v{PA+i}")


def diag_mask(a, old):
    a(f"""v_lshlrev_b32 v6, 2, v4
    v_sub_u32 v6, v3, v6
    v_mov_b32 v7, 0xff800000""")
    for r in range(0, 16, 2):
        k0, k1 = (r >> 2) * 8 + (r & 3), (r >> 2) * 8 + (r & 3) + 1
        a(f"""v_cmp_le_i32 s[44:45], {k0}, v6
        v_cmp_le_i32 s[48:49], {k1}, v6
        s_nop 0
        v_cndmask_b32_e64 v{S0+r}, v7, 0, s[44:45]
        v_cndmask_b32_e64 v{S0+r+1}, v7, 0, s[48:49]""")
        if old:
            a(f"""v_cndmask_b32_e64 v{M+r}, 0, v7, s[44:45]
            v_cndmask_b32_e64 v{M+r+1}, 0, v7, s[48:49]""")


def attention(a):
    SRC = WS_L
    a("L_att_setup:\ns_mov_b32 s58, 0\nL_att_setup1:\ns_load_dwordx2 s[52:53], s[0:1], 72\ns_mov_b32 s54, 2621440\ns_mov_b32 s55, 0x20000")
    a(f"""s_and_b32 s31, s{LOC}, 1
    s_mul_i32 s40, s{LOC}, 5
    s_lshr_b32 s40, s40, 1            ; c0
    s_sub_u32 s{TT}, 11, s{WAVE}
    s_cmp_lt_u32 s{WAVE}, 4
    s_cselect_b32 s{TT}, s{WAVE}, s{TT}
    {"s_sub_u32 s%d, 7, s%d" % (TT, TT) if OPT["tmap"] == 1 else ""}
    {"s_xor_b32 s%d, s%d, 4" % (TT, WAVE) if OPT["tmap"] == 2 else ""}
    s_add_u32 s36, s{TT}, 1
    s_cmp_eq_u32 s{XCD}, 0
    s_cselect_b32 s{NT}, s36, 9
    s_cselect_b32 s36, 4, 17
    s_movk_i32 s37, 0xff
    s_cselect_b32 s37, 0x3ff, s37
    s_lshl_b32 s36, s36, s{TT}
    s_and_b32 s{HI_}, s36, s37
    s_lshr_b32 s36, s{LOC}, 2
    s_xor_b32 s36, s36, s31
    s_andn2_b32 s41, 1, s36
    s_lshl_b32 s41, s41, 3
    s_xor_b32 s42, s31, 1
    s_lshl_b32 s42, s42, 1
    s_mul_i32 s36, s{XCD}, 240
    s_add_u32 s36, s36, s40
    s_lshl_b32 s43, s36, 12
    s_lshl_b32 s37, s{TT}, 9
    s_add_u32 s36, s43, s37
    s_lshl_b32 s38, s31, 12
    s_add_u32 s{SQ}, s36, s38
    s_lshl_b32 s38, s42, 12
    s_add_u32 s38, s38, s41
    s_add_u32 s{SQH}, s36, s38
    v_lshlrev_b32 v10, 4, v1
    v_and_b32 v3, 31, v1
    v_lshrrev_b32 v4, 5, v1
    v_lshlrev_b32 v5, 4, v3
    v_lshl_add_u32 v{QA}, v4, 12, v5
    v_lshl_add_u32 v{QHA}, v4, 28, v5
    s_mul_i32 s38, s31, {CS}
    s_add_u32 s38, s38, s37
    v_mul_u32_u24 v6, {CS}, v4
    v_add3_u32 v{KA}, v6, v5, s38
    s_mul_i32 s38, s42, {CS}
    s_add_u32 s38, s38, s41
    s_add_u32 s38, s38, s37
    v_add_u32 v6, s38, v5
    v_mov_b32 v9, {L_ONES}
    v_cmp_eq_u32 s[44:45], 0, v4
    v_bfe_u32 v7, v1, 4, 1
    v_and_b32 v8, 3, v1
    v_add_u32 v11, 8, v9
    v_cndmask_b32_e64 v{KHA}, v11, v6, s[44:45]
    v_lshl_add_u32 v6, v7, 2, v8      ; gamma
    v_add_u32 v7, s31, v6
    v_lshrrev_b32 v8, 1, v7
    v_add_u32 v11, s40, v8
    v_lshrrev_b32 v11, 1, v11
    v_xor_b32 v7, v7, v11
    v_and_b32 v7, 1, v7
    v_mul_u32_u24 v8, {CS}, v8
    v_lshl_add_u32 v8, v7, 3, v8
    s_add_u32 s38, s37, {L_V}
    v_add_u32 v8, s38, v8
    v_cmp_gt_u32 s[44:45], 5, v6
    v_bfe_u32 v7, v1, 2, 2
    v_lshl_add_u32 v7, v4, 2, v7
    v_cndmask_b32_e64 v8, v9, v8, s[44:45]
    v_lshl_add_u32 v{VA}, v7, 4, v8""")
    diag_mask(a, True)
    a(f"""s_lshr_b32 s36, s{WAVE}, 2
    s_mul_i32 s37, s36, {L_V}
    s_add_u32 s36, s36, 1
    s_mul_i32 s36, s36, {80*4096}
    s_add_u32 s36, s36, s43
    s_and_b32 s38, s{WAVE}, 3
    s_mul_i32 s38, s38, 3
    v_and_b32 v5, 15, v1
    v_mul_u32_u24 v6, 160, v5
    v_lshrrev_b32 v7, 4, v1
    v_lshl_add_u32 v6, v7, 3, v6
    s_and_b32 s39, s{WAVE}, 3
    s_mul_i32 s44, s39, 2560
    v_add_u32 v{XA}, s44, v6
    s_and_b32 s44, s{LOC}, 3
    s_lshl_b32 s44, s44, {5 if OPT["rowmap"] else 6}
    s_lshl_b32 s45, s{XCD}, 8
    s_add_u32 s48, s44, s45
    s_and_b32 s44, s39, 1
    s_lshl_b32 s44, s44, 4
    s_add_u32 s51, s48, s44
    s_and_b32 s44, s39, 2
    s_lshl_b32 s44, s44, {6 if OPT["rowmap"] else 4}
    s_add_u32 s51, s51, s44
    s_lshl_b32 s39, s{TT}, 5
    s_add_u32 s39, s39, s45
    v_add_lshl_u32 v6, s39, v3, 2
    v_add_lshl_u32 v7, s51, v5, 2
    s_mov_b32 s39, {WS_G}
    v_add_u32 v11, {L_XT}, v{XA}
    v_mov_b32 v30, {M_PURE}
    v_mov_b32 v2, 1
    v_mov_b32 v{VTAG}, s{TAG}
    s_mov_b32 s40, 0""")
    for t in range(5):
        a(f"ds_read_b64 {vr(XR+2*t,2)}, v11 offset:{t*32}")
    for i in range(3):
        a(f"""s_add_u32 s44, s38, {i}
        s_lshr_b32 s45, s44, 2
        s_mul_i32 s45, s45, {CS-4096}
        s_lshl_b32 s44, s44, 10
        s_add_u32 s45, s45, s44
        s_add_u32 s45, s45, s37
        s_add_u32 s{4+2*i}, s45, 4096
        s_add_u32 s{5+2*i}, s44, s36""")
    a(f"""s_mov_b32 m0, s4
    s_cmp_eq_u32 s58, 0
    s_cbranch_scc1 L_nopub
    s_mov_b64 exec, 1
    s_waitcnt vmcnt(0)""")
    stamp(a, 4)
    two_flavours(a, lambda sc: a(f"buffer_store_dword v{VTAG}, off, s[24:27], s56 {sc}"))
    if not OPT["rfl"]:
        a(f"""s_cmp_lt_u32 s{CT}, 5
        s_cbranch_scc1 L_norf
        buffer_store_dword v{VTAG}, off, s[24:27], s57 sc1
        L_norf:""")
    a(f"""ds_add_u32 v30, v2 offset:{O_R}
    s_mov_b64 exec, -1
    L_nopub:
    s_waitcnt lgkmcnt(0)
    s_barrier""")
    stamp(a, 5)
    a(f"""buffer_load_dwordx4 v10, s[24:27], s5 offen sc1 lds
    s_mov_b32 m0, s6
    buffer_load_dword v{G2}, v7, s[24:27], s39 offen sc1
    buffer_load_dwordx4 v10, s[24:27], s7 offen sc1 lds
    s_mov_b32 m0, s8
    buffer_load_dwordx4 {vr(Q,4)}, v{QA}, s[24:27], s{SQ} offen sc1
    buffer_load_dwordx4 v10, s[24:27], s9 offen sc1 lds
    buffer_load_dwordx2 {vr(QH,2)}, v{QHA}, s[24:27], s{SQH} offen sc1
    buffer_load_dword v{G}, v6, s[24:27], s39 offen sc1""")
    outproj_setup(a)
    a("s_waitcnt vmcnt(0)")
    a("ds_read_b32 v31, v30")
    lds_add(a, O_B2)
    lds_wait(a, O_B2, 8)
    if OPT["aprio"]:
        a(f"s_setprio {OPT['aprio']}")
    stamp(a, 6)
    off = lambda i: (8 - i) * 512
    rdK = lambda i: f"ds_read_b128 {vr(K,4)}, v{KA} offset:{off(i)}"
    rdKH = lambda i: f"ds_read_b64 {vr(KH,2)}, v{KHA} offset:{off(i)}"
    rdV = lambda i, h: f"ds_read_b64_tr_b16 {vr(V+4*h,2)}, v{VA} offset:{off(i)+256*h}\nds_read_b64_tr_b16 {vr(V+4*h+2,2)}, v{VA} offset:{off(i)+256*h+128}"
    stubs = []
    def halo_check(tval):
        stubs.append(tval)
        a(f"s_bitcmp1_b32 s{HI_}, {tval}\ns_cbranch_scc1 L_hw{tval}\nL_hr{tval}:")
    a("L_att_go:")
    a(rdK(0)); a(rdKH(0)); a(rdV(0, 0))
    halo_check(0)
    a(f"""s_waitcnt lgkmcnt(2)
    v_mfma_f32_32x32x16_bf16 {vr(S0,16)}, {vr(K,4)}, {vr(Q,4)}, {vr(S0,16)}""")
    a(rdK(1))
    a(f"v_mfma_f32_32x32x8_bf16 {vr(S0,16)}, {vr(KH,2)}, {vr(QH,2)}, {vr(S0,16)}")
    a(rdKH(1))
    a(f"""v_readfirstlane_b32 s{PURE}, v31
    s_nop 4
    s_waitcnt lgkmcnt(0)""")

    def softq(S, q):
        for j in range(4):
            a(f"v_exp_f32 v{S+4*q+j}, v{S+4*q+j}")
        for j in range(2):
            a(f"v_cvt_pk_bf16_f32 v{P+2*q+j}, v{S+4*q+2*j}, v{S+4*q+2*j+1}")

    for i in range(9):
        S, SN = (S0, S1) if i % 2 == 0 else (S1, S0)
        halo_check(i + 1)
        if i > 0:
            a("s_waitcnt lgkmcnt(2)")
        if i < 8:
            c = vr(M, 16) if i + 1 == 8 else "0"
            a(f"v_mfma_f32_32x32x16_bf16 {vr(SN,16)}, {vr(K,4)}, {vr(Q,4)}, {c}")
        nread = 0
        if i < 7:
            a(rdK(i + 2)); nread += 1
        softq(S, 0)
        if i > 0:
            a(f"v_mfma_f32_32x32x16_bf16 {vr(O,16)}, {vr(V+4,4)}, {vr(P+4,4)}, {vr(O,16)}")
        a(rdV(i, 1)); nread += 2
        softq(S, 1)
        if i < 8:
            a(f"v_mfma_f32_32x32x8_bf16 {vr(SN,16)}, {vr(KH,2)}, {vr(QH,2)}, {vr(SN,16)}")
        if i < 7:
            a(rdKH(i + 2)); nread += 1
        softq(S, 2)
        a(f"s_waitcnt lgkmcnt({nread})")
        a(f"v_mfma_f32_32x32x16_bf16 {vr(O,16)}, {vr(V,4)}, {vr(P,4)}, {'0' if i == 0 else vr(O,16)}")
        if i < 8:
            a(rdV(i + 1, 0))
        softq(S, 3)
    a(f"""L_att_fin:
    s_waitcnt lgkmcnt(0)
    s_nop 0
    v_mfma_f32_32x32x16_bf16 {vr(O,16)}, {vr(V+4,4)}, {vr(P+4,4)}, {vr(O,16)}
    s_lshl_b32 s36, s{XCD}, 3
    s_add_u32 s36, s36, s{TT}
    s_lshl_b32 s36, s36, 5
    s_add_u32 s36, s36, s{LOC}
    s_lshl_b32 s36, s36, 2
    s_add_u32 s36, s36, {WS_FO}
    s_mov_b32 s37, {f32(2.0**-64)}
    s_mov_b32 s38, {f32(2.0**64 if not OPT['forcefb'] else 2.0**12)}
    s_nop 3
    v_rcp_f32 v8, v{O+12}
    v_cmp_nle_f32 s[44:45], s37, v{O+12}
    v_cmp_nge_f32 vcc, s38, v{O+12}
    v_mul_f32 v8, v8, v{G}
    s_or_b64 vcc, vcc, s[44:45]""")
    if OPT["ochk"]:
        a(f"v_pk_mul_f32 v[6:7], {vr(O,2)}, 0")
        for r in range(1, 6):
            a(f"v_pk_fma_f32 v[6:7], {vr(O+2*r,2)}, 0, v[6:7]")
        a("v_cmp_u_f32 s[44:45], v6, v7\ns_or_b64 vcc, vcc, s[44:45]")
    a(f"""s_cbranch_vccnz L_fallback
    L_att_ok:""")
    for r in range(6):
        a(f"v_pk_mul_f32 {vr(O+2*r,2)}, {vr(O+2*r,2)}, v[8:9] op_sel_hi:[1,0]")
    for r in range(6):
        a(f"v_cvt_pk_bf16_f32 v{P+r}, v{O+2*r}, v{O+2*r+1}")
    def pub(sc):
        a(f"""buffer_store_dwordx4 {vr(P,4)}, v{QA}, s[24:27], s{SQ} offen {sc or OPT["ont"]}
        buffer_store_dwordx2 {vr(P+4,2)}, v{QHA}, s[24:27], s{SQH} offen {sc or OPT["ont2"]}""")
        stamp(a, 7)
        a(f"""s_mov_b64 exec, 1
        ds_add_u32 v30, v2 offset:{O_ATT}
        ds_read_b64 v[62:63], v30 offset:16
        s_waitcnt vmcnt(0)
        buffer_store_dword v{VTAG}, off, s[24:27], s36 {sc}
        s_mov_b64 exec, -1""")
    two_flavours(a, pub)
    stamp(a, 8)
    return stubs


def att_stubs(a, stubs):
    for t in stubs:
        a(f"L_hw{t}:")
        if t >= 8:
            a("s_branch L_att_fin")
            continue
        if t >= 2:
            a(f"s_cmp_eq_u32 s{XCD}, 0\ns_cbranch_scc1 L_att_fin")
        a(f"""s_cmp_eq_u32 s{TT}, {t}
        s_cselect_b32 s36, 1, 2
        s_mov_b32 s50, {SPIN*8}
        L_hs{t}:
        {"s_sleep %d" % OPT["slp"] if OPT["slp"] else ""}
        ds_read_b32 v9, v30 offset:4
        s_sub_u32 s50, s50, 1
        s_cbranch_scc1 L_hr{t}
        s_waitcnt lgkmcnt(0)
        v_cmp_gt_u32 vcc, s36, v9
        s_cbranch_vccnz L_hs{t}
        s_branch L_hr{t}""")
    a(f"""L_fallback:
    s_cmp_lg_u32 s40, 0
    s_cbranch_scc1 L_att_ok
    s_mov_b32 s40, 1""")
    diag_mask(a, False)
    a(f"""v_mov_b32 v8, 0xff800000
    v_add_u32 v5, 4096, v{KA}
    v_add_u32 v6, 4096, v{KHA}
    s_mov_b32 s36, 0
    L_fb_loop:
    ds_read_b128 {vr(K,4)}, v5
    ds_read_b64 {vr(KH,2)}, v6
    v_subrev_u32 v5, 512, v5
    v_subrev_u32 v6, 512, v6
    s_waitcnt lgkmcnt(0)
    s_cmp_eq_u32 s36, 0
    s_cbranch_scc1 L_fb_a
    s_cmp_eq_u32 s36, 8
    s_cbranch_scc1 L_fb_b
    v_mfma_f32_32x32x16_bf16 {vr(S1,16)}, {vr(K,4)}, {vr(Q,4)}, 0
    s_branch L_fb_c
    L_fb_a:
    v_mfma_f32_32x32x16_bf16 {vr(S1,16)}, {vr(K,4)}, {vr(Q,4)}, {vr(S0,16)}
    s_branch L_fb_c
    L_fb_b:
    v_mfma_f32_32x32x16_bf16 {vr(S1,16)}, {vr(K,4)}, {vr(Q,4)}, {vr(M,16)}
    L_fb_c:
    v_mfma_f32_32x32x8_bf16 {vr(S1,16)}, {vr(KH,2)}, {vr(QH,2)}, {vr(S1,16)}
    s_nop 11""")
    for r in range(0, 16, 2):
        a(f"v_max3_f32 v8, v8, v{S1+r}, v{S1+r+1}")
    a(f"""s_add_u32 s36, s36, 1
    s_cmp_lt_u32 s36, s{NT}
    s_cbranch_scc1 L_fb_loop
    v_mov_b32 v9, v8
    s_nop 1
    v_permlane32_swap_b32 v8, v9
    v_max_f32 v8, v8, v9
    v_sub_f32 v8, 0, v8
    v_and_b32 v5, 0xffff0000, v8
    v_sub_f32 v8, v8, v5
    v_and_b32 v6, 0xffff0000, v8
    v_sub_f32 v8, v8, v6
    v_lshrrev_b32 v5, 16, v5
    v_or_b32 v5, v5, v6
    v_lshrrev_b32 v8, 16, v8
    v_cmp_eq_u32 s[44:45], 0, v4
    s_nop 1
    v_cndmask_b32_e64 v{QH}, v5, v{QH}, s[44:45]
    v_cndmask_b32_e64 v{QH+1}, v8, v{QH+1}, s[44:45]
    s_branch L_att_go""")


def outproj(a):
    a(f"""s_cmp_lt_u32 s{WAVE}, 4
    s_cbranch_scc1 L_op_main
    s_waitcnt lgkmcnt(0)""")
    finish(a)
    pl = f"buffer_load_dword v6, v{FLG}, s[24:27], s57 offen sc1"
    a(f"""L_op_main:
    {"s_setprio 0" if OPT["aprio"] else ""}
    {"" if OPT["gate"] else pl}""")
    lds_wait(a, O_WO, 1)
    stamp(a, 9)

    def wread(s, t):
        f = WF + 20 * (s % 3) + 4 * t
        a(f"ds_read_b128 {vr(f,4)}, v{WL+s//10} offset:{(s%10)*5120+t*1024}")

    def oload(s):
        r = OF + 4 * (s % NOF)
        if s < 16:
            a(f"buffer_load_dwordx4 {vr(r,4)}, v{OL}, s[24:27], s58 offen {OPT['olf'].replace('_', ' ')}\ns_add_u32 s58, s58, {5*4096}")
        else:
            a(f"buffer_load_dwordx4 {vr(r,4)}, v{OH}, s[24:27], s59 offen {OPT['olf'].replace('_', ' ')}\ns_add_u32 s59, s59, {20*4096}")
    a(f"""s_mov_b32 s50, {SPIN*8}
    L_tv:
    v_readfirstlane_b32 s42, v62
    v_readfirstlane_b32 s43, v63
    s_cmp_lg_u32 s42, 0
    s_cbranch_scc1 L_to
    ds_read_b64 v[62:63], v30 offset:16
    s_sub_u32 s50, s50, 1
    s_waitcnt lgkmcnt(0)
    s_cbranch_scc0 L_tv
    L_to:
    s_and_b32 s42, s42, 0xffff""")
    npre = OPT["npre"]
    for s in range(npre):
        for t in range(5):
            wread(s, t)
    a(f"""v_cmp_eq_u32 s[44:45], s43, v{TOK}
    v_cmp_eq_u32 s[48:49], s42, v{TOK}""")
    if OPT["gate"]:
        lds_wait(a, O_ATT, OPT["gate"])
    poll(a, pl, [6], pre=not OPT["gate"])
    stamp(a, 10)
    NL0 = OPT["nl0"]
    assert NL0 <= 3
    for s in range(NL0):
        oload(s)
    for s in range(npre, 3):
        for t in range(5):
            wread(s, t)
    a(f"""s_or_b64 s[48:49], s[44:45], s[48:49]
    s_cbranch_scc0 L_op_loop
    v_mov_b32 v7, 320
    v_cndmask_b32_e64 v7, 0, v7, s[44:45]
    v_add_u32 v7, v7, v{YA}
    s_mov_b32 s50, {SPIN*8}
    s_waitcnt lgkmcnt(0)
    L_yw:
    ds_read_b32 v9, v30 offset:{O_Y}""")
    for t in range(5):
        a(f"ds_read_b128 {vr(104+4*t,4)}, v7 offset:{L_Y-L_MISC+t*64}")
    a(f"""s_sub_u32 s50, s50, 1
    s_waitcnt lgkmcnt(0)
    s_cbranch_scc1 L_op_loop
    v_cmp_ne_u32 vcc, 1, v9
    s_cbranch_vccnz L_yw
    s_mov_b64 exec, s[48:49]""")
    for i in range(20):
        a(f"v_fmac_f32 v{PA+i}, v{G2}, v{104+i}")
    a("s_mov_b64 exec, -1\nL_op_loop:")
    issued = NL0
    for s in range(20):
        a(f"s_waitcnt vmcnt({issued-1-s}) lgkmcnt({10 if s < 18 else (6 if s == 18 else 1) - (OPT['gate'] == 8)})")
        for t in range(5):
            a(f"v_mfma_f32_16x16x32_bf16 {vr(PA+4*t,4)}, {vr(WF+20*(s%3)+4*t,4)}, {vr(OF+4*(s%NOF),4)}, {vr(PA+4*t,4)}")
            if s < 17:
                wread(s + 3, t)
            if t in (0, 2) and issued < min(20, s + 1 + OPT["nla"]):
                oload(issued); issued += 1
            if s == 17 and t == 0 and OPT["gate"] != 8:
                a(f"ds_read_b32 v9, v30 offset:{O_ATT}")
    a("L_op_end:")
    stamp(a, 11)
    if OPT["gate"] != 8:
        lds_wait(a, O_ATT, 8, pre=True)
    else:
        a("s_nop 3")
    for t in range(5):
        a(f"""v_cvt_pk_bf16_f32 v{WF+2*t}, v{PA+4*t}, v{PA+4*t+1}
        v_cvt_pk_bf16_f32 v{WF+2*t+1}, v{PA+4*t+2}, v{PA+4*t+3}
        ds_write_b64 v{XA}, {vr(WF+2*t,2)} offset:{t*32}""")
    for n in range(3):
        a(f"ds_read_b128 {vr(OF+16+4*n,4)}, v{LIN} offset:{n*1024}")
    for n in range(3):
        a(f"s_waitcnt lgkmcnt({2-n})\nbuffer_store_dwordx4 {vr(OF+16+4*n,4)}, v{OUT+n}, s[52:55], s56 offen {OPT['osc'].replace('_', ' ')}")
    stamp(a, 12)
    if OPT["probe"]:
        pa, pb = [int(x) for x in OPT["probe"].split("_")]
        a(f"""s_sub_u32 s36, s{62+2*pb}, s{62+2*pa}
        {'s_lshr_b32 s36, s36, 1' if OPT['pcyc'] else 's_lshl_b32 s36, s36, 3'}
        s_min_u32 s36, s36, 20000
        s_lshl_b32 s37, s{WAVE}, 8
        s_add_u32 s37, s37, s2
        s_cmp_lg_u32 s37, {OPT["pwg"]}
        s_cselect_b32 s36, 0, s36
        s_memrealtime s[38:39]
        s_waitcnt lgkmcnt(0)
        s_add_u32 s36, s36, s38
        L_probe:
        s_sleep 2
        s_memrealtime s[38:39]
        s_waitcnt lgkmcnt(0)
        s_sub_u32 s37, s38, s36
        s_cmp_lt_i32 s37, 0
        s_cbranch_scc1 L_probe""")
    finish(a, True)


def wo_offsets(a):
    for n in range(5):
        a(f"""v_add_u32 v5, {64*n}, v1
        v_mul_u32_u24 v6, 6554, v5
        v_lshrrev_b32 v6, 16, v6
        v_mul_u32_u24 v8, 10, v6
        v_sub_u32 v8, v5, v8
        v_mul_u32_u24 v6, 1280, v6
        v_lshl_add_u32 v{WOV+n}, v8, 4, v6""")


WOV = 160
def wo_groups(a, n0, n1):
    lp = uid("wo")
    a(f"""s_mov_b32 m0, {L_WO+n0*4096}
    s_add_u32 s41, s43, {n0*4096}
    s_movk_i32 s44, 0x1000
    {lp}:""")
    for j in range(4):
        a(f"buffer_load_dwordx4 v10, s[24:27], s41 offen offset:{j*1024} sc1 lds")
    a(f"""s_add_u32 m0, m0, s44
    s_add_u32 s41, s41, s44
    s_cmp_lt_u32 m0, {L_WO+n1*4096}
    s_cbranch_scc1 {lp}""")


def purity(a):
    a(f"""v_cmp_ne_u32 vcc, s{TAG}, v12
    v_cmp_ne_u32 s[44:45], s35, v13
    s_or_b64 vcc, vcc, s[44:45]
    s_cselect_b32 s36, 0, {0 if OPT['forceimp'] else 1}
    v_mov_b32 v5, s36
    ds_write_b32 v30, v5
    s_waitcnt lgkmcnt(0)""")


def helper1(a):
    a(f"""L_help:
    s_cmp_eq_u32 s{WAVE}, 9
    s_cbranch_scc1 L_ffn
    s_load_dwordx2 s[8:9], s[0:1], 32
    s_load_dwordx2 s[10:11], s[0:1], 64
    v_lshlrev_b32 v10, 4, v1""")
    a(f"""v_mov_b32 v16, {"0x3f80" if OPT["ones"] else "0x3f803f80"}
    v_mov_b32 v17, {"0" if OPT["ones"] else "0x3f803f80"}
    v_mov_b32 v18, 0x3f803f80
    v_mov_b32 v19, 0x3f80
    v_add_u32 v5, {L_ONES}, v10""")
    for i in range(5):
        a(f"ds_write_b128 v5, v[16:19] offset:{i*1024}")
    a(f"""v_mov_b32 v30, {M_PURE}
    v_mov_b32 v6, 0
    v_lshl_add_u32 v7, v1, 2, v30
    ds_write_b32 v7, v6""")
    if OPT["prio"]:
        a("s_setprio 3")
    wo_offsets(a)
    a("s_waitcnt lgkmcnt(0)")
    epoch_load(a)
    srd(a, SX, 4, 2621440)
    srd(a, SS, 12, WS_END)
    srd(a, SA, 8, 1280)
    srd(a, SB, 10, 1280)
    a(f"""s_cmp_lg_u32 s{CT}, 15
    s_cbranch_scc1 L_nowv
    s_mov_b32 m0, {L_WV}
    s_nop 0
    buffer_load_dwordx4 v10, s[52:55], 0 offen lds
    buffer_load_dwordx4 v10, s[52:55], 0 offen offset:1024 lds
    s_mov_b32 m0, {L_WV+2048}
    s_nop 0
    buffer_load_dwordx4 v10, s[56:59], 0 offen lds
    buffer_load_dwordx4 v10, s[56:59], 0 offen offset:1024 lds
    L_nowv:
    s_getreg_b32 s35, hwreg(HW_REG_XCC_ID, 0, 4)
    s_lshr_b32 s34, s{LOC}, 2
    s_mul_i32 s34, s34, 160
    s_mul_i32 s33, s{LOC}, 5
    s_lshr_b32 s33, s33, 1             ; c0
    v_bfe_u32 v5, v1, 2, 1
    v_lshl_add_u32 v6, v5, 1, s33
    v_lshrrev_b32 v6, 3, v6
    v_bfe_u32 v7, v1, 3, 2             ; section (3 = router/gate)
    v_cmp_eq_u32 s[44:45], 3, v7
    v_and_b32 v8, 3, v1
    v_lshlrev_b32 v8, 2, v8
    v_cndmask_b32_e64 v5, v6, v5, s[44:45]
    v_mad_u32_u24 v5, v7, 10, v5
    v_lshl_add_u32 v11, v5, 4, v8
    v_and_b32 v7, 1, v7
    v_mad_u32_u24 v5, v7, 10, v6
    v_add_u32 v5, 10, v5
    v_lshl_add_u32 v15, v5, 7, v8
    v_and_b32 v14, 31, v1
    v_lshlrev_b32 v14, 3, v14
    s_lshl_b32 s42, s{XCD}, 8
    s_add_u32 s42, s42, {WS_XID}""")
    epoch_fin(a)
    stamp(a, 1)
    a(f"""s_waitcnt vmcnt(0)
    s_barrier
    s_lshl_b32 s36, s{LOC}, 3
    s_add_u32 s36, s36, s42
    v_mov_b32 v8, s{TAG}
    v_mov_b32 v9, s35
    v_mov_b32 v5, 0
    s_mov_b64 exec, 1
    buffer_store_dwordx2 v[8:9], v5, s[24:27], s36 offen {'sc1' if OPT['xsc'] else ''}
    s_mov_b64 exec, -1""")
    def qtouch(part):
        if OPT["qown"]:
            l = uid("nq")
            a(f"""s_cmp_ge_u32 s{CT}, 5
            s_cbranch_scc1 {l}
            s_mul_i32 s36, s{XCD}, {XB}
            s_lshl_b32 s37, s{LOC}, 15
            s_add_u32 s36, s36, s37
            s_add_u32 s36, s36, {part*16384}
            s_add_u32 s37, s36, 8192
            v_lshlrev_b32 v5, 7, v1
            buffer_load_dword v167, v5, s[24:27], s36 offen sc1
            buffer_load_dword v167, v5, s[24:27], s37 offen sc1""")
            if part:
                a(f"""s_mul_i32 s36, s{XCD}, 10
                s_add_u32 s36, s36, s{LOC}
                s_mul_i32 s36, s36, 3072
                s_add_u32 s36, s36, {WS_P1}
                s_mov_b64 exec, 0xffffff
                buffer_load_dword v167, v5, s[24:27], s36 offen sc1
                s_mov_b64 exec, -1""")
            a(f"{l}:")
            return
        a(f"""s_mul_i32 s36, s{XCD}, {XB}
        s_mul_i32 s37, s{LOC}, {86*128}
        s_min_u32 s37, s37, {(2560-86)*128}
        s_add_u32 s36, s36, s37
        s_add_u32 s36, s36, {part*43*128}
        v_min_u32 v5, 42, v1
        v_lshlrev_b32 v5, 7, v5
        buffer_load_dword v167, v5, s[24:27], s36 offen sc1""")
        if part:
            a(f"""s_mul_i32 s36, s{XCD}, 30
            s_add_u32 s36, s36, s{LOC}
            s_lshl_b32 s36, s36, 10
            s_add_u32 s36, s36, {WS_P1}
            s_mov_b64 exec, 0xff
            buffer_load_dword v167, v5, s[24:27], s36 offen sc1
            s_mov_b64 exec, -1""")
    a(f"""s_and_b32 s38, s{LOC}, 3
    s_lshl_b32 s38, s38, 5
    s_lshl_b32 s39, s{XCD}, 8
    s_add_u32 s38, s38, s39
    s_mul_i32 s38, s38, 1280
    s_add_u32 s38, s38, s34
    s_add_u32 s39, s38, {128*1280}""")
    side = {i: [] for i in range(10)}
    def spread(items, spec):
        a0, a1 = [int(x) for x in spec.split("_")]
        n = a1 - a0 + 1
        for k, it in enumerate(items):
            side[a0 + k * n // len(items)].append(it)
    spread([f"""s_mov_b32 m0, {L_XT+n*1024}
        s_nop 0
        buffer_load_dwordx4 v{WOV+n%5}, s[16:19], s{38+n//5} offen lds""" for n in range(10)], OPT["xs"])
    a(f"""s_cmp_lg_u32 s{CT}, 15
    s_cbranch_scc1 L_h_g""")
    if OPT["fwarm"]:
        a(f"""s_lshl_b32 s36, s{XCD}, 10
        s_add_u32 s36, s36, {WS_FO}
        s_lshl_b32 s37, s{XCD}, 9
        s_add_u32 s37, s37, {WS_FL}
        v_and_b32 v5, 7, v1
        v_lshlrev_b32 v5, 7, v5
        v_lshrrev_b32 v6, 1, v5
        s_mov_b64 exec, 0xff
        buffer_load_dword v167, v5, s[24:27], s36 offen sc1
        buffer_load_dword v167, v6, s[24:27], s37 offen sc1
        s_mov_b64 exec, -1
        buffer_load_dword v167, v14, s[24:27], s42 offen sc1""")
    for i in range(9):
        a("s_barrier")
    lds_wait(a, O_R, 4)
    for i in range(7):
        for it in side[i]:
            a(it)
    a("""buffer_load_dwordx2 v[12:13], v14, s[24:27], s42 offen sc1
    s_waitcnt vmcnt(0)""")
    lds_add(a, O_FD)
    a("s_branch L_h_p\nL_h_g:")
    for i in range(7):
        if OPT["qat"] == i:
            qtouch(0)
        if OPT["qat2"] == i:
            qtouch(1)
        for it in side[i]:
            a(it)
        if i < 6:
            a("s_barrier")
    a(f"""buffer_load_dwordx2 v[12:13], v14, s[24:27], s42 offen sc1
    s_barrier
    s_barrier
    L_h_p:
    s_waitcnt vmcnt(0)""")
    purity(a)
    for it in side[8]:
        a(it)
    a(f"""s_cmp_eq_u32 s{CT}, 15
    s_cbranch_scc1 L_h_q
    s_barrier
    L_h_q:""")
    for it in side[9]:
        a(it)
    lds_wait(a, O_R, 4)
    a(f"""s_lshl_b32 s36, s{XCD}, 9
    s_add_u32 s36, s36, {WS_FL}""")
    stamp(a, 2)
    poll(a, "buffer_load_dword v12, v11, s[24:27], s36 offen sc1", [12])
    stamp(a, 4)
    a(f"""s_lshl_b32 s36, s{XCD}, 12
    s_add_u32 s36, s36, {WS_FR-4096}""")
    if OPT["rfl"]:
        a(f"""s_lshl_b32 s37, s{CT}, 8
        s_lshl_b32 s38, s{RBL}, 3
        s_add_u32 s37, s37, s38
        s_add_u32 s37, s37, s36
        s_add_u32 s37, s37, 4096
        v_lshlrev_b32 v5, 7, v1
        v_mov_b32 v8, s{TAG}
        v_mov_b32 v9, s{TAG}
        s_mov_b64 exec, 3
        s_barrier
        buffer_store_dwordx2 v[8:9], v5, s[24:27], s37 offen sc1
        s_mov_b64 exec, -1""")
        if OPT["rfl"] == 1:
            lds_wait(a, O_B2, OPT["fdel"])
    else:
        a("s_barrier")
    if OPT["rfl"] != 2:
        a("buffer_load_dword v12, v15, s[24:27], s36 offen sc1")
    fw = "buffer_load_dword v12, v16, s[24:27], s45 offen sc1"
    a(f"""s_lshr_b32 s43, s{LOC}, 2
    s_mul_i32 s43, s43, 102400
    s_add_u32 s43, s43, {WS_WP}
    s_mov_b32 s45, {WS_FW}
    v_lshrrev_b32 v5, 2, v1
    v_and_b32 v6, 3, v1
    v_lshlrev_b32 v6, 2, v6
    v_lshl_add_u32 v16, v5, 7, v6
    v_mov_b32 v17, 1
    v_mov_b32 v18, 2
    s_cmp_eq_u32 s{XCD}, 0
    s_cbranch_scc1 L_nofr""")
    if OPT["rfl"] == 2:
        a(f"""s_add_u32 s40, s12, s36
        s_addc_u32 s41, s13, 0
        s_lshr_b32 s37, s33, 3
        s_lshl_b32 s37, s37, 7
        s_add_u32 s46, s40, s37
        s_addc_u32 s47, s41, 0
        s_add_u32 s37, s33, 2
        s_lshr_b32 s37, s37, 3
        s_lshl_b32 s37, s37, 7
        s_add_u32 s48, s40, s37
        s_addc_u32 s49, s41, 0
        s_mov_b32 s38, s{TAG}
        s_mov_b32 s39, s{TAG}
        s_mov_b32 s50, {OPT["ntry"]}
        s_waitcnt vmcnt(0)
        L_sfr:
        s_load_dwordx4 s[4:7], s[46:47], 1280 glc
        s_load_dwordx4 s[8:11], s[48:49], 1280 glc
        s_load_dwordx4 s[52:55], s[46:47], 2560 glc
        s_load_dwordx4 s[56:59], s[48:49], 2560 glc
        s_waitcnt lgkmcnt(0)
        s_xor_b64 s[40:41], s[4:5], s[38:39]""")
        for p in (6, 8, 10, 52, 54, 56, 58):
            a(f"s_xor_b64 s[{p}:{p+1}], s[{p}:{p+1}], s[38:39]\ns_or_b64 s[40:41], s[40:41], s[{p}:{p+1}]")
        a("""s_cbranch_scc0 L_nofr
        s_sub_u32 s50, s50, 1
        s_cmp_lg_u32 s50, 0
        s_cbranch_scc1 L_sfr""")
    poll(a, "buffer_load_dword v12, v15, s[24:27], s36 offen sc1", [12], pre=OPT["rfl"] != 2)
    a("L_nofr:")
    lds_wait(a, O_B2, OPT["hdel"])
    stamp(a, 7)
    a(f"""s_cmp_eq_u32 s{XCD}, 0
    s_cbranch_scc1 L_wlate
    s_mul_i32 s36, s{XCD}, 240
    s_add_u32 s36, s36, s33
    s_lshl_b32 s36, s36, 12
    s_add_u32 s36, s36, {(WS_L - XB + 80*4096) & 0xffffffff}""")
    for q in (3, 2, 1, 0):
        if q == 1:
            a(fw)
        for sec in range(2):
            for j in range(3):
                a(f"""s_mov_b32 m0, {sec*L_V + j*CS + q*1024}
                s_add_u32 s37, s36, {sec*80*4096 + j*4096 + q*1024}
                buffer_load_dwordx4 v10, s[24:27], s37 offen sc1 lds""")
    a(f"""s_waitcnt vmcnt(13)
    ds_write_b32 v30, v17 offset:4
    s_waitcnt vmcnt(12)
    v_cmp_ne_u32 vcc, s{TAG}, v12
    s_cbranch_vccz L_wok
    L_wlate:
    s_waitcnt vmcnt(0)
    ds_write_b32 v30, v18 offset:4 """)
    poll(a, fw, [12])
    a("L_wok:")
    stamp(a, 6)
    wo_groups(a, 0, 3)
    a("""s_waitcnt vmcnt(12)
    ds_write_b32 v30, v18 offset:4""")
    stamp(a, 8)
    if OPT["wdl"]:
        wo_groups(a, 3, 20)
        lds_wait(a, O_W, 1)
        wo_groups(a, 20, 25)
    else:
        wo_groups(a, 3, 25)
    a("s_waitcnt vmcnt(0)")
    lds_add(a, O_WO)
    a("s_waitcnt lgkmcnt(0)")
    stamp(a, 9)
    a(f"""s_cmp_lg_u32 s2, 255
    s_cbranch_scc1 L_h1_end
    s_mov_b32 s36, {WS_P2}
    v_min_u32 v5, 59, v1
    v_lshlrev_b32 v5, 10, v5""")
    lds_wait(a, 16, 1)
    tag_bytes(a)
    a(f"s_mov_b32 s50, {SPIN}\nL_ep:")
    for i in range(4):
        a(f"buffer_load_dwordx4 {vr(32+4*i,4)}, v5, s[24:27], s36 offen offset:{i*256} sc1")
    strip_tags(a, [32, 36, 40, 44], True)
    a("""s_sub_u32 s50, s50, 1
    s_cbranch_scc1 L_epo
    s_cbranch_vccnz L_ep
    L_epo:""")
    a(f"s_mov_b32 s36, {WS_EP}")
    flag_store(a, 36, False)
    a("L_h1_end:")
    finish(a)


def tag_bytes(a):
    a(f"""s_and_b32 s52, s{TAG}, 0xff
    s_bfe_u32 s53, s{TAG}, 0x80008
    s_bfe_u32 s54, s{TAG}, 0x80010
    s_lshr_b32 s55, s{TAG}, 24""")


def strip_tags(a, regs, waits=None):
    a("v_mov_b32 v9, 0")
    for i, r in enumerate(regs):
        if waits:
            a(f"s_waitcnt vmcnt({len(regs)-1-i})")
        for j in range(4):
            a(f"v_xor_b32 v{r+j}, s{52+j}, v{r+j}")
        a(f"v_or3_b32 v9, v9, v{r}, v{r+1}\nv_or3_b32 v9, v9, v{r+2}, v{r+3}")
    a("v_and_b32 v9, 0xff, v9\nv_cmp_ne_u32 vcc, 0, v9")


def sel_by_g(a, o, b, st, tag=True):
    a(f"""v_cndmask_b32_e64 v{o}, v{b}, v{b+st}, s[44:45]
    v_cndmask_b32_e64 v{o}, v{o}, v{b+2*st}, s[46:47]
    v_cndmask_b32_e64 v{o}, v{o}, v{b+3*st}, s[48:49]""")
    if tag:
        a(f"v_mov_b32 v{o+1}, s{TAG}")


def ffn(a):
    a(f"""L_ffn:
    s_load_dwordx4 s[8:11], s[0:1], 40
    s_load_dwordx2 s[40:41], s[0:1], 56
    s_load_dwordx2 s[44:45], s[0:1], 16
    s_load_dwordx2 s[46:47], s[0:1], 72
    v_lshlrev_b32 v10, 4, v1
    s_mul_i32 s33, s{XCD}, 30
    s_add_u32 s33, s33, s{LOC}         ; job
    s_mul_i32 s34, s33, 6554
    s_lshr_b32 s34, s34, 16            ; b
    s_mul_i32 s35, s34, 10
    s_sub_u32 s35, s33, s35
    v_lshrrev_b32 v5, 3, v1
    v_and_b32 v7, 7, v1
    v_mul_u32_u24 v6, 3072, v5
    v_lshl_add_u32 v11, v7, 4, v6
    v_mul_u32_u24 v6, 1280, v5
    v_lshl_add_u32 v12, v7, 4, v6
    v_bfe_u32 v6, v1, 2, 2
    v_lshl_add_u32 v6, v4, 3, v6
    v_lshlrev_b32 v6, 7, v6
    v_and_b32 v8, 3, v1
    v_lshl_add_u32 v6, v8, 3, v6
    v_add_u32 v13, {L_FW}, v6
    v_mov_b32 v30, {M_PURE}
    s_mul_i32 s38, s35, 64*3072
    s_lshl_b32 s36, s34, 7
    s_add_u32 s38, s38, s36
    s_mul_i32 s39, s34, 64*1280
    s_lshl_b32 s36, s35, 7
    s_add_u32 s39, s39, s36
    s_waitcnt lgkmcnt(0)""")
    epoch_load(a)
    srd(a, SX, 4, 2621440)
    srd(a, SW, 40, 1966080)
    srd(a, SS, 12, WS_END)
    srd(a, SA, 8, 1966080)
    srd(a, SB, 10, 1966080)
    epoch_fin(a)
    stamp(a, 1)
    if OPT["fprio"]:
        a(f"s_setprio {OPT['fprio']}")
    def weights(n0=0, n1=24):
        for m in range(3):
            for i in range(8):
                if not n0 <= m * 8 + i < n1:
                    continue
                s_, v_, so, st = ((SA, 11, 38, 3072), (SB, 11, 38, 3072), (SW, 12, 39, 1280))[m]
                a(f"""s_mov_b32 m0, {L_FW+m*8192+i*1024}
                s_add_u32 s36, s{so}, {i*8*st}
                buffer_load_dwordx4 v{v_}, s[{s_}:{s_+3}], s36 offen {OPT['fnt']} lds""")
    cl = "buffer_load_dwordx4 v[24:27], v10, s[24:27], s51 offen sc1"
    def touch():
        a(f"""s_mul_i32 s36, s{XCD}, {XB}
        s_sub_u32 s37, s36, {XB}
        s_max_i32 s37, s37, 0
        s_load_dword s3, s[44:45], 0
        s_load_dword s3, s[12:13], s36
        s_load_dword s3, s[8:9], 0
        s_load_dword s3, s[10:11], 0
        s_load_dword s3, s[40:41], 0
        s_load_dword s3, s[12:13], s37
        s_add_u32 s36, s36, {XB-64}
        s_mul_i32 s37, s{XCD}, {256*1280}
        s_load_dword s3, s[12:13], s36
        s_load_dword s3, s[46:47], s37
        s_add_u32 s37, s37, {256*1280-64}
        s_load_dword s3, s[46:47], s37
        s_load_dword s3, s[6:7], 0
        s_mov_b32 s36, {2457600-64}
        s_load_dword s3, s[6:7], s36""")
    if OPT["stl"] == 1 and OPT["stw"]:
        touch()
    a(f"""    s_mov_b32 s51, {WS_CAND}
    s_cmp_lg_u32 s{CT}, 15
    s_cbranch_scc1 L_f_w""")
    for i in range(10):
        if (OPT["stl"] == 1 and not OPT["stw"] and i == 0) or (OPT["stl"] == 2 and i == 1):
            touch()
        a("s_barrier")
    a(f"""s_waitcnt lgkmcnt(0)
    s_mov_b32 s3, 1
    s_mov_b32 s50, {SPIN}
    s_branch L_f_b1
    L_f_w:""")
    late = 0
    fws = [int(x) for x in OPT["fws"].split("_") if x]
    OPT["fwe"] = sum(fws)
    NW = 16 if OPT["wdl"] else 24
    for i in range(9):
        a("s_barrier")
        if i == 0 and OPT["stl"] == 2 and OPT["stw"]:
            touch()
        if i == 8:
            a("s_waitcnt lgkmcnt(0)")
        if i < 8:
            if OPT["fwm"]:
                weights(3 * i, 3 * i + 3)
            if i < len(fws):
                weights(NW - sum(fws[:i+1]), NW - sum(fws[:i]))
    a(cl)
    if not OPT["fwm"]:
        weights(OPT["fskip"], NW - OPT["fwe"])
        late += NW - OPT["fwe"] - OPT["fskip"]
    def frags(ms=(0, 1) if OPT["wdl"] else (0, 1, 2)):
        if OPT["wdl"] == 2 and len(ms) == 2:
            weights(16, 24)
        for m in ms:
            for t in range(4):
                for ks in range(2):
                    o = m * 8192 + ks * 4096 + t * 32
                    r = 64 + m * 32 + t * 8 + ks * 4
                    a(f"""ds_read_b64_tr_b16 v[{r}:{r+1}], v13 offset:{o}
                    ds_read_b64_tr_b16 v[{r+2}:{r+3}], v13 offset:{o+512}""")
                if t & 1:
                    a("s_waitcnt lgkmcnt(4)")
        a("s_waitcnt lgkmcnt(0)")
        if OPT["wdl"] == 1 and len(ms) == 2:
            weights(16, 24)
    a(f"""s_mov_b32 s3, 0
    s_mov_b32 s50, {SPIN}
    s_barrier
    s_waitcnt vmcnt({late})
    L_f_chk:
    v_xor_b32 v9, s{TAG}, v25
    v_bitop3_b32 v9, v9, v27, s{TAG} bitop3:0xf6
    v_cmp_ne_u32 vcc, 0, v9
    s_cbranch_vccz L_f_ok
    s_sub_u32 s50, s50, 1
    s_cbranch_scc1 L_f_ok
    s_cmp_eq_u32 s3, 2
    s_cbranch_scc1 L_f_again
    s_cmp_eq_u32 s3, 1
    s_cbranch_scc1 L_f_b1
    s_cmp_eq_u32 s50, {SPIN-1 if OPT["a2"] else -1}
    s_cbranch_scc1 L_f_again
    s_waitcnt vmcnt(0)""")
    frags()
    a(f"""s_mov_b32 s3, 1
    s_branch L_f_again
    L_f_b1:
    s_barrier
    s_mov_b32 s3, 2
    L_f_again:
    {cl}
    s_waitcnt vmcnt(0)
    s_branch L_f_chk
    L_f_ok:""")
    stamp(a, 3)
    tag_bytes(a)
    top2(a, 24, 26, 21, 40, 41, 44)
    key_decode(a, 40, 42, 46, 36)
    key_decode(a, 41, 43, 47, 36)
    a(f"""v_mov_b32 v16, s42
    v_mov_b32 v17, s43
    v_mov_b32 v18, s46
    v_mov_b32 v19, s47
    v_or_b32 v16, 0x10000, v16
    ds_write_b128 v30, v[16:19] offset:16
    v_mov_b32 v20, s42
    v_and_b32 v6, 1, v1
    v_cmp_eq_u32 s[44:45], 0, v6
    s_lshl_b32 s36, s35, 7
    s_nop 0
    v_cndmask_b32_e64 v7, v17, v20, s[44:45]
    v_mul_u32_u24 v7, 1280, v7
    v_lshl_add_u32 v7, v4, 4, v7
    s_cmp_lg_u32 s{CT}, 15
    s_cbranch_scc1 L_f_job""")
    if OPT["wdl"]:
        lds_add(a, O_W)
    a(f"""s_branch L_f_gather
    L_f_job:
    buffer_load_dwordx4 v[24:27], v7, s[16:19], s36 offen
    buffer_load_dwordx4 v[160:163], v7, s[16:19], s36 offen offset:64
    v_cmp_eq_u32 s[44:45], 1, v4
    v_cmp_eq_u32 s[46:47], 2, v4
    v_cmp_eq_u32 s[48:49], 3, v4
    v_and_b32 v22, 3, v1
    v_lshlrev_b32 v22, 3, v22
    v_bfe_u32 v22, s{TAG}, v22, 8
    v_lshlrev_b32 v23, 2, v1
    v_mov_b32 v21, 0xffffff00
    ds_read_b32 v31, v30
    s_waitcnt lgkmcnt(0)
    v_readfirstlane_b32 s{PURE}, v31""")
    a("""s_cmp_lg_u32 s3, 0
    s_cbranch_scc1 L_f_nf
    s_waitcnt vmcnt(2)""")
    frags()
    if OPT["wdl"]:
        a("s_waitcnt vmcnt(8)\ns_branch L_f_s1")
    a("""L_f_nf:
    s_cmp_lg_u32 s3, 1
    s_cbranch_scc1 L_f_nb
    s_barrier
    L_f_nb:
    s_waitcnt vmcnt(0)
    L_f_s1:""")
    stamp(a, 4)
    for ks in range(2):
        for m in range(2):
            for t in range(4):
                d = 32 + (m * 4 + t) * 4
                a(f"v_mfma_f32_16x16x32_bf16 {vr(d,4)}, {vr((24, 160)[ks],4)}, {vr(64+m*32+t*8+ks*4,4)}, {'0' if ks == 0 else vr(d,4)}")
    a(f"""s_lshl_b32 s36, s33, 10
    s_add_u32 s36, s36, {WS_P1}
    s_nop 2""")
    for m in range(2):
        for tk in range(2):
            sel_by_g(a, 96 + m * 2 + tk, 32 + m * 16 + tk, 4, False)
    for j in range(4):
        a(f"v_and_or_b32 v{96+j}, v{96+j}, v21, s{52+j}")
    if OPT["p1loc"]:
        two_flavours(a, lambda sc: a(f"buffer_store_dwordx4 v[96:99], v10, s[24:27], s36 offen {sc}"))
    else:
        a("buffer_store_dwordx4 v[96:99], v10, s[24:27], s36 offen sc1")
    a(f"""s_mul_i32 s36, s34, 10240
    s_add_u32 s36, s36, {WS_P1}
    s_add_u32 s37, s36, 4096
    s_add_u32 s38, s36, 8192
    s_mov_b32 s50, {SPIN}
    s_waitcnt lgkmcnt(0)""")
    stamp(a, 5)
    a(f"""v_min_u32 v5, 9, v1
    v_lshlrev_b32 v5, 10, v5
    s_cmp_lg_u32 s3, 0
    s_cbranch_scc1 L_f_p0
    s_barrier
    s_branch L_f_p1
    L_f_p0:
    buffer_load_dword v6, v5, s[24:27], s36 offen sc1
    s_sub_u32 s50, s50, 1
    s_cbranch_scc1 L_f_p1o
    s_waitcnt vmcnt(0)
    v_and_b32 v6, 0xff, v6
    v_cmp_ne_u32 vcc, s52, v6
    s_cbranch_vccnz L_f_p0
    L_f_p1:""")
    stamp(a, 6)
    for i in range(10):
        a(f"buffer_load_dwordx4 {vr(32+4*i,4)}, v10, s[24:27], s{36+i//4} offen offset:{(i%4)*1024} sc1")
    strip_tags(a, [32 + 4 * i for i in range(10)], True)
    a("""    s_cbranch_vccnz L_f_p0
    L_f_p1o:
    s_waitcnt vmcnt(0)""")
    if OPT["wdl"]:
        frags((2,))
        lds_add(a, O_W)
    stamp(a, 7)
    for i in range(1, 10):
        for j in (0, 2):
            a(f"v_pk_add_f32 {vr(32+j,2)}, {vr(32+j,2)}, {vr(32+4*i+j,2)}")
    for tk in range(2):
        sigmoid(a, 14 + tk, f"v{32+tk}")
        a(f"v_mul_f32 v{14+tk}, v{14+tk}, v{32+tk}\nv_mul_f32 v{14+tk}, v{14+tk}, v{34+tk}")
    a(f"""v_cvt_pk_bf16_f32 v14, v14, v15
    v_lshl_add_u32 v6, v1, 1, v30
    ds_write_b16 v6, v14 offset:256
    ds_write_b16_d16_hi v6, v14 offset:384
    v_and_b32 v7, 1, v1
    v_lshl_add_u32 v7, v7, 7, v30
    v_lshl_add_u32 v7, v4, 4, v7
    s_waitcnt lgkmcnt(0)
    ds_read_b128 v[32:35], v7 offset:256
    ds_read_b128 v[36:39], v7 offset:320
    s_waitcnt lgkmcnt(0)""")
    for t in range(4):
        d = 64 + t * 4
        for ks in range(2):
            a(f"v_mfma_f32_16x16x32_bf16 {vr(d,4)}, {vr(32+4*ks,4)}, {vr(128+t*8+4*ks,4)}, {'0' if ks == 0 else vr(d,4)}")
    a(f"""s_lshl_b32 s36, s33, 8
    s_add_u32 s36, s36, {WS_P2}
    s_add_u32 s37, s36, {24*2560}
    s_nop 4""")
    for tk in range(2):
        sel_by_g(a, 96 + tk, 64 + tk, 4, False)
        a(f"""v_and_or_b32 v{96+tk}, v{96+tk}, v21, v22
        buffer_store_dword v{96+tk}, v23, s[24:27], s{36+tk} offen sc1""")
    stamp(a, 8)
    a("L_f_gather:")
    a(f"""s_and_b32 s36, s{LOC}, 3
    s_lshl_b32 s36, s36, 5
    s_lshl_b32 s37, s{XCD}, 8
    s_add_u32 s36, s36, s37
    s_xor_b32 s42, s42, s36
    s_xor_b32 s43, s43, s36
    s_and_b32 s42, s42, 0x760
    s_and_b32 s43, s43, 0x760
    s_min_u32 s36, s42, s43
    s_cmp_lg_u32 s36, 0
    s_cbranch_scc1 L_f_end
    s_lshr_b32 s32, s{LOC}, 2
    s_mul_i32 s40, s32, 320
    s_add_u32 s40, s40, {WS_P2}
    s_andn2_b32 s36, s40, 255
    s_add_u32 s36, s36, {24*2560}
    v_min_u32 v5, 47, v1
    v_lshrrev_b32 v6, 1, v5
    v_mul_u32_u24 v6, 2560, v6
    v_and_b32 v5, 1, v5
    v_lshl_add_u32 v5, v5, 8, v6
    v_min_u32 v7, 59, v1
    v_mul_u32_u24 v8, 3277, v7
    v_lshrrev_b32 v8, 16, v8
    v_mul_u32_u24 v6, 20, v8
    v_sub_u32 v6, v7, v6
    v_mul_u32_u24 v11, {8*2560}, v8
    v_lshl_add_u32 v11, v6, 4, v11
    v_lshl_add_u32 v12, v7, 4, v30
    v_lshl_add_u32 v13, v6, 4, v30
    v_mov_b32 v20, v13""")
    sigmoid(a, 18, "v18")
    sigmoid(a, 19, "v19")
    a("s_mov_b32 s41, 0")
    if OPT["yat"]:
        a("s_setprio 0")
        lds_wait(a, O_ATT, OPT["yat"])
        a("s_setprio 3")
    else:
        lds_wait(a, 4, 2)
    a(f"""s_mov_b32 s50, {SPIN}
    {"s_branch L_f_tok" if OPT["yat"] else ""}
    L_f_y0:
    buffer_load_dword v6, v5, s[24:27], s36 offen sc1
    s_sub_u32 s50, s50, 1
    s_cbranch_scc1 L_f_yo
    s_waitcnt vmcnt(0)
    v_and_b32 v6, 0xff, v6
    v_cmp_ne_u32 vcc, s52, v6
    s_cbranch_vccnz L_f_y0""")
    stamp(a, 9)
    a("""L_f_tok:
    s_cmp_lg_u32 s42, 0
    s_cbranch_scc1 L_f_next
    s_mov_b32 s37, s40""")
    for i in range(8):
        a(f"buffer_load_dwordx4 {vr(32+4*i,4)}, v11, s[24:27], s37 offen sc1\ns_add_u32 s37, s37, 2560")
    a(f"s_setprio {OPT['gprio']}")
    strip_tags(a, [32 + 4 * i for i in range(8)], True)
    a("s_cbranch_vccnz L_f_y0")
    for i in range(1, 8):
        for j in (0, 2):
            a(f"v_pk_add_f32 {vr(32+j,2)}, {vr(32+j,2)}, {vr(32+4*i+j,2)}")
    a(f"""ds_write_b128 v12, v[32:35] offset:{L_Y-L_MISC+640}
    ds_read_b128 v[36:39], v20 offset:{L_Y-L_MISC+640}
    ds_read_b128 v[40:43], v20 offset:{L_Y-L_MISC+960}
    ds_read_b128 v[44:47], v20 offset:{L_Y-L_MISC+1280}
    s_waitcnt lgkmcnt(0)""")
    for j in (0, 2):
        a(f"""v_pk_add_f32 {vr(36+j,2)}, {vr(36+j,2)}, {vr(40+j,2)}
        v_pk_add_f32 {vr(36+j,2)}, {vr(36+j,2)}, {vr(44+j,2)}
        v_pk_mul_f32 {vr(36+j,2)}, {vr(36+j,2)}, v[18:19] op_sel_hi:[1,0]""")
    a(f"""ds_write_b128 v13, v[36:39] offset:{L_Y-L_MISC}
    L_f_next:
    s_mov_b32 s42, s43
    s_add_u32 s40, s40, {24*2560}
    v_mov_b32 v18, v19
    v_add_u32 v13, 320, v13
    s_add_u32 s41, s41, 1
    s_cmp_lt_u32 s41, 2
    s_cbranch_scc1 L_f_tok
    L_f_yo:
    s_waitcnt vmcnt(0)""")
    lds_add(a, O_Y)
    a("s_waitcnt lgkmcnt(0)")
    stamp(a, 10)
    a("L_f_end:\ns_waitcnt lgkmcnt(0)")
    finish(a)


def main(out):
    a = Asm()
    head = f"""; gated mix of sliding-window attention and a top-2 routed FFN: one fused launch (written by a generator script)
; @launch grid=(256,1,1) block=(640,1,1) lds={LDS_BYTES}
.amdgcn_target "amdgcn-amd-amdhsa--gfx950"
.text
"""
    entry(a)
    loader(a)
    compute(a)
    stubs = attention(a)
    outproj(a)
    n0 = len(a.lines)
    helper1(a)
    if OPT["stamp"] == 3:
        body_, out_, k, skip = a.lines[n0:], [], 0, False
        for ln in body_:
            if "s_memrealtime" in ln or "s_memtime" in ln:
                continue
            if "s_cbranch_scc1 L_h_g" in ln: skip = True
            if ln.startswith("L_h_g:"): skip = False
            if ln.strip() == "s_endpgm":
                out_.append("    s_branch L_stampall")
                continue
            out_.append(ln)
            if (ln.strip() == "s_barrier" and not skip) or (ln.endswith("v17 offset:4") or (ln.endswith("v18 offset:4") and "vmcnt(12)" in out_[-2])):
                out_.append(f"    s_memrealtime s[{62+2*k}:{63+2*k}]"); k += 1
        a.lines[n0:] = out_
    ffn(a)
    router_loader(a)
    router(a)
    att_stubs(a, stubs)
    a.deferred2()
    stamp_out(a)
    a("L_exit:\ns_endpgm\nL_code_end:")
    body = a.text().replace("s_mov_b32 s43, 0\n    s_waitcnt lgkmcnt(0)", "s_mov_b32 s43, 0\n    s_movk_i32 s45, 0x4000\n    s_waitcnt lgkmcnt(0)")
    if OPT["al"]:
        body = align_fix(body, [("L_g_loop", "L_g_end"), ("L_g_q", "L_att_setup"), ("L_att_go", "L_att_fin"), ("L_op_loop", "L_op_end")])
    bad = check_hazards(body)
    tail = f""".section .rodata,"a"
.p2align 6
.amdhsa_kernel {NAME}_kernel
  .amdhsa_next_free_vgpr 168
  .amdhsa_next_free_sgpr 96
  .amdhsa_accum_offset 168
  .amdhsa_group_segment_fixed_size 0
  .amdhsa_kernarg_size 96
  .amdhsa_user_sgpr_count 2
  .amdhsa_user_sgpr_kernarg_segment_ptr 1
  .amdhsa_system_sgpr_workgroup_id_x 1
.end_amdhsa_kernel
"""
    open(out, "w").write(head + body + tail)
    print("written", out, "hazards:", len(bad))


if __name__ == "__main__":
    main(sys.argv[1])
```

```python
import sys, struct
from asmlib import Asm, vr, sr, check_hazards, align_fix

NAME = "gated_mix__sliding_block__moe_arch_mod__prompt"
def f32(x): return "0x%08x" % struct.unpack("<I", struct.pack("<f", x))[0]
LOG2E = 1.4426950408889634
QSCALE = (20 ** -0.5) * LOG2E

OPT = dict(stamp=0, dual=0, pre=0, xnt="", fnt="nt", rot=4, b11=0, wpf=0, rnt="", worot=2, fprio=3, cearly=1, aprio=2, tlb=0, hdel=5, dly=0, fwm=0, serp=1, xs="0_0", wsn=0, ws="0_2", fws="0_", qat2=2, nowo=0, xsc=0, epx=0, rowmap=1, qloc=1, qat=2, tlb0=0, wod=0, wack=1, qown=0, dbg=0, gprio=3, ones=1, gx=0, lord=0, wfl="", nl0=3, nla=5, npre=3, al=1, pf=1, xpf=0, swap=0, prio=1, osc="nt", ont="nt", ont2="nt", slp=0, wdl=2, ochk=1, kfirst=0, opw=0, bpos=2, bperm=0, otch=0, epi2=0, olf="sc1", forceimp=0, forcefb=0, probe="", pwg=109+512, stl=1, stw=0, nocand=0, pcyc=0, wmall=1, fwarm=1, p1loc=1, a2=1, yat=1, tmap=0, fskip=0, rfl=0, fdel=1, ksc='sc1', gate=8, ntry=2)
for _a in sys.argv[2:]:
    k, v = _a.split("=")
    OPT[k] = int(v) if v.lstrip("-").isdigit() else v

WS_L, WS_R = 0, 0x800000
WS_G, WS_CAND, WS_XID, WS_FL, WS_FP, WS_FO = 0x1000000, 0x1010000, 0x1020000, 0x1030000, 0x1040000, 0x1050000
WS_P1, WS_P2, WS_EP, WS_ST, WS_END = 0x1060000, 0x10E0000, 0x1120000, 0x1200000, 0x1300000
WS_FR = 0x1038000
WS_FW, WS_WP = 0x1048000, 0x1130000
XB = 240 * 4096
CS = 8192 + 64
L_K, L_V = 0, 3 * CS + 64
L_WO = 49664
L_ONES = L_WO + 102400 + 192
L_MISC = L_ONES + 5120 + 64
L_H, L_Y = L_MISC + 256, L_MISC + 512
LDS_BYTES = 163840
L_RW = 49152
L_FW = L_WO + 13 * 5120
L_XT = L_FW + 24576
L_WV = L_FW + 8192
M_PURE, M_HALO, M_TOP = L_MISC, L_MISC + 4, L_MISC + 16
O_WO, O_FD, O_ATT, O_Y, O_R, O_B2, O_C, O_W = 8, 12, 32, 36, 40, 44, 48, 52
assert L_V % 256 == 0 and L_ONES % 256 == 192 and L_XT + 10240 <= L_WO + 102400 and L_Y + 1920 <= LDS_BYTES
SPIN = 0x8000

WAVE, XCD, LOC, RBL, CT, TAG, PURE = 28, 29, 30, 31, 32, 60, 61
SX, SW, SS, SA, SB = 16, 20, 24, 52, 56


def srd(a, d, p, n):
    a(f"""s_mov_b32 s{d}, s{p}
    s_mov_b32 s{d+1}, s{p+1}
    s_mov_b32 s{d+2}, {n}
    s_mov_b32 s{d+3}, 0x20000""")


def stamp(a, i):
    if OPT["probe"]:
        if str(i) in OPT["probe"].split("_"):
            a(f"{'s_memtime' if OPT['pcyc'] else 's_memrealtime'} s[{62+2*i}:{63+2*i}]\ns_waitcnt lgkmcnt(0)")
        return
    if OPT["stamp"] == 3:
        if i == 0:
            a("s_memrealtime s[94:95]\ns_memtime s[62:63]")
        if i in (4, 8):
            a(f"s_memrealtime s[{62+2*i}:{63+2*i}]\ns_memtime s[{64+2*i}:{65+2*i}]")
        return
    if OPT["stamp"]:
        if i == 0:
            a("s_memrealtime s[94:95]")
            for j in range(1, 15):
                a(f"s_mov_b32 s{62+2*j}, 0")
        a(f"{'s_memtime' if OPT['stamp'] == 1 else 's_memrealtime'} s[{62+2*i}:{63+2*i}]\ns_waitcnt lgkmcnt(0)")


def finish(a, main=False):
    if OPT["stamp"] == 3 and not main:
        a("s_endpgm")
    elif OPT["stamp"]:
        a("s_branch L_stampout")
    else:
        a("s_endpgm")


def stamp_out(a):
    if OPT["stamp"]:
        n = 14
        a(f"""L_stampout:
        s_waitcnt vmcnt(0)
        {'s_memtime' if OPT['stamp'] != 2 else 's_memrealtime'} s[{62+2*n}:{63+2*n}]
        s_memrealtime s[92:93]
        s_waitcnt lgkmcnt(0)
        s_lshl_b32 s3, s2, 4
        s_add_u32 s3, s3, s{WAVE}
        s_lshl_b32 s3, s3, 7
        s_add_u32 s3, s3, {WS_ST}
        s_mov_b64 exec, 1
        v_mov_b32 v0, 0""")
        for i in (range(n + 1) if OPT["stamp"] != 3 else (0, 4, 5, 8, 9, 14)):
            a(f"v_mov_b32 v1, s{62+2*i}\nbuffer_store_dword v1, v0, s[24:27], s3 offen offset:{4*i}")
        for i in range(2, 10 if OPT["stamp"] != 3 else 0):
            a(f"v_readlane_b32 s4, v166, {i}\ns_nop 1\nv_mov_b32 v1, s4\nbuffer_store_dword v1, v0, s[24:27], s3 offen offset:{64+4*(i-2)}")
        a(f"v_mov_b32 v1, s{PURE}\nbuffer_store_dword v1, v0, s[24:27], s3 offen offset:116")
        a("v_mov_b32 v1, s94\nbuffer_store_dword v1, v0, s[24:27], s3 offen offset:120")
        a("v_mov_b32 v1, s92\nbuffer_store_dword v1, v0, s[24:27], s3 offen offset:124")
        a("s_endpgm")
        if OPT["stamp"] == 3:
            a(f"""L_stampall:
            s_memrealtime s[88:89]""")
            lds_wait(a, O_ATT, 8)
            a(f"""s_lshl_b32 s3, s2, 4
            s_add_u32 s3, s3, s{WAVE}
            s_lshl_b32 s3, s3, 7
            s_add_u32 s3, s3, {WS_ST}
            v_mov_b32 v2, 0""")
            for i in range(14):
                a(f"v_writelane_b32 v2, s{62+2*i}, {i}")
            a("""v_writelane_b32 v2, s94, 30
            v_lshlrev_b32 v3, 2, v1
            s_mov_b64 exec, 0xffffffff
            buffer_store_dword v2, v3, s[24:27], s3 offen
            s_endpgm""")


def wave_max_u32(a, v, sdst, row=False):
    for m in ("row_shr:1 row_mask:0xf bank_mask:0xf bound_ctrl:1", "row_shr:2 row_mask:0xf bank_mask:0xf bound_ctrl:1",
              "row_shr:4 row_mask:0xf bank_mask:0xf bound_ctrl:1", "row_shr:8 row_mask:0xf bank_mask:0xf bound_ctrl:1",
              "row_bcast:15 row_mask:0xa bank_mask:0xf", "row_bcast:31 row_mask:0xc bank_mask:0xf")[:4 if row else 6]:
        a(f"s_nop 1\nv_max_u32_dpp v{v}, v{v}, v{v} {m}")
    a(f"s_nop 0\nv_readlane_b32 s{sdst}, v{v}, 63")


def top2(a, k1, k2, t, s1, s2, sm, row=False):
    a(f"v_max_u32 v{t}, v{k1}, v{k2}")
    wave_max_u32(a, t, s1, row)
    a(f"""s_nop 1
    v_cmp_ne_u32 s[{sm}:{sm+1}], s{s1}, v{k1}
    s_nop 1
    v_cndmask_b32_e64 v{k1}, 0, v{k1}, s[{sm}:{sm+1}]
    v_cmp_ne_u32 s[{sm}:{sm+1}], s{s1}, v{k2}
    s_nop 1
    v_cndmask_b32_e64 v{k2}, 0, v{k2}, s[{sm}:{sm+1}]
    v_max_u32 v{t}, v{k1}, v{k2}""")
    wave_max_u32(a, t, s2, row)


def key_decode(a, sk, stok, sval, st):
    a(f"""s_and_b32 s{stok}, s{sk}, 0xffff
    s_sub_u32 s{stok}, 0xffff, s{stok}
    s_and_b32 s{stok}, s{stok}, 0x7ff
    s_ashr_i32 s{st}, s{sk}, 31
    s_not_b32 s{st}, s{st}
    s_or_b32 s{st}, s{st}, 0x80000000
    s_xor_b32 s{sval}, s{sk}, s{st}
    s_and_b32 s{sval}, s{sval}, 0xffff0000""")


def sigmoid(a, d, s):
    a(f"""v_mul_f32 v{d}, {f32(-LOG2E)}, {s}
    v_exp_f32 v{d}, v{d}
    s_nop 0
    v_add_f32 v{d}, 1.0, v{d}
    v_rcp_f32 v{d}, v{d}
    s_nop 0""")


def epoch_load(a):
    a(f"""s_add_u32 s14, s12, {WS_EP}
    s_addc_u32 s15, s13, 0
    s_load_dword s{TAG}, s[14:15], 0""")


def epoch_fin(a):
    a(f"s_waitcnt lgkmcnt(0)\ns_add_u32 s{TAG}, s{TAG}, 0x9e3779b9")


_uid = [0]
_site = [0]
def uid(p):
    _uid[0] += 1
    return f"L_{p}{_uid[0]}"


def poll(a, load, tagregs, mask=None, tmp=9, pre=False):
    lp, out = uid("poll"), uid("pout")
    a(f"s_mov_b32 s50, {SPIN}")
    if pre:
        a(f"s_branch {lp}p")
    a(f"{lp}:")
    a(load)
    if pre:
        a(f"{lp}p:")
    a(f"""s_sub_u32 s50, s50, 1
    s_cbranch_scc1 {out}
    s_waitcnt vmcnt(0)""")
    if len(tagregs) == 1:
        a(f"v_cmp_ne_u32 vcc, s{TAG}, v{tagregs[0]}")
    else:
        a(f"v_xor_b32 v{tmp}, s{TAG}, v{tagregs[0]}")
        for r in tagregs[1:]:
            a(f"v_bitop3_b32 v{tmp}, v{tmp}, v{r}, s{TAG} bitop3:0xf6")
        a(f"v_cmp_ne_u32 vcc, 0, v{tmp}")
    if mask:
        a(f"s_and_b64 vcc, vcc, {mask}")
    if OPT["dbg"]:
        _site[0] += 1
        print("site", _site[0], load.split("\n")[-1][:70])
        a(f"""s_cbranch_vccnz {lp}
        s_branch {out}x
        {out}:
        s_waitcnt vmcnt(0)
        s_lshl_b32 s50, s2, 4
        s_add_u32 s50, s50, {_site[0]}
        s_lshl_b32 s50, s50, 8
        s_add_u32 s50, s50, {WS_ST}
        v_lshlrev_b32 v164, 2, v1
        v_xor_b32 v165, s{TAG}, v{tagregs[0]}
        v_or_b32 v165, 0x80000000, v165
        buffer_store_dword v165, v164, s[24:27], s50 offen
        {out}x:
        s_waitcnt vmcnt(0)""")
        return
    a(f"s_cbranch_vccnz {lp}\n{out}:\ns_waitcnt vmcnt(0)")


def spoll(a, loads, pairs):
    lp, out = uid("sp"), uid("so")
    a(f"s_mov_b32 s50, {SPIN}\n{lp}:")
    a(loads)
    a(f"""s_waitcnt lgkmcnt(0)
    s_sub_u32 s50, s50, 1
    s_cbranch_scc1 {out}
    s_xor_b64 s[36:37], s[{pairs[0]}:{pairs[0]+1}], s[38:39]""")
    for p in pairs[1:]:
        a(f"""s_xor_b64 s[{p}:{p+1}], s[{p}:{p+1}], s[38:39]
        s_or_b64 s[36:37], s[36:37], s[{p}:{p+1}]""")
    a(f"s_cbranch_scc1 {lp}\n{out}:")


def lds_wait(a, off, val, vt=9, pre=False):
    lp, out = uid("lw"), uid("lo")
    a(f"s_mov_b32 s50, {SPIN*8}")
    if pre:
        a(f"s_branch {lp}p")
    if OPT["slp"] and not pre and off != O_B2:
        a(f"s_branch {lp}f\n{lp}:\ns_sleep {OPT['slp']}\n{lp}f:")
    else:
        a(f"{lp}:")
    a(f"""ds_read_b32 v{vt}, v30 offset:{off}""")
    if pre:
        a(f"{lp}p:")
    a(f"""s_sub_u32 s50, s50, 1
    s_cbranch_scc1 {out}
    s_waitcnt lgkmcnt(0)
    v_cmp_gt_u32 vcc, {val}, v{vt}
    s_cbranch_vccnz {lp}
    {out}:""")


def lds_add(a, off, vt=9):
    a(f"""v_mov_b32 v{vt}, 1
    s_mov_b64 exec, 1
    ds_add_u32 v30, v{vt} offset:{off}
    s_mov_b64 exec, -1""")


def flag_store(a, soff, local, vt=8):
    a(f"""v_mov_b32 v{vt}, s{TAG}
    v_mov_b32 v{vt+1}, 0
    s_mov_b64 exec, 1""")
    if local:
        l1, l2 = uid("fs"), uid("fe")
        a(f"""s_cmp_eq_u32 s{PURE}, 0
        s_cbranch_scc1 {l1}
        buffer_store_dword v{vt}, v{vt+1}, s[24:27], s{soff} offen
        s_branch {l2}
        {l1}:
        buffer_store_dword v{vt}, v{vt+1}, s[24:27], s{soff} offen sc1
        {l2}:""")
    else:
        a(f"buffer_store_dword v{vt}, v{vt+1}, s[24:27], s{soff} offen sc1")
    a("s_mov_b64 exec, -1")


def two_flavours(a, body):
    l1, l2 = uid("imp"), uid("ime")
    a(f"s_cmp_eq_u32 s{PURE}, 0\ns_cbranch_scc1 {l1}")
    body("")
    a(f"s_branch {l2}\n{l1}:")
    body("sc1")
    a(f"{l2}:")


def router_loader(a):
    a("""L_rld:
    s_load_dwordx2 s[8:9], s[0:1], 16
    s_add_u32 s41, s40, 98304
    s_branch L_rld_issue
    L_rld_loop:
    s_waitcnt vmcnt(12) lgkmcnt(0)
    s_barrier
    L_rld_issue:
    s_lshl_b32 s36, s33, 7
    s_add_u32 s36, s36, s34""")
    for n in range(4):
        a(f"""s_add_u32 m0, s40, {n*4096}
        s_add_u32 s38, s36, {n*40960}
        buffer_load_dwordx4 v10, s[16:19], s38 offen {OPT['rnt']} lds""")
    kc_next(a, 33)
    a("""s_add_u32 s40, s40, 16384
    s_cmp_eq_u32 s40, s41
    s_cselect_b32 s36, 98304, 0
    s_sub_u32 s40, s40, s36
    s_add_u32 s42, s42, 1
    s_cmp_lt_u32 s42, 4
    s_cbranch_scc1 L_rld_issue
    s_cmp_lt_u32 s42, 10
    s_cbranch_scc1 L_rld_loop""")
    srd(a, SS, 12, WS_END)
    srd(a, SW, 8, 819200)
    a(f"""s_add_u32 s{TAG}, s{TAG}, 0x9e3779b9
    v_mov_b32 v30, {M_PURE}""")
    for n in (12, 8, 4, 0):
        a(f"s_waitcnt vmcnt({n})\ns_barrier")
    a(f"""s_lshl_b32 s33, s{XCD}, 1
    s_add_u32 s33, s33, s{RBL}
    s_and_b32 s34, s{WAVE}, 3
    s_mul_i32 s36, s33, 51200
    s_mul_i32 s37, s34, 320
    s_add_u32 s36, s36, s37
    s_mul_i32 s35, s34, {42*320}
    s_add_u32 s35, s35, 65536
    v_mul_u32_u24 v5, 3277, v1
    v_lshrrev_b32 v5, 16, v5
    v_mul_u32_u24 v6, 20, v5
    v_sub_u32 v6, v1, v6
    v_mul_u32_u24 v5, 1280, v5
    v_lshl_add_u32 v11, v6, 4, v5
    v_bfe_u32 v7, v1, 2, 2
    v_and_b32 v8, 3, v1
    v_lshl_add_u32 v8, v8, 3, s35
    v_lshrrev_b32 v5, 1, v4
    v_mul_u32_u24 v5, 20, v5
    v_and_b32 v6, 1, v4
    v_lshl_add_u32 v5, v6, 2, v5
    v_add_u32 v5, v5, v7
    v_mul_u32_u24 v5, 320, v5
    v_add_u32 v12, v5, v8
    v_mul_u32_u24 v5, 320, v7
    v_lshl_add_u32 v5, v4, 5, v5
    v_add_u32 v5, v5, v8
    s_bitcmp1_b32 s33, 1
    s_cselect_b32 s37, 0, {20*320}
    s_add_u32 s38, s37, {16*320}
    s_sub_u32 s37, {36*320}, s37
    v_add_u32 v13, s38, v5
    v_add_u32 v14, s37, v5
    v_lshlrev_b32 v10, 4, v1
    v_and_b32 v5, 15, v1
    v_lshlrev_b32 v5, 4, v5""")
    for i in range(3):
        a(f"""v_add_u32 v6, {4*i}, v4
        v_cmp_lt_u32 s[44:45], 4, v6
        v_lshl_add_u32 v6, v6, 10, v5
        v_add_u32 v7, {102400-5120}, v6
        v_cndmask_b32_e64 v{15+i}, v6, v7, s[44:45]""")
    a(f"""s_mul_i32 s40, s34, 204800
    s_add_u32 s40, s40, {WS_WP}
    s_lshr_b32 s37, s33, 2
    s_add_u32 s37, s37, 16
    s_mul_i32 s41, s37, 5120
    s_add_u32 s41, s41, s40
    s_and_b32 s37, s33, 1
    s_lshl_b32 s37, s37, 9
    s_add_u32 s41, s41, s37
    s_and_b32 s37, s33, 2
    s_lshl_b32 s37, s37, 7
    s_add_u32 s41, s41, s37
    s_mul_i32 s37, s33, 5120
    s_add_u32 s40, s40, s37
    s_lshl_b32 s42, s33, 5
    s_add_u32 s42, s42, s34
    s_lshl_b32 s42, s42, 2
    s_add_u32 s42, s42, {WS_FW}""")
    lds_wait(a, O_C, 4)
    stamp(a, 2)
    a("s_mov_b32 exec_hi, 0x0fffffff\ns_mov_b32 m0, s35")
    for i in range(14):
        if i == 13:
            a("s_mov_b64 exec, 0xfffff")
        a(f"""s_add_u32 s37, s36, {i*3840}
        buffer_load_dwordx4 v11, s[20:23], s37 offen {OPT['fnt']} lds
        s_add_u32 m0, s35, {(i+1)*960}""")
    a("s_mov_b64 exec, -1\ns_waitcnt vmcnt(0)")
    stamp(a, 3)
    for t in range(10):
        a(f"""ds_read_b64_tr_b16 v[{32+4*t}:{33+4*t}], v12 offset:{t*32}
        ds_read_b64_tr_b16 v[{34+4*t}:{35+4*t}], v12 offset:{t*32+8*320}""")
        if t == 4:
            a("s_waitcnt lgkmcnt(0)")
    a("s_waitcnt lgkmcnt(4)")
    for i in range(3):
        a(f"""ds_read_b64_tr_b16 v[{72+4*i}:{73+4*i}], v13 offset:{i*128}
        ds_read_b64_tr_b16 v[{74+4*i}:{75+4*i}], v14 offset:{i*128}""")
    a("s_waitcnt lgkmcnt(0)")
    for t in range(10):
        a(f"""s_add_u32 s37, s40, {(t//5)*102400 + (t%5)*1024}
        buffer_store_dwordx4 {vr(32+4*t,4)}, v10, s[24:27], s37 offen sc1""")
    for i in range(3):
        if i == 2:
            a("s_mov_b32 exec_hi, 0")
        a(f"buffer_store_dwordx4 {vr(72+4*i,4)}, v{15+i}, s[24:27], s41 offen sc1")
    a(f"""s_mov_b64 exec, 1
    v_mov_b32 v5, s{TAG}
    s_waitcnt vmcnt(0)
    buffer_store_dword v5, off, s[24:27], s42 sc1
    s_mov_b64 exec, -1""")
    stamp(a, 4)
    a("s_branch L_att_setup")


def kc_init(a):
    def nib(o):
        v = sum(x << (4 * i) for i, x in enumerate(o))
        return v & 0xffffffff, v >> 32
    n0, n1, n2 = nib(range(10)), nib([1, 0, 3, 2, 5, 4, 7, 6, 9, 8]), nib([0, 2, 1, 4, 3, 6, 5, 8, 7, 9])
    a(f"s_mov_b32 s46, {n0[0]:#x}\ns_movk_i32 s47, {n0[1]:#x}")
    if OPT["swap"]:
        a(f"""s_and_b32 s36, s{LOC}, {3 if OPT["swap"] == 1 else 1}
        s_cmp_eq_u32 s36, 1
        s_cselect_b32 s46, {n1[0]:#x}, s46
        s_cselect_b32 s47, {n1[1]:#x}, s47
        s_cmp_eq_u32 s36, 3
        s_cselect_b32 s46, {n2[0]:#x}, s46
        s_cselect_b32 s47, {n2[1]:#x}, s47""")
    tab = {0: [0]*8, 1: range(8), 2: [7, 0, 1, 2, 3, 4, 5, 6], 3: [8, 0, 1, 2, 3, 5, 6, 7], 4: [7, 6, 5, 4, 3, 2, 1, 0], 5: [8, 0, 0, 2, 2, 4, 6, 6], 6: [8, 0, 2, 4, 6, 0, 2, 4]}[OPT["rot"]]
    a(f"""s_lshl_b32 s36, s{XCD}, 2
    s_lshr_b32 s48, {nib(tab)[0]:#x}, s36
    s_and_b32 s48, s48, 15""")
    n3 = nib([2, 3, 4, 5, 6, 7, 8, 9, 0, 1])
    a(f"""s_cmp_eq_u32 s{CT}, 15
    s_cselect_b32 s46, {n3[0]:#x}, s46
    s_cselect_b32 s47, {n3[1]:#x}, s47""")


def kc_next(a, d):
    a(f"""s_and_b32 s{d}, s46, 15
    s_lshr_b64 s[46:47], s[46:47], 4""")
    if OPT["rot"]:
        a(f"""s_add_u32 s{d}, s{d}, s48
        s_sub_u32 s36, s{d}, 10
        s_cselect_b32 s{d}, s{d}, s36""")


def entry(a):
    a(f""".globl {NAME}_kernel
    .p2align 8
    .type {NAME}_kernel,@function
    {NAME}_kernel:""")
    a("""s_cmp_ge_u32 s2, 256
    s_cbranch_scc1 L_exit""")
    stamp(a, 0)
    a(f"""s_load_dwordx4 s[4:7], s[0:1], 0
    s_load_dwordx2 s[12:13], s[0:1], 88
    v_lshrrev_b32 v2, 6, v0
    v_and_b32 v1, 63, v0
    v_readfirstlane_b32 s{WAVE}, v2
    s_and_b32 s{XCD}, s2, 7
    {"" if not OPT["bperm"] else "s_lshl_b32 s36, s%d, 2" % XCD}
    {"" if not OPT["bperm"] else "s_lshr_b32 s%d, %#x, s36" % (XCD, {1: 0x23014567, 2: 0x54763210, 3: 0x65074321}[OPT["bperm"]])}
    {"" if not OPT["bperm"] else "s_and_b32 s%d, s%d, 7" % (XCD, XCD)}
    s_lshr_b32 s{LOC}, s2, 3
    s_and_b32 s{RBL}, s{LOC}, 1
    s_lshr_b32 s{CT}, s{LOC}, 1
    v_lshrrev_b32 v4, 4, v1""")
    if OPT["pf"]:
        a(f"""s_cmp_lg_u32 s{WAVE}, 0
        s_cbranch_scc1 L_nopf
        s_getpc_b64 s[36:37]
        L_pc:
        s_and_b32 s38, s{LOC}, 3
        s_mul_i32 s38, s38, 5760
        v_min_u32 v5, 44, v1
        v_lshl_add_u32 v5, v5, 7, s38
        v_min_u32 v5, L_code_end-L_pc-4, v5
        global_load_dword v167, v5, s[36:37]
        L_nopf:""")
    a(f"""s_cmp_lt_u32 s{WAVE}, 4
    s_cbranch_scc1 L_compute
    s_cmp_ge_u32 s{WAVE}, 8
    s_cbranch_scc1 L_help""")


def loader(a):
    a(f"""v_and_b32 v2, 3, v2
    v_lshrrev_b32 v3, 3, v1
    v_lshl_add_u32 v3, v2, 3, v3
    v_mul_u32_u24 v3, 1280, v3
    v_lshl_add_u32 v5, v2, 2, v4
    v_xor_b32 v6, v5, v1
    v_and_b32 v6, 7, v6
    v_lshl_add_u32 v10, v6, 4, v3
    v_mul_u32_u24 v5, 3840, v5
    v_lshrrev_b32 v6, 1, v2
    v_lshl_add_u32 v6, v6, 2, v4
    v_lshlrev_b32 v6, 1, v6
    v_xor_b32 v6, v6, v1
    v_and_b32 v6, 15, v6
    v_lshl_add_u32 v11, v6, 4, v5
    s_lshl_b32 s34, s{XCD}, 1
    s_add_u32 s34, s34, s{RBL}
    s_mul_i32 s34, s34, 128*1280
    s_lshl_b32 s35, s{CT}, 8
    s_and_b32 s40, s{WAVE}, 3
    s_lshl_b32 s40, s40, 10
    s_add_u32 s41, s40, 49152
    s_mov_b32 s42, 0
    s_mov_b32 s18, 2621440
    s_mov_b32 s19, 0x20000
    s_mov_b32 s22, 2457600
    s_mov_b32 s23, 0x20000""")
    kc_init(a)
    kc_next(a, 33)
    if OPT["xpf"]:
        a(f"""v_min_u32 v12, 19, v1
        v_lshlrev_b32 v12, 7, v12
        s_lshl_b32 s44, s{CT}, 2
        s_add_u32 s44, s44, s{WAVE}
        s_mul_i32 s44, s44, 2560
        s_add_u32 s44, s44, s34
        s_sub_u32 s44, s44, {4*2560}""")
    a("""s_waitcnt lgkmcnt(0)
    s_mov_b32 s16, s4
    s_mov_b32 s17, s5
    s_mov_b32 s20, s6
    s_mov_b32 s21, s7""")
    if OPT["xpf"]:
        a("buffer_load_dword v167, v12, s[16:19], s44 offen")
    epoch_load(a)
    stamp(a, 1)
    if OPT["dly"]:
        a(f"s_bitcmp1_b32 s{CT}, 0\ns_cbranch_scc0 L_nd\ns_sleep {OPT['dly']}\nL_nd:")
    a(f"""s_cmp_eq_u32 s{CT}, 15
    s_cbranch_scc1 L_rld
    s_branch L_ld_issue
    L_ld_loop:
    s_waitcnt vmcnt(8) lgkmcnt(0)
    s_barrier""")
    if OPT["stamp"] in (1, 2):
        a("""s_memrealtime s[44:45]
        s_waitcnt lgkmcnt(0)
        s_mov_b32 m0, s42
        s_nop 0
        v_writelane_b32 v166, s44, m0""")
    a(f"""L_ld_issue:
    s_lshl_b32 s36, s33, 7
    s_add_u32 s36, s36, s34
    {"s_and_b32 s33, s33, 1" if OPT["gx"] == 1 else ""}
    s_mul_i32 s37, s33, 245760
    s_add_u32 s37, s37, s35""")
    lx = [f"""s_add_u32 m0, s40, {n*4096}
        s_add_u32 s38, s36, {n*40960}
        buffer_load_dwordx4 v10, s[16:19], s38 offen {OPT['xnt']} lds""" for n in range(4)]
    lw = [f"""s_add_u32 m0, s40, {L_RW+n*4096}
        s_add_u32 s39, s37, {n*61440}
        buffer_load_dwordx4 v11, s[20:23], s39 offen {OPT['wfl']} lds""" for n in range(4)]
    for l in {0: [x for p in zip(lx, lw) for x in p], 1: lw + lx, 2: lx + lw}[OPT["lord"]]:
        a(l)
    kc_next(a, 33)
    a("""s_add_u32 s40, s40, 16384
    s_cmp_eq_u32 s40, s41
    s_cselect_b32 s36, 49152, 0
    s_sub_u32 s40, s40, s36
    s_add_u32 s42, s42, 1
    s_cmp_lt_u32 s42, 2
    s_cbranch_scc1 L_ld_issue
    s_cmp_lt_u32 s42, 10
    s_cbranch_scc1 L_ld_loop""")
    srd(a, SS, 12, WS_END)
    a(f"s_add_u32 s{TAG}, s{TAG}, 0x9e3779b9")
    pre = 0
    a(f"""s_waitcnt vmcnt({8+pre})
    s_barrier""")
    stamp(a, 2)
    a(f"""s_waitcnt vmcnt({pre})
    s_barrier""")
    stamp(a, 3)
    a("s_branch L_att_setup")


ACC, F0, F1 = 32, 96, 128
def compute(a):
    a("L_compute:")
    if (OPT["qloc"] and OPT["qat"] == -1) or OPT["tlb0"]:
        a(f"""s_mul_i32 s36, s{XCD}, {XB}
        s_mov_b32 s26, {WS_END}
        s_mov_b32 s27, 0x20000""")
        if OPT["qloc"] and OPT["qat"] == -1:
            a(f"""s_lshl_b32 s37, s{LOC}, 2
            s_add_u32 s37, s37, s{WAVE}
            s_mul_i32 s37, s37, 2560
            s_add_u32 s37, s37, s36
            v_min_u32 v5, 19, v1
            v_lshlrev_b32 v5, 7, v5""")
        if OPT["tlb0"]:
            a(f"""s_sub_u32 s38, s36, {XB}
            s_max_i32 s38, s38, 0
            v_min_u32 v6, 2, v1
            v_mul_u32_u24 v6, {XB-64}, v6""")
        a("""s_waitcnt lgkmcnt(0)
        s_mov_b32 s24, s12
        s_mov_b32 s25, s13""")
        if OPT["qloc"] and OPT["qat"] == -1:
            a("buffer_load_dword v167, v5, s[24:27], s37 offen sc1")
        if OPT["tlb0"]:
            a(f"""s_cmp_lg_u32 s{WAVE}, 1
            s_cbranch_scc1 L_not0
            buffer_load_dword v167, v6, s[24:27], s38 offen sc1
            L_not0:""")
    a(f"""v_and_b32 v3, 15, v1
    s_and_b32 s36, s{WAVE}, 1          ; wc
    s_lshr_b32 s37, s{WAVE}, 1         ; wt
    s_lshl_b32 s38, s37, 13
    s_lshl_b32 s39, s{WAVE}, 12
    s_cmp_eq_u32 s{CT}, 15
    s_cselect_b32 s38, s39, s38
    v_lshrrev_b32 v5, 1, v3
    v_xor_b32 v5, v5, v4
    v_lshlrev_b32 v5, 4, v5
    v_lshl_add_u32 v12, v3, 7, v5
    v_add_u32 v12, s38, v12
    v_xor_b32 v13, 64, v12
    v_bfe_u32 v5, v1, 2, 2             ; r
    v_lshl_add_u32 v6, v4, 3, v5
    v_lshlrev_b32 v6, 8, v6
    v_and_b32 v7, 1, v4
    v_lshl_add_u32 v5, v7, 2, v5
    v_lshlrev_b32 v5, 1, v5            ; f(row)
    v_and_b32 v7, 3, v1
    s_lshl_b32 s39, s36, 3
    v_add_u32 v7, s39, v7
    v_xor_b32 v5, v5, v7
    v_lshl_add_u32 v6, v5, 4, v6
    v_bfe_u32 v5, v1, 1, 1
    v_lshl_add_u32 v6, v5, 3, v6
    v_add_u32 v14, {L_RW}, v6
    v_xor_b32 v15, 8, v14
    v_xor_b32 v16, 64, v14
    v_xor_b32 v17, 0x48, v14
    v_lshlrev_b32 v18, 4, v3
    v_lshl_add_u32 v18, v4, 12, v18
    v_mov_b32 v19, {M_PURE}
    s_mul_i32 s34, s{XCD}, {XB}
    s_lshl_b32 s39, s{CT}, 16
    s_add_u32 s34, s34, s39
    s_lshl_b32 s39, s36, 15
    s_add_u32 s34, s34, s39
    s_lshl_b32 s39, s{RBL}, 11
    s_add_u32 s34, s34, s39
    s_lshl_b32 s39, s37, 10
    s_add_u32 s34, s34, s39
    s_add_u32 s35, s34, 16384
    s_mov_b32 s42, 0
    s_mov_b32 s43, 0
    s_waitcnt lgkmcnt(0)""")
    epoch_load(a)
    srd(a, SS, 12, WS_END)
    for i in range(64):
        a(f"v_mov_b32 v{ACC+i}, 0")
    epoch_fin(a)
    stamp(a, 1)
    a(f"s_cmp_eq_u32 s{CT}, 15\ns_cbranch_scc1 L_router")

    def reads(ks, F):
        r = []
        def A(j):
            r.append(f"ds_read_b64_tr_b16 v[{F+4*j}:{F+4*j+1}], v{14+j} offset:{ks*8192}")
            r.append(f"ds_read_b64_tr_b16 v[{F+4*j+2}:{F+4*j+3}], v{14+j} offset:{ks*8192+1024}")
        A(0)
        for t in range(4):
            r.append(f"ds_read_b128 {vr(F+16+4*t,4)}, v{12+ks} offset:{t*2048}")
        A(1); A(2); A(3)
        return r

    def phase(F, rd, bar, extra):
        a("s_waitcnt lgkmcnt(6)")
        n = 0
        bp = OPT["bpos"] if bar else 1
        cnt = {1: [1]*12, 2: [2, 2, 2, 2, 1, 1, 1, 1], 3: [3, 3, 3, 3]}[bp]
        k = 0
        for j in range(4):
            if j == 1:
                a("s_waitcnt lgkmcnt(0)")
            if j == bp and bar:
                a("s_barrier")
            for t in (range(4) if not (OPT["serp"] and j & 1) else range(3, -1, -1)):
                d = ACC + (j * 4 + t) * 4
                a(f"v_mfma_f32_16x16x32_bf16 {vr(d,4)}, {vr(F+4*j,4)}, {vr(F+16+4*t,4)}, {vr(d,4)}")
                if j == 0:
                    a(extra[t])
                elif j >= bp:
                    for _ in range(cnt[k]):
                        a(rd[n]); n += 1
                    k += 1

    a("s_barrier")
    stamp(a, 2)
    for l in reads(0, F0):
        a(l)
    a("L_g_loop:")
    phase(F0, reads(1, F1), False, ["""s_add_u32 s43, s43, 1
        s_cmp_eq_u32 s43, 3""", "s_cselect_b32 s44, -32768, 16384" if False else """s_cselect_b32 s44, 0xffff8000, s45
        """, "s_cselect_b32 s43, 0, s43\ns_add_u32 s42, s42, 1", ""])
    phase(F1, reads(0, F0), True, ["v_add_u32 v12, s44, v12\nv_add_u32 v13, s44, v13", "v_add_u32 v14, s44, v14\nv_add_u32 v15, s44, v15",
                                   "v_add_u32 v16, s44, v16\nv_add_u32 v17, s44, v17", "s_cmp_lt_u32 s42, 9"])
    a("s_cbranch_scc1 L_g_loop")
    def mm(F, j, t):
        d = ACC + (j * 4 + t) * 4
        return f"v_mfma_f32_16x16x32_bf16 {vr(d,4)}, {vr(F+4*j,4)}, {vr(F+16+4*t,4)}, {vr(d,4)}"
    r1 = reads(1, F1)
    r1 = ["ds_read_b32 v20, v19"] + r1[0:3] + r1[6:8] + r1[3:6] + r1[8:12]
    a("s_waitcnt lgkmcnt(4)")
    for k in range(8):
        a(mm(F0, k // 4, k % 4 if k < 4 else 7 - k))
        for l in r1[2*k:2*k+2]:
            a(l)
    a(f"""s_mov_b32 s38, {f32(QSCALE)}
    s_mov_b32 s39, s38
    s_waitcnt lgkmcnt(4)
    v_readfirstlane_b32 s{PURE}, v20
    s_cmp_lt_u32 s{CT}, 5
    s_cbranch_scc1 L_g_q""")

    def tail(scale, sc):
        def out(p, t):
            d, e = ACC + (2 * p * 4 + t) * 4, ACC + ((2 * p + 1) * 4 + t) * 4
            o = []
            if scale:
                o += [f"v_pk_mul_f32 {vr(x,2)}, {vr(x,2)}, s[38:39]" for x in (d, d + 2, e, e + 2)]
            o += [f"v_cvt_pk_bf16_f32 v{d}, v{d}, v{d+1}", f"v_cvt_pk_bf16_f32 v{d+1}, v{d+2}, v{d+3}",
                  f"v_cvt_pk_bf16_f32 v{d+2}, v{e}, v{e+1}", f"v_cvt_pk_bf16_f32 v{d+3}, v{e+2}, v{e+3}",
                  f"buffer_store_dwordx4 {vr(d,4)}, v18, s[24:27], s{34+p} offen offset:{t*256} {sc}"]
            return o
        seq = []
        for t in range(4):
            seq += [(mm(F1, 0, t), None), (mm(F1, 1, t), (0, t)), (mm(F0, 2, t), None), (mm(F0, 3, t), None)]
        for t in range(4):
            seq += [(mm(F1, 2, t), None), (mm(F1, 3, t), (1, t))]
        pend, n = [], 0
        per = 3 if scale else 2
        for k, (m, g) in enumerate(seq):
            if k == 16:
                a("s_waitcnt lgkmcnt(0)"); n += 1
            a(m); n += 1
            if g:
                pend += [[n + 8, x] for x in out(*g)]
            if pend and pend[0][0] > n:
                w = min(2, pend[0][0] - n)
                a(f"s_nop {w-1}"); n += w
                continue
            for _ in range(per):
                if pend and pend[0][0] <= n:
                    a(pend.pop(0)[1]); n += 1
        while pend:
            if pend[0][0] > n:
                a(f"s_nop {pend[0][0]-n-1}"); n = pend[0][0]
            a(pend.pop(0)[1]); n += 1
    tail(False, "sc1")
    a("L_g_end:")
    a.deferred = lambda: (a(f"L_g_q:\ns_cmp_eq_u32 s{PURE}, 0\ns_cbranch_scc1 L_q_far"), tail(True, ""), a("s_branch L_g_end"))
    a.deferred2 = lambda: (a("L_q_far:"), tail(True, "sc1"), a("s_branch L_g_end"))
    stamp(a, 3)
    a(f"""L_pubflag:
    s_lshl_b32 s36, s{XCD}, 4
    s_add_u32 s36, s36, s{CT}
    s_lshl_b32 s36, s36, 1
    s_and_b32 s37, s{WAVE}, 1
    s_add_u32 s36, s36, s37
    s_lshl_b32 s40, s36, 7
    s_lshl_b32 s36, s36, 4
    s_lshl_b32 s37, s{RBL}, 3
    s_and_b32 s38, s{WAVE}, 2
    s_lshl_b32 s38, s38, 1
    s_add_u32 s37, s37, s38
    s_add_u32 s36, s36, s37
    s_add_u32 s56, s36, {WS_FL}
    s_add_u32 s40, s40, s37
    s_add_u32 s57, s40, {WS_FR}
    s_mov_b32 s58, 1
    s_branch L_att_setup1""")
    a.deferred()


def router(a):
    a("L_router:")
    kc_init(a)
    kc_next(a, 33)
    a(f"""v_and_b32 v5, 1, v1
    v_lshlrev_b32 v5, 11, v5
    v_lshl_add_u32 v14, v4, 4, v5
    v_add_u32 v14, {L_WV}, v14
    L_r_loop:
    s_barrier
    s_lshl_b32 s36, s33, 7
    v_add_u32 v15, s36, v14""")
    for ks in range(2):
        a(f"""ds_read_b128 {vr(F0+12*ks,4)}, v15 offset:{ks*64}
        ds_read_b128 {vr(F0+12*ks+4,4)}, v{12+ks}
        ds_read_b128 {vr(F0+12*ks+8,4)}, v{12+ks} offset:2048""")
    kc_next(a, 33)
    a("""s_add_u32 s43, s43, 1
    s_cmp_eq_u32 s43, 6
    s_cselect_b32 s44, 0xfffec000, s45
    s_cselect_b32 s43, 0, s43
    v_add_u32 v12, s44, v12
    v_add_u32 v13, s44, v13
    s_waitcnt lgkmcnt(0)""")
    for ks in range(2):
        for t in range(2):
            a(f"v_mfma_f32_16x16x32_bf16 {vr(ACC+4*t,4)}, {vr(F0+12*ks,4)}, {vr(F0+12*ks+4+4*t,4)}, {vr(ACC+4*t,4)}")
    a(f"""s_add_u32 s42, s42, 1
    s_cmp_lt_u32 s42, 10
    s_cbranch_scc1 L_r_loop
    s_nop 1
    s_lshl_b32 s36, s{XCD}, 8
    s_lshl_b32 s37, s{RBL}, 7
    s_add_u32 s36, s36, s37
    s_lshl_b32 s37, s{WAVE}, 5
    s_add_u32 s36, s36, s37
    s_mov_b32 s37, {WS_G}""")
    stamp(a, 3)
    for t in range(2):
        a(f"""v_add3_u32 v{14+t}, s36, v3, {16*t}
        v_cvt_pk_bf16_f32 v{26+t}, v{ACC+4*t}, v{ACC+4*t+1}
        v_lshlrev_b32 v{21+t}, 16, v{26+t}
        v_ashrrev_i32 v24, 31, v{21+t}
        v_or_b32 v24, 0x80000000, v24
        v_xor_b32 v{21+t}, v{21+t}, v24
        v_and_b32 v{21+t}, 0xffff0000, v{21+t}
        v_sub_u32 v24, 0xffff, v{14+t}
        v_or_b32 v{21+t}, v{21+t}, v24""")
    top2(a, 21, 22, 25, 46, 47, 48, True)
    a(f"""s_lshr_b32 s36, s36, 1
    s_add_u32 s36, s36, {WS_CAND}
    v_mov_b32 v28, s46
    v_mov_b32 v29, s{TAG}
    v_mov_b32 v30, s47
    v_mov_b32 v31, s{TAG}
    s_mov_b64 exec, 1
    buffer_store_dwordx4 v[28:31], off, s[24:27], s36 sc1
    v_mov_b32 v9, 1
    ds_add_u32 v19, v9 offset:{O_C}
    s_mov_b64 exec, 0xffff""")
    for t in range(2):
        a(f"v_and_b32 v23, 0xffff0000, v{26+t}")
        sigmoid(a, 23, "v23")
        a(f"""v_cvt_pk_bf16_f32 v23, v23, v23
        v_and_b32 v{26+t}, 0xffff0000, v23
        v_lshlrev_b32 v24, 2, v{14+t}
        buffer_store_dword v{26+t}, v24, s[24:27], s37 offen sc1""")
    a(f"""s_mov_b64 exec, 1
    s_lshl_b32 s36, s{XCD}, 5
    s_add_u32 s36, s36, s{LOC}
    s_lshl_b32 s36, s36, 2
    s_add_u32 s36, s36, s{WAVE}
    s_lshl_b32 s36, s36, 2
    s_add_u32 s36, s36, {WS_FL}
    v_mov_b32 v9, 1
    s_waitcnt vmcnt(0)
    buffer_store_dword v29, off, s[24:27], s36 sc1
    ds_add_u32 v19, v9 offset:{O_R}
    s_mov_b64 exec, -1""")
    stamp(a, 4)
    a(f"v_mov_b32 v30, {M_PURE}")
    lds_wait(a, O_FD, 1)
    a("s_branch L_att_setup")


Q, QH, KH, K, V, P, S0, S1, O, M = 32, 36, 38, 40, 44, 52, 64, 80, 96, 112
KA, KHA, VA, QA, QHA, G, G2, XA, XR = 12, 13, 14, 15, 16, 17, 18, 19, 20
TT, NT, HI_ = 33, 34, 35
SQ, SQH = 46, 47


WF, OF, NOF, PA = 32, 92, 9, 128
OL, OH, WL, WH, OUT, LIN, FLG, YA, TOK, VTAG = 148, 149, 150, 152, 156, 159, 160, 161, 162, 163


def outproj_setup(a):
    a(f"""v_and_b32 v164, 15, v1
    v_lshrrev_b32 v165, 4, v1
    v_lshrrev_b32 v5, 1, v165
    v_add_u32 v6, v165, v5
    v_lshlrev_b32 v7, 4, v164
    v_lshl_add_u32 v{OL}, v6, 12, v7
    v_and_b32 v6, 1, v165
    v_lshl_add_u32 v8, v6, 1, v5
    v_mul_u32_u24 v9, {5*4096}, v8
    v_add_u32 v{OH}, v9, v7
    v_add_u32 v{WL}, {L_WO}, v10
    v_add_u32 v{WL+1}, {L_WO+51200}, v10""")
    for t in range(5):
        for j in range(2):
            a(f"""v_lshlrev_b32 v{PA+4*t+2*j}, 16, v{XR+2*t+j}
            v_and_b32 v{PA+4*t+2*j+1}, 0xffff0000, v{XR+2*t+j}""")
    for n in range(3):
        a(f"""v_add_u32 v5, {64*n}, v1
        v_mul_u32_u24 v6, 6554, v5
        v_lshrrev_b32 v6, 16, v6
        v_mul_u32_u24 v7, 10, v6
        v_sub_u32 v7, v5, v7
        v_mul_u32_u24 v6, 1280, v6
        v_lshl_add_u32 v{OUT+n}, v7, 4, v6""")
    a(f"""v_lshl_add_u32 v{OUT+2}, v4, 28, v{OUT+2}
    s_mul_i32 s36, s{WAVE}, 2560
    v_add_u32 v{LIN}, s36, v10
    v_lshlrev_b32 v{FLG}, 2, v3
    v_lshl_add_u32 v{YA}, v165, 4, v30
    v_add_u32 v{TOK}, s51, v164
    s_mul_i32 s56, s51, 1280
    s_lshr_b32 s37, s{LOC}, 2
    s_mul_i32 s37, s37, 160
    s_add_u32 s56, s56, s37
    s_lshr_b32 s57, s51, 5
    s_lshl_b32 s57, s57, 7
    s_add_u32 s57, s57, {WS_FO}
    s_mul_i32 s58, s{XCD}, {XB}
    s_and_b32 s38, s51, 255
    s_lshl_b32 s38, s38, 4
    s_add_u32 s58, s58, s38            ; O pieces
    s_add_u32 s59, s58, 8192
    s_waitcnt vmcnt(5)
    v_sub_f32 v{G2}, 1.0, v{G2}""")
    for i in range(20):
        a(f"v_mul_f32 v{PA+i}, v{G2}, v{PA+i}")


def diag_mask(a, old):
    a(f"""v_lshlrev_b32 v6, 2, v4
    v_sub_u32 v6, v3, v6
    v_mov_b32 v7, 0xff800000""")
    for r in range(0, 16, 2):
        k0, k1 = (r >> 2) * 8 + (r & 3), (r >> 2) * 8 + (r & 3) + 1
        a(f"""v_cmp_le_i32 s[44:45], {k0}, v6
        v_cmp_le_i32 s[48:49], {k1}, v6
        s_nop 0
        v_cndmask_b32_e64 v{S0+r}, v7, 0, s[44:45]
        v_cndmask_b32_e64 v{S0+r+1}, v7, 0, s[48:49]""")
        if old:
            a(f"""v_cndmask_b32_e64 v{M+r}, 0, v7, s[44:45]
            v_cndmask_b32_e64 v{M+r+1}, 0, v7, s[48:49]""")


def attention(a):
    SRC = WS_L
    a("L_att_setup:\ns_mov_b32 s58, 0\nL_att_setup1:\ns_load_dwordx2 s[52:53], s[0:1], 72\ns_mov_b32 s54, 2621440\ns_mov_b32 s55, 0x20000")
    a(f"""s_and_b32 s31, s{LOC}, 1
    s_mul_i32 s40, s{LOC}, 5
    s_lshr_b32 s40, s40, 1            ; c0
    s_sub_u32 s{TT}, 11, s{WAVE}
    s_cmp_lt_u32 s{WAVE}, 4
    s_cselect_b32 s{TT}, s{WAVE}, s{TT}
    {"s_sub_u32 s%d, 7, s%d" % (TT, TT) if OPT["tmap"] == 1 else ""}
    {"s_xor_b32 s%d, s%d, 4" % (TT, WAVE) if OPT["tmap"] == 2 else ""}
    s_add_u32 s36, s{TT}, 1
    s_cmp_eq_u32 s{XCD}, 0
    s_cselect_b32 s{NT}, s36, 9
    s_cselect_b32 s36, 4, 17
    s_movk_i32 s37, 0xff
    s_cselect_b32 s37, 0x3ff, s37
    s_lshl_b32 s36, s36, s{TT}
    s_and_b32 s{HI_}, s36, s37
    s_lshr_b32 s36, s{LOC}, 2
    s_xor_b32 s36, s36, s31
    s_andn2_b32 s41, 1, s36
    s_lshl_b32 s41, s41, 3
    s_xor_b32 s42, s31, 1
    s_lshl_b32 s42, s42, 1
    s_mul_i32 s36, s{XCD}, 240
    s_add_u32 s36, s36, s40
    s_lshl_b32 s43, s36, 12
    s_lshl_b32 s37, s{TT}, 9
    s_add_u32 s36, s43, s37
    s_lshl_b32 s38, s31, 12
    s_add_u32 s{SQ}, s36, s38
    s_lshl_b32 s38, s42, 12
    s_add_u32 s38, s38, s41
    s_add_u32 s{SQH}, s36, s38
    v_lshlrev_b32 v10, 4, v1
    v_and_b32 v3, 31, v1
    v_lshrrev_b32 v4, 5, v1
    v_lshlrev_b32 v5, 4, v3
    v_lshl_add_u32 v{QA}, v4, 12, v5
    v_lshl_add_u32 v{QHA}, v4, 28, v5
    s_mul_i32 s38, s31, {CS}
    s_add_u32 s38, s38, s37
    v_mul_u32_u24 v6, {CS}, v4
    v_add3_u32 v{KA}, v6, v5, s38
    s_mul_i32 s38, s42, {CS}
    s_add_u32 s38, s38, s41
    s_add_u32 s38, s38, s37
    v_add_u32 v6, s38, v5
    v_mov_b32 v9, {L_ONES}
    v_cmp_eq_u32 s[44:45], 0, v4
    v_bfe_u32 v7, v1, 4, 1
    v_and_b32 v8, 3, v1
    v_add_u32 v11, 8, v9
    v_cndmask_b32_e64 v{KHA}, v11, v6, s[44:45]
    v_lshl_add_u32 v6, v7, 2, v8      ; gamma
    v_add_u32 v7, s31, v6
    v_lshrrev_b32 v8, 1, v7
    v_add_u32 v11, s40, v8
    v_lshrrev_b32 v11, 1, v11
    v_xor_b32 v7, v7, v11
    v_and_b32 v7, 1, v7
    v_mul_u32_u24 v8, {CS}, v8
    v_lshl_add_u32 v8, v7, 3, v8
    s_add_u32 s38, s37, {L_V}
    v_add_u32 v8, s38, v8
    v_cmp_gt_u32 s[44:45], 5, v6
    v_bfe_u32 v7, v1, 2, 2
    v_lshl_add_u32 v7, v4, 2, v7
    v_cndmask_b32_e64 v8, v9, v8, s[44:45]
    v_lshl_add_u32 v{VA}, v7, 4, v8""")
    diag_mask(a, True)
    a(f"""s_lshr_b32 s36, s{WAVE}, 2
    s_mul_i32 s37, s36, {L_V}
    s_add_u32 s36, s36, 1
    s_mul_i32 s36, s36, {80*4096}
    s_add_u32 s36, s36, s43
    s_and_b32 s38, s{WAVE}, 3
    s_mul_i32 s38, s38, 3
    v_and_b32 v5, 15, v1
    v_mul_u32_u24 v6, 160, v5
    v_lshrrev_b32 v7, 4, v1
    v_lshl_add_u32 v6, v7, 3, v6
    s_and_b32 s39, s{WAVE}, 3
    s_mul_i32 s44, s39, 2560
    v_add_u32 v{XA}, s44, v6
    s_and_b32 s44, s{LOC}, 3
    s_lshl_b32 s44, s44, {5 if OPT["rowmap"] else 6}
    s_lshl_b32 s45, s{XCD}, 8
    s_add_u32 s48, s44, s45
    s_and_b32 s44, s39, 1
    s_lshl_b32 s44, s44, 4
    s_add_u32 s51, s48, s44
    s_and_b32 s44, s39, 2
    s_lshl_b32 s44, s44, {6 if OPT["rowmap"] else 4}
    s_add_u32 s51, s51, s44
    s_lshl_b32 s39, s{TT}, 5
    s_add_u32 s39, s39, s45
    v_add_lshl_u32 v6, s39, v3, 2
    v_add_lshl_u32 v7, s51, v5, 2
    s_mov_b32 s39, {WS_G}
    v_add_u32 v11, {L_XT}, v{XA}
    v_mov_b32 v30, {M_PURE}
    v_mov_b32 v2, 1
    v_mov_b32 v{VTAG}, s{TAG}
    s_mov_b32 s40, 0""")
    for t in range(5):
        a(f"ds_read_b64 {vr(XR+2*t,2)}, v11 offset:{t*32}")
    for i in range(3):
        if OPT["kfirst"]:
            a(f"""s_add_u32 s44, s{WAVE}, {8*i}
            s_cmp_ge_u32 s44, 12
            s_cselect_b32 s37, {L_V}, 0
            s_cselect_b32 s36, {80*4096}, 0
            s_cselect_b32 s45, 12, 0
            s_add_u32 s36, s36, {80*4096}
            s_add_u32 s36, s36, s43
            s_sub_u32 s44, s44, s45""")
        else:
            a(f"s_add_u32 s44, s38, {i}")
        a(f"""s_lshr_b32 s45, s44, 2
        s_mul_i32 s45, s45, {CS-4096}
        s_lshl_b32 s44, s44, 10
        s_add_u32 s45, s45, s44
        s_add_u32 s45, s45, s37
        s_add_u32 s{4+2*i}, s45, 4096
        s_add_u32 s{5+2*i}, s44, s36""")
    a(f"""s_mov_b32 m0, s4
    s_cmp_eq_u32 s58, 0
    s_cbranch_scc1 L_nopub
    s_mov_b64 exec, 1
    s_waitcnt vmcnt(0)""")
    stamp(a, 4)
    two_flavours(a, lambda sc: a(f"buffer_store_dword v{VTAG}, off, s[24:27], s56 {sc}"))
    if not OPT["rfl"]:
        a(f"""s_cmp_lt_u32 s{CT}, 5
        s_cbranch_scc1 L_norf
        buffer_store_dword v{VTAG}, off, s[24:27], s57 sc1
        L_norf:""")
    a(f"""ds_add_u32 v30, v2 offset:{O_R}
    s_mov_b64 exec, -1
    L_nopub:
    s_waitcnt lgkmcnt(0)
    s_barrier""")
    stamp(a, 5)
    if OPT["kfirst"]:
        a(f"""buffer_load_dwordx4 v10, s[24:27], s5 offen sc1 lds
        s_mov_b32 m0, s6
        buffer_load_dword v{G2}, v7, s[24:27], s39 offen sc1
        buffer_load_dwordx4 {vr(Q,4)}, v{QA}, s[24:27], s{SQ} offen sc1
        buffer_load_dwordx2 {vr(QH,2)}, v{QHA}, s[24:27], s{SQH} offen sc1
        buffer_load_dwordx4 v10, s[24:27], s7 offen sc1 lds
        s_mov_b32 m0, s8
        buffer_load_dword v{G}, v6, s[24:27], s39 offen sc1
        buffer_load_dwordx4 v10, s[24:27], s9 offen sc1 lds""")
    else:
      a(f"""buffer_load_dwordx4 v10, s[24:27], s5 offen sc1 lds
    s_mov_b32 m0, s6
    buffer_load_dword v{G2}, v7, s[24:27], s39 offen sc1
    buffer_load_dwordx4 v10, s[24:27], s7 offen sc1 lds
    s_mov_b32 m0, s8
    buffer_load_dwordx4 {vr(Q,4)}, v{QA}, s[24:27], s{SQ} offen sc1
    buffer_load_dwordx4 v10, s[24:27], s9 offen sc1 lds
    buffer_load_dwordx2 {vr(QH,2)}, v{QHA}, s[24:27], s{SQH} offen sc1
    buffer_load_dword v{G}, v6, s[24:27], s39 offen sc1""")
    if OPT["opw"]:
        for r in (OL, OH, OUT, OUT + 1, OUT + 2, FLG):
            a(f"v_mov_b32 v{r}, 0")
        a(f"s_cmp_ge_u32 s{WAVE}, 4\ns_cbranch_scc1 L_noopset")
    outproj_setup(a)
    a("L_noopset:")
    if OPT["kfirst"] == 2:
        a(f"""s_waitcnt vmcnt(3)
        s_cmp_ge_u32 s{WAVE}, 4
        s_cbranch_scc1 L_kf
        s_waitcnt vmcnt(2)
        L_kf:""")
    else:
        a("s_waitcnt vmcnt(0)")
    a("ds_read_b32 v31, v30")
    lds_add(a, O_B2)
    lds_wait(a, O_B2, 8)
    if OPT["aprio"]:
        a(f"s_setprio {OPT['aprio']}")
    stamp(a, 6)
    off = lambda i: (8 - i) * 512
    rdK = lambda i: f"ds_read_b128 {vr(K,4)}, v{KA} offset:{off(i)}"
    rdKH = lambda i: f"ds_read_b64 {vr(KH,2)}, v{KHA} offset:{off(i)}"
    rdV = lambda i, h: f"ds_read_b64_tr_b16 {vr(V+4*h,2)}, v{VA} offset:{off(i)+256*h}\nds_read_b64_tr_b16 {vr(V+4*h+2,2)}, v{VA} offset:{off(i)+256*h+128}"
    stubs = []
    def halo_check(tval):
        stubs.append(tval)
        a(f"s_bitcmp1_b32 s{HI_}, {tval}\ns_cbranch_scc1 L_hw{tval}\nL_hr{tval}:")
    a("L_att_go:")
    a(rdK(0)); a(rdKH(0)); a(rdV(0, 0))
    halo_check(0)
    a(f"""s_waitcnt lgkmcnt(2)
    v_mfma_f32_32x32x16_bf16 {vr(S0,16)}, {vr(K,4)}, {vr(Q,4)}, {vr(S0,16)}""")
    a(rdK(1))
    a(f"v_mfma_f32_32x32x8_bf16 {vr(S0,16)}, {vr(KH,2)}, {vr(QH,2)}, {vr(S0,16)}")
    a(rdKH(1))
    a(f"""v_readfirstlane_b32 s{PURE}, v31
    s_nop 4
    s_waitcnt lgkmcnt(0)""")

    def softq(S, q):
        for j in range(4):
            a(f"v_exp_f32 v{S+4*q+j}, v{S+4*q+j}")
        for j in range(2):
            a(f"v_cvt_pk_bf16_f32 v{P+2*q+j}, v{S+4*q+2*j}, v{S+4*q+2*j+1}")

    for i in range(9):
        S, SN = (S0, S1) if i % 2 == 0 else (S1, S0)
        halo_check(i + 1)
        if i > 0:
            a("s_waitcnt lgkmcnt(2)")
        if i < 8:
            c = vr(M, 16) if i + 1 == 8 else "0"
            a(f"v_mfma_f32_32x32x16_bf16 {vr(SN,16)}, {vr(K,4)}, {vr(Q,4)}, {c}")
        nread = 0
        if i < 7:
            a(rdK(i + 2)); nread += 1
        softq(S, 0)
        if i > 0:
            a(f"v_mfma_f32_32x32x16_bf16 {vr(O,16)}, {vr(V+4,4)}, {vr(P+4,4)}, {vr(O,16)}")
        a(rdV(i, 1)); nread += 2
        softq(S, 1)
        if i < 8:
            a(f"v_mfma_f32_32x32x8_bf16 {vr(SN,16)}, {vr(KH,2)}, {vr(QH,2)}, {vr(SN,16)}")
        if i < 7:
            a(rdKH(i + 2)); nread += 1
        softq(S, 2)
        a(f"s_waitcnt lgkmcnt({nread})")
        a(f"v_mfma_f32_32x32x16_bf16 {vr(O,16)}, {vr(V,4)}, {vr(P,4)}, {'0' if i == 0 else vr(O,16)}")
        if i < 8:
            a(rdV(i + 1, 0))
        softq(S, 3)
    a(f"""L_att_fin:
    s_waitcnt lgkmcnt(0)
    s_nop 0
    v_mfma_f32_32x32x16_bf16 {vr(O,16)}, {vr(V+4,4)}, {vr(P+4,4)}, {vr(O,16)}
    s_lshl_b32 s36, s{XCD}, 3
    s_add_u32 s36, s36, s{TT}
    s_lshl_b32 s36, s36, 5
    s_add_u32 s36, s36, s{LOC}
    s_lshl_b32 s36, s36, 2
    s_add_u32 s36, s36, {WS_FO}
    s_mov_b32 s37, {f32(2.0**-64)}
    s_mov_b32 s38, {f32(2.0**64 if not OPT['forcefb'] else 2.0**12)}
    s_nop 3
    v_rcp_f32 v8, v{O+12}
    v_cmp_nle_f32 s[44:45], s37, v{O+12}
    v_cmp_nge_f32 vcc, s38, v{O+12}
    v_mul_f32 v8, v8, v{G}
    s_or_b64 vcc, vcc, s[44:45]""")
    if OPT["ochk"]:
        a(f"v_pk_mul_f32 v[6:7], {vr(O,2)}, 0")
        for r in range(1, 6):
            a(f"v_pk_fma_f32 v[6:7], {vr(O+2*r,2)}, 0, v[6:7]")
        a("v_cmp_u_f32 s[44:45], v6, v7\ns_or_b64 vcc, vcc, s[44:45]")
    a(f"""s_cbranch_vccnz L_fallback
    L_att_ok:""")
    for r in range(6):
        a(f"v_pk_mul_f32 {vr(O+2*r,2)}, {vr(O+2*r,2)}, v[8:9] op_sel_hi:[1,0]")
    for r in range(6):
        a(f"v_cvt_pk_bf16_f32 v{P+r}, v{O+2*r}, v{O+2*r+1}")
    def pub(sc):
        a(f"""buffer_store_dwordx4 {vr(P,4)}, v{QA}, s[24:27], s{SQ} offen {sc or OPT["ont"]}
        buffer_store_dwordx2 {vr(P+4,2)}, v{QHA}, s[24:27], s{SQH} offen {sc or OPT["ont2"]}""")
        stamp(a, 7)
        a(f"""s_mov_b64 exec, 1
        ds_add_u32 v30, v2 offset:{O_ATT}
        ds_read_b64 v[62:63], v30 offset:16
        s_waitcnt vmcnt(0)
        buffer_store_dword v{VTAG}, off, s[24:27], s36 {sc}
        s_mov_b64 exec, -1""")
    two_flavours(a, pub)
    stamp(a, 8)
    return stubs


def att_stubs(a, stubs):
    for t in stubs:
        a(f"L_hw{t}:")
        if t >= 8:
            a("s_branch L_att_fin")
            continue
        if t >= 2:
            a(f"s_cmp_eq_u32 s{XCD}, 0\ns_cbranch_scc1 L_att_fin")
        a(f"""s_cmp_eq_u32 s{TT}, {t}
        s_cselect_b32 s36, 1, 2
        s_mov_b32 s50, {SPIN*8}
        L_hs{t}:
        {"s_sleep %d" % OPT["slp"] if OPT["slp"] else ""}
        ds_read_b32 v9, v30 offset:4
        s_sub_u32 s50, s50, 1
        s_cbranch_scc1 L_hr{t}
        s_waitcnt lgkmcnt(0)
        v_cmp_gt_u32 vcc, s36, v9
        s_cbranch_vccnz L_hs{t}
        s_branch L_hr{t}""")
    a(f"""L_fallback:
    s_cmp_lg_u32 s40, 0
    s_cbranch_scc1 L_att_ok
    s_mov_b32 s40, 1""")
    diag_mask(a, False)
    a(f"""v_mov_b32 v8, 0xff800000
    v_add_u32 v5, 4096, v{KA}
    v_add_u32 v6, 4096, v{KHA}
    s_mov_b32 s36, 0
    L_fb_loop:
    ds_read_b128 {vr(K,4)}, v5
    ds_read_b64 {vr(KH,2)}, v6
    v_subrev_u32 v5, 512, v5
    v_subrev_u32 v6, 512, v6
    s_waitcnt lgkmcnt(0)
    s_cmp_eq_u32 s36, 0
    s_cbranch_scc1 L_fb_a
    s_cmp_eq_u32 s36, 8
    s_cbranch_scc1 L_fb_b
    v_mfma_f32_32x32x16_bf16 {vr(S1,16)}, {vr(K,4)}, {vr(Q,4)}, 0
    s_branch L_fb_c
    L_fb_a:
    v_mfma_f32_32x32x16_bf16 {vr(S1,16)}, {vr(K,4)}, {vr(Q,4)}, {vr(S0,16)}
    s_branch L_fb_c
    L_fb_b:
    v_mfma_f32_32x32x16_bf16 {vr(S1,16)}, {vr(K,4)}, {vr(Q,4)}, {vr(M,16)}
    L_fb_c:
    v_mfma_f32_32x32x8_bf16 {vr(S1,16)}, {vr(KH,2)}, {vr(QH,2)}, {vr(S1,16)}
    s_nop 11""")
    for r in range(0, 16, 2):
        a(f"v_max3_f32 v8, v8, v{S1+r}, v{S1+r+1}")
    a(f"""s_add_u32 s36, s36, 1
    s_cmp_lt_u32 s36, s{NT}
    s_cbranch_scc1 L_fb_loop
    v_mov_b32 v9, v8
    s_nop 1
    v_permlane32_swap_b32 v8, v9
    v_max_f32 v8, v8, v9
    v_sub_f32 v8, 0, v8
    v_and_b32 v5, 0xffff0000, v8
    v_sub_f32 v8, v8, v5
    v_and_b32 v6, 0xffff0000, v8
    v_sub_f32 v8, v8, v6
    v_lshrrev_b32 v5, 16, v5
    v_or_b32 v5, v5, v6
    v_lshrrev_b32 v8, 16, v8
    v_cmp_eq_u32 s[44:45], 0, v4
    s_nop 1
    v_cndmask_b32_e64 v{QH}, v5, v{QH}, s[44:45]
    v_cndmask_b32_e64 v{QH+1}, v8, v{QH+1}, s[44:45]
    s_branch L_att_go""")


def outproj(a):
    a(f"""s_cmp_lt_u32 s{WAVE}, 4
    s_cbranch_scc1 L_op_main
    s_waitcnt lgkmcnt(0)""")
    finish(a)
    pl = f"buffer_load_dword v6, v{FLG}, s[24:27], s57 offen sc1"
    a(f"""L_op_main:
    {"s_setprio 0" if OPT["aprio"] else ""}
    {"" if OPT["gate"] else pl}""")
    lds_wait(a, O_WO, 1)
    stamp(a, 9)

    def wread(s, t):
        f = WF + 20 * (s % 3) + 4 * t
        a(f"ds_read_b128 {vr(f,4)}, v{WL+s//10} offset:{(s%10)*5120+t*1024}")

    def oload(s):
        r = OF + 4 * (s % NOF)
        if s < 16:
            a(f"buffer_load_dwordx4 {vr(r,4)}, v{OL}, s[24:27], s58 offen {OPT['olf'].replace('_', ' ')}\ns_add_u32 s58, s58, {5*4096}")
        else:
            a(f"buffer_load_dwordx4 {vr(r,4)}, v{OH}, s[24:27], s59 offen {OPT['olf'].replace('_', ' ')}\ns_add_u32 s59, s59, {20*4096}")
    a(f"""s_mov_b32 s50, {SPIN*8}
    L_tv:
    v_readfirstlane_b32 s42, v62
    v_readfirstlane_b32 s43, v63
    s_cmp_lg_u32 s42, 0
    s_cbranch_scc1 L_to
    ds_read_b64 v[62:63], v30 offset:16
    s_sub_u32 s50, s50, 1
    s_waitcnt lgkmcnt(0)
    s_cbranch_scc0 L_tv
    L_to:
    s_and_b32 s42, s42, 0xffff""")
    npre = OPT["npre"]
    for s in range(npre):
        for t in range(5):
            wread(s, t)
    a(f"""v_cmp_eq_u32 s[44:45], s43, v{TOK}
    v_cmp_eq_u32 s[48:49], s42, v{TOK}""")
    if OPT["gate"]:
        lds_wait(a, O_ATT, OPT["gate"])
    poll(a, pl, [6], pre=not OPT["gate"])
    stamp(a, 10)
    NL0 = OPT["nl0"]
    assert NL0 <= 3
    for s in range(NL0):
        oload(s)
    for s in range(npre, 3):
        for t in range(5):
            wread(s, t)
    a(f"""s_or_b64 s[48:49], s[44:45], s[48:49]
    s_cbranch_scc0 L_op_loop
    v_mov_b32 v7, 320
    v_cndmask_b32_e64 v7, 0, v7, s[44:45]
    v_add_u32 v7, v7, v{YA}
    s_mov_b32 s50, {SPIN*8}
    s_waitcnt lgkmcnt(0)
    L_yw:
    ds_read_b32 v9, v30 offset:{O_Y}""")
    for t in range(5):
        a(f"ds_read_b128 {vr(104+4*t,4)}, v7 offset:{L_Y-L_MISC+t*64}")
    a(f"""s_sub_u32 s50, s50, 1
    s_waitcnt lgkmcnt(0)
    s_cbranch_scc1 L_op_loop
    v_cmp_ne_u32 vcc, 1, v9
    s_cbranch_vccnz L_yw
    s_mov_b64 exec, s[48:49]""")
    for i in range(20):
        a(f"v_fmac_f32 v{PA+i}, v{G2}, v{104+i}")
    a("s_mov_b64 exec, -1\nL_op_loop:")
    issued = NL0
    for s in range(20):
        a(f"s_waitcnt vmcnt({issued-1-s}) lgkmcnt({10 if s < 18 else (6 if s == 18 else 1) - (OPT['gate'] == 8)})")
        for t in range(5):
            a(f"v_mfma_f32_16x16x32_bf16 {vr(PA+4*t,4)}, {vr(WF+20*(s%3)+4*t,4)}, {vr(OF+4*(s%NOF),4)}, {vr(PA+4*t,4)}")
            if s == 19 and OPT["epi2"] and t < 4:
                a("s_nop 0")
            if s < 17:
                wread(s + 3, t)
            if t in (0, 2) and issued < min(20, s + 1 + OPT["nla"]):
                oload(issued); issued += 1
            if s == 17 and t == 0 and OPT["gate"] != 8:
                a(f"ds_read_b32 v9, v30 offset:{O_ATT}")
    a("L_op_end:")
    stamp(a, 11)
    if OPT["gate"] != 8:
        lds_wait(a, O_ATT, 8, pre=True)
    elif not OPT["epi2"]:
        a("s_nop 3")
    for t in range(5):
        a(f"""v_cvt_pk_bf16_f32 v{WF+2*t}, v{PA+4*t}, v{PA+4*t+1}
        v_cvt_pk_bf16_f32 v{WF+2*t+1}, v{PA+4*t+2}, v{PA+4*t+3}
        ds_write_b64 v{XA}, {vr(WF+2*t,2)} offset:{t*32}""")
    for n in range(3):
        a(f"ds_read_b128 {vr(OF+16+4*n,4)}, v{LIN} offset:{n*1024}")
    for n in range(3):
        a(f"s_waitcnt lgkmcnt({2-n})\nbuffer_store_dwordx4 {vr(OF+16+4*n,4)}, v{OUT+n}, s[52:55], s56 offen {OPT['osc'].replace('_', ' ')}")
    stamp(a, 12)
    if OPT["probe"]:
        pa, pb = [int(x) for x in OPT["probe"].split("_")]
        a(f"""s_sub_u32 s36, s{62+2*pb}, s{62+2*pa}
        {'s_lshr_b32 s36, s36, 1' if OPT['pcyc'] else 's_lshl_b32 s36, s36, 3'}
        s_min_u32 s36, s36, 20000
        s_lshl_b32 s37, s{WAVE}, 8
        s_add_u32 s37, s37, s2
        s_cmp_lg_u32 s37, {OPT["pwg"]}
        s_cselect_b32 s36, 0, s36
        s_memrealtime s[38:39]
        s_waitcnt lgkmcnt(0)
        s_add_u32 s36, s36, s38
        L_probe:
        s_sleep 2
        s_memrealtime s[38:39]
        s_waitcnt lgkmcnt(0)
        s_sub_u32 s37, s38, s36
        s_cmp_lt_i32 s37, 0
        s_cbranch_scc1 L_probe""")
    finish(a, True)


def wo_offsets(a):
    for n in range(5):
        a(f"""v_add_u32 v5, {64*n}, v1
        v_mul_u32_u24 v6, 6554, v5
        v_lshrrev_b32 v6, 16, v6
        v_mul_u32_u24 v8, 10, v6
        v_sub_u32 v8, v5, v8
        v_mul_u32_u24 v6, 1280, v6
        v_lshl_add_u32 v{WOV+n}, v8, 4, v6""")


WOV = 160
def wo_groups(a, n0, n1):
    lp = uid("wo")
    a(f"""s_mov_b32 m0, {L_WO+n0*4096}
    s_add_u32 s41, s43, {n0*4096}
    s_movk_i32 s44, 0x1000
    {lp}:""")
    for j in range(4):
        a(f"buffer_load_dwordx4 v10, s[24:27], s41 offen offset:{j*1024} sc1 lds")
    a(f"""s_add_u32 m0, m0, s44
    s_add_u32 s41, s41, s44
    s_cmp_lt_u32 m0, {L_WO+n1*4096}
    s_cbranch_scc1 {lp}""")


def purity(a):
    a(f"""v_cmp_ne_u32 vcc, s{TAG}, v12
    v_cmp_ne_u32 s[44:45], s35, v13
    s_or_b64 vcc, vcc, s[44:45]
    s_cselect_b32 s36, 0, {0 if OPT['forceimp'] else 1}
    v_mov_b32 v5, s36
    ds_write_b32 v30, v5
    s_waitcnt lgkmcnt(0)""")


def helper1(a):
    a(f"""L_help:
    s_cmp_eq_u32 s{WAVE}, 9
    s_cbranch_scc1 L_ffn
    s_load_dwordx2 s[8:9], s[0:1], 32
    s_load_dwordx2 s[10:11], s[0:1], 64
    v_lshlrev_b32 v10, 4, v1""")
    a(f"""v_mov_b32 v16, {"0x3f80" if OPT["ones"] else "0x3f803f80"}
    v_mov_b32 v17, {"0" if OPT["ones"] else "0x3f803f80"}
    v_mov_b32 v18, 0x3f803f80
    v_mov_b32 v19, 0x3f80
    v_add_u32 v5, {L_ONES}, v10""")
    for i in range(5):
        a(f"ds_write_b128 v5, v[16:19] offset:{i*1024}")
    a(f"""v_mov_b32 v30, {M_PURE}
    v_mov_b32 v6, 0
    v_lshl_add_u32 v7, v1, 2, v30
    ds_write_b32 v7, v6""")
    if OPT["prio"]:
        a("s_setprio 3")
    wo_offsets(a)
    a("s_waitcnt lgkmcnt(0)")
    epoch_load(a)
    srd(a, SX, 4, 2621440)
    srd(a, SS, 12, WS_END)
    srd(a, SA, 8, 1280)
    srd(a, SB, 10, 1280)
    a(f"""s_cmp_lg_u32 s{CT}, 15
    s_cbranch_scc1 L_nowv
    s_mov_b32 m0, {L_WV}
    s_nop 0
    buffer_load_dwordx4 v10, s[52:55], 0 offen lds
    buffer_load_dwordx4 v10, s[52:55], 0 offen offset:1024 lds
    s_mov_b32 m0, {L_WV+2048}
    s_nop 0
    buffer_load_dwordx4 v10, s[56:59], 0 offen lds
    buffer_load_dwordx4 v10, s[56:59], 0 offen offset:1024 lds
    L_nowv:
    s_getreg_b32 s35, hwreg(HW_REG_XCC_ID, 0, 4)
    s_lshr_b32 s34, s{LOC}, 2
    s_mul_i32 s34, s34, 160
    s_mul_i32 s33, s{LOC}, 5
    s_lshr_b32 s33, s33, 1             ; c0
    v_bfe_u32 v5, v1, 2, 1
    v_lshl_add_u32 v6, v5, 1, s33
    v_lshrrev_b32 v6, 3, v6
    v_bfe_u32 v7, v1, 3, 2             ; section (3 = router/gate)
    v_cmp_eq_u32 s[44:45], 3, v7
    v_and_b32 v8, 3, v1
    v_lshlrev_b32 v8, 2, v8
    v_cndmask_b32_e64 v5, v6, v5, s[44:45]
    v_mad_u32_u24 v5, v7, 10, v5
    v_lshl_add_u32 v11, v5, 4, v8
    v_and_b32 v7, 1, v7
    v_mad_u32_u24 v5, v7, 10, v6
    v_add_u32 v5, 10, v5
    v_lshl_add_u32 v15, v5, 7, v8
    v_and_b32 v14, 31, v1
    v_lshlrev_b32 v14, 3, v14
    s_lshl_b32 s42, s{XCD}, 8
    s_add_u32 s42, s42, {WS_XID}""")
    epoch_fin(a)
    stamp(a, 1)
    a(f"""s_waitcnt vmcnt(0)
    s_barrier
    s_lshl_b32 s36, s{LOC}, 3
    s_add_u32 s36, s36, s42
    v_mov_b32 v8, s{TAG}
    v_mov_b32 v9, s35
    v_mov_b32 v5, 0
    s_mov_b64 exec, 1
    buffer_store_dwordx2 v[8:9], v5, s[24:27], s36 offen {'sc1' if OPT['xsc'] else ''}
    s_mov_b64 exec, -1""")
    def qtouch(part):
        if OPT["qown"]:
            l = uid("nq")
            a(f"""s_cmp_ge_u32 s{CT}, 5
            s_cbranch_scc1 {l}
            s_mul_i32 s36, s{XCD}, {XB}
            s_lshl_b32 s37, s{LOC}, 15
            s_add_u32 s36, s36, s37
            s_add_u32 s36, s36, {part*16384}
            s_add_u32 s37, s36, 8192
            v_lshlrev_b32 v5, 7, v1
            buffer_load_dword v167, v5, s[24:27], s36 offen sc1
            buffer_load_dword v167, v5, s[24:27], s37 offen sc1""")
            if part:
                a(f"""s_mul_i32 s36, s{XCD}, 10
                s_add_u32 s36, s36, s{LOC}
                s_mul_i32 s36, s36, 3072
                s_add_u32 s36, s36, {WS_P1}
                s_mov_b64 exec, 0xffffff
                buffer_load_dword v167, v5, s[24:27], s36 offen sc1
                s_mov_b64 exec, -1""")
            a(f"{l}:")
            return
        a(f"""s_mul_i32 s36, s{XCD}, {XB}
        s_mul_i32 s37, s{LOC}, {86*128}
        s_min_u32 s37, s37, {(2560-86)*128}
        s_add_u32 s36, s36, s37
        s_add_u32 s36, s36, {part*43*128}
        v_min_u32 v5, 42, v1
        v_lshlrev_b32 v5, 7, v5
        buffer_load_dword v167, v5, s[24:27], s36 offen sc1""")
        if part:
            a(f"""s_mul_i32 s36, s{XCD}, 30
            s_add_u32 s36, s36, s{LOC}
            s_lshl_b32 s36, s36, 10
            s_add_u32 s36, s36, {WS_P1}
            s_mov_b64 exec, 0xff
            buffer_load_dword v167, v5, s[24:27], s36 offen sc1
            s_mov_b64 exec, -1""")
    a(f"""s_and_b32 s38, s{LOC}, 3
    s_lshl_b32 s38, s38, 5
    s_lshl_b32 s39, s{XCD}, 8
    s_add_u32 s38, s38, s39
    s_mul_i32 s38, s38, 1280
    s_add_u32 s38, s38, s34
    s_add_u32 s39, s38, {128*1280}""")
    side = {i: [] for i in range(10)}
    def spread(items, spec):
        a0, a1 = [int(x) for x in spec.split("_")]
        n = a1 - a0 + 1
        for k, it in enumerate(items):
            side[a0 + k * n // len(items)].append(it)
    spread([f"""s_mov_b32 m0, {L_XT+n*1024}
        s_nop 0
        buffer_load_dwordx4 v{WOV+n%5}, s[16:19], s{38+n//5} offen lds""" for n in range(10)], OPT["xs"])
    a(f"""s_cmp_lg_u32 s{CT}, 15
    s_cbranch_scc1 L_h_g""")
    if OPT["fwarm"]:
        a(f"""s_lshl_b32 s36, s{XCD}, 10
        s_add_u32 s36, s36, {WS_FO}
        s_lshl_b32 s37, s{XCD}, 9
        s_add_u32 s37, s37, {WS_FL}
        v_and_b32 v5, 7, v1
        v_lshlrev_b32 v5, 7, v5
        v_lshrrev_b32 v6, 1, v5
        s_mov_b64 exec, 0xff
        buffer_load_dword v167, v5, s[24:27], s36 offen sc1
        buffer_load_dword v167, v6, s[24:27], s37 offen sc1
        s_mov_b64 exec, -1
        buffer_load_dword v167, v14, s[24:27], s42 offen sc1""")
    for i in range(9):
        a("s_barrier")
    lds_wait(a, O_R, 4)
    for i in range(7):
        for it in side[i]:
            a(it)
    a("""buffer_load_dwordx2 v[12:13], v14, s[24:27], s42 offen sc1
    s_waitcnt vmcnt(0)""")
    lds_add(a, O_FD)
    a("s_branch L_h_p\nL_h_g:")
    for i in range(7):
        if OPT["qat"] == i:
            qtouch(0)
        if OPT["qat2"] == i:
            qtouch(1)
        for it in side[i]:
            a(it)
        if i < 6:
            a("s_barrier")
    a(f"""buffer_load_dwordx2 v[12:13], v14, s[24:27], s42 offen sc1
    s_barrier
    s_barrier
    L_h_p:
    s_waitcnt vmcnt(0)""")
    purity(a)
    for it in side[8]:
        a(it)
    a(f"""s_cmp_eq_u32 s{CT}, 15
    s_cbranch_scc1 L_h_q
    s_barrier
    L_h_q:""")
    for it in side[9]:
        a(it)
    lds_wait(a, O_R, 4)
    a(f"""s_lshl_b32 s36, s{XCD}, 9
    s_add_u32 s36, s36, {WS_FL}""")
    stamp(a, 2)
    poll(a, "buffer_load_dword v12, v11, s[24:27], s36 offen sc1", [12])
    stamp(a, 4)
    a(f"""s_lshl_b32 s36, s{XCD}, 12
    s_add_u32 s36, s36, {WS_FR-4096}""")
    if OPT["rfl"]:
        a(f"""s_lshl_b32 s37, s{CT}, 8
        s_lshl_b32 s38, s{RBL}, 3
        s_add_u32 s37, s37, s38
        s_add_u32 s37, s37, s36
        s_add_u32 s37, s37, 4096
        v_lshlrev_b32 v5, 7, v1
        v_mov_b32 v8, s{TAG}
        v_mov_b32 v9, s{TAG}
        s_mov_b64 exec, 3
        s_barrier
        buffer_store_dwordx2 v[8:9], v5, s[24:27], s37 offen sc1
        s_mov_b64 exec, -1""")
        if OPT["rfl"] == 1:
            lds_wait(a, O_B2, OPT["fdel"])
    else:
        a("s_barrier")
    if OPT["rfl"] != 2:
        a("buffer_load_dword v12, v15, s[24:27], s36 offen sc1")
    fw = "buffer_load_dword v12, v16, s[24:27], s45 offen sc1"
    a(f"""s_lshr_b32 s43, s{LOC}, 2
    s_mul_i32 s43, s43, 102400
    s_add_u32 s43, s43, {WS_WP}
    s_mov_b32 s45, {WS_FW}
    v_lshrrev_b32 v5, 2, v1
    v_and_b32 v6, 3, v1
    v_lshlrev_b32 v6, 2, v6
    v_lshl_add_u32 v16, v5, 7, v6
    v_mov_b32 v17, 1
    v_mov_b32 v18, 2
    s_cmp_eq_u32 s{XCD}, 0
    s_cbranch_scc1 L_nofr""")
    if OPT["rfl"] == 2:
        a(f"""s_add_u32 s40, s12, s36
        s_addc_u32 s41, s13, 0
        s_lshr_b32 s37, s33, 3
        s_lshl_b32 s37, s37, 7
        s_add_u32 s46, s40, s37
        s_addc_u32 s47, s41, 0
        s_add_u32 s37, s33, 2
        s_lshr_b32 s37, s37, 3
        s_lshl_b32 s37, s37, 7
        s_add_u32 s48, s40, s37
        s_addc_u32 s49, s41, 0
        s_mov_b32 s38, s{TAG}
        s_mov_b32 s39, s{TAG}
        s_mov_b32 s50, {OPT["ntry"]}
        s_waitcnt vmcnt(0)
        L_sfr:
        s_load_dwordx4 s[4:7], s[46:47], 1280 glc
        s_load_dwordx4 s[8:11], s[48:49], 1280 glc
        s_load_dwordx4 s[52:55], s[46:47], 2560 glc
        s_load_dwordx4 s[56:59], s[48:49], 2560 glc
        s_waitcnt lgkmcnt(0)
        s_xor_b64 s[40:41], s[4:5], s[38:39]""")
        for p in (6, 8, 10, 52, 54, 56, 58):
            a(f"s_xor_b64 s[{p}:{p+1}], s[{p}:{p+1}], s[38:39]\ns_or_b64 s[40:41], s[40:41], s[{p}:{p+1}]")
        a("""s_cbranch_scc0 L_nofr
        s_sub_u32 s50, s50, 1
        s_cmp_lg_u32 s50, 0
        s_cbranch_scc1 L_sfr""")
    poll(a, "buffer_load_dword v12, v15, s[24:27], s36 offen sc1", [12], pre=OPT["rfl"] != 2)
    a("L_nofr:")
    lds_wait(a, O_B2, OPT["hdel"])
    stamp(a, 7)
    a(f"""s_cmp_eq_u32 s{XCD}, 0
    s_cbranch_scc1 L_wlate
    s_mul_i32 s36, s{XCD}, 240
    s_add_u32 s36, s36, s33
    s_lshl_b32 s36, s36, 12
    s_add_u32 s36, s36, {(WS_L - XB + 80*4096) & 0xffffffff}""")
    for q in (3, 2, 1, 0):
        if q == 1:
            a(fw)
        for sec in range(2):
            for j in range(3):
                a(f"""s_mov_b32 m0, {sec*L_V + j*CS + q*1024}
                s_add_u32 s37, s36, {sec*80*4096 + j*4096 + q*1024}
                buffer_load_dwordx4 v10, s[24:27], s37 offen sc1 lds""")
    a(f"""s_waitcnt vmcnt(13)
    ds_write_b32 v30, v17 offset:4
    s_waitcnt vmcnt(12)
    v_cmp_ne_u32 vcc, s{TAG}, v12
    s_cbranch_vccz L_wok
    L_wlate:
    s_waitcnt vmcnt(0)
    ds_write_b32 v30, v18 offset:4 """)
    poll(a, fw, [12])
    a("L_wok:")
    stamp(a, 6)
    wo_groups(a, 0, 3)
    a("""s_waitcnt vmcnt(12)
    ds_write_b32 v30, v18 offset:4""")
    stamp(a, 8)
    if OPT["wdl"]:
        wo_groups(a, 3, 20)
        lds_wait(a, O_W, 1)
        wo_groups(a, 20, 25)
    else:
        wo_groups(a, 3, 25)
    a("s_waitcnt vmcnt(0)")
    lds_add(a, O_WO)
    a("s_waitcnt lgkmcnt(0)")
    stamp(a, 9)
    a(f"""s_cmp_lg_u32 s2, 255
    s_cbranch_scc1 L_h1_end
    s_mov_b32 s36, {WS_P2}
    v_min_u32 v5, 59, v1
    v_lshlrev_b32 v5, 10, v5""")
    lds_wait(a, 16, 1)
    tag_bytes(a)
    a(f"s_mov_b32 s50, {SPIN}\nL_ep:")
    for i in range(4):
        a(f"buffer_load_dwordx4 {vr(32+4*i,4)}, v5, s[24:27], s36 offen offset:{i*256} sc1")
    strip_tags(a, [32, 36, 40, 44], True)
    a("""s_sub_u32 s50, s50, 1
    s_cbranch_scc1 L_epo
    s_cbranch_vccnz L_ep
    L_epo:""")
    a(f"s_mov_b32 s36, {WS_EP}")
    flag_store(a, 36, False)
    a("L_h1_end:")
    finish(a)


def tag_bytes(a):
    a(f"""s_and_b32 s52, s{TAG}, 0xff
    s_bfe_u32 s53, s{TAG}, 0x80008
    s_bfe_u32 s54, s{TAG}, 0x80010
    s_lshr_b32 s55, s{TAG}, 24""")


def strip_tags(a, regs, waits=None):
    a("v_mov_b32 v9, 0")
    for i, r in enumerate(regs):
        if waits:
            a(f"s_waitcnt vmcnt({len(regs)-1-i})")
        for j in range(4):
            a(f"v_xor_b32 v{r+j}, s{52+j}, v{r+j}")
        a(f"v_or3_b32 v9, v9, v{r}, v{r+1}\nv_or3_b32 v9, v9, v{r+2}, v{r+3}")
    a("v_and_b32 v9, 0xff, v9\nv_cmp_ne_u32 vcc, 0, v9")


def sel_by_g(a, o, b, st, tag=True):
    a(f"""v_cndmask_b32_e64 v{o}, v{b}, v{b+st}, s[44:45]
    v_cndmask_b32_e64 v{o}, v{o}, v{b+2*st}, s[46:47]
    v_cndmask_b32_e64 v{o}, v{o}, v{b+3*st}, s[48:49]""")
    if tag:
        a(f"v_mov_b32 v{o+1}, s{TAG}")


def ffn(a):
    a(f"""L_ffn:
    s_load_dwordx4 s[8:11], s[0:1], 40
    s_load_dwordx2 s[40:41], s[0:1], 56
    s_load_dwordx2 s[44:45], s[0:1], 16
    s_load_dwordx2 s[46:47], s[0:1], 72
    v_lshlrev_b32 v10, 4, v1
    s_mul_i32 s33, s{XCD}, 30
    s_add_u32 s33, s33, s{LOC}         ; job
    s_mul_i32 s34, s33, 6554
    s_lshr_b32 s34, s34, 16            ; b
    s_mul_i32 s35, s34, 10
    s_sub_u32 s35, s33, s35
    v_lshrrev_b32 v5, 3, v1
    v_and_b32 v7, 7, v1
    v_mul_u32_u24 v6, 3072, v5
    v_lshl_add_u32 v11, v7, 4, v6
    v_mul_u32_u24 v6, 1280, v5
    v_lshl_add_u32 v12, v7, 4, v6
    v_bfe_u32 v6, v1, 2, 2
    v_lshl_add_u32 v6, v4, 3, v6
    v_lshlrev_b32 v6, 7, v6
    v_and_b32 v8, 3, v1
    v_lshl_add_u32 v6, v8, 3, v6
    v_add_u32 v13, {L_FW}, v6
    v_mov_b32 v30, {M_PURE}
    s_mul_i32 s38, s35, 64*3072
    s_lshl_b32 s36, s34, 7
    s_add_u32 s38, s38, s36
    s_mul_i32 s39, s34, 64*1280
    s_lshl_b32 s36, s35, 7
    s_add_u32 s39, s39, s36
    s_waitcnt lgkmcnt(0)""")
    epoch_load(a)
    srd(a, SX, 4, 2621440)
    srd(a, SW, 40, 1966080)
    srd(a, SS, 12, WS_END)
    srd(a, SA, 8, 1966080)
    srd(a, SB, 10, 1966080)
    epoch_fin(a)
    stamp(a, 1)
    if OPT["fprio"]:
        a(f"s_setprio {OPT['fprio']}")
    def weights(n0=0, n1=24):
        for m in range(3):
            for i in range(8):
                if not n0 <= m * 8 + i < n1:
                    continue
                s_, v_, so, st = ((SA, 11, 38, 3072), (SB, 11, 38, 3072), (SW, 12, 39, 1280))[m]
                a(f"""s_mov_b32 m0, {L_FW+m*8192+i*1024}
                s_add_u32 s36, s{so}, {i*8*st}
                buffer_load_dwordx4 v{v_}, s[{s_}:{s_+3}], s36 offen {OPT['fnt']} lds""")
    cl = "buffer_load_dwordx4 v[24:27], v10, s[24:27], s51 offen sc1"
    def touch():
        a(f"""s_mul_i32 s36, s{XCD}, {XB}
        s_sub_u32 s37, s36, {XB}
        s_max_i32 s37, s37, 0
        s_load_dword s3, s[44:45], 0
        s_load_dword s3, s[12:13], s36
        s_load_dword s3, s[8:9], 0
        s_load_dword s3, s[10:11], 0
        s_load_dword s3, s[40:41], 0
        s_load_dword s3, s[12:13], s37
        s_add_u32 s36, s36, {XB-64}
        s_mul_i32 s37, s{XCD}, {256*1280}
        s_load_dword s3, s[12:13], s36
        {"s_load_dword s3, s[46:47], s37" if OPT["otch"] else ""}
        s_load_dword s3, s[6:7], 0
        s_mov_b32 s36, {2457600-64}
        s_load_dword s3, s[6:7], s36""")
    if OPT["stl"] == 1 and OPT["stw"]:
        touch()
    a(f"""    s_mov_b32 s51, {WS_CAND}
    s_cmp_lg_u32 s{CT}, 15
    s_cbranch_scc1 L_f_w""")
    for i in range(10):
        if (OPT["stl"] == 1 and not OPT["stw"] and i == 0) or (OPT["stl"] == 2 and i == 1):
            touch()
        a("s_barrier")
    a(f"""s_waitcnt lgkmcnt(0)
    s_mov_b32 s3, 1
    s_mov_b32 s50, {SPIN}
    s_branch L_f_b1
    L_f_w:""")
    late = 0
    fws = [int(x) for x in OPT["fws"].split("_") if x]
    OPT["fwe"] = sum(fws)
    NW = 16 if OPT["wdl"] else 24
    for i in range(9):
        a("s_barrier")
        if i == 0 and OPT["stl"] == 2 and OPT["stw"]:
            touch()
        if i == 8:
            a("s_waitcnt lgkmcnt(0)")
        if i < 8:
            if OPT["fwm"]:
                weights(3 * i, 3 * i + 3)
            if i < len(fws):
                weights(NW - sum(fws[:i+1]), NW - sum(fws[:i]))
    a(cl)
    if not OPT["fwm"]:
        weights(OPT["fskip"], NW - OPT["fwe"])
        late += NW - OPT["fwe"] - OPT["fskip"]
    def frags(ms=(0, 1) if OPT["wdl"] else (0, 1, 2)):
        if OPT["wdl"] == 2 and len(ms) == 2:
            weights(16, 24)
        for m in ms:
            for t in range(4):
                for ks in range(2):
                    o = m * 8192 + ks * 4096 + t * 32
                    r = 64 + m * 32 + t * 8 + ks * 4
                    a(f"""ds_read_b64_tr_b16 v[{r}:{r+1}], v13 offset:{o}
                    ds_read_b64_tr_b16 v[{r+2}:{r+3}], v13 offset:{o+512}""")
                if t & 1:
                    a("s_waitcnt lgkmcnt(4)")
        a("s_waitcnt lgkmcnt(0)")
        if OPT["wdl"] == 1 and len(ms) == 2:
            weights(16, 24)
    a(f"""s_mov_b32 s3, 0
    s_mov_b32 s50, {SPIN}
    s_barrier
    s_waitcnt vmcnt({late})
    L_f_chk:
    v_xor_b32 v9, s{TAG}, v25
    v_bitop3_b32 v9, v9, v27, s{TAG} bitop3:0xf6
    v_cmp_ne_u32 vcc, 0, v9
    s_cbranch_vccz L_f_ok
    s_sub_u32 s50, s50, 1
    s_cbranch_scc1 L_f_ok
    s_cmp_eq_u32 s3, 2
    s_cbranch_scc1 L_f_again
    s_cmp_eq_u32 s3, 1
    s_cbranch_scc1 L_f_b1
    s_cmp_eq_u32 s50, {SPIN-1 if OPT["a2"] else -1}
    s_cbranch_scc1 L_f_again
    s_waitcnt vmcnt(0)""")
    frags()
    a(f"""s_mov_b32 s3, 1
    s_branch L_f_again
    L_f_b1:
    s_barrier
    s_mov_b32 s3, 2
    L_f_again:
    {cl}
    s_waitcnt vmcnt(0)
    s_branch L_f_chk
    L_f_ok:""")
    stamp(a, 3)
    tag_bytes(a)
    top2(a, 24, 26, 21, 40, 41, 44)
    key_decode(a, 40, 42, 46, 36)
    key_decode(a, 41, 43, 47, 36)
    a(f"""v_mov_b32 v16, s42
    v_mov_b32 v17, s43
    v_mov_b32 v18, s46
    v_mov_b32 v19, s47
    v_or_b32 v16, 0x10000, v16
    ds_write_b128 v30, v[16:19] offset:16
    v_mov_b32 v20, s42
    v_and_b32 v6, 1, v1
    v_cmp_eq_u32 s[44:45], 0, v6
    s_lshl_b32 s36, s35, 7
    s_nop 0
    v_cndmask_b32_e64 v7, v17, v20, s[44:45]
    v_mul_u32_u24 v7, 1280, v7
    v_lshl_add_u32 v7, v4, 4, v7
    s_cmp_lg_u32 s{CT}, 15
    s_cbranch_scc1 L_f_job""")
    if OPT["wdl"]:
        lds_add(a, O_W)
    a(f"""s_branch L_f_gather
    L_f_job:
    buffer_load_dwordx4 v[24:27], v7, s[16:19], s36 offen
    buffer_load_dwordx4 v[160:163], v7, s[16:19], s36 offen offset:64
    v_cmp_eq_u32 s[44:45], 1, v4
    v_cmp_eq_u32 s[46:47], 2, v4
    v_cmp_eq_u32 s[48:49], 3, v4
    v_and_b32 v22, 3, v1
    v_lshlrev_b32 v22, 3, v22
    v_bfe_u32 v22, s{TAG}, v22, 8
    v_lshlrev_b32 v23, 2, v1
    v_mov_b32 v21, 0xffffff00
    ds_read_b32 v31, v30
    s_waitcnt lgkmcnt(0)
    v_readfirstlane_b32 s{PURE}, v31""")
    a("""s_cmp_lg_u32 s3, 0
    s_cbranch_scc1 L_f_nf
    s_waitcnt vmcnt(2)""")
    frags()
    if OPT["wdl"]:
        a("s_waitcnt vmcnt(8)\ns_branch L_f_s1")
    a("""L_f_nf:
    s_cmp_lg_u32 s3, 1
    s_cbranch_scc1 L_f_nb
    s_barrier
    L_f_nb:
    s_waitcnt vmcnt(0)
    L_f_s1:""")
    stamp(a, 4)
    for ks in range(2):
        for m in range(2):
            for t in range(4):
                d = 32 + (m * 4 + t) * 4
                a(f"v_mfma_f32_16x16x32_bf16 {vr(d,4)}, {vr((24, 160)[ks],4)}, {vr(64+m*32+t*8+ks*4,4)}, {'0' if ks == 0 else vr(d,4)}")
    a(f"""s_lshl_b32 s36, s33, 10
    s_add_u32 s36, s36, {WS_P1}
    s_nop 2""")
    for m in range(2):
        for tk in range(2):
            sel_by_g(a, 96 + m * 2 + tk, 32 + m * 16 + tk, 4, False)
    for j in range(4):
        a(f"v_and_or_b32 v{96+j}, v{96+j}, v21, s{52+j}")
    if OPT["p1loc"]:
        two_flavours(a, lambda sc: a(f"buffer_store_dwordx4 v[96:99], v10, s[24:27], s36 offen {sc}"))
    else:
        a("buffer_store_dwordx4 v[96:99], v10, s[24:27], s36 offen sc1")
    a(f"""s_mul_i32 s36, s34, 10240
    s_add_u32 s36, s36, {WS_P1}
    s_add_u32 s37, s36, 4096
    s_add_u32 s38, s36, 8192
    s_mov_b32 s50, {SPIN}
    s_waitcnt lgkmcnt(0)""")
    stamp(a, 5)
    a(f"""v_min_u32 v5, 9, v1
    v_lshlrev_b32 v5, 10, v5
    s_cmp_lg_u32 s3, 0
    s_cbranch_scc1 L_f_p0
    s_barrier
    s_branch L_f_p1
    L_f_p0:
    buffer_load_dword v6, v5, s[24:27], s36 offen sc1
    s_sub_u32 s50, s50, 1
    s_cbranch_scc1 L_f_p1o
    s_waitcnt vmcnt(0)
    v_and_b32 v6, 0xff, v6
    v_cmp_ne_u32 vcc, s52, v6
    s_cbranch_vccnz L_f_p0
    L_f_p1:""")
    stamp(a, 6)
    for i in range(10):
        a(f"buffer_load_dwordx4 {vr(32+4*i,4)}, v10, s[24:27], s{36+i//4} offen offset:{(i%4)*1024} sc1")
    strip_tags(a, [32 + 4 * i for i in range(10)], True)
    a("""    s_cbranch_vccnz L_f_p0
    L_f_p1o:
    s_waitcnt vmcnt(0)""")
    if OPT["wdl"]:
        frags((2,))
        lds_add(a, O_W)
    stamp(a, 7)
    for i in range(1, 10):
        for j in (0, 2):
            a(f"v_pk_add_f32 {vr(32+j,2)}, {vr(32+j,2)}, {vr(32+4*i+j,2)}")
    for tk in range(2):
        sigmoid(a, 14 + tk, f"v{32+tk}")
        a(f"v_mul_f32 v{14+tk}, v{14+tk}, v{32+tk}\nv_mul_f32 v{14+tk}, v{14+tk}, v{34+tk}")
    a(f"""v_cvt_pk_bf16_f32 v14, v14, v15
    v_lshl_add_u32 v6, v1, 1, v30
    ds_write_b16 v6, v14 offset:256
    ds_write_b16_d16_hi v6, v14 offset:384
    v_and_b32 v7, 1, v1
    v_lshl_add_u32 v7, v7, 7, v30
    v_lshl_add_u32 v7, v4, 4, v7
    s_waitcnt lgkmcnt(0)
    ds_read_b128 v[32:35], v7 offset:256
    ds_read_b128 v[36:39], v7 offset:320
    s_waitcnt lgkmcnt(0)""")
    for t in range(4):
        d = 64 + t * 4
        for ks in range(2):
            a(f"v_mfma_f32_16x16x32_bf16 {vr(d,4)}, {vr(32+4*ks,4)}, {vr(128+t*8+4*ks,4)}, {'0' if ks == 0 else vr(d,4)}")
    a(f"""s_lshl_b32 s36, s33, 8
    s_add_u32 s36, s36, {WS_P2}
    s_add_u32 s37, s36, {24*2560}
    s_nop 4""")
    for tk in range(2):
        sel_by_g(a, 96 + tk, 64 + tk, 4, False)
        a(f"""v_and_or_b32 v{96+tk}, v{96+tk}, v21, v22
        buffer_store_dword v{96+tk}, v23, s[24:27], s{36+tk} offen sc1""")
    stamp(a, 8)
    a("L_f_gather:")
    a(f"""s_and_b32 s36, s{LOC}, 3
    s_lshl_b32 s36, s36, 5
    s_lshl_b32 s37, s{XCD}, 8
    s_add_u32 s36, s36, s37
    s_xor_b32 s42, s42, s36
    s_xor_b32 s43, s43, s36
    s_and_b32 s42, s42, 0x760
    s_and_b32 s43, s43, 0x760
    s_min_u32 s36, s42, s43
    s_cmp_lg_u32 s36, 0
    s_cbranch_scc1 L_f_end
    s_lshr_b32 s32, s{LOC}, 2
    s_mul_i32 s40, s32, 320
    s_add_u32 s40, s40, {WS_P2}
    s_andn2_b32 s36, s40, 255
    s_add_u32 s36, s36, {24*2560}
    v_min_u32 v5, 47, v1
    v_lshrrev_b32 v6, 1, v5
    v_mul_u32_u24 v6, 2560, v6
    v_and_b32 v5, 1, v5
    v_lshl_add_u32 v5, v5, 8, v6
    v_min_u32 v7, 59, v1
    v_mul_u32_u24 v8, 3277, v7
    v_lshrrev_b32 v8, 16, v8
    v_mul_u32_u24 v6, 20, v8
    v_sub_u32 v6, v7, v6
    v_mul_u32_u24 v11, {8*2560}, v8
    v_lshl_add_u32 v11, v6, 4, v11
    v_lshl_add_u32 v12, v7, 4, v30
    v_lshl_add_u32 v13, v6, 4, v30
    v_mov_b32 v20, v13""")
    sigmoid(a, 18, "v18")
    sigmoid(a, 19, "v19")
    a("s_mov_b32 s41, 0")
    if OPT["yat"]:
        a("s_setprio 0")
        lds_wait(a, O_ATT, OPT["yat"])
        a("s_setprio 3")
    else:
        lds_wait(a, 4, 2)
    a(f"""s_mov_b32 s50, {SPIN}
    {"s_branch L_f_tok" if OPT["yat"] else ""}
    L_f_y0:
    buffer_load_dword v6, v5, s[24:27], s36 offen sc1
    s_sub_u32 s50, s50, 1
    s_cbranch_scc1 L_f_yo
    s_waitcnt vmcnt(0)
    v_and_b32 v6, 0xff, v6
    v_cmp_ne_u32 vcc, s52, v6
    s_cbranch_vccnz L_f_y0""")
    stamp(a, 9)
    a("""L_f_tok:
    s_cmp_lg_u32 s42, 0
    s_cbranch_scc1 L_f_next
    s_mov_b32 s37, s40""")
    for i in range(8):
        a(f"buffer_load_dwordx4 {vr(32+4*i,4)}, v11, s[24:27], s37 offen sc1\ns_add_u32 s37, s37, 2560")
    a(f"s_setprio {OPT['gprio']}")
    strip_tags(a, [32 + 4 * i for i in range(8)], True)
    a("s_cbranch_vccnz L_f_y0")
    for i in range(1, 8):
        for j in (0, 2):
            a(f"v_pk_add_f32 {vr(32+j,2)}, {vr(32+j,2)}, {vr(32+4*i+j,2)}")
    a(f"""ds_write_b128 v12, v[32:35] offset:{L_Y-L_MISC+640}
    ds_read_b128 v[36:39], v20 offset:{L_Y-L_MISC+640}
    ds_read_b128 v[40:43], v20 offset:{L_Y-L_MISC+960}
    ds_read_b128 v[44:47], v20 offset:{L_Y-L_MISC+1280}
    s_waitcnt lgkmcnt(0)""")
    for j in (0, 2):
        a(f"""v_pk_add_f32 {vr(36+j,2)}, {vr(36+j,2)}, {vr(40+j,2)}
        v_pk_add_f32 {vr(36+j,2)}, {vr(36+j,2)}, {vr(44+j,2)}
        v_pk_mul_f32 {vr(36+j,2)}, {vr(36+j,2)}, v[18:19] op_sel_hi:[1,0]""")
    a(f"""ds_write_b128 v13, v[36:39] offset:{L_Y-L_MISC}
    L_f_next:
    s_mov_b32 s42, s43
    s_add_u32 s40, s40, {24*2560}
    v_mov_b32 v18, v19
    v_add_u32 v13, 320, v13
    s_add_u32 s41, s41, 1
    s_cmp_lt_u32 s41, 2
    s_cbranch_scc1 L_f_tok
    L_f_yo:
    s_waitcnt vmcnt(0)""")
    lds_add(a, O_Y)
    a("s_waitcnt lgkmcnt(0)")
    stamp(a, 10)
    a("L_f_end:\ns_waitcnt lgkmcnt(0)")
    finish(a)


def main(out):
    a = Asm()
    head = f"""; gated mix of sliding-window attention and a top-2 routed FFN: one fused launch (written by a generator script)
; @launch grid=(256,1,1) block=(640,1,1) lds={LDS_BYTES}
.amdgcn_target "amdgcn-amd-amdhsa--gfx950"
.text
"""
    entry(a)
    loader(a)
    compute(a)
    stubs = attention(a)
    outproj(a)
    n0 = len(a.lines)
    helper1(a)
    if OPT["stamp"] == 3:
        body_, out_, k, skip = a.lines[n0:], [], 0, False
        for ln in body_:
            if "s_memrealtime" in ln or "s_memtime" in ln:
                continue
            if "s_cbranch_scc1 L_h_g" in ln: skip = True
            if ln.startswith("L_h_g:"): skip = False
            if ln.strip() == "s_endpgm":
                out_.append("    s_branch L_stampall")
                continue
            out_.append(ln)
            if (ln.strip() == "s_barrier" and not skip) or (ln.endswith("v17 offset:4") or (ln.endswith("v18 offset:4") and "vmcnt(12)" in out_[-2])):
                out_.append(f"    s_memrealtime s[{62+2*k}:{63+2*k}]"); k += 1
        a.lines[n0:] = out_
    ffn(a)
    router_loader(a)
    router(a)
    att_stubs(a, stubs)
    a.deferred2()
    stamp_out(a)
    a("L_exit:\ns_endpgm\nL_code_end:")
    body = a.text().replace("s_mov_b32 s43, 0\n    s_waitcnt lgkmcnt(0)", "s_mov_b32 s43, 0\n    s_movk_i32 s45, 0x4000\n    s_waitcnt lgkmcnt(0)")
    if OPT["al"]:
        body = align_fix(body, [("L_g_loop", "L_g_end"), ("L_g_q", "L_att_setup"), ("L_att_go", "L_att_fin"), ("L_op_loop", "L_op_end")])
    bad = check_hazards(body)
    tail = f""".section .rodata,"a"
.p2align 6
.amdhsa_kernel {NAME}_kernel
  .amdhsa_next_free_vgpr 168
  .amdhsa_next_free_sgpr 96
  .amdhsa_accum_offset 168
  .amdhsa_group_segment_fixed_size 0
  .amdhsa_kernarg_size 96
  .amdhsa_user_sgpr_count 2
  .amdhsa_user_sgpr_kernarg_segment_ptr 1
  .amdhsa_system_sgpr_workgroup_id_x 1
.end_amdhsa_kernel
"""
    open(out, "w").write(head + body + tail)
    print("written", out, "hazards:", len(bad))


if __name__ == "__main__":
    main(sys.argv[1])
```

```python
import sys, struct
from asmlib import Asm, vr, sr, check_hazards, align_fix

NAME = "gated_mix__sliding_block__moe_arch_mod__prompt"
def f32(x): return "0x%08x" % struct.unpack("<I", struct.pack("<f", x))[0]
LOG2E = 1.4426950408889634
QSCALE = (20 ** -0.5) * LOG2E

OPT = dict(stamp=0, dual=0, pre=0, xnt="", fnt="nt", rot=4, b11=0, wpf=0, rnt="", worot=2, fprio=3, cearly=1, aprio=2, tlb=0, hdel=5, dly=0, fwm=0, serp=1, xs="0_0", wsn=0, ws="0_2", fws="0_", qat2=2, nowo=0, xsc=0, epx=0, rowmap=1, qloc=1, qat=2, tlb0=0, wod=0, wack=1, qown=0, dbg=0, gprio=3, ones=1, gx=0, lord=0, wfl="", nl0=3, nla=5, npre=3, al=1, pf=1, xpf=0, swap=0, prio=1, osc="nt", ont="nt", ont2="nt", slp=0, wdl=2, ochk=1, kfirst=0, opw=0, bpos=2, bperm=0, otch=0, epi2=0, pskew=-1, jit=0, olf="sc1", forceimp=0, forcefb=0, probe="", pwg=109+512, stl=1, stw=0, nocand=0, pcyc=0, wmall=1, fwarm=1, p1loc=1, a2=1, yat=1, tmap=0, fskip=0, rfl=0, fdel=1, ksc='sc1', gate=8, ntry=2)
for _a in sys.argv[2:]:
    k, v = _a.split("=")
    OPT[k] = int(v) if v.lstrip("-").isdigit() else v

WS_L, WS_R = 0, 0x800000
WS_G, WS_CAND, WS_XID, WS_FL, WS_FP, WS_FO = 0x1000000, 0x1010000, 0x1020000, 0x1030000, 0x1040000, 0x1050000
WS_P1, WS_P2, WS_EP, WS_ST, WS_END = 0x1060000, 0x10E0000, 0x1120000, 0x1200000, 0x1300000
WS_FR = 0x1038000
WS_FW, WS_WP = 0x1048000, 0x1130000
XB = 240 * 4096
CS = 8192 + 64
L_K, L_V = 0, 3 * CS + 64
L_WO = 49664
L_ONES = L_WO + 102400 + 192
L_MISC = L_ONES + 5120 + 64
L_H, L_Y = L_MISC + 256, L_MISC + 512
LDS_BYTES = 163840
L_RW = 49152
L_FW = L_WO + 13 * 5120
L_XT = L_FW + 24576
L_WV = L_FW + 8192
M_PURE, M_HALO, M_TOP = L_MISC, L_MISC + 4, L_MISC + 16
O_WO, O_FD, O_ATT, O_Y, O_R, O_B2, O_C, O_W = 8, 12, 32, 36, 40, 44, 48, 52
assert L_V % 256 == 0 and L_ONES % 256 == 192 and L_XT + 10240 <= L_WO + 102400 and L_Y + 1920 <= LDS_BYTES
SPIN = 0x8000

WAVE, XCD, LOC, RBL, CT, TAG, PURE = 28, 29, 30, 31, 32, 60, 61
SX, SW, SS, SA, SB = 16, 20, 24, 52, 56


def srd(a, d, p, n):
    a(f"""s_mov_b32 s{d}, s{p}
    s_mov_b32 s{d+1}, s{p+1}
    s_mov_b32 s{d+2}, {n}
    s_mov_b32 s{d+3}, 0x20000""")


_jit = [0]
def stamp(a, i):
    if OPT["jit"]:
        if i == 0:
            return
        _jit[0] += 1
        k = _jit[0]
        a(f"""s_cselect_b32 s63, 1, 0
        s_bfe_u32 s64, s62, {(2 << 16) | ((k * 7 + OPT["jit"]) % 30):#x}
        s_cmp_lg_u32 s64, 0
        s_cbranch_scc1 L_jit{k}
        s_sleep {(8, 24, 48, 80)[(k + OPT["jit"]) % 4]}
        L_jit{k}:
        s_cmp_lg_u32 s63, 0""")
        return
    if OPT["probe"]:
        if str(i) in OPT["probe"].split("_"):
            a(f"{'s_memtime' if OPT['pcyc'] else 's_memrealtime'} s[{62+2*i}:{63+2*i}]\ns_waitcnt lgkmcnt(0)")
        return
    if OPT["stamp"] == 3:
        if i == 0:
            a("s_memrealtime s[94:95]\ns_memtime s[62:63]")
        if i in (4, 8):
            a(f"s_memrealtime s[{62+2*i}:{63+2*i}]\ns_memtime s[{64+2*i}:{65+2*i}]")
        return
    if OPT["stamp"]:
        if i == 0:
            a("s_memrealtime s[94:95]")
            for j in range(1, 15):
                a(f"s_mov_b32 s{62+2*j}, 0")
        a(f"{'s_memtime' if OPT['stamp'] == 1 else 's_memrealtime'} s[{62+2*i}:{63+2*i}]\ns_waitcnt lgkmcnt(0)")


def finish(a, main=False):
    if OPT["stamp"] == 3 and not main:
        a("s_endpgm")
    elif OPT["stamp"]:
        a("s_branch L_stampout")
    else:
        a("s_endpgm")


def stamp_out(a):
    if OPT["stamp"]:
        n = 14
        a(f"""L_stampout:
        s_waitcnt vmcnt(0)
        {'s_memtime' if OPT['stamp'] != 2 else 's_memrealtime'} s[{62+2*n}:{63+2*n}]
        s_memrealtime s[92:93]
        s_waitcnt lgkmcnt(0)
        s_lshl_b32 s3, s2, 4
        s_add_u32 s3, s3, s{WAVE}
        s_lshl_b32 s3, s3, 7
        s_add_u32 s3, s3, {WS_ST}
        s_mov_b64 exec, 1
        v_mov_b32 v0, 0""")
        for i in (range(n + 1) if OPT["stamp"] != 3 else (0, 4, 5, 8, 9, 14)):
            a(f"v_mov_b32 v1, s{62+2*i}\nbuffer_store_dword v1, v0, s[24:27], s3 offen offset:{4*i}")
        for i in range(2, 10 if OPT["stamp"] != 3 else 0):
            a(f"v_readlane_b32 s4, v166, {i}\ns_nop 1\nv_mov_b32 v1, s4\nbuffer_store_dword v1, v0, s[24:27], s3 offen offset:{64+4*(i-2)}")
        a(f"v_mov_b32 v1, s{PURE}\nbuffer_store_dword v1, v0, s[24:27], s3 offen offset:116")
        a("v_mov_b32 v1, s94\nbuffer_store_dword v1, v0, s[24:27], s3 offen offset:120")
        a("v_mov_b32 v1, s92\nbuffer_store_dword v1, v0, s[24:27], s3 offen offset:124")
        a("s_endpgm")
        if OPT["stamp"] == 3:
            a(f"""L_stampall:
            s_memrealtime s[88:89]""")
            lds_wait(a, O_ATT, 8)
            a(f"""s_lshl_b32 s3, s2, 4
            s_add_u32 s3, s3, s{WAVE}
            s_lshl_b32 s3, s3, 7
            s_add_u32 s3, s3, {WS_ST}
            v_mov_b32 v2, 0""")
            for i in range(14):
                a(f"v_writelane_b32 v2, s{62+2*i}, {i}")
            a("""v_writelane_b32 v2, s94, 30
            v_lshlrev_b32 v3, 2, v1
            s_mov_b64 exec, 0xffffffff
            buffer_store_dword v2, v3, s[24:27], s3 offen
            s_endpgm""")


def wave_max_u32(a, v, sdst, row=False):
    for m in ("row_shr:1 row_mask:0xf bank_mask:0xf bound_ctrl:1", "row_shr:2 row_mask:0xf bank_mask:0xf bound_ctrl:1",
              "row_shr:4 row_mask:0xf bank_mask:0xf bound_ctrl:1", "row_shr:8 row_mask:0xf bank_mask:0xf bound_ctrl:1",
              "row_bcast:15 row_mask:0xa bank_mask:0xf", "row_bcast:31 row_mask:0xc bank_mask:0xf")[:4 if row else 6]:
        a(f"s_nop 1\nv_max_u32_dpp v{v}, v{v}, v{v} {m}")
    a(f"s_nop 0\nv_readlane_b32 s{sdst}, v{v}, 63")


def top2(a, k1, k2, t, s1, s2, sm, row=False):
    a(f"v_max_u32 v{t}, v{k1}, v{k2}")
    wave_max_u32(a, t, s1, row)
    a(f"""s_nop 1
    v_cmp_ne_u32 s[{sm}:{sm+1}], s{s1}, v{k1}
    s_nop 1
    v_cndmask_b32_e64 v{k1}, 0, v{k1}, s[{sm}:{sm+1}]
    v_cmp_ne_u32 s[{sm}:{sm+1}], s{s1}, v{k2}
    s_nop 1
    v_cndmask_b32_e64 v{k2}, 0, v{k2}, s[{sm}:{sm+1}]
    v_max_u32 v{t}, v{k1}, v{k2}""")
    wave_max_u32(a, t, s2, row)


def key_decode(a, sk, stok, sval, st):
    a(f"""s_and_b32 s{stok}, s{sk}, 0xffff
    s_sub_u32 s{stok}, 0xffff, s{stok}
    s_and_b32 s{stok}, s{stok}, 0x7ff
    s_ashr_i32 s{st}, s{sk}, 31
    s_not_b32 s{st}, s{st}
    s_or_b32 s{st}, s{st}, 0x80000000
    s_xor_b32 s{sval}, s{sk}, s{st}
    s_and_b32 s{sval}, s{sval}, 0xffff0000""")


def sigmoid(a, d, s):
    a(f"""v_mul_f32 v{d}, {f32(-LOG2E)}, {s}
    v_exp_f32 v{d}, v{d}
    s_nop 0
    v_add_f32 v{d}, 1.0, v{d}
    v_rcp_f32 v{d}, v{d}
    s_nop 0""")


def epoch_load(a):
    a(f"""s_add_u32 s14, s12, {WS_EP}
    s_addc_u32 s15, s13, 0
    s_load_dword s{TAG}, s[14:15], 0""")


def epoch_fin(a):
    a(f"s_waitcnt lgkmcnt(0)\ns_add_u32 s{TAG}, s{TAG}, 0x9e3779b9")


_uid = [0]
_site = [0]
def uid(p):
    _uid[0] += 1
    return f"L_{p}{_uid[0]}"


def poll(a, load, tagregs, mask=None, tmp=9, pre=False):
    lp, out = uid("poll"), uid("pout")
    a(f"s_mov_b32 s50, {SPIN}")
    if pre:
        a(f"s_branch {lp}p")
    a(f"{lp}:")
    a(load)
    if pre:
        a(f"{lp}p:")
    a(f"""s_sub_u32 s50, s50, 1
    s_cbranch_scc1 {out}
    s_waitcnt vmcnt(0)""")
    if len(tagregs) == 1:
        a(f"v_cmp_ne_u32 vcc, s{TAG}, v{tagregs[0]}")
    else:
        a(f"v_xor_b32 v{tmp}, s{TAG}, v{tagregs[0]}")
        for r in tagregs[1:]:
            a(f"v_bitop3_b32 v{tmp}, v{tmp}, v{r}, s{TAG} bitop3:0xf6")
        a(f"v_cmp_ne_u32 vcc, 0, v{tmp}")
    if mask:
        a(f"s_and_b64 vcc, vcc, {mask}")
    if OPT["dbg"]:
        _site[0] += 1
        print("site", _site[0], load.split("\n")[-1][:70])
        a(f"""s_cbranch_vccnz {lp}
        s_branch {out}x
        {out}:
        s_waitcnt vmcnt(0)
        s_lshl_b32 s50, s2, 4
        s_add_u32 s50, s50, {_site[0]}
        s_lshl_b32 s50, s50, 8
        s_add_u32 s50, s50, {WS_ST}
        v_lshlrev_b32 v164, 2, v1
        v_xor_b32 v165, s{TAG}, v{tagregs[0]}
        v_or_b32 v165, 0x80000000, v165
        buffer_store_dword v165, v164, s[24:27], s50 offen
        {out}x:
        s_waitcnt vmcnt(0)""")
        return
    a(f"s_cbranch_vccnz {lp}\n{out}:\ns_waitcnt vmcnt(0)")


def spoll(a, loads, pairs):
    lp, out = uid("sp"), uid("so")
    a(f"s_mov_b32 s50, {SPIN}\n{lp}:")
    a(loads)
    a(f"""s_waitcnt lgkmcnt(0)
    s_sub_u32 s50, s50, 1
    s_cbranch_scc1 {out}
    s_xor_b64 s[36:37], s[{pairs[0]}:{pairs[0]+1}], s[38:39]""")
    for p in pairs[1:]:
        a(f"""s_xor_b64 s[{p}:{p+1}], s[{p}:{p+1}], s[38:39]
        s_or_b64 s[36:37], s[36:37], s[{p}:{p+1}]""")
    a(f"s_cbranch_scc1 {lp}\n{out}:")


def lds_wait(a, off, val, vt=9, pre=False):
    lp, out = uid("lw"), uid("lo")
    a(f"s_mov_b32 s50, {SPIN*8}")
    if pre:
        a(f"s_branch {lp}p")
    if OPT["slp"] and not pre and off != O_B2:
        a(f"s_branch {lp}f\n{lp}:\ns_sleep {OPT['slp']}\n{lp}f:")
    else:
        a(f"{lp}:")
    a(f"""ds_read_b32 v{vt}, v30 offset:{off}""")
    if pre:
        a(f"{lp}p:")
    a(f"""s_sub_u32 s50, s50, 1
    s_cbranch_scc1 {out}
    s_waitcnt lgkmcnt(0)
    v_cmp_gt_u32 vcc, {val}, v{vt}
    s_cbranch_vccnz {lp}
    {out}:""")


def lds_add(a, off, vt=9):
    a(f"""v_mov_b32 v{vt}, 1
    s_mov_b64 exec, 1
    ds_add_u32 v30, v{vt} offset:{off}
    s_mov_b64 exec, -1""")


def flag_store(a, soff, local, vt=8):
    a(f"""v_mov_b32 v{vt}, s{TAG}
    v_mov_b32 v{vt+1}, 0
    s_mov_b64 exec, 1""")
    if local:
        l1, l2 = uid("fs"), uid("fe")
        a(f"""s_cmp_eq_u32 s{PURE}, 0
        s_cbranch_scc1 {l1}
        buffer_store_dword v{vt}, v{vt+1}, s[24:27], s{soff} offen
        s_branch {l2}
        {l1}:
        buffer_store_dword v{vt}, v{vt+1}, s[24:27], s{soff} offen sc1
        {l2}:""")
    else:
        a(f"buffer_store_dword v{vt}, v{vt+1}, s[24:27], s{soff} offen sc1")
    a("s_mov_b64 exec, -1")


def two_flavours(a, body):
    l1, l2 = uid("imp"), uid("ime")
    a(f"s_cmp_eq_u32 s{PURE}, 0\ns_cbranch_scc1 {l1}")
    body("")
    a(f"s_branch {l2}\n{l1}:")
    body("sc1")
    a(f"{l2}:")


def router_loader(a):
    a("""L_rld:
    s_load_dwordx2 s[8:9], s[0:1], 16
    s_add_u32 s41, s40, 98304
    s_branch L_rld_issue
    L_rld_loop:
    s_waitcnt vmcnt(12) lgkmcnt(0)
    s_barrier
    L_rld_issue:
    s_lshl_b32 s36, s33, 7
    s_add_u32 s36, s36, s34""")
    for n in range(4):
        a(f"""s_add_u32 m0, s40, {n*4096}
        s_add_u32 s38, s36, {n*40960}
        buffer_load_dwordx4 v10, s[16:19], s38 offen {OPT['rnt']} lds""")
    kc_next(a, 33)
    a("""s_add_u32 s40, s40, 16384
    s_cmp_eq_u32 s40, s41
    s_cselect_b32 s36, 98304, 0
    s_sub_u32 s40, s40, s36
    s_add_u32 s42, s42, 1
    s_cmp_lt_u32 s42, 4
    s_cbranch_scc1 L_rld_issue
    s_cmp_lt_u32 s42, 10
    s_cbranch_scc1 L_rld_loop""")
    srd(a, SS, 12, WS_END)
    srd(a, SW, 8, 819200)
    a(f"""s_add_u32 s{TAG}, s{TAG}, 0x9e3779b9
    v_mov_b32 v30, {M_PURE}""")
    for n in (12, 8, 4, 0):
        a(f"s_waitcnt vmcnt({n})\ns_barrier")
    a(f"""s_lshl_b32 s33, s{XCD}, 1
    s_add_u32 s33, s33, s{RBL}
    s_and_b32 s34, s{WAVE}, 3
    s_mul_i32 s36, s33, 51200
    s_mul_i32 s37, s34, 320
    s_add_u32 s36, s36, s37
    s_mul_i32 s35, s34, {42*320}
    s_add_u32 s35, s35, 65536
    v_mul_u32_u24 v5, 3277, v1
    v_lshrrev_b32 v5, 16, v5
    v_mul_u32_u24 v6, 20, v5
    v_sub_u32 v6, v1, v6
    v_mul_u32_u24 v5, 1280, v5
    v_lshl_add_u32 v11, v6, 4, v5
    v_bfe_u32 v7, v1, 2, 2
    v_and_b32 v8, 3, v1
    v_lshl_add_u32 v8, v8, 3, s35
    v_lshrrev_b32 v5, 1, v4
    v_mul_u32_u24 v5, 20, v5
    v_and_b32 v6, 1, v4
    v_lshl_add_u32 v5, v6, 2, v5
    v_add_u32 v5, v5, v7
    v_mul_u32_u24 v5, 320, v5
    v_add_u32 v12, v5, v8
    v_mul_u32_u24 v5, 320, v7
    v_lshl_add_u32 v5, v4, 5, v5
    v_add_u32 v5, v5, v8
    s_bitcmp1_b32 s33, 1
    s_cselect_b32 s37, 0, {20*320}
    s_add_u32 s38, s37, {16*320}
    s_sub_u32 s37, {36*320}, s37
    v_add_u32 v13, s38, v5
    v_add_u32 v14, s37, v5
    v_lshlrev_b32 v10, 4, v1
    v_and_b32 v5, 15, v1
    v_lshlrev_b32 v5, 4, v5""")
    for i in range(3):
        a(f"""v_add_u32 v6, {4*i}, v4
        v_cmp_lt_u32 s[44:45], 4, v6
        v_lshl_add_u32 v6, v6, 10, v5
        v_add_u32 v7, {102400-5120}, v6
        v_cndmask_b32_e64 v{15+i}, v6, v7, s[44:45]""")
    a(f"""s_mul_i32 s40, s34, 204800
    s_add_u32 s40, s40, {WS_WP}
    s_lshr_b32 s37, s33, 2
    s_add_u32 s37, s37, 16
    s_mul_i32 s41, s37, 5120
    s_add_u32 s41, s41, s40
    s_and_b32 s37, s33, 1
    s_lshl_b32 s37, s37, 9
    s_add_u32 s41, s41, s37
    s_and_b32 s37, s33, 2
    s_lshl_b32 s37, s37, 7
    s_add_u32 s41, s41, s37
    s_mul_i32 s37, s33, 5120
    s_add_u32 s40, s40, s37
    s_lshl_b32 s42, s33, 5
    s_add_u32 s42, s42, s34
    s_lshl_b32 s42, s42, 2
    s_add_u32 s42, s42, {WS_FW}""")
    lds_wait(a, O_C, 4)
    stamp(a, 2)
    a("s_mov_b32 exec_hi, 0x0fffffff\ns_mov_b32 m0, s35")
    for i in range(14):
        if i == 13:
            a("s_mov_b64 exec, 0xfffff")
        a(f"""s_add_u32 s37, s36, {i*3840}
        buffer_load_dwordx4 v11, s[20:23], s37 offen {OPT['fnt']} lds
        s_add_u32 m0, s35, {(i+1)*960}""")
    a("s_mov_b64 exec, -1\ns_waitcnt vmcnt(0)")
    stamp(a, 3)
    for t in range(10):
        a(f"""ds_read_b64_tr_b16 v[{32+4*t}:{33+4*t}], v12 offset:{t*32}
        ds_read_b64_tr_b16 v[{34+4*t}:{35+4*t}], v12 offset:{t*32+8*320}""")
        if t == 4:
            a("s_waitcnt lgkmcnt(0)")
    a("s_waitcnt lgkmcnt(4)")
    for i in range(3):
        a(f"""ds_read_b64_tr_b16 v[{72+4*i}:{73+4*i}], v13 offset:{i*128}
        ds_read_b64_tr_b16 v[{74+4*i}:{75+4*i}], v14 offset:{i*128}""")
    a("s_waitcnt lgkmcnt(0)")
    for t in range(10):
        a(f"""s_add_u32 s37, s40, {(t//5)*102400 + (t%5)*1024}
        buffer_store_dwordx4 {vr(32+4*t,4)}, v10, s[24:27], s37 offen sc1""")
    for i in range(3):
        if i == 2:
            a("s_mov_b32 exec_hi, 0")
        a(f"buffer_store_dwordx4 {vr(72+4*i,4)}, v{15+i}, s[24:27], s41 offen sc1")
    a(f"""s_mov_b64 exec, 1
    v_mov_b32 v5, s{TAG}
    s_waitcnt vmcnt(0)
    buffer_store_dword v5, off, s[24:27], s42 sc1
    s_mov_b64 exec, -1""")
    stamp(a, 4)
    a("s_branch L_att_setup")


def kc_init(a):
    def nib(o):
        v = sum(x << (4 * i) for i, x in enumerate(o))
        return v & 0xffffffff, v >> 32
    n0, n1, n2 = nib(range(10)), nib([1, 0, 3, 2, 5, 4, 7, 6, 9, 8]), nib([0, 2, 1, 4, 3, 6, 5, 8, 7, 9])
    a(f"s_mov_b32 s46, {n0[0]:#x}\ns_movk_i32 s47, {n0[1]:#x}")
    if OPT["swap"]:
        a(f"""s_and_b32 s36, s{LOC}, {3 if OPT["swap"] == 1 else 1}
        s_cmp_eq_u32 s36, 1
        s_cselect_b32 s46, {n1[0]:#x}, s46
        s_cselect_b32 s47, {n1[1]:#x}, s47
        s_cmp_eq_u32 s36, 3
        s_cselect_b32 s46, {n2[0]:#x}, s46
        s_cselect_b32 s47, {n2[1]:#x}, s47""")
    tab = {0: [0]*8, 1: range(8), 2: [7, 0, 1, 2, 3, 4, 5, 6], 3: [8, 0, 1, 2, 3, 5, 6, 7], 4: [7, 6, 5, 4, 3, 2, 1, 0], 5: [8, 0, 0, 2, 2, 4, 6, 6], 6: [8, 0, 2, 4, 6, 0, 2, 4]}[OPT["rot"]]
    a(f"""s_lshl_b32 s36, s{XCD}, 2
    s_lshr_b32 s48, {nib(tab)[0]:#x}, s36
    s_and_b32 s48, s48, 15""")
    n3 = nib([2, 3, 4, 5, 6, 7, 8, 9, 0, 1])
    a(f"""s_cmp_eq_u32 s{CT}, 15
    s_cselect_b32 s46, {n3[0]:#x}, s46
    s_cselect_b32 s47, {n3[1]:#x}, s47""")


def kc_next(a, d):
    a(f"""s_and_b32 s{d}, s46, 15
    s_lshr_b64 s[46:47], s[46:47], 4""")
    if OPT["rot"]:
        a(f"""s_add_u32 s{d}, s{d}, s48
        s_sub_u32 s36, s{d}, 10
        s_cselect_b32 s{d}, s{d}, s36""")


def entry(a):
    a(f""".globl {NAME}_kernel
    .p2align 8
    .type {NAME}_kernel,@function
    {NAME}_kernel:""")
    a("""s_cmp_ge_u32 s2, 256
    s_cbranch_scc1 L_exit""")
    stamp(a, 0)
    a(f"""s_load_dwordx4 s[4:7], s[0:1], 0
    s_load_dwordx2 s[12:13], s[0:1], 88
    v_lshrrev_b32 v2, 6, v0
    v_and_b32 v1, 63, v0
    v_readfirstlane_b32 s{WAVE}, v2
    s_and_b32 s{XCD}, s2, 7
    {"" if not OPT["bperm"] else "s_lshl_b32 s36, s%d, 2" % XCD}
    {"" if not OPT["bperm"] else "s_lshr_b32 s%d, %#x, s36" % (XCD, {1: 0x23014567, 2: 0x54763210, 3: 0x65074321}[OPT["bperm"]])}
    {"" if not OPT["bperm"] else "s_and_b32 s%d, s%d, 7" % (XCD, XCD)}
    s_lshr_b32 s{LOC}, s2, 3
    s_and_b32 s{RBL}, s{LOC}, 1
    s_lshr_b32 s{CT}, s{LOC}, 1
    v_lshrrev_b32 v4, 4, v1""")
    if OPT["jit"]:
        a(f"""s_lshl_b32 s62, s2, 4
        s_add_u32 s62, s62, s{WAVE}
        s_add_u32 s62, s62, {OPT["jit"] * 7919}
        s_mul_i32 s62, s62, 0x9e3779b1
        s_lshr_b32 s63, s62, 15
        s_xor_b32 s62, s62, s63
        s_mul_i32 s62, s62, 0x85ebca6b
        s_lshr_b32 s63, s62, 13
        s_xor_b32 s62, s62, s63""")
    if OPT["pf"]:
        a(f"""s_cmp_lg_u32 s{WAVE}, 0
        s_cbranch_scc1 L_nopf
        s_getpc_b64 s[36:37]
        L_pc:
        s_and_b32 s38, s{LOC}, 3
        s_mul_i32 s38, s38, 5760
        v_min_u32 v5, 44, v1
        v_lshl_add_u32 v5, v5, 7, s38
        v_min_u32 v5, L_code_end-L_pc-4, v5
        global_load_dword v167, v5, s[36:37]
        L_nopf:""")
    a(f"""s_cmp_lt_u32 s{WAVE}, 4
    s_cbranch_scc1 L_compute
    s_cmp_ge_u32 s{WAVE}, 8
    s_cbranch_scc1 L_help""")


def loader(a):
    a(f"""v_and_b32 v2, 3, v2
    v_lshrrev_b32 v3, 3, v1
    v_lshl_add_u32 v3, v2, 3, v3
    v_mul_u32_u24 v3, 1280, v3
    v_lshl_add_u32 v5, v2, 2, v4
    v_xor_b32 v6, v5, v1
    v_and_b32 v6, 7, v6
    v_lshl_add_u32 v10, v6, 4, v3
    v_mul_u32_u24 v5, 3840, v5
    v_lshrrev_b32 v6, 1, v2
    v_lshl_add_u32 v6, v6, 2, v4
    v_lshlrev_b32 v6, 1, v6
    v_xor_b32 v6, v6, v1
    v_and_b32 v6, 15, v6
    v_lshl_add_u32 v11, v6, 4, v5
    s_lshl_b32 s34, s{XCD}, 1
    s_add_u32 s34, s34, s{RBL}
    s_mul_i32 s34, s34, 128*1280
    s_lshl_b32 s35, s{CT}, 8
    s_and_b32 s40, s{WAVE}, 3
    s_lshl_b32 s40, s40, 10
    s_add_u32 s41, s40, 49152
    s_mov_b32 s42, 0
    s_mov_b32 s18, 2621440
    s_mov_b32 s19, 0x20000
    s_mov_b32 s22, 2457600
    s_mov_b32 s23, 0x20000""")
    kc_init(a)
    kc_next(a, 33)
    if OPT["xpf"]:
        a(f"""v_min_u32 v12, 19, v1
        v_lshlrev_b32 v12, 7, v12
        s_lshl_b32 s44, s{CT}, 2
        s_add_u32 s44, s44, s{WAVE}
        s_mul_i32 s44, s44, 2560
        s_add_u32 s44, s44, s34
        s_sub_u32 s44, s44, {4*2560}""")
    a("""s_waitcnt lgkmcnt(0)
    s_mov_b32 s16, s4
    s_mov_b32 s17, s5
    s_mov_b32 s20, s6
    s_mov_b32 s21, s7""")
    if OPT["xpf"]:
        a("buffer_load_dword v167, v12, s[16:19], s44 offen")
    epoch_load(a)
    stamp(a, 1)
    if OPT["dly"]:
        a(f"s_bitcmp1_b32 s{CT}, 0\ns_cbranch_scc0 L_nd\ns_sleep {OPT['dly']}\nL_nd:")
    a(f"""s_cmp_eq_u32 s{CT}, 15
    s_cbranch_scc1 L_rld
    s_branch L_ld_issue
    L_ld_loop:
    s_waitcnt vmcnt(8) lgkmcnt(0)
    s_barrier""")
    if OPT["stamp"] in (1, 2):
        a("""s_memrealtime s[44:45]
        s_waitcnt lgkmcnt(0)
        s_mov_b32 m0, s42
        s_nop 0
        v_writelane_b32 v166, s44, m0""")
    a(f"""L_ld_issue:
    s_lshl_b32 s36, s33, 7
    s_add_u32 s36, s36, s34
    {"s_and_b32 s33, s33, 1" if OPT["gx"] == 1 else ""}
    s_mul_i32 s37, s33, 245760
    s_add_u32 s37, s37, s35""")
    lx = [f"""s_add_u32 m0, s40, {n*4096}
        s_add_u32 s38, s36, {n*40960}
        buffer_load_dwordx4 v10, s[16:19], s38 offen {OPT['xnt']} lds""" for n in range(4)]
    lw = [f"""s_add_u32 m0, s40, {L_RW+n*4096}
        s_add_u32 s39, s37, {n*61440}
        buffer_load_dwordx4 v11, s[20:23], s39 offen {OPT['wfl']} lds""" for n in range(4)]
    for l in {0: [x for p in zip(lx, lw) for x in p], 1: lw + lx, 2: lx + lw}[OPT["lord"]]:
        a(l)
    kc_next(a, 33)
    a("""s_add_u32 s40, s40, 16384
    s_cmp_eq_u32 s40, s41
    s_cselect_b32 s36, 49152, 0
    s_sub_u32 s40, s40, s36
    s_add_u32 s42, s42, 1
    s_cmp_lt_u32 s42, 2
    s_cbranch_scc1 L_ld_issue
    s_cmp_lt_u32 s42, 10
    s_cbranch_scc1 L_ld_loop""")
    srd(a, SS, 12, WS_END)
    a(f"s_add_u32 s{TAG}, s{TAG}, 0x9e3779b9")
    pre = 0
    a(f"""s_waitcnt vmcnt({8+pre})
    s_barrier""")
    stamp(a, 2)
    a(f"""s_waitcnt vmcnt({pre})
    s_barrier""")
    stamp(a, 3)
    a("s_branch L_att_setup")


ACC, F0, F1 = 32, 96, 128
def compute(a):
    a("L_compute:")
    if (OPT["qloc"] and OPT["qat"] == -1) or OPT["tlb0"]:
        a(f"""s_mul_i32 s36, s{XCD}, {XB}
        s_mov_b32 s26, {WS_END}
        s_mov_b32 s27, 0x20000""")
        if OPT["qloc"] and OPT["qat"] == -1:
            a(f"""s_lshl_b32 s37, s{LOC}, 2
            s_add_u32 s37, s37, s{WAVE}
            s_mul_i32 s37, s37, 2560
            s_add_u32 s37, s37, s36
            v_min_u32 v5, 19, v1
            v_lshlrev_b32 v5, 7, v5""")
        if OPT["tlb0"]:
            a(f"""s_sub_u32 s38, s36, {XB}
            s_max_i32 s38, s38, 0
            v_min_u32 v6, 2, v1
            v_mul_u32_u24 v6, {XB-64}, v6""")
        a("""s_waitcnt lgkmcnt(0)
        s_mov_b32 s24, s12
        s_mov_b32 s25, s13""")
        if OPT["qloc"] and OPT["qat"] == -1:
            a("buffer_load_dword v167, v5, s[24:27], s37 offen sc1")
        if OPT["tlb0"]:
            a(f"""s_cmp_lg_u32 s{WAVE}, 1
            s_cbranch_scc1 L_not0
            buffer_load_dword v167, v6, s[24:27], s38 offen sc1
            L_not0:""")
    a(f"""v_and_b32 v3, 15, v1
    s_and_b32 s36, s{WAVE}, 1          ; wc
    s_lshr_b32 s37, s{WAVE}, 1         ; wt
    s_lshl_b32 s38, s37, 13
    s_lshl_b32 s39, s{WAVE}, 12
    s_cmp_eq_u32 s{CT}, 15
    s_cselect_b32 s38, s39, s38
    v_lshrrev_b32 v5, 1, v3
    v_xor_b32 v5, v5, v4
    v_lshlrev_b32 v5, 4, v5
    v_lshl_add_u32 v12, v3, 7, v5
    v_add_u32 v12, s38, v12
    v_xor_b32 v13, 64, v12
    v_bfe_u32 v5, v1, 2, 2             ; r
    v_lshl_add_u32 v6, v4, 3, v5
    v_lshlrev_b32 v6, 8, v6
    v_and_b32 v7, 1, v4
    v_lshl_add_u32 v5, v7, 2, v5
    v_lshlrev_b32 v5, 1, v5            ; f(row)
    v_and_b32 v7, 3, v1
    s_lshl_b32 s39, s36, 3
    v_add_u32 v7, s39, v7
    v_xor_b32 v5, v5, v7
    v_lshl_add_u32 v6, v5, 4, v6
    v_bfe_u32 v5, v1, 1, 1
    v_lshl_add_u32 v6, v5, 3, v6
    v_add_u32 v14, {L_RW}, v6
    v_xor_b32 v15, 8, v14
    v_xor_b32 v16, 64, v14
    v_xor_b32 v17, 0x48, v14
    v_lshlrev_b32 v18, 4, v3
    v_lshl_add_u32 v18, v4, 12, v18
    v_mov_b32 v19, {M_PURE}
    s_mul_i32 s34, s{XCD}, {XB}
    s_lshl_b32 s39, s{CT}, 16
    s_add_u32 s34, s34, s39
    s_lshl_b32 s39, s36, 15
    s_add_u32 s34, s34, s39
    s_lshl_b32 s39, s{RBL}, 11
    s_add_u32 s34, s34, s39
    s_lshl_b32 s39, s37, 10
    s_add_u32 s34, s34, s39
    s_add_u32 s35, s34, 16384
    s_mov_b32 s42, 0
    s_mov_b32 s43, 0
    s_waitcnt lgkmcnt(0)""")
    epoch_load(a)
    srd(a, SS, 12, WS_END)
    if OPT["pskew"] >= 0:
        a(f"""s_lshl_b32 s36, s2, 7
        s_add_u32 s36, s36, {WS_ST}
        v_mov_b32 v5, s62
        s_mov_b64 exec, 1
        buffer_store_dword v5, off, s[24:27], s36 sc1
        s_mov_b64 exec, -1""")
    for i in range(64):
        a(f"v_mov_b32 v{ACC+i}, 0")
    epoch_fin(a)
    stamp(a, 1)
    a(f"s_cmp_eq_u32 s{CT}, 15\ns_cbranch_scc1 L_router")

    def reads(ks, F):
        r = []
        def A(j):
            r.append(f"ds_read_b64_tr_b16 v[{F+4*j}:{F+4*j+1}], v{14+j} offset:{ks*8192}")
            r.append(f"ds_read_b64_tr_b16 v[{F+4*j+2}:{F+4*j+3}], v{14+j} offset:{ks*8192+1024}")
        A(0)
        for t in range(4):
            r.append(f"ds_read_b128 {vr(F+16+4*t,4)}, v{12+ks} offset:{t*2048}")
        A(1); A(2); A(3)
        return r

    def phase(F, rd, bar, extra):
        a("s_waitcnt lgkmcnt(6)")
        n = 0
        bp = OPT["bpos"] if bar else 1
        cnt = {1: [1]*12, 2: [2, 2, 2, 2, 1, 1, 1, 1], 3: [3, 3, 3, 3]}[bp]
        k = 0
        for j in range(4):
            if j == 1:
                a("s_waitcnt lgkmcnt(0)")
            if j == bp and bar:
                a("s_barrier")
            for t in (range(4) if not (OPT["serp"] and j & 1) else range(3, -1, -1)):
                d = ACC + (j * 4 + t) * 4
                a(f"v_mfma_f32_16x16x32_bf16 {vr(d,4)}, {vr(F+4*j,4)}, {vr(F+16+4*t,4)}, {vr(d,4)}")
                if j == 0:
                    a(extra[t])
                elif j >= bp:
                    for _ in range(cnt[k]):
                        a(rd[n]); n += 1
                    k += 1

    a("s_barrier")
    stamp(a, 2)
    for l in reads(0, F0):
        a(l)
    a("L_g_loop:")
    phase(F0, reads(1, F1), False, ["""s_add_u32 s43, s43, 1
        s_cmp_eq_u32 s43, 3""", "s_cselect_b32 s44, -32768, 16384" if False else """s_cselect_b32 s44, 0xffff8000, s45
        """, "s_cselect_b32 s43, 0, s43\ns_add_u32 s42, s42, 1", ""])
    phase(F1, reads(0, F0), True, ["v_add_u32 v12, s44, v12\nv_add_u32 v13, s44, v13", "v_add_u32 v14, s44, v14\nv_add_u32 v15, s44, v15",
                                   "v_add_u32 v16, s44, v16\nv_add_u32 v17, s44, v17", "s_cmp_lt_u32 s42, 9"])
    a("s_cbranch_scc1 L_g_loop")
    def mm(F, j, t):
        d = ACC + (j * 4 + t) * 4
        return f"v_mfma_f32_16x16x32_bf16 {vr(d,4)}, {vr(F+4*j,4)}, {vr(F+16+4*t,4)}, {vr(d,4)}"
    r1 = reads(1, F1)
    r1 = ["ds_read_b32 v20, v19"] + r1[0:3] + r1[6:8] + r1[3:6] + r1[8:12]
    a("s_waitcnt lgkmcnt(4)")
    for k in range(8):
        a(mm(F0, k // 4, k % 4 if k < 4 else 7 - k))
        for l in r1[2*k:2*k+2]:
            a(l)
    a(f"""s_mov_b32 s38, {f32(QSCALE)}
    s_mov_b32 s39, s38
    s_waitcnt lgkmcnt(4)
    v_readfirstlane_b32 s{PURE}, v20
    s_cmp_lt_u32 s{CT}, 5
    s_cbranch_scc1 L_g_q""")

    def tail(scale, sc):
        def out(p, t):
            d, e = ACC + (2 * p * 4 + t) * 4, ACC + ((2 * p + 1) * 4 + t) * 4
            o = []
            if scale:
                o += [f"v_pk_mul_f32 {vr(x,2)}, {vr(x,2)}, s[38:39]" for x in (d, d + 2, e, e + 2)]
            o += [f"v_cvt_pk_bf16_f32 v{d}, v{d}, v{d+1}", f"v_cvt_pk_bf16_f32 v{d+1}, v{d+2}, v{d+3}",
                  f"v_cvt_pk_bf16_f32 v{d+2}, v{e}, v{e+1}", f"v_cvt_pk_bf16_f32 v{d+3}, v{e+2}, v{e+3}",
                  f"buffer_store_dwordx4 {vr(d,4)}, v18, s[24:27], s{34+p} offen offset:{t*256} {sc}"]
            return o
        seq = []
        for t in range(4):
            seq += [(mm(F1, 0, t), None), (mm(F1, 1, t), (0, t)), (mm(F0, 2, t), None), (mm(F0, 3, t), None)]
        for t in range(4):
            seq += [(mm(F1, 2, t), None), (mm(F1, 3, t), (1, t))]
        pend, n = [], 0
        per = 3 if scale else 2
        for k, (m, g) in enumerate(seq):
            if k == 16:
                a("s_waitcnt lgkmcnt(0)"); n += 1
            a(m); n += 1
            if g:
                pend += [[n + 8, x] for x in out(*g)]
            if pend and pend[0][0] > n:
                w = min(2, pend[0][0] - n)
                a(f"s_nop {w-1}"); n += w
                continue
            for _ in range(per):
                if pend and pend[0][0] <= n:
                    a(pend.pop(0)[1]); n += 1
        while pend:
            if pend[0][0] > n:
                a(f"s_nop {pend[0][0]-n-1}"); n = pend[0][0]
            a(pend.pop(0)[1]); n += 1
    tail(False, "sc1")
    a("L_g_end:")
    a.deferred = lambda: (a(f"L_g_q:\ns_cmp_eq_u32 s{PURE}, 0\ns_cbranch_scc1 L_q_far"), tail(True, ""), a("s_branch L_g_end"))
    a.deferred2 = lambda: (a("L_q_far:"), tail(True, "sc1"), a("s_branch L_g_end"))
    stamp(a, 3)
    a(f"""L_pubflag:
    s_lshl_b32 s36, s{XCD}, 4
    s_add_u32 s36, s36, s{CT}
    s_lshl_b32 s36, s36, 1
    s_and_b32 s37, s{WAVE}, 1
    s_add_u32 s36, s36, s37
    s_lshl_b32 s40, s36, 7
    s_lshl_b32 s36, s36, 4
    s_lshl_b32 s37, s{RBL}, 3
    s_and_b32 s38, s{WAVE}, 2
    s_lshl_b32 s38, s38, 1
    s_add_u32 s37, s37, s38
    s_add_u32 s36, s36, s37
    s_add_u32 s56, s36, {WS_FL}
    s_add_u32 s40, s40, s37
    s_add_u32 s57, s40, {WS_FR}
    s_mov_b32 s58, 1
    s_branch L_att_setup1""")
    a.deferred()


def router(a):
    a("L_router:")
    kc_init(a)
    kc_next(a, 33)
    a(f"""v_and_b32 v5, 1, v1
    v_lshlrev_b32 v5, 11, v5
    v_lshl_add_u32 v14, v4, 4, v5
    v_add_u32 v14, {L_WV}, v14
    L_r_loop:
    s_barrier
    s_lshl_b32 s36, s33, 7
    v_add_u32 v15, s36, v14""")
    for ks in range(2):
        a(f"""ds_read_b128 {vr(F0+12*ks,4)}, v15 offset:{ks*64}
        ds_read_b128 {vr(F0+12*ks+4,4)}, v{12+ks}
        ds_read_b128 {vr(F0+12*ks+8,4)}, v{12+ks} offset:2048""")
    kc_next(a, 33)
    a("""s_add_u32 s43, s43, 1
    s_cmp_eq_u32 s43, 6
    s_cselect_b32 s44, 0xfffec000, s45
    s_cselect_b32 s43, 0, s43
    v_add_u32 v12, s44, v12
    v_add_u32 v13, s44, v13
    s_waitcnt lgkmcnt(0)""")
    for ks in range(2):
        for t in range(2):
            a(f"v_mfma_f32_16x16x32_bf16 {vr(ACC+4*t,4)}, {vr(F0+12*ks,4)}, {vr(F0+12*ks+4+4*t,4)}, {vr(ACC+4*t,4)}")
    a(f"""s_add_u32 s42, s42, 1
    s_cmp_lt_u32 s42, 10
    s_cbranch_scc1 L_r_loop
    s_nop 1
    s_lshl_b32 s36, s{XCD}, 8
    s_lshl_b32 s37, s{RBL}, 7
    s_add_u32 s36, s36, s37
    s_lshl_b32 s37, s{WAVE}, 5
    s_add_u32 s36, s36, s37
    s_mov_b32 s37, {WS_G}""")
    stamp(a, 3)
    for t in range(2):
        a(f"""v_add3_u32 v{14+t}, s36, v3, {16*t}
        v_cvt_pk_bf16_f32 v{26+t}, v{ACC+4*t}, v{ACC+4*t+1}
        v_lshlrev_b32 v{21+t}, 16, v{26+t}
        v_ashrrev_i32 v24, 31, v{21+t}
        v_or_b32 v24, 0x80000000, v24
        v_xor_b32 v{21+t}, v{21+t}, v24
        v_and_b32 v{21+t}, 0xffff0000, v{21+t}
        v_sub_u32 v24, 0xffff, v{14+t}
        v_or_b32 v{21+t}, v{21+t}, v24""")
    top2(a, 21, 22, 25, 46, 47, 48, True)
    a(f"""s_lshr_b32 s36, s36, 1
    s_add_u32 s36, s36, {WS_CAND}
    v_mov_b32 v28, s46
    v_mov_b32 v29, s{TAG}
    v_mov_b32 v30, s47
    v_mov_b32 v31, s{TAG}
    s_mov_b64 exec, 1
    buffer_store_dwordx4 v[28:31], off, s[24:27], s36 sc1
    v_mov_b32 v9, 1
    ds_add_u32 v19, v9 offset:{O_C}
    s_mov_b64 exec, 0xffff""")
    for t in range(2):
        a(f"v_and_b32 v23, 0xffff0000, v{26+t}")
        sigmoid(a, 23, "v23")
        a(f"""v_cvt_pk_bf16_f32 v23, v23, v23
        v_and_b32 v{26+t}, 0xffff0000, v23
        v_lshlrev_b32 v24, 2, v{14+t}
        buffer_store_dword v{26+t}, v24, s[24:27], s37 offen sc1""")
    a(f"""s_mov_b64 exec, 1
    s_lshl_b32 s36, s{XCD}, 5
    s_add_u32 s36, s36, s{LOC}
    s_lshl_b32 s36, s36, 2
    s_add_u32 s36, s36, s{WAVE}
    s_lshl_b32 s36, s36, 2
    s_add_u32 s36, s36, {WS_FL}
    v_mov_b32 v9, 1
    s_waitcnt vmcnt(0)
    buffer_store_dword v29, off, s[24:27], s36 sc1
    ds_add_u32 v19, v9 offset:{O_R}
    s_mov_b64 exec, -1""")
    stamp(a, 4)
    a(f"v_mov_b32 v30, {M_PURE}")
    lds_wait(a, O_FD, 1)
    a("s_branch L_att_setup")


Q, QH, KH, K, V, P, S0, S1, O, M = 32, 36, 38, 40, 44, 52, 64, 80, 96, 112
KA, KHA, VA, QA, QHA, G, G2, XA, XR = 12, 13, 14, 15, 16, 17, 18, 19, 20
TT, NT, HI_ = 33, 34, 35
SQ, SQH = 46, 47


WF, OF, NOF, PA = 32, 92, 9, 128
OL, OH, WL, WH, OUT, LIN, FLG, YA, TOK, VTAG = 148, 149, 150, 152, 156, 159, 160, 161, 162, 163


def outproj_setup(a):
    a(f"""v_and_b32 v164, 15, v1
    v_lshrrev_b32 v165, 4, v1
    v_lshrrev_b32 v5, 1, v165
    v_add_u32 v6, v165, v5
    v_lshlrev_b32 v7, 4, v164
    v_lshl_add_u32 v{OL}, v6, 12, v7
    v_and_b32 v6, 1, v165
    v_lshl_add_u32 v8, v6, 1, v5
    v_mul_u32_u24 v9, {5*4096}, v8
    v_add_u32 v{OH}, v9, v7
    v_add_u32 v{WL}, {L_WO}, v10
    v_add_u32 v{WL+1}, {L_WO+51200}, v10""")
    for t in range(5):
        for j in range(2):
            a(f"""v_lshlrev_b32 v{PA+4*t+2*j}, 16, v{XR+2*t+j}
            v_and_b32 v{PA+4*t+2*j+1}, 0xffff0000, v{XR+2*t+j}""")
    for n in range(3):
        a(f"""v_add_u32 v5, {64*n}, v1
        v_mul_u32_u24 v6, 6554, v5
        v_lshrrev_b32 v6, 16, v6
        v_mul_u32_u24 v7, 10, v6
        v_sub_u32 v7, v5, v7
        v_mul_u32_u24 v6, 1280, v6
        v_lshl_add_u32 v{OUT+n}, v7, 4, v6""")
    a(f"""v_lshl_add_u32 v{OUT+2}, v4, 28, v{OUT+2}
    s_mul_i32 s36, s{WAVE}, 2560
    v_add_u32 v{LIN}, s36, v10
    v_lshlrev_b32 v{FLG}, 2, v3
    v_lshl_add_u32 v{YA}, v165, 4, v30
    v_add_u32 v{TOK}, s51, v164
    s_mul_i32 s56, s51, 1280
    s_lshr_b32 s37, s{LOC}, 2
    s_mul_i32 s37, s37, 160
    s_add_u32 s56, s56, s37
    s_lshr_b32 s57, s51, 5
    s_lshl_b32 s57, s57, 7
    s_add_u32 s57, s57, {WS_FO}
    s_mul_i32 s58, s{XCD}, {XB}
    s_and_b32 s38, s51, 255
    s_lshl_b32 s38, s38, 4
    s_add_u32 s58, s58, s38            ; O pieces
    s_add_u32 s59, s58, 8192
    s_waitcnt vmcnt(5)
    v_sub_f32 v{G2}, 1.0, v{G2}""")
    for i in range(20):
        a(f"v_mul_f32 v{PA+i}, v{G2}, v{PA+i}")


def diag_mask(a, old):
    a(f"""v_lshlrev_b32 v6, 2, v4
    v_sub_u32 v6, v3, v6
    v_mov_b32 v7, 0xff800000""")
    for r in range(0, 16, 2):
        k0, k1 = (r >> 2) * 8 + (r & 3), (r >> 2) * 8 + (r & 3) + 1
        a(f"""v_cmp_le_i32 s[44:45], {k0}, v6
        v_cmp_le_i32 s[48:49], {k1}, v6
        s_nop 0
        v_cndmask_b32_e64 v{S0+r}, v7, 0, s[44:45]
        v_cndmask_b32_e64 v{S0+r+1}, v7, 0, s[48:49]""")
        if old:
            a(f"""v_cndmask_b32_e64 v{M+r}, 0, v7, s[44:45]
            v_cndmask_b32_e64 v{M+r+1}, 0, v7, s[48:49]""")


def attention(a):
    SRC = WS_L
    a("L_att_setup:\ns_mov_b32 s58, 0\nL_att_setup1:\ns_load_dwordx2 s[52:53], s[0:1], 72\ns_mov_b32 s54, 2621440\ns_mov_b32 s55, 0x20000")
    a(f"""s_and_b32 s31, s{LOC}, 1
    s_mul_i32 s40, s{LOC}, 5
    s_lshr_b32 s40, s40, 1            ; c0
    s_sub_u32 s{TT}, 11, s{WAVE}
    s_cmp_lt_u32 s{WAVE}, 4
    s_cselect_b32 s{TT}, s{WAVE}, s{TT}
    {"s_sub_u32 s%d, 7, s%d" % (TT, TT) if OPT["tmap"] == 1 else ""}
    {"s_xor_b32 s%d, s%d, 4" % (TT, WAVE) if OPT["tmap"] == 2 else ""}
    s_add_u32 s36, s{TT}, 1
    s_cmp_eq_u32 s{XCD}, 0
    s_cselect_b32 s{NT}, s36, 9
    s_cselect_b32 s36, 4, 17
    s_movk_i32 s37, 0xff
    s_cselect_b32 s37, 0x3ff, s37
    s_lshl_b32 s36, s36, s{TT}
    s_and_b32 s{HI_}, s36, s37
    s_lshr_b32 s36, s{LOC}, 2
    s_xor_b32 s36, s36, s31
    s_andn2_b32 s41, 1, s36
    s_lshl_b32 s41, s41, 3
    s_xor_b32 s42, s31, 1
    s_lshl_b32 s42, s42, 1
    s_mul_i32 s36, s{XCD}, 240
    s_add_u32 s36, s36, s40
    s_lshl_b32 s43, s36, 12
    s_lshl_b32 s37, s{TT}, 9
    s_add_u32 s36, s43, s37
    s_lshl_b32 s38, s31, 12
    s_add_u32 s{SQ}, s36, s38
    s_lshl_b32 s38, s42, 12
    s_add_u32 s38, s38, s41
    s_add_u32 s{SQH}, s36, s38
    v_lshlrev_b32 v10, 4, v1
    v_and_b32 v3, 31, v1
    v_lshrrev_b32 v4, 5, v1
    v_lshlrev_b32 v5, 4, v3
    v_lshl_add_u32 v{QA}, v4, 12, v5
    v_lshl_add_u32 v{QHA}, v4, 28, v5
    s_mul_i32 s38, s31, {CS}
    s_add_u32 s38, s38, s37
    v_mul_u32_u24 v6, {CS}, v4
    v_add3_u32 v{KA}, v6, v5, s38
    s_mul_i32 s38, s42, {CS}
    s_add_u32 s38, s38, s41
    s_add_u32 s38, s38, s37
    v_add_u32 v6, s38, v5
    v_mov_b32 v9, {L_ONES}
    v_cmp_eq_u32 s[44:45], 0, v4
    v_bfe_u32 v7, v1, 4, 1
    v_and_b32 v8, 3, v1
    v_add_u32 v11, 8, v9
    v_cndmask_b32_e64 v{KHA}, v11, v6, s[44:45]
    v_lshl_add_u32 v6, v7, 2, v8      ; gamma
    v_add_u32 v7, s31, v6
    v_lshrrev_b32 v8, 1, v7
    v_add_u32 v11, s40, v8
    v_lshrrev_b32 v11, 1, v11
    v_xor_b32 v7, v7, v11
    v_and_b32 v7, 1, v7
    v_mul_u32_u24 v8, {CS}, v8
    v_lshl_add_u32 v8, v7, 3, v8
    s_add_u32 s38, s37, {L_V}
    v_add_u32 v8, s38, v8
    v_cmp_gt_u32 s[44:45], 5, v6
    v_bfe_u32 v7, v1, 2, 2
    v_lshl_add_u32 v7, v4, 2, v7
    v_cndmask_b32_e64 v8, v9, v8, s[44:45]
    v_lshl_add_u32 v{VA}, v7, 4, v8""")
    diag_mask(a, True)
    a(f"""s_lshr_b32 s36, s{WAVE}, 2
    s_mul_i32 s37, s36, {L_V}
    s_add_u32 s36, s36, 1
    s_mul_i32 s36, s36, {80*4096}
    s_add_u32 s36, s36, s43
    s_and_b32 s38, s{WAVE}, 3
    s_mul_i32 s38, s38, 3
    v_and_b32 v5, 15, v1
    v_mul_u32_u24 v6, 160, v5
    v_lshrrev_b32 v7, 4, v1
    v_lshl_add_u32 v6, v7, 3, v6
    s_and_b32 s39, s{WAVE}, 3
    s_mul_i32 s44, s39, 2560
    v_add_u32 v{XA}, s44, v6
    s_and_b32 s44, s{LOC}, 3
    s_lshl_b32 s44, s44, {5 if OPT["rowmap"] else 6}
    s_lshl_b32 s45, s{XCD}, 8
    s_add_u32 s48, s44, s45
    s_and_b32 s44, s39, 1
    s_lshl_b32 s44, s44, 4
    s_add_u32 s51, s48, s44
    s_and_b32 s44, s39, 2
    s_lshl_b32 s44, s44, {6 if OPT["rowmap"] else 4}
    s_add_u32 s51, s51, s44
    s_lshl_b32 s39, s{TT}, 5
    s_add_u32 s39, s39, s45
    v_add_lshl_u32 v6, s39, v3, 2
    v_add_lshl_u32 v7, s51, v5, 2
    s_mov_b32 s39, {WS_G}
    v_add_u32 v11, {L_XT}, v{XA}
    v_mov_b32 v30, {M_PURE}
    v_mov_b32 v2, 1
    v_mov_b32 v{VTAG}, s{TAG}
    s_mov_b32 s40, 0""")
    for t in range(5):
        a(f"ds_read_b64 {vr(XR+2*t,2)}, v11 offset:{t*32}")
    for i in range(3):
        if OPT["kfirst"]:
            a(f"""s_add_u32 s44, s{WAVE}, {8*i}
            s_cmp_ge_u32 s44, 12
            s_cselect_b32 s37, {L_V}, 0
            s_cselect_b32 s36, {80*4096}, 0
            s_cselect_b32 s45, 12, 0
            s_add_u32 s36, s36, {80*4096}
            s_add_u32 s36, s36, s43
            s_sub_u32 s44, s44, s45""")
        else:
            a(f"s_add_u32 s44, s38, {i}")
        a(f"""s_lshr_b32 s45, s44, 2
        s_mul_i32 s45, s45, {CS-4096}
        s_lshl_b32 s44, s44, 10
        s_add_u32 s45, s45, s44
        s_add_u32 s45, s45, s37
        s_add_u32 s{4+2*i}, s45, 4096
        s_add_u32 s{5+2*i}, s44, s36""")
    a(f"""s_mov_b32 m0, s4
    s_cmp_eq_u32 s58, 0
    s_cbranch_scc1 L_nopub
    s_mov_b64 exec, 1
    s_waitcnt vmcnt(0)""")
    stamp(a, 4)
    two_flavours(a, lambda sc: a(f"buffer_store_dword v{VTAG}, off, s[24:27], s56 {sc}"))
    if not OPT["rfl"]:
        a(f"""s_cmp_lt_u32 s{CT}, 5
        s_cbranch_scc1 L_norf
        buffer_store_dword v{VTAG}, off, s[24:27], s57 sc1
        L_norf:""")
    a(f"""ds_add_u32 v30, v2 offset:{O_R}
    s_mov_b64 exec, -1
    L_nopub:
    s_waitcnt lgkmcnt(0)
    s_barrier""")
    stamp(a, 5)
    if OPT["kfirst"]:
        a(f"""buffer_load_dwordx4 v10, s[24:27], s5 offen sc1 lds
        s_mov_b32 m0, s6
        buffer_load_dword v{G2}, v7, s[24:27], s39 offen sc1
        buffer_load_dwordx4 {vr(Q,4)}, v{QA}, s[24:27], s{SQ} offen sc1
        buffer_load_dwordx2 {vr(QH,2)}, v{QHA}, s[24:27], s{SQH} offen sc1
        buffer_load_dwordx4 v10, s[24:27], s7 offen sc1 lds
        s_mov_b32 m0, s8
        buffer_load_dword v{G}, v6, s[24:27], s39 offen sc1
        buffer_load_dwordx4 v10, s[24:27], s9 offen sc1 lds""")
    else:
      a(f"""buffer_load_dwordx4 v10, s[24:27], s5 offen sc1 lds
    s_mov_b32 m0, s6
    buffer_load_dword v{G2}, v7, s[24:27], s39 offen sc1
    buffer_load_dwordx4 v10, s[24:27], s7 offen sc1 lds
    s_mov_b32 m0, s8
    buffer_load_dwordx4 {vr(Q,4)}, v{QA}, s[24:27], s{SQ} offen sc1
    buffer_load_dwordx4 v10, s[24:27], s9 offen sc1 lds
    buffer_load_dwordx2 {vr(QH,2)}, v{QHA}, s[24:27], s{SQH} offen sc1
    buffer_load_dword v{G}, v6, s[24:27], s39 offen sc1""")
    if OPT["opw"]:
        for r in (OL, OH, OUT, OUT + 1, OUT + 2, FLG):
            a(f"v_mov_b32 v{r}, 0")
        a(f"s_cmp_ge_u32 s{WAVE}, 4\ns_cbranch_scc1 L_noopset")
    outproj_setup(a)
    a("L_noopset:")
    if OPT["kfirst"] == 2:
        a(f"""s_waitcnt vmcnt(3)
        s_cmp_ge_u32 s{WAVE}, 4
        s_cbranch_scc1 L_kf
        s_waitcnt vmcnt(2)
        L_kf:""")
    else:
        a("s_waitcnt vmcnt(0)")
    a("ds_read_b32 v31, v30")
    lds_add(a, O_B2)
    lds_wait(a, O_B2, 8)
    if OPT["aprio"]:
        a(f"s_setprio {OPT['aprio']}")
    stamp(a, 6)
    off = lambda i: (8 - i) * 512
    rdK = lambda i: f"ds_read_b128 {vr(K,4)}, v{KA} offset:{off(i)}"
    rdKH = lambda i: f"ds_read_b64 {vr(KH,2)}, v{KHA} offset:{off(i)}"
    rdV = lambda i, h: f"ds_read_b64_tr_b16 {vr(V+4*h,2)}, v{VA} offset:{off(i)+256*h}\nds_read_b64_tr_b16 {vr(V+4*h+2,2)}, v{VA} offset:{off(i)+256*h+128}"
    stubs = []
    def halo_check(tval):
        stubs.append(tval)
        a(f"s_bitcmp1_b32 s{HI_}, {tval}\ns_cbranch_scc1 L_hw{tval}\nL_hr{tval}:")
    a("L_att_go:")
    a(rdK(0)); a(rdKH(0)); a(rdV(0, 0))
    halo_check(0)
    a(f"""s_waitcnt lgkmcnt(2)
    v_mfma_f32_32x32x16_bf16 {vr(S0,16)}, {vr(K,4)}, {vr(Q,4)}, {vr(S0,16)}""")
    a(rdK(1))
    a(f"v_mfma_f32_32x32x8_bf16 {vr(S0,16)}, {vr(KH,2)}, {vr(QH,2)}, {vr(S0,16)}")
    a(rdKH(1))
    a(f"""v_readfirstlane_b32 s{PURE}, v31
    s_nop 4
    s_waitcnt lgkmcnt(0)""")

    def softq(S, q):
        for j in range(4):
            a(f"v_exp_f32 v{S+4*q+j}, v{S+4*q+j}")
        for j in range(2):
            a(f"v_cvt_pk_bf16_f32 v{P+2*q+j}, v{S+4*q+2*j}, v{S+4*q+2*j+1}")

    for i in range(9):
        S, SN = (S0, S1) if i % 2 == 0 else (S1, S0)
        halo_check(i + 1)
        if i > 0:
            a("s_waitcnt lgkmcnt(2)")
        if i < 8:
            c = vr(M, 16) if i + 1 == 8 else "0"
            a(f"v_mfma_f32_32x32x16_bf16 {vr(SN,16)}, {vr(K,4)}, {vr(Q,4)}, {c}")
        nread = 0
        if i < 7:
            a(rdK(i + 2)); nread += 1
        softq(S, 0)
        if i > 0:
            a(f"v_mfma_f32_32x32x16_bf16 {vr(O,16)}, {vr(V+4,4)}, {vr(P+4,4)}, {vr(O,16)}")
        a(rdV(i, 1)); nread += 2
        softq(S, 1)
        if i < 8:
            a(f"v_mfma_f32_32x32x8_bf16 {vr(SN,16)}, {vr(KH,2)}, {vr(QH,2)}, {vr(SN,16)}")
        if i < 7:
            a(rdKH(i + 2)); nread += 1
        softq(S, 2)
        a(f"s_waitcnt lgkmcnt({nread})")
        a(f"v_mfma_f32_32x32x16_bf16 {vr(O,16)}, {vr(V,4)}, {vr(P,4)}, {'0' if i == 0 else vr(O,16)}")
        if i < 8:
            a(rdV(i + 1, 0))
        softq(S, 3)
    a(f"""L_att_fin:
    s_waitcnt lgkmcnt(0)
    s_nop 0
    v_mfma_f32_32x32x16_bf16 {vr(O,16)}, {vr(V+4,4)}, {vr(P+4,4)}, {vr(O,16)}
    s_lshl_b32 s36, s{XCD}, 3
    s_add_u32 s36, s36, s{TT}
    s_lshl_b32 s36, s36, 5
    s_add_u32 s36, s36, s{LOC}
    s_lshl_b32 s36, s36, 2
    s_add_u32 s36, s36, {WS_FO}
    s_mov_b32 s37, {f32(2.0**-64)}
    s_mov_b32 s38, {f32(2.0**64 if not OPT['forcefb'] else 2.0**12)}
    s_nop 3
    v_rcp_f32 v8, v{O+12}
    v_cmp_nle_f32 s[44:45], s37, v{O+12}
    v_cmp_nge_f32 vcc, s38, v{O+12}
    v_mul_f32 v8, v8, v{G}
    s_or_b64 vcc, vcc, s[44:45]""")
    if OPT["ochk"]:
        a(f"v_pk_mul_f32 v[6:7], {vr(O,2)}, 0")
        for r in range(1, 6):
            a(f"v_pk_fma_f32 v[6:7], {vr(O+2*r,2)}, 0, v[6:7]")
        a("v_cmp_u_f32 s[44:45], v6, v7\ns_or_b64 vcc, vcc, s[44:45]")
    a(f"""s_cbranch_vccnz L_fallback
    L_att_ok:""")
    for r in range(6):
        a(f"v_pk_mul_f32 {vr(O+2*r,2)}, {vr(O+2*r,2)}, v[8:9] op_sel_hi:[1,0]")
    for r in range(6):
        a(f"v_cvt_pk_bf16_f32 v{P+r}, v{O+2*r}, v{O+2*r+1}")
    def pub(sc):
        a(f"""buffer_store_dwordx4 {vr(P,4)}, v{QA}, s[24:27], s{SQ} offen {sc or OPT["ont"]}
        buffer_store_dwordx2 {vr(P+4,2)}, v{QHA}, s[24:27], s{SQH} offen {sc or OPT["ont2"]}""")
        stamp(a, 7)
        a(f"""s_mov_b64 exec, 1
        ds_add_u32 v30, v2 offset:{O_ATT}
        ds_read_b64 v[62:63], v30 offset:16
        s_waitcnt vmcnt(0)
        buffer_store_dword v{VTAG}, off, s[24:27], s36 {sc}
        s_mov_b64 exec, -1""")
    two_flavours(a, pub)
    stamp(a, 8)
    return stubs


def att_stubs(a, stubs):
    for t in stubs:
        a(f"L_hw{t}:")
        if t >= 8:
            a("s_branch L_att_fin")
            continue
        if t >= 2:
            a(f"s_cmp_eq_u32 s{XCD}, 0\ns_cbranch_scc1 L_att_fin")
        a(f"""s_cmp_eq_u32 s{TT}, {t}
        s_cselect_b32 s36, 1, 2
        s_mov_b32 s50, {SPIN*8}
        L_hs{t}:
        {"s_sleep %d" % OPT["slp"] if OPT["slp"] else ""}
        ds_read_b32 v9, v30 offset:4
        s_sub_u32 s50, s50, 1
        s_cbranch_scc1 L_hr{t}
        s_waitcnt lgkmcnt(0)
        v_cmp_gt_u32 vcc, s36, v9
        s_cbranch_vccnz L_hs{t}
        s_branch L_hr{t}""")
    a(f"""L_fallback:
    s_cmp_lg_u32 s40, 0
    s_cbranch_scc1 L_att_ok
    s_mov_b32 s40, 1""")
    diag_mask(a, False)
    a(f"""v_mov_b32 v8, 0xff800000
    v_add_u32 v5, 4096, v{KA}
    v_add_u32 v6, 4096, v{KHA}
    s_mov_b32 s36, 0
    L_fb_loop:
    ds_read_b128 {vr(K,4)}, v5
    ds_read_b64 {vr(KH,2)}, v6
    v_subrev_u32 v5, 512, v5
    v_subrev_u32 v6, 512, v6
    s_waitcnt lgkmcnt(0)
    s_cmp_eq_u32 s36, 0
    s_cbranch_scc1 L_fb_a
    s_cmp_eq_u32 s36, 8
    s_cbranch_scc1 L_fb_b
    v_mfma_f32_32x32x16_bf16 {vr(S1,16)}, {vr(K,4)}, {vr(Q,4)}, 0
    s_branch L_fb_c
    L_fb_a:
    v_mfma_f32_32x32x16_bf16 {vr(S1,16)}, {vr(K,4)}, {vr(Q,4)}, {vr(S0,16)}
    s_branch L_fb_c
    L_fb_b:
    v_mfma_f32_32x32x16_bf16 {vr(S1,16)}, {vr(K,4)}, {vr(Q,4)}, {vr(M,16)}
    L_fb_c:
    v_mfma_f32_32x32x8_bf16 {vr(S1,16)}, {vr(KH,2)}, {vr(QH,2)}, {vr(S1,16)}
    s_nop 11""")
    for r in range(0, 16, 2):
        a(f"v_max3_f32 v8, v8, v{S1+r}, v{S1+r+1}")
    a(f"""s_add_u32 s36, s36, 1
    s_cmp_lt_u32 s36, s{NT}
    s_cbranch_scc1 L_fb_loop
    v_mov_b32 v9, v8
    s_nop 1
    v_permlane32_swap_b32 v8, v9
    v_max_f32 v8, v8, v9
    v_sub_f32 v8, 0, v8
    v_and_b32 v5, 0xffff0000, v8
    v_sub_f32 v8, v8, v5
    v_and_b32 v6, 0xffff0000, v8
    v_sub_f32 v8, v8, v6
    v_lshrrev_b32 v5, 16, v5
    v_or_b32 v5, v5, v6
    v_lshrrev_b32 v8, 16, v8
    v_cmp_eq_u32 s[44:45], 0, v4
    s_nop 1
    v_cndmask_b32_e64 v{QH}, v5, v{QH}, s[44:45]
    v_cndmask_b32_e64 v{QH+1}, v8, v{QH+1}, s[44:45]
    s_branch L_att_go""")


def outproj(a):
    a(f"""s_cmp_lt_u32 s{WAVE}, 4
    s_cbranch_scc1 L_op_main
    s_waitcnt lgkmcnt(0)""")
    finish(a)
    pl = f"buffer_load_dword v6, v{FLG}, s[24:27], s57 offen sc1"
    a(f"""L_op_main:
    {"s_setprio 0" if OPT["aprio"] else ""}
    {"" if OPT["gate"] else pl}""")
    lds_wait(a, O_WO, 1)
    stamp(a, 9)

    def wread(s, t):
        f = WF + 20 * (s % 3) + 4 * t
        a(f"ds_read_b128 {vr(f,4)}, v{WL+s//10} offset:{(s%10)*5120+t*1024}")

    def oload(s):
        r = OF + 4 * (s % NOF)
        if s < 16:
            a(f"buffer_load_dwordx4 {vr(r,4)}, v{OL}, s[24:27], s58 offen {OPT['olf'].replace('_', ' ')}\ns_add_u32 s58, s58, {5*4096}")
        else:
            a(f"buffer_load_dwordx4 {vr(r,4)}, v{OH}, s[24:27], s59 offen {OPT['olf'].replace('_', ' ')}\ns_add_u32 s59, s59, {20*4096}")
    a(f"""s_mov_b32 s50, {SPIN*8}
    L_tv:
    v_readfirstlane_b32 s42, v62
    v_readfirstlane_b32 s43, v63
    s_cmp_lg_u32 s42, 0
    s_cbranch_scc1 L_to
    ds_read_b64 v[62:63], v30 offset:16
    s_sub_u32 s50, s50, 1
    s_waitcnt lgkmcnt(0)
    s_cbranch_scc0 L_tv
    L_to:
    s_and_b32 s42, s42, 0xffff""")
    npre = OPT["npre"]
    for s in range(npre):
        for t in range(5):
            wread(s, t)
    a(f"""v_cmp_eq_u32 s[44:45], s43, v{TOK}
    v_cmp_eq_u32 s[48:49], s42, v{TOK}""")
    if OPT["gate"]:
        lds_wait(a, O_ATT, OPT["gate"])
    poll(a, pl, [6], pre=not OPT["gate"])
    stamp(a, 10)
    NL0 = OPT["nl0"]
    assert NL0 <= 3
    for s in range(NL0):
        oload(s)
    for s in range(npre, 3):
        for t in range(5):
            wread(s, t)
    a(f"""s_or_b64 s[48:49], s[44:45], s[48:49]
    s_cbranch_scc0 L_op_loop
    v_mov_b32 v7, 320
    v_cndmask_b32_e64 v7, 0, v7, s[44:45]
    v_add_u32 v7, v7, v{YA}
    s_mov_b32 s50, {SPIN*8}
    s_waitcnt lgkmcnt(0)
    L_yw:
    ds_read_b32 v9, v30 offset:{O_Y}""")
    for t in range(5):
        a(f"ds_read_b128 {vr(104+4*t,4)}, v7 offset:{L_Y-L_MISC+t*64}")
    a(f"""s_sub_u32 s50, s50, 1
    s_waitcnt lgkmcnt(0)
    s_cbranch_scc1 L_op_loop
    v_cmp_ne_u32 vcc, 1, v9
    s_cbranch_vccnz L_yw
    s_mov_b64 exec, s[48:49]""")
    for i in range(20):
        a(f"v_fmac_f32 v{PA+i}, v{G2}, v{104+i}")
    a("s_mov_b64 exec, -1\nL_op_loop:")
    issued = NL0
    for s in range(20):
        a(f"s_waitcnt vmcnt({issued-1-s}) lgkmcnt({10 if s < 18 else (6 if s == 18 else 1) - (OPT['gate'] == 8)})")
        for t in range(5):
            a(f"v_mfma_f32_16x16x32_bf16 {vr(PA+4*t,4)}, {vr(WF+20*(s%3)+4*t,4)}, {vr(OF+4*(s%NOF),4)}, {vr(PA+4*t,4)}")
            if s == 19 and OPT["epi2"] and t < 4:
                a("s_nop 0")
            if s < 17:
                wread(s + 3, t)
            if t in (0, 2) and issued < min(20, s + 1 + OPT["nla"]):
                oload(issued); issued += 1
            if s == 17 and t == 0 and OPT["gate"] != 8:
                a(f"ds_read_b32 v9, v30 offset:{O_ATT}")
    a("L_op_end:")
    stamp(a, 11)
    if OPT["gate"] != 8:
        lds_wait(a, O_ATT, 8, pre=True)
    elif not OPT["epi2"]:
        a("s_nop 3")
    for t in range(5):
        a(f"""v_cvt_pk_bf16_f32 v{WF+2*t}, v{PA+4*t}, v{PA+4*t+1}
        v_cvt_pk_bf16_f32 v{WF+2*t+1}, v{PA+4*t+2}, v{PA+4*t+3}
        ds_write_b64 v{XA}, {vr(WF+2*t,2)} offset:{t*32}""")
    for n in range(3):
        a(f"ds_read_b128 {vr(OF+16+4*n,4)}, v{LIN} offset:{n*1024}")
    for n in range(3):
        a(f"s_waitcnt lgkmcnt({2-n})\nbuffer_store_dwordx4 {vr(OF+16+4*n,4)}, v{OUT+n}, s[52:55], s56 offen {OPT['osc'].replace('_', ' ')}")
    stamp(a, 12)
    if OPT["probe"]:
        pa, pb = [int(x) for x in OPT["probe"].split("_")]
        if OPT["pskew"] >= 0:
            k = OPT["pskew"]
            a(f"""v_and_b32 v5, 7, v1
            v_lshlrev_b32 v5, 7, v5
            s_mov_b32 s36, {WS_ST + 40*128}
            buffer_load_dword v6, v5, s[24:27], s36 offen sc1
            s_waitcnt vmcnt(0)""")
            for i in range(8):
                a(f"v_readlane_b32 s{4+i}, v6, {i}")
            a("s_mov_b32 s62, s4\ns_mov_b32 s63, s4")
            for i in range(1, 8):
                a(f"s_min_u32 s62, s62, s{4+i}\ns_max_u32 s63, s63, s{4+i}")
            a(f"s_add_u32 s64, {'s63' if k == 8 else 's%d' % (4+k)}, 100")
            pa, pb = 0, 1
        a(f"""s_sub_u32 s36, s{62+2*pb}, s{62+2*pa}
        {'s_lshr_b32 s36, s36, 1' if OPT['pcyc'] else 's_lshl_b32 s36, s36, 3'}
        s_min_u32 s36, s36, 20000
        s_lshl_b32 s37, s{WAVE}, 8
        s_add_u32 s37, s37, s2
        s_cmp_lg_u32 s37, {OPT["pwg"]}
        s_cselect_b32 s36, 0, s36
        s_memrealtime s[38:39]
        s_waitcnt lgkmcnt(0)
        s_add_u32 s36, s36, s38
        L_probe:
        s_sleep 2
        s_memrealtime s[38:39]
        s_waitcnt lgkmcnt(0)
        s_sub_u32 s37, s38, s36
        s_cmp_lt_i32 s37, 0
        s_cbranch_scc1 L_probe""")
    finish(a, True)


def wo_offsets(a):
    for n in range(5):
        a(f"""v_add_u32 v5, {64*n}, v1
        v_mul_u32_u24 v6, 6554, v5
        v_lshrrev_b32 v6, 16, v6
        v_mul_u32_u24 v8, 10, v6
        v_sub_u32 v8, v5, v8
        v_mul_u32_u24 v6, 1280, v6
        v_lshl_add_u32 v{WOV+n}, v8, 4, v6""")


WOV = 160
def wo_groups(a, n0, n1):
    lp = uid("wo")
    a(f"""s_mov_b32 m0, {L_WO+n0*4096}
    s_add_u32 s41, s43, {n0*4096}
    s_movk_i32 s44, 0x1000
    {lp}:""")
    for j in range(4):
        a(f"buffer_load_dwordx4 v10, s[24:27], s41 offen offset:{j*1024} sc1 lds")
    a(f"""s_add_u32 m0, m0, s44
    s_add_u32 s41, s41, s44
    s_cmp_lt_u32 m0, {L_WO+n1*4096}
    s_cbranch_scc1 {lp}""")


def purity(a):
    a(f"""v_cmp_ne_u32 vcc, s{TAG}, v12
    v_cmp_ne_u32 s[44:45], s35, v13
    s_or_b64 vcc, vcc, s[44:45]
    s_cselect_b32 s36, 0, {0 if OPT['forceimp'] else 1}
    v_mov_b32 v5, s36
    ds_write_b32 v30, v5
    s_waitcnt lgkmcnt(0)""")


def helper1(a):
    a(f"""L_help:
    s_cmp_eq_u32 s{WAVE}, 9
    s_cbranch_scc1 L_ffn
    s_load_dwordx2 s[8:9], s[0:1], 32
    s_load_dwordx2 s[10:11], s[0:1], 64
    v_lshlrev_b32 v10, 4, v1""")
    a(f"""v_mov_b32 v16, {"0x3f80" if OPT["ones"] else "0x3f803f80"}
    v_mov_b32 v17, {"0" if OPT["ones"] else "0x3f803f80"}
    v_mov_b32 v18, 0x3f803f80
    v_mov_b32 v19, 0x3f80
    v_add_u32 v5, {L_ONES}, v10""")
    for i in range(5):
        a(f"ds_write_b128 v5, v[16:19] offset:{i*1024}")
    a(f"""v_mov_b32 v30, {M_PURE}
    v_mov_b32 v6, 0
    v_lshl_add_u32 v7, v1, 2, v30
    ds_write_b32 v7, v6""")
    if OPT["prio"]:
        a("s_setprio 3")
    wo_offsets(a)
    a("s_waitcnt lgkmcnt(0)")
    epoch_load(a)
    srd(a, SX, 4, 2621440)
    srd(a, SS, 12, WS_END)
    srd(a, SA, 8, 1280)
    srd(a, SB, 10, 1280)
    a(f"""s_cmp_lg_u32 s{CT}, 15
    s_cbranch_scc1 L_nowv
    s_mov_b32 m0, {L_WV}
    s_nop 0
    buffer_load_dwordx4 v10, s[52:55], 0 offen lds
    buffer_load_dwordx4 v10, s[52:55], 0 offen offset:1024 lds
    s_mov_b32 m0, {L_WV+2048}
    s_nop 0
    buffer_load_dwordx4 v10, s[56:59], 0 offen lds
    buffer_load_dwordx4 v10, s[56:59], 0 offen offset:1024 lds
    L_nowv:
    s_getreg_b32 s35, hwreg(HW_REG_XCC_ID, 0, 4)
    s_lshr_b32 s34, s{LOC}, 2
    s_mul_i32 s34, s34, 160
    s_mul_i32 s33, s{LOC}, 5
    s_lshr_b32 s33, s33, 1             ; c0
    v_bfe_u32 v5, v1, 2, 1
    v_lshl_add_u32 v6, v5, 1, s33
    v_lshrrev_b32 v6, 3, v6
    v_bfe_u32 v7, v1, 3, 2             ; section (3 = router/gate)
    v_cmp_eq_u32 s[44:45], 3, v7
    v_and_b32 v8, 3, v1
    v_lshlrev_b32 v8, 2, v8
    v_cndmask_b32_e64 v5, v6, v5, s[44:45]
    v_mad_u32_u24 v5, v7, 10, v5
    v_lshl_add_u32 v11, v5, 4, v8
    v_and_b32 v7, 1, v7
    v_mad_u32_u24 v5, v7, 10, v6
    v_add_u32 v5, 10, v5
    v_lshl_add_u32 v15, v5, 7, v8
    v_and_b32 v14, 31, v1
    v_lshlrev_b32 v14, 3, v14
    s_lshl_b32 s42, s{XCD}, 8
    s_add_u32 s42, s42, {WS_XID}""")
    epoch_fin(a)
    stamp(a, 1)
    a(f"""s_waitcnt vmcnt(0)
    s_barrier
    s_lshl_b32 s36, s{LOC}, 3
    s_add_u32 s36, s36, s42
    v_mov_b32 v8, s{TAG}
    v_mov_b32 v9, s35
    v_mov_b32 v5, 0
    s_mov_b64 exec, 1
    buffer_store_dwordx2 v[8:9], v5, s[24:27], s36 offen {'sc1' if OPT['xsc'] else ''}
    s_mov_b64 exec, -1""")
    def qtouch(part):
        if OPT["qown"]:
            l = uid("nq")
            a(f"""s_cmp_ge_u32 s{CT}, 5
            s_cbranch_scc1 {l}
            s_mul_i32 s36, s{XCD}, {XB}
            s_lshl_b32 s37, s{LOC}, 15
            s_add_u32 s36, s36, s37
            s_add_u32 s36, s36, {part*16384}
            s_add_u32 s37, s36, 8192
            v_lshlrev_b32 v5, 7, v1
            buffer_load_dword v167, v5, s[24:27], s36 offen sc1
            buffer_load_dword v167, v5, s[24:27], s37 offen sc1""")
            if part:
                a(f"""s_mul_i32 s36, s{XCD}, 10
                s_add_u32 s36, s36, s{LOC}
                s_mul_i32 s36, s36, 3072
                s_add_u32 s36, s36, {WS_P1}
                s_mov_b64 exec, 0xffffff
                buffer_load_dword v167, v5, s[24:27], s36 offen sc1
                s_mov_b64 exec, -1""")
            a(f"{l}:")
            return
        a(f"""s_mul_i32 s36, s{XCD}, {XB}
        s_mul_i32 s37, s{LOC}, {86*128}
        s_min_u32 s37, s37, {(2560-86)*128}
        s_add_u32 s36, s36, s37
        s_add_u32 s36, s36, {part*43*128}
        v_min_u32 v5, 42, v1
        v_lshlrev_b32 v5, 7, v5
        buffer_load_dword v167, v5, s[24:27], s36 offen sc1""")
        if part:
            a(f"""s_mul_i32 s36, s{XCD}, 30
            s_add_u32 s36, s36, s{LOC}
            s_lshl_b32 s36, s36, 10
            s_add_u32 s36, s36, {WS_P1}
            s_mov_b64 exec, 0xff
            buffer_load_dword v167, v5, s[24:27], s36 offen sc1
            s_mov_b64 exec, -1""")
    a(f"""s_and_b32 s38, s{LOC}, 3
    s_lshl_b32 s38, s38, 5
    s_lshl_b32 s39, s{XCD}, 8
    s_add_u32 s38, s38, s39
    s_mul_i32 s38, s38, 1280
    s_add_u32 s38, s38, s34
    s_add_u32 s39, s38, {128*1280}""")
    side = {i: [] for i in range(10)}
    def spread(items, spec):
        a0, a1 = [int(x) for x in spec.split("_")]
        n = a1 - a0 + 1
        for k, it in enumerate(items):
            side[a0 + k * n // len(items)].append(it)
    spread([f"""s_mov_b32 m0, {L_XT+n*1024}
        s_nop 0
        buffer_load_dwordx4 v{WOV+n%5}, s[16:19], s{38+n//5} offen lds""" for n in range(10)], OPT["xs"])
    a(f"""s_cmp_lg_u32 s{CT}, 15
    s_cbranch_scc1 L_h_g""")
    if OPT["fwarm"]:
        a(f"""s_lshl_b32 s36, s{XCD}, 10
        s_add_u32 s36, s36, {WS_FO}
        s_lshl_b32 s37, s{XCD}, 9
        s_add_u32 s37, s37, {WS_FL}
        v_and_b32 v5, 7, v1
        v_lshlrev_b32 v5, 7, v5
        v_lshrrev_b32 v6, 1, v5
        s_mov_b64 exec, 0xff
        buffer_load_dword v167, v5, s[24:27], s36 offen sc1
        buffer_load_dword v167, v6, s[24:27], s37 offen sc1
        s_mov_b64 exec, -1
        buffer_load_dword v167, v14, s[24:27], s42 offen sc1""")
    for i in range(9):
        a("s_barrier")
    lds_wait(a, O_R, 4)
    for i in range(7):
        for it in side[i]:
            a(it)
    a("""buffer_load_dwordx2 v[12:13], v14, s[24:27], s42 offen sc1
    s_waitcnt vmcnt(0)""")
    lds_add(a, O_FD)
    a("s_branch L_h_p\nL_h_g:")
    for i in range(7):
        if OPT["qat"] == i:
            qtouch(0)
        if OPT["qat2"] == i:
            qtouch(1)
        for it in side[i]:
            a(it)
        if i < 6:
            a("s_barrier")
    a(f"""buffer_load_dwordx2 v[12:13], v14, s[24:27], s42 offen sc1
    s_barrier
    s_barrier
    L_h_p:
    s_waitcnt vmcnt(0)""")
    purity(a)
    for it in side[8]:
        a(it)
    a(f"""s_cmp_eq_u32 s{CT}, 15
    s_cbranch_scc1 L_h_q
    s_barrier
    L_h_q:""")
    for it in side[9]:
        a(it)
    lds_wait(a, O_R, 4)
    a(f"""s_lshl_b32 s36, s{XCD}, 9
    s_add_u32 s36, s36, {WS_FL}""")
    stamp(a, 2)
    poll(a, "buffer_load_dword v12, v11, s[24:27], s36 offen sc1", [12])
    stamp(a, 4)
    a(f"""s_lshl_b32 s36, s{XCD}, 12
    s_add_u32 s36, s36, {WS_FR-4096}""")
    if OPT["rfl"]:
        a(f"""s_lshl_b32 s37, s{CT}, 8
        s_lshl_b32 s38, s{RBL}, 3
        s_add_u32 s37, s37, s38
        s_add_u32 s37, s37, s36
        s_add_u32 s37, s37, 4096
        v_lshlrev_b32 v5, 7, v1
        v_mov_b32 v8, s{TAG}
        v_mov_b32 v9, s{TAG}
        s_mov_b64 exec, 3
        s_barrier
        buffer_store_dwordx2 v[8:9], v5, s[24:27], s37 offen sc1
        s_mov_b64 exec, -1""")
        if OPT["rfl"] == 1:
            lds_wait(a, O_B2, OPT["fdel"])
    else:
        a("s_barrier")
    if OPT["rfl"] != 2:
        a("buffer_load_dword v12, v15, s[24:27], s36 offen sc1")
    fw = "buffer_load_dword v12, v16, s[24:27], s45 offen sc1"
    a(f"""s_lshr_b32 s43, s{LOC}, 2
    s_mul_i32 s43, s43, 102400
    s_add_u32 s43, s43, {WS_WP}
    s_mov_b32 s45, {WS_FW}
    v_lshrrev_b32 v5, 2, v1
    v_and_b32 v6, 3, v1
    v_lshlrev_b32 v6, 2, v6
    v_lshl_add_u32 v16, v5, 7, v6
    v_mov_b32 v17, 1
    v_mov_b32 v18, 2
    s_cmp_eq_u32 s{XCD}, 0
    s_cbranch_scc1 L_nofr""")
    if OPT["rfl"] == 2:
        a(f"""s_add_u32 s40, s12, s36
        s_addc_u32 s41, s13, 0
        s_lshr_b32 s37, s33, 3
        s_lshl_b32 s37, s37, 7
        s_add_u32 s46, s40, s37
        s_addc_u32 s47, s41, 0
        s_add_u32 s37, s33, 2
        s_lshr_b32 s37, s37, 3
        s_lshl_b32 s37, s37, 7
        s_add_u32 s48, s40, s37
        s_addc_u32 s49, s41, 0
        s_mov_b32 s38, s{TAG}
        s_mov_b32 s39, s{TAG}
        s_mov_b32 s50, {OPT["ntry"]}
        s_waitcnt vmcnt(0)
        L_sfr:
        s_load_dwordx4 s[4:7], s[46:47], 1280 glc
        s_load_dwordx4 s[8:11], s[48:49], 1280 glc
        s_load_dwordx4 s[52:55], s[46:47], 2560 glc
        s_load_dwordx4 s[56:59], s[48:49], 2560 glc
        s_waitcnt lgkmcnt(0)
        s_xor_b64 s[40:41], s[4:5], s[38:39]""")
        for p in (6, 8, 10, 52, 54, 56, 58):
            a(f"s_xor_b64 s[{p}:{p+1}], s[{p}:{p+1}], s[38:39]\ns_or_b64 s[40:41], s[40:41], s[{p}:{p+1}]")
        a("""s_cbranch_scc0 L_nofr
        s_sub_u32 s50, s50, 1
        s_cmp_lg_u32 s50, 0
        s_cbranch_scc1 L_sfr""")
    poll(a, "buffer_load_dword v12, v15, s[24:27], s36 offen sc1", [12], pre=OPT["rfl"] != 2)
    a("L_nofr:")
    lds_wait(a, O_B2, OPT["hdel"])
    stamp(a, 7)
    a(f"""s_cmp_eq_u32 s{XCD}, 0
    s_cbranch_scc1 L_wlate
    s_mul_i32 s36, s{XCD}, 240
    s_add_u32 s36, s36, s33
    s_lshl_b32 s36, s36, 12
    s_add_u32 s36, s36, {(WS_L - XB + 80*4096) & 0xffffffff}""")
    for q in (3, 2, 1, 0):
        if q == 1:
            a(fw)
        for sec in range(2):
            for j in range(3):
                a(f"""s_mov_b32 m0, {sec*L_V + j*CS + q*1024}
                s_add_u32 s37, s36, {sec*80*4096 + j*4096 + q*1024}
                buffer_load_dwordx4 v10, s[24:27], s37 offen sc1 lds""")
    a(f"""s_waitcnt vmcnt(13)
    ds_write_b32 v30, v17 offset:4
    s_waitcnt vmcnt(12)
    v_cmp_ne_u32 vcc, s{TAG}, v12
    s_cbranch_vccz L_wok
    L_wlate:
    s_waitcnt vmcnt(0)
    ds_write_b32 v30, v18 offset:4 """)
    poll(a, fw, [12])
    a("L_wok:")
    stamp(a, 6)
    wo_groups(a, 0, 3)
    a("""s_waitcnt vmcnt(12)
    ds_write_b32 v30, v18 offset:4""")
    stamp(a, 8)
    if OPT["wdl"]:
        wo_groups(a, 3, 20)
        lds_wait(a, O_W, 1)
        wo_groups(a, 20, 25)
    else:
        wo_groups(a, 3, 25)
    a("s_waitcnt vmcnt(0)")
    lds_add(a, O_WO)
    a("s_waitcnt lgkmcnt(0)")
    stamp(a, 9)
    a(f"""s_cmp_lg_u32 s2, 255
    s_cbranch_scc1 L_h1_end
    s_mov_b32 s36, {WS_P2}
    v_min_u32 v5, 59, v1
    v_lshlrev_b32 v5, 10, v5""")
    lds_wait(a, 16, 1)
    tag_bytes(a)
    a(f"s_mov_b32 s50, {SPIN}\nL_ep:")
    for i in range(4):
        a(f"buffer_load_dwordx4 {vr(32+4*i,4)}, v5, s[24:27], s36 offen offset:{i*256} sc1")
    strip_tags(a, [32, 36, 40, 44], True)
    a("""s_sub_u32 s50, s50, 1
    s_cbranch_scc1 L_epo
    s_cbranch_vccnz L_ep
    L_epo:""")
    a(f"s_mov_b32 s36, {WS_EP}")
    flag_store(a, 36, False)
    a("L_h1_end:")
    finish(a)


def tag_bytes(a):
    a(f"""s_and_b32 s52, s{TAG}, 0xff
    s_bfe_u32 s53, s{TAG}, 0x80008
    s_bfe_u32 s54, s{TAG}, 0x80010
    s_lshr_b32 s55, s{TAG}, 24""")


def strip_tags(a, regs, waits=None):
    a("v_mov_b32 v9, 0")
    for i, r in enumerate(regs):
        if waits:
            a(f"s_waitcnt vmcnt({len(regs)-1-i})")
        for j in range(4):
            a(f"v_xor_b32 v{r+j}, s{52+j}, v{r+j}")
        a(f"v_or3_b32 v9, v9, v{r}, v{r+1}\nv_or3_b32 v9, v9, v{r+2}, v{r+3}")
    a("v_and_b32 v9, 0xff, v9\nv_cmp_ne_u32 vcc, 0, v9")


def sel_by_g(a, o, b, st, tag=True):
    a(f"""v_cndmask_b32_e64 v{o}, v{b}, v{b+st}, s[44:45]
    v_cndmask_b32_e64 v{o}, v{o}, v{b+2*st}, s[46:47]
    v_cndmask_b32_e64 v{o}, v{o}, v{b+3*st}, s[48:49]""")
    if tag:
        a(f"v_mov_b32 v{o+1}, s{TAG}")


def ffn(a):
    a(f"""L_ffn:
    s_load_dwordx4 s[8:11], s[0:1], 40
    s_load_dwordx2 s[40:41], s[0:1], 56
    s_load_dwordx2 s[44:45], s[0:1], 16
    s_load_dwordx2 s[46:47], s[0:1], 72
    v_lshlrev_b32 v10, 4, v1
    s_mul_i32 s33, s{XCD}, 30
    s_add_u32 s33, s33, s{LOC}         ; job
    s_mul_i32 s34, s33, 6554
    s_lshr_b32 s34, s34, 16            ; b
    s_mul_i32 s35, s34, 10
    s_sub_u32 s35, s33, s35
    v_lshrrev_b32 v5, 3, v1
    v_and_b32 v7, 7, v1
    v_mul_u32_u24 v6, 3072, v5
    v_lshl_add_u32 v11, v7, 4, v6
    v_mul_u32_u24 v6, 1280, v5
    v_lshl_add_u32 v12, v7, 4, v6
    v_bfe_u32 v6, v1, 2, 2
    v_lshl_add_u32 v6, v4, 3, v6
    v_lshlrev_b32 v6, 7, v6
    v_and_b32 v8, 3, v1
    v_lshl_add_u32 v6, v8, 3, v6
    v_add_u32 v13, {L_FW}, v6
    v_mov_b32 v30, {M_PURE}
    s_mul_i32 s38, s35, 64*3072
    s_lshl_b32 s36, s34, 7
    s_add_u32 s38, s38, s36
    s_mul_i32 s39, s34, 64*1280
    s_lshl_b32 s36, s35, 7
    s_add_u32 s39, s39, s36
    s_waitcnt lgkmcnt(0)""")
    epoch_load(a)
    srd(a, SX, 4, 2621440)
    srd(a, SW, 40, 1966080)
    srd(a, SS, 12, WS_END)
    srd(a, SA, 8, 1966080)
    srd(a, SB, 10, 1966080)
    epoch_fin(a)
    stamp(a, 1)
    if OPT["fprio"]:
        a(f"s_setprio {OPT['fprio']}")
    def weights(n0=0, n1=24):
        for m in range(3):
            for i in range(8):
                if not n0 <= m * 8 + i < n1:
                    continue
                s_, v_, so, st = ((SA, 11, 38, 3072), (SB, 11, 38, 3072), (SW, 12, 39, 1280))[m]
                a(f"""s_mov_b32 m0, {L_FW+m*8192+i*1024}
                s_add_u32 s36, s{so}, {i*8*st}
                buffer_load_dwordx4 v{v_}, s[{s_}:{s_+3}], s36 offen {OPT['fnt']} lds""")
    cl = "buffer_load_dwordx4 v[24:27], v10, s[24:27], s51 offen sc1"
    def touch():
        a(f"""s_mul_i32 s36, s{XCD}, {XB}
        s_sub_u32 s37, s36, {XB}
        s_max_i32 s37, s37, 0
        s_load_dword s3, s[44:45], 0
        s_load_dword s3, s[12:13], s36
        s_load_dword s3, s[8:9], 0
        s_load_dword s3, s[10:11], 0
        s_load_dword s3, s[40:41], 0
        s_load_dword s3, s[12:13], s37
        s_add_u32 s36, s36, {XB-64}
        s_mul_i32 s37, s{XCD}, {256*1280}
        s_load_dword s3, s[12:13], s36
        {"s_load_dword s3, s[46:47], s37" if OPT["otch"] else ""}
        s_load_dword s3, s[6:7], 0
        s_mov_b32 s36, {2457600-64}
        s_load_dword s3, s[6:7], s36""")
    if OPT["stl"] == 1 and OPT["stw"]:
        touch()
    a(f"""    s_mov_b32 s51, {WS_CAND}
    s_cmp_lg_u32 s{CT}, 15
    s_cbranch_scc1 L_f_w""")
    for i in range(10):
        if (OPT["stl"] == 1 and not OPT["stw"] and i == 0) or (OPT["stl"] == 2 and i == 1):
            touch()
        a("s_barrier")
    a(f"""s_waitcnt lgkmcnt(0)
    s_mov_b32 s3, 1
    s_mov_b32 s50, {SPIN}
    s_branch L_f_b1
    L_f_w:""")
    late = 0
    fws = [int(x) for x in OPT["fws"].split("_") if x]
    OPT["fwe"] = sum(fws)
    NW = 16 if OPT["wdl"] else 24
    for i in range(9):
        a("s_barrier")
        if i == 0 and OPT["stl"] == 2 and OPT["stw"]:
            touch()
        if i == 8:
            a("s_waitcnt lgkmcnt(0)")
        if i < 8:
            if OPT["fwm"]:
                weights(3 * i, 3 * i + 3)
            if i < len(fws):
                weights(NW - sum(fws[:i+1]), NW - sum(fws[:i]))
    a(cl)
    if not OPT["fwm"]:
        weights(OPT["fskip"], NW - OPT["fwe"])
        late += NW - OPT["fwe"] - OPT["fskip"]
    def frags(ms=(0, 1) if OPT["wdl"] else (0, 1, 2)):
        if OPT["wdl"] == 2 and len(ms) == 2:
            weights(16, 24)
        for m in ms:
            for t in range(4):
                for ks in range(2):
                    o = m * 8192 + ks * 4096 + t * 32
                    r = 64 + m * 32 + t * 8 + ks * 4
                    a(f"""ds_read_b64_tr_b16 v[{r}:{r+1}], v13 offset:{o}
                    ds_read_b64_tr_b16 v[{r+2}:{r+3}], v13 offset:{o+512}""")
                if t & 1:
                    a("s_waitcnt lgkmcnt(4)")
        a("s_waitcnt lgkmcnt(0)")
        if OPT["wdl"] == 1 and len(ms) == 2:
            weights(16, 24)
    a(f"""s_mov_b32 s3, 0
    s_mov_b32 s50, {SPIN}
    s_barrier
    s_waitcnt vmcnt({late})
    L_f_chk:
    v_xor_b32 v9, s{TAG}, v25
    v_bitop3_b32 v9, v9, v27, s{TAG} bitop3:0xf6
    v_cmp_ne_u32 vcc, 0, v9
    s_cbranch_vccz L_f_ok
    s_sub_u32 s50, s50, 1
    s_cbranch_scc1 L_f_ok
    s_cmp_eq_u32 s3, 2
    s_cbranch_scc1 L_f_again
    s_cmp_eq_u32 s3, 1
    s_cbranch_scc1 L_f_b1
    s_cmp_eq_u32 s50, {SPIN-1 if OPT["a2"] else -1}
    s_cbranch_scc1 L_f_again
    s_waitcnt vmcnt(0)""")
    frags()
    a(f"""s_mov_b32 s3, 1
    s_branch L_f_again
    L_f_b1:
    s_barrier
    s_mov_b32 s3, 2
    L_f_again:
    {cl}
    s_waitcnt vmcnt(0)
    s_branch L_f_chk
    L_f_ok:""")
    stamp(a, 3)
    tag_bytes(a)
    top2(a, 24, 26, 21, 40, 41, 44)
    key_decode(a, 40, 42, 46, 36)
    key_decode(a, 41, 43, 47, 36)
    a(f"""v_mov_b32 v16, s42
    v_mov_b32 v17, s43
    v_mov_b32 v18, s46
    v_mov_b32 v19, s47
    v_or_b32 v16, 0x10000, v16
    ds_write_b128 v30, v[16:19] offset:16
    v_mov_b32 v20, s42
    v_and_b32 v6, 1, v1
    v_cmp_eq_u32 s[44:45], 0, v6
    s_lshl_b32 s36, s35, 7
    s_nop 0
    v_cndmask_b32_e64 v7, v17, v20, s[44:45]
    v_mul_u32_u24 v7, 1280, v7
    v_lshl_add_u32 v7, v4, 4, v7
    s_cmp_lg_u32 s{CT}, 15
    s_cbranch_scc1 L_f_job""")
    if OPT["wdl"]:
        lds_add(a, O_W)
    a(f"""s_branch L_f_gather
    L_f_job:
    buffer_load_dwordx4 v[24:27], v7, s[16:19], s36 offen
    buffer_load_dwordx4 v[160:163], v7, s[16:19], s36 offen offset:64
    v_cmp_eq_u32 s[44:45], 1, v4
    v_cmp_eq_u32 s[46:47], 2, v4
    v_cmp_eq_u32 s[48:49], 3, v4
    v_and_b32 v22, 3, v1
    v_lshlrev_b32 v22, 3, v22
    v_bfe_u32 v22, s{TAG}, v22, 8
    v_lshlrev_b32 v23, 2, v1
    v_mov_b32 v21, 0xffffff00
    ds_read_b32 v31, v30
    s_waitcnt lgkmcnt(0)
    v_readfirstlane_b32 s{PURE}, v31""")
    a("""s_cmp_lg_u32 s3, 0
    s_cbranch_scc1 L_f_nf
    s_waitcnt vmcnt(2)""")
    frags()
    if OPT["wdl"]:
        a("s_waitcnt vmcnt(8)\ns_branch L_f_s1")
    a("""L_f_nf:
    s_cmp_lg_u32 s3, 1
    s_cbranch_scc1 L_f_nb
    s_barrier
    L_f_nb:
    s_waitcnt vmcnt(0)
    L_f_s1:""")
    stamp(a, 4)
    for ks in range(2):
        for m in range(2):
            for t in range(4):
                d = 32 + (m * 4 + t) * 4
                a(f"v_mfma_f32_16x16x32_bf16 {vr(d,4)}, {vr((24, 160)[ks],4)}, {vr(64+m*32+t*8+ks*4,4)}, {'0' if ks == 0 else vr(d,4)}")
    a(f"""s_lshl_b32 s36, s33, 10
    s_add_u32 s36, s36, {WS_P1}
    s_nop 2""")
    for m in range(2):
        for tk in range(2):
            sel_by_g(a, 96 + m * 2 + tk, 32 + m * 16 + tk, 4, False)
    for j in range(4):
        a(f"v_and_or_b32 v{96+j}, v{96+j}, v21, s{52+j}")
    if OPT["p1loc"]:
        two_flavours(a, lambda sc: a(f"buffer_store_dwordx4 v[96:99], v10, s[24:27], s36 offen {sc}"))
    else:
        a("buffer_store_dwordx4 v[96:99], v10, s[24:27], s36 offen sc1")
    a(f"""s_mul_i32 s36, s34, 10240
    s_add_u32 s36, s36, {WS_P1}
    s_add_u32 s37, s36, 4096
    s_add_u32 s38, s36, 8192
    s_mov_b32 s50, {SPIN}
    s_waitcnt lgkmcnt(0)""")
    stamp(a, 5)
    a(f"""v_min_u32 v5, 9, v1
    v_lshlrev_b32 v5, 10, v5
    s_cmp_lg_u32 s3, 0
    s_cbranch_scc1 L_f_p0
    s_barrier
    s_branch L_f_p1
    L_f_p0:
    buffer_load_dword v6, v5, s[24:27], s36 offen sc1
    s_sub_u32 s50, s50, 1
    s_cbranch_scc1 L_f_p1o
    s_waitcnt vmcnt(0)
    v_and_b32 v6, 0xff, v6
    v_cmp_ne_u32 vcc, s52, v6
    s_cbranch_vccnz L_f_p0
    L_f_p1:""")
    stamp(a, 6)
    for i in range(10):
        a(f"buffer_load_dwordx4 {vr(32+4*i,4)}, v10, s[24:27], s{36+i//4} offen offset:{(i%4)*1024} sc1")
    strip_tags(a, [32 + 4 * i for i in range(10)], True)
    a("""    s_cbranch_vccnz L_f_p0
    L_f_p1o:
    s_waitcnt vmcnt(0)""")
    if OPT["wdl"]:
        frags((2,))
        lds_add(a, O_W)
    stamp(a, 7)
    for i in range(1, 10):
        for j in (0, 2):
            a(f"v_pk_add_f32 {vr(32+j,2)}, {vr(32+j,2)}, {vr(32+4*i+j,2)}")
    for tk in range(2):
        sigmoid(a, 14 + tk, f"v{32+tk}")
        a(f"v_mul_f32 v{14+tk}, v{14+tk}, v{32+tk}\nv_mul_f32 v{14+tk}, v{14+tk}, v{34+tk}")
    a(f"""v_cvt_pk_bf16_f32 v14, v14, v15
    v_lshl_add_u32 v6, v1, 1, v30
    ds_write_b16 v6, v14 offset:256
    ds_write_b16_d16_hi v6, v14 offset:384
    v_and_b32 v7, 1, v1
    v_lshl_add_u32 v7, v7, 7, v30
    v_lshl_add_u32 v7, v4, 4, v7
    s_waitcnt lgkmcnt(0)
    ds_read_b128 v[32:35], v7 offset:256
    ds_read_b128 v[36:39], v7 offset:320
    s_waitcnt lgkmcnt(0)""")
    for t in range(4):
        d = 64 + t * 4
        for ks in range(2):
            a(f"v_mfma_f32_16x16x32_bf16 {vr(d,4)}, {vr(32+4*ks,4)}, {vr(128+t*8+4*ks,4)}, {'0' if ks == 0 else vr(d,4)}")
    a(f"""s_lshl_b32 s36, s33, 8
    s_add_u32 s36, s36, {WS_P2}
    s_add_u32 s37, s36, {24*2560}
    s_nop 4""")
    for tk in range(2):
        sel_by_g(a, 96 + tk, 64 + tk, 4, False)
        a(f"""v_and_or_b32 v{96+tk}, v{96+tk}, v21, v22
        buffer_store_dword v{96+tk}, v23, s[24:27], s{36+tk} offen sc1""")
    stamp(a, 8)
    a("L_f_gather:")
    a(f"""s_and_b32 s36, s{LOC}, 3
    s_lshl_b32 s36, s36, 5
    s_lshl_b32 s37, s{XCD}, 8
    s_add_u32 s36, s36, s37
    s_xor_b32 s42, s42, s36
    s_xor_b32 s43, s43, s36
    s_and_b32 s42, s42, 0x760
    s_and_b32 s43, s43, 0x760
    s_min_u32 s36, s42, s43
    s_cmp_lg_u32 s36, 0
    s_cbranch_scc1 L_f_end
    s_lshr_b32 s32, s{LOC}, 2
    s_mul_i32 s40, s32, 320
    s_add_u32 s40, s40, {WS_P2}
    s_andn2_b32 s36, s40, 255
    s_add_u32 s36, s36, {24*2560}
    v_min_u32 v5, 47, v1
    v_lshrrev_b32 v6, 1, v5
    v_mul_u32_u24 v6, 2560, v6
    v_and_b32 v5, 1, v5
    v_lshl_add_u32 v5, v5, 8, v6
    v_min_u32 v7, 59, v1
    v_mul_u32_u24 v8, 3277, v7
    v_lshrrev_b32 v8, 16, v8
    v_mul_u32_u24 v6, 20, v8
    v_sub_u32 v6, v7, v6
    v_mul_u32_u24 v11, {8*2560}, v8
    v_lshl_add_u32 v11, v6, 4, v11
    v_lshl_add_u32 v12, v7, 4, v30
    v_lshl_add_u32 v13, v6, 4, v30
    v_mov_b32 v20, v13""")
    sigmoid(a, 18, "v18")
    sigmoid(a, 19, "v19")
    a("s_mov_b32 s41, 0")
    if OPT["yat"]:
        a("s_setprio 0")
        lds_wait(a, O_ATT, OPT["yat"])
        a("s_setprio 3")
    else:
        lds_wait(a, 4, 2)
    a(f"""s_mov_b32 s50, {SPIN}
    {"s_branch L_f_tok" if OPT["yat"] else ""}
    L_f_y0:
    buffer_load_dword v6, v5, s[24:27], s36 offen sc1
    s_sub_u32 s50, s50, 1
    s_cbranch_scc1 L_f_yo
    s_waitcnt vmcnt(0)
    v_and_b32 v6, 0xff, v6
    v_cmp_ne_u32 vcc, s52, v6
    s_cbranch_vccnz L_f_y0""")
    stamp(a, 9)
    a("""L_f_tok:
    s_cmp_lg_u32 s42, 0
    s_cbranch_scc1 L_f_next
    s_mov_b32 s37, s40""")
    for i in range(8):
        a(f"buffer_load_dwordx4 {vr(32+4*i,4)}, v11, s[24:27], s37 offen sc1\ns_add_u32 s37, s37, 2560")
    a(f"s_setprio {OPT['gprio']}")
    strip_tags(a, [32 + 4 * i for i in range(8)], True)
    a("s_cbranch_vccnz L_f_y0")
    for i in range(1, 8):
        for j in (0, 2):
            a(f"v_pk_add_f32 {vr(32+j,2)}, {vr(32+j,2)}, {vr(32+4*i+j,2)}")
    a(f"""ds_write_b128 v12, v[32:35] offset:{L_Y-L_MISC+640}
    ds_read_b128 v[36:39], v20 offset:{L_Y-L_MISC+640}
    ds_read_b128 v[40:43], v20 offset:{L_Y-L_MISC+960}
    ds_read_b128 v[44:47], v20 offset:{L_Y-L_MISC+1280}
    s_waitcnt lgkmcnt(0)""")
    for j in (0, 2):
        a(f"""v_pk_add_f32 {vr(36+j,2)}, {vr(36+j,2)}, {vr(40+j,2)}
        v_pk_add_f32 {vr(36+j,2)}, {vr(36+j,2)}, {vr(44+j,2)}
        v_pk_mul_f32 {vr(36+j,2)}, {vr(36+j,2)}, v[18:19] op_sel_hi:[1,0]""")
    a(f"""ds_write_b128 v13, v[36:39] offset:{L_Y-L_MISC}
    L_f_next:
    s_mov_b32 s42, s43
    s_add_u32 s40, s40, {24*2560}
    v_mov_b32 v18, v19
    v_add_u32 v13, 320, v13
    s_add_u32 s41, s41, 1
    s_cmp_lt_u32 s41, 2
    s_cbranch_scc1 L_f_tok
    L_f_yo:
    s_waitcnt vmcnt(0)""")
    lds_add(a, O_Y)
    a("s_waitcnt lgkmcnt(0)")
    stamp(a, 10)
    a("L_f_end:\ns_waitcnt lgkmcnt(0)")
    finish(a)


def main(out):
    a = Asm()
    head = f"""; gated mix of sliding-window attention and a top-2 routed FFN: one fused launch (written by a generator script)
; @launch grid=(256,1,1) block=(640,1,1) lds={LDS_BYTES}
.amdgcn_target "amdgcn-amd-amdhsa--gfx950"
.text
"""
    entry(a)
    loader(a)
    compute(a)
    stubs = attention(a)
    outproj(a)
    n0 = len(a.lines)
    helper1(a)
    if OPT["stamp"] == 3:
        body_, out_, k, skip = a.lines[n0:], [], 0, False
        for ln in body_:
            if "s_memrealtime" in ln or "s_memtime" in ln:
                continue
            if "s_cbranch_scc1 L_h_g" in ln: skip = True
            if ln.startswith("L_h_g:"): skip = False
            if ln.strip() == "s_endpgm":
                out_.append("    s_branch L_stampall")
                continue
            out_.append(ln)
            if (ln.strip() == "s_barrier" and not skip) or (ln.endswith("v17 offset:4") or (ln.endswith("v18 offset:4") and "vmcnt(12)" in out_[-2])):
                out_.append(f"    s_memrealtime s[{62+2*k}:{63+2*k}]"); k += 1
        a.lines[n0:] = out_
    ffn(a)
    router_loader(a)
    router(a)
    att_stubs(a, stubs)
    a.deferred2()
    stamp_out(a)
    a("L_exit:\ns_endpgm\nL_code_end:")
    body = a.text().replace("s_mov_b32 s43, 0\n    s_waitcnt lgkmcnt(0)", "s_mov_b32 s43, 0\n    s_movk_i32 s45, 0x4000\n    s_waitcnt lgkmcnt(0)")
    if OPT["al"]:
        body = align_fix(body, [("L_g_loop", "L_g_end"), ("L_g_q", "L_att_setup"), ("L_att_go", "L_att_fin"), ("L_op_loop", "L_op_end")])
    bad = check_hazards(body)
    tail = f""".section .rodata,"a"
.p2align 6
.amdhsa_kernel {NAME}_kernel
  .amdhsa_next_free_vgpr 168
  .amdhsa_next_free_sgpr 96
  .amdhsa_accum_offset 168
  .amdhsa_group_segment_fixed_size 0
  .amdhsa_kernarg_size 96
  .amdhsa_user_sgpr_count 2
  .amdhsa_user_sgpr_kernarg_segment_ptr 1
  .amdhsa_system_sgpr_workgroup_id_x 1
.end_amdhsa_kernel
"""
    open(out, "w").write(head + body + tail)
    print("written", out, "hazards:", len(bad))


if __name__ == "__main__":
    main(sys.argv[1])
```

```python
import sys, struct
from asmlib import Asm, vr, sr, check_hazards, align_fix

NAME = "gated_mix__sliding_block__moe_arch_mod__prompt"
def f32(x): return "0x%08x" % struct.unpack("<I", struct.pack("<f", x))[0]
LOG2E = 1.4426950408889634
QSCALE = (20 ** -0.5) * LOG2E

OPT = dict(stamp=0, dual=0, pre=0, xnt="", fnt="nt", rot=4, b11=0, wpf=0, rnt="", worot=2, fprio=3, cearly=1, aprio=2, tlb=0, hdel=5, dly=0, fwm=0, serp=1, xs="0_0", wsn=0, ws="0_2", fws="0_", qat2=2, nowo=0, xsc=0, epx=0, rowmap=1, qloc=1, qat=2, tlb0=0, wod=0, wack=1, qown=0, dbg=0, gprio=3, ones=1, gx=0, lord=0, wfl="", nl0=5, nla=5, ntail=16, w1=0, opos=4, npre=3, al=1, pf=1, xpf=0, swap=0, prio=1, osc="nt", ont="nt", ont2="nt", slp=0, wdl=2, ochk=1, kfirst=0, opw=0, bpos=2, bperm=0, otch=0, epi2=0, pskew=-1, jit=0, wdep=0, w0=3, cprio=0, fpre=0, lprio=0, vs=1, hpost=0, olf="sc1", forceimp=0, forcefb=0, probe="", pwg=109+512, stl=1, stw=0, nocand=0, pcyc=0, wmall=1, fwarm=1, p1loc=1, a2=1, yat=1, tmap=0, fskip=0, rfl=0, fdel=1, ksc='sc1', gate=8, ntry=2)
for _a in sys.argv[2:]:
    k, v = _a.split("=")
    OPT[k] = int(v) if v.lstrip("-").isdigit() else v

WS_L, WS_R = 0, 0x800000
WS_G, WS_CAND, WS_XID, WS_FL, WS_FP, WS_FO = 0x1000000, 0x1010000, 0x1020000, 0x1030000, 0x1040000, 0x1050000
WS_P1, WS_P2, WS_EP, WS_ST, WS_END = 0x1060000, 0x10E0000, 0x1120000, 0x1200000, 0x1300000
WS_FR = 0x1038000
WS_FW, WS_WP = 0x1048000, 0x1130000
XB = 240 * 4096
CS = 8192 + 64
L_K, L_V = 0, 3 * CS + 64
L_WO = 49664
L_ONES = L_WO + 102400 + 192
L_MISC = L_ONES + 5120 + 64
L_H, L_Y = L_MISC + 256, L_MISC + 512
LDS_BYTES = 163840
L_RW = 49152
L_FW = L_WO + 13 * 5120
L_XT = L_FW + 24576
L_WV = L_FW + 8192
M_PURE, M_HALO, M_TOP = L_MISC, L_MISC + 4, L_MISC + 16
O_WO, O_FD, O_ATT, O_Y, O_R, O_B2, O_C, O_W = 8, 12, 32, 36, 40, 44, 48, 52
assert L_V % 256 == 0 and L_ONES % 256 == 192 and L_XT + 10240 <= L_WO + 102400 and L_Y + 1920 <= LDS_BYTES
SPIN = 0x8000

WAVE, XCD, LOC, RBL, CT, TAG, PURE = 28, 29, 30, 31, 32, 60, 61
SX, SW, SS, SA, SB = 16, 20, 24, 52, 56


def srd(a, d, p, n):
    a(f"""s_mov_b32 s{d}, s{p}
    s_mov_b32 s{d+1}, s{p+1}
    s_mov_b32 s{d+2}, {n}
    s_mov_b32 s{d+3}, 0x20000""")


_jit = [0]
def stamp(a, i):
    if OPT["jit"]:
        if i == 0:
            return
        _jit[0] += 1
        k = _jit[0]
        a(f"""s_cselect_b32 s63, 1, 0
        s_bfe_u32 s64, s62, {(2 << 16) | ((k * 7 + OPT["jit"]) % 30):#x}
        s_cmp_lg_u32 s64, 0
        s_cbranch_scc1 L_jit{k}
        s_sleep {(8, 24, 48, 80)[(k + OPT["jit"]) % 4]}
        L_jit{k}:
        s_cmp_lg_u32 s63, 0""")
        return
    if OPT["probe"]:
        if str(i) in OPT["probe"].split("_"):
            a(f"{'s_memtime' if OPT['pcyc'] else 's_memrealtime'} s[{62+2*i}:{63+2*i}]\ns_waitcnt lgkmcnt(0)")
        return
    if OPT["stamp"] == 3:
        if i == 0:
            a("s_memrealtime s[94:95]\ns_memtime s[62:63]")
        if i in (4, 8):
            a(f"s_memrealtime s[{62+2*i}:{63+2*i}]\ns_memtime s[{64+2*i}:{65+2*i}]")
        return
    if OPT["stamp"]:
        if i == 0:
            a("s_memrealtime s[94:95]")
            for j in range(1, 15):
                a(f"s_mov_b32 s{62+2*j}, 0")
        a(f"{'s_memtime' if OPT['stamp'] == 1 else 's_memrealtime'} s[{62+2*i}:{63+2*i}]\ns_waitcnt lgkmcnt(0)")


def finish(a, main=False):
    if OPT["stamp"] == 3 and not main:
        a("s_endpgm")
    elif OPT["stamp"]:
        a("s_branch L_stampout")
    else:
        a("s_endpgm")


def stamp_out(a):
    if OPT["stamp"]:
        n = 14
        a(f"""L_stampout:
        s_waitcnt vmcnt(0)
        {'s_memtime' if OPT['stamp'] != 2 else 's_memrealtime'} s[{62+2*n}:{63+2*n}]
        s_memrealtime s[92:93]
        s_waitcnt lgkmcnt(0)
        s_lshl_b32 s3, s2, 4
        s_add_u32 s3, s3, s{WAVE}
        s_lshl_b32 s3, s3, 7
        s_add_u32 s3, s3, {WS_ST}
        s_mov_b64 exec, 1
        v_mov_b32 v0, 0""")
        for i in (range(n + 1) if OPT["stamp"] != 3 else (0, 4, 5, 8, 9, 14)):
            a(f"v_mov_b32 v1, s{62+2*i}\nbuffer_store_dword v1, v0, s[24:27], s3 offen offset:{4*i}")
        for i in range(2, 10 if OPT["stamp"] != 3 else 0):
            a(f"v_readlane_b32 s4, v166, {i}\ns_nop 1\nv_mov_b32 v1, s4\nbuffer_store_dword v1, v0, s[24:27], s3 offen offset:{64+4*(i-2)}")
        a(f"v_mov_b32 v1, s{PURE}\nbuffer_store_dword v1, v0, s[24:27], s3 offen offset:116")
        a("v_mov_b32 v1, s94\nbuffer_store_dword v1, v0, s[24:27], s3 offen offset:120")
        a("v_mov_b32 v1, s92\nbuffer_store_dword v1, v0, s[24:27], s3 offen offset:124")
        a("s_endpgm")
        if OPT["stamp"] == 3:
            a(f"""L_stampall:
            s_memrealtime s[88:89]""")
            lds_wait(a, O_ATT, 8)
            a(f"""s_lshl_b32 s3, s2, 4
            s_add_u32 s3, s3, s{WAVE}
            s_lshl_b32 s3, s3, 7
            s_add_u32 s3, s3, {WS_ST}
            v_mov_b32 v2, 0""")
            for i in range(14):
                a(f"v_writelane_b32 v2, s{62+2*i}, {i}")
            a("""v_writelane_b32 v2, s94, 30
            v_lshlrev_b32 v3, 2, v1
            s_mov_b64 exec, 0xffffffff
            buffer_store_dword v2, v3, s[24:27], s3 offen
            s_endpgm""")


def wave_max_u32(a, v, sdst, row=False):
    for m in ("row_shr:1 row_mask:0xf bank_mask:0xf bound_ctrl:1", "row_shr:2 row_mask:0xf bank_mask:0xf bound_ctrl:1",
              "row_shr:4 row_mask:0xf bank_mask:0xf bound_ctrl:1", "row_shr:8 row_mask:0xf bank_mask:0xf bound_ctrl:1",
              "row_bcast:15 row_mask:0xa bank_mask:0xf", "row_bcast:31 row_mask:0xc bank_mask:0xf")[:4 if row else 6]:
        a(f"s_nop 1\nv_max_u32_dpp v{v}, v{v}, v{v} {m}")
    a(f"s_nop 0\nv_readlane_b32 s{sdst}, v{v}, 63")


def top2(a, k1, k2, t, s1, s2, sm, row=False):
    a(f"v_max_u32 v{t}, v{k1}, v{k2}")
    wave_max_u32(a, t, s1, row)
    a(f"""s_nop 1
    v_cmp_ne_u32 s[{sm}:{sm+1}], s{s1}, v{k1}
    s_nop 1
    v_cndmask_b32_e64 v{k1}, 0, v{k1}, s[{sm}:{sm+1}]
    v_cmp_ne_u32 s[{sm}:{sm+1}], s{s1}, v{k2}
    s_nop 1
    v_cndmask_b32_e64 v{k2}, 0, v{k2}, s[{sm}:{sm+1}]
    v_max_u32 v{t}, v{k1}, v{k2}""")
    wave_max_u32(a, t, s2, row)


def key_decode(a, sk, stok, sval, st):
    a(f"""s_and_b32 s{stok}, s{sk}, 0xffff
    s_sub_u32 s{stok}, 0xffff, s{stok}
    s_and_b32 s{stok}, s{stok}, 0x7ff
    s_ashr_i32 s{st}, s{sk}, 31
    s_not_b32 s{st}, s{st}
    s_or_b32 s{st}, s{st}, 0x80000000
    s_xor_b32 s{sval}, s{sk}, s{st}
    s_and_b32 s{sval}, s{sval}, 0xffff0000""")


def sigmoid(a, d, s):
    a(f"""v_mul_f32 v{d}, {f32(-LOG2E)}, {s}
    v_exp_f32 v{d}, v{d}
    s_nop 0
    v_add_f32 v{d}, 1.0, v{d}
    v_rcp_f32 v{d}, v{d}
    s_nop 0""")


def epoch_load(a):
    a(f"""s_add_u32 s14, s12, {WS_EP}
    s_addc_u32 s15, s13, 0
    s_load_dword s{TAG}, s[14:15], 0""")


def epoch_fin(a):
    a(f"s_waitcnt lgkmcnt(0)\ns_add_u32 s{TAG}, s{TAG}, 0x9e3779b9")


_uid = [0]
_site = [0]
def uid(p):
    _uid[0] += 1
    return f"L_{p}{_uid[0]}"


def poll(a, load, tagregs, mask=None, tmp=9, pre=False):
    lp, out = uid("poll"), uid("pout")
    a(f"s_mov_b32 s50, {SPIN}")
    if pre:
        a(f"s_branch {lp}p")
    a(f"{lp}:")
    a(load)
    if pre:
        a(f"{lp}p:")
    a(f"""s_sub_u32 s50, s50, 1
    s_cbranch_scc1 {out}
    s_waitcnt vmcnt(0)""")
    if len(tagregs) == 1:
        a(f"v_cmp_ne_u32 vcc, s{TAG}, v{tagregs[0]}")
    else:
        a(f"v_xor_b32 v{tmp}, s{TAG}, v{tagregs[0]}")
        for r in tagregs[1:]:
            a(f"v_bitop3_b32 v{tmp}, v{tmp}, v{r}, s{TAG} bitop3:0xf6")
        a(f"v_cmp_ne_u32 vcc, 0, v{tmp}")
    if mask:
        a(f"s_and_b64 vcc, vcc, {mask}")
    if OPT["dbg"]:
        _site[0] += 1
        print("site", _site[0], load.split("\n")[-1][:70])
        a(f"""s_cbranch_vccnz {lp}
        s_branch {out}x
        {out}:
        s_waitcnt vmcnt(0)
        s_lshl_b32 s50, s2, 4
        s_add_u32 s50, s50, {_site[0]}
        s_lshl_b32 s50, s50, 8
        s_add_u32 s50, s50, {WS_ST}
        v_lshlrev_b32 v164, 2, v1
        v_xor_b32 v165, s{TAG}, v{tagregs[0]}
        v_or_b32 v165, 0x80000000, v165
        buffer_store_dword v165, v164, s[24:27], s50 offen
        {out}x:
        s_waitcnt vmcnt(0)""")
        return
    a(f"s_cbranch_vccnz {lp}\n{out}:\ns_waitcnt vmcnt(0)")


def spoll(a, loads, pairs):
    lp, out = uid("sp"), uid("so")
    a(f"s_mov_b32 s50, {SPIN}\n{lp}:")
    a(loads)
    a(f"""s_waitcnt lgkmcnt(0)
    s_sub_u32 s50, s50, 1
    s_cbranch_scc1 {out}
    s_xor_b64 s[36:37], s[{pairs[0]}:{pairs[0]+1}], s[38:39]""")
    for p in pairs[1:]:
        a(f"""s_xor_b64 s[{p}:{p+1}], s[{p}:{p+1}], s[38:39]
        s_or_b64 s[36:37], s[36:37], s[{p}:{p+1}]""")
    a(f"s_cbranch_scc1 {lp}\n{out}:")


def lds_wait(a, off, val, vt=9, pre=False):
    lp, out = uid("lw"), uid("lo")
    a(f"s_mov_b32 s50, {SPIN*8}")
    if pre:
        a(f"s_branch {lp}p")
    if OPT["slp"] and not pre and off != O_B2:
        a(f"s_branch {lp}f\n{lp}:\ns_sleep {OPT['slp']}\n{lp}f:")
    else:
        a(f"{lp}:")
    a(f"""ds_read_b32 v{vt}, v30 offset:{off}""")
    if pre:
        a(f"{lp}p:")
    a(f"""s_sub_u32 s50, s50, 1
    s_cbranch_scc1 {out}
    s_waitcnt lgkmcnt(0)
    v_cmp_gt_u32 vcc, {val}, v{vt}
    s_cbranch_vccnz {lp}
    {out}:""")


def lds_add(a, off, vt=9):
    a(f"""v_mov_b32 v{vt}, 1
    s_mov_b64 exec, 1
    ds_add_u32 v30, v{vt} offset:{off}
    s_mov_b64 exec, -1""")


def flag_store(a, soff, local, vt=8):
    a(f"""v_mov_b32 v{vt}, s{TAG}
    v_mov_b32 v{vt+1}, 0
    s_mov_b64 exec, 1""")
    if local:
        l1, l2 = uid("fs"), uid("fe")
        a(f"""s_cmp_eq_u32 s{PURE}, 0
        s_cbranch_scc1 {l1}
        buffer_store_dword v{vt}, v{vt+1}, s[24:27], s{soff} offen
        s_branch {l2}
        {l1}:
        buffer_store_dword v{vt}, v{vt+1}, s[24:27], s{soff} offen sc1
        {l2}:""")
    else:
        a(f"buffer_store_dword v{vt}, v{vt+1}, s[24:27], s{soff} offen sc1")
    a("s_mov_b64 exec, -1")


def two_flavours(a, body):
    l1, l2 = uid("imp"), uid("ime")
    a(f"s_cmp_eq_u32 s{PURE}, 0\ns_cbranch_scc1 {l1}")
    body("")
    a(f"s_branch {l2}\n{l1}:")
    body("sc1")
    a(f"{l2}:")


def router_loader(a):
    a("""L_rld:
    s_load_dwordx2 s[8:9], s[0:1], 16
    s_add_u32 s41, s40, 98304
    s_branch L_rld_issue
    L_rld_loop:
    s_waitcnt vmcnt(12) lgkmcnt(0)
    s_barrier
    L_rld_issue:
    s_lshl_b32 s36, s33, 7
    s_add_u32 s36, s36, s34""")
    for n in range(4):
        a(f"""s_add_u32 m0, s40, {n*4096}
        s_add_u32 s38, s36, {n*40960}
        buffer_load_dwordx4 v10, s[16:19], s38 offen {OPT['rnt']} lds""")
    kc_next(a, 33)
    a("""s_add_u32 s40, s40, 16384
    s_cmp_eq_u32 s40, s41
    s_cselect_b32 s36, 98304, 0
    s_sub_u32 s40, s40, s36
    s_add_u32 s42, s42, 1
    s_cmp_lt_u32 s42, 4
    s_cbranch_scc1 L_rld_issue
    s_cmp_lt_u32 s42, 10
    s_cbranch_scc1 L_rld_loop""")
    srd(a, SS, 12, WS_END)
    srd(a, SW, 8, 819200)
    a(f"""s_add_u32 s{TAG}, s{TAG}, 0x9e3779b9
    v_mov_b32 v30, {M_PURE}""")
    for n in (12, 8, 4, 0):
        a(f"s_waitcnt vmcnt({n})\ns_barrier")
    a(f"""s_lshl_b32 s33, s{XCD}, 1
    s_add_u32 s33, s33, s{RBL}
    s_and_b32 s34, s{WAVE}, 3
    s_mul_i32 s36, s33, 51200
    s_mul_i32 s37, s34, 320
    s_add_u32 s36, s36, s37
    s_mul_i32 s35, s34, {42*320}
    s_add_u32 s35, s35, 65536
    v_mul_u32_u24 v5, 3277, v1
    v_lshrrev_b32 v5, 16, v5
    v_mul_u32_u24 v6, 20, v5
    v_sub_u32 v6, v1, v6
    v_mul_u32_u24 v5, 1280, v5
    v_lshl_add_u32 v11, v6, 4, v5
    v_bfe_u32 v7, v1, 2, 2
    v_and_b32 v8, 3, v1
    v_lshl_add_u32 v8, v8, 3, s35
    v_lshrrev_b32 v5, 1, v4
    v_mul_u32_u24 v5, 20, v5
    v_and_b32 v6, 1, v4
    v_lshl_add_u32 v5, v6, 2, v5
    v_add_u32 v5, v5, v7
    v_mul_u32_u24 v5, 320, v5
    v_add_u32 v12, v5, v8
    v_mul_u32_u24 v5, 320, v7
    v_lshl_add_u32 v5, v4, 5, v5
    v_add_u32 v5, v5, v8
    s_bitcmp1_b32 s33, 1
    s_cselect_b32 s37, 0, {20*320}
    s_add_u32 s38, s37, {16*320}
    s_sub_u32 s37, {36*320}, s37
    v_add_u32 v13, s38, v5
    v_add_u32 v14, s37, v5
    v_lshlrev_b32 v10, 4, v1
    v_and_b32 v5, 15, v1
    v_lshlrev_b32 v5, 4, v5""")
    for i in range(3):
        a(f"""v_add_u32 v6, {4*i}, v4
        v_cmp_lt_u32 s[44:45], 4, v6
        v_lshl_add_u32 v6, v6, 10, v5
        v_add_u32 v7, {102400-5120}, v6
        v_cndmask_b32_e64 v{15+i}, v6, v7, s[44:45]""")
    a(f"""s_mul_i32 s40, s34, 204800
    s_add_u32 s40, s40, {WS_WP}
    s_lshr_b32 s37, s33, 2
    s_add_u32 s37, s37, 16
    s_mul_i32 s41, s37, 5120
    s_add_u32 s41, s41, s40
    s_and_b32 s37, s33, 1
    s_lshl_b32 s37, s37, 9
    s_add_u32 s41, s41, s37
    s_and_b32 s37, s33, 2
    s_lshl_b32 s37, s37, 7
    s_add_u32 s41, s41, s37
    s_mul_i32 s37, s33, 5120
    s_add_u32 s40, s40, s37
    s_lshl_b32 s42, s33, 5
    s_add_u32 s42, s42, s34
    s_lshl_b32 s42, s42, 2
    s_add_u32 s42, s42, {WS_FW}""")
    lds_wait(a, O_C, 4)
    stamp(a, 2)
    a("s_mov_b32 exec_hi, 0x0fffffff\ns_mov_b32 m0, s35")
    for i in range(14):
        if i == 13:
            a("s_mov_b64 exec, 0xfffff")
        a(f"""s_add_u32 s37, s36, {i*3840}
        buffer_load_dwordx4 v11, s[20:23], s37 offen {OPT['fnt']} lds
        s_add_u32 m0, s35, {(i+1)*960}""")
    a("s_mov_b64 exec, -1\ns_waitcnt vmcnt(0)")
    stamp(a, 3)
    for t in range(10):
        a(f"""ds_read_b64_tr_b16 v[{32+4*t}:{33+4*t}], v12 offset:{t*32}
        ds_read_b64_tr_b16 v[{34+4*t}:{35+4*t}], v12 offset:{t*32+8*320}""")
        if t == 4:
            a("s_waitcnt lgkmcnt(0)")
    a("s_waitcnt lgkmcnt(4)")
    for i in range(3):
        a(f"""ds_read_b64_tr_b16 v[{72+4*i}:{73+4*i}], v13 offset:{i*128}
        ds_read_b64_tr_b16 v[{74+4*i}:{75+4*i}], v14 offset:{i*128}""")
    a("s_waitcnt lgkmcnt(0)")
    for t in range(10):
        a(f"""s_add_u32 s37, s40, {(t//5)*102400 + (t%5)*1024}
        buffer_store_dwordx4 {vr(32+4*t,4)}, v10, s[24:27], s37 offen sc1""")
    for i in range(3):
        if i == 2:
            a("s_mov_b32 exec_hi, 0")
        a(f"buffer_store_dwordx4 {vr(72+4*i,4)}, v{15+i}, s[24:27], s41 offen sc1")
    a(f"""s_mov_b64 exec, 1
    v_mov_b32 v5, s{TAG}
    s_waitcnt vmcnt(0)
    buffer_store_dword v5, off, s[24:27], s42 sc1
    s_mov_b64 exec, -1""")
    stamp(a, 4)
    a("s_branch L_att_setup")


def kc_init(a):
    def nib(o):
        v = sum(x << (4 * i) for i, x in enumerate(o))
        return v & 0xffffffff, v >> 32
    n0, n1, n2 = nib(range(10)), nib([1, 0, 3, 2, 5, 4, 7, 6, 9, 8]), nib([0, 2, 1, 4, 3, 6, 5, 8, 7, 9])
    a(f"s_mov_b32 s46, {n0[0]:#x}\ns_movk_i32 s47, {n0[1]:#x}")
    if OPT["swap"]:
        a(f"""s_and_b32 s36, s{LOC}, {3 if OPT["swap"] == 1 else 1}
        s_cmp_eq_u32 s36, 1
        s_cselect_b32 s46, {n1[0]:#x}, s46
        s_cselect_b32 s47, {n1[1]:#x}, s47
        s_cmp_eq_u32 s36, 3
        s_cselect_b32 s46, {n2[0]:#x}, s46
        s_cselect_b32 s47, {n2[1]:#x}, s47""")
    tab = {0: [0]*8, 1: range(8), 2: [7, 0, 1, 2, 3, 4, 5, 6], 3: [8, 0, 1, 2, 3, 5, 6, 7], 4: [7, 6, 5, 4, 3, 2, 1, 0], 5: [8, 0, 0, 2, 2, 4, 6, 6], 6: [8, 0, 2, 4, 6, 0, 2, 4]}[OPT["rot"]]
    a(f"""s_lshl_b32 s36, s{XCD}, 2
    s_lshr_b32 s48, {nib(tab)[0]:#x}, s36
    s_and_b32 s48, s48, 15""")
    n3 = nib([2, 3, 4, 5, 6, 7, 8, 9, 0, 1])
    a(f"""s_cmp_eq_u32 s{CT}, 15
    s_cselect_b32 s46, {n3[0]:#x}, s46
    s_cselect_b32 s47, {n3[1]:#x}, s47""")


def kc_next(a, d):
    a(f"""s_and_b32 s{d}, s46, 15
    s_lshr_b64 s[46:47], s[46:47], 4""")
    if OPT["rot"]:
        a(f"""s_add_u32 s{d}, s{d}, s48
        s_sub_u32 s36, s{d}, 10
        s_cselect_b32 s{d}, s{d}, s36""")


def entry(a):
    a(f""".globl {NAME}_kernel
    .p2align 8
    .type {NAME}_kernel,@function
    {NAME}_kernel:""")
    a("""s_cmp_ge_u32 s2, 256
    s_cbranch_scc1 L_exit""")
    stamp(a, 0)
    a(f"""s_load_dwordx4 s[4:7], s[0:1], 0
    s_load_dwordx2 s[12:13], s[0:1], 88
    v_lshrrev_b32 v2, 6, v0
    v_and_b32 v1, 63, v0
    v_readfirstlane_b32 s{WAVE}, v2
    s_and_b32 s{XCD}, s2, 7
    {"" if not OPT["bperm"] else "s_lshl_b32 s36, s%d, 2" % XCD}
    {"" if not OPT["bperm"] else "s_lshr_b32 s%d, %#x, s36" % (XCD, {1: 0x23014567, 2: 0x54763210, 3: 0x65074321}[OPT["bperm"]])}
    {"" if not OPT["bperm"] else "s_and_b32 s%d, s%d, 7" % (XCD, XCD)}
    s_lshr_b32 s{LOC}, s2, 3
    s_and_b32 s{RBL}, s{LOC}, 1
    s_lshr_b32 s{CT}, s{LOC}, 1
    v_lshrrev_b32 v4, 4, v1""")
    if OPT["jit"]:
        a(f"""s_lshl_b32 s62, s2, 4
        s_add_u32 s62, s62, s{WAVE}
        s_add_u32 s62, s62, {OPT["jit"] * 7919}
        s_mul_i32 s62, s62, 0x9e3779b1
        s_lshr_b32 s63, s62, 15
        s_xor_b32 s62, s62, s63
        s_mul_i32 s62, s62, 0x85ebca6b
        s_lshr_b32 s63, s62, 13
        s_xor_b32 s62, s62, s63""")
    if OPT["pf"]:
        a(f"""s_cmp_lg_u32 s{WAVE}, 0
        s_cbranch_scc1 L_nopf
        s_getpc_b64 s[36:37]
        L_pc:
        s_and_b32 s38, s{LOC}, 3
        s_mul_i32 s38, s38, 5760
        v_min_u32 v5, 44, v1
        v_lshl_add_u32 v5, v5, 7, s38
        v_min_u32 v5, L_code_end-L_pc-4, v5
        global_load_dword v167, v5, s[36:37]
        L_nopf:""")
    a(f"""s_cmp_lt_u32 s{WAVE}, 4
    s_cbranch_scc1 L_compute
    s_cmp_ge_u32 s{WAVE}, 8
    s_cbranch_scc1 L_help""")


def loader(a):
    a(f"""v_and_b32 v2, 3, v2
    v_lshrrev_b32 v3, 3, v1
    v_lshl_add_u32 v3, v2, 3, v3
    v_mul_u32_u24 v3, 1280, v3
    v_lshl_add_u32 v5, v2, 2, v4
    v_xor_b32 v6, v5, v1
    v_and_b32 v6, 7, v6
    v_lshl_add_u32 v10, v6, 4, v3
    v_mul_u32_u24 v5, 3840, v5
    v_lshrrev_b32 v6, 1, v2
    v_lshl_add_u32 v6, v6, 2, v4
    v_lshlrev_b32 v6, 1, v6
    v_xor_b32 v6, v6, v1
    v_and_b32 v6, 15, v6
    v_lshl_add_u32 v11, v6, 4, v5
    s_lshl_b32 s34, s{XCD}, 1
    s_add_u32 s34, s34, s{RBL}
    s_mul_i32 s34, s34, 128*1280
    s_lshl_b32 s35, s{CT}, 8
    s_and_b32 s40, s{WAVE}, 3
    s_lshl_b32 s40, s40, 10
    s_add_u32 s41, s40, 49152
    s_mov_b32 s42, 0
    s_mov_b32 s18, 2621440
    s_mov_b32 s19, 0x20000
    s_mov_b32 s22, 2457600
    s_mov_b32 s23, 0x20000""")
    kc_init(a)
    kc_next(a, 33)
    if OPT["xpf"]:
        a(f"""v_min_u32 v12, 19, v1
        v_lshlrev_b32 v12, 7, v12
        s_lshl_b32 s44, s{CT}, 2
        s_add_u32 s44, s44, s{WAVE}
        s_mul_i32 s44, s44, 2560
        s_add_u32 s44, s44, s34
        s_sub_u32 s44, s44, {4*2560}""")
    a("""s_waitcnt lgkmcnt(0)
    s_mov_b32 s16, s4
    s_mov_b32 s17, s5
    s_mov_b32 s20, s6
    s_mov_b32 s21, s7""")
    if OPT["xpf"]:
        a("buffer_load_dword v167, v12, s[16:19], s44 offen")
    epoch_load(a)
    stamp(a, 1)
    if OPT["dly"]:
        a(f"s_bitcmp1_b32 s{CT}, 0\ns_cbranch_scc0 L_nd\ns_sleep {OPT['dly']}\nL_nd:")
    if OPT["lprio"]:
        a(f"s_setprio {OPT['lprio']}")
    a(f"""s_cmp_eq_u32 s{CT}, 15
    s_cbranch_scc1 L_rld
    s_branch L_ld_issue
    L_ld_loop:
    s_waitcnt vmcnt(8) lgkmcnt(0)
    s_barrier""")
    if OPT["stamp"] in (1, 2):
        a("""s_memrealtime s[44:45]
        s_waitcnt lgkmcnt(0)
        s_mov_b32 m0, s42
        s_nop 0
        v_writelane_b32 v166, s44, m0""")
    a(f"""L_ld_issue:
    s_lshl_b32 s36, s33, 7
    s_add_u32 s36, s36, s34
    {"s_and_b32 s33, s33, 1" if OPT["gx"] == 1 else ""}
    s_mul_i32 s37, s33, 245760
    s_add_u32 s37, s37, s35""")
    lx = [f"""s_add_u32 m0, s40, {n*4096}
        s_add_u32 s38, s36, {n*40960}
        buffer_load_dwordx4 v10, s[16:19], s38 offen {OPT['xnt']} lds""" for n in range(4)]
    lw = [f"""s_add_u32 m0, s40, {L_RW+n*4096}
        s_add_u32 s39, s37, {n*61440}
        buffer_load_dwordx4 v11, s[20:23], s39 offen {OPT['wfl']} lds""" for n in range(4)]
    for l in {0: [x for p in zip(lx, lw) for x in p], 1: lw + lx, 2: lx + lw}[OPT["lord"]]:
        a(l)
    kc_next(a, 33)
    a("""s_add_u32 s40, s40, 16384
    s_cmp_eq_u32 s40, s41
    s_cselect_b32 s36, 49152, 0
    s_sub_u32 s40, s40, s36
    s_add_u32 s42, s42, 1
    s_cmp_lt_u32 s42, 2
    s_cbranch_scc1 L_ld_issue
    s_cmp_lt_u32 s42, 10
    s_cbranch_scc1 L_ld_loop""")
    srd(a, SS, 12, WS_END)
    a(f"s_add_u32 s{TAG}, s{TAG}, 0x9e3779b9")
    pre = 0
    a(f"""s_waitcnt vmcnt({8+pre})
    s_barrier""")
    stamp(a, 2)
    a(f"""s_waitcnt vmcnt({pre})
    s_barrier""")
    stamp(a, 3)
    if OPT["lprio"]:
        a("s_setprio 0")
    a("s_branch L_att_setup")


ACC, F0, F1 = 32, 96, 128
def compute(a):
    a("L_compute:")
    if (OPT["qloc"] and OPT["qat"] == -1) or OPT["tlb0"]:
        a(f"""s_mul_i32 s36, s{XCD}, {XB}
        s_mov_b32 s26, {WS_END}
        s_mov_b32 s27, 0x20000""")
        if OPT["qloc"] and OPT["qat"] == -1:
            a(f"""s_lshl_b32 s37, s{LOC}, 2
            s_add_u32 s37, s37, s{WAVE}
            s_mul_i32 s37, s37, 2560
            s_add_u32 s37, s37, s36
            v_min_u32 v5, 19, v1
            v_lshlrev_b32 v5, 7, v5""")
        if OPT["tlb0"]:
            a(f"""s_sub_u32 s38, s36, {XB}
            s_max_i32 s38, s38, 0
            v_min_u32 v6, 2, v1
            v_mul_u32_u24 v6, {XB-64}, v6""")
        a("""s_waitcnt lgkmcnt(0)
        s_mov_b32 s24, s12
        s_mov_b32 s25, s13""")
        if OPT["qloc"] and OPT["qat"] == -1:
            a("buffer_load_dword v167, v5, s[24:27], s37 offen sc1")
        if OPT["tlb0"]:
            a(f"""s_cmp_lg_u32 s{WAVE}, 1
            s_cbranch_scc1 L_not0
            buffer_load_dword v167, v6, s[24:27], s38 offen sc1
            L_not0:""")
    a(f"""v_and_b32 v3, 15, v1
    s_and_b32 s36, s{WAVE}, 1          ; wc
    s_lshr_b32 s37, s{WAVE}, 1         ; wt
    s_lshl_b32 s38, s37, 13
    s_lshl_b32 s39, s{WAVE}, 12
    s_cmp_eq_u32 s{CT}, 15
    s_cselect_b32 s38, s39, s38
    v_lshrrev_b32 v5, 1, v3
    v_xor_b32 v5, v5, v4
    v_lshlrev_b32 v5, 4, v5
    v_lshl_add_u32 v12, v3, 7, v5
    v_add_u32 v12, s38, v12
    v_xor_b32 v13, 64, v12
    v_bfe_u32 v5, v1, 2, 2             ; r
    v_lshl_add_u32 v6, v4, 3, v5
    v_lshlrev_b32 v6, 8, v6
    v_and_b32 v7, 1, v4
    v_lshl_add_u32 v5, v7, 2, v5
    v_lshlrev_b32 v5, 1, v5            ; f(row)
    v_and_b32 v7, 3, v1
    s_lshl_b32 s39, s36, 3
    v_add_u32 v7, s39, v7
    v_xor_b32 v5, v5, v7
    v_lshl_add_u32 v6, v5, 4, v6
    v_bfe_u32 v5, v1, 1, 1
    v_lshl_add_u32 v6, v5, 3, v6
    v_add_u32 v14, {L_RW}, v6
    v_xor_b32 v15, 8, v14
    v_xor_b32 v16, 64, v14
    v_xor_b32 v17, 0x48, v14
    v_lshlrev_b32 v18, 4, v3
    v_lshl_add_u32 v18, v4, 12, v18
    v_mov_b32 v19, {M_PURE}
    s_mul_i32 s34, s{XCD}, {XB}
    s_lshl_b32 s39, s{CT}, 16
    s_add_u32 s34, s34, s39
    s_lshl_b32 s39, s36, 15
    s_add_u32 s34, s34, s39
    s_lshl_b32 s39, s{RBL}, 11
    s_add_u32 s34, s34, s39
    s_lshl_b32 s39, s37, 10
    s_add_u32 s34, s34, s39
    s_add_u32 s35, s34, 16384
    s_mov_b32 s42, 0
    s_mov_b32 s43, 0
    s_waitcnt lgkmcnt(0)""")
    epoch_load(a)
    srd(a, SS, 12, WS_END)
    if OPT["pskew"] >= 0:
        a(f"""s_lshl_b32 s36, s2, 7
        s_add_u32 s36, s36, {WS_ST}
        v_mov_b32 v5, s62
        s_mov_b64 exec, 1
        buffer_store_dword v5, off, s[24:27], s36 sc1
        s_mov_b64 exec, -1""")
    for i in range(64):
        a(f"v_mov_b32 v{ACC+i}, 0")
    epoch_fin(a)
    stamp(a, 1)
    a(f"s_cmp_eq_u32 s{CT}, 15\ns_cbranch_scc1 L_router")

    def reads(ks, F):
        r = []
        def A(j):
            r.append(f"ds_read_b64_tr_b16 v[{F+4*j}:{F+4*j+1}], v{14+j} offset:{ks*8192}")
            r.append(f"ds_read_b64_tr_b16 v[{F+4*j+2}:{F+4*j+3}], v{14+j} offset:{ks*8192+1024}")
        A(0)
        for t in range(4):
            r.append(f"ds_read_b128 {vr(F+16+4*t,4)}, v{12+ks} offset:{t*2048}")
        A(1); A(2); A(3)
        return r

    def phase(F, rd, bar, extra):
        a("s_waitcnt lgkmcnt(6)")
        n = 0
        bp = OPT["bpos"] if bar else 1
        cnt = {1: [1]*12, 2: [2, 2, 2, 2, 1, 1, 1, 1], 3: [3, 3, 3, 3]}[bp]
        k = 0
        for j in range(4):
            if j == 1:
                a("s_waitcnt lgkmcnt(0)")
            if j == bp and bar:
                a("s_barrier")
            for t in (range(4) if not (OPT["serp"] and j & 1) else range(3, -1, -1)):
                d = ACC + (j * 4 + t) * 4
                a(f"v_mfma_f32_16x16x32_bf16 {vr(d,4)}, {vr(F+4*j,4)}, {vr(F+16+4*t,4)}, {vr(d,4)}")
                if j == 0:
                    a(extra[t])
                elif j >= bp:
                    for _ in range(cnt[k]):
                        a(rd[n]); n += 1
                    k += 1

    if OPT["cprio"]:
        a(f"s_setprio {OPT['cprio']}")
    a("s_barrier")
    stamp(a, 2)
    for l in reads(0, F0):
        a(l)
    a("L_g_loop:")
    phase(F0, reads(1, F1), False, ["""s_add_u32 s43, s43, 1
        s_cmp_eq_u32 s43, 3""", "s_cselect_b32 s44, -32768, 16384" if False else """s_cselect_b32 s44, 0xffff8000, s45
        """, "s_cselect_b32 s43, 0, s43\ns_add_u32 s42, s42, 1", ""])
    phase(F1, reads(0, F0), True, ["v_add_u32 v12, s44, v12\nv_add_u32 v13, s44, v13", "v_add_u32 v14, s44, v14\nv_add_u32 v15, s44, v15",
                                   "v_add_u32 v16, s44, v16\nv_add_u32 v17, s44, v17", "s_cmp_lt_u32 s42, 9"])
    a("s_cbranch_scc1 L_g_loop")
    def mm(F, j, t):
        d = ACC + (j * 4 + t) * 4
        return f"v_mfma_f32_16x16x32_bf16 {vr(d,4)}, {vr(F+4*j,4)}, {vr(F+16+4*t,4)}, {vr(d,4)}"
    r1 = reads(1, F1)
    r1 = ["ds_read_b32 v20, v19"] + r1[0:3] + r1[6:8] + r1[3:6] + r1[8:12]
    a("s_waitcnt lgkmcnt(4)")
    for k in range(8):
        a(mm(F0, k // 4, k % 4 if k < 4 else 7 - k))
        for l in r1[2*k:2*k+2]:
            a(l)
    a(f"""s_mov_b32 s38, {f32(QSCALE)}
    s_mov_b32 s39, s38
    s_waitcnt lgkmcnt(4)
    v_readfirstlane_b32 s{PURE}, v20
    s_cmp_lt_u32 s{CT}, 5
    s_cbranch_scc1 L_g_q""")

    def tail(scale, sc):
        def out(p, t):
            d, e = ACC + (2 * p * 4 + t) * 4, ACC + ((2 * p + 1) * 4 + t) * 4
            o = []
            if scale:
                if OPT["vs"]:
                    o += [f"v_mul_f32 v{x}, s38, v{x}\nv_mul_f32 v{x+1}, s38, v{x+1}" for x in (d, d + 2, e, e + 2)]
                else:
                    o += [f"v_pk_mul_f32 {vr(x,2)}, {vr(x,2)}, s[38:39]" for x in (d, d + 2, e, e + 2)]
            o += [f"v_cvt_pk_bf16_f32 v{d}, v{d}, v{d+1}", f"v_cvt_pk_bf16_f32 v{d+1}, v{d+2}, v{d+3}",
                  f"v_cvt_pk_bf16_f32 v{d+2}, v{e}, v{e+1}", f"v_cvt_pk_bf16_f32 v{d+3}, v{e+2}, v{e+3}",
                  f"buffer_store_dwordx4 {vr(d,4)}, v18, s[24:27], s{34+p} offen offset:{t*256} {sc}"]
            return o
        seq = []
        for t in range(4):
            seq += [(mm(F1, 0, t), None), (mm(F1, 1, t), (0, t)), (mm(F0, 2, t), None), (mm(F0, 3, t), None)]
        for t in range(4):
            seq += [(mm(F1, 2, t), None), (mm(F1, 3, t), (1, t))]
        pend, n = [], 0
        per = 3 if scale else 2
        for k, (m, g) in enumerate(seq):
            if k == 16:
                a("s_waitcnt lgkmcnt(0)"); n += 1
            a(m); n += 1
            if g:
                pend += [[n + 8, x] for x in out(*g)]
            if pend and pend[0][0] > n:
                w = min(2, pend[0][0] - n)
                a(f"s_nop {w-1}"); n += w
                continue
            for _ in range(per):
                if pend and pend[0][0] <= n:
                    a(pend.pop(0)[1]); n += 1
        while pend:
            if pend[0][0] > n:
                a(f"s_nop {pend[0][0]-n-1}"); n = pend[0][0]
            a(pend.pop(0)[1]); n += 1
    tail(False, "sc1")
    a("L_g_end:")
    a.deferred = lambda: (a(f"L_g_q:\ns_cmp_eq_u32 s{PURE}, 0\ns_cbranch_scc1 L_q_far"), tail(True, ""), a("s_branch L_g_end"))
    a.deferred2 = lambda: (a("L_q_far:"), tail(True, "sc1"), a("s_branch L_g_end"))
    stamp(a, 3)
    a(f"""L_pubflag:
    s_lshl_b32 s36, s{XCD}, 4
    s_add_u32 s36, s36, s{CT}
    s_lshl_b32 s36, s36, 1
    s_and_b32 s37, s{WAVE}, 1
    s_add_u32 s36, s36, s37
    s_lshl_b32 s40, s36, 7
    s_lshl_b32 s36, s36, 4
    s_lshl_b32 s37, s{RBL}, 3
    s_and_b32 s38, s{WAVE}, 2
    s_lshl_b32 s38, s38, 1
    s_add_u32 s37, s37, s38
    s_add_u32 s36, s36, s37
    s_add_u32 s56, s36, {WS_FL}
    s_add_u32 s40, s40, s37
    s_add_u32 s57, s40, {WS_FR}
    s_mov_b32 s58, 1
    s_branch L_att_setup1""")
    a.deferred()


def router(a):
    a("L_router:")
    kc_init(a)
    kc_next(a, 33)
    a(f"""v_and_b32 v5, 1, v1
    v_lshlrev_b32 v5, 11, v5
    v_lshl_add_u32 v14, v4, 4, v5
    v_add_u32 v14, {L_WV}, v14
    L_r_loop:
    s_barrier
    s_lshl_b32 s36, s33, 7
    v_add_u32 v15, s36, v14""")
    for ks in range(2):
        a(f"""ds_read_b128 {vr(F0+12*ks,4)}, v15 offset:{ks*64}
        ds_read_b128 {vr(F0+12*ks+4,4)}, v{12+ks}
        ds_read_b128 {vr(F0+12*ks+8,4)}, v{12+ks} offset:2048""")
    kc_next(a, 33)
    a("""s_add_u32 s43, s43, 1
    s_cmp_eq_u32 s43, 6
    s_cselect_b32 s44, 0xfffec000, s45
    s_cselect_b32 s43, 0, s43
    v_add_u32 v12, s44, v12
    v_add_u32 v13, s44, v13
    s_waitcnt lgkmcnt(0)""")
    for ks in range(2):
        for t in range(2):
            a(f"v_mfma_f32_16x16x32_bf16 {vr(ACC+4*t,4)}, {vr(F0+12*ks,4)}, {vr(F0+12*ks+4+4*t,4)}, {vr(ACC+4*t,4)}")
    a(f"""s_add_u32 s42, s42, 1
    s_cmp_lt_u32 s42, 10
    s_cbranch_scc1 L_r_loop
    s_nop 1
    s_lshl_b32 s36, s{XCD}, 8
    s_lshl_b32 s37, s{RBL}, 7
    s_add_u32 s36, s36, s37
    s_lshl_b32 s37, s{WAVE}, 5
    s_add_u32 s36, s36, s37
    s_mov_b32 s37, {WS_G}""")
    stamp(a, 3)
    for t in range(2):
        a(f"""v_add3_u32 v{14+t}, s36, v3, {16*t}
        v_cvt_pk_bf16_f32 v{26+t}, v{ACC+4*t}, v{ACC+4*t+1}
        v_lshlrev_b32 v{21+t}, 16, v{26+t}
        v_ashrrev_i32 v24, 31, v{21+t}
        v_or_b32 v24, 0x80000000, v24
        v_xor_b32 v{21+t}, v{21+t}, v24
        v_and_b32 v{21+t}, 0xffff0000, v{21+t}
        v_sub_u32 v24, 0xffff, v{14+t}
        v_or_b32 v{21+t}, v{21+t}, v24""")
    top2(a, 21, 22, 25, 46, 47, 48, True)
    a(f"""s_lshr_b32 s36, s36, 1
    s_add_u32 s36, s36, {WS_CAND}
    v_mov_b32 v28, s46
    v_mov_b32 v29, s{TAG}
    v_mov_b32 v30, s47
    v_mov_b32 v31, s{TAG}
    s_mov_b64 exec, 1
    buffer_store_dwordx4 v[28:31], off, s[24:27], s36 sc1
    v_mov_b32 v9, 1
    ds_add_u32 v19, v9 offset:{O_C}
    s_mov_b64 exec, 0xffff""")
    for t in range(2):
        a(f"v_and_b32 v23, 0xffff0000, v{26+t}")
        sigmoid(a, 23, "v23")
        a(f"""v_cvt_pk_bf16_f32 v23, v23, v23
        v_and_b32 v{26+t}, 0xffff0000, v23
        v_lshlrev_b32 v24, 2, v{14+t}
        buffer_store_dword v{26+t}, v24, s[24:27], s37 offen sc1""")
    a(f"""s_mov_b64 exec, 1
    s_lshl_b32 s36, s{XCD}, 5
    s_add_u32 s36, s36, s{LOC}
    s_lshl_b32 s36, s36, 2
    s_add_u32 s36, s36, s{WAVE}
    s_lshl_b32 s36, s36, 2
    s_add_u32 s36, s36, {WS_FL}
    v_mov_b32 v9, 1
    s_waitcnt vmcnt(0)
    buffer_store_dword v29, off, s[24:27], s36 sc1
    ds_add_u32 v19, v9 offset:{O_R}
    s_mov_b64 exec, -1""")
    stamp(a, 4)
    a(f"v_mov_b32 v30, {M_PURE}")
    lds_wait(a, O_FD, 1)
    a("s_branch L_att_setup")


Q, QH, KH, K, V, P, S0, S1, O, M = 32, 36, 38, 40, 44, 52, 64, 80, 96, 112
KA, KHA, VA, QA, QHA, G, G2, XA, XR = 12, 13, 14, 15, 16, 17, 18, 19, 20
TT, NT, HI_ = 33, 34, 35
SQ, SQH = 46, 47


WF, OF, NOF, PA = 32, 92, 9, 128
OL, OH, WL, WH, OUT, LIN, FLG, YA, TOK, VTAG = 148, 149, 150, 152, 156, 159, 160, 161, 162, 163


def outproj_setup(a):
    a(f"""v_and_b32 v164, 15, v1
    v_lshrrev_b32 v165, 4, v1
    v_lshrrev_b32 v5, 1, v165
    v_add_u32 v6, v165, v5
    v_lshlrev_b32 v7, 4, v164
    v_lshl_add_u32 v{OL}, v6, 12, v7
    v_and_b32 v6, 1, v165
    v_lshl_add_u32 v8, v6, 1, v5
    v_mul_u32_u24 v9, {5*4096}, v8
    v_add_u32 v{OH}, v9, v7
    v_add_u32 v{WL}, {L_WO}, v10
    v_add_u32 v{WL+1}, {L_WO+51200}, v10""")
    for t in range(5):
        for j in range(2):
            a(f"""v_lshlrev_b32 v{PA+4*t+2*j}, 16, v{XR+2*t+j}
            v_and_b32 v{PA+4*t+2*j+1}, 0xffff0000, v{XR+2*t+j}""")
    for n in range(3):
        a(f"""v_add_u32 v5, {64*n}, v1
        v_mul_u32_u24 v6, 6554, v5
        v_lshrrev_b32 v6, 16, v6
        v_mul_u32_u24 v7, 10, v6
        v_sub_u32 v7, v5, v7
        v_mul_u32_u24 v6, 1280, v6
        v_lshl_add_u32 v{OUT+n}, v7, 4, v6""")
    a(f"""v_lshl_add_u32 v{OUT+2}, v4, 28, v{OUT+2}
    s_mul_i32 s36, s{WAVE}, 2560
    v_add_u32 v{LIN}, s36, v10
    v_lshlrev_b32 v{FLG}, 2, v3
    v_lshl_add_u32 v{YA}, v165, 4, v30
    v_add_u32 v{TOK}, s51, v164
    s_mul_i32 s56, s51, 1280
    s_lshr_b32 s37, s{LOC}, 2
    s_mul_i32 s37, s37, 160
    s_add_u32 s56, s56, s37
    s_lshr_b32 s57, s51, 5
    s_lshl_b32 s57, s57, 7
    s_add_u32 s57, s57, {WS_FO}
    s_mul_i32 s58, s{XCD}, {XB}
    s_and_b32 s38, s51, 255
    s_lshl_b32 s38, s38, 4
    s_add_u32 s58, s58, s38            ; O pieces
    s_add_u32 s59, s58, 8192
    s_waitcnt vmcnt(5)
    v_sub_f32 v{G2}, 1.0, v{G2}""")
    for i in range(20):
        a(f"v_mul_f32 v{PA+i}, v{G2}, v{PA+i}")


def diag_mask(a, old):
    a(f"""v_lshlrev_b32 v6, 2, v4
    v_sub_u32 v6, v3, v6
    v_mov_b32 v7, 0xff800000""")
    for r in range(0, 16, 2):
        k0, k1 = (r >> 2) * 8 + (r & 3), (r >> 2) * 8 + (r & 3) + 1
        a(f"""v_cmp_le_i32 s[44:45], {k0}, v6
        v_cmp_le_i32 s[48:49], {k1}, v6
        s_nop 0
        v_cndmask_b32_e64 v{S0+r}, v7, 0, s[44:45]
        v_cndmask_b32_e64 v{S0+r+1}, v7, 0, s[48:49]""")
        if old:
            a(f"""v_cndmask_b32_e64 v{M+r}, 0, v7, s[44:45]
            v_cndmask_b32_e64 v{M+r+1}, 0, v7, s[48:49]""")


def attention(a):
    SRC = WS_L
    a("L_att_setup:\ns_mov_b32 s58, 0\nL_att_setup1:\ns_load_dwordx2 s[52:53], s[0:1], 72\ns_mov_b32 s54, 2621440\ns_mov_b32 s55, 0x20000")
    a(f"""s_and_b32 s31, s{LOC}, 1
    s_mul_i32 s40, s{LOC}, 5
    s_lshr_b32 s40, s40, 1            ; c0
    s_sub_u32 s{TT}, 11, s{WAVE}
    s_cmp_lt_u32 s{WAVE}, 4
    s_cselect_b32 s{TT}, s{WAVE}, s{TT}
    {"s_sub_u32 s%d, 7, s%d" % (TT, TT) if OPT["tmap"] == 1 else ""}
    {"s_xor_b32 s%d, s%d, 4" % (TT, WAVE) if OPT["tmap"] == 2 else ""}
    {"s_xor_b32 s%d, s%d, 3" % (TT, TT) if OPT["tmap"] == 3 else ""}
    {"s_xor_b32 s%d, s%d, 2" % (TT, TT) if OPT["tmap"] == 4 else ""}
    {"s_mov_b32 s%d, s%d" % (TT, WAVE) if OPT["tmap"] == 5 else ""}
    s_add_u32 s36, s{TT}, 1
    s_cmp_eq_u32 s{XCD}, 0
    s_cselect_b32 s{NT}, s36, 9
    s_cselect_b32 s36, 4, 17
    s_movk_i32 s37, 0xff
    s_cselect_b32 s37, 0x3ff, s37
    s_lshl_b32 s36, s36, s{TT}
    s_and_b32 s{HI_}, s36, s37
    s_lshr_b32 s36, s{LOC}, 2
    s_xor_b32 s36, s36, s31
    s_andn2_b32 s41, 1, s36
    s_lshl_b32 s41, s41, 3
    s_xor_b32 s42, s31, 1
    s_lshl_b32 s42, s42, 1
    s_mul_i32 s36, s{XCD}, 240
    s_add_u32 s36, s36, s40
    s_lshl_b32 s43, s36, 12
    s_lshl_b32 s37, s{TT}, 9
    s_add_u32 s36, s43, s37
    s_lshl_b32 s38, s31, 12
    s_add_u32 s{SQ}, s36, s38
    s_lshl_b32 s38, s42, 12
    s_add_u32 s38, s38, s41
    s_add_u32 s{SQH}, s36, s38
    v_lshlrev_b32 v10, 4, v1
    v_and_b32 v3, 31, v1
    v_lshrrev_b32 v4, 5, v1
    v_lshlrev_b32 v5, 4, v3
    v_lshl_add_u32 v{QA}, v4, 12, v5
    v_lshl_add_u32 v{QHA}, v4, 28, v5
    s_mul_i32 s38, s31, {CS}
    s_add_u32 s38, s38, s37
    v_mul_u32_u24 v6, {CS}, v4
    v_add3_u32 v{KA}, v6, v5, s38
    s_mul_i32 s38, s42, {CS}
    s_add_u32 s38, s38, s41
    s_add_u32 s38, s38, s37
    v_add_u32 v6, s38, v5
    v_mov_b32 v9, {L_ONES}
    v_cmp_eq_u32 s[44:45], 0, v4
    v_bfe_u32 v7, v1, 4, 1
    v_and_b32 v8, 3, v1
    v_add_u32 v11, 8, v9
    v_cndmask_b32_e64 v{KHA}, v11, v6, s[44:45]
    v_lshl_add_u32 v6, v7, 2, v8      ; gamma
    v_add_u32 v7, s31, v6
    v_lshrrev_b32 v8, 1, v7
    v_add_u32 v11, s40, v8
    v_lshrrev_b32 v11, 1, v11
    v_xor_b32 v7, v7, v11
    v_and_b32 v7, 1, v7
    v_mul_u32_u24 v8, {CS}, v8
    v_lshl_add_u32 v8, v7, 3, v8
    s_add_u32 s38, s37, {L_V}
    v_add_u32 v8, s38, v8
    v_cmp_gt_u32 s[44:45], 5, v6
    v_bfe_u32 v7, v1, 2, 2
    v_lshl_add_u32 v7, v4, 2, v7
    v_cndmask_b32_e64 v8, v9, v8, s[44:45]
    v_lshl_add_u32 v{VA}, v7, 4, v8""")
    diag_mask(a, True)
    a(f"""s_lshr_b32 s36, s{WAVE}, 2
    s_mul_i32 s37, s36, {L_V}
    s_add_u32 s36, s36, 1
    s_mul_i32 s36, s36, {80*4096}
    s_add_u32 s36, s36, s43
    s_and_b32 s38, s{WAVE}, 3
    s_mul_i32 s38, s38, 3
    v_and_b32 v5, 15, v1
    v_mul_u32_u24 v6, 160, v5
    v_lshrrev_b32 v7, 4, v1
    v_lshl_add_u32 v6, v7, 3, v6
    s_and_b32 s39, s{WAVE}, 3
    s_mul_i32 s44, s39, 2560
    v_add_u32 v{XA}, s44, v6
    s_and_b32 s44, s{LOC}, 3
    s_lshl_b32 s44, s44, {5 if OPT["rowmap"] else 6}
    s_lshl_b32 s45, s{XCD}, 8
    s_add_u32 s48, s44, s45
    s_and_b32 s44, s39, 1
    s_lshl_b32 s44, s44, 4
    s_add_u32 s51, s48, s44
    s_and_b32 s44, s39, 2
    s_lshl_b32 s44, s44, {6 if OPT["rowmap"] else 4}
    s_add_u32 s51, s51, s44
    s_lshl_b32 s39, s{TT}, 5
    s_add_u32 s39, s39, s45
    v_add_lshl_u32 v6, s39, v3, 2
    v_add_lshl_u32 v7, s51, v5, 2
    s_mov_b32 s39, {WS_G}
    v_add_u32 v11, {L_XT}, v{XA}
    v_mov_b32 v30, {M_PURE}
    v_mov_b32 v2, 1
    v_mov_b32 v{VTAG}, s{TAG}
    s_mov_b32 s40, 0""")
    for t in range(5):
        a(f"ds_read_b64 {vr(XR+2*t,2)}, v11 offset:{t*32}")
    for i in range(3):
        if OPT["kfirst"]:
            a(f"""s_add_u32 s44, s{WAVE}, {8*i}
            s_cmp_ge_u32 s44, 12
            s_cselect_b32 s37, {L_V}, 0
            s_cselect_b32 s36, {80*4096}, 0
            s_cselect_b32 s45, 12, 0
            s_add_u32 s36, s36, {80*4096}
            s_add_u32 s36, s36, s43
            s_sub_u32 s44, s44, s45""")
        else:
            a(f"s_add_u32 s44, s38, {i}")
        a(f"""s_lshr_b32 s45, s44, 2
        s_mul_i32 s45, s45, {CS-4096}
        s_lshl_b32 s44, s44, 10
        s_add_u32 s45, s45, s44
        s_add_u32 s45, s45, s37
        s_add_u32 s{4+2*i}, s45, 4096
        s_add_u32 s{5+2*i}, s44, s36""")
    a(f"""s_mov_b32 m0, s4
    s_cmp_eq_u32 s58, 0
    s_cbranch_scc1 L_nopub
    s_mov_b64 exec, 1
    s_waitcnt vmcnt(0)""")
    stamp(a, 4)
    two_flavours(a, lambda sc: a(f"buffer_store_dword v{VTAG}, off, s[24:27], s56 {sc}"))
    if not OPT["rfl"]:
        a(f"""s_cmp_lt_u32 s{CT}, 5
        s_cbranch_scc1 L_norf
        buffer_store_dword v{VTAG}, off, s[24:27], s57 sc1
        L_norf:""")
    a(f"""ds_add_u32 v30, v2 offset:{O_R}
    s_mov_b64 exec, -1
    L_nopub:
    s_waitcnt lgkmcnt(0)
    s_barrier""")
    stamp(a, 5)
    if OPT["kfirst"]:
        a(f"""buffer_load_dwordx4 v10, s[24:27], s5 offen sc1 lds
        s_mov_b32 m0, s6
        buffer_load_dword v{G2}, v7, s[24:27], s39 offen sc1
        buffer_load_dwordx4 {vr(Q,4)}, v{QA}, s[24:27], s{SQ} offen sc1
        buffer_load_dwordx2 {vr(QH,2)}, v{QHA}, s[24:27], s{SQH} offen sc1
        buffer_load_dwordx4 v10, s[24:27], s7 offen sc1 lds
        s_mov_b32 m0, s8
        buffer_load_dword v{G}, v6, s[24:27], s39 offen sc1
        buffer_load_dwordx4 v10, s[24:27], s9 offen sc1 lds""")
    else:
      a(f"""buffer_load_dwordx4 v10, s[24:27], s5 offen sc1 lds
    s_mov_b32 m0, s6
    buffer_load_dword v{G2}, v7, s[24:27], s39 offen sc1
    buffer_load_dwordx4 v10, s[24:27], s7 offen sc1 lds
    s_mov_b32 m0, s8
    buffer_load_dwordx4 {vr(Q,4)}, v{QA}, s[24:27], s{SQ} offen sc1
    buffer_load_dwordx4 v10, s[24:27], s9 offen sc1 lds
    buffer_load_dwordx2 {vr(QH,2)}, v{QHA}, s[24:27], s{SQH} offen sc1
    buffer_load_dword v{G}, v6, s[24:27], s39 offen sc1""")
    if OPT["opw"]:
        for r in (OL, OH, OUT, OUT + 1, OUT + 2, FLG):
            a(f"v_mov_b32 v{r}, 0")
        a(f"s_cmp_ge_u32 s{WAVE}, 4\ns_cbranch_scc1 L_noopset")
    outproj_setup(a)
    a("L_noopset:")
    if OPT["kfirst"] == 2:
        a(f"""s_waitcnt vmcnt(3)
        s_cmp_ge_u32 s{WAVE}, 4
        s_cbranch_scc1 L_kf
        s_waitcnt vmcnt(2)
        L_kf:""")
    else:
        a("s_waitcnt vmcnt(0)")
    a("ds_read_b32 v31, v30")
    lds_add(a, O_B2)
    lds_wait(a, O_B2, 8)
    if OPT["aprio"]:
        a(f"s_setprio {OPT['aprio']}")
    stamp(a, 6)
    off = lambda i: (8 - i) * 512
    rdK = lambda i: f"ds_read_b128 {vr(K,4)}, v{KA} offset:{off(i)}"
    rdKH = lambda i: f"ds_read_b64 {vr(KH,2)}, v{KHA} offset:{off(i)}"
    rdV = lambda i, h: f"ds_read_b64_tr_b16 {vr(V+4*h,2)}, v{VA} offset:{off(i)+256*h}\nds_read_b64_tr_b16 {vr(V+4*h+2,2)}, v{VA} offset:{off(i)+256*h+128}"
    stubs = []
    def halo_check(tval):
        stubs.append(tval)
        a(f"s_bitcmp1_b32 s{HI_}, {tval}\ns_cbranch_scc1 L_hw{tval}\nL_hr{tval}:")
    a("L_att_go:")
    a(rdK(0)); a(rdKH(0)); a(rdV(0, 0))
    halo_check(0)
    a(f"""s_waitcnt lgkmcnt(2)
    v_mfma_f32_32x32x16_bf16 {vr(S0,16)}, {vr(K,4)}, {vr(Q,4)}, {vr(S0,16)}""")
    a(rdK(1))
    a(f"v_mfma_f32_32x32x8_bf16 {vr(S0,16)}, {vr(KH,2)}, {vr(QH,2)}, {vr(S0,16)}")
    a(rdKH(1))
    a(f"""v_readfirstlane_b32 s{PURE}, v31
    s_nop 4
    s_waitcnt lgkmcnt(0)""")

    def softq(S, q):
        for j in range(4):
            a(f"v_exp_f32 v{S+4*q+j}, v{S+4*q+j}")
        for j in range(2):
            a(f"v_cvt_pk_bf16_f32 v{P+2*q+j}, v{S+4*q+2*j}, v{S+4*q+2*j+1}")

    for i in range(9):
        S, SN = (S0, S1) if i % 2 == 0 else (S1, S0)
        halo_check(i + 1)
        if i > 0:
            a("s_waitcnt lgkmcnt(2)" if not OPT["w1"] else "s_waitcnt lgkmcnt(0)")
        if i < 8:
            c = vr(M, 16) if i + 1 == 8 else "0"
            a(f"v_mfma_f32_32x32x16_bf16 {vr(SN,16)}, {vr(K,4)}, {vr(Q,4)}, {c}")
        nread = 0
        if i < 7:
            a(rdK(i + 2)); nread += 1
        softq(S, 0)
        if i > 0:
            a(f"v_mfma_f32_32x32x16_bf16 {vr(O,16)}, {vr(V+4,4)}, {vr(P+4,4)}, {vr(O,16)}")
        a(rdV(i, 1)); nread += 2
        softq(S, 1)
        if i < 8:
            a(f"v_mfma_f32_32x32x8_bf16 {vr(SN,16)}, {vr(KH,2)}, {vr(QH,2)}, {vr(SN,16)}")
        if i < 7:
            a(rdKH(i + 2)); nread += 1
        softq(S, 2)
        if not OPT["w1"]:
            a(f"s_waitcnt lgkmcnt({nread})")
        a(f"v_mfma_f32_32x32x16_bf16 {vr(O,16)}, {vr(V,4)}, {vr(P,4)}, {'0' if i == 0 else vr(O,16)}")
        if i < 8:
            a(rdV(i + 1, 0))
        softq(S, 3)
    a(f"""L_att_fin:
    s_waitcnt lgkmcnt(0)
    s_nop 0
    v_mfma_f32_32x32x16_bf16 {vr(O,16)}, {vr(V+4,4)}, {vr(P+4,4)}, {vr(O,16)}
    s_lshl_b32 s36, s{XCD}, 3
    s_add_u32 s36, s36, s{TT}
    s_lshl_b32 s36, s36, 5
    s_add_u32 s36, s36, s{LOC}
    s_lshl_b32 s36, s36, 2
    s_add_u32 s36, s36, {WS_FO}
    s_mov_b32 s37, {f32(2.0**-64)}
    s_mov_b32 s38, {f32(2.0**64 if not OPT['forcefb'] else 2.0**12)}
    s_nop 3
    v_rcp_f32 v8, v{O+12}
    v_cmp_nle_f32 s[44:45], s37, v{O+12}
    v_cmp_nge_f32 vcc, s38, v{O+12}
    v_mul_f32 v8, v8, v{G}
    s_or_b64 vcc, vcc, s[44:45]""")
    if OPT["ochk"]:
        a(f"v_pk_mul_f32 v[6:7], {vr(O,2)}, 0")
        for r in range(1, 6):
            a(f"v_pk_fma_f32 v[6:7], {vr(O+2*r,2)}, 0, v[6:7]")
        a("v_cmp_u_f32 s[44:45], v6, v7\ns_or_b64 vcc, vcc, s[44:45]")
    a(f"""s_cbranch_vccnz L_fallback
    L_att_ok:""")
    for r in range(6):
        a(f"v_pk_mul_f32 {vr(O+2*r,2)}, {vr(O+2*r,2)}, v[8:9] op_sel_hi:[1,0]")
    for r in range(6):
        a(f"v_cvt_pk_bf16_f32 v{P+r}, v{O+2*r}, v{O+2*r+1}")
    def pub(sc):
        a(f"""buffer_store_dwordx4 {vr(P,4)}, v{QA}, s[24:27], s{SQ} offen {sc or OPT["ont"]}
        buffer_store_dwordx2 {vr(P+4,2)}, v{QHA}, s[24:27], s{SQH} offen {sc or OPT["ont2"]}""")
        stamp(a, 7)
        a(f"""s_mov_b64 exec, 1
        ds_add_u32 v30, v2 offset:{O_ATT}
        ds_read_b64 v[62:63], v30 offset:16
        s_waitcnt vmcnt(0)
        buffer_store_dword v{VTAG}, off, s[24:27], s36 {sc}
        s_mov_b64 exec, -1""")
    two_flavours(a, pub)
    stamp(a, 8)
    return stubs


def att_stubs(a, stubs):
    for t in stubs:
        a(f"L_hw{t}:")
        if t >= 8:
            a("s_branch L_att_fin")
            continue
        if t >= 2:
            a(f"s_cmp_eq_u32 s{XCD}, 0\ns_cbranch_scc1 L_att_fin")
        a(f"""s_cmp_eq_u32 s{TT}, {t}
        s_cselect_b32 s36, 1, 2
        s_mov_b32 s50, {SPIN*8}
        L_hs{t}:
        {"s_sleep %d" % OPT["slp"] if OPT["slp"] else ""}
        ds_read_b32 v9, v30 offset:4
        s_sub_u32 s50, s50, 1
        s_cbranch_scc1 L_hr{t}
        s_waitcnt lgkmcnt(0)
        v_cmp_gt_u32 vcc, s36, v9
        s_cbranch_vccnz L_hs{t}
        s_branch L_hr{t}""")
    a(f"""L_fallback:
    s_cmp_lg_u32 s40, 0
    s_cbranch_scc1 L_att_ok
    s_mov_b32 s40, 1""")
    diag_mask(a, False)
    a(f"""v_mov_b32 v8, 0xff800000
    v_add_u32 v5, 4096, v{KA}
    v_add_u32 v6, 4096, v{KHA}
    s_mov_b32 s36, 0
    L_fb_loop:
    ds_read_b128 {vr(K,4)}, v5
    ds_read_b64 {vr(KH,2)}, v6
    v_subrev_u32 v5, 512, v5
    v_subrev_u32 v6, 512, v6
    s_waitcnt lgkmcnt(0)
    s_cmp_eq_u32 s36, 0
    s_cbranch_scc1 L_fb_a
    s_cmp_eq_u32 s36, 8
    s_cbranch_scc1 L_fb_b
    v_mfma_f32_32x32x16_bf16 {vr(S1,16)}, {vr(K,4)}, {vr(Q,4)}, 0
    s_branch L_fb_c
    L_fb_a:
    v_mfma_f32_32x32x16_bf16 {vr(S1,16)}, {vr(K,4)}, {vr(Q,4)}, {vr(S0,16)}
    s_branch L_fb_c
    L_fb_b:
    v_mfma_f32_32x32x16_bf16 {vr(S1,16)}, {vr(K,4)}, {vr(Q,4)}, {vr(M,16)}
    L_fb_c:
    v_mfma_f32_32x32x8_bf16 {vr(S1,16)}, {vr(KH,2)}, {vr(QH,2)}, {vr(S1,16)}
    s_nop 11""")
    for r in range(0, 16, 2):
        a(f"v_max3_f32 v8, v8, v{S1+r}, v{S1+r+1}")
    a(f"""s_add_u32 s36, s36, 1
    s_cmp_lt_u32 s36, s{NT}
    s_cbranch_scc1 L_fb_loop
    v_mov_b32 v9, v8
    s_nop 1
    v_permlane32_swap_b32 v8, v9
    v_max_f32 v8, v8, v9
    v_sub_f32 v8, 0, v8
    v_and_b32 v5, 0xffff0000, v8
    v_sub_f32 v8, v8, v5
    v_and_b32 v6, 0xffff0000, v8
    v_sub_f32 v8, v8, v6
    v_lshrrev_b32 v5, 16, v5
    v_or_b32 v5, v5, v6
    v_lshrrev_b32 v8, 16, v8
    v_cmp_eq_u32 s[44:45], 0, v4
    s_nop 1
    v_cndmask_b32_e64 v{QH}, v5, v{QH}, s[44:45]
    v_cndmask_b32_e64 v{QH+1}, v8, v{QH+1}, s[44:45]
    s_branch L_att_go""")


def outproj(a):
    a(f"""s_cmp_lt_u32 s{WAVE}, 4
    s_cbranch_scc1 L_op_main
    s_waitcnt lgkmcnt(0)""")
    finish(a)
    pl = f"buffer_load_dword v6, v{FLG}, s[24:27], s57 offen sc1"
    a(f"""L_op_main:
    {"s_setprio 0" if OPT["aprio"] else ""}
    {"" if OPT["gate"] else pl}""")
    lds_wait(a, O_WO, 1)
    stamp(a, 9)

    def wread(s, t):
        f = WF + 20 * (s % 3) + 4 * t
        a(f"ds_read_b128 {vr(f,4)}, v{WL+s//10} offset:{(s%10)*5120+t*1024}")

    def oload(s):
        r = OF + 4 * (s % NOF)
        if s < 16:
            a(f"buffer_load_dwordx4 {vr(r,4)}, v{OL}, s[24:27], s58 offen {OPT['olf'].replace('_', ' ')}\ns_add_u32 s58, s58, s4")
        else:
            a(f"buffer_load_dwordx4 {vr(r,4)}, v{OH}, s[24:27], s59 offen {OPT['olf'].replace('_', ' ')}\ns_add_u32 s59, s59, s5")
    a(f"""s_mov_b32 s50, {SPIN*8}
    L_tv:
    v_readfirstlane_b32 s42, v62
    v_readfirstlane_b32 s43, v63
    s_cmp_lg_u32 s42, 0
    s_cbranch_scc1 L_to
    ds_read_b64 v[62:63], v30 offset:16
    s_sub_u32 s50, s50, 1
    s_waitcnt lgkmcnt(0)
    s_cbranch_scc0 L_tv
    L_to:
    s_movk_i32 s4, {5*4096}
    s_mov_b32 s5, {20*4096}
    s_and_b32 s42, s42, 0xffff""")
    npre = OPT["npre"]
    for s in range(npre):
        for t in range(5):
            wread(s, t)
    a(f"""v_cmp_eq_u32 s[44:45], s43, v{TOK}
    v_cmp_eq_u32 s[48:49], s42, v{TOK}""")
    if OPT["gate"]:
        lds_wait(a, O_ATT, OPT["gate"])
    poll(a, pl, [6], pre=not OPT["gate"])
    stamp(a, 10)
    NL0 = OPT["nl0"]
    assert NL0 <= 9
    YQ = (12, 20, 24, 152, 164)
    for s in range(NL0):
        oload(s)
    for s in range(npre, 3):
        for t in range(5):
            wread(s, t)
    a(f"""s_or_b64 s[48:49], s[44:45], s[48:49]
    s_cbranch_scc0 L_op_loop
    v_mov_b32 v7, 320
    v_cndmask_b32_e64 v7, 0, v7, s[44:45]
    v_add_u32 v7, v7, v{YA}
    s_mov_b32 s50, {SPIN*8}
    s_waitcnt lgkmcnt(0)
    L_yw:
    ds_read_b32 v9, v30 offset:{O_Y}""")
    for t in range(5):
        a(f"ds_read_b128 {vr(YQ[t],4)}, v7 offset:{L_Y-L_MISC+t*64}")
    a(f"""s_sub_u32 s50, s50, 1
    s_waitcnt lgkmcnt(0)
    s_cbranch_scc1 L_op_loop
    v_cmp_ne_u32 vcc, 1, v9
    s_cbranch_vccnz L_yw
    s_mov_b64 exec, s[48:49]""")
    for i in range(20):
        a(f"v_fmac_f32 v{PA+i}, v{G2}, v{YQ[i//4]+i%4}")
    a("s_mov_b64 exec, -1\nL_op_loop:")
    issued = NL0
    for s in range(20):
        a(f"s_waitcnt vmcnt({issued-1-s}) lgkmcnt({10 if s < 18 else (6 if s == 18 else 1) - (OPT['gate'] == 8)})")
        for t in range(5):
            a(f"v_mfma_f32_16x16x32_bf16 {vr(PA+4*t,4)}, {vr(WF+20*(s%3)+4*t,4)}, {vr(OF+4*(s%NOF),4)}, {vr(PA+4*t,4)}")
            if s == 19 and OPT["epi2"] and t < 4:
                a("s_nop 0")
            if s < 17:
                wread(s + 3, t)
            if t in ((0, 2) if OPT["nla"] > NL0 else (OPT["opos"],)) and issued < min(20, s + 1 + OPT["nla"]):
                oload(issued); issued += 1
            if s == 17 and t == 0 and OPT["gate"] != 8:
                a(f"ds_read_b32 v9, v30 offset:{O_ATT}")
    a("L_op_end:")
    stamp(a, 11)
    if OPT["gate"] != 8:
        lds_wait(a, O_ATT, 8, pre=True)
    elif not OPT["epi2"]:
        a("s_nop 3")
    for t in range(5):
        a(f"""v_cvt_pk_bf16_f32 v{WF+2*t}, v{PA+4*t}, v{PA+4*t+1}
        v_cvt_pk_bf16_f32 v{WF+2*t+1}, v{PA+4*t+2}, v{PA+4*t+3}
        ds_write_b64 v{XA}, {vr(WF+2*t,2)} offset:{t*32}""")
    for n in range(3):
        a(f"ds_read_b128 {vr(OF+16+4*n,4)}, v{LIN} offset:{n*1024}")
    for n in range(3):
        a(f"s_waitcnt lgkmcnt({2-n})\nbuffer_store_dwordx4 {vr(OF+16+4*n,4)}, v{OUT+n}, s[52:55], s56 offen {OPT['osc'].replace('_', ' ')}")
    stamp(a, 12)
    if OPT["probe"]:
        pa, pb = [int(x) for x in OPT["probe"].split("_")]
        if OPT["pskew"] >= 0:
            k = OPT["pskew"]
            a(f"""v_and_b32 v5, 7, v1
            v_lshlrev_b32 v5, 7, v5
            s_mov_b32 s36, {WS_ST + 40*128}
            buffer_load_dword v6, v5, s[24:27], s36 offen sc1
            s_waitcnt vmcnt(0)""")
            for i in range(8):
                a(f"v_readlane_b32 s{4+i}, v6, {i}")
            a("s_mov_b32 s62, s4\ns_mov_b32 s63, s4")
            for i in range(1, 8):
                a(f"s_min_u32 s62, s62, s{4+i}\ns_max_u32 s63, s63, s{4+i}")
            a(f"s_add_u32 s64, {'s63' if k == 8 else 's%d' % (4+k)}, 100")
            pa, pb = 0, 1
        a(f"""s_sub_u32 s36, s{62+2*pb}, s{62+2*pa}
        {'s_lshr_b32 s36, s36, 1' if OPT['pcyc'] else 's_lshl_b32 s36, s36, 3'}
        s_min_u32 s36, s36, 20000
        s_lshl_b32 s37, s{WAVE}, 8
        s_add_u32 s37, s37, s2
        s_cmp_lg_u32 s37, {OPT["pwg"]}
        s_cselect_b32 s36, 0, s36
        s_memrealtime s[38:39]
        s_waitcnt lgkmcnt(0)
        s_add_u32 s36, s36, s38
        L_probe:
        s_sleep 2
        s_memrealtime s[38:39]
        s_waitcnt lgkmcnt(0)
        s_sub_u32 s37, s38, s36
        s_cmp_lt_i32 s37, 0
        s_cbranch_scc1 L_probe""")
    finish(a, True)


def wo_offsets(a):
    for n in range(5):
        a(f"""v_add_u32 v5, {64*n}, v1
        v_mul_u32_u24 v6, 6554, v5
        v_lshrrev_b32 v6, 16, v6
        v_mul_u32_u24 v8, 10, v6
        v_sub_u32 v8, v5, v8
        v_mul_u32_u24 v6, 1280, v6
        v_lshl_add_u32 v{WOV+n}, v8, 4, v6""")


WOV = 160
def wo_groups(a, n0, n1):
    lp = uid("wo")
    a(f"""s_mov_b32 m0, {L_WO+n0*4096}
    s_add_u32 s41, s43, {n0*4096}
    s_movk_i32 s44, 0x1000
    {lp}:""")
    for j in range(4):
        a(f"buffer_load_dwordx4 v10, s[24:27], s41 offen offset:{j*1024} sc1 lds")
    if OPT["wdep"] and n0:
        a(f"s_waitcnt vmcnt({OPT['wdep']})")
    a(f"""s_add_u32 m0, m0, s44
    s_add_u32 s41, s41, s44
    s_cmp_lt_u32 m0, {L_WO+n1*4096}
    s_cbranch_scc1 {lp}""")


def purity(a):
    a(f"""v_cmp_ne_u32 vcc, s{TAG}, v12
    v_cmp_ne_u32 s[44:45], s35, v13
    s_or_b64 vcc, vcc, s[44:45]
    s_cselect_b32 s36, 0, {0 if OPT['forceimp'] else 1}
    v_mov_b32 v5, s36
    ds_write_b32 v30, v5
    s_waitcnt lgkmcnt(0)""")


def helper1(a):
    a(f"""L_help:
    s_cmp_eq_u32 s{WAVE}, 9
    s_cbranch_scc1 L_ffn
    s_load_dwordx2 s[8:9], s[0:1], 32
    s_load_dwordx2 s[10:11], s[0:1], 64
    v_lshlrev_b32 v10, 4, v1""")
    a(f"""v_mov_b32 v16, {"0x3f80" if OPT["ones"] else "0x3f803f80"}
    v_mov_b32 v17, {"0" if OPT["ones"] else "0x3f803f80"}
    v_mov_b32 v18, 0x3f803f80
    v_mov_b32 v19, 0x3f80
    v_add_u32 v5, {L_ONES}, v10""")
    for i in range(5):
        a(f"ds_write_b128 v5, v[16:19] offset:{i*1024}")
    a(f"""v_mov_b32 v30, {M_PURE}
    v_mov_b32 v6, 0
    v_lshl_add_u32 v7, v1, 2, v30
    ds_write_b32 v7, v6""")
    if OPT["prio"]:
        a("s_setprio 3")
    wo_offsets(a)
    a("s_waitcnt lgkmcnt(0)")
    epoch_load(a)
    srd(a, SX, 4, 2621440)
    srd(a, SS, 12, WS_END)
    srd(a, SA, 8, 1280)
    srd(a, SB, 10, 1280)
    a(f"""s_cmp_lg_u32 s{CT}, 15
    s_cbranch_scc1 L_nowv
    s_mov_b32 m0, {L_WV}
    s_nop 0
    buffer_load_dwordx4 v10, s[52:55], 0 offen lds
    buffer_load_dwordx4 v10, s[52:55], 0 offen offset:1024 lds
    s_mov_b32 m0, {L_WV+2048}
    s_nop 0
    buffer_load_dwordx4 v10, s[56:59], 0 offen lds
    buffer_load_dwordx4 v10, s[56:59], 0 offen offset:1024 lds
    L_nowv:
    s_getreg_b32 s35, hwreg(HW_REG_XCC_ID, 0, 4)
    s_lshr_b32 s34, s{LOC}, 2
    s_mul_i32 s34, s34, 160
    s_mul_i32 s33, s{LOC}, 5
    s_lshr_b32 s33, s33, 1             ; c0
    v_bfe_u32 v5, v1, 2, 1
    v_lshl_add_u32 v6, v5, 1, s33
    v_lshrrev_b32 v6, 3, v6
    v_bfe_u32 v7, v1, 3, 2             ; section (3 = router/gate)
    v_cmp_eq_u32 s[44:45], 3, v7
    v_and_b32 v8, 3, v1
    v_lshlrev_b32 v8, 2, v8
    v_cndmask_b32_e64 v5, v6, v5, s[44:45]
    v_mad_u32_u24 v5, v7, 10, v5
    v_lshl_add_u32 v11, v5, 4, v8
    v_and_b32 v7, 1, v7
    v_mad_u32_u24 v5, v7, 10, v6
    v_add_u32 v5, 10, v5
    v_lshl_add_u32 v15, v5, 7, v8
    v_and_b32 v14, 31, v1
    v_lshlrev_b32 v14, 3, v14
    s_lshl_b32 s42, s{XCD}, 8
    s_add_u32 s42, s42, {WS_XID}""")
    epoch_fin(a)
    stamp(a, 1)
    a(f"""s_waitcnt vmcnt(0)
    s_barrier
    s_lshl_b32 s36, s{LOC}, 3
    s_add_u32 s36, s36, s42
    v_mov_b32 v8, s{TAG}
    v_mov_b32 v9, s35
    v_mov_b32 v5, 0
    s_mov_b64 exec, 1
    buffer_store_dwordx2 v[8:9], v5, s[24:27], s36 offen {'sc1' if OPT['xsc'] else ''}
    s_mov_b64 exec, -1""")
    def qtouch(part):
        if OPT["qown"]:
            l = uid("nq")
            a(f"""s_cmp_ge_u32 s{CT}, 5
            s_cbranch_scc1 {l}
            s_mul_i32 s36, s{XCD}, {XB}
            s_lshl_b32 s37, s{LOC}, 15
            s_add_u32 s36, s36, s37
            s_add_u32 s36, s36, {part*16384}
            s_add_u32 s37, s36, 8192
            v_lshlrev_b32 v5, 7, v1
            buffer_load_dword v167, v5, s[24:27], s36 offen sc1
            buffer_load_dword v167, v5, s[24:27], s37 offen sc1""")
            if part:
                a(f"""s_mul_i32 s36, s{XCD}, 10
                s_add_u32 s36, s36, s{LOC}
                s_mul_i32 s36, s36, 3072
                s_add_u32 s36, s36, {WS_P1}
                s_mov_b64 exec, 0xffffff
                buffer_load_dword v167, v5, s[24:27], s36 offen sc1
                s_mov_b64 exec, -1""")
            a(f"{l}:")
            return
        a(f"""s_mul_i32 s36, s{XCD}, {XB}
        s_mul_i32 s37, s{LOC}, {86*128}
        s_min_u32 s37, s37, {(2560-86)*128}
        s_add_u32 s36, s36, s37
        s_add_u32 s36, s36, {part*43*128}
        v_min_u32 v5, 42, v1
        v_lshlrev_b32 v5, 7, v5
        buffer_load_dword v167, v5, s[24:27], s36 offen sc1""")
        if part:
            a(f"""s_mul_i32 s36, s{XCD}, 30
            s_add_u32 s36, s36, s{LOC}
            s_lshl_b32 s36, s36, 10
            s_add_u32 s36, s36, {WS_P1}
            s_mov_b64 exec, 0xff
            buffer_load_dword v167, v5, s[24:27], s36 offen sc1
            s_mov_b64 exec, -1""")
    a(f"""s_and_b32 s38, s{LOC}, 3
    s_lshl_b32 s38, s38, 5
    s_lshl_b32 s39, s{XCD}, 8
    s_add_u32 s38, s38, s39
    s_mul_i32 s38, s38, 1280
    s_add_u32 s38, s38, s34
    s_add_u32 s39, s38, {128*1280}""")
    side = {i: [] for i in range(10)}
    def spread(items, spec):
        a0, a1 = [int(x) for x in spec.split("_")]
        n = a1 - a0 + 1
        for k, it in enumerate(items):
            side[a0 + k * n // len(items)].append(it)
    spread([f"""s_mov_b32 m0, {L_XT+n*1024}
        s_nop 0
        buffer_load_dwordx4 v{WOV+n%5}, s[16:19], s{38+n//5} offen lds""" for n in range(10)], OPT["xs"])
    a(f"""s_cmp_lg_u32 s{CT}, 15
    s_cbranch_scc1 L_h_g""")
    if OPT["fwarm"]:
        a(f"""s_lshl_b32 s36, s{XCD}, 10
        s_add_u32 s36, s36, {WS_FO}
        s_lshl_b32 s37, s{XCD}, 9
        s_add_u32 s37, s37, {WS_FL}
        v_and_b32 v5, 7, v1
        v_lshlrev_b32 v5, 7, v5
        v_lshrrev_b32 v6, 1, v5
        s_mov_b64 exec, 0xff
        buffer_load_dword v167, v5, s[24:27], s36 offen sc1
        buffer_load_dword v167, v6, s[24:27], s37 offen sc1
        s_mov_b64 exec, -1
        buffer_load_dword v167, v14, s[24:27], s42 offen sc1""")
    for i in range(9):
        a("s_barrier")
    lds_wait(a, O_R, 4)
    for i in range(7):
        for it in side[i]:
            a(it)
    a("""buffer_load_dwordx2 v[12:13], v14, s[24:27], s42 offen sc1
    s_waitcnt vmcnt(0)""")
    lds_add(a, O_FD)
    a("s_branch L_h_p\nL_h_g:")
    for i in range(7):
        if OPT["qat"] == i:
            qtouch(0)
        if OPT["qat2"] == i:
            qtouch(1)
        for it in side[i]:
            a(it)
        if i < 6:
            a("s_barrier")
    a(f"""buffer_load_dwordx2 v[12:13], v14, s[24:27], s42 offen sc1
    s_barrier
    s_barrier
    L_h_p:
    s_waitcnt vmcnt(0)""")
    purity(a)
    for it in side[8]:
        a(it)
    a(f"""s_cmp_eq_u32 s{CT}, 15
    s_cbranch_scc1 L_h_q
    s_barrier
    L_h_q:""")
    for it in side[9]:
        a(it)
    lds_wait(a, O_R, 4)
    a(f"""s_lshl_b32 s36, s{XCD}, 9
    s_add_u32 s36, s36, {WS_FL}""")
    stamp(a, 2)
    if OPT["hpost"]:
        a(f"s_setprio {OPT['hpost']}")
    poll(a, "buffer_load_dword v12, v11, s[24:27], s36 offen sc1", [12])
    stamp(a, 4)
    a(f"""s_lshl_b32 s36, s{XCD}, 12
    s_add_u32 s36, s36, {WS_FR-4096}""")
    if OPT["rfl"]:
        a(f"""s_lshl_b32 s37, s{CT}, 8
        s_lshl_b32 s38, s{RBL}, 3
        s_add_u32 s37, s37, s38
        s_add_u32 s37, s37, s36
        s_add_u32 s37, s37, 4096
        v_lshlrev_b32 v5, 7, v1
        v_mov_b32 v8, s{TAG}
        v_mov_b32 v9, s{TAG}
        s_mov_b64 exec, 3
        s_barrier
        buffer_store_dwordx2 v[8:9], v5, s[24:27], s37 offen sc1
        s_mov_b64 exec, -1""")
        if OPT["rfl"] == 1:
            lds_wait(a, O_B2, OPT["fdel"])
    else:
        a("s_barrier")
    if OPT["rfl"] != 2:
        a("buffer_load_dword v12, v15, s[24:27], s36 offen sc1")
    fw = "buffer_load_dword v12, v16, s[24:27], s45 offen sc1"
    a(f"""s_lshr_b32 s43, s{LOC}, 2
    s_mul_i32 s43, s43, 102400
    s_add_u32 s43, s43, {WS_WP}
    s_mov_b32 s45, {WS_FW}
    v_lshrrev_b32 v5, 2, v1
    v_and_b32 v6, 3, v1
    v_lshlrev_b32 v6, 2, v6
    v_lshl_add_u32 v16, v5, 7, v6
    v_mov_b32 v17, 1
    v_mov_b32 v18, 2
    s_cmp_eq_u32 s{XCD}, 0
    s_cbranch_scc1 L_nofr""")
    if OPT["rfl"] == 2:
        a(f"""s_add_u32 s40, s12, s36
        s_addc_u32 s41, s13, 0
        s_lshr_b32 s37, s33, 3
        s_lshl_b32 s37, s37, 7
        s_add_u32 s46, s40, s37
        s_addc_u32 s47, s41, 0
        s_add_u32 s37, s33, 2
        s_lshr_b32 s37, s37, 3
        s_lshl_b32 s37, s37, 7
        s_add_u32 s48, s40, s37
        s_addc_u32 s49, s41, 0
        s_mov_b32 s38, s{TAG}
        s_mov_b32 s39, s{TAG}
        s_mov_b32 s50, {OPT["ntry"]}
        s_waitcnt vmcnt(0)
        L_sfr:
        s_load_dwordx4 s[4:7], s[46:47], 1280 glc
        s_load_dwordx4 s[8:11], s[48:49], 1280 glc
        s_load_dwordx4 s[52:55], s[46:47], 2560 glc
        s_load_dwordx4 s[56:59], s[48:49], 2560 glc
        s_waitcnt lgkmcnt(0)
        s_xor_b64 s[40:41], s[4:5], s[38:39]""")
        for p in (6, 8, 10, 52, 54, 56, 58):
            a(f"s_xor_b64 s[{p}:{p+1}], s[{p}:{p+1}], s[38:39]\ns_or_b64 s[40:41], s[40:41], s[{p}:{p+1}]")
        a("""s_cbranch_scc0 L_nofr
        s_sub_u32 s50, s50, 1
        s_cmp_lg_u32 s50, 0
        s_cbranch_scc1 L_sfr""")
    poll(a, "buffer_load_dword v12, v15, s[24:27], s36 offen sc1", [12], pre=OPT["rfl"] != 2)
    a("L_nofr:")
    lds_wait(a, O_B2, OPT["hdel"])
    stamp(a, 7)
    a(f"""s_cmp_eq_u32 s{XCD}, 0
    s_cbranch_scc1 L_wlate
    s_mul_i32 s36, s{XCD}, 240
    s_add_u32 s36, s36, s33
    s_lshl_b32 s36, s36, 12
    s_add_u32 s36, s36, {(WS_L - XB + 80*4096) & 0xffffffff}""")
    for q in (3, 2, 1, 0):
        if q == 1:
            a(fw)
        for sec in range(2):
            for j in range(3):
                a(f"""s_mov_b32 m0, {sec*L_V + j*CS + q*1024}
                s_add_u32 s37, s36, {sec*80*4096 + j*4096 + q*1024}
                buffer_load_dwordx4 v10, s[24:27], s37 offen sc1 lds""")
    a(f"""s_waitcnt vmcnt(13)
    ds_write_b32 v30, v17 offset:4
    s_waitcnt vmcnt(12)
    v_cmp_ne_u32 vcc, s{TAG}, v12
    s_cbranch_vccz L_wok
    L_wlate:
    s_waitcnt vmcnt(0)
    ds_write_b32 v30, v18 offset:4 """)
    poll(a, fw, [12])
    a("L_wok:")
    stamp(a, 6)
    wo_groups(a, 0, OPT["w0"])
    a(f"""s_waitcnt vmcnt({4*OPT["w0"]})
    ds_write_b32 v30, v18 offset:4""")
    stamp(a, 8)
    if OPT["wdl"]:
        wo_groups(a, OPT["w0"], 20)
        lds_wait(a, O_W, 1)
        wo_groups(a, 20, 25)
    else:
        wo_groups(a, 3, 25)
    a("s_waitcnt vmcnt(0)")
    lds_add(a, O_WO)
    a("s_waitcnt lgkmcnt(0)")
    stamp(a, 9)
    a(f"""s_cmp_lg_u32 s2, 255
    s_cbranch_scc1 L_h1_end
    s_mov_b32 s36, {WS_P2}
    v_min_u32 v5, 59, v1
    v_lshlrev_b32 v5, 10, v5""")
    lds_wait(a, 16, 1)
    tag_bytes(a)
    a(f"s_mov_b32 s50, {SPIN}\nL_ep:")
    for i in range(4):
        a(f"buffer_load_dwordx4 {vr(32+4*i,4)}, v5, s[24:27], s36 offen offset:{i*256} sc1")
    strip_tags(a, [32, 36, 40, 44], True)
    a("""s_sub_u32 s50, s50, 1
    s_cbranch_scc1 L_epo
    s_cbranch_vccnz L_ep
    L_epo:""")
    a(f"s_mov_b32 s36, {WS_EP}")
    flag_store(a, 36, False)
    a("L_h1_end:")
    finish(a)


def tag_bytes(a):
    a(f"""s_and_b32 s52, s{TAG}, 0xff
    s_bfe_u32 s53, s{TAG}, 0x80008
    s_bfe_u32 s54, s{TAG}, 0x80010
    s_lshr_b32 s55, s{TAG}, 24""")


def strip_tags(a, regs, waits=None):
    a("v_mov_b32 v9, 0")
    for i, r in enumerate(regs):
        if waits:
            a(f"s_waitcnt vmcnt({len(regs)-1-i})")
        for j in range(4):
            a(f"v_xor_b32 v{r+j}, s{52+j}, v{r+j}")
        a(f"v_or3_b32 v9, v9, v{r}, v{r+1}\nv_or3_b32 v9, v9, v{r+2}, v{r+3}")
    a("v_and_b32 v9, 0xff, v9\nv_cmp_ne_u32 vcc, 0, v9")


def sel_by_g(a, o, b, st, tag=True):
    a(f"""v_cndmask_b32_e64 v{o}, v{b}, v{b+st}, s[44:45]
    v_cndmask_b32_e64 v{o}, v{o}, v{b+2*st}, s[46:47]
    v_cndmask_b32_e64 v{o}, v{o}, v{b+3*st}, s[48:49]""")
    if tag:
        a(f"v_mov_b32 v{o+1}, s{TAG}")


def ffn(a):
    a(f"""L_ffn:
    s_load_dwordx4 s[8:11], s[0:1], 40
    s_load_dwordx2 s[40:41], s[0:1], 56
    s_load_dwordx2 s[44:45], s[0:1], 16
    s_load_dwordx2 s[46:47], s[0:1], 72
    v_lshlrev_b32 v10, 4, v1
    s_mul_i32 s33, s{XCD}, 30
    s_add_u32 s33, s33, s{LOC}         ; job
    s_mul_i32 s34, s33, 6554
    s_lshr_b32 s34, s34, 16            ; b
    s_mul_i32 s35, s34, 10
    s_sub_u32 s35, s33, s35
    v_lshrrev_b32 v5, 3, v1
    v_and_b32 v7, 7, v1
    v_mul_u32_u24 v6, 3072, v5
    v_lshl_add_u32 v11, v7, 4, v6
    v_mul_u32_u24 v6, 1280, v5
    v_lshl_add_u32 v12, v7, 4, v6
    v_bfe_u32 v6, v1, 2, 2
    v_lshl_add_u32 v6, v4, 3, v6
    v_lshlrev_b32 v6, 7, v6
    v_and_b32 v8, 3, v1
    v_lshl_add_u32 v6, v8, 3, v6
    v_add_u32 v13, {L_FW}, v6
    v_mov_b32 v30, {M_PURE}
    s_mul_i32 s38, s35, 64*3072
    s_lshl_b32 s36, s34, 7
    s_add_u32 s38, s38, s36
    s_mul_i32 s39, s34, 64*1280
    s_lshl_b32 s36, s35, 7
    s_add_u32 s39, s39, s36
    s_waitcnt lgkmcnt(0)""")
    epoch_load(a)
    srd(a, SX, 4, 2621440)
    srd(a, SW, 40, 1966080)
    srd(a, SS, 12, WS_END)
    srd(a, SA, 8, 1966080)
    srd(a, SB, 10, 1966080)
    epoch_fin(a)
    stamp(a, 1)
    if OPT["fpre"]:
        a(f"s_setprio {OPT['fpre']}")
    def weights(n0=0, n1=24):
        for m in range(3):
            for i in range(8):
                if not n0 <= m * 8 + i < n1:
                    continue
                s_, v_, so, st = ((SA, 11, 38, 3072), (SB, 11, 38, 3072), (SW, 12, 39, 1280))[m]
                a(f"""s_mov_b32 m0, {L_FW+m*8192+i*1024}
                s_add_u32 s36, s{so}, {i*8*st}
                buffer_load_dwordx4 v{v_}, s[{s_}:{s_+3}], s36 offen {OPT['fnt']} lds""")
    cl = "buffer_load_dwordx4 v[24:27], v10, s[24:27], s51 offen sc1"
    def touch():
        a(f"""s_mul_i32 s36, s{XCD}, {XB}
        s_sub_u32 s37, s36, {XB}
        s_max_i32 s37, s37, 0
        s_load_dword s3, s[44:45], 0
        s_load_dword s3, s[12:13], s36
        s_load_dword s3, s[8:9], 0
        s_load_dword s3, s[10:11], 0
        s_load_dword s3, s[40:41], 0
        s_load_dword s3, s[12:13], s37
        s_add_u32 s36, s36, {XB-64}
        s_mul_i32 s37, s{XCD}, {256*1280}
        s_load_dword s3, s[12:13], s36
        {"s_load_dword s3, s[46:47], s37" if OPT["otch"] else ""}
        s_load_dword s3, s[6:7], 0
        s_mov_b32 s36, {2457600-64}
        s_load_dword s3, s[6:7], s36""")
    if OPT["stl"] == 1 and OPT["stw"]:
        touch()
    a(f"""    s_mov_b32 s51, {WS_CAND}
    s_cmp_lg_u32 s{CT}, 15
    s_cbranch_scc1 L_f_w""")
    for i in range(10):
        if (OPT["stl"] == 1 and not OPT["stw"] and i == 0) or (OPT["stl"] == 2 and i == 1):
            touch()
        a("s_barrier")
    a(f"""s_waitcnt lgkmcnt(0)
    s_mov_b32 s3, 1
    s_mov_b32 s50, {SPIN}
    s_branch L_f_b1
    L_f_w:""")
    late = 0
    fws = [int(x) for x in OPT["fws"].split("_") if x]
    OPT["fwe"] = sum(fws)
    NW = OPT["ntail"] if OPT["wdl"] else 24
    for i in range(9):
        a("s_barrier")
        if i == 0 and OPT["stl"] == 2 and OPT["stw"]:
            touch()
        if i == 8:
            a("s_waitcnt lgkmcnt(0)")
        if i < 8:
            if OPT["fwm"]:
                weights(3 * i, 3 * i + 3)
            if i < len(fws):
                weights(NW - sum(fws[:i+1]), NW - sum(fws[:i]))
    a(cl)
    if not OPT["fwm"]:
        weights(OPT["fskip"], NW - OPT["fwe"])
        late += NW - OPT["fwe"] - OPT["fskip"]
    def frags(ms=(0, 1) if OPT["wdl"] else (0, 1, 2)):
        if OPT["wdl"] == 2 and len(ms) == 2:
            weights(NW, 24)
        for m in ms:
            if m == NW // 8 and len(ms) == 2:
                a("s_waitcnt vmcnt(8)")
            for t in range(4):
                for ks in range(2):
                    o = m * 8192 + ks * 4096 + t * 32
                    r = 64 + m * 32 + t * 8 + ks * 4
                    a(f"""ds_read_b64_tr_b16 v[{r}:{r+1}], v13 offset:{o}
                    ds_read_b64_tr_b16 v[{r+2}:{r+3}], v13 offset:{o+512}""")
                if t & 1:
                    a("s_waitcnt lgkmcnt(4)")
        a("s_waitcnt lgkmcnt(0)")
        if OPT["wdl"] == 1 and len(ms) == 2:
            weights(16, 24)
    a(f"""s_mov_b32 s3, 0
    s_mov_b32 s50, {SPIN}
    s_barrier
    s_waitcnt vmcnt({late})
    L_f_chk:
    v_xor_b32 v9, s{TAG}, v25
    v_bitop3_b32 v9, v9, v27, s{TAG} bitop3:0xf6
    v_cmp_ne_u32 vcc, 0, v9
    s_cbranch_vccz L_f_ok
    s_sub_u32 s50, s50, 1
    s_cbranch_scc1 L_f_ok
    s_cmp_eq_u32 s3, 2
    s_cbranch_scc1 L_f_again
    s_cmp_eq_u32 s3, 1
    s_cbranch_scc1 L_f_b1
    s_cmp_eq_u32 s50, {SPIN-1 if OPT["a2"] else -1}
    s_cbranch_scc1 L_f_again
    s_waitcnt vmcnt(0)""")
    frags()
    a(f"""s_mov_b32 s3, 1
    s_branch L_f_again
    L_f_b1:
    s_setprio {OPT['fprio']}
    s_barrier
    s_mov_b32 s3, 2
    L_f_again:
    {cl}
    s_waitcnt vmcnt(0)
    s_branch L_f_chk
    L_f_ok:""")
    stamp(a, 3)
    top2(a, 24, 26, 21, 40, 41, 44)
    key_decode(a, 40, 42, 46, 36)
    key_decode(a, 41, 43, 47, 36)
    a(f"""v_mov_b32 v16, s42
    v_mov_b32 v17, s43
    v_mov_b32 v18, s46
    v_mov_b32 v19, s47
    v_or_b32 v16, 0x10000, v16
    ds_write_b128 v30, v[16:19] offset:16
    v_mov_b32 v20, s42
    v_and_b32 v6, 1, v1
    v_cmp_eq_u32 s[44:45], 0, v6
    s_lshl_b32 s36, s35, 7
    s_nop 0
    v_cndmask_b32_e64 v7, v17, v20, s[44:45]
    v_mul_u32_u24 v7, 1280, v7
    v_lshl_add_u32 v7, v4, 4, v7
    s_cmp_lg_u32 s{CT}, 15
    s_cbranch_scc1 L_f_job""")
    tag_bytes(a)
    if OPT["wdl"]:
        lds_add(a, O_W)
    a(f"""s_branch L_f_gather
    L_f_job:
    buffer_load_dwordx4 v[24:27], v7, s[16:19], s36 offen
    buffer_load_dwordx4 v[160:163], v7, s[16:19], s36 offen offset:64
    v_cmp_eq_u32 s[44:45], 1, v4
    v_cmp_eq_u32 s[46:47], 2, v4
    v_cmp_eq_u32 s[48:49], 3, v4
    v_and_b32 v22, 3, v1
    v_lshlrev_b32 v22, 3, v22
    v_bfe_u32 v22, s{TAG}, v22, 8
    v_lshlrev_b32 v23, 2, v1
    v_mov_b32 v21, 0xffffff00
    ds_read_b32 v31, v30
    s_waitcnt lgkmcnt(0)
    v_readfirstlane_b32 s{PURE}, v31""")
    a("""s_cmp_lg_u32 s3, 0
    s_cbranch_scc1 L_f_nf
    s_waitcnt vmcnt(2)""")
    frags()
    if OPT["wdl"]:
        a("s_waitcnt vmcnt(8)\ns_branch L_f_s1")
    a("""L_f_nf:
    s_cmp_lg_u32 s3, 1
    s_cbranch_scc1 L_f_nb
    s_barrier
    L_f_nb:
    s_waitcnt vmcnt(0)
    L_f_s1:""")
    if OPT["fpre"] != OPT["fprio"]:
        a(f"s_setprio {OPT['fprio']}")
    tag_bytes(a)
    stamp(a, 4)
    for ks in range(2):
        for m in range(2):
            for t in range(4):
                d = 32 + (m * 4 + t) * 4
                a(f"v_mfma_f32_16x16x32_bf16 {vr(d,4)}, {vr((24, 160)[ks],4)}, {vr(64+m*32+t*8+ks*4,4)}, {'0' if ks == 0 else vr(d,4)}")
    a(f"""s_lshl_b32 s36, s33, 10
    s_add_u32 s36, s36, {WS_P1}
    s_nop 2""")
    for m in range(2):
        for tk in range(2):
            sel_by_g(a, 96 + m * 2 + tk, 32 + m * 16 + tk, 4, False)
    for j in range(4):
        a(f"v_and_or_b32 v{96+j}, v{96+j}, v21, s{52+j}")
    if OPT["p1loc"]:
        two_flavours(a, lambda sc: a(f"buffer_store_dwordx4 v[96:99], v10, s[24:27], s36 offen {sc}"))
    else:
        a("buffer_store_dwordx4 v[96:99], v10, s[24:27], s36 offen sc1")
    a(f"""s_mul_i32 s36, s34, 10240
    s_add_u32 s36, s36, {WS_P1}
    s_add_u32 s37, s36, 4096
    s_add_u32 s38, s36, 8192
    s_mov_b32 s50, {SPIN}
    s_waitcnt lgkmcnt(0)""")
    stamp(a, 5)
    a(f"""v_min_u32 v5, 9, v1
    v_lshlrev_b32 v5, 10, v5
    s_cmp_lg_u32 s3, 0
    s_cbranch_scc1 L_f_p0
    s_barrier
    s_branch L_f_p1
    L_f_p0:
    buffer_load_dword v6, v5, s[24:27], s36 offen sc1
    s_sub_u32 s50, s50, 1
    s_cbranch_scc1 L_f_p1o
    s_waitcnt vmcnt(0)
    v_and_b32 v6, 0xff, v6
    v_cmp_ne_u32 vcc, s52, v6
    s_cbranch_vccnz L_f_p0
    L_f_p1:""")
    stamp(a, 6)
    for i in range(10):
        a(f"buffer_load_dwordx4 {vr(32+4*i,4)}, v10, s[24:27], s{36+i//4} offen offset:{(i%4)*1024} sc1")
    strip_tags(a, [32 + 4 * i for i in range(10)], True)
    a("""    s_cbranch_vccnz L_f_p0
    L_f_p1o:
    s_waitcnt vmcnt(0)""")
    if OPT["wdl"]:
        frags((2,))
        lds_add(a, O_W)
    stamp(a, 7)
    for i in range(1, 10):
        for j in (0, 2):
            a(f"v_pk_add_f32 {vr(32+j,2)}, {vr(32+j,2)}, {vr(32+4*i+j,2)}")
    for tk in range(2):
        sigmoid(a, 14 + tk, f"v{32+tk}")
        a(f"v_mul_f32 v{14+tk}, v{14+tk}, v{32+tk}\nv_mul_f32 v{14+tk}, v{14+tk}, v{34+tk}")
    a(f"""v_cvt_pk_bf16_f32 v14, v14, v15
    v_lshl_add_u32 v6, v1, 1, v30
    ds_write_b16 v6, v14 offset:256
    ds_write_b16_d16_hi v6, v14 offset:384
    v_and_b32 v7, 1, v1
    v_lshl_add_u32 v7, v7, 7, v30
    v_lshl_add_u32 v7, v4, 4, v7
    s_waitcnt lgkmcnt(0)
    ds_read_b128 v[32:35], v7 offset:256
    ds_read_b128 v[36:39], v7 offset:320
    s_waitcnt lgkmcnt(0)""")
    for t in range(4):
        d = 64 + t * 4
        for ks in range(2):
            a(f"v_mfma_f32_16x16x32_bf16 {vr(d,4)}, {vr(32+4*ks,4)}, {vr(128+t*8+4*ks,4)}, {'0' if ks == 0 else vr(d,4)}")
    a(f"""s_lshl_b32 s36, s33, 8
    s_add_u32 s36, s36, {WS_P2}
    s_add_u32 s37, s36, {24*2560}
    s_nop 4""")
    for tk in range(2):
        sel_by_g(a, 96 + tk, 64 + tk, 4, False)
        a(f"""v_and_or_b32 v{96+tk}, v{96+tk}, v21, v22
        buffer_store_dword v{96+tk}, v23, s[24:27], s{36+tk} offen sc1""")
    stamp(a, 8)
    a("L_f_gather:")
    a(f"""s_and_b32 s36, s{LOC}, 3
    s_lshl_b32 s36, s36, 5
    s_lshl_b32 s37, s{XCD}, 8
    s_add_u32 s36, s36, s37
    s_xor_b32 s42, s42, s36
    s_xor_b32 s43, s43, s36
    s_and_b32 s42, s42, 0x760
    s_and_b32 s43, s43, 0x760
    s_min_u32 s36, s42, s43
    s_cmp_lg_u32 s36, 0
    s_cbranch_scc1 L_f_end
    s_lshr_b32 s32, s{LOC}, 2
    s_mul_i32 s40, s32, 320
    s_add_u32 s40, s40, {WS_P2}
    s_andn2_b32 s36, s40, 255
    s_add_u32 s36, s36, {24*2560}
    v_min_u32 v5, 47, v1
    v_lshrrev_b32 v6, 1, v5
    v_mul_u32_u24 v6, 2560, v6
    v_and_b32 v5, 1, v5
    v_lshl_add_u32 v5, v5, 8, v6
    v_min_u32 v7, 59, v1
    v_mul_u32_u24 v8, 3277, v7
    v_lshrrev_b32 v8, 16, v8
    v_mul_u32_u24 v6, 20, v8
    v_sub_u32 v6, v7, v6
    v_mul_u32_u24 v11, {8*2560}, v8
    v_lshl_add_u32 v11, v6, 4, v11
    v_lshl_add_u32 v12, v7, 4, v30
    v_lshl_add_u32 v13, v6, 4, v30
    v_mov_b32 v20, v13""")
    sigmoid(a, 18, "v18")
    sigmoid(a, 19, "v19")
    a("s_mov_b32 s41, 0")
    if OPT["yat"]:
        a("s_setprio 0")
        lds_wait(a, O_ATT, OPT["yat"])
        a("s_setprio 3")
    else:
        lds_wait(a, 4, 2)
    a(f"""s_mov_b32 s50, {SPIN}
    {"s_branch L_f_tok" if OPT["yat"] else ""}
    L_f_y0:
    buffer_load_dword v6, v5, s[24:27], s36 offen sc1
    s_sub_u32 s50, s50, 1
    s_cbranch_scc1 L_f_yo
    s_waitcnt vmcnt(0)
    v_and_b32 v6, 0xff, v6
    v_cmp_ne_u32 vcc, s52, v6
    s_cbranch_vccnz L_f_y0""")
    stamp(a, 9)
    a("""L_f_tok:
    s_cmp_lg_u32 s42, 0
    s_cbranch_scc1 L_f_next
    s_mov_b32 s37, s40""")
    for i in range(8):
        a(f"buffer_load_dwordx4 {vr(32+4*i,4)}, v11, s[24:27], s37 offen sc1\ns_add_u32 s37, s37, 2560")
    a(f"s_setprio {OPT['gprio']}")
    strip_tags(a, [32 + 4 * i for i in range(8)], True)
    a("s_cbranch_vccnz L_f_y0")
    for i in range(1, 8):
        for j in (0, 2):
            a(f"v_pk_add_f32 {vr(32+j,2)}, {vr(32+j,2)}, {vr(32+4*i+j,2)}")
    a(f"""ds_write_b128 v12, v[32:35] offset:{L_Y-L_MISC+640}
    ds_read_b128 v[36:39], v20 offset:{L_Y-L_MISC+640}
    ds_read_b128 v[40:43], v20 offset:{L_Y-L_MISC+960}
    ds_read_b128 v[44:47], v20 offset:{L_Y-L_MISC+1280}
    s_waitcnt lgkmcnt(0)""")
    for j in (0, 2):
        a(f"""v_pk_add_f32 {vr(36+j,2)}, {vr(36+j,2)}, {vr(40+j,2)}
        v_pk_add_f32 {vr(36+j,2)}, {vr(36+j,2)}, {vr(44+j,2)}
        v_pk_mul_f32 {vr(36+j,2)}, {vr(36+j,2)}, v[18:19] op_sel_hi:[1,0]""")
    a(f"""ds_write_b128 v13, v[36:39] offset:{L_Y-L_MISC}
    L_f_next:
    s_mov_b32 s42, s43
    s_add_u32 s40, s40, {24*2560}
    v_mov_b32 v18, v19
    v_add_u32 v13, 320, v13
    s_add_u32 s41, s41, 1
    s_cmp_lt_u32 s41, 2
    s_cbranch_scc1 L_f_tok
    L_f_yo:
    s_waitcnt vmcnt(0)""")
    lds_add(a, O_Y)
    a("s_waitcnt lgkmcnt(0)")
    stamp(a, 10)
    a("L_f_end:\ns_waitcnt lgkmcnt(0)")
    finish(a)


def main(out):
    a = Asm()
    head = f"""; gated mix of sliding-window attention and a top-2 routed FFN: one fused launch (written by a generator script)
; @launch grid=(256,1,1) block=(640,1,1) lds={LDS_BYTES}
.amdgcn_target "amdgcn-amd-amdhsa--gfx950"
.text
"""
    entry(a)
    loader(a)
    compute(a)
    stubs = attention(a)
    outproj(a)
    n0 = len(a.lines)
    helper1(a)
    if OPT["stamp"] == 3:
        body_, out_, k, skip = a.lines[n0:], [], 0, False
        for ln in body_:
            if "s_memrealtime" in ln or "s_memtime" in ln:
                continue
            if "s_cbranch_scc1 L_h_g" in ln: skip = True
            if ln.startswith("L_h_g:"): skip = False
            if ln.strip() == "s_endpgm":
                out_.append("    s_branch L_stampall")
                continue
            out_.append(ln)
            if (ln.strip() == "s_barrier" and not skip) or (ln.endswith("v17 offset:4") or (ln.endswith("v18 offset:4") and "vmcnt(12)" in out_[-2])):
                out_.append(f"    s_memrealtime s[{62+2*k}:{63+2*k}]"); k += 1
        a.lines[n0:] = out_
    ffn(a)
    router_loader(a)
    router(a)
    att_stubs(a, stubs)
    a.deferred2()
    stamp_out(a)
    a("L_exit:\ns_endpgm\nL_code_end:")
    body = a.text().replace("s_mov_b32 s43, 0\n    s_waitcnt lgkmcnt(0)", "s_mov_b32 s43, 0\n    s_movk_i32 s45, 0x4000\n    s_waitcnt lgkmcnt(0)")
    if OPT["al"]:
        body = align_fix(body, [("L_g_loop", "L_g_end"), ("L_g_q", "L_att_setup"), ("L_att_go", "L_att_fin"), ("L_op_loop", "L_op_end")])
    bad = check_hazards(body)
    tail = f""".section .rodata,"a"
.p2align 6
.amdhsa_kernel {NAME}_kernel
  .amdhsa_next_free_vgpr 168
  .amdhsa_next_free_sgpr 96
  .amdhsa_accum_offset 168
  .amdhsa_group_segment_fixed_size 0
  .amdhsa_kernarg_size 96
  .amdhsa_user_sgpr_count 2
  .amdhsa_user_sgpr_kernarg_segment_ptr 1
  .amdhsa_system_sgpr_workgroup_id_x 1
.end_amdhsa_kernel
"""
    open(out, "w").write(head + body + tail)
    print("written", out, "hazards:", len(bad))


if __name__ == "__main__":
    main(sys.argv[1])
```
